```python
import torch

def _softmax(x, axis=-1):
    return torch.softmax(x, dim=axis)
def _gelu(x):
    return torch.nn.functional.gelu(x, approximate="tanh")
def _silu(x):
    return torch.nn.functional.silu(x)
def _sigmoid(x):
    return torch.sigmoid(x)
def _layernorm(x, axis=-1, eps=1e-5):
    m = x.mean(dim=axis, keepdim=True)
    v = x.var(dim=axis, keepdim=True, unbiased=False)
    return (x - m) / torch.sqrt(v + eps)
def _scatter_add(tgt, idx, src, axis=0):
    return tgt.clone().index_add_(axis, idx, src)
def _segment_sum(src, seg, n):
    out = torch.zeros((n,) + src.shape[1:], dtype=src.dtype)
    return out.index_add_(0, seg, src)
def _pad(x, pw):
    flat = tuple(v for pair in reversed(pw) for v in pair)
    return torch.nn.functional.pad(x, flat)

kernel_name = 'sequential_preLN__grouped_kv_mqa__dense_activation_relu__prompt'

def setup_inputs():

    _w = (lambda a: (lambda t: t.to(torch.bfloat16) if t.is_floating_point() else t)(torch.as_tensor(a)))
    def _A_setup():
        B, S, D, H = 1, 2048, 576, 32
        Dh = D // H
        return {
            "x": _w((lambda *s: torch.randn(*s, dtype=torch.bfloat16) * 0.05)(B, S, D)),
            "wq": _w((lambda *s: torch.randn(*s, dtype=torch.bfloat16) * 0.05)(D, H * Dh)),
            "wk": _w((lambda *s: torch.randn(*s, dtype=torch.bfloat16) * 0.05)(D, Dh)),
            "wv": _w((lambda *s: torch.randn(*s, dtype=torch.bfloat16) * 0.05)(D, Dh)),
            "wo": _w((lambda *s: torch.randn(*s, dtype=torch.bfloat16) * 0.05)(H * Dh, D)),
        }
    _A_in = _A_setup()

    def _B_setup():
        B, S, D, Dff = 1, 2048, 576, 4608
        return {
            "x": _w((lambda *s: torch.randn(*s, dtype=torch.bfloat16) * 0.05)(B, S, D)),
            "w1": _w((lambda *s: torch.randn(*s, dtype=torch.bfloat16) * 0.05)(D, Dff)),
            "w2": _w((lambda *s: torch.randn(*s, dtype=torch.bfloat16) * 0.05)(Dff, D)),
        }
    _B_in = _B_setup()

    return {
        "A_x": _A_in["x"],
        "A_wq": _A_in["wq"],
        "A_wk": _A_in["wk"],
        "A_wv": _A_in["wv"],
        "A_wo": _A_in["wo"],
        "B_x": _B_in["x"],
        "B_w1": _B_in["w1"],
        "B_w2": _B_in["w2"],
    }

def reference(A_x, A_wq, A_wk, A_wv, A_wo, B_x, B_w1, B_w2):
    def _A_ref(x, wq, wk, wv, wo):
        B, S, D = x.shape
        H = 32
        Dh = D // H
        q = (lambda x, *d: x.permute(*d))((x @ wq).reshape(B, S, H, Dh), 0, 2, 1, 3)
        k = x @ wk
        v = x @ wv
        scores = torch.einsum("bhqd,bkd->bhqk", q, k) * (Dh ** -0.5)
        p = _softmax(scores, axis=-1)
        o = torch.einsum("bhqk,bkd->bhqd", p, v)
        return (lambda x, *d: x.permute(*d))(o, 0, 2, 1, 3).reshape(B, S, H * Dh) @ wo

    def _B_ref(x, w1, w2):
        h = torch.einsum("bsd,df->bsf", x, w1)
        zero = torch.zeros_like(h)
        h = torch.maximum(h, zero)
        return torch.einsum("bsf,fd->bsd", h, w2)

    x = A_x
    h = x + _A_ref(_layernorm(x, axis=-1), A_wq, A_wk, A_wv, A_wo)
    h2 = h + _B_ref(_layernorm(h, axis=-1), B_w1, B_w2)
    return h2
```

```python
import re

TRANS = ("v_exp_f32", "v_log_f32", "v_rcp_f32", "v_rsq_f32", "v_sqrt_f32", "v_sin_f32", "v_cos_f32",
         "v_exp_f16", "v_rcp_iflag_f32")
REG_RE = re.compile(r"\b([vsa])\[(\d+):(\d+)\]|\b([vsa])(\d+)\b|\b(vcc|exec|m0|vcc_lo|vcc_hi|exec_lo|exec_hi)\b")


def regs_of(op):
    out = set()
    for m in REG_RE.finditer(op):
        if m.group(1):
            for i in range(int(m.group(2)), int(m.group(3)) + 1):
                out.add((m.group(1), i))
        elif m.group(4):
            out.add((m.group(4), int(m.group(5))))
        else:
            n = m.group(6)
            if n.startswith("vcc"):
                out.add(("x", "vcc"))
            elif n.startswith("exec"):
                out.add(("x", "exec"))
            else:
                out.add(("x", "m0"))
    return out


def split_ops(s):
    ops, depth, cur = [], 0, ""
    for ch in s:
        if ch == "[":
            depth += 1
        if ch == "]":
            depth -= 1
        if ch == "," and depth == 0:
            ops.append(cur.strip())
            cur = ""
        else:
            cur += ch
    if cur.strip():
        ops.append(cur.strip())
    return ops


class Ins:
    def __init__(self, text):
        self.text = text
        t = text.split(";")[0].strip()
        self.label = None
        self.op = None
        self.rd = set()
        self.wr = set()
        self.kind = None
        if t.endswith(":"):
            self.label = t[:-1]
            self.kind = "label"
            return
        if t.startswith(".") or not t:
            self.kind = "dir"
            return
        parts = t.split(None, 1)
        op = parts[0]
        self.op = op
        rest = parts[1] if len(parts) > 1 else ""
        ops = split_ops(rest)
        self.ops = ops
        R = [regs_of(o) for o in ops]
        allr = set().union(*R) if R else set()
        self.dpp = ("_dpp" in op) or ("row_" in rest) or ("quad_perm" in rest)
        self.sdwa = "_sdwa" in op or "op_sel:" in rest
        if op.startswith("v_mfma"):
            self.kind = "mfma"
            self.wr = R[0]
            self.A, self.B, self.C = R[1], R[2], R[3]
            self.rd = R[1] | R[2] | R[3]
            self.passes = 8 if "32x32" in op else (2 if "4x4" in op else 4)
        elif op.startswith("v_"):
            self.kind = "valu"
            base = op.replace("_e32", "").replace("_e64", "").replace("_dpp", "").replace("_sdwa", "")
            self.base = base
            self.trans = base in TRANS
            self.dot = base.startswith("v_dot")
            if base.startswith("v_cmp"):
                self.wr = R[0]
                self.rd = set().union(*R[1:])
                if base.startswith("v_cmpx"):
                    self.wr = self.wr | {("x", "exec")}
            elif base in ("v_add_co_u32", "v_sub_co_u32", "v_addc_co_u32", "v_subb_co_u32", "v_subrev_co_u32",
                          "v_mad_u64_u32", "v_div_scale_f32"):
                self.wr = R[0] | R[1]
                self.rd = set().union(*R[2:])
            elif base.startswith("v_permlane") and "swap" in base:
                self.wr = R[0] | R[1]
                self.rd = R[0] | R[1]
            elif base in ("v_fmac_f32", "v_dot2c_f32_bf16", "v_writelane_b32") or self.dpp or "PRESERVE" in rest:
                self.wr = R[0]
                self.rd = allr
            elif base == "v_nop":
                pass
            else:
                self.wr = R[0]
                self.rd = set().union(*R[1:]) if len(R) > 1 else set()
        elif op.startswith("ds_"):
            self.kind = "ds"
            if op.startswith("ds_read") or "permute" in op or "swizzle" in op or "_rtn" in op:
                self.wr = R[0]
                self.rd = set().union(*R[1:])
            else:
                self.rd = allr
        elif op.startswith("buffer_") or op.startswith("global_") or op.startswith("flat_"):
            self.kind = "vmem"
            self.lds = (" lds" in (" " + rest)) or "_lds_" in op
            self.wide_store = ("store" in op) and ("x3" in op or "x4" in op)
            if self.lds:
                self.rd = allr | {("x", "m0")}
            elif "load" in op:
                self.wr = R[0]
                self.rd = set().union(*R[1:])
            elif "atomic" in op and " sc0" in rest:
                self.wr = R[0]
                self.rd = allr
            else:
                self.rd = allr
            if "store" in op:
                self.data = R[0] if op.startswith("buffer_") else R[1]
        elif op.startswith("s_"):
            self.kind = "salu"
            if op in ("s_nop",):
                self.kind = "nop"
                self.n = int(ops[0], 0) + 1
            elif op.startswith("s_cmp") or op.startswith("s_bitcmp") or op.startswith("s_cbranch") or op in (
                    "s_branch", "s_waitcnt", "s_barrier", "s_endpgm", "s_setprio", "s_sleep", "s_setpc_b64"):
                self.rd = allr
            elif "saveexec" in op:
                self.wr = R[0] | {("x", "exec")}
                self.rd = set().union(*R[1:]) | {("x", "exec")}
            else:
                self.wr = R[0] if R else set()
                self.rd = set().union(*R[1:]) if len(R) > 1 else set()
        else:
            raise ValueError("unknown instr: " + text)

    def states(self):
        if self.kind in ("label", "dir"):
            return 0
        if self.kind == "nop":
            return self.n
        return 1


def vonly(s):
    return {r for r in s if r[0] in "va"}


def sonly(s):
    return {r for r in s if r[0] == "s" or r == ("x", "vcc")}


def need(p, c):
    n = 0
    if p.kind == "valu":
        w = vonly(p.wr)
        if c.kind == "mfma" and (w & c.rd):
            n = max(n, 2)
        if c.kind == "valu":
            if p.trans and not c.trans and (w & c.rd):
                n = max(n, 1)
            if c.dpp and (w & c.rd):
                n = max(n, 2)
            if c.base.startswith("v_permlane") and (w & c.rd):
                n = max(n, 2)
            if c.base in ("v_readlane_b32", "v_readfirstlane_b32") and (w & c.rd):
                n = max(n, 1)
            if p.sdwa and (w & (c.rd | c.wr)):
                n = max(n, 1)
            if p.dot and (w & (c.rd | c.wr)):
                if c.base == p.base:
                    srcab = regs_of(c.ops[1]) | regs_of(c.ops[2])
                    if w & srcab:
                        n = max(n, 3)
                else:
                    n = max(n, 3)
            sw = sonly(p.wr)
            if sw & c.rd:
                n = max(n, 4 if c.base in ("v_readlane_b32", "v_writelane_b32") else 2)
            if ("x", "exec") in p.wr:
                n = max(n, 5)
        if p.dot and c.kind in ("mfma", "ds", "vmem") and (w & c.rd):
            n = max(n, 3)
        if c.kind == "vmem" and (sonly(p.wr) & c.rd):
            n = max(n, 5)
        if c.kind == "salu" and (sonly(p.wr) & c.rd):
            n = max(n, 1)
        if c.kind == "mfma" and ("x", "exec") in p.wr:
            n = max(n, 4)
    elif p.kind == "mfma":
        big = {2: 5, 4: 8, 8: 12}[p.passes]
        if c.kind == "mfma":
            if p.wr & (c.A | c.B):
                n = max(n, big)
            if p.wr & c.C:
                if p.wr == c.C and p.passes == c.passes:
                    n = max(n, 2 if p.passes == 2 else 0)
                else:
                    n = max(n, {2: 4, 4: 6, 8: 10}[p.passes])
        elif c.kind in ("valu", "ds", "vmem"):
            if p.wr & (c.rd | c.wr):
                n = max(n, big)
            if c.kind == "valu" and (p.C & c.wr):
                n = max(n, {2: 1, 4: 3, 8: 7}[p.passes])
    elif p.kind == "salu":
        if ("x", "m0") in p.wr and c.kind == "vmem" and c.lds:
            n = max(n, 1)
    elif p.kind == "vmem":
        if p.wide_store and (p.data & vonly(c.wr)):
            n = max(n, 2 if c.kind in ("valu", "mfma") else 1)
    return n


class Kernel:
    def __init__(self, name, vgprs=256, sgprs=96, accum=None):
        self.name = name
        self.lines = []
        self.vgprs = vgprs
        self.sgprs = sgprs
        self.accum = accum
        self._lab = 0

    def e(self, *texts):
        for t in texts:
            for l in t.split("\n"):
                if l.strip():
                    self.lines.append(l.strip())

    def label(self, name):
        self.lines.append(f"{name}:")

    def newlabel(self, base="L"):
        self._lab += 1
        return f"{self.name}_{base}{self._lab}"

    def finalize(self):
        ins = [Ins(l) for l in self.lines]
        changed = True
        while changed:
            changed = False
            labels = {x.label: i for i, x in enumerate(ins) if x.kind == "label"}
            preds = {}
            for i, x in enumerate(ins):
                if x.op and (x.op.startswith("s_cbranch") or x.op == "s_branch"):
                    tgt = x.ops[0]
                    preds.setdefault(labels[tgt], []).append(i)
            for i, c in enumerate(ins):
                if c.kind in ("label", "dir", "nop"):
                    continue
                req = 0
                stack = [(i - 1, 0)]
                seen = set()
                while stack:
                    j, dist = stack.pop()
                    if j < 0 or dist >= 12 or (j, dist) in seen:
                        continue
                    seen.add((j, dist))
                    p = ins[j]
                    if p.kind == "label":
                        for b in preds.get(j, []):
                            stack.append((b, dist))
                        q = j - 1
                        while q >= 0 and ins[q].kind in ("dir",):
                            q -= 1
                        if q >= 0 and not (ins[q].op in ("s_branch", "s_endpgm", "s_setpc_b64")):
                            stack.append((j - 1, dist))
                        continue
                    if p.kind not in ("dir", "nop"):
                        r = need(p, c) - dist
                        if r > req:
                            req = r
                    stack.append((j - 1, dist + p.states()))
                if req > 0:
                    ins.insert(i, Ins(f"s_nop {req - 1}"))
                    changed = True
                    break
        self.ins = ins
        mv = 0
        ms = 0
        for x in ins:
            for r in (x.rd | x.wr):
                if r[0] == "v":
                    mv = max(mv, r[1] + 1)
                if r[0] == "s":
                    ms = max(ms, r[1] + 1)
        self.maxv, self.maxs = mv, ms
        return ins

    def text(self):
        ins = self.finalize()
        nv = max(self.maxv, 8)
        if self.vgprs is not None:
            assert self.maxv <= self.vgprs, (self.name, self.maxv)
        acc = (nv + 3) // 4 * 4
        out = [f".globl {self.name}", ".p2align 8", f".type {self.name},@function", f"{self.name}:"]
        for x in ins:
            out.append(x.text if x.kind == "label" else "    " + x.text)
        code = "\n".join(out) + "\n"
        kd = f""".amdhsa_kernel {self.name}
  .amdhsa_next_free_vgpr {nv}
  .amdhsa_next_free_sgpr {max(self.maxs, 16)}
  .amdhsa_accum_offset {acc}
  .amdhsa_group_segment_fixed_size 0
  .amdhsa_kernarg_size 88
  .amdhsa_user_sgpr_count 2
  .amdhsa_user_sgpr_kernarg_segment_ptr 1
  .amdhsa_system_sgpr_workgroup_id_x 1
  .amdhsa_float_denorm_mode_32 3
.end_amdhsa_kernel
"""
        return code, kd
```

```python
from asmlib import Kernel
from layout import *
from k_small import f2u, srd, ex, reduce_g_add

S0, S1, OA, P, KF, V0, V1, K2F, Q, Q2E, Q2O = 16, 32, 48, 64, 72, 76, 80, 84, 88, 92, 94
T0 = 96
PLO, PHI = 112, 136
LDS_ATTN = 152 * 1024


def r4(b):
    return f"v[{b}:{b+3}]"


def r16(b):
    return f"v[{b}:{b+15}]"


def gen_k2(pack=True):
    k = Kernel("attn_kernel")
    k.e("s_cmp_ge_u32 s2, 256", "s_cbranch_scc1 attn_end")
    k.e("s_load_dwordx4 s[4:7], s[0:1], 48", "s_load_dwordx2 s[12:13], s[0:1], 80")
    k.e("v_and_b32 v1, 63, v0", "v_and_b32 v2, 31, v0", "v_bfe_u32 v3, v0, 5, 1", "v_lshrrev_b32 v7, 6, v0",
        "s_nop 0", "v_readfirstlane_b32 s30, v7")
    k.e("s_lshr_b32 s28, s2, 3", "s_and_b32 s29, s2, 7")
    k.e("s_lshr_b32 s34, s30, 2", "s_lshl_b32 s34, s34, 5", "s_lshl_b32 s35, s28, 6", "s_add_u32 s34, s34, s35",
        "s_mul_i32 s33, s34, 1152", "s_and_b32 s34, s30, 3", "s_lshl_b32 s35, s29, 2", "s_add_u32 s34, s34, s35",
        "s_mul_i32 s34, s34, 36", "s_add_u32 s33, s33, s34")
    k.e("s_movk_i32 s40, 1152", "v_mul_u32_u24 v8, s40, v2",
        "v_lshl_add_u32 v9, v3, 4, v8",
        "v_lshlrev_b32 v10, 3, v1", "v_lshlrev_b32 v11, 4, v1")
    k.e("s_waitcnt lgkmcnt(0)")
    srd(k, 16, 12, WS_END)
    k.e(f"s_add_u32 s34, s33, {WS_Q}", f"s_mov_b32 s35, {WS_KM}")
    k.e(f"buffer_load_dwordx4 {r4(Q)}, v9, s[16:19], s34 offen",
        f"buffer_load_dword v{T0}, v8, s[16:19], s34 offen offset:32",
        f"buffer_load_dwordx2 v[{T0+2}:{T0+3}], v10, s[16:19], s35 offen")
    k.e("s_lshl_b32 s34, s30, 10", f"s_add_u32 s35, s34, {WS_KV}")
    for i in range(19):
        k.e(f"s_add_u32 m0, s34, {i*8192}", f"s_add_u32 s36, s35, {i*8192}",
            "buffer_load_dwordx4 v11, s[16:19], s36 offen lds")
    if pack:
        k.e("s_lshl_b32 s50, s2, 3", "s_add_u32 s50, s50, s30",
            "s_mul_i32 s51, s50, 1821", "s_lshr_b32 s51, s51, 16",
            "s_mul_i32 s52, s51, 36", "s_sub_u32 s52, s50, s52",
            "s_mul_i32 s53, s51, 43", "s_lshr_b32 s53, s53, 7",
            "s_mul_i32 s54, s53, 3", "s_sub_u32 s54, s51, s54",
            "s_and_b32 s55, s53, 7", "s_lshr_b32 s53, s53, 3",
            "s_cmp_eq_u32 s53, 0",
            "s_cselect_b32 s20, s4, s6", "s_cselect_b32 s21, s5, s7", f"s_mov_b32 s22, {hex(W1B)}", "s_mov_b32 s23, 0x00020000",
            "s_movk_i32 s56, 1152", "s_cselect_b32 s56, 9216, s56",
            "s_movk_i32 s57, 1152", "s_cselect_b32 s57, s57, 663552", "s_mul_i32 s57, s57, s55",
            "s_mul_i32 s58, s54, 192", "s_mul_i32 s58, s58, s56", "s_add_u32 s57, s57, s58",
            "s_lshr_b32 s58, s52, 1", "s_lshl_b32 s58, s58, 5", "s_and_b32 s59, s52, 1", "s_lshl_b32 s59, s59, 2",
            "s_add_u32 s58, s58, s59",
            "s_lshl_b32 s59, s58, 1", "s_add_u32 s57, s57, s59")
    k.e("v_mov_b32 v12, v11")
    k.e("v_cmp_lt_u32 vcc, 18, v2", "v_mov_b32 v13, 18", "v_cndmask_b32 v13, v2, v13, vcc",
        "v_subrev_u32 v14, 20, v2", "v_cmp_gt_u32 vcc, 8, v14", "v_cndmask_b32 v13, v13, 0, vcc",
        "s_movk_i32 s40, 304", "v_mul_u32_u24 v14, s40, v3", "v_lshl_add_u32 v13, v13, 4, v14", f"v_add_u32 v13, {KV_V}, v13")
    k.e("v_min_u32 v14, 32, v1", "v_lshlrev_b32 v14, 4, v14", f"v_add_u32 v14, {KV_K2}, v14")
    k.e("v_cmp_eq_u32 s[44:45], 1, v3")
    k.e("s_waitcnt vmcnt(19)")
    k.e(f"v_cndmask_b32 v{T0}, v{T0}, 0, s[44:45]")
    k.e(f"v_mov_b32 v{T0+1}, 0")
    for r in (Q, Q + 1, Q + 2, Q + 3, T0):
        k.e(f"v_dot2c_f32_bf16 v{T0+1}, v{r}, v{r}")
    k.e(f"v_max_f32 v{T0+2}, v{T0+2}, v{T0+3}")
    for sh in (8, 4, 2, 1):
        k.e(f"v_max_f32_dpp v{T0+2}, v{T0+2}, v{T0+2} row_ror:{sh} row_mask:0xf bank_mask:0xf")
    k.e(f"v_mov_b32 v{T0+3}, v{T0+2}", f"v_permlane16_swap_b32 v{T0+2}, v{T0+3}", f"v_max_f32 v{T0+2}, v{T0+2}, v{T0+3}")
    k.e(f"v_mov_b32 v{T0+3}, v{T0+2}", f"v_mov_b32 v{T0+4}, v{T0+1}",
        f"v_permlane32_swap_b32 v{T0+2}, v{T0+3}", f"v_permlane32_swap_b32 v{T0+1}, v{T0+4}",
        f"v_max_f32 v{T0+2}, v{T0+2}, v{T0+3}", f"v_add_f32 v{T0+1}, v{T0+1}, v{T0+4}")
    k.e(f"v_mul_f32 v{T0+1}, v{T0+1}, v{T0+2}", f"v_sqrt_f32 v{T0+1}, v{T0+1}", f"v_mul_f32 v{T0+1}, {hex(f2u(1.02))}, v{T0+1}")
    k.e("s_mov_b32 s32, 0")
    k.label("attn_setm")
    k.e(f"v_xor_b32 v{T0+2}, 0x80000000, v{T0+1}",
        f"v_and_b32 v{T0+3}, 0xffff0000, v{T0+2}", f"v_sub_f32 v{T0+2}, v{T0+2}, v{T0+3}",
        f"v_and_b32 v{T0+4}, 0xffff0000, v{T0+2}", f"v_sub_f32 v{T0+2}, v{T0+2}, v{T0+4}",
        f"v_lshrrev_b32 v{T0+3}, 16, v{T0+3}", f"v_or_b32 v{T0+3}, v{T0+3}, v{T0+4}",
        f"v_lshrrev_b32 v{T0+2}, 16, v{T0+2}")
    k.e(f"v_cndmask_b32 v{Q2E}, v{T0}, v{T0+3}, s[44:45]", f"v_cndmask_b32 v{Q2E+1}, 0, v{T0+2}, s[44:45]",
        f"v_cndmask_b32 v{Q2O}, 0, v{T0+3}, s[44:45]", f"v_cndmask_b32 v{Q2O+1}, v{T0}, v{T0+2}, s[44:45]")
    k.e("v_mov_b32 v4, v12", "v_mov_b32 v5, v13", "v_mov_b32 v6, v14")
    k.e("s_cmp_eq_u32 s32, 10", "s_cbranch_scc1 attn_maxpass")
    for r in list(range(OA, OA + 16)) + list(range(P, P + 8)) + list(range(V1, V1 + 4)):
        k.e(f"v_mov_b32 v{r}, 0")
    k.e("s_mov_b32 s31, 16", "s_cmp_eq_u32 s32, 11", "s_cbranch_scc1 attn_start")
    k.e("s_mov_b32 s31, 2", "s_waitcnt vmcnt(15)", "s_barrier")
    k.label("attn_start")
    k.e(f"ds_read_b128 {r4(KF)}, v4", f"ds_read_b128 {r4(K2F)}, v6", f"ds_read_b128 {r4(V0)}, v5", "s_waitcnt lgkmcnt(0)")
    k.e(f"v_mfma_f32_32x32x16_bf16 {r16(S0)}, {r4(KF)}, {r4(Q)}, 0",
        f"v_mfma_f32_32x32x8_bf16 {r16(S0)}, v[{K2F}:{K2F+1}], v[{Q2E}:{Q2E+1}], {r16(S0)}")
    k.e(f"ds_read_b128 {r4(KF)}, v4 offset:1024", "s_waitcnt lgkmcnt(0)", "s_nop 7", "s_nop 3")
    k.e(".p2align 6")
    k.label("attn_loop")
    for tau in range(4):
        cur, nxt = (S0, S1) if tau % 2 == 0 else (S1, S0)
        t1 = (tau + 1) % 4
        koff = (tau + 2) * 1024 if tau < 2 else GRP + (tau - 2) * 1024
        v0off = (tau + 1) * 1216 if tau < 3 else GRP

        def ex_(a, b):
            for i in range(a, b):
                k.e(f"v_exp_f32 v{cur+i}, v{cur+i}")

        def cv(a, b):
            for i in range(a, b):
                k.e(f"v_cvt_pk_bf16_f32 v{P+i}, v{cur+2*i}, v{cur+2*i+1}")
        k.e("s_waitcnt lgkmcnt(2)")
        k.e(f"v_mfma_f32_32x32x16_bf16 {r16(nxt)}, {r4(KF)}, {r4(Q)}, 0")
        k.e(f"ds_read_b128 {r4(KF)}, v4 offset:{koff}")
        ex_(0, 3)
        k.e("s_waitcnt lgkmcnt(2)")
        k.e(f"v_mfma_f32_32x32x16_bf16 {r16(OA)}, {r4(V1)}, {r4(P+4)}, {r16(OA)}")
        k.e(f"ds_read_b128 {r4(V1)}, v5 offset:{tau*1216+608}")
        ex_(3, 6)
        q2 = Q2E if t1 % 2 == 0 else Q2O
        kk = K2F + 2 * (t1 // 2)
        k.e(f"v_mfma_f32_32x32x8_bf16 {r16(nxt)}, v[{kk}:{kk+1}], v[{q2}:{q2+1}], {r16(nxt)}")
        if tau == 2:
            k.e(f"ds_read_b128 {r4(K2F)}, v6 offset:{GRP}")
        ex_(6, 9)
        cv(0, 4)
        ex_(9, 12)
        k.e("s_waitcnt lgkmcnt(2)")
        k.e(f"v_mfma_f32_32x32x16_bf16 {r16(OA)}, {r4(V0)}, {r4(P)}, {r16(OA)}")
        k.e(f"ds_read_b128 {r4(V0)}, v5 offset:{v0off}")
        ex_(12, 16)
        if tau == 3:
            k.e(f"v_add_u32 v4, {GRP}, v4", f"v_add_u32 v5, {GRP}, v5", f"v_add_u32 v6, {GRP}, v6")
            k.e("s_sub_u32 s31, s31, 1", "s_cmp_lg_u32 s31, 0")
        cv(4, 8)
    k.e("s_cbranch_scc1 attn_loop")
    k.e("s_cmp_eq_u32 s32, 0", "s_cbranch_scc1 attn_phase0")
    k.e("s_cmp_eq_u32 s32, 1", "s_cbranch_scc1 attn_phase1")
    k.e("s_waitcnt lgkmcnt(0)")
    k.e(f"v_mfma_f32_32x32x16_bf16 {r16(OA)}, {r4(V1)}, {r4(P+4)}, {r16(OA)}")
    k.e(f"v_cndmask_b32 v{T0+5}, v{OA+10}, v{OA+12}, s[44:45]")
    k.e(f"v_cmp_le_f32 vcc, {hex(f2u(2.0**-40))}, v{T0+5}")
    k.e("s_cmp_eq_u32 s32, 11", "s_cbranch_scc1 attn_fin")
    k.e("s_cmp_eq_u64 vcc, -1", "s_cbranch_scc1 attn_fin")
    k.e("s_mov_b32 s32, 10", f"v_mov_b32 v{T0+1}, 0", "s_branch attn_setm")
    k.label("attn_fin")
    k.e(f"v_rcp_f32 v{T0+5}, v{T0+5}")
    for i in range(10):
        k.e(f"v_mul_f32 v{OA+i}, v{T0+5}, v{OA+i}")
    for i in range(5):
        k.e(f"v_cvt_pk_bf16_f32 v{P+i}, v{OA+2*i}, v{OA+2*i+1}")
    k.e("v_lshl_add_u32 v9, v3, 3, v8", f"s_add_u32 s34, s33, {WS_O}")
    k.e(f"buffer_store_dwordx2 v[{P}:{P+1}], v9, s[16:19], s34 offen",
        f"buffer_store_dwordx2 v[{P+2}:{P+3}], v9, s[16:19], s34 offen offset:16",
        ex(0xffffffff),
        f"buffer_store_dword v{P+4}, v9, s[16:19], s34 offen offset:32")
    k.e("s_endpgm")

    k.label("attn_phase0")
    k.e("s_waitcnt vmcnt(0)", "s_barrier")
    if pack:
        k.e("s_mov_b32 s32, 1", "s_mov_b32 s31, 4")
        k.e("s_cmp_ge_u32 s50, 1728", "s_cbranch_scc1 attn_loop")
        k.e(f"v_lshrrev_b32 v{T0+6}, 4, v1", f"v_lshlrev_b32 v{T0+6}, 3, v{T0+6}", f"v_mul_u32_u24 v15, s56, v{T0+6}",
            f"v_bfe_u32 v{T0+6}, v1, 2, 2", f"v_and_b32 v{T0+7}, 3, v1", f"v_lshl_add_u32 v{T0+6}, v{T0+6}, 3, v{T0+7}",
            f"v_lshl_add_u32 v15, v{T0+6}, 1, v15")
        k.e("s_mul_i32 s59, s56, 24")
        for ss in range(6):
            for jj in range(8):
                d = (PLO if jj % 2 == 0 else PHI) + ss * 4 + jj // 2
                k.e(f"buffer_load_ushort v{d}, v15, s[20:23], s57 offen", "s_add_u32 s57, s57, s56")
            k.e("s_add_u32 s57, s57, s59")
        k.e("s_branch attn_loop")
    else:
        k.e("s_mov_b32 s32, 2", "s_mov_b32 s31, 14", "s_branch attn_loop")
    k.label("attn_phase1")
    k.e("s_mov_b32 s32, 2", "s_mov_b32 s31, 10")
    if pack:
        k.e("s_cmp_ge_u32 s50, 1728", "s_cbranch_scc1 attn_loop")
        k.e("s_lshr_b32 s60, s52, 2", "s_and_b32 s61, s52, 3", "s_sub_u32 s62, s52, 32", "s_cmp_lt_u32 s52, 32",
            "s_cselect_b32 s60, s60, s62", "s_cselect_b32 s61, s61, 4",
            "s_mul_i32 s62, s60, 184320", "s_mul_i32 s63, s60, 147456", f"s_add_u32 s63, s63, {737280 - 4*147456}",
            "s_cmp_lt_u32 s60, 4", "s_cselect_b32 s62, s62, s63", "s_movk_i32 s63, 4096", "s_cselect_b32 s63, 5120, s63",
            "s_mul_i32 s64, s53, 18", "s_mul_i32 s65, s54, 6", "s_add_u32 s64, s64, s65", "s_mul_i32 s64, s64, s63",
            "s_add_u32 s62, s62, s64", "s_lshl_b32 s61, s61, 10", "s_add_u32 s62, s62, s61",
            f"s_mul_i32 s64, s55, {1296*1024}", "s_add_u32 s62, s62, s64", f"s_add_u32 s62, s62, {WS_W}")
        k.e("s_waitcnt vmcnt(0)")
        for i in range(24):
            k.e(f"v_lshl_or_b32 v{PLO+i}, v{PHI+i}, 16, v{PLO+i}")
        for ss in range(6):
            k.e(f"buffer_store_dwordx4 {r4(PLO+4*ss)}, v11, s[16:19], s62 offen", "s_add_u32 s62, s62, s63")
        k.e("s_cmp_lg_u32 s53, 0", "s_cbranch_scc1 attn_loop")
        k.e(f"v_mov_b32 v{PHI}, 0", f"v_mov_b32 v{PHI+1}, 0x3f803f80")
        for i in range(24):
            k.e(f"v_dot2c_f32_bf16 v{PHI}, v{PLO+i}, v{PHI+1}")
        reduce_g_add(k, [PHI], [PHI + 2])
        k.e("s_mul_i32 s64, s54, 4608", "s_mul_i32 s65, s55, 576", "s_add_u32 s64, s64, s65", "s_add_u32 s64, s64, s58",
            "s_lshl_b32 s64, s64, 2", f"s_add_u32 s64, s64, {WS_SP}", f"v_lshlrev_b32 v{PHI+2}, 2, v{T0+6}",
            ex(0xffff), f"buffer_store_dword v{PHI}, v{PHI+2}, s[16:19], s64 offen", ex(-1))
    k.e("s_branch attn_loop")

    k.label("attn_maxpass")
    k.e(f"v_mov_b32 v{T0+1}, 0xff800000", "s_mov_b32 s31, 16")
    k.label("attn_maxloop")
    k.e(f"ds_read_b128 {r4(K2F)}, v6")
    for tau in range(4):
        q2 = Q2E if tau % 2 == 0 else Q2O
        kk = K2F + 2 * (tau // 2)
        k.e(f"ds_read_b128 {r4(KF)}, v4 offset:{tau*1024}", "s_waitcnt lgkmcnt(0)")
        k.e(f"v_mfma_f32_32x32x16_bf16 {r16(S0)}, {r4(KF)}, {r4(Q)}, 0",
            f"v_mfma_f32_32x32x8_bf16 {r16(S0)}, v[{kk}:{kk+1}], v[{q2}:{q2+1}], {r16(S0)}")
        for i in range(8):
            k.e(f"v_max3_f32 v{T0+1}, v{S0+2*i}, v{S0+2*i+1}, v{T0+1}")
    k.e(f"v_add_u32 v4, {GRP}, v4", f"v_add_u32 v6, {GRP}, v6", "s_sub_u32 s31, s31, 1", "s_cmp_lg_u32 s31, 0",
        "s_cbranch_scc1 attn_maxloop")
    k.e(f"v_mov_b32 v{T0+2}, v{T0+1}", f"v_permlane32_swap_b32 v{T0+1}, v{T0+2}", f"v_max_f32 v{T0+1}, v{T0+1}, v{T0+2}")
    k.e("s_mov_b32 s32, 11", "s_branch attn_setm")
    k.label("attn_end")
    k.e("s_endpgm")
    return k
```

```python
from asmlib import Kernel
from layout import *
from k_small import f2u, srd, ex, reduce_g_add

XB0, ACC, WR = 16, 48, 128
LDS_H = 73728
LDS_S = 147456
LDS_FFN = 147456 + 2304
D = 6


def r4(b):
    return f"v[{b}:{b+3}]"


def path(k, T, tag):
    def acc(t, mb):
        return ACC + (t * 4 + mb) * 4

    def wreg(slot, t):
        return WR + slot * 20 + t * 4

    def wload(slot, t):
        if t < 4:
            return f"buffer_load_dwordx4 {r4(wreg(slot, t))}, v4, s[20:23], s40 offen offset:{1024*t}"
        return f"buffer_load_dwordx4 {r4(wreg(slot, t))}, v5, s[20:23], s40 offen"

    if T == 5:
        k.e("s_mul_i32 s34, s30, 184320")
    else:
        k.e("s_mul_i32 s34, s30, 147456", f"s_add_u32 s34, s34, {737280 - 4*147456}")
    k.e(f"s_mul_i32 s35, s29, {1296*1024}", "s_add_u32 s34, s34, s35", f"s_add_u32 s34, s34, {WS_W}",
        "s_add_u32 s20, s12, s34", "s_addc_u32 s21, s13, 0", f"s_mov_b32 s22, {36*T*1024}", "s_mov_b32 s23, 0x00020000",
        "s_mov_b32 s40, 0")
    for st in range(D - 1):
        for t in range(T):
            k.e(wload(st, t))
        k.e(f"s_add_u32 s40, s40, {T*1024}")
    k.e(f"s_waitcnt vmcnt({9 + 5*T})")
    for i in range(4):
        k.e(f"v_add_f32 v{ACC+i}, v{ACC+i}, v{ACC+4+i}")
    for i in range(4):
        k.e(f"v_add_f32 v{ACC+i}, v{ACC+i}, v{ACC+8+i}")
    k.e(f"ds_write_b128 v7, {r4(ACC)}")
    for mb in range(4):
        b = XB0 + 4 * mb
        k.e(f"v_add_f32 v{8+mb}, v{b}, v{b+2}", f"v_add_f32 v{12+mb}, v{b+1}, v{b+3}")
    reduce_g_add(k, list(range(8, 16)), list(range(XB0 + 16, XB0 + 24)))
    for mb in range(4):
        k.e(f"v_mul_f32 v{8+mb}, {hex(f2u(-1/576))}, v{8+mb}", f"v_mul_f32 v{12+mb}, {hex(f2u(1/576))}, v{12+mb}",
            f"v_fma_f32 v{12+mb}, -v{8+mb}, v{8+mb}, v{12+mb}", f"v_max_f32 v{12+mb}, 0, v{12+mb}",
            f"v_add_f32 v{12+mb}, {hex(f2u(1e-5))}, v{12+mb}", f"v_rsq_f32 v{12+mb}, v{12+mb}")
    k.e("s_waitcnt lgkmcnt(0)", "s_barrier")
    k.e("s_lshl_b32 s34, s30, 8", f"s_add_u32 s34, s34, {LDS_S}", "v_lshlrev_b32 v248, 5, v3", "v_add_u32 v249, s34, v248")
    for t in range(4):
        k.e(f"ds_read_b128 {r4(XB0+4*t)}, v249 offset:{128*(t//2) + 16*(t%2)}")
    if T == 5:
        k.e("s_lshr_b32 s34, s30, 1", "s_lshl_b32 s34, s34, 7", "s_and_b32 s35, s30, 1", "s_lshl_b32 s35, s35, 4",
            "s_add_u32 s34, s34, s35", f"s_add_u32 s34, s34, {LDS_S + 2048}", "v_add_u32 v249, s34, v248",
            f"ds_read_b128 {r4(XB0+16)}, v249")
    k.e("s_waitcnt lgkmcnt(0)")
    for t in range(T):
        for mb in range(4):
            for i in range(4):
                k.e(f"v_mul_f32 v{acc(t,mb)+i}, v{8+mb}, v{XB0+4*t+i}")
    k.e(f"s_waitcnt vmcnt({5*T})", "s_barrier")
    k.e("v_mov_b32 v6, v4", "s_mov_b32 s31, 0")
    k.label(f"ffn_{tag}_start")
    for mb in range(4):
        k.e(f"ds_read_b128 {r4(XB0+4*mb)}, v6 offset:{1024*mb}")
    k.e(".p2align 6")
    k.label(f"ffn_{tag}_loop")
    for u in range(D):
        xb = XB0 + 16 * (u % 2)
        xn = XB0 + 16 * ((u + 1) % 2)
        fill = [f"ds_read_b128 {r4(xn+4*mb)}, v6 offset:{(u+1)*4096 + 1024*mb}" for mb in range(4)]
        fill += [wload((u + D - 1) % D, t) for t in range(T)]
        fill += [f"s_add_u32 s40, s40, {T*1024}"]
        k.e(f"s_waitcnt vmcnt({4*T}) lgkmcnt(0)")
        n = 0
        for t in range(T):
            for mb in range(4):
                a = r4(acc(t, mb))
                k.e(f"v_mfma_f32_16x16x32_bf16 {a}, {r4(wreg(u, t))}, {r4(xb+4*mb)}, {a}")
                n += 1
                if fill and (n <= 4 or n % 2 == 0):
                    k.e(fill.pop(0))
        for f in fill:
            k.e(f)
    k.e(f"v_add_u32 v6, {D*4096}, v6", "s_add_u32 s31, s31, 1",
        "s_cmp_eq_u32 s31, 3", f"s_cbranch_scc1 ffn_{tag}_ep1",
        "s_cmp_lt_u32 s31, 6", f"s_cbranch_scc1 ffn_{tag}_loop")
    k.e("s_waitcnt lgkmcnt(0)")
    k.e("s_movk_i32 s34, 1152", "v_mul_u32_u24 v248, s34, v2", "v_lshl_add_u32 v248, v3, 4, v248",
        f"s_mul_i32 s34, s29, {XB}", "s_mul_i32 s35, s28, 73728", "s_add_u32 s34, s34, s35", f"s_add_u32 s34, s34, {WS_P}",
        "s_lshl_b32 s35, s30, 7", "s_add_u32 s36, s34, s35")
    if T == 5:
        k.e("s_lshr_b32 s35, s30, 1", "s_lshl_b32 s35, s35, 6", "s_add_u32 s37, s34, s35", "s_and_b32 s35, s30, 1",
            "s_lshl_b32 s35, s35, 3", "s_add_u32 s37, s37, s35", "s_add_u32 s37, s37, 1024")
    tmp = 0
    for mb in range(4):
        for pi in range(2):
            d = XB0 + 4 * (tmp % 8)
            tmp += 1
            a, b = acc(2 * pi, mb), acc(2 * pi + 1, mb)
            k.e(f"v_cvt_pk_bf16_f32 v{d}, v{a}, v{a+1}", f"v_cvt_pk_bf16_f32 v{d+1}, v{a+2}, v{a+3}",
                f"v_cvt_pk_bf16_f32 v{d+2}, v{b}, v{b+1}", f"v_cvt_pk_bf16_f32 v{d+3}, v{b+2}, v{b+3}")
            k.e(f"buffer_store_dwordx4 {r4(d)}, v248, s[16:19], s36 offen offset:{64*pi}")
        if T == 5:
            a = acc(4, mb)
            k.e(f"v_cvt_pk_bf16_f32 v{a}, v{a}, v{a+1}", f"v_cvt_pk_bf16_f32 v{a+1}, v{a+2}, v{a+3}",
                f"buffer_store_dwordx2 v[{a}:{a+1}], v248, s[16:19], s37 offen", "s_add_u32 s37, s37, 18432")
        k.e("s_add_u32 s36, s36, 18432")
    if T == 5:
        k.e("s_or_b32 s34, s29, s30", "s_cmp_lg_u32 s34, 0", "s_cbranch_scc1 ffn_end")
        k.e("v_lshlrev_b32 v248, 2, v2", "s_lshl_b32 s34, s28, 8", f"s_add_u32 s34, s34, {WS_RS}", ex(0xffff))
        for mb in range(4):
            k.e(f"buffer_store_dword v{12+mb}, v248, s[16:19], s34 offen offset:{64*mb}")
    k.e("s_endpgm")
    k.label(f"ffn_{tag}_ep1")
    k.e("s_waitcnt lgkmcnt(0)")
    k.e("s_lshl_b32 s34, s30, 13", f"s_add_u32 s34, s34, {LDS_H}", "v_add_u32 v248, s34, v4")
    if T == 5:
        k.e("s_lshr_b32 s34, s30, 1", "s_lshl_b32 s34, s34, 12", "s_and_b32 s35, s30, 1", "s_lshl_b32 s35, s35, 3",
            "s_add_u32 s34, s34, s35", f"s_add_u32 s34, s34, {LDS_H + 65536}", "v_add_u32 v249, s34, v4")
    tmp = 0
    for pi in range(2):
        for mb in range(4):
            d = XB0 + 4 * (tmp % 8)
            tmp += 1
            a, b = acc(2 * pi, mb), acc(2 * pi + 1, mb)
            k.e(f"v_cvt_pk_bf16_f32 v{d}, v{a}, v{a+1}", f"v_cvt_pk_bf16_f32 v{d+1}, v{a+2}, v{a+3}",
                f"v_cvt_pk_bf16_f32 v{d+2}, v{b}, v{b+1}", f"v_cvt_pk_bf16_f32 v{d+3}, v{b+2}, v{b+3}")
            for i in range(4):
                k.e(f"v_pk_max_i16 v{d+i}, v{d+i}, 0")
            k.e(f"ds_write_b128 v248, {r4(d)} offset:{pi*4096 + mb*1024}")
    if T == 5:
        for mb in range(4):
            a = acc(4, mb)
            d = 250 + 2 * (mb % 2)
            k.e(f"v_cvt_pk_bf16_f32 v{d}, v{a}, v{a+1}", f"v_cvt_pk_bf16_f32 v{d+1}, v{a+2}, v{a+3}",
                f"v_pk_max_i16 v{d}, v{d}, 0", f"v_pk_max_i16 v{d+1}, v{d+1}, 0",
                f"ds_write_b64 v249, v[{d}:{d+1}] offset:{mb*1024}")
    for r in range(ACC, ACC + 16 * T):
        k.e(f"v_mov_b32 v{r}, 0")
    k.e("s_waitcnt lgkmcnt(0)", "s_barrier", f"s_branch ffn_{tag}_start")


def gen_k4():
    k = Kernel("ffn_kernel")
    k.e("s_cmp_ge_u32 s2, 256", "s_cbranch_scc1 ffn_end")
    k.e("s_load_dwordx2 s[12:13], s[0:1], 80")
    k.e("v_and_b32 v1, 63, v0", "v_and_b32 v2, 15, v0", "v_bfe_u32 v3, v0, 4, 2", "v_lshrrev_b32 v7, 6, v0",
        "s_nop 0", "v_readfirstlane_b32 s30, v7")
    k.e("s_lshr_b32 s28, s2, 3", "s_and_b32 s29, s2, 7")
    k.e("v_lshlrev_b32 v4, 4, v1", "v_add_u32 v5, 4096, v4")
    k.e("v_min_u32 v7, 143, v0", "v_lshlrev_b32 v7, 4, v7")
    k.e("v_lshlrev_b32 v8, 6, v2", "v_lshl_add_u32 v8, v3, 4, v8")
    k.e("s_and_b32 s34, s30, 3", "s_mul_i32 s34, s34, 18432", "s_lshr_b32 s35, s30, 2", "s_lshl_b32 s35, s35, 6",
        "s_add_u32 s34, s34, s35", "s_movk_i32 s35, 1152", "v_mul_u32_u24 v9, s35, v2", "v_lshl_add_u32 v9, v3, 4, v9",
        "v_add_u32 v9, s34, v9")
    k.e("s_waitcnt lgkmcnt(0)")
    srd(k, 16, 12, WS_END)
    k.e("s_mul_i32 s34, s29, 2304", f"s_add_u32 s34, s34, {WS_SP}")
    for i in range(3):
        k.e(f"buffer_load_dwordx4 {r4(ACC+4*i)}, v7, s[16:19], s34 offen", "s_add_u32 s34, s34, 18432")
    k.e("s_lshl_b32 s34, s28, 12", f"s_add_u32 s34, s34, {WS_ST}")
    for mb in range(4):
        k.e(f"buffer_load_dwordx4 {r4(XB0+4*mb)}, v8, s[16:19], s34 offen offset:{1024*mb}")
    k.e("s_mul_i32 s34, s28, 73728", f"s_add_u32 s34, s34, {WS_H}", "s_lshl_b32 s35, s30, 10")
    for i in range(9):
        k.e(f"s_add_u32 m0, s35, {i*8192}", f"s_add_u32 s36, s34, {i*128}", "buffer_load_dwordx4 v9, s[16:19], s36 offen lds")
    k.e(f"v_add_u32 v7, {LDS_S}, v7")
    k.e("s_cmp_ge_u32 s30, 4", "s_cbranch_scc1 ffn_b")
    path(k, 5, "a")
    k.label("ffn_b")
    path(k, 4, "b")
    k.label("ffn_end")
    k.e("s_endpgm")
    return k


def gen_k5():
    k = Kernel("red_kernel")
    k.e("s_cmp_ge_u32 s2, 576", "s_cbranch_scc1 red_end")
    k.e("s_load_dwordx2 s[4:5], s[0:1], 64", "s_load_dwordx2 s[12:13], s[0:1], 80")
    k.e("s_lshl_b32 s3, s2, 8", "v_add_u32 v1, s3, v0", "v_lshlrev_b32 v2, 4, v1",
        "s_mov_b32 s34, 59652324", "v_mul_hi_u32 v3, s34, v1", "v_lshlrev_b32 v3, 2, v3")
    k.e("s_waitcnt lgkmcnt(0)")
    srd(k, 16, 12, WS_END)
    srd(k, 20, 4, XB)
    k.e(f"s_mov_b32 s34, {WS_P}")
    for j in range(8):
        k.e(f"buffer_load_dwordx4 {r4(16+4*j)}, v2, s[16:19], s34 offen", f"s_add_u32 s34, s34, {XB}")
    k.e(f"s_mov_b32 s34, {WS_H}", f"s_mov_b32 s35, {WS_RS}")
    k.e("buffer_load_dwordx4 v[48:51], v2, s[16:19], s34 offen", "buffer_load_dword v4, v3, s[16:19], s35 offen")
    k.e("v_mov_b32 v5, 0x00003f80", "v_mov_b32 v6, 0x3f800000")
    for i in range(8):
        k.e(f"v_mov_b32 v{8+i}, 0")
    for j in range(8):
        k.e(f"s_waitcnt vmcnt({9-j})")
        for i in range(4):
            k.e(f"v_dot2c_f32_bf16 v{8+2*i}, v{16+4*j+i}, v5", f"v_dot2c_f32_bf16 v{9+2*i}, v{16+4*j+i}, v6")
    k.e("s_waitcnt vmcnt(0)")
    for i in range(4):
        k.e(f"v_lshlrev_b32 v{16+2*i}, 16, v{48+i}", f"v_and_b32 v{17+2*i}, 0xffff0000, v{48+i}")
    for i in range(8):
        k.e(f"v_fma_f32 v{8+i}, v{8+i}, v4, v{16+i}")
    for i in range(4):
        k.e(f"v_cvt_pk_bf16_f32 v{24+i}, v{8+2*i}, v{9+2*i}")
    k.e("buffer_store_dwordx4 v[24:27], v2, s[20:23], 0 offen")
    k.label("red_end")
    k.e("s_endpgm")
    return k
```

```python
import struct
from asmlib import Kernel
from layout import *


def f2u(x):
    return struct.unpack("<I", struct.pack("<f", x))[0]


def srd(k, d, base, nbytes):
    k.e(f"s_mov_b32 s{d}, s{base}", f"s_mov_b32 s{d+1}, s{base+1}", f"s_mov_b32 s{d+2}, {hex(nbytes)}",
        f"s_mov_b32 s{d+3}, 0x00020000")


def ex(mask):
    if mask == -1:
        return "s_mov_b64 exec, -1"
    return f"s_mov_b32 exec_lo, {hex(mask & 0xffffffff)}\ns_mov_b32 exec_hi, {hex(mask >> 32)}"


def reduce_g_add(k, regs, tmp):
    for r, t in zip(regs, tmp):
        k.e(f"v_mov_b32 v{t}, v{r}")
    for r, t in zip(regs, tmp):
        k.e(f"v_permlane16_swap_b32 v{r}, v{t}")
    for r, t in zip(regs, tmp):
        k.e(f"v_add_f32 v{r}, v{r}, v{t}")
    for r, t in zip(regs, tmp):
        k.e(f"v_mov_b32 v{t}, v{r}")
    for r, t in zip(regs, tmp):
        k.e(f"v_permlane32_swap_b32 v{r}, v{t}")
    for r, t in zip(regs, tmp):
        k.e(f"v_add_f32 v{r}, v{r}, v{t}")


X0, ACC, ACS, WF, ONES = 64, 136, 156, 176, 196
LDS_S = 92160
LDS_ST = 92160 + 320
LDS_SMALL = 92160 + 320 + 512
CHUNKS = [(0, 4), (4, 8), (8, 12), (12, 18)]


def dma_slot_calc(k, i, vq, vslot, vc10, vkl):
    k.e(f"v_add_u32 v{vq}, {64*i}, v1",
        f"v_mul_u32_u24 v{vslot}, s40, v{vq}",
        f"v_lshrrev_b32 v{vslot}, 16, v{vslot}",
        f"v_mul_u32_u24 v{vc10}, 10, v{vslot}",
        f"v_sub_u32 v{vc10}, v{vq}, v{vc10}",
        f"v_and_b32 v{vkl}, 8, v{vslot}",
        f"v_lshrrev_b32 v{vkl}, 1, v{vkl}",
        f"v_xor_b32 v{vkl}, v{vkl}, v{vslot}")


def core(k, mode):
    stats = mode in ("q", "kv")
    extra = 5 if mode == "o" else 0
    for s in range(18):
        k.e(f"buffer_load_dwordx4 v[{X0+4*s}:{X0+4*s+3}], v4, s[16:19], s31 offen offset:{64*s}")
    k.e("s_movk_i32 s40, 6554", "s_movk_i32 s41, 1152")
    if mode != "kv":
        for i in range(5):
            dma_slot_calc(k, i, 32, 33, 34, 35)
            k.e(f"v_mul_u32_u24 v{8+i}, s41, v35", f"v_lshl_add_u32 v{8+i}, v34, 4, v{8+i}")
        k.e("s_mul_i32 s42, s30, 36864", "s_add_u32 s42, s42, s32")
    else:
        for i in range(5):
            dma_slot_calc(k, i, 32, 33, 34, 35)
            a = 8 + 2 * i
            st = 18 + 2 * i
            k.e("v_add_u32 v35, s33, v35")
            k.e("v_subrev_u32 v36, 2, v34", "v_and_b32 v36, 3, v36", "v_lshlrev_b32 v36, 4, v36", "v_min_u32 v36, 20, v36")
            k.e("v_lshlrev_b32 v37, 4, v34", "v_add_u32 v37, 1120, v37")
            k.e("v_cmp_gt_u32 vcc, 2, v34")
            k.e("v_cmp_gt_u32 s[44:45], 6, v34")
            k.e("v_cndmask_b32 v36, v36, v37, vcc")
            k.e("v_mov_b32 v37, 36", "v_mov_b32 v38, s41", "v_cndmask_b32 v37, v37, v38, vcc")
            k.e("v_mad_u32_u24 v36, v35, v37, v36")
            k.e(f"v_lshlrev_b32 v{st}, 7, v37", f"v_mov_b32 v{st+1}, 0")
            k.e("v_mov_b32 v37, s10", "v_mov_b32 v38, s8", "v_cndmask_b32 v37, v37, v38, s[44:45]",
                "v_mov_b32 v38, s6", "v_cndmask_b32 v37, v37, v38, vcc")
            k.e("v_mov_b32 v38, s11", "v_mov_b32 v39, s9", "v_cndmask_b32 v38, v38, v39, s[44:45]",
                "v_mov_b32 v39, s7", "v_cndmask_b32 v38, v38, v39, vcc")
            k.e(f"v_add_co_u32 v{a}, vcc, v37, v36", f"v_addc_co_u32 v{a+1}, vcc, 0, v38, vcc")
    k.e("s_mul_i32 s43, s30, 5120")
    skip = k.newlabel("skipdma")
    for grp in range(5):
        if grp == 4:
            k.e("s_cmp_ge_u32 s30, 2", f"s_cbranch_scc1 {skip}")
        for i in range(5):
            k.e(f"s_add_u32 m0, s43, {grp*4*5120 + i*1024}")
            if mode != "kv":
                k.e(f"buffer_load_dwordx4 v{8+i}, s[20:23], s42 offen lds")
            else:
                k.e(f"global_load_lds_dwordx4 v[{8+2*i}:{9+2*i}], off")
                if grp < 4:
                    k.e(f"v_lshl_add_u64 v[{8+2*i}:{9+2*i}], v[{18+2*i}:{19+2*i}], 0, v[{8+2*i}:{9+2*i}]")
        if mode != "kv" and grp < 4:
            k.e(f"s_add_u32 s42, s42, {4*36864}")
    k.label(skip)
    if mode == "o":
        for t in range(5):
            k.e(f"buffer_load_dwordx2 v[{40+2*t}:{41+2*t}], v5, s[36:39], 0 offen offset:{32*t}")
    k.e("v_lshrrev_b32 v32, 2, v2",
        "v_and_b32 v33, 1, v3", "v_lshlrev_b32 v33, 2, v33", "v_add_u32 v32, v32, v33",
        "v_lshl_add_u32 v32, v3, 3, v32",
        "v_xor_b32 v33, 4, v32",
        "s_movk_i32 s40, 160",
        "v_and_b32 v34, 3, v2", "v_lshlrev_b32 v34, 3, v34",
        "v_mad_u32_u24 v28, v32, s40, v34", "v_mad_u32_u24 v29, v33, s40, v34",
        "v_add_u32 v30, 61440, v28", "v_add_u32 v31, 61440, v29")
    for r in range(ACC, ACC + 20):
        k.e(f"v_mov_b32 v{r}, 0")
    if stats:
        for r in range(ACS, ACS + 20):
            k.e(f"v_mov_b32 v{r}, 0")
        for r in range(ONES, ONES + 4):
            k.e(f"v_mov_b32 v{r}, 0x3f803f80")
        k.e("v_lshlrev_b32 v32, 2, v1", "v_mov_b32 v33, 0")
        k.e(f"v_add_u32 v32, {LDS_S}, v32", "ds_write_b32 v32, v33", "ds_write_b32 v32, v33 offset:64")
        k.e("v_mov_b32 v6, 0", "v_mov_b32 v7, 0")
        for part in range(3):
            k.e(f"s_waitcnt vmcnt({38 - 6*(part+1)})")
            for r in range(X0 + 24 * part, X0 + 24 * part + 24):
                k.e(f"v_dot2c_f32_bf16 v6, v{r}, v{ONES}", f"v_dot2c_f32_bf16 v7, v{r}, v{r}")
        reduce_g_add(k, [6, 7], [32, 33])
        k.e(f"v_mul_f32 v6, {hex(f2u(1/576))}, v6", f"v_mul_f32 v7, {hex(f2u(1/576))}, v7",
            "v_fma_f32 v7, -v6, v6, v7", "v_max_f32 v7, 0, v7", f"v_add_f32 v7, {hex(f2u(1e-5))}, v7",
            "v_rsq_f32 v7, v7")
    def rd(t, s):
        a0, a1 = (28, 29) if s < 12 else (30, 31)
        off = (s if s < 12 else s - 12) * 5120 + 32 * t
        k.e(f"ds_read_b64_tr_b16 v[{WF+4*t}:{WF+4*t+1}], v{a0} offset:{off}",
            f"ds_read_b64_tr_b16 v[{WF+4*t+2}:{WF+4*t+3}], v{a1} offset:{off}")

    def step(s, last, withS):
        for t in range(5):
            k.e(f"s_waitcnt lgkmcnt({2*(4-t) if last else 8})")
            w = f"v[{WF+4*t}:{WF+4*t+3}]"
            x = f"v[{X0+4*s}:{X0+4*s+3}]"
            a = f"v[{ACC+4*t}:{ACC+4*t+3}]"
            if mode == "kv" and t >= 3:
                k.e(f"v_mfma_f32_16x16x32_bf16 {a}, {x}, {w}, {a}")
            else:
                k.e(f"v_mfma_f32_16x16x32_bf16 {a}, {w}, {x}, {a}")
            if withS:
                b = f"v[{ACS+4*t}:{ACS+4*t+3}]"
                k.e(f"v_mfma_f32_16x16x32_bf16 {b}, v[{ONES}:{ONES+3}], {w}, {b}")
            if not last:
                rd(t, s + 1)

    for ci, (s0, s1) in enumerate(CHUNKS):
        k.e(f"s_waitcnt vmcnt({15 - 5*ci + extra}) lgkmcnt(0)", "s_barrier")
        for t in range(5):
            rd(t, s0)
        for s in range(s0, s1):
            last = s == s1 - 1
            if stats:
                alt, nxt = k.newlabel("alt"), k.newlabel("nxt")
                k.e(f"s_cmp_eq_u32 s30, {s % 4}", f"s_cbranch_scc1 {alt}")
                step(s, last, False)
                k.e(f"s_branch {nxt}")
                k.label(alt)
                step(s, last, True)
                k.label(nxt)
            else:
                step(s, last, False)


def common_ids(k):
    k.e("v_and_b32 v1, 63, v0", "v_and_b32 v2, 15, v0", "v_bfe_u32 v3, v0, 4, 2", "v_lshrrev_b32 v32, 6, v0",
        "s_nop 0", "v_readfirstlane_b32 s30, v32")


def gen_k1():
    k = Kernel("qkv_kernel")
    end = "qkv_end"
    k.e("s_cmp_ge_u32 s2, 256", f"s_cbranch_scc1 {end}")
    k.e("s_load_dwordx8 s[4:11], s[0:1], 0", "s_load_dwordx2 s[12:13], s[0:1], 80")
    common_ids(k)
    k.e("s_and_b32 s28, s2, 31", "s_lshr_b32 s29, s2, 5")
    k.e("v_lshl_add_u32 v5, v32, 4, v2", "s_movk_i32 s41, 1152", "v_mul_u32_u24 v5, s41, v5",
        "v_lshl_add_u32 v4, v3, 4, v5", "s_mul_i32 s31, s28, 73728", "s_mul_i32 s32, s29, 160", "s_lshl_b32 s33, s30, 5")
    k.e("s_waitcnt lgkmcnt(0)")
    srd(k, 16, 4, XB)
    srd(k, 20, 6, WQB)
    srd(k, 24, 12, WS_END)
    k.e("s_cmp_eq_u32 s29, 7", "s_cbranch_scc1 qkv_kv")

    def s_exchange():
        k.e("v_lshlrev_b32 v32, 2, v2", f"v_add_u32 v32, {LDS_S}, v32")
        k.e(ex(0xffff))
        for t in range(5):
            k.e(f"ds_add_f32 v32, v{ACS+4*t} offset:{64*t}")
        k.e("s_mov_b64 exec, -1")
        k.e("s_waitcnt lgkmcnt(0)", "s_barrier")

    def norm_tile(t, sreg, scale_reg):
        for i in range(4):
            k.e(f"v_fma_f32 v{ACC+4*t+i}, -v6, v{sreg+i}, v{ACC+4*t+i}")
        for i in range(4):
            k.e(f"v_mul_f32 v{ACC+4*t+i}, v{scale_reg}, v{ACC+4*t+i}")

    core(k, "q")
    s_exchange()
    k.e("v_lshlrev_b32 v33, 4, v3", f"v_add_u32 v33, {LDS_S}, v33")
    for t in range(5):
        k.e(f"ds_read_b128 v[{WF+4*t}:{WF+4*t+3}], v33 offset:{64*t}")
    k.e(f"v_mul_f32 v34, {hex(f2u(QSCALE))}, v7")
    k.e("v_lshl_add_u32 v35, v3, 3, v5", "s_add_u32 s34, s31, s32", f"s_add_u32 s34, s34, {WS_Q}")
    for t in range(5):
        k.e(f"s_waitcnt lgkmcnt({4-t})")
        norm_tile(t, WF + 4 * t, 34)
        k.e(f"v_cvt_pk_bf16_f32 v{40+2*t}, v{ACC+4*t}, v{ACC+4*t+1}", f"v_cvt_pk_bf16_f32 v{41+2*t}, v{ACC+4*t+2}, v{ACC+4*t+3}")
        k.e(f"buffer_store_dwordx2 v[{40+2*t}:{41+2*t}], v35, s[24:27], s34 offen offset:{32*t}")
    k.e("s_endpgm")

    k.label("qkv_kv")
    core(k, "kv")
    k.e("s_lshl_b32 s35, s30, 7", f"s_add_u32 s35, s35, {LDS_ST}", "v_lshlrev_b32 v36, 2, v2", "v_add_u32 v36, s35, v36",
        "ds_write_b32 v36, v6", "ds_write_b32 v36, v7 offset:64")
    s_exchange()
    k.e("v_lshlrev_b32 v33, 4, v3", f"v_add_u32 v34, {LDS_S}, v33", "v_add_u32 v33, s35, v33")
    for t in range(3):
        k.e(f"ds_read_b128 v[{WF+4*t}:{WF+4*t+3}], v34 offset:{64*t}")
    k.e(f"ds_read_b32 v{WF+12}, v32 offset:192", f"ds_read_b32 v{WF+13}, v32 offset:256")
    k.e("ds_read_b128 v[48:51], v33", "ds_read_b128 v[52:55], v33 offset:64")
    k.e(f"v_mul_f32 v34, {hex(f2u(QSCALE))}, v7")
    k.e("v_lshl_add_u32 v35, v3, 3, v5", f"s_add_u32 s34, s31, {1120 + WS_Q}")
    k.e("s_waitcnt lgkmcnt(0)")
    norm_tile(0, WF, 34)
    k.e(f"v_cvt_pk_bf16_f32 v40, v{ACC}, v{ACC+1}", f"v_cvt_pk_bf16_f32 v41, v{ACC+2}, v{ACC+3}")
    k.e("buffer_store_dwordx2 v[40:41], v35, s[24:27], s34 offen")
    norm_tile(1, WF + 4, 7)
    norm_tile(2, WF + 8, 7)
    k.e("s_lshr_b32 s34, s28, 1", f"s_mul_i32 s34, s34, {GRP}", f"s_add_u32 s34, s34, {WS_KV}",
        "s_and_b32 s36, s28, 1", "s_lshl_b32 s36, s36, 1", "s_lshr_b32 s37, s30, 1", "s_add_u32 s36, s36, s37",
        "s_and_b32 s37, s30, 1")
    k.e("s_lshl_b32 s38, s37, 8", "v_lshlrev_b32 v36, 4, v2", "v_add_u32 v36, s38, v36")
    k.e("v_lshrrev_b32 v37, 1, v3", "v_lshl_add_u32 v37, v37, 9, v36", "v_and_b32 v38, 1, v3", "v_lshl_add_u32 v37, v38, 3, v37",
        "s_lshl_b32 s38, s36, 10", "s_add_u32 s38, s38, s34")
    k.e(f"v_cvt_pk_bf16_f32 v42, v{ACC+4}, v{ACC+5}", f"v_cvt_pk_bf16_f32 v43, v{ACC+6}, v{ACC+7}")
    k.e("buffer_store_dwordx2 v[42:43], v37, s[24:27], s38 offen")
    k.e(f"v_cvt_pk_bf16_f32 v44, v{ACC+10}, v{ACC+11}")
    k.e("s_lshl_b32 s38, s36, 2", "s_add_u32 s38, s38, s34", f"s_add_u32 s38, s38, {KV_K2}")
    k.e(ex(0xffff0000), "buffer_store_dword v44, v36, s[24:27], s38 offen", "s_mov_b64 exec, -1")
    k.e(f"v_mul_f32 v45, v{ACC+10}, v{ACC+10}", f"v_fmac_f32 v45, v{ACC+11}, v{ACC+11}",
        "v_cmp_eq_u32 vcc, 1, v3", "v_cndmask_b32 v45, 0, v45, vcc")
    for i in range(4):
        k.e(f"v_fmac_f32 v45, v{ACC+4+i}, v{ACC+4+i}")
    reduce_g_add(k, [45], [46])
    for sh in (8, 4, 2, 1):
        k.e(f"v_max_f32_dpp v45, v45, v45 row_ror:{sh} row_mask:0xf bank_mask:0xf")
    k.e("s_lshl_b32 s38, s28, 2", "s_add_u32 s38, s38, s30", "s_lshl_b32 s38, s38, 2", f"s_add_u32 s38, s38, {WS_KM}",
        "v_mov_b32 v46, 0", ex(1), "buffer_store_dword v45, v46, s[24:27], s38 offen")
    k.e("v_mov_b32 v56, 0x3f803f80", "v_mov_b32 v57, 0x00003f80", "v_mov_b32 v58, 0x3f803f80", "v_mov_b32 v59, 0x00003f80",
        f"s_add_u32 s38, s34, {KV_K2 + 512}", "buffer_store_dwordx4 v[56:59], v46, s[24:27], s38 offen", "s_mov_b64 exec, -1")
    for t in (3, 4):
        for i in range(4):
            k.e(f"v_fma_f32 v{ACC+4*t+i}, -v{48+i}, v{WF+12+t-3}, v{ACC+4*t+i}")
        for i in range(4):
            k.e(f"v_mul_f32 v{ACC+4*t+i}, v{52+i}, v{ACC+4*t+i}")
    k.e(f"v_cvt_pk_bf16_f32 v40, v{ACC+12}, v{ACC+13}", f"v_cvt_pk_bf16_f32 v41, v{ACC+14}, v{ACC+15}",
        f"v_cvt_pk_bf16_f32 v42, v{ACC+16}, v{ACC+17}", f"v_cvt_pk_bf16_f32 v43, v{ACC+18}, v{ACC+19}")
    k.e("s_mul_i32 s38, s36, 1216", "s_mul_i32 s39, s37, 608", "s_add_u32 s38, s38, s39", "s_add_u32 s38, s38, s34",
        f"s_add_u32 s38, s38, {KV_V}",
        "s_movk_i32 s39, 304", "v_mul_u32_u24 v37, s39, v38", "v_lshl_add_u32 v37, v2, 4, v37",
        "v_lshrrev_b32 v39, 1, v3", "v_lshl_add_u32 v37, v39, 3, v37")
    k.e("buffer_store_dwordx2 v[40:41], v37, s[24:27], s38 offen")
    k.e("v_mov_b32 v39, 0x3f803f80", "v_cmp_eq_u32 vcc, 8, v2", "v_cndmask_b32 v42, v42, v39, vcc", "v_cndmask_b32 v43, v43, v39, vcc")
    k.e(ex(0x01c001c001c001c0))
    k.e("buffer_store_dwordx2 v[42:43], v37, s[24:27], s38 offen offset:160")
    k.label(end)
    k.e("s_endpgm")
    return k


def gen_k3():
    k = Kernel("oproj_kernel")
    end = "oproj_end"
    k.e("s_cmp_ge_u32 s2, 256", f"s_cbranch_scc1 {end}")
    k.e("s_load_dwordx2 s[4:5], s[0:1], 0", "s_load_dwordx2 s[6:7], s[0:1], 32", "s_load_dwordx2 s[12:13], s[0:1], 80")
    common_ids(k)
    k.e("s_and_b32 s28, s2, 31", "s_lshr_b32 s29, s2, 5")
    k.e("v_lshl_add_u32 v5, v32, 4, v2", "v_mov_b32 v60, v5", "s_movk_i32 s41, 1152", "v_mul_u32_u24 v5, s41, v5",
        "v_lshl_add_u32 v4, v3, 4, v5", "s_mul_i32 s34, s28, 73728", "s_mul_i32 s32, s29, 144",
        f"s_add_u32 s31, s34, {WS_O}")
    k.e("v_lshl_add_u32 v5, v3, 3, v5", "s_add_u32 s35, s34, s32", "v_add_u32 v5, s35, v5")
    k.e("s_waitcnt lgkmcnt(0)")
    srd(k, 16, 12, WS_END)
    srd(k, 20, 6, WQB)
    srd(k, 36, 4, XB)
    core(k, "o")
    k.e("s_waitcnt vmcnt(0)")
    k.e("v_mov_b32 v6, 0", "v_mov_b32 v7, 0", "v_mov_b32 v34, 0x3f803f80", f"s_mov_b32 s35, {WS_H}")
    for t in range(5):
        a = ACC + 4 * t
        k.e(f"v_lshlrev_b32 v50, 16, v{40+2*t}", f"v_and_b32 v51, 0xffff0000, v{40+2*t}",
            f"v_lshlrev_b32 v52, 16, v{41+2*t}", f"v_and_b32 v53, 0xffff0000, v{41+2*t}")
        for i in range(4):
            k.e(f"v_add_f32 v{a+i}, v{a+i}, v{50+i}")
        k.e(f"v_cvt_pk_bf16_f32 v{40+2*t}, v{a}, v{a+1}", f"v_cvt_pk_bf16_f32 v{41+2*t}, v{a+2}, v{a+3}")
        if t == 4:
            k.e(ex(0xffffffff))
        k.e(f"buffer_store_dwordx2 v[{40+2*t}:{41+2*t}], v5, s[16:19], s35 offen offset:{32*t}")
        k.e(f"v_dot2c_f32_bf16 v6, v{40+2*t}, v34", f"v_dot2c_f32_bf16 v7, v{40+2*t}, v{40+2*t}",
            f"v_dot2c_f32_bf16 v6, v{41+2*t}, v34", f"v_dot2c_f32_bf16 v7, v{41+2*t}, v{41+2*t}")
        if t == 4:
            k.e("s_mov_b64 exec, -1")
    reduce_g_add(k, [6, 7], [32, 33])
    k.e("v_lshlrev_b32 v60, 6, v60", "s_lshl_b32 s35, s28, 12", "s_lshl_b32 s34, s29, 3", "s_add_u32 s35, s35, s34",
        f"s_add_u32 s35, s35, {WS_ST}", ex(0xffff))
    k.e("buffer_store_dwordx2 v[6:7], v60, s[16:19], s35 offen")
    k.label(end)
    k.e("s_endpgm")
    return k
```

```python
WS_Q  = 0x0
WS_O  = 0x240000
WS_H  = 0x480000
WS_KV = 0x6C0000
WS_KM = 0x6E8000
WS_ST = 0x6E9000
WS_SP = 0x709000
WS_RS = 0x719000
WS_W  = 0x720000
WS_P  = 0x1140000
WS_END = 0x2340000
XB = 2048*576*2
WQB = 576*576*2
WKB = 576*18*2
W1B = 576*4608*2
GRP = 9488
KV_V = 4096
KV_K2 = 8960
QSCALE = 1.4426950408889634 / (18 ** 0.5)
```

```python
import sys
from k_small import gen_k1, gen_k3, LDS_SMALL
from k_attn import gen_k2, LDS_ATTN
from k_ffn import gen_k4, gen_k5, LDS_FFN
NAME = "sequential_preLN__grouped_kv_mqa__dense_activation_relu__prompt"
ref = open(f"cdna_kernels/{NAME}.s.ref").read().split("\n")
head = [l for l in ref if l.startswith(";") and "@launch" not in l and "Override" not in l and "grid=ceil" not in l]
def build(path):
    ks = [(gen_k1(), 256, 256, LDS_SMALL), (gen_k2(), 256, 512, LDS_ATTN), (gen_k3(), 256, 256, LDS_SMALL),
          (gen_k4(), 256, 512, LDS_FFN), (gen_k5(), 576, 256, 0)]
    out = list(head)
    for k, g, b, l in ks:
        out.append(f"; @launch kernel={k.name} grid=({g},1,1) block=({b},1,1) lds={l}")
    out.append('.amdgcn_target "amdgcn-amd-amdhsa--gfx950"')
    out.append(".text")
    kds = []
    for k, *_ in ks:
        c, kd = k.text()
        out.append(c)
        kds.append(kd)
        print(k.name, "vgpr", k.maxv, "sgpr", k.maxs, "instrs", len(k.ins), "nops", sum(1 for x in k.ins if x.kind == "nop"))
    out.append('.section .rodata,"a"')
    for kd in kds:
        out.append(".p2align 6")
        out.append(kd)
    open(path, "w").write("\n".join(out))
if __name__ == "__main__":
    build(sys.argv[1] if len(sys.argv) > 1 else f"cdna_kernels/{NAME}.s")
```

```python
import re

TRANS = ("v_exp_f32", "v_log_f32", "v_rcp_f32", "v_rsq_f32", "v_sqrt_f32", "v_sin_f32", "v_cos_f32",
         "v_exp_f16", "v_rcp_iflag_f32")
REG_RE = re.compile(r"\b([vsa])\[(\d+):(\d+)\]|\b([vsa])(\d+)\b|\b(vcc|exec|m0|vcc_lo|vcc_hi|exec_lo|exec_hi)\b")


def regs_of(op):
    out = set()
    for m in REG_RE.finditer(op):
        if m.group(1):
            for i in range(int(m.group(2)), int(m.group(3)) + 1):
                out.add((m.group(1), i))
        elif m.group(4):
            out.add((m.group(4), int(m.group(5))))
        else:
            n = m.group(6)
            if n.startswith("vcc"):
                out.add(("x", "vcc"))
            elif n.startswith("exec"):
                out.add(("x", "exec"))
            else:
                out.add(("x", "m0"))
    return out


def split_ops(s):
    ops, depth, cur = [], 0, ""
    for ch in s:
        if ch == "[":
            depth += 1
        if ch == "]":
            depth -= 1
        if ch == "," and depth == 0:
            ops.append(cur.strip())
            cur = ""
        else:
            cur += ch
    if cur.strip():
        ops.append(cur.strip())
    return ops


class Ins:
    def __init__(self, text):
        self.text = text
        t = text.split(";")[0].strip()
        self.label = None
        self.op = None
        self.rd = set()
        self.wr = set()
        self.kind = None
        if t.endswith(":"):
            self.label = t[:-1]
            self.kind = "label"
            return
        if t.startswith(".") or not t:
            self.kind = "dir"
            return
        parts = t.split(None, 1)
        op = parts[0]
        self.op = op
        rest = parts[1] if len(parts) > 1 else ""
        ops = split_ops(rest)
        self.ops = ops
        R = [regs_of(o) for o in ops]
        allr = set().union(*R) if R else set()
        self.dpp = ("_dpp" in op) or ("row_" in rest) or ("quad_perm" in rest)
        self.sdwa = "_sdwa" in op or "op_sel:" in rest
        if op.startswith("v_mfma"):
            self.kind = "mfma"
            self.wr = R[0]
            self.A, self.B, self.C = R[1], R[2], R[3]
            self.rd = R[1] | R[2] | R[3]
            self.passes = 8 if "32x32" in op else (2 if "4x4" in op else 4)
        elif op.startswith("v_"):
            self.kind = "valu"
            base = op.replace("_e32", "").replace("_e64", "").replace("_dpp", "").replace("_sdwa", "")
            self.base = base
            self.trans = base in TRANS
            self.dot = base.startswith("v_dot")
            if base.startswith("v_cmp"):
                self.wr = R[0]
                self.rd = set().union(*R[1:])
                if base.startswith("v_cmpx"):
                    self.wr = self.wr | {("x", "exec")}
            elif base in ("v_add_co_u32", "v_sub_co_u32", "v_addc_co_u32", "v_subb_co_u32", "v_subrev_co_u32",
                          "v_mad_u64_u32", "v_div_scale_f32"):
                self.wr = R[0] | R[1]
                self.rd = set().union(*R[2:])
            elif base.startswith("v_permlane") and "swap" in base:
                self.wr = R[0] | R[1]
                self.rd = R[0] | R[1]
            elif base in ("v_fmac_f32", "v_dot2c_f32_bf16", "v_writelane_b32") or self.dpp or "PRESERVE" in rest:
                self.wr = R[0]
                self.rd = allr
            elif base == "v_nop":
                pass
            else:
                self.wr = R[0]
                self.rd = set().union(*R[1:]) if len(R) > 1 else set()
        elif op.startswith("ds_"):
            self.kind = "ds"
            if op.startswith("ds_read") or "permute" in op or "swizzle" in op or "_rtn" in op:
                self.wr = R[0]
                self.rd = set().union(*R[1:])
            else:
                self.rd = allr
        elif op.startswith("buffer_") or op.startswith("global_") or op.startswith("flat_"):
            self.kind = "vmem"
            self.lds = (" lds" in (" " + rest)) or "_lds_" in op
            self.wide_store = ("store" in op) and ("x3" in op or "x4" in op)
            if self.lds:
                self.rd = allr | {("x", "m0")}
            elif "load" in op:
                self.wr = R[0]
                self.rd = set().union(*R[1:])
            elif "atomic" in op and " sc0" in rest:
                self.wr = R[0]
                self.rd = allr
            else:
                self.rd = allr
            if "store" in op:
                self.data = R[0] if op.startswith("buffer_") else R[1]
        elif op.startswith("s_"):
            self.kind = "salu"
            if op in ("s_nop",):
                self.kind = "nop"
                self.n = int(ops[0], 0) + 1
            elif op.startswith("s_cmp") or op.startswith("s_bitcmp") or op.startswith("s_cbranch") or op in (
                    "s_branch", "s_waitcnt", "s_barrier", "s_endpgm", "s_setprio", "s_sleep", "s_setpc_b64"):
                self.rd = allr
            elif "saveexec" in op:
                self.wr = R[0] | {("x", "exec")}
                self.rd = set().union(*R[1:]) | {("x", "exec")}
            else:
                self.wr = R[0] if R else set()
                self.rd = set().union(*R[1:]) if len(R) > 1 else set()
        else:
            raise ValueError("unknown instr: " + text)

    def states(self):
        if self.kind in ("label", "dir"):
            return 0
        if self.kind == "nop":
            return self.n
        return 1


def vonly(s):
    return {r for r in s if r[0] in "va"}


def sonly(s):
    return {r for r in s if r[0] == "s" or r == ("x", "vcc")}


def need(p, c):
    n = 0
    if p.kind == "valu":
        w = vonly(p.wr)
        if c.kind == "mfma" and (w & c.rd):
            n = max(n, 2)
        if c.kind == "valu":
            if p.trans and not c.trans and (w & c.rd):
                n = max(n, 1)
            if c.dpp and (w & c.rd):
                n = max(n, 2)
            if c.base.startswith("v_permlane") and (w & c.rd):
                n = max(n, 2)
            if c.base in ("v_readlane_b32", "v_readfirstlane_b32") and (w & c.rd):
                n = max(n, 1)
            if p.sdwa and (w & (c.rd | c.wr)):
                n = max(n, 1)
            if p.dot and (w & (c.rd | c.wr)):
                if c.base == p.base:
                    srcab = regs_of(c.ops[1]) | regs_of(c.ops[2])
                    if w & srcab:
                        n = max(n, 3)
                else:
                    n = max(n, 3)
            sw = sonly(p.wr)
            if sw & c.rd:
                n = max(n, 4 if c.base in ("v_readlane_b32", "v_writelane_b32") else 2)
            if ("x", "exec") in p.wr:
                n = max(n, 5)
        if p.dot and c.kind in ("mfma", "ds", "vmem") and (w & c.rd):
            n = max(n, 3)
        if c.kind == "vmem" and (sonly(p.wr) & c.rd):
            n = max(n, 5)
        if c.kind == "salu" and (sonly(p.wr) & c.rd):
            n = max(n, 1)
        if c.kind == "mfma" and ("x", "exec") in p.wr:
            n = max(n, 4)
    elif p.kind == "mfma":
        big = {2: 5, 4: 8, 8: 12}[p.passes]
        if c.kind == "mfma":
            if p.wr & (c.A | c.B):
                n = max(n, big)
            if p.wr & c.C:
                if p.wr == c.C and p.passes == c.passes:
                    n = max(n, 2 if p.passes == 2 else 0)
                else:
                    n = max(n, {2: 4, 4: 6, 8: 10}[p.passes])
        elif c.kind in ("valu", "ds", "vmem"):
            if p.wr & (c.rd | c.wr):
                n = max(n, big)
            if c.kind == "valu" and (p.C & c.wr):
                n = max(n, {2: 1, 4: 3, 8: 7}[p.passes])
    elif p.kind == "salu":
        if ("x", "m0") in p.wr and c.kind == "vmem" and c.lds:
            n = max(n, 1)
    elif p.kind == "vmem":
        if p.wide_store and (p.data & vonly(c.wr)):
            n = max(n, 2 if c.kind in ("valu", "mfma") else 1)
    return n


class Kernel:
    def __init__(self, name, vgprs=256, sgprs=96, accum=None):
        self.name = name
        self.lines = []
        self.vgprs = vgprs
        self.sgprs = sgprs
        self.accum = accum
        self._lab = 0

    def e(self, *texts):
        for t in texts:
            for l in t.split("\n"):
                if l.strip():
                    self.lines.append(l.strip())

    def label(self, name):
        self.lines.append(f"{name}:")

    STAMP = False
    def stamp(self, i):
        if not Kernel.STAMP:
            return
        b = 68 + 4 * i
        self.e(f"s_memtime s[{b}:{b+1}]", f"s_memrealtime s[{b+2}:{b+3}]", "s_waitcnt lgkmcnt(0)")

    def stamp_flush(self, kidx, n, srd, wave_sgpr):
        if not Kernel.STAMP:
            return
        self.e("s_waitcnt vmcnt(0)")
        self.stamp(n - 1)
        self.e("s_mov_b32 exec_lo, 1", "s_mov_b32 exec_hi, 0")
        self.e("s_lshl_b32 s66, s2, 3", f"s_add_u32 s66, s66, s{wave_sgpr}" if wave_sgpr is not None else "s_nop 0", "s_lshl_b32 s66, s66, 7",
               f"s_add_u32 s66, s66, {0x2360000 + kidx * 0x100000}", "v_mov_b32 v0, 0")
        for i in range(n):
            b = 68 + 4 * i
            for j in range(4):
                self.e(f"v_mov_b32 v{4+j}, s{b+j}")
            self.e(f"buffer_store_dwordx4 v[4:7], v0, s[{srd}:{srd+3}], s66 offen offset:{16*i}", "s_waitcnt vmcnt(0)")

    def newlabel(self, base="L"):
        self._lab += 1
        return f"{self.name}_{base}{self._lab}"

    def finalize(self):
        ins = [Ins(l) for l in self.lines]
        changed = True
        while changed:
            changed = False
            labels = {x.label: i for i, x in enumerate(ins) if x.kind == "label"}
            preds = {}
            for i, x in enumerate(ins):
                if x.op and (x.op.startswith("s_cbranch") or x.op == "s_branch"):
                    tgt = x.ops[0]
                    preds.setdefault(labels[tgt], []).append(i)
            for i, c in enumerate(ins):
                if c.kind in ("label", "dir", "nop"):
                    continue
                req = 0
                stack = [(i - 1, 0)]
                seen = set()
                while stack:
                    j, dist = stack.pop()
                    if j < 0 or dist >= 12 or (j, dist) in seen:
                        continue
                    seen.add((j, dist))
                    p = ins[j]
                    if p.kind == "label":
                        for b in preds.get(j, []):
                            stack.append((b, dist))
                        q = j - 1
                        while q >= 0 and ins[q].kind in ("dir",):
                            q -= 1
                        if q >= 0 and not (ins[q].op in ("s_branch", "s_endpgm", "s_setpc_b64")):
                            stack.append((j - 1, dist))
                        continue
                    if p.kind not in ("dir", "nop"):
                        r = need(p, c) - dist
                        if r > req:
                            req = r
                    stack.append((j - 1, dist + p.states()))
                if req > 0:
                    ins.insert(i, Ins(f"s_nop {req - 1}"))
                    changed = True
                    break
        self.ins = ins
        mv = 0
        ms = 0
        for x in ins:
            for r in (x.rd | x.wr):
                if r[0] == "v":
                    mv = max(mv, r[1] + 1)
                if r[0] == "s":
                    ms = max(ms, r[1] + 1)
        self.maxv, self.maxs = mv, ms
        return ins

    def text(self):
        ins = self.finalize()
        nv = max(self.maxv, 8)
        if self.vgprs is not None:
            assert self.maxv <= self.vgprs, (self.name, self.maxv)
        acc = (nv + 3) // 4 * 4
        out = [f".globl {self.name}", ".p2align 8", f".type {self.name},@function", f"{self.name}:"]
        for x in ins:
            out.append(x.text if x.kind == "label" else "    " + x.text)
        code = "\n".join(out) + "\n"
        kd = f""".amdhsa_kernel {self.name}
  .amdhsa_next_free_vgpr {nv}
  .amdhsa_next_free_sgpr {max(self.maxs, 16)}
  .amdhsa_accum_offset {acc}
  .amdhsa_group_segment_fixed_size 0
  .amdhsa_kernarg_size 88
  .amdhsa_user_sgpr_count 2
  .amdhsa_user_sgpr_kernarg_segment_ptr 1
  .amdhsa_system_sgpr_workgroup_id_x 1
  .amdhsa_float_denorm_mode_32 3
.end_amdhsa_kernel
"""
        return code, kd
```

```python
import os
from asmlib import Kernel
from layout import *
from k_small import f2u, srd, ex, reduce_g_add

S0, S1, OA, P, KF, V0, V1, K2F, Q, Q2E, Q2O = 16, 32, 48, 64, 72, 76, 80, 84, 88, 92, 94
T0 = 96
PIN, POUT, PS = 16, 48, 80
LDS_ATTN = 152 * 1024
PK_AUX = os.environ.get("PK_AUX", "")
PRIO = int(os.environ.get("PRIO", "1"))


def r4(b):
    return f"v[{b}:{b+3}]"


def r16(b):
    return f"v[{b}:{b+15}]"


def helper(k):
    k.label("attn_helper")
    k.e("s_setprio 3" if PRIO else "s_nop 0")
    k.e("s_sub_u32 s30, s30, 8", "s_lshl_b32 s34, s30, 10", "s_and_b32 s35, s28, 15", f"s_mul_i32 s35, s35, {GRP}",
        "s_add_u32 s35, s35, s34", f"s_add_u32 s35, s35, {WS_KV}")

    def dma(a, b):
        for i in range(a, b):
            k.e(f"s_add_u32 m0, s34, {i*4096}", f"s_add_u32 s36, s35, {i*4096}",
                "buffer_load_dwordx4 v11, s[16:19], s36 offen lds")
    dma(0, 12)
    k.e("s_waitcnt vmcnt(5)", "s_barrier")
    dma(12, 38)
    srd(k, 24, 8, WQB)
    k.e("s_lshl_b32 s34, s30, 6", "v_add_u32 v12, s34, v1", "v_min_u32 v12, 161, v12", "v_lshlrev_b32 v12, 7, v12",
        "s_mul_i32 s34, s28, 20736")
    k.e("v_lshrrev_b32 v2, 4, v1", "v_bfe_u32 v3, v1, 3, 1", "v_and_b32 v4, 7, v1",
        "v_lshl_add_u32 v5, v3, 2, v2", "v_lshlrev_b32 v5, 3, v5",
        "v_bfe_u32 v6, v1, 2, 1", "v_and_b32 v7, 3, v1", "v_lshlrev_b32 v7, 6, v7", "v_lshl_add_u32 v7, v2, 8, v7",
        "v_lshlrev_b32 v8, 5, v4",
        "s_mov_b32 s64, 0x05040100", "s_mov_b32 s65, 0x07060302")
    for i in range(4):
        k.e(f"v_mov_b32 v{PS+8+i}, 0x3f803f80")
    k.e("s_waitcnt vmcnt(0)", "s_barrier")
    k.e("buffer_load_dword v13, v12, s[24:27], s34 offen")
    k.e("s_lshl_b32 s50, s30, 5", "s_add_u32 s50, s50, s28")
    k.label("attn_unit")
    k.e("s_cmp_ge_u32 s50, 81", "s_cselect_b32 s53, 1, 0",
        "s_mul_i32 s51, s53, 81", "s_sub_u32 s51, s50, s51",
        "s_mul_i32 s54, s51, 57", "s_lshr_b32 s54, s54, 9",
        "s_mul_i32 s52, s54, 9", "s_sub_u32 s52, s51, s52",
        "s_cmp_eq_u32 s53, 0",
        "s_cselect_b32 s20, s4, s6", "s_cselect_b32 s21, s5, s7", f"s_mov_b32 s22, {hex(W1B)}", "s_mov_b32 s23, 0x00020000",
        "s_movk_i32 s56, 1152", "s_cselect_b32 s56, 9216, s56",
        "s_movk_i32 s57, 1152", "s_cselect_b32 s57, s57, 663552", "s_mul_i32 s57, s57, s29",
        "s_lshl_b32 s58, s54, 6", "s_mul_i32 s58, s58, s56", "s_add_u32 s57, s57, s58",
        "s_lshl_b32 s58, s52, 7", "s_add_u32 s57, s57, s58")
    k.e("v_mul_u32_u24 v15, s56, v5", "v_lshl_add_u32 v15, v4, 4, v15")
    for jj in range(8):
        k.e(f"buffer_load_dwordx4 {r4(PIN+4*jj)}, v15, s[20:23], s57 offen", "s_add_u32 s57, s57, s56")
    k.e("s_mul_i32 s62, s52, 184320", "s_mul_i32 s63, s52, 147456", f"s_add_u32 s63, s63, {737280 - 4*147456}",
        "s_cmp_lt_u32 s52, 4", "s_cselect_b32 s62, s62, s63",
        "s_and_b32 s63, s52, 4", "s_cmp_eq_u32 s63, 0", "s_movk_i32 s63, 4096", "s_cselect_b32 s63, 5120, s63",
        "s_cmp_eq_u32 s52, 8", "s_cselect_b32 s62, 4096, s62",
        "s_movk_i32 s60, 2048", "s_cselect_b32 s60, 368640, s60", "s_movk_i32 s61, 1024", "s_cselect_b32 s61, 184320, s61",
        "s_mul_i32 s58, s53, 18", "s_lshl_b32 s59, s54, 1", "s_add_u32 s58, s58, s59", "s_mul_i32 s58, s58, s63",
        "s_add_u32 s62, s62, s58",
        f"s_mul_i32 s58, s29, {1296*1024}", "s_add_u32 s62, s62, s58", f"s_add_u32 s62, s62, {WS_W}",
        "s_add_u32 s61, s61, s62")
    k.e("v_mad_u32_u24 v14, v3, s63, v7", "v_mad_u32_u24 v14, v6, s60, v14")
    k.e("s_waitcnt vmcnt(0)")
    for tau in range(8):
        for q in range(4):
            k.e(f"v_perm_b32 v{POUT+4*tau+q}, v{PIN+4*(2*q+1)+tau//2}, v{PIN+4*(2*q)+tau//2}, s{64+tau%2}")
        k.e(f"buffer_store_dwordx4 {r4(POUT+4*tau)}, v14, s[16:19], s{62 if tau < 4 else 61} offen offset:{16*(tau%4)} {PK_AUX}")
    k.e("s_cmp_lg_u32 s53, 0", "s_cbranch_scc1 attn_unit_next")
    for tau in range(8):
        k.e(f"v_mfma_f32_16x16x32_bf16 {r4(PIN+4*tau)}, {r4(PS+8)}, {r4(POUT+4*tau)}, 0")
    k.e("s_mul_i32 s58, s54, 18432", "s_mul_i32 s59, s29, 2304", "s_add_u32 s58, s58, s59", "s_lshl_b32 s59, s52, 8",
        "s_add_u32 s58, s58, s59", f"s_add_u32 s58, s58, {WS_SP}")
    for tau in range(8):
        k.e(f"v_add_f32_dpp v{PS+tau}, v{PIN+4*tau}, v{PIN+4*tau} row_ror:8 row_mask:0xf bank_mask:0xf")
    k.e(ex(0xff), f"buffer_store_dwordx4 {r4(PS)}, v8, s[16:19], s58 offen",
        f"buffer_store_dwordx4 {r4(PS+4)}, v8, s[16:19], s58 offen offset:16", ex(-1))
    k.label("attn_unit_next")
    k.e("s_add_u32 s50, s50, 128", "s_cmp_lt_u32 s50, 162", "s_cbranch_scc1 attn_unit")
    k.e("s_endpgm")


def gen_k2():
    k = Kernel("attn_kernel")
    k.e("s_cmp_ge_u32 s2, 256", "s_cbranch_scc1 attn_end")
    k.e("s_load_dwordx4 s[4:7], s[0:1], 48", "s_load_dwordx2 s[8:9], s[0:1], 32", "s_load_dwordx2 s[12:13], s[0:1], 80")
    k.stamp(0)
    k.e("v_and_b32 v1, 63, v0", "v_and_b32 v2, 31, v0", "v_bfe_u32 v3, v0, 5, 1", "v_lshrrev_b32 v7, 6, v0",
        "s_nop 0", "v_readfirstlane_b32 s30, v7")
    k.e("s_lshr_b32 s28, s2, 3", "s_and_b32 s29, s2, 7", "v_lshlrev_b32 v11, 4, v1")
    k.e("s_lshr_b32 s34, s30, 2", "s_lshl_b32 s34, s34, 1", "s_lshl_b32 s35, s28, 2", "s_add_u32 s34, s34, s35",
        "s_mul_i32 s33, s34, 18432", "s_and_b32 s34, s30, 3", "s_lshl_b32 s35, s29, 2", "s_add_u32 s34, s34, s35",
        "s_mul_i32 s37, s34, 18")
    k.e("s_movk_i32 s40, 18432", "v_lshrrev_b32 v8, 4, v2", "v_mul_u32_u24 v8, s40, v8", "v_and_b32 v9, 15, v2",
        "v_lshl_add_u32 v8, v9, 4, v8", "v_lshl_add_u32 v9, v3, 8, v8",
        "v_lshlrev_b32 v10, 3, v1")
    k.e("s_waitcnt lgkmcnt(0)")
    srd(k, 16, 12, WS_END)
    k.e("s_cmp_ge_u32 s30, 8", "s_cbranch_scc1 attn_helper")
    k.e(f"s_add_u32 s34, s33, {WS_Q}", f"s_mov_b32 s35, {WS_KM}")
    for i in range(4):
        k.e(f"s_add_u32 s38, s37, {2*i}", "s_lshr_b32 s39, s38, 3", "s_lshl_b32 s39, s39, 8", "s_and_b32 s38, s38, 7",
            "s_lshl_b32 s38, s38, 1", "s_add_u32 s38, s38, s39", "s_add_u32 s38, s38, s34")
        k.e(f"buffer_load_dword v{Q+i}, v9, s[16:19], s38 offen")
        if i == 0:
            k.e(f"buffer_load_dword v{T0}, v8, s[16:19], s38 offen offset:512")
    k.e(f"buffer_load_dwordx2 v[{T0+2}:{T0+3}], v10, s[16:19], s35 offen")
    k.e("v_mov_b32 v12, v11")
    k.e("v_cmp_eq_u32 vcc, 28, v2", "v_cndmask_b32 v13, v2, 18, vcc",
        "v_cmp_lt_u32 vcc, 18, v13", "v_mov_b32 v14, 0x10000", "v_cndmask_b32 v13, v13, v14, vcc",
        "s_movk_i32 s40, 304", "v_mul_u32_u24 v14, s40, v3", "v_lshl_add_u32 v13, v13, 4, v14", f"v_add_u32 v13, {KV_V}, v13")
    k.e("v_min_u32 v14, 32, v1", "v_lshlrev_b32 v14, 4, v14", f"v_add_u32 v14, {KV_K2}, v14")
    k.e("v_cmp_eq_u32 s[44:45], 1, v3")
    k.e("s_waitcnt vmcnt(0)")
    k.stamp(1)
    k.e(f"v_cndmask_b32 v{T0}, v{T0}, 0, s[44:45]")
    k.e(f"v_mov_b32 v{T0+1}, 0")
    for r in (Q, Q + 1, Q + 2, Q + 3, T0):
        k.e(f"v_dot2c_f32_bf16 v{T0+1}, v{r}, v{r}")
    k.e(f"v_max_f32 v{T0+2}, v{T0+2}, v{T0+3}")
    for sh in (8, 4, 2, 1):
        k.e(f"v_max_f32_dpp v{T0+2}, v{T0+2}, v{T0+2} row_ror:{sh} row_mask:0xf bank_mask:0xf")
    k.e(f"v_mov_b32 v{T0+3}, v{T0+2}", f"v_permlane16_swap_b32 v{T0+2}, v{T0+3}", f"v_max_f32 v{T0+2}, v{T0+2}, v{T0+3}")
    k.e(f"v_mov_b32 v{T0+3}, v{T0+2}", f"v_mov_b32 v{T0+4}, v{T0+1}",
        f"v_permlane32_swap_b32 v{T0+2}, v{T0+3}", f"v_permlane32_swap_b32 v{T0+1}, v{T0+4}",
        f"v_max_f32 v{T0+2}, v{T0+2}, v{T0+3}", f"v_add_f32 v{T0+1}, v{T0+1}, v{T0+4}")
    k.e(f"v_mul_f32 v{T0+1}, v{T0+1}, v{T0+2}", f"v_sqrt_f32 v{T0+1}, v{T0+1}", f"v_mul_f32 v{T0+1}, {hex(f2u(1.02))}, v{T0+1}")
    k.e("s_mov_b32 s32, 0")
    k.label("attn_setm")
    k.e(f"v_xor_b32 v{T0+2}, 0x80000000, v{T0+1}",
        f"v_and_b32 v{T0+3}, 0xffff0000, v{T0+2}", f"v_sub_f32 v{T0+2}, v{T0+2}, v{T0+3}",
        f"v_and_b32 v{T0+4}, 0xffff0000, v{T0+2}", f"v_sub_f32 v{T0+2}, v{T0+2}, v{T0+4}",
        f"v_lshrrev_b32 v{T0+3}, 16, v{T0+3}", f"v_or_b32 v{T0+3}, v{T0+3}, v{T0+4}",
        f"v_lshrrev_b32 v{T0+2}, 16, v{T0+2}")
    k.e(f"v_cndmask_b32 v{Q2E}, v{T0}, v{T0+3}, s[44:45]", f"v_cndmask_b32 v{Q2E+1}, 0, v{T0+2}, s[44:45]",
        f"v_cndmask_b32 v{Q2O}, 0, v{T0+3}, s[44:45]", f"v_cndmask_b32 v{Q2O+1}, v{T0}, v{T0+2}, s[44:45]")
    k.e("v_mov_b32 v4, v12", "v_mov_b32 v5, v13", "v_mov_b32 v6, v14")
    k.e("s_cmp_eq_u32 s32, 10", "s_cbranch_scc1 attn_maxpass")
    for r in list(range(OA, OA + 16)) + list(range(P, P + 8)) + list(range(V1, V1 + 4)):
        k.e(f"v_mov_b32 v{r}, 0")
    k.e("s_mov_b32 s31, 16", "s_cmp_eq_u32 s32, 11", "s_cbranch_scc1 attn_start")
    k.e("s_mov_b32 s31, 2", "s_setprio 3" if PRIO else "s_nop 0", "s_barrier")
    k.label("attn_start")
    k.stamp(2)
    k.e(f"ds_read_b128 {r4(KF)}, v4", f"ds_read_b128 {r4(K2F)}, v6", f"ds_read_b128 {r4(V0)}, v5", "s_waitcnt lgkmcnt(0)")
    k.e(f"v_mfma_f32_32x32x16_bf16 {r16(S0)}, {r4(KF)}, {r4(Q)}, 0",
        f"v_mfma_f32_32x32x8_bf16 {r16(S0)}, v[{K2F}:{K2F+1}], v[{Q2E}:{Q2E+1}], {r16(S0)}")
    k.e(f"ds_read_b128 {r4(KF)}, v4 offset:1024", "s_waitcnt lgkmcnt(0)", "s_nop 7", "s_nop 3")
    k.e(".p2align 6")
    k.label("attn_loop")
    _n0 = len(k.lines)
    for tau in range(4):
        cur, nxt = (S0, S1) if tau % 2 == 0 else (S1, S0)
        t1 = (tau + 1) % 4
        koff = (tau + 2) * 1024 if tau < 2 else GRP + (tau - 2) * 1024
        v0off = (tau + 1) * 1216 if tau < 3 else GRP

        def ex_(a, b):
            for i in range(a, b):
                k.e(f"v_exp_f32 v{cur+i}, v{cur+i}")

        def cv(a, b):
            for i in range(a, b):
                k.e(f"v_cvt_pk_bf16_f32 v{P+i}, v{cur+2*i}, v{cur+2*i+1}")
        k.e("s_waitcnt lgkmcnt(2)")
        k.e(f"v_mfma_f32_32x32x16_bf16 {r16(nxt)}, {r4(KF)}, {r4(Q)}, 0")
        k.e(f"ds_read_b128 {r4(KF)}, v4 offset:{koff}")
        ex_(0, 3)
        k.e("s_waitcnt lgkmcnt(2)")
        k.e(f"v_mfma_f32_32x32x16_bf16 {r16(OA)}, {r4(V1)}, {r4(P+4)}, {r16(OA)}")
        k.e(f"ds_read_b128 {r4(V1)}, v5 offset:{tau*1216+608}")
        ex_(3, 6)
        q2 = Q2E if t1 % 2 == 0 else Q2O
        kk = K2F + 2 * (t1 // 2)
        k.e(f"v_mfma_f32_32x32x8_bf16 {r16(nxt)}, v[{kk}:{kk+1}], v[{q2}:{q2+1}], {r16(nxt)}")
        if tau == 2:
            k.e(f"ds_read_b128 {r4(K2F)}, v6 offset:{GRP}")
        ex_(6, 9)
        cv(0, 4)
        ex_(9, 12)
        k.e("s_waitcnt lgkmcnt(2)")
        k.e(f"v_mfma_f32_32x32x16_bf16 {r16(OA)}, {r4(V0)}, {r4(P)}, {r16(OA)}")
        k.e(f"ds_read_b128 {r4(V0)}, v5 offset:{v0off}")
        ex_(12, 16)
        if tau == 3:
            k.e(f"v_add_u32 v4, {GRP}, v4", f"v_add_u32 v5, {GRP}, v5", f"v_add_u32 v6, {GRP}, v6")
            k.e("s_sub_u32 s31, s31, 1", "s_cmp_lg_u32 s31, 0")
        cv(4, 8)
    abl = os.environ.get("ABL", "")
    body = k.lines[_n0:]
    if "lds" in abl:
        body = [l for l in body if not l.startswith("ds_read")]
    if "pv" in abl:
        body = [l for l in body if not (l.startswith("v_mfma") and l.split()[1].startswith(f"v[{OA}:"))]
    if "qk2" in abl:
        body = [l for l in body if "32x32x8" not in l]
    if "qk1" in abl:
        body = [l for l in body if not (l.startswith("v_mfma") and l.endswith(", 0"))]
    if "cvt" in abl:
        body = [l for l in body if not l.startswith("v_cvt")]
    if "exp" in abl:
        body = [l.replace("v_exp_f32", "v_mov_b32") for l in body]
    k.lines[_n0:] = body
    k.e("s_cbranch_scc1 attn_loop")
    k.e("s_cmp_ge_u32 s32, 4", "s_cbranch_scc1 attn_tail")
    k.e("s_add_u32 s32, s32, 1")
    k.e("s_cmp_eq_u32 s32, 2", "s_cbranch_scc1 attn_ph2", "s_cmp_eq_u32 s32, 3", "s_cbranch_scc1 attn_ph3",
        "s_cmp_eq_u32 s32, 4", "s_cbranch_scc1 attn_ph4")
    k.stamp(3)
    k.e("s_barrier", "s_mov_b32 s31, 7")
    k.stamp(4)
    k.e("s_branch attn_loop")
    for ph, cnt, pr in ((2, 4, 2), (3, 2, 1), (4, 1, 0)):
        k.label(f"attn_ph{ph}")
        k.e(f"s_setprio {pr}" if PRIO else "s_nop 0", f"s_mov_b32 s31, {cnt}", "s_branch attn_loop")
    k.label("attn_tail")
    k.e("s_waitcnt lgkmcnt(0)")
    k.e(f"v_mfma_f32_32x32x16_bf16 {r16(OA)}, {r4(V1)}, {r4(P+4)}, {r16(OA)}")
    k.e(f"v_lshl_add_u32 v{T0+6}, v3, 2, s37", f"v_add_u32 v{T0+7}, 2, v{T0+6}", f"s_add_u32 s34, s33, {WS_O}")
    for r in (T0 + 6, T0 + 7):
        k.e(f"v_lshrrev_b32 v{T0+8}, 3, v{r}", f"v_and_b32 v{r}, 7, v{r}", f"v_lshl_add_u32 v{r}, v{r}, 1, v8",
            f"v_lshl_add_u32 v{r}, v{T0+8}, 8, v{r}")
    k.e(f"v_cndmask_b32 v{T0+5}, v{OA+10}, v{OA+12}, s[44:45]")
    k.e(f"v_cmp_le_f32 vcc, {hex(f2u(2.0**-40))}, v{T0+5}")
    k.e("s_cmp_eq_u32 s32, 11", "s_cbranch_scc1 attn_fin")
    k.e("s_cmp_eq_u64 vcc, -1", "s_cbranch_scc1 attn_fin")
    if abl:
        k.e("s_branch attn_fin")
    k.e("s_mov_b32 s32, 10", f"v_mov_b32 v{T0+1}, 0", "s_branch attn_setm")
    k.label("attn_fin")
    k.stamp(5)
    k.e(f"v_rcp_f32 v{T0+5}, v{T0+5}")
    for i in range(10):
        k.e(f"v_mul_f32 v{OA+i}, v{T0+5}, v{OA+i}")
    for i in range(5):
        k.e(f"v_cvt_pk_bf16_f32 v{P+i}, v{OA+2*i}, v{OA+2*i+1}")
    k.e(f"buffer_store_dword v{P}, v{T0+6}, s[16:19], s34 offen",
        f"buffer_store_dword v{P+1}, v{T0+7}, s[16:19], s34 offen",
        f"buffer_store_dword v{P+2}, v{T0+6}, s[16:19], s34 offen offset:256",
        f"buffer_store_dword v{P+3}, v{T0+7}, s[16:19], s34 offen offset:256",
        ex(0xffffffff),
        f"buffer_store_dword v{P+4}, v{T0+6}, s[16:19], s34 offen offset:512")
    k.stamp_flush(1, 7, 16, 30)
    k.e("s_endpgm")

    k.label("attn_maxpass")
    k.e(f"v_mov_b32 v{T0+1}, 0xff800000", "s_mov_b32 s31, 16")
    k.label("attn_maxloop")
    k.e(f"ds_read_b128 {r4(K2F)}, v6")
    for tau in range(4):
        q2 = Q2E if tau % 2 == 0 else Q2O
        kk = K2F + 2 * (tau // 2)
        k.e(f"ds_read_b128 {r4(KF)}, v4 offset:{tau*1024}", "s_waitcnt lgkmcnt(0)")
        k.e(f"v_mfma_f32_32x32x16_bf16 {r16(S0)}, {r4(KF)}, {r4(Q)}, 0",
            f"v_mfma_f32_32x32x8_bf16 {r16(S0)}, v[{kk}:{kk+1}], v[{q2}:{q2+1}], {r16(S0)}")
        for i in range(8):
            k.e(f"v_max3_f32 v{T0+1}, v{S0+2*i}, v{S0+2*i+1}, v{T0+1}")
    k.e(f"v_add_u32 v4, {GRP}, v4", f"v_add_u32 v6, {GRP}, v6", "s_sub_u32 s31, s31, 1", "s_cmp_lg_u32 s31, 0",
        "s_cbranch_scc1 attn_maxloop")
    k.e(f"v_mov_b32 v{T0+2}, v{T0+1}", f"v_permlane32_swap_b32 v{T0+1}, v{T0+2}", f"v_max_f32 v{T0+1}, v{T0+1}, v{T0+2}")
    k.e("s_mov_b32 s32, 11", "s_branch attn_setm")
    helper(k)
    k.label("attn_end")
    k.e("s_endpgm")
    return k
```

```python
from asmlib import Kernel
from layout import *
from k_small import f2u, srd, ex, reduce_g_add

XB0, ACC, WR = 16, 48, 128
LDS_H = 73728
LDS_S = 147456
LDS_FFN = 147456 + 2304
D = 6
import os
P_AUX = os.environ.get("P_AUX", "")


def r4(b):
    return f"v[{b}:{b+3}]"


def hdma(k):
    for i in range(3):
        k.e("s_mov_b32 m0, s42", "s_add_u32 s42, s42, 8192", "buffer_load_dwordx4 v4, s[16:19], s41 offen lds",
            "s_add_u32 s41, s41, 2048")


def path(k, T, tag):
    def acc(t, mb):
        return ACC + (t * 4 + mb) * 4

    def wreg(slot, t):
        return WR + slot * 20 + t * 4

    def wload(slot, t):
        if t < 4:
            return f"buffer_load_dwordx4 {r4(wreg(slot, t))}, v4, s[20:23], s40 offen offset:{1024*t}"
        return f"buffer_load_dwordx4 {r4(wreg(slot, t))}, v5, s[20:23], s40 offen"

    if T == 5:
        k.e("s_mul_i32 s34, s30, 184320")
    else:
        k.e("s_mul_i32 s34, s30, 147456", f"s_add_u32 s34, s34, {737280 - 4*147456}")
    k.e(f"s_mul_i32 s35, s29, {1296*1024}", "s_add_u32 s34, s34, s35", f"s_add_u32 s34, s34, {WS_W}",
        "s_add_u32 s20, s12, s34", "s_addc_u32 s21, s13, 0", f"s_mov_b32 s22, {36*T*1024}", "s_mov_b32 s23, 0x00020000",
        "s_mov_b32 s40, 0")
    for st in range(D - 1):
        for t in range(T):
            k.e(wload(st, t))
        k.e(f"s_add_u32 s40, s40, {T*1024}")
    k.e(f"s_waitcnt vmcnt({3 + 5*T})")
    k.stamp(1)
    k.e(f"ds_write_b128 v7, {r4(ACC)}")
    for mb in range(4):
        b = XB0 + 4 * mb
        k.e(f"v_add_f32 v{8+mb}, v{b}, v{b+2}", f"v_add_f32 v{12+mb}, v{b+1}, v{b+3}")
    reduce_g_add(k, list(range(8, 16)), list(range(XB0 + 16, XB0 + 24)))
    for mb in range(4):
        k.e(f"v_mul_f32 v{8+mb}, {hex(f2u(-1/576))}, v{8+mb}", f"v_mul_f32 v{12+mb}, {hex(f2u(1/576))}, v{12+mb}",
            f"v_fma_f32 v{12+mb}, -v{8+mb}, v{8+mb}, v{12+mb}", f"v_max_f32 v{12+mb}, 0, v{12+mb}",
            f"v_add_f32 v{12+mb}, {hex(f2u(1e-5))}, v{12+mb}", f"v_rsq_f32 v{12+mb}, v{12+mb}")
    k.e("s_waitcnt lgkmcnt(0)", "s_barrier")
    k.e("s_lshl_b32 s34, s30, 8", f"s_add_u32 s34, s34, {LDS_S}", "v_lshlrev_b32 v248, 5, v3", "v_add_u32 v249, s34, v248")
    for t in range(4):
        k.e(f"ds_read_b128 {r4(XB0+4*t)}, v249 offset:{128*(t//2) + 16*(t%2)}")
    if T == 5:
        k.e("s_lshr_b32 s34, s30, 1", "s_lshl_b32 s34, s34, 7", "s_and_b32 s35, s30, 1", "s_lshl_b32 s35, s35, 4",
            "s_add_u32 s34, s34, s35", f"s_add_u32 s34, s34, {LDS_S + 2048}", "v_add_u32 v249, s34, v248",
            f"ds_read_b128 {r4(XB0+16)}, v249")
    k.e("s_waitcnt lgkmcnt(0)")
    for t in range(T):
        for mb in range(4):
            for i in range(4):
                k.e(f"v_mul_f32 v{acc(t,mb)+i}, v{8+mb}, v{XB0+4*t+i}")
    k.e(f"s_waitcnt vmcnt({5*T})", "s_barrier")
    k.stamp(2)
    k.e("v_mov_b32 v6, v4", "s_mov_b32 s31, 0")
    k.label(f"ffn_{tag}_start")
    for mb in range(4):
        k.e(f"ds_read_b128 {r4(XB0+4*mb)}, v6 offset:{1024*mb}")
    k.e(".p2align 6")
    k.label(f"ffn_{tag}_loop")
    k.e("s_cmp_ge_u32 s31, 2", f"s_cbranch_scc1 ffn_{tag}_nodma")
    hdma(k)
    k.label(f"ffn_{tag}_nodma")
    for u in range(D):
        xb = XB0 + 16 * (u % 2)
        xn = XB0 + 16 * ((u + 1) % 2)
        fill = [f"ds_read_b128 {r4(xn+4*mb)}, v6 offset:{(u+1)*4096 + 1024*mb}" for mb in range(4)]
        abl = os.environ.get("ABL4", "")
        if "lds" in abl:
            fill = []
        if "ldh" in abl:
            fill = fill[:2]
        if "glb" not in abl:
            fill += [wload((u + D - 1) % D, t) for t in range(T)]
        fill += [f"s_add_u32 s40, s40, {T*1024}"]
        k.e(f"s_waitcnt vmcnt({4*T}) lgkmcnt(0)")
        if u == D - 1:
            k.e("s_cmp_ge_u32 s31, 2", f"s_cbranch_scc1 ffn_{tag}_nobar", "s_barrier")
            k.label(f"ffn_{tag}_nobar")
        n = 0
        for t in range(T):
            for mb in range(4):
                a = r4(acc(t, mb))
                k.e(f"v_mfma_f32_16x16x32_bf16 {a}, {r4(wreg(u, t))}, {r4(xb+4*mb)}, {a}")
                n += 1
                if fill and (n <= 4 or n % 2 == 0):
                    k.e(fill.pop(0))
        for f in fill:
            k.e(f)
    k.e(f"v_add_u32 v6, {D*4096}, v6", "s_add_u32 s31, s31, 1",
        "s_cmp_eq_u32 s31, 3", f"s_cbranch_scc1 ffn_{tag}_ep1",
        "s_cmp_lt_u32 s31, 6", f"s_cbranch_scc1 ffn_{tag}_loop")
    k.stamp(5)
    k.e("s_waitcnt lgkmcnt(0)")
    k.e(f"s_mul_i32 s34, s29, {XB}", "s_mul_i32 s35, s28, 73728", "s_add_u32 s34, s34, s35", f"s_add_u32 s34, s34, {WS_P}",
        "s_lshl_b32 s35, s30, 11", "s_add_u32 s36, s34, s35")
    if T == 5:
        k.e("s_lshr_b32 s35, s30, 1", "s_lshl_b32 s35, s35, 10", "s_add_u32 s37, s34, s35", "s_and_b32 s35, s30, 1",
            "s_lshl_b32 s35, s35, 3", "s_add_u32 s37, s37, s35", "s_add_u32 s37, s37, 16384")
    tmp = 0
    for mb in range(4):
        for pi in range(2):
            d = XB0 + 4 * (tmp % 8)
            tmp += 1
            a, b = acc(2 * pi, mb), acc(2 * pi + 1, mb)
            k.e(f"v_cvt_pk_bf16_f32 v{d}, v{a}, v{a+1}", f"v_cvt_pk_bf16_f32 v{d+1}, v{a+2}, v{a+3}",
                f"v_cvt_pk_bf16_f32 v{d+2}, v{b}, v{b+1}", f"v_cvt_pk_bf16_f32 v{d+3}, v{b+2}, v{b+3}")
            k.e(f"buffer_store_dwordx4 {r4(d)}, v4, s[16:19], s36 offen offset:{1024*pi} {P_AUX}")
        if T == 5:
            a = acc(4, mb)
            k.e(f"v_cvt_pk_bf16_f32 v{a}, v{a}, v{a+1}", f"v_cvt_pk_bf16_f32 v{a+1}, v{a+2}, v{a+3}",
                f"buffer_store_dwordx2 v[{a}:{a+1}], v4, s[16:19], s37 offen {P_AUX}", "s_add_u32 s37, s37, 18432")
        k.e("s_add_u32 s36, s36, 18432")
    if T == 5:
        k.e("s_or_b32 s34, s29, s30", "s_cmp_lg_u32 s34, 0", "s_cbranch_scc1 ffn_a_fin")
        k.e("v_lshlrev_b32 v248, 2, v2", "s_lshl_b32 s34, s28, 8", f"s_add_u32 s34, s34, {WS_RS}", ex(0xffff))
        for mb in range(4):
            k.e(f"buffer_store_dword v{12+mb}, v248, s[16:19], s34 offen offset:{64*mb}")
    k.label(f"ffn_{tag}_fin")
    k.stamp_flush(3, 7, 16, 30)
    k.e("s_endpgm")
    k.label(f"ffn_{tag}_ep1")
    k.stamp(3)
    k.e("s_waitcnt lgkmcnt(0)")
    k.e("s_lshl_b32 s34, s30, 13", f"s_add_u32 s34, s34, {LDS_H}", "v_add_u32 v248, s34, v4")
    if T == 5:
        k.e("s_lshr_b32 s34, s30, 1", "s_lshl_b32 s34, s34, 12", "s_and_b32 s35, s30, 1", "s_lshl_b32 s35, s35, 3",
            "s_add_u32 s34, s34, s35", f"s_add_u32 s34, s34, {LDS_H + 65536}", "v_add_u32 v249, s34, v4")
    tmp = 0
    for pi in range(2):
        for mb in range(4):
            d = XB0 + 4 * (tmp % 8)
            tmp += 1
            a, b = acc(2 * pi, mb), acc(2 * pi + 1, mb)
            k.e(f"v_cvt_pk_bf16_f32 v{d}, v{a}, v{a+1}", f"v_cvt_pk_bf16_f32 v{d+1}, v{a+2}, v{a+3}",
                f"v_cvt_pk_bf16_f32 v{d+2}, v{b}, v{b+1}", f"v_cvt_pk_bf16_f32 v{d+3}, v{b+2}, v{b+3}")
            for i in range(4):
                k.e(f"v_pk_max_i16 v{d+i}, v{d+i}, 0")
            k.e(f"ds_write_b128 v248, {r4(d)} offset:{pi*4096 + mb*1024}")
    if T == 5:
        for mb in range(4):
            a = acc(4, mb)
            d = 250 + 2 * (mb % 2)
            k.e(f"v_cvt_pk_bf16_f32 v{d}, v{a}, v{a+1}", f"v_cvt_pk_bf16_f32 v{d+1}, v{a+2}, v{a+3}",
                f"v_pk_max_i16 v{d}, v{d}, 0", f"v_pk_max_i16 v{d+1}, v{d+1}, 0",
                f"ds_write_b64 v249, v[{d}:{d+1}] offset:{mb*1024}")
    for r in range(ACC, ACC + 16 * T):
        k.e(f"v_mov_b32 v{r}, 0")
    k.e("s_waitcnt lgkmcnt(0)", "s_barrier")
    k.stamp(4)
    k.e(f"s_branch ffn_{tag}_start")


def gen_k4():
    k = Kernel("ffn_kernel")
    k.e("s_cmp_ge_u32 s2, 256", "s_cbranch_scc1 ffn_end")
    k.e("s_load_dwordx2 s[12:13], s[0:1], 80")
    k.stamp(0)
    k.e("v_and_b32 v1, 63, v0", "v_and_b32 v2, 15, v0", "v_bfe_u32 v3, v0, 4, 2", "v_lshrrev_b32 v7, 6, v0",
        "s_nop 0", "v_readfirstlane_b32 s30, v7")
    k.e("s_lshr_b32 s28, s2, 3", "s_and_b32 s29, s2, 7")
    k.e("v_lshlrev_b32 v4, 4, v1", "v_add_u32 v5, 4096, v4")
    k.e("v_min_u32 v7, 143, v0", "v_lshlrev_b32 v7, 4, v7")
    k.e("s_waitcnt lgkmcnt(0)")
    srd(k, 16, 12, WS_END)
    import os
    if os.environ.get("PF4"):
        k.e(f"s_mul_i32 s34, s29, {1296*1024}", "s_mul_i32 s35, s28, 41472", "s_add_u32 s34, s34, s35", f"s_add_u32 s34, s34, {WS_W}",
            "v_min_u32 v250, 323, v0", "v_lshlrev_b32 v250, 7, v250", "buffer_load_dword v251, v250, s[16:19], s34 offen")
    k.e("s_mul_i32 s34, s29, 2304", f"s_add_u32 s34, s34, {WS_S}")
    k.e(f"buffer_load_dwordx4 {r4(ACC)}, v7, s[16:19], s34 offen")
    k.e("s_lshl_b32 s34, s28, 12", f"s_add_u32 s34, s34, {WS_ST}")
    for mb in range(4):
        k.e(f"buffer_load_dwordx4 {r4(XB0+4*mb)}, v4, s[16:19], s34 offen offset:{1024*mb}")
    k.e("s_lshl_b32 s34, s28, 2", "s_and_b32 s35, s30, 3", "s_add_u32 s34, s34, s35", "s_mul_i32 s41, s34, 18432",
        "s_lshr_b32 s35, s30, 2", "s_lshl_b32 s35, s35, 10", "s_add_u32 s41, s41, s35", f"s_add_u32 s41, s41, {WS_H}",
        "s_lshl_b32 s42, s30, 10")
    hdma(k)
    k.e(f"v_add_u32 v7, {LDS_S}, v7")
    k.e("s_cmp_ge_u32 s30, 4", "s_cbranch_scc1 ffn_b")
    path(k, 5, "a")
    k.label("ffn_b")
    path(k, 4, "b")
    k.label("ffn_end")
    k.e("s_endpgm")
    return k


def gen_k5():
    k = Kernel("red_kernel")
    k.e("s_cmp_ge_u32 s2, 576", "s_cbranch_scc1 red_end")
    k.e("s_load_dwordx2 s[4:5], s[0:1], 64", "s_load_dwordx2 s[12:13], s[0:1], 80")
    k.e("s_lshl_b32 s3, s2, 8", "v_add_u32 v1, s3, v0", "v_lshlrev_b32 v2, 4, v1",
        "s_mov_b32 s34, 3728271", "v_mul_hi_u32 v3, s34, v1", "s_movk_i32 s35, 1152", "v_mul_u32_u24 v4, s35, v3",
        "v_sub_u32 v4, v1, v4", "v_and_b32 v4, 0xfff0, v4", "v_and_b32 v5, 15, v1", "v_lshl_add_u32 v3, v3, 4, v5",
        "v_mad_u32_u24 v7, v3, s35, v4", "v_lshlrev_b32 v3, 2, v3")
    k.e("s_waitcnt lgkmcnt(0)")
    srd(k, 16, 12, WS_END)
    srd(k, 20, 4, XB)
    k.e(f"s_mov_b32 s34, {WS_P}")
    for j in range(8):
        k.e(f"buffer_load_dwordx4 {r4(16+4*j)}, v2, s[16:19], s34 offen", f"s_add_u32 s34, s34, {XB}")
    k.e(f"s_mov_b32 s34, {WS_H}", f"s_mov_b32 s35, {WS_RS}")
    k.e("buffer_load_dwordx4 v[48:51], v2, s[16:19], s34 offen", "buffer_load_dword v4, v3, s[16:19], s35 offen")
    k.e("v_mov_b32 v5, 0x00003f80", "v_mov_b32 v6, 0x3f800000")
    for i in range(8):
        k.e(f"v_mov_b32 v{8+i}, 0")
    for j in range(8):
        k.e(f"s_waitcnt vmcnt({9-j})")
        for i in range(4):
            k.e(f"v_dot2c_f32_bf16 v{8+2*i}, v{16+4*j+i}, v5", f"v_dot2c_f32_bf16 v{9+2*i}, v{16+4*j+i}, v6")
    k.e("s_waitcnt vmcnt(0)")
    for i in range(4):
        k.e(f"v_lshlrev_b32 v{16+2*i}, 16, v{48+i}", f"v_and_b32 v{17+2*i}, 0xffff0000, v{48+i}")
    for i in range(8):
        k.e(f"v_fma_f32 v{8+i}, v{8+i}, v4, v{16+i}")
    for i in range(4):
        k.e(f"v_cvt_pk_bf16_f32 v{24+i}, v{8+2*i}, v{9+2*i}")
    k.e("buffer_store_dwordx4 v[24:27], v7, s[20:23], 0 offen")
    k.label("red_end")
    k.e("s_endpgm")
    return k
```

```python
import struct
from asmlib import Kernel
from layout import *


def f2u(x):
    return struct.unpack("<I", struct.pack("<f", x))[0]


def srd(k, d, base, nbytes):
    k.e(f"s_mov_b32 s{d}, s{base}", f"s_mov_b32 s{d+1}, s{base+1}", f"s_mov_b32 s{d+2}, {hex(nbytes)}",
        f"s_mov_b32 s{d+3}, 0x00020000")


def ex(mask):
    if mask == -1:
        return "s_mov_b64 exec, -1"
    return f"s_mov_b32 exec_lo, {hex(mask & 0xffffffff)}\ns_mov_b32 exec_hi, {hex(mask >> 32)}"


def reduce_g_add(k, regs, tmp):
    for r, t in zip(regs, tmp):
        k.e(f"v_mov_b32 v{t}, v{r}")
    for r, t in zip(regs, tmp):
        k.e(f"v_permlane16_swap_b32 v{r}, v{t}")
    for r, t in zip(regs, tmp):
        k.e(f"v_add_f32 v{r}, v{r}, v{t}")
    for r, t in zip(regs, tmp):
        k.e(f"v_mov_b32 v{t}, v{r}")
    for r, t in zip(regs, tmp):
        k.e(f"v_permlane32_swap_b32 v{r}, v{t}")
    for r, t in zip(regs, tmp):
        k.e(f"v_add_f32 v{r}, v{r}, v{t}")


X0, ACC, ACS, WF, ONES = 64, 136, 156, 176, 196
LDS_W0 = 73728
LDS_RES = 30720
LDS_S = 135168
LDS_ST = LDS_S + 320
LDS_SMALL = LDS_ST + 512
CHUNKS = [(0, 4), (4, 8), (8, 12), (12, 18)]


def dma_slot_calc(k, i, vq, vslot, vc10, vkl):
    k.e(f"v_add_u32 v{vq}, {64*i}, v1",
        f"v_mul_u32_u24 v{vslot}, s40, v{vq}",
        f"v_lshrrev_b32 v{vslot}, 16, v{vslot}",
        f"v_mul_u32_u24 v{vc10}, 10, v{vslot}",
        f"v_sub_u32 v{vc10}, v{vq}, v{vc10}",
        f"v_and_b32 v{vkl}, 8, v{vslot}",
        f"v_lshrrev_b32 v{vkl}, 1, v{vkl}",
        f"v_xor_b32 v{vkl}, v{vkl}, v{vslot}")


def core(k, mode):
    stats = mode in ("q", "kv")
    k.stamp(1)
    if stats:
        k.e("s_mul_i32 s43, s30, 18432")
        for s in range(18):
            k.e(f"s_add_u32 m0, s43, {s*1024}", f"s_add_u32 s42, s31, {64*s}",
                "buffer_load_dwordx4 v4, s[16:19], s42 offen lds")
    else:
        for s in range(18):
            if s % 4 == 0 and s:
                k.e("s_add_u32 s31, s31, 4096")
            k.e(f"buffer_load_dwordx4 v[{X0+4*s}:{X0+4*s+3}], v4, s[16:19], s31 offen offset:{1024*(s%4)}")
    k.e("s_movk_i32 s40, 6554", "s_movk_i32 s41, 1152")
    if mode != "kv":
        for i in range(5):
            dma_slot_calc(k, i, 32, 33, 34, 35)
            k.e(f"v_mul_u32_u24 v{8+i}, s41, v35", f"v_lshl_add_u32 v{8+i}, v34, 4, v{8+i}")
        k.e("s_mul_i32 s42, s30, 36864", "s_add_u32 s42, s42, s32")
    else:
        for i in range(5):
            dma_slot_calc(k, i, 32, 33, 34, 35)
            a = 8 + 2 * i
            st = 18 + 2 * i
            k.e("v_add_u32 v35, s33, v35")
            k.e("v_subrev_u32 v36, 2, v34", "v_and_b32 v36, 3, v36", "v_lshlrev_b32 v36, 4, v36", "v_min_u32 v36, 20, v36")
            k.e("v_lshlrev_b32 v37, 4, v34", "v_add_u32 v37, 1120, v37")
            k.e("v_cmp_gt_u32 vcc, 2, v34")
            k.e("v_cmp_gt_u32 s[44:45], 6, v34")
            k.e("v_cndmask_b32 v36, v36, v37, vcc")
            k.e("v_mov_b32 v37, 36", "v_mov_b32 v38, s41", "v_cndmask_b32 v37, v37, v38, vcc")
            k.e("v_mad_u32_u24 v36, v35, v37, v36")
            k.e(f"v_lshlrev_b32 v{st}, 7, v37", f"v_mov_b32 v{st+1}, 0")
            k.e("v_mov_b32 v37, s10", "v_mov_b32 v38, s8", "v_cndmask_b32 v37, v37, v38, s[44:45]",
                "v_mov_b32 v38, s6", "v_cndmask_b32 v37, v37, v38, vcc")
            k.e("v_mov_b32 v38, s11", "v_mov_b32 v39, s9", "v_cndmask_b32 v38, v38, v39, s[44:45]",
                "v_mov_b32 v39, s7", "v_cndmask_b32 v38, v38, v39, vcc")
            k.e(f"v_add_co_u32 v{a}, vcc, v37, v36", f"v_addc_co_u32 v{a+1}, vcc, 0, v38, vcc")
    k.e("s_mul_i32 s43, s30, 5120")

    def wdma(grp):
        base = LDS_W0 + grp * 4 * 5120 if grp < 3 else (grp - 3) * 4 * 5120
        for i in range(5):
            k.e(f"s_add_u32 m0, s43, {base + i*1024}")
            if mode != "kv":
                k.e(f"buffer_load_dwordx4 v{8+i}, s[20:23], s42 offen lds")
            else:
                k.e(f"global_load_lds_dwordx4 v[{8+2*i}:{9+2*i}], off")
                if grp < 4:
                    k.e(f"v_lshl_add_u64 v[{8+2*i}:{9+2*i}], v[{18+2*i}:{19+2*i}], 0, v[{8+2*i}:{9+2*i}]")
        if mode != "kv" and grp < 4:
            k.e(f"s_add_u32 s42, s42, {4*36864}")

    def wdma_tail():
        skip = k.newlabel("skipdma")
        wdma(3)
        k.e("s_cmp_ge_u32 s30, 2", f"s_cbranch_scc1 {skip}")
        wdma(4)
        k.label(skip)

    for grp in range(3):
        wdma(grp)
    if mode == "o":
        wdma_tail()
        k.e("s_mul_i32 s44, s30, 3072")
        for i in range(3):
            k.e(f"s_add_u32 m0, s44, {LDS_RES + i*1024}", "s_nop 0", f"buffer_load_dwordx4 v{8+i}, s[36:39], s35 offen lds")
        k.e("s_and_b32 s48, s2, 7", f"s_mul_i32 s48, s48, {1296*1024}", "s_lshr_b32 s49, s2, 3", "s_mul_i32 s49, s49, 41472",
            "s_add_u32 s48, s48, s49", f"s_add_u32 s48, s48, {WS_W}",
            "v_lshlrev_b32 v61, 7, v0", "v_add_u32 v62, 256, v0", "v_min_u32 v62, 323, v62", "v_lshlrev_b32 v62, 7, v62")
    k.e("v_lshrrev_b32 v32, 2, v2",
        "v_and_b32 v33, 1, v3", "v_lshlrev_b32 v33, 2, v33", "v_add_u32 v32, v32, v33",
        "v_lshl_add_u32 v32, v3, 3, v32",
        "v_xor_b32 v33, 4, v32",
        "s_movk_i32 s40, 160",
        "v_and_b32 v34, 3, v2", "v_lshlrev_b32 v34, 3, v34",
        "v_mad_u32_u24 v30, v32, s40, v34", "v_mad_u32_u24 v31, v33, s40, v34",
        f"v_add_u32 v28, {LDS_W0}, v30", f"v_add_u32 v29, {LDS_W0}, v31")
    for r in range(ACC, ACC + 20):
        k.e(f"v_mov_b32 v{r}, 0")
    if stats:
        for r in range(ACS, ACS + 20):
            k.e(f"v_mov_b32 v{r}, 0")
        for r in range(ONES, ONES + 4):
            k.e(f"v_mov_b32 v{r}, 0x3f803f80")
        k.e("v_lshlrev_b32 v32, 2, v1", "v_mov_b32 v33, 0")
        k.e(f"v_add_u32 v32, {LDS_S}, v32", "ds_write_b32 v32, v33", "ds_write_b32 v32, v33 offset:64")
        k.e("v_mov_b32 v6, 0", "v_mov_b32 v7, 0")
        k.e("v_lshrrev_b32 v32, 2, v2", "v_sub_u32 v32, 4, v32", "v_and_b32 v32, 3, v32", "v_xor_b32 v32, v32, v3",
            "v_lshlrev_b32 v32, 4, v32", "v_lshl_add_u32 v32, v2, 6, v32", "s_mul_i32 s44, s30, 18432", "v_add_u32 v32, s44, v32")
        for part in range(3):
            k.e(f"s_waitcnt vmcnt({33 - 6*(part+1)})")
            for s in range(6 * part, 6 * part + 6):
                k.e(f"ds_read_b128 v[{X0+4*s}:{X0+4*s+3}], v32 offset:{1024*s}")
            if part:
                for r in range(X0 + 24 * (part - 1), X0 + 24 * part):
                    if (r - X0) % 24 == 0:
                        k.e("s_waitcnt lgkmcnt(6)")
                    k.e(f"v_dot2c_f32_bf16 v6, v{r}, v{ONES}", f"v_dot2c_f32_bf16 v7, v{r}, v{r}")
        k.e("s_waitcnt lgkmcnt(0)")
        for r in range(X0 + 48, X0 + 72):
            k.e(f"v_dot2c_f32_bf16 v6, v{r}, v{ONES}", f"v_dot2c_f32_bf16 v7, v{r}, v{r}")
        reduce_g_add(k, [6, 7], [32, 33])
        k.e(f"v_mul_f32 v6, {hex(f2u(1/576))}, v6", f"v_mul_f32 v7, {hex(f2u(1/576))}, v7",
            "v_fma_f32 v7, -v6, v6, v7", "v_max_f32 v7, 0, v7", f"v_add_f32 v7, {hex(f2u(1e-5))}, v7",
            "v_rsq_f32 v7, v7")
    k.stamp(2)

    def rd(t, s):
        a0, a1 = (28, 29) if s < 12 else (30, 31)
        off = (s if s < 12 else s - 12) * 5120 + 32 * t
        k.e(f"ds_read_b64_tr_b16 v[{WF+4*t}:{WF+4*t+1}], v{a0} offset:{off}",
            f"ds_read_b64_tr_b16 v[{WF+4*t+2}:{WF+4*t+3}], v{a1} offset:{off}")

    def step(s, last, withS):
        for t in range(5):
            k.e(f"s_waitcnt lgkmcnt({2*(4-t) if last else 8})")
            w = f"v[{WF+4*t}:{WF+4*t+3}]"
            x = f"v[{X0+4*s}:{X0+4*s+3}]"
            a = f"v[{ACC+4*t}:{ACC+4*t+3}]"
            if mode == "kv" and t >= 3:
                k.e(f"v_mfma_f32_16x16x32_bf16 {a}, {x}, {w}, {a}")
            else:
                k.e(f"v_mfma_f32_16x16x32_bf16 {a}, {w}, {x}, {a}")
            if withS:
                b = f"v[{ACS+4*t}:{ACS+4*t+3}]"
                k.e(f"v_mfma_f32_16x16x32_bf16 {b}, v[{ONES}:{ONES+3}], {w}, {b}")
            if not last:
                rd(t, s + 1)

    waits = [10, 10, 5, 0] if stats else [18, 13, 8, 0]
    for ci, (s0, s1) in enumerate(CHUNKS):
        k.e(f"s_waitcnt vmcnt({waits[ci]}) lgkmcnt(0)", "s_barrier")
        if ci in (0, 3):
            k.stamp(3 if ci == 0 else 4)
        for t in range(5):
            rd(t, s0)
        if ci == 0 and stats:
            wdma_tail()
        if ci == 3 and not stats:
            k.e("buffer_load_dword v61, v61, s[16:19], s48 offen", "buffer_load_dword v62, v62, s[16:19], s48 offen")
        for s in range(s0, s1):
            last = s == s1 - 1
            if stats:
                alt, nxt = k.newlabel("alt"), k.newlabel("nxt")
                k.e(f"s_cmp_eq_u32 s30, {s % 4}", f"s_cbranch_scc1 {alt}")
                step(s, last, False)
                k.e(f"s_branch {nxt}")
                k.label(alt)
                step(s, last, True)
                k.label(nxt)
            else:
                step(s, last, False)


def common_ids(k):
    k.stamp(0)
    k.e("v_and_b32 v1, 63, v0", "v_and_b32 v2, 15, v0", "v_bfe_u32 v3, v0, 4, 2", "v_lshrrev_b32 v32, 6, v0",
        "s_nop 0", "v_readfirstlane_b32 s30, v32")


def frag_store_voff(k, v):
    k.e(f"v_lshrrev_b32 v{v}, 1, v3", f"v_lshlrev_b32 v{v}, 8, v{v}", f"v_lshl_add_u32 v{v}, v2, 4, v{v}",
        "v_and_b32 v38, 1, v3", f"v_lshl_add_u32 v{v}, v38, 3, v{v}")


def gen_k1():
    k = Kernel("qkv_kernel")
    end = "qkv_end"
    k.e("s_cmp_ge_u32 s2, 256", f"s_cbranch_scc1 {end}")
    k.e("s_load_dwordx8 s[4:11], s[0:1], 0", "s_load_dwordx2 s[12:13], s[0:1], 80")
    common_ids(k)
    k.e("s_and_b32 s28, s2, 31", "s_lshr_b32 s29, s2, 5")
    k.e("v_lshrrev_b32 v5, 2, v1", "v_sub_u32 v6, 4, v3", "v_xor_b32 v6, v6, v1", "v_and_b32 v6, 3, v6",
        "s_movk_i32 s41, 1152", "v_mul_u32_u24 v5, s41, v5", "v_lshl_add_u32 v4, v6, 4, v5",
        "s_lshl_b32 s34, s28, 2", "s_add_u32 s34, s34, s30", "s_mul_i32 s31, s34, 18432",
        "s_mul_i32 s32, s29, 160", "s_lshl_b32 s33, s30, 5")
    k.e("s_waitcnt lgkmcnt(0)")
    srd(k, 16, 4, XB)
    srd(k, 20, 6, WQB)
    srd(k, 24, 12, WS_END)
    k.e("v_min_u32 v5, 39, v0", "v_lshlrev_b32 v5, 2, v5", "v_mov_b32 v6, 0", "s_mul_i32 s34, s2, 160", f"s_add_u32 s34, s34, {WS_FL}",
        "buffer_store_dword v6, v5, s[24:27], s34 offen")
    k.e("s_cmp_eq_u32 s29, 7", "s_cbranch_scc1 qkv_kv")

    def s_exchange():
        k.e("v_lshlrev_b32 v32, 2, v2", f"v_add_u32 v32, {LDS_S}, v32")
        k.e(ex(0xffff))
        for t in range(5):
            k.e(f"ds_add_f32 v32, v{ACS+4*t} offset:{64*t}")
        k.e("s_mov_b64 exec, -1")
        k.e("s_waitcnt lgkmcnt(0)", "s_barrier")

    def norm_tile(t, sreg, scale_reg):
        for i in range(4):
            k.e(f"v_fma_f32 v{ACC+4*t+i}, -v6, v{sreg+i}, v{ACC+4*t+i}")
        for i in range(4):
            k.e(f"v_mul_f32 v{ACC+4*t+i}, v{scale_reg}, v{ACC+4*t+i}")

    core(k, "q")
    s_exchange()
    k.e("v_lshlrev_b32 v33, 4, v3", f"v_add_u32 v33, {LDS_S}, v33")
    for t in range(5):
        k.e(f"ds_read_b128 v[{WF+4*t}:{WF+4*t+3}], v33 offset:{64*t}")
    k.e(f"v_mul_f32 v34, {hex(f2u(QSCALE))}, v7")
    frag_store_voff(k, 35)
    k.e("s_mul_i32 s34, s29, 2560", "s_add_u32 s34, s34, s31", f"s_add_u32 s34, s34, {WS_Q}")
    for t in range(5):
        k.e(f"s_waitcnt lgkmcnt({4-t})")
        norm_tile(t, WF + 4 * t, 34)
        k.e(f"v_cvt_pk_bf16_f32 v{40+2*t}, v{ACC+4*t}, v{ACC+4*t+1}", f"v_cvt_pk_bf16_f32 v{41+2*t}, v{ACC+4*t+2}, v{ACC+4*t+3}")
        k.e(f"buffer_store_dwordx2 v[{40+2*t}:{41+2*t}], v35, s[24:27], s34 offen offset:{512*t}")
    k.stamp(5)
    k.stamp_flush(0, 7, 24, 30)
    k.e("s_endpgm")

    k.label("qkv_kv")
    core(k, "kv")
    k.e("s_lshl_b32 s35, s30, 7", f"s_add_u32 s35, s35, {LDS_ST}", "v_lshlrev_b32 v36, 2, v2", "v_add_u32 v36, s35, v36",
        "ds_write_b32 v36, v6", "ds_write_b32 v36, v7 offset:64")
    s_exchange()
    k.e("v_lshlrev_b32 v33, 4, v3", f"v_add_u32 v34, {LDS_S}, v33", "v_add_u32 v33, s35, v33")
    for t in range(3):
        k.e(f"ds_read_b128 v[{WF+4*t}:{WF+4*t+3}], v34 offset:{64*t}")
    k.e(f"ds_read_b32 v{WF+12}, v32 offset:192", f"ds_read_b32 v{WF+13}, v32 offset:256")
    k.e("ds_read_b128 v[48:51], v33", "ds_read_b128 v[52:55], v33 offset:64")
    k.e(f"v_mul_f32 v34, {hex(f2u(QSCALE))}, v7")
    frag_store_voff(k, 35)
    k.e(f"s_add_u32 s34, s31, {70*256 + WS_Q}")
    k.e("s_waitcnt lgkmcnt(0)")
    norm_tile(0, WF, 34)
    k.e(f"v_cvt_pk_bf16_f32 v40, v{ACC}, v{ACC+1}", f"v_cvt_pk_bf16_f32 v41, v{ACC+2}, v{ACC+3}")
    k.e("buffer_store_dwordx2 v[40:41], v35, s[24:27], s34 offen")
    norm_tile(1, WF + 4, 7)
    norm_tile(2, WF + 8, 7)
    k.e("s_lshr_b32 s34, s28, 1", f"s_mul_i32 s34, s34, {GRP}", f"s_add_u32 s34, s34, {WS_KV}",
        "s_and_b32 s36, s28, 1", "s_lshl_b32 s36, s36, 1", "s_lshr_b32 s37, s30, 1", "s_add_u32 s36, s36, s37",
        "s_and_b32 s37, s30, 1")
    k.e("s_lshl_b32 s38, s37, 8", "v_lshlrev_b32 v36, 4, v2", "v_add_u32 v36, s38, v36")
    k.e("v_lshrrev_b32 v37, 1, v3", "v_lshl_add_u32 v37, v37, 9, v36", "v_and_b32 v38, 1, v3", "v_lshl_add_u32 v37, v38, 3, v37",
        "s_lshl_b32 s38, s36, 10", "s_add_u32 s38, s38, s34")
    k.e(f"v_cvt_pk_bf16_f32 v42, v{ACC+4}, v{ACC+5}", f"v_cvt_pk_bf16_f32 v43, v{ACC+6}, v{ACC+7}")
    k.e("buffer_store_dwordx2 v[42:43], v37, s[24:27], s38 offen")
    k.e(f"s_add_u32 s38, s38, {16*GRP}", "buffer_store_dwordx2 v[42:43], v37, s[24:27], s38 offen")
    k.e(f"v_cvt_pk_bf16_f32 v44, v{ACC+10}, v{ACC+11}")
    k.e("s_lshl_b32 s38, s36, 2", "s_add_u32 s38, s38, s34", f"s_add_u32 s38, s38, {KV_K2}")
    k.e(ex(0xffff0000), "buffer_store_dword v44, v36, s[24:27], s38 offen", f"s_add_u32 s38, s38, {16*GRP}",
        "buffer_store_dword v44, v36, s[24:27], s38 offen", "s_mov_b64 exec, -1")
    k.e(f"v_mul_f32 v45, v{ACC+10}, v{ACC+10}", f"v_fmac_f32 v45, v{ACC+11}, v{ACC+11}",
        "v_cmp_eq_u32 vcc, 1, v3", "v_cndmask_b32 v45, 0, v45, vcc")
    for i in range(4):
        k.e(f"v_fmac_f32 v45, v{ACC+4+i}, v{ACC+4+i}")
    reduce_g_add(k, [45], [46])
    for sh in (8, 4, 2, 1):
        k.e(f"v_max_f32_dpp v45, v45, v45 row_ror:{sh} row_mask:0xf bank_mask:0xf")
    k.e("s_lshl_b32 s38, s28, 2", "s_add_u32 s38, s38, s30", "s_lshl_b32 s38, s38, 2", f"s_add_u32 s38, s38, {WS_KM}",
        "v_mov_b32 v46, 0", ex(1), "buffer_store_dword v45, v46, s[24:27], s38 offen")
    k.e("v_mov_b32 v56, 0x3f803f80", "v_mov_b32 v57, 0x00003f80", "v_mov_b32 v58, 0x3f803f80", "v_mov_b32 v59, 0x00003f80",
        f"s_add_u32 s38, s34, {KV_K2 + 512}", "buffer_store_dwordx4 v[56:59], v46, s[24:27], s38 offen", f"s_add_u32 s38, s38, {16*GRP}",
        "buffer_store_dwordx4 v[56:59], v46, s[24:27], s38 offen", "s_mov_b64 exec, -1")
    for t in (3, 4):
        for i in range(4):
            k.e(f"v_fma_f32 v{ACC+4*t+i}, -v{48+i}, v{WF+12+t-3}, v{ACC+4*t+i}")
        for i in range(4):
            k.e(f"v_mul_f32 v{ACC+4*t+i}, v{52+i}, v{ACC+4*t+i}")
    k.e(f"v_cvt_pk_bf16_f32 v40, v{ACC+12}, v{ACC+13}", f"v_cvt_pk_bf16_f32 v41, v{ACC+14}, v{ACC+15}",
        f"v_cvt_pk_bf16_f32 v42, v{ACC+16}, v{ACC+17}", f"v_cvt_pk_bf16_f32 v43, v{ACC+18}, v{ACC+19}")
    k.e("s_mul_i32 s38, s36, 1216", "s_mul_i32 s39, s37, 608", "s_add_u32 s38, s38, s39", "s_add_u32 s38, s38, s34",
        f"s_add_u32 s38, s38, {KV_V}",
        "s_movk_i32 s39, 304", "v_mul_u32_u24 v37, s39, v38", "v_lshl_add_u32 v37, v2, 4, v37",
        "v_lshrrev_b32 v39, 1, v3", "v_lshl_add_u32 v37, v39, 3, v37")
    k.e("buffer_store_dwordx2 v[40:41], v37, s[24:27], s38 offen")
    k.e(f"s_add_u32 s39, s38, {16*GRP}", "buffer_store_dwordx2 v[40:41], v37, s[24:27], s39 offen")
    k.e("v_mov_b32 v39, 0x3f803f80", "v_cmp_eq_u32 vcc, 8, v2", "v_cndmask_b32 v42, v42, v39, vcc", "v_cndmask_b32 v43, v43, v39, vcc")
    k.e(ex(0x01c001c001c001c0))
    k.e("buffer_store_dwordx2 v[42:43], v37, s[24:27], s38 offen offset:160")
    k.e("buffer_store_dwordx2 v[42:43], v37, s[24:27], s39 offen offset:160")
    k.stamp(5)
    k.stamp_flush(0, 7, 24, 30)
    k.label(end)
    k.e("s_endpgm")
    return k


def gen_k3():
    k = Kernel("oproj_kernel")
    end = "oproj_end"
    k.e("s_cmp_ge_u32 s2, 256", f"s_cbranch_scc1 {end}")
    k.e("s_load_dwordx2 s[4:5], s[0:1], 0", "s_load_dwordx2 s[6:7], s[0:1], 32", "s_load_dwordx2 s[12:13], s[0:1], 80")
    common_ids(k)
    k.e("s_and_b32 s28, s2, 31", "s_lshr_b32 s29, s2, 5")
    k.e("v_lshlrev_b32 v4, 4, v1", "s_lshl_b32 s47, s28, 2", "s_add_u32 s47, s47, s30", "s_mul_i32 s46, s47, 18432",
        "s_mul_i32 s32, s29, 144", f"s_add_u32 s31, s46, {WS_O}", "s_add_u32 s35, s46, s32")
    k.e("s_waitcnt lgkmcnt(0)")
    srd(k, 16, 12, WS_END)
    srd(k, 20, 6, WQB)
    srd(k, 36, 4, XB)
    k.e("s_lshl_b32 s48, s2, 10", "v_lshlrev_b32 v5, 2, v0", "v_add_u32 v5, s48, v5", f"s_mov_b32 s48, {WS_SP}")
    k.e("s_cmp_ge_u32 s2, 18", "s_cbranch_scc1 oproj_nos")
    for i in range(9):
        k.e(f"buffer_load_dword v{ACS+i}, v5, s[16:19], s48 offen", "s_add_u32 s48, s48, 18432")
    k.label("oproj_nos")
    core(k, "o")
    k.e("v_and_b32 v32, 8, v2", "v_lshrrev_b32 v32, 1, v32", "v_xor_b32 v32, v32, v2", "v_mul_u32_u24 v32, s40, v32",
        "v_lshl_add_u32 v32, v3, 3, v32", f"s_add_u32 s44, s44, {LDS_RES}", "v_add_u32 v32, s44, v32")
    for t in range(5):
        k.e(f"ds_read_b64 v[{40+2*t}:{41+2*t}], v32 offset:{32*t}")
    frag_store_voff(k, 35)
    k.e("v_mov_b32 v6, 0", "v_mov_b32 v7, 0", "v_mov_b32 v34, 0x3f803f80",
        "s_mul_i32 s35, s29, 2304", "s_add_u32 s35, s35, s46", f"s_add_u32 s35, s35, {WS_H}")
    for t in range(5):
        a = ACC + 4 * t
        k.e(f"s_waitcnt lgkmcnt({4-t})")
        k.e(f"v_lshlrev_b32 v50, 16, v{40+2*t}", f"v_and_b32 v51, 0xffff0000, v{40+2*t}",
            f"v_lshlrev_b32 v52, 16, v{41+2*t}", f"v_and_b32 v53, 0xffff0000, v{41+2*t}")
        for i in range(4):
            k.e(f"v_add_f32 v{a+i}, v{a+i}, v{50+i}")
        k.e(f"v_cvt_pk_bf16_f32 v{40+2*t}, v{a}, v{a+1}", f"v_cvt_pk_bf16_f32 v{41+2*t}, v{a+2}, v{a+3}")
        if t == 4:
            k.e(ex(0xffffffff))
        k.e(f"buffer_store_dwordx2 v[{40+2*t}:{41+2*t}], v35, s[16:19], s35 offen offset:{512*t}")
        k.e(f"v_dot2c_f32_bf16 v6, v{40+2*t}, v34", f"v_dot2c_f32_bf16 v7, v{40+2*t}, v{40+2*t}",
            f"v_dot2c_f32_bf16 v6, v{41+2*t}, v34", f"v_dot2c_f32_bf16 v7, v{41+2*t}, v{41+2*t}")
        if t == 4:
            k.e("s_mov_b64 exec, -1")
    reduce_g_add(k, [6, 7], [32, 33])
    k.e("v_lshlrev_b32 v60, 4, v2", "s_lshl_b32 s35, s47, 10", "s_lshr_b32 s34, s29, 1", "s_lshl_b32 s34, s34, 8",
        "s_add_u32 s35, s35, s34", "s_and_b32 s34, s29, 1", "s_lshl_b32 s34, s34, 3", "s_add_u32 s35, s35, s34",
        f"s_add_u32 s35, s35, {WS_ST}", ex(0xffff))
    k.e("buffer_store_dwordx2 v[6:7], v60, s[16:19], s35 offen", ex(-1))
    k.e("s_cmp_ge_u32 s2, 18", "s_cbranch_scc1 oproj_fin")
    for i in range(1, 9):
        k.e(f"v_add_f32 v{ACS}, v{ACS}, v{ACS+i}")
    k.e(f"s_mov_b32 s48, {WS_S}", f"buffer_store_dword v{ACS}, v5, s[16:19], s48 offen")
    k.label("oproj_fin")
    k.stamp(5)
    k.stamp_flush(2, 7, 16, 30)
    k.label(end)
    k.e("s_endpgm")
    return k
```

```python
WS_Q  = 0x0
WS_O  = 0x240000
WS_H  = 0x480000
WS_KV = 0x2B60000
WS_KM = 0x6E8000
WS_ST = 0x6E9000
WS_RS = 0x709000
WS_S  = 0x70B000
WS_SP = 0x710000
WS_W  = 0x740000
WS_P  = 0x1160000
WS_TS = 0x2360000
WS_END = 0x2B60000 + 0x50000
XB = 2048*576*2
WQB = 576*576*2
WKB = 576*18*2
W1B = 576*4608*2
GRP = 9488
KV_V = 4096
KV_K2 = 8960
QSCALE = 1.4426950408889634 / (18 ** 0.5)
```

```python
import sys
from k_small import gen_k1, gen_k3, LDS_SMALL
from k_attn import gen_k2, LDS_ATTN
from k_ffn import gen_k4, gen_k5, LDS_FFN
NAME = "sequential_preLN__grouped_kv_mqa__dense_activation_relu__prompt"
ref = open(f"cdna_kernels/{NAME}.s.ref").read().split("\n")
head = [l for l in ref if l.startswith(";") and "@launch" not in l and "Override" not in l and "grid=ceil" not in l]
def build(path):
    ks = [(gen_k1(), 256, 256, LDS_SMALL), (gen_k2(), 256, 768, LDS_ATTN), (gen_k3(), 256, 256, LDS_SMALL),
          (gen_k4(), 256, 512, LDS_FFN), (gen_k5(), 576, 256, 0)]
    out = list(head)
    for k, g, b, l in ks:
        out.append(f"; @launch kernel={k.name} grid=({g},1,1) block=({b},1,1) lds={l}")
    out.append('.amdgcn_target "amdgcn-amd-amdhsa--gfx950"')
    out.append(".text")
    kds = []
    for k, *_ in ks:
        c, kd = k.text()
        out.append(c)
        kds.append(kd)
        print(k.name, "vgpr", k.maxv, "sgpr", k.maxs, "instrs", len(k.ins), "nops", sum(1 for x in k.ins if x.kind == "nop"))
    out.append('.section .rodata,"a"')
    for kd in kds:
        out.append(".p2align 6")
        out.append(kd)
    open(path, "w").write("\n".join(out))
if __name__ == "__main__":
    if "--stamp" in sys.argv:
        from asmlib import Kernel
        Kernel.STAMP = True
        sys.argv.remove("--stamp")
    build(sys.argv[1] if len(sys.argv) > 1 else f"cdna_kernels/{NAME}.s")
```

```python
import re

TRANS = ("v_exp_f32", "v_log_f32", "v_rcp_f32", "v_rsq_f32", "v_sqrt_f32", "v_sin_f32", "v_cos_f32",
         "v_exp_f16", "v_rcp_iflag_f32")
REG_RE = re.compile(r"\b([vsa])\[(\d+):(\d+)\]|\b([vsa])(\d+)\b|\b(vcc|exec|m0|vcc_lo|vcc_hi|exec_lo|exec_hi)\b")


def regs_of(op):
    out = set()
    for m in REG_RE.finditer(op):
        if m.group(1):
            for i in range(int(m.group(2)), int(m.group(3)) + 1):
                out.add((m.group(1), i))
        elif m.group(4):
            out.add((m.group(4), int(m.group(5))))
        else:
            n = m.group(6)
            if n.startswith("vcc"):
                out.add(("x", "vcc"))
            elif n.startswith("exec"):
                out.add(("x", "exec"))
            else:
                out.add(("x", "m0"))
    return out


def split_ops(s):
    ops, depth, cur = [], 0, ""
    for ch in s:
        if ch == "[":
            depth += 1
        if ch == "]":
            depth -= 1
        if ch == "," and depth == 0:
            ops.append(cur.strip())
            cur = ""
        else:
            cur += ch
    if cur.strip():
        ops.append(cur.strip())
    return ops


class Ins:
    def __init__(self, text):
        self.text = text
        t = text.split(";")[0].strip()
        self.label = None
        self.op = None
        self.rd = set()
        self.wr = set()
        self.kind = None
        if t.endswith(":"):
            self.label = t[:-1]
            self.kind = "label"
            return
        if t.startswith(".") or not t:
            self.kind = "dir"
            return
        parts = t.split(None, 1)
        op = parts[0]
        self.op = op
        rest = parts[1] if len(parts) > 1 else ""
        ops = split_ops(rest)
        self.ops = ops
        R = [regs_of(o) for o in ops]
        allr = set().union(*R) if R else set()
        self.dpp = ("_dpp" in op) or ("row_" in rest) or ("quad_perm" in rest)
        self.sdwa = "_sdwa" in op or "op_sel:" in rest
        if op.startswith("v_mfma"):
            self.kind = "mfma"
            self.wr = R[0]
            self.A, self.B, self.C = R[1], R[2], R[3]
            self.rd = R[1] | R[2] | R[3]
            self.passes = 8 if "32x32" in op else (2 if "4x4" in op else 4)
        elif op.startswith("v_"):
            self.kind = "valu"
            base = op.replace("_e32", "").replace("_e64", "").replace("_dpp", "").replace("_sdwa", "")
            self.base = base
            self.trans = base in TRANS
            self.dot = base.startswith("v_dot")
            if base.startswith("v_cmp"):
                self.wr = R[0]
                self.rd = set().union(*R[1:])
                if base.startswith("v_cmpx"):
                    self.wr = self.wr | {("x", "exec")}
            elif base in ("v_add_co_u32", "v_sub_co_u32", "v_addc_co_u32", "v_subb_co_u32", "v_subrev_co_u32",
                          "v_mad_u64_u32", "v_div_scale_f32"):
                self.wr = R[0] | R[1]
                self.rd = set().union(*R[2:])
            elif base.startswith("v_permlane") and "swap" in base:
                self.wr = R[0] | R[1]
                self.rd = R[0] | R[1]
            elif base in ("v_fmac_f32", "v_dot2c_f32_bf16", "v_writelane_b32") or self.dpp or "PRESERVE" in rest:
                self.wr = R[0]
                self.rd = allr
            elif base == "v_nop":
                pass
            else:
                self.wr = R[0]
                self.rd = set().union(*R[1:]) if len(R) > 1 else set()
        elif op.startswith("ds_"):
            self.kind = "ds"
            if op.startswith("ds_read") or "permute" in op or "swizzle" in op or "_rtn" in op:
                self.wr = R[0]
                self.rd = set().union(*R[1:])
            else:
                self.rd = allr
        elif op.startswith("buffer_") or op.startswith("global_") or op.startswith("flat_"):
            self.kind = "vmem"
            self.lds = (" lds" in (" " + rest)) or "_lds_" in op
            self.wide_store = ("store" in op) and ("x3" in op or "x4" in op)
            if self.lds:
                self.rd = allr | {("x", "m0")}
            elif "load" in op:
                self.wr = R[0]
                self.rd = set().union(*R[1:])
            elif "atomic" in op and " sc0" in rest:
                self.wr = R[0]
                self.rd = allr
            else:
                self.rd = allr
            if "store" in op:
                self.data = R[0] if op.startswith("buffer_") else R[1]
        elif op.startswith("s_"):
            self.kind = "salu"
            if op in ("s_nop",):
                self.kind = "nop"
                self.n = int(ops[0], 0) + 1
            elif op.startswith("s_cmp") or op.startswith("s_bitcmp") or op.startswith("s_cbranch") or op in (
                    "s_branch", "s_waitcnt", "s_barrier", "s_endpgm", "s_setprio", "s_sleep", "s_setpc_b64"):
                self.rd = allr
            elif "saveexec" in op:
                self.wr = R[0] | {("x", "exec")}
                self.rd = set().union(*R[1:]) | {("x", "exec")}
            else:
                self.wr = R[0] if R else set()
                self.rd = set().union(*R[1:]) if len(R) > 1 else set()
        else:
            raise ValueError("unknown instr: " + text)

    def states(self):
        if self.kind in ("label", "dir"):
            return 0
        if self.kind == "nop":
            return self.n
        return 1


def vonly(s):
    return {r for r in s if r[0] in "va"}


def sonly(s):
    return {r for r in s if r[0] == "s" or r == ("x", "vcc")}


def need(p, c):
    n = 0
    if p.kind == "valu":
        w = vonly(p.wr)
        if c.kind == "mfma" and (w & c.rd):
            n = max(n, 2)
        if c.kind == "valu":
            if p.trans and not c.trans and (w & c.rd):
                n = max(n, 1)
            if c.dpp and (w & c.rd):
                n = max(n, 2)
            if c.base.startswith("v_permlane") and (w & c.rd):
                n = max(n, 2)
            if c.base in ("v_readlane_b32", "v_readfirstlane_b32") and (w & c.rd):
                n = max(n, 1)
            if p.sdwa and (w & (c.rd | c.wr)):
                n = max(n, 1)
            if p.dot and (w & (c.rd | c.wr)):
                if c.base == p.base:
                    srcab = regs_of(c.ops[1]) | regs_of(c.ops[2])
                    if w & srcab:
                        n = max(n, 3)
                else:
                    n = max(n, 3)
            sw = sonly(p.wr)
            if sw & c.rd:
                n = max(n, 4 if c.base in ("v_readlane_b32", "v_writelane_b32") else 2)
            if ("x", "exec") in p.wr:
                n = max(n, 5)
        if p.dot and c.kind in ("mfma", "ds", "vmem") and (w & c.rd):
            n = max(n, 3)
        if c.kind == "vmem" and (sonly(p.wr) & c.rd):
            n = max(n, 5)
        if c.kind == "salu" and (sonly(p.wr) & c.rd):
            n = max(n, 1)
        if c.kind == "mfma" and ("x", "exec") in p.wr:
            n = max(n, 4)
    elif p.kind == "mfma":
        big = {2: 5, 4: 8, 8: 12}[p.passes]
        if c.kind == "mfma":
            if p.wr & (c.A | c.B):
                n = max(n, big)
            if p.wr & c.C:
                if p.wr == c.C and p.passes == c.passes:
                    n = max(n, 2 if p.passes == 2 else 0)
                else:
                    n = max(n, {2: 4, 4: 6, 8: 10}[p.passes])
        elif c.kind in ("valu", "ds", "vmem"):
            if p.wr & (c.rd | c.wr):
                n = max(n, big)
            if c.kind == "valu" and (p.C & c.wr):
                n = max(n, {2: 1, 4: 3, 8: 7}[p.passes])
    elif p.kind == "salu":
        if ("x", "m0") in p.wr and c.kind == "vmem" and c.lds:
            n = max(n, 1)
    elif p.kind == "vmem":
        if p.wide_store and (p.data & vonly(c.wr)):
            n = max(n, 2 if c.kind in ("valu", "mfma") else 1)
    return n


class Kernel:
    def __init__(self, name, vgprs=256, sgprs=96, accum=None):
        self.name = name
        self.lines = []
        self.vgprs = vgprs
        self.sgprs = sgprs
        self.accum = accum
        self._lab = 0

    def e(self, *texts):
        for t in texts:
            for l in t.split("\n"):
                if l.strip():
                    self.lines.append(l.strip())

    def label(self, name):
        self.lines.append(f"{name}:")

    STAMP = False
    def stamp(self, i):
        if not Kernel.STAMP:
            return
        b = 70 + 2 * i
        self.e("s_memtime s[66:67]", "s_memrealtime s[68:69]", "s_waitcnt lgkmcnt(0)", f"s_mov_b32 s{b}, s66", f"s_mov_b32 s{b+1}, s68")

    def stamp_flush(self, kidx, n, srd, wave_sgpr, wpw=8):
        if not Kernel.STAMP:
            return
        self.e("s_waitcnt vmcnt(0)")
        self.stamp(n - 1)
        self.e("s_mov_b32 exec_lo, 1", "s_mov_b32 exec_hi, 0")
        self.e(f"s_mul_i32 s66, s2, {wpw}", f"s_add_u32 s66, s66, s{wave_sgpr}" if wave_sgpr is not None else "s_nop 0", "s_lshl_b32 s66, s66, 7",
               f"s_add_u32 s66, s66, {0x2360000 + kidx * 0x100000}", "v_mov_b32 v0, 0")
        for i in range(n):
            b = 70 + 2 * i
            for j in range(2):
                self.e(f"v_mov_b32 v{4+j}, s{b+j}")
            self.e(f"buffer_store_dwordx2 v[4:5], v0, s[{srd}:{srd+3}], s66 offen offset:{8*i}", "s_waitcnt vmcnt(0)")

    def newlabel(self, base="L"):
        self._lab += 1
        return f"{self.name}_{base}{self._lab}"

    def finalize(self):
        ins = [Ins(l) for l in self.lines]
        changed = True
        while changed:
            changed = False
            labels = {x.label: i for i, x in enumerate(ins) if x.kind == "label"}
            preds = {}
            for i, x in enumerate(ins):
                if x.op and (x.op.startswith("s_cbranch") or x.op == "s_branch"):
                    tgt = x.ops[0]
                    preds.setdefault(labels[tgt], []).append(i)
            for i, c in enumerate(ins):
                if c.kind in ("label", "dir", "nop"):
                    continue
                req = 0
                stack = [(i - 1, 0)]
                seen = set()
                while stack:
                    j, dist = stack.pop()
                    if j < 0 or dist >= 12 or (j, dist) in seen:
                        continue
                    seen.add((j, dist))
                    p = ins[j]
                    if p.kind == "label":
                        for b in preds.get(j, []):
                            stack.append((b, dist))
                        q = j - 1
                        while q >= 0 and ins[q].kind in ("dir",):
                            q -= 1
                        if q >= 0 and not (ins[q].op in ("s_branch", "s_endpgm", "s_setpc_b64")):
                            stack.append((j - 1, dist))
                        continue
                    if p.kind not in ("dir", "nop"):
                        r = need(p, c) - dist
                        if r > req:
                            req = r
                    stack.append((j - 1, dist + p.states()))
                if req > 0:
                    ins.insert(i, Ins(f"s_nop {req - 1}"))
                    changed = True
                    break
        self.ins = ins
        mv = 0
        ms = 0
        for x in ins:
            for r in (x.rd | x.wr):
                if r[0] == "v":
                    mv = max(mv, r[1] + 1)
                if r[0] == "s":
                    ms = max(ms, r[1] + 1)
        self.maxv, self.maxs = mv, ms
        return ins

    def text(self):
        ins = self.finalize()
        nv = max(self.maxv, 8)
        if self.vgprs is not None:
            assert self.maxv <= self.vgprs, (self.name, self.maxv)
        acc = (nv + 3) // 4 * 4
        out = [f".globl {self.name}", ".p2align 8", f".type {self.name},@function", f"{self.name}:"]
        for x in ins:
            out.append(x.text if x.kind == "label" else "    " + x.text)
        code = "\n".join(out) + "\n"
        kd = f""".amdhsa_kernel {self.name}
  .amdhsa_next_free_vgpr {nv}
  .amdhsa_next_free_sgpr {max(self.maxs, 16)}
  .amdhsa_accum_offset {acc}
  .amdhsa_group_segment_fixed_size 0
  .amdhsa_kernarg_size 88
  .amdhsa_user_sgpr_count 2
  .amdhsa_user_sgpr_kernarg_segment_ptr 1
  .amdhsa_system_sgpr_workgroup_id_x 1
  .amdhsa_float_denorm_mode_32 3
.end_amdhsa_kernel
"""
        return code, kd
```

```python
import os
from asmlib import Kernel
from layout import *
from k_small import f2u, srd, ex, reduce_g_add, dma_slot_calc

S0, S1, OA, P, KF, V0, V1, K2F, Q, Q2E, Q2O = 16, 32, 48, 64, 72, 76, 80, 84, 88, 92, 94
T0 = 96
PIN, POUT, PS = 16, 64, 112
LDS_OST = 151808
LDS_RES = 49408
LDS_WO = 59648
LDS_H = 73728
LDS_S = 161024
LDS_RDY = 163328
LDS_CNT = 163344
LDS_MEGA = 163392
OX0, OACC, OWF = 48, 120, 140
XB0, ACC, WR = 16, 48, 96
D = 6
T = 3
STREAM = 36 * T * 1024
SPIN = 1 << 20
WAUX = os.environ.get("WAUX", "sc1")


def r4(b):
    return f"v[{b}:{b+3}]"


def r16(b):
    return f"v[{b}:{b+15}]"


def poll(k, vaddr, soff, vtmp, tag, wide=False, sleep=2):
    lab, done = f"mega_poll_{tag}", f"mega_polld_{tag}"
    k.e(f"s_mov_b32 s3, {SPIN}")
    k.label(lab)
    if wide:
        k.e(f"buffer_load_dwordx2 v[{vtmp}:{vtmp+1}], v{vaddr}, s[16:19], s{soff} offen sc1", "s_waitcnt vmcnt(0)",
            f"v_and_b32 v{vtmp}, v{vtmp}, v{vtmp+1}")
    else:
        k.e(f"buffer_load_dword v{vtmp}, v{vaddr}, s[16:19], s{soff} offen sc1", "s_waitcnt vmcnt(0)")
    k.e(f"v_cmp_ne_u32 vcc, 0, v{vtmp}", "s_cmp_eq_u64 vcc, -1", f"s_cbranch_scc1 {done}",
        f"s_sleep {sleep}", "s_sub_u32 s3, s3, 1", f"s_cbranch_scc0 {lab}")
    k.label(done)


def set_flag(k, soff, va, vb):
    k.e(f"v_mov_b32 v{va}, 0", f"v_mov_b32 v{vb}, 1", ex(1), f"buffer_store_dword v{vb}, v{va}, s[16:19], s{soff} offen sc1", ex(-1))


def arrive(k, cnt, n, soff, tag, cnt_sgpr=None):
    if cnt_sgpr is None:
        k.e(f"v_mov_b32 v12, {LDS_CNT + 4*cnt}")
    else:
        k.e(f"v_mov_b32 v12, s{cnt_sgpr}")
    k.e("v_mov_b32 v13, 1", ex(1), "ds_add_rtn_u32 v14, v12, v13", ex(-1), "s_waitcnt lgkmcnt(0)",
        "v_readfirstlane_b32 s3, v14", f"s_cmp_lg_u32 s3, {n-1}", f"s_cbranch_scc1 mega_arr_{tag}")
    set_flag(k, soff, 12, 13)
    k.label(f"mega_arr_{tag}")


def publish_o(k, tag, pre=None):
    k.e("s_and_b32 s34, s30, 3", "s_lshr_b32 s35, s30, 2", "s_mul_i32 s36, s34, 2304", "s_mul_i32 s37, s35, 768",
        "s_add_u32 s36, s36, s37", f"s_add_u32 s36, s36, {LDS_OST}", "v_add_u32 v12, s36, v11",
        f"ds_read_b128 {r4(4)}, v12")
    k.e("s_lshl_b32 s36, s28, 2", "s_add_u32 s36, s36, s34", "s_mul_i32 s38, s36, 18432", "s_mul_i32 s39, s29, 2304",
        "s_add_u32 s38, s38, s39", "s_add_u32 s38, s38, s37", f"s_add_u32 s38, s38, {WS_O}")
    k.e("s_lshl_b32 s36, s28, 7", "s_lshl_b32 s39, s29, 2", "s_add_u32 s36, s36, s39", f"s_add_u32 s36, s36, {F1}")
    k.e("s_waitcnt lgkmcnt(0)", ex((1 << 48) - 1), f"buffer_store_dwordx4 {r4(4)}, v11, s[16:19], s38 offen sc1", ex(-1),
        "s_waitcnt vmcnt(0)")
    arrive(k, 1, 12, 36, tag)
    if pre:
        pre(k)


def attention(k):
    k.e(f"s_add_u32 s34, s33, {WS_Q}", f"s_mov_b32 s35, {WS_KM}")
    for i in range(4):
        k.e(f"s_add_u32 s38, s37, {2*i}", "s_lshr_b32 s39, s38, 3", "s_lshl_b32 s39, s39, 8", "s_and_b32 s38, s38, 7",
            "s_lshl_b32 s38, s38, 1", "s_add_u32 s38, s38, s39", "s_add_u32 s38, s38, s34")
        k.e(f"buffer_load_dword v{Q+i}, v9, s[16:19], s38 offen")
        if i == 0:
            k.e(f"buffer_load_dword v{T0}, v8, s[16:19], s38 offen offset:512")
    k.e(f"buffer_load_dwordx2 v[{T0+2}:{T0+3}], v10, s[16:19], s35 offen")
    k.e("v_mov_b32 v12, v11")
    k.e("v_cmp_eq_u32 vcc, 28, v2", "v_cndmask_b32 v13, v2, 18, vcc",
        "v_cmp_lt_u32 vcc, 18, v13", "v_mov_b32 v14, 0x10000", "v_cndmask_b32 v13, v13, v14, vcc",
        "s_movk_i32 s40, 304", "v_mul_u32_u24 v14, s40, v3", "v_lshl_add_u32 v13, v13, 4, v14", f"v_add_u32 v13, {KV_V}, v13")
    k.e("v_min_u32 v14, 32, v1", "v_lshlrev_b32 v14, 4, v14", f"v_add_u32 v14, {KV_K2}, v14")
    k.e("v_cmp_eq_u32 s[44:45], 1, v3")
    k.e("s_waitcnt vmcnt(0)")
    k.e(f"v_cndmask_b32 v{T0}, v{T0}, 0, s[44:45]")
    k.e(f"v_mov_b32 v{T0+1}, 0")
    for r in (Q, Q + 1, Q + 2, Q + 3, T0):
        k.e(f"v_dot2c_f32_bf16 v{T0+1}, v{r}, v{r}")
    k.e(f"v_max_f32 v{T0+2}, v{T0+2}, v{T0+3}")
    for sh in (8, 4, 2, 1):
        k.e(f"v_max_f32_dpp v{T0+2}, v{T0+2}, v{T0+2} row_ror:{sh} row_mask:0xf bank_mask:0xf")
    k.e(f"v_mov_b32 v{T0+3}, v{T0+2}", f"v_permlane16_swap_b32 v{T0+2}, v{T0+3}", f"v_max_f32 v{T0+2}, v{T0+2}, v{T0+3}")
    k.e(f"v_mov_b32 v{T0+3}, v{T0+2}", f"v_mov_b32 v{T0+4}, v{T0+1}",
        f"v_permlane32_swap_b32 v{T0+2}, v{T0+3}", f"v_permlane32_swap_b32 v{T0+1}, v{T0+4}",
        f"v_max_f32 v{T0+2}, v{T0+2}, v{T0+3}", f"v_add_f32 v{T0+1}, v{T0+1}, v{T0+4}")
    k.e(f"v_mul_f32 v{T0+1}, v{T0+1}, v{T0+2}", f"v_sqrt_f32 v{T0+1}, v{T0+1}", f"v_mul_f32 v{T0+1}, {hex(f2u(1.02))}, v{T0+1}")
    k.e("s_mov_b32 s32, 0")
    k.label("attn_setm")
    k.e(f"v_xor_b32 v{T0+2}, 0x80000000, v{T0+1}",
        f"v_and_b32 v{T0+3}, 0xffff0000, v{T0+2}", f"v_sub_f32 v{T0+2}, v{T0+2}, v{T0+3}",
        f"v_and_b32 v{T0+4}, 0xffff0000, v{T0+2}", f"v_sub_f32 v{T0+2}, v{T0+2}, v{T0+4}",
        f"v_lshrrev_b32 v{T0+3}, 16, v{T0+3}", f"v_or_b32 v{T0+3}, v{T0+3}, v{T0+4}",
        f"v_lshrrev_b32 v{T0+2}, 16, v{T0+2}")
    k.e(f"v_cndmask_b32 v{Q2E}, v{T0}, v{T0+3}, s[44:45]", f"v_cndmask_b32 v{Q2E+1}, 0, v{T0+2}, s[44:45]",
        f"v_cndmask_b32 v{Q2O}, 0, v{T0+3}, s[44:45]", f"v_cndmask_b32 v{Q2O+1}, v{T0}, v{T0+2}, s[44:45]")
    k.e("v_mov_b32 v4, v12", "v_mov_b32 v5, v13", "v_mov_b32 v6, v14")
    k.e("s_cmp_eq_u32 s32, 10", "s_cbranch_scc1 attn_maxpass")
    for r in list(range(OA, OA + 16)) + list(range(P, P + 8)) + list(range(V1, V1 + 4)):
        k.e(f"v_mov_b32 v{r}, 0")
    k.e("s_mov_b32 s31, 16", "s_cmp_eq_u32 s32, 11", "s_cbranch_scc1 attn_start")
    k.e("s_mov_b32 s31, 2", "s_setprio 3", "s_barrier")
    k.label("attn_start")
    k.stamp(1)
    k.e(f"ds_read_b128 {r4(KF)}, v4", f"ds_read_b128 {r4(K2F)}, v6", f"ds_read_b128 {r4(V0)}, v5", "s_waitcnt lgkmcnt(0)")
    k.e(f"v_mfma_f32_32x32x16_bf16 {r16(S0)}, {r4(KF)}, {r4(Q)}, 0",
        f"v_mfma_f32_32x32x8_bf16 {r16(S0)}, v[{K2F}:{K2F+1}], v[{Q2E}:{Q2E+1}], {r16(S0)}")
    k.e(f"ds_read_b128 {r4(KF)}, v4 offset:1024", "s_waitcnt lgkmcnt(0)", "s_nop 7", "s_nop 3")
    k.e(".p2align 6")
    k.label("attn_loop")
    for tau in range(4):
        cur, nxt = (S0, S1) if tau % 2 == 0 else (S1, S0)
        t1 = (tau + 1) % 4
        koff = (tau + 2) * 1024 if tau < 2 else GRP + (tau - 2) * 1024
        v0off = (tau + 1) * 1216 if tau < 3 else GRP

        def ex_(a, b):
            for i in range(a, b):
                k.e(f"v_exp_f32 v{cur+i}, v{cur+i}")

        def cv(a, b):
            for i in range(a, b):
                k.e(f"v_cvt_pk_bf16_f32 v{P+i}, v{cur+2*i}, v{cur+2*i+1}")
        k.e("s_waitcnt lgkmcnt(2)")
        k.e(f"v_mfma_f32_32x32x16_bf16 {r16(nxt)}, {r4(KF)}, {r4(Q)}, 0")
        k.e(f"ds_read_b128 {r4(KF)}, v4 offset:{koff}")
        ex_(0, 3)
        k.e("s_waitcnt lgkmcnt(2)")
        k.e(f"v_mfma_f32_32x32x16_bf16 {r16(OA)}, {r4(V1)}, {r4(P+4)}, {r16(OA)}")
        k.e(f"ds_read_b128 {r4(V1)}, v5 offset:{tau*1216+608}")
        ex_(3, 6)
        q2 = Q2E if t1 % 2 == 0 else Q2O
        kk = K2F + 2 * (t1 // 2)
        k.e(f"v_mfma_f32_32x32x8_bf16 {r16(nxt)}, v[{kk}:{kk+1}], v[{q2}:{q2+1}], {r16(nxt)}")
        if tau == 2:
            k.e(f"ds_read_b128 {r4(K2F)}, v6 offset:{GRP}")
        ex_(6, 9)
        cv(0, 4)
        ex_(9, 12)
        k.e("s_waitcnt lgkmcnt(2)")
        k.e(f"v_mfma_f32_32x32x16_bf16 {r16(OA)}, {r4(V0)}, {r4(P)}, {r16(OA)}")
        k.e(f"ds_read_b128 {r4(V0)}, v5 offset:{v0off}")
        ex_(12, 16)
        if tau == 3:
            k.e(f"v_add_u32 v4, {GRP}, v4", f"v_add_u32 v5, {GRP}, v5", f"v_add_u32 v6, {GRP}, v6")
            k.e("s_sub_u32 s31, s31, 1", "s_cmp_lg_u32 s31, 0")
        cv(4, 8)
    k.e("s_cbranch_scc1 attn_loop")
    k.e("s_cmp_ge_u32 s32, 4", "s_cbranch_scc1 attn_tail")
    k.e("s_add_u32 s32, s32, 1")
    k.e("s_cmp_eq_u32 s32, 2", "s_cbranch_scc1 attn_ph2", "s_cmp_eq_u32 s32, 3", "s_cbranch_scc1 attn_ph3",
        "s_cmp_eq_u32 s32, 4", "s_cbranch_scc1 attn_ph4")
    k.e("s_barrier", "s_mov_b32 s31, 7", "s_branch attn_loop")
    for ph, cnt, pr in ((2, 4, 2), (3, 2, 1), (4, 1, 0)):
        k.label(f"attn_ph{ph}")
        k.e(f"s_setprio {pr}", f"s_mov_b32 s31, {cnt}")
        if ph == 4:
            k.e(f"v_mov_b32 v{T0+6}, {LDS_RDY}", f"ds_read_b32 v{T0+6}, v{T0+6}", "s_waitcnt lgkmcnt(0)",
                f"v_readfirstlane_b32 s52, v{T0+6}", "s_cmp_eq_u32 s52, 0", "s_cbranch_scc1 attn_loop")
            ffn_ring_start(k)
        k.e("s_branch attn_loop")
    k.label("attn_maxpass")
    k.e(f"v_mov_b32 v{T0+1}, 0xff800000", "s_mov_b32 s31, 16")
    k.label("attn_maxloop")
    k.e(f"ds_read_b128 {r4(K2F)}, v6")
    for tau in range(4):
        q2 = Q2E if tau % 2 == 0 else Q2O
        kk = K2F + 2 * (tau // 2)
        k.e(f"ds_read_b128 {r4(KF)}, v4 offset:{tau*1024}", "s_waitcnt lgkmcnt(0)")
        k.e(f"v_mfma_f32_32x32x16_bf16 {r16(S0)}, {r4(KF)}, {r4(Q)}, 0",
            f"v_mfma_f32_32x32x8_bf16 {r16(S0)}, v[{kk}:{kk+1}], v[{q2}:{q2+1}], {r16(S0)}")
        for i in range(8):
            k.e(f"v_max3_f32 v{T0+1}, v{S0+2*i}, v{S0+2*i+1}, v{T0+1}")
    k.e(f"v_add_u32 v4, {GRP}, v4", f"v_add_u32 v6, {GRP}, v6", "s_sub_u32 s31, s31, 1", "s_cmp_lg_u32 s31, 0",
        "s_cbranch_scc1 attn_maxloop")
    k.e(f"v_mov_b32 v{T0+2}, v{T0+1}", f"v_permlane32_swap_b32 v{T0+1}, v{T0+2}", f"v_max_f32 v{T0+1}, v{T0+1}, v{T0+2}")
    k.e("s_mov_b32 s32, 11", "s_branch attn_setm")
    k.label("attn_tail")
    k.e("s_waitcnt lgkmcnt(0)")
    k.e(f"v_mfma_f32_32x32x16_bf16 {r16(OA)}, {r4(V1)}, {r4(P+4)}, {r16(OA)}")
    k.e("s_and_b32 s34, s30, 3", "s_mul_i32 s34, s34, 18", "s_lshr_b32 s35, s30, 2", "s_mul_i32 s35, s35, 4608",
        f"s_add_u32 s35, s35, {LDS_OST}", "s_movk_i32 s36, 2304",
        f"v_lshrrev_b32 v{T0+9}, 4, v2", f"v_mul_u32_u24 v{T0+9}, s36, v{T0+9}", f"v_and_b32 v{T0+8}, 15, v2",
        f"v_lshl_add_u32 v{T0+9}, v{T0+8}, 4, v{T0+9}", f"v_add_u32 v{T0+9}, s35, v{T0+9}")
    k.e(f"v_lshl_add_u32 v{T0+6}, v3, 2, s34", f"v_add_u32 v{T0+7}, 2, v{T0+6}")
    for r in (T0 + 6, T0 + 7):
        k.e(f"v_lshrrev_b32 v{T0+8}, 3, v{r}", f"v_and_b32 v{r}, 7, v{r}", f"v_lshl_add_u32 v{r}, v{r}, 1, v{T0+9}",
            f"v_lshl_add_u32 v{r}, v{T0+8}, 8, v{r}")
    k.e(f"v_cndmask_b32 v{T0+5}, v{OA+10}, v{OA+12}, s[44:45]")
    k.e(f"v_cmp_le_f32 vcc, {hex(f2u(2.0**-40))}, v{T0+5}")
    k.e("s_cmp_eq_u32 s32, 11", "s_cbranch_scc1 attn_fin")
    k.e("s_cmp_eq_u64 vcc, -1", "s_cbranch_scc1 attn_fin")
    k.e("s_mov_b32 s32, 10", f"v_mov_b32 v{T0+1}, 0", "s_branch attn_setm")
    k.label("attn_fin")
    k.e(f"v_rcp_f32 v{T0+5}, v{T0+5}")
    for i in range(10):
        k.e(f"v_mul_f32 v{OA+i}, v{T0+5}, v{OA+i}")
    for i in range(5):
        k.e(f"v_cvt_pk_bf16_f32 v{P+i}, v{OA+2*i}, v{OA+2*i+1}")
    k.e(f"ds_write_b32 v{T0+6}, v{P}", f"ds_write_b32 v{T0+7}, v{P+1}",
        f"ds_write_b32 v{T0+6}, v{P+2} offset:256", f"ds_write_b32 v{T0+7}, v{P+3} offset:256",
        ex(0xffffffff), f"ds_write_b32 v{T0+6}, v{P+4} offset:512", ex(-1))
    wo_dma_setup(k)
    k.e("s_waitcnt lgkmcnt(0)", "s_barrier")
    k.stamp(2)
    publish_o(k, "oa", pre=wo_dma)


def helper_pack(k):
    k.e("s_setprio 3")
    k.e("s_sub_u32 s31, s30, 8", "s_lshl_b32 s34, s31, 10", "s_and_b32 s35, s47, 15", f"s_mul_i32 s35, s35, {GRP}",
        "s_add_u32 s35, s35, s34", f"s_add_u32 s35, s35, {WS_KV}")

    def dma(a, b):
        for i in range(a, b):
            k.e(f"s_add_u32 m0, s34, {i*4096}", f"s_add_u32 s36, s35, {i*4096}",
                "buffer_load_dwordx4 v11, s[16:19], s36 offen lds")
    dma(0, 12)
    k.e("v_and_b32 v12, 15, v1", "v_lshlrev_b32 v12, 2, v12", f"v_add_u32 v12, {LDS_RDY}, v12", "v_mov_b32 v13, 0", "ds_write_b32 v12, v13")
    k.e("s_waitcnt vmcnt(5) lgkmcnt(0)", "s_barrier")
    dma(12, 37)
    k.e("s_cmp_lg_u32 s31, 0", "s_cbranch_scc1 mega_h_nolast")
    k.e(ex(0xffff))
    dma(37, 38)
    k.e(ex(-1))
    k.label("mega_h_nolast")
    k.e("s_lshl_b32 s34, s31, 6", "v_add_u32 v12, s34, v1", "v_min_u32 v12, 161, v12", "v_lshlrev_b32 v12, 7, v12",
        "s_mul_i32 s34, s47, 20736")
    k.e("s_lshl_b32 s50, s31, 5", "s_add_u32 s50, s50, s47",
        "s_cmp_ge_u32 s50, 54", "s_cselect_b32 s53, 1, 0",
        "s_mul_i32 s51, s53, 54", "s_sub_u32 s51, s50, s51",
        "s_mul_i32 s54, s51, 57", "s_lshr_b32 s54, s54, 10",
        "s_mul_i32 s52, s54, 18", "s_sub_u32 s52, s51, s52",
        "s_cmp_eq_u32 s53, 0",
        "s_cselect_b32 s20, s4, s6", "s_cselect_b32 s21, s5, s7", f"s_mov_b32 s22, {hex(W1B)}", "s_mov_b32 s23, 0x00020000",
        "s_movk_i32 s56, 1152", "s_cselect_b32 s56, 9216, s56",
        "s_movk_i32 s57, 1152", "s_cselect_b32 s57, s57, 663552", "s_mul_i32 s57, s57, s46",
        "s_mul_i32 s58, s54, 192", "s_mul_i32 s58, s58, s56", "s_add_u32 s57, s57, s58",
        "s_lshl_b32 s58, s52, 6", "s_add_u32 s57, s57, s58")
    k.e("s_add_u32 s58, s53, s54", "s_cmp_eq_u32 s58, 3", "s_cselect_b32 s58, 2, 1", "s_cselect_b32 s59, -5, 1",
        "s_mul_i32 s58, s58, s56", "s_mul_i32 s59, s59, s56", "s_mul_i32 s60, s56, 25")
    k.e("v_lshrrev_b32 v2, 4, v1", "v_lshlrev_b32 v2, 3, v2", "v_mul_u32_u24 v15, s56, v2", "v_and_b32 v3, 15, v1",
        "v_lshl_add_u32 v15, v3, 2, v15", "v_lshlrev_b32 v8, 2, v3",
        "s_mov_b32 s64, 0x05040100", "s_mov_b32 s65, 0x07060302")
    k.e(f"s_mul_i32 s62, s52, {STREAM}", f"s_mul_i32 s63, s52, {2*STREAM}", f"s_sub_u32 s63, s63, {24*STREAM - 2048}",
        "s_cmp_lt_u32 s52, 12", "s_cselect_b32 s62, s62, s63", "s_movk_i32 s61, 1024", f"s_cselect_b32 s61, s61, {STREAM}",
        "s_mul_i32 s63, s53, 3", "s_add_u32 s63, s63, s54", f"s_mul_i32 s63, s63, {6*3072}", "s_add_u32 s62, s62, s63",
        f"s_mul_i32 s63, s46, {1296*1024}", "s_add_u32 s62, s62, s63", f"s_add_u32 s62, s62, {WS_W}",
        "s_add_u32 s61, s61, s62")
    for i in range(4):
        k.e(f"v_mov_b32 v{PS+8+i}, 0x3f803f80")
    k.e("s_waitcnt vmcnt(0)", "s_barrier")
    k.e("buffer_load_dword v13, v12, s[24:27], s34 offen")
    k.e("s_cmp_ge_u32 s50, 108", "s_cbranch_scc1 mega_h_nounit")
    for ss in range(6):
        for jj in range(8):
            k.e(f"buffer_load_dword v{PIN+8*ss+jj}, v15, s[20:23], s57 offen",
                f"s_add_u32 s57, s57, s{60 if jj == 7 else (59 if jj == 3 else 58)}")
    for ss in range(6):
        k.e(f"s_waitcnt vmcnt({40 - 8*ss + 2*ss})")
        for e in range(2):
            for q in range(4):
                k.e(f"v_perm_b32 v{POUT+8*ss+4*e+q}, v{PIN+8*ss+2*q+1}, v{PIN+8*ss+2*q}, s{64+e}")
            k.e(f"buffer_store_dwordx4 {r4(POUT+8*ss+4*e)}, v11, s[16:19], s{62-e} offen sc1", f"s_add_u32 s{62-e}, s{62-e}, 3072")
    k.e("s_cmp_lg_u32 s53, 0", "s_cbranch_scc1 mega_h_nounit")
    for ss in range(6):
        for e in range(2):
            k.e(f"v_mfma_f32_16x16x32_bf16 {r4(PS+4*e)}, {r4(PS+8)}, {r4(POUT+8*ss+4*e)}, {r4(PS+4*e) if ss else 0}")
    k.e("s_mul_i32 s58, s54, 18432", "s_mul_i32 s59, s46, 2304", "s_add_u32 s58, s58, s59", "s_lshl_b32 s59, s52, 7",
        "s_add_u32 s58, s58, s59", f"s_add_u32 s58, s58, {WS_SP}")
    k.e(ex(0xffff), f"buffer_store_dword v{PS}, v8, s[16:19], s58 offen sc1",
        f"buffer_store_dword v{PS+4}, v8, s[16:19], s58 offen offset:64 sc1", ex(-1))
    k.label("mega_h_nounit")
    k.e("s_waitcnt vmcnt(0)", "s_lshl_b32 s34, s46, 9", f"s_add_u32 s36, s34, {FP}", "s_lshr_b32 s35, s47, 3", "s_lshl_b32 s35, s35, 7",
        "s_add_u32 s34, s36, s35", "s_lshl_b32 s35, s29, 2", "s_add_u32 s34, s34, s35")
    k.stamp(1)
    arrive(k, 0, 4, 34, "p")
    k.e("v_bfe_u32 v12, v1, 3, 2", "v_lshlrev_b32 v12, 7, v12", "v_and_b32 v13, 7, v1", "v_lshl_add_u32 v12, v13, 2, v12")
    poll(k, 12, 36, 14, "p", sleep=64)
    k.e("s_lshl_b32 s34, s31, 6", "v_add_u32 v12, s34, v1", "v_add_u32 v13, 256, v12", "v_min_u32 v13, 323, v13",
        "v_lshlrev_b32 v14, 7, v12", "v_lshlrev_b32 v13, 7, v13",
        f"s_mul_i32 s34, s46, {1296*1024}", "s_mul_i32 s35, s47, 41472", "s_add_u32 s34, s34, s35", f"s_add_u32 s34, s34, {WS_W}",
        "buffer_load_dword v14, v14, s[16:19], s34 offen sc1", "buffer_load_dword v13, v13, s[16:19], s34 offen sc1")
    k.e("v_min_u32 v12, 143, v12", "v_lshlrev_b32 v12, 4, v12", "s_mul_i32 s34, s46, 2304", f"s_add_u32 s34, s34, {WS_SP}")
    for i in range(3):
        k.e(f"buffer_load_dwordx4 {r4(PIN+4*i)}, v12, s[16:19], s34 offen sc1", "s_add_u32 s34, s34, 18432")
    k.e(f"v_add_u32 v12, {LDS_S}, v12", "s_waitcnt vmcnt(0)")
    for i in range(1, 3):
        for c in range(4):
            k.e(f"v_add_f32 v{PIN+c}, v{PIN+c}, v{PIN+4*i+c}")
    k.e(f"ds_write_b128 v12, {r4(PIN)}", f"v_mov_b32 v12, {LDS_RDY}", "v_mov_b32 v13, 1", "ds_write_b32 v12, v13")


def wo_dma_setup(k):
    k.e("s_movk_i32 s40, 6554", "s_movk_i32 s41, 1152")
    for i in range(5):
        dma_slot_calc(k, i, 32, 33, 34, 35)
        k.e(f"v_mul_u32_u24 v{16+i}, s41, v35", f"v_lshl_add_u32 v{16+i}, v34, 4, v{16+i}")
    k.e("s_mul_i32 s32, s29, 144", "s_mul_i32 s42, s30, 36864", "s_add_u32 s42, s42, s32",
        "s_mul_i32 s43, s30, 5120", f"s_add_u32 s43, s43, {LDS_WO}")


def wo_dma(k):
    def wdma(grp):
        for i in range(5):
            k.e(f"s_add_u32 m0, s43, {grp*8*5120 + i*1024}", "s_nop 0", f"buffer_load_dwordx4 v{16+i}, s[24:27], s42 offen lds")
        k.e(f"s_add_u32 s42, s42, {8*36864}")
    wdma(0)
    wdma(1)
    k.e("s_cmp_ge_u32 s30, 2", "s_cbranch_scc1 mega_o_skip")
    wdma(2)
    k.label("mega_o_skip")
    k.e("s_cmp_lt_u32 s30, 4", "s_cbranch_scc1 mega_r_skip")
    srd(k, 48, 10, XB)
    k.e("s_sub_u32 s34, s30, 4", "s_mul_i32 s44, s34, 2560", f"s_add_u32 s44, s44, {LDS_RES}",
        "s_lshl_b32 s35, s28, 2", "s_add_u32 s35, s35, s34", "s_mul_i32 s35, s35, 18432", "s_add_u32 s35, s35, s32")
    for i in range(3):
        if i == 2:
            k.e(ex(0xffffffff))
        k.e(f"s_add_u32 m0, s44, {i*1024}", "s_nop 0", f"buffer_load_dwordx4 v{16+i}, s[48:51], s35 offen lds")
    k.e(ex(-1))
    k.label("mega_r_skip")


def oproj(k):
    k.e("v_and_b32 v2, 15, v1", "v_lshrrev_b32 v3, 4, v1")
    k.e("v_lshrrev_b32 v32, 2, v2",
        "v_and_b32 v33, 1, v3", "v_lshlrev_b32 v33, 2, v33", "v_add_u32 v32, v32, v33",
        "v_lshl_add_u32 v32, v3, 3, v32", "v_xor_b32 v33, 4, v32", "s_movk_i32 s40, 160",
        "v_and_b32 v34, 3, v2", "v_lshlrev_b32 v34, 3, v34", f"v_add_u32 v34, {LDS_WO}, v34",
        "v_mad_u32_u24 v28, v32, s40, v34", "v_mad_u32_u24 v29, v33, s40, v34",
        "v_add_u32 v30, 61440, v28", "v_add_u32 v31, 61440, v29")
    k.e("s_mul_i32 s44, s31, 2560", f"s_add_u32 s44, s44, {LDS_RES}",
        "v_and_b32 v21, 8, v2", "v_lshrrev_b32 v21, 1, v21", "v_xor_b32 v21, v21, v2", "v_mul_u32_u24 v21, s40, v21",
        "v_lshl_add_u32 v21, v3, 3, v21", "v_add_u32 v21, s44, v21")
    k.e("v_and_b32 v22, 1, v3", "v_lshlrev_b32 v22, 9, v22", "v_lshrrev_b32 v32, 1, v3", "v_lshl_add_u32 v22, v32, 8, v22",
        "v_lshl_add_u32 v22, v2, 4, v22")
    k.e("v_and_b32 v23, 7, v1", "v_lshlrev_b32 v23, 2, v23")
    for r in range(OACC, OACC + 20):
        k.e(f"v_mov_b32 v{r}, 0")
    k.e("s_lshl_b32 s48, s28, 2", "s_add_u32 s48, s48, s31", "s_mul_i32 s49, s48, 18432")
    k.e("s_waitcnt lgkmcnt(0)", "s_barrier")
    k.stamp(2)
    publish_o(k, "ob")
    k.e("s_lshl_b32 s34, s28, 7", f"s_add_u32 s34, s34, {F1}")
    k.e("s_cmp_lg_u32 s31, 0", "s_cbranch_scc1 mega_polld_o")
    poll(k, 23, 34, 32, "o", sleep=1)
    k.e("s_barrier")
    k.stamp(3)
    k.e(f"s_add_u32 s34, s49, {WS_O}")
    for s in range(18):
        if s % 4 == 0 and s:
            k.e("s_add_u32 s34, s34, 4096")
        k.e(f"buffer_load_dwordx4 v[{OX0+4*s}:{OX0+4*s+3}], v11, s[16:19], s34 offen offset:{1024*(s%4)} sc1")

    def rd(t, s):
        a0, a1 = (28, 29) if s < 12 else (30, 31)
        off = (s if s < 12 else s - 12) * 5120 + 32 * t
        k.e(f"ds_read_b64_tr_b16 v[{OWF+4*t}:{OWF+4*t+1}], v{a0} offset:{off}",
            f"ds_read_b64_tr_b16 v[{OWF+4*t+2}:{OWF+4*t+3}], v{a1} offset:{off}")
    for t in range(5):
        rd(t, 0)
    for s in range(18):
        last = s == 17
        for t in range(5):
            k.e(f"s_waitcnt lgkmcnt({2*(4-t) if last else 8})" + (f" vmcnt({17-s})" if t == 0 else ""))
            a = r4(OACC + 4 * t)
            k.e(f"v_mfma_f32_16x16x32_bf16 {a}, {r4(OWF+4*t)}, {r4(OX0+4*s)}, {a}")
            if not last:
                rd(t, s + 1)
    for t in range(5):
        k.e(f"ds_read_b64 v[{36+2*t}:{37+2*t}], v21 offset:{32*t}")
    k.e("v_mov_b32 v6, 0", "v_mov_b32 v7, 0", "v_mov_b32 v34, 0x3f803f80",
        "s_mul_i32 s35, s29, 2304", "s_add_u32 s35, s35, s49", f"s_add_u32 s35, s35, {WS_H}")
    for t in range(5):
        a = OACC + 4 * t
        d = 48 + 2 * t
        k.e(f"s_waitcnt lgkmcnt({4-t})")
        k.e(f"v_lshlrev_b32 v24, 16, v{36+2*t}", f"v_and_b32 v25, 0xffff0000, v{36+2*t}",
            f"v_lshlrev_b32 v26, 16, v{37+2*t}", f"v_and_b32 v27, 0xffff0000, v{37+2*t}")
        for i in range(4):
            k.e(f"v_add_f32 v{a+i}, v{a+i}, v{24+i}")
        k.e(f"v_cvt_pk_bf16_f32 v{d}, v{a}, v{a+1}", f"v_cvt_pk_bf16_f32 v{d+1}, v{a+2}, v{a+3}")
        if t == 4:
            k.e(ex(0xffffffff))
        k.e(f"v_dot2c_f32_bf16 v6, v{d}, v34", f"v_dot2c_f32_bf16 v7, v{d}, v{d}",
            f"v_dot2c_f32_bf16 v6, v{d+1}, v34", f"v_dot2c_f32_bf16 v7, v{d+1}, v{d+1}")
        if t == 4:
            k.e(ex(-1))
        if t % 2 == 1 or t == 4:
            b = 48 + 4 * (t // 2)
            k.e(f"v_permlane16_swap_b32 v{b}, v{b+2}", f"v_permlane16_swap_b32 v{b+1}, v{b+3}")
            if t == 4:
                k.e(ex(0xffff))
            k.e(f"buffer_store_dwordx4 {r4(b)}, v22, s[16:19], s35 offen offset:{1024*(t//2)} sc1")
            if t == 4:
                k.e(ex(-1))
    reduce_g_add(k, [6, 7], [32, 33])
    k.e("v_lshlrev_b32 v32, 4, v2", "s_lshl_b32 s35, s48, 10", "s_lshr_b32 s34, s29, 1", "s_lshl_b32 s34, s34, 8",
        "s_add_u32 s35, s35, s34", "s_and_b32 s34, s29, 1", "s_lshl_b32 s34, s34, 3", "s_add_u32 s35, s35, s34",
        f"s_add_u32 s35, s35, {WS_ST}", ex(0xffff))
    k.e("buffer_store_dwordx2 v[6:7], v32, s[16:19], s35 offen sc1", ex(-1))
    k.e("s_lshl_b32 s34, s28, 7", "s_lshl_b32 s35, s29, 2", "s_add_u32 s34, s34, s35", f"s_add_u32 s34, s34, {F2}", "s_waitcnt vmcnt(0)")
    arrive(k, 2, 4, 34, "h")


def acc(t, mb):
    return ACC + (t * 4 + mb) * 4


def wreg(slot, t):
    return WR + ((slot + 1) % 6) * 12 + t * 4


def wload(slot, t):
    return f"buffer_load_dwordx4 {r4(wreg(slot, t))}, v11, s[20:23], s53 offen offset:{1024*t} {WAUX}"


def ffn_ring_start(k):
    k.e(f"s_mul_i32 s34, s30, {STREAM}", f"s_mul_i32 s35, s46, {1296*1024}", "s_add_u32 s34, s34, s35", f"s_add_u32 s34, s34, {WS_W}",
        "s_add_u32 s20, s12, s34", "s_addc_u32 s21, s13, 0", f"s_mov_b32 s22, {STREAM}", "s_mov_b32 s23, 0x00020000",
        "s_mov_b32 s53, 0")
    for st in range(D - 1):
        for t in range(T):
            k.e(wload(st, t))
        k.e(f"s_add_u32 s53, s53, {T*1024}")


def ffn(k):
    k.label("ffn_join")
    k.e("s_setprio 0", "v_and_b32 v2, 15, v1", "v_lshrrev_b32 v3, 4, v1")
    k.e("v_and_b32 v12, 7, v1", "v_lshlrev_b32 v12, 2, v12", "s_lshl_b32 s34, s47, 7", f"s_add_u32 s34, s34, {F2}")
    k.e("s_cmp_lg_u32 s30, 0", "s_cbranch_scc1 mega_polld_h")
    k.e("s_sleep 24")
    poll(k, 12, 34, 14, "h", sleep=2)
    k.e("s_barrier")
    k.stamp(4)
    k.e("s_lshl_b32 s34, s47, 12", f"s_add_u32 s34, s34, {WS_ST}")
    for mb in range(4):
        k.e(f"buffer_load_dwordx4 {r4(XB0+4*mb)}, v11, s[16:19], s34 offen offset:{1024*mb} sc1")
    k.e("s_lshl_b32 s34, s47, 2", "s_and_b32 s35, s30, 3", "s_add_u32 s34, s34, s35", "s_mul_i32 s41, s34, 18432",
        "s_lshr_b32 s35, s30, 2", "s_lshl_b32 s35, s35, 10", "s_add_u32 s41, s41, s35", f"s_add_u32 s41, s41, {WS_H}",
        "s_lshl_b32 s42, s30, 10")
    k.e("s_cmp_ge_u32 s30, 8", "s_cbranch_scc1 ffn_nodma0")
    for i in range(6):
        k.e(f"s_add_u32 m0, s42, {i*8192}", f"s_add_u32 s36, s41, {i*2048}", "buffer_load_dwordx4 v11, s[16:19], s36 offen sc1 lds")
    k.e("s_waitcnt vmcnt(6)", "s_branch ffn_st")
    k.label("ffn_nodma0")
    k.e("s_waitcnt vmcnt(0)")
    k.label("ffn_st")
    k.e("s_lshl_b32 s34, s30, 7", f"s_add_u32 s34, s34, {LDS_S}", "v_lshlrev_b32 v13, 4, v3", "v_add_u32 v12, s34, v13",
        "s_lshl_b32 s34, s30, 6", f"s_add_u32 s34, s34, {LDS_S + 1536}", "v_add_u32 v13, s34, v13",
        f"ds_read_b128 {r4(XB0+16)}, v12", f"ds_read_b128 {r4(XB0+20)}, v12 offset:64", f"ds_read_b128 {r4(XB0+24)}, v13")
    for mb in range(4):
        b = XB0 + 4 * mb
        k.e(f"v_add_f32 v{4+mb}, v{b}, v{b+2}", f"v_add_f32 v{ACC+mb}, v{b+1}, v{b+3}")
    reduce_g_add(k, [4, 5, 6, 7] + [ACC + i for i in range(4)], list(range(ACC + 4, ACC + 12)))
    for mb in range(4):
        k.e(f"v_mul_f32 v{4+mb}, {hex(f2u(-1/576))}, v{4+mb}")
    k.e("s_and_b32 s34, s46, 3", "v_mov_b32 v8, v4", f"v_mov_b32 v9, v{ACC}")
    for mb in range(1, 4):
        k.e(f"s_cmp_eq_u32 s34, {mb}", "s_cselect_b64 vcc, -1, 0", f"v_cndmask_b32 v8, v8, v{4+mb}, vcc", f"v_cndmask_b32 v9, v9, v{ACC+mb}, vcc")
    k.e(f"v_mul_f32 v9, {hex(f2u(1/576))}, v9", "v_fma_f32 v8, -v8, v8, v9", "v_max_f32 v8, 0, v8",
        f"v_add_f32 v8, {hex(f2u(1e-5))}, v8", "v_rsq_f32 v8, v8")
    k.e("s_waitcnt lgkmcnt(0)")
    for t in range(T):
        for mb in range(4):
            for i in range(4):
                k.e(f"v_mul_f32 v{acc(t,mb)+i}, v{4+mb}, v{XB0+16+4*t+i}")
    k.e("s_add_u32 s41, s41, 12288", "s_add_u32 s42, s42, 49152")
    k.e("s_waitcnt vmcnt(3)", "s_barrier")
    k.stamp(5)
    k.e("v_mov_b32 v10, v11", "s_mov_b32 s31, 0")
    k.label("ffn_start")
    for mb in range(4):
        k.e(f"ds_read_b128 {r4(XB0+4*mb)}, v10 offset:{1024*mb}")
    k.e(".p2align 6")
    k.label("ffn_loop")
    k.e("s_cmp_lg_u32 s31, 1", "s_cbranch_scc1 ffn_nodma")
    for i in range(2):
        k.e(f"s_add_u32 m0, s42, {i*12288}", f"s_add_u32 s36, s41, {i*3072}", "buffer_load_dwordx4 v11, s[16:19], s36 offen sc1 lds")
    k.label("ffn_nodma")
    for u in range(D):
        xb = XB0 + 16 * (u % 2)
        xn = XB0 + 16 * ((u + 1) % 2)
        fill = [f"ds_read_b128 {r4(xn+4*mb)}, v10 offset:{(u+1)*4096 + 1024*mb}" for mb in range(4)]
        fill += [wload((u + D - 1) % D, t) for t in range(T)]
        fill += [f"s_add_u32 s53, s53, {T*1024}"]
        k.e(f"s_waitcnt vmcnt({4*T}) lgkmcnt(0)")
        if u == D - 1:
            k.e("s_cmp_ge_u32 s31, 2", "s_cbranch_scc1 ffn_nobar", "s_barrier")
            k.label("ffn_nobar")
        for t in range(T):
            for mb in range(4):
                a = r4(acc(t, mb))
                k.e(f"v_mfma_f32_16x16x32_bf16 {a}, {r4(wreg(u, t))}, {r4(xb+4*mb)}, {a}")
                if fill:
                    k.e(fill.pop(0))
    k.e(f"v_add_u32 v10, {D*4096}, v10", "s_add_u32 s31, s31, 1",
        "s_cmp_eq_u32 s31, 3", "s_cbranch_scc1 ffn_ep1",
        "s_cmp_lt_u32 s31, 6", "s_cbranch_scc1 ffn_loop")
    k.stamp(7)
    k.e("s_waitcnt lgkmcnt(0)")
    k.e(f"s_mul_i32 s34, s46, {XB}", "s_mul_i32 s33, s47, 73728", f"s_add_u32 s33, s33, {WS_P}", "s_add_u32 s34, s34, s33",
        "s_lshl_b32 s35, s30, 10", "s_add_u32 s36, s34, s35",
        "s_cmp_ge_u32 s30, 6", "s_movk_i32 s37, 12288", f"s_cselect_b32 s37, {12288 + 18432 - 6144}, s37", "s_add_u32 s37, s37, s36")
    for mb in range(4):
        d = XB0 + 4 * mb
        a, b = acc(0, mb), acc(1, mb)
        for i in range(4):
            k.e(f"v_cvt_pk_bf16_f32 v{d+i}, v{a+i}, v{b+i}")
        k.e(f"buffer_store_dwordx4 {r4(d)}, v11, s[16:19], s36 offen sc1", "s_add_u32 s36, s36, 18432")
    for h in range(2):
        d = XB0 + 16 + 4 * h
        a, b = acc(2, 2 * h), acc(2, 2 * h + 1)
        k.e(f"v_cvt_pk_bf16_f32 v{d}, v{a}, v{a+1}", f"v_cvt_pk_bf16_f32 v{d+1}, v{a+2}, v{a+3}",
            f"v_cvt_pk_bf16_f32 v{d+2}, v{b}, v{b+1}", f"v_cvt_pk_bf16_f32 v{d+3}, v{b+2}, v{b+3}")
        k.e(f"buffer_store_dwordx4 {r4(d)}, v11, s[16:19], s37 offen sc1", "s_add_u32 s37, s37, 36864")
    k.e("s_lshl_b32 s38, s47, 9", f"s_add_u32 s38, s38, {F3}", "s_lshr_b32 s36, s30, 2", "s_lshl_b32 s35, s36, 7", "s_add_u32 s38, s38, s35",
        "s_lshl_b32 s35, s46, 2", "s_add_u32 s34, s38, s35",
        "s_lshl_b32 s44, s36, 2", f"s_add_u32 s44, s44, {LDS_CNT + 12}", "s_waitcnt vmcnt(0)")
    arrive(k, 0, 4, 34, "r", cnt_sgpr=44)
    k.e("s_add_u32 s44, s44, 12", "v_mov_b32 v15, s44")
    k.e("s_and_b32 s35, s30, 3", "s_cmp_lg_u32 s35, 3", "s_cbranch_scc1 mega_red")
    k.e("v_and_b32 v12, 7, v1", "v_lshlrev_b32 v12, 2, v12")
    poll(k, 12, 38, 14, "r", sleep=2)
    k.e("v_mov_b32 v13, 1", "ds_write_b32 v15, v13", "s_waitcnt lgkmcnt(0)", "s_branch mega_fin")
    k.label("mega_red")
    k.e(
        "s_lshl_b32 s37, s36, 2", "s_lshl_b32 s39, s35, 1", "s_add_u32 s37, s37, s39",
        "s_lshl_b32 s39, s36, 1", "s_add_u32 s39, s39, 12", "s_cmp_eq_u32 s35, 2", "s_cselect_b32 s37, s39, s37",
        "s_lshr_b32 s39, s46, 2", "s_add_u32 s37, s37, s39",
        "s_and_b32 s39, s46, 3",
        "s_mul_i32 s34, s39, 18432", "s_lshl_b32 s41, s37, 10", "s_add_u32 s34, s34, s41")
    k.e("s_sub_u32 s41, s37, 12", "s_lshl_b32 s41, s41, 11", "s_cmp_ge_u32 s37, 15", "s_movk_i32 s42, 12288",
        f"s_cselect_b32 s42, {12288 + 18432 - 6144}, s42", "s_add_u32 s41, s41, s42", "s_lshr_b32 s42, s39, 1", "s_mul_i32 s42, s42, 36864",
        "s_add_u32 s41, s41, s42", "s_and_b32 s42, s39, 1", "s_lshl_b32 s42, s42, 3", "s_add_u32 s41, s41, s42",
        "s_mov_b32 s43, s35", "s_cmp_eq_u32 s35, 2", "s_cselect_b32 s34, s41, s34", "s_cselect_b32 s42, 1024, 8",
        "s_add_u32 s33, s33, s34", "s_add_u32 s42, s42, s33")
    k.e("s_lshl_b32 s35, s37, 2", "s_add_u32 s35, s35, s39", "s_lshl_b32 s35, s35, 10", "v_add_u32 v13, s35, v11",
        f"ds_read_b128 {r4(WR+32)}, v13")
    srd(k, 20, 14, XB)
    k.e("s_lshl_b32 s35, s47, 2", "s_add_u32 s35, s35, s39", "s_mul_i32 s35, s35, 18432", "s_lshl_b32 s37, s37, 6",
        "s_add_u32 s37, s37, s35", "s_movk_i32 s35, 1152", "v_mul_u32_u24 v9, s35, v2", "v_lshl_add_u32 v9, v3, 4, v9")
    k.e("v_mov_b32 v5, 0x00003f80", "v_mov_b32 v6, 0x3f800000")
    for i in range(8):
        k.e(f"v_mov_b32 v{ACC+i}, 0")
    k.e(f"s_mov_b32 s3, {SPIN*8}")
    k.label("mega_lspin")
    k.e("ds_read_b32 v14, v15", "s_waitcnt lgkmcnt(0)", "v_readfirstlane_b32 s38, v14", "s_cmp_lg_u32 s38, 0", "s_cbranch_scc1 mega_lspind",
        "s_sleep 1", "s_sub_u32 s3, s3, 1", "s_cbranch_scc0 mega_lspin")
    k.label("mega_lspind")
    for j in range(8):
        k.e(f"buffer_load_dwordx2 v[{WR+4*j}:{WR+4*j+1}], v11, s[16:19], s33 offen sc1", f"s_add_u32 s33, s33, {XB}",
            f"buffer_load_dwordx2 v[{WR+4*j+2}:{WR+4*j+3}], v11, s[16:19], s42 offen sc1", f"s_add_u32 s42, s42, {XB}")
    k.e("s_waitcnt lgkmcnt(0)")
    for i in range(4):
        k.e(f"v_lshlrev_b32 v{ACC+8+2*i}, 16, v{WR+32+i}", f"v_and_b32 v{ACC+9+2*i}, 0xffff0000, v{WR+32+i}")
    for j in range(8):
        k.e(f"s_waitcnt vmcnt({14-2*j})")
        for i in range(4):
            k.e(f"v_lshlrev_b32 v{ACC+16+2*i}, 16, v{WR+4*j+i}", f"v_and_b32 v{ACC+17+2*i}, 0xffff0000, v{WR+4*j+i}")
        for i in range(8):
            k.e(f"v_add_f32 v{ACC+i}, v{ACC+i}, v{ACC+16+i}")
    k.e("s_cmp_eq_u32 s43, 2", "s_cbranch_scc1 mega_red_s")
    for i in range(8):
        k.e(f"v_fma_f32 v{ACC+8+i}, v{ACC+i}, v8, v{ACC+8+i}")
    k.e("s_branch mega_red_o")
    k.label("mega_red_s")
    for i in range(8):
        k.e(f"v_fma_f32 v{ACC+8+i}, v{ACC+(i//2)+4*(i%2)}, v8, v{ACC+8+i}")
    k.label("mega_red_o")
    for i in range(4):
        k.e(f"v_cvt_pk_bf16_f32 v{XB0+i}, v{ACC+8+2*i}, v{ACC+9+2*i}")
    k.e(f"buffer_store_dwordx4 {r4(XB0)}, v9, s[20:23], s37 offen")
    k.label("mega_fin")
    k.stamp_flush(1, 9, 16, 30, wpw=16)
    k.e("s_endpgm")
    k.label("ffn_ep1")
    k.e("s_waitcnt lgkmcnt(0)")
    k.e("s_lshl_b32 s34, s30, 12", f"s_add_u32 s34, s34, {LDS_H}", "v_add_u32 v12, s34, v11")
    k.e("s_lshr_b32 s34, s30, 1", "s_lshl_b32 s34, s34, 12", "s_and_b32 s35, s30, 1", "s_lshl_b32 s35, s35, 3",
        "s_add_u32 s34, s34, s35", f"s_add_u32 s34, s34, {LDS_H + 49152}", "v_add_u32 v13, s34, v11")
    for mb in range(4):
        d = XB0 + 4 * mb
        a, b = acc(0, mb), acc(1, mb)
        for i in range(4):
            k.e(f"v_cvt_pk_bf16_f32 v{d+i}, v{a+i}, v{b+i}")
        for i in range(4):
            k.e(f"v_pk_max_i16 v{d+i}, v{d+i}, 0")
        k.e(f"ds_write_b128 v12, {r4(d)} offset:{mb*1024}")
    for mb in range(4):
        a = acc(2, mb)
        d = XB0 + 16 + 2 * mb
        k.e(f"v_cvt_pk_bf16_f32 v{d}, v{a}, v{a+1}", f"v_cvt_pk_bf16_f32 v{d+1}, v{a+2}, v{a+3}",
            f"v_pk_max_i16 v{d}, v{d}, 0", f"v_pk_max_i16 v{d+1}, v{d+1}, 0",
            f"ds_write_b64 v13, v[{d}:{d+1}] offset:{mb*1024}")
    for r in range(ACC, ACC + 16 * T):
        k.e(f"v_mov_b32 v{r}, 0")
    k.e("s_cmp_lt_u32 s30, 4", "s_cbranch_scc0 ffn_pr1", "s_setprio 2")
    k.label("ffn_pr1")
    k.e("s_and_b32 s34, s30, 12", "s_cmp_eq_u32 s34, 4", "s_cbranch_scc0 ffn_pr2", "s_setprio 1")
    k.label("ffn_pr2")
    k.e("s_waitcnt lgkmcnt(0)", "s_barrier")
    k.stamp(6)
    k.e("s_branch ffn_start")


def gen_mega():
    k = Kernel("mega_kernel", vgprs=168)
    k.e("s_cmp_ge_u32 s2, 256", "s_cbranch_scc1 mega_end")
    k.e("s_load_dwordx4 s[4:7], s[0:1], 48", "s_load_dwordx2 s[8:9], s[0:1], 32", "s_load_dwordx2 s[10:11], s[0:1], 0",
        "s_load_dwordx2 s[12:13], s[0:1], 80", "s_load_dwordx2 s[14:15], s[0:1], 64")
    k.stamp(0)
    k.e("v_and_b32 v1, 63, v0", "v_and_b32 v2, 31, v0", "v_bfe_u32 v3, v0, 5, 1", "v_lshrrev_b32 v7, 6, v0",
        "s_nop 0", "v_readfirstlane_b32 s30, v7")
    k.e("s_and_b32 s46, s2, 7", "s_lshr_b32 s47, s2, 3", "s_and_b32 s28, s47, 24", "s_add_u32 s28, s28, s46",
        "s_and_b32 s29, s47, 7", "v_lshlrev_b32 v11, 4, v1")
    k.e("s_lshr_b32 s34, s30, 2", "s_lshl_b32 s34, s34, 1", "s_lshl_b32 s35, s28, 2", "s_add_u32 s34, s34, s35",
        "s_mul_i32 s33, s34, 18432", "s_and_b32 s34, s30, 3", "s_lshl_b32 s35, s29, 2", "s_add_u32 s34, s34, s35",
        "s_mul_i32 s37, s34, 18")
    k.e("s_movk_i32 s40, 18432", "v_lshrrev_b32 v8, 4, v2", "v_mul_u32_u24 v8, s40, v8", "v_and_b32 v9, 15, v2",
        "v_lshl_add_u32 v8, v9, 4, v8", "v_lshl_add_u32 v9, v3, 8, v8",
        "v_lshlrev_b32 v10, 3, v1")
    k.e("s_waitcnt lgkmcnt(0)")
    srd(k, 16, 12, WS_END)
    srd(k, 24, 8, WQB)
    k.e("s_cmp_ge_u32 s30, 8", "s_cbranch_scc1 mega_helper")
    k.e("s_mov_b32 s52, 0")
    attention(k)
    k.e("s_cmp_lg_u32 s52, 0", "s_cbranch_scc1 mega_ringed")
    ffn_ring_start(k)
    k.label("mega_ringed")
    k.e("s_waitcnt vmcnt(0)")
    k.stamp(3)
    k.e("s_barrier", "s_branch ffn_join")
    k.label("mega_helper")
    helper_pack(k)
    oproj(k)
    ffn_ring_start(k)
    ffn(k)
    k.label("mega_end")
    k.e("s_endpgm")
    return k
```

```python
WS_Q  = 0x0
WS_O  = 0x240000
WS_H  = 0x480000
WS_KV = 0x2B60000
WS_KM = 0x6E8000
WS_ST = 0x6E9000
WS_RS = 0x709000
WS_S  = 0x70B000
WS_SP = 0x710000
WS_W  = 0x740000
WS_P  = 0x1160000
WS_TS = 0x2360000
WS_END = 0x2B60000 + 0x50000
XB = 2048*576*2
WQB = 576*576*2
WKB = 576*18*2
W1B = 576*4608*2
GRP = 9488
KV_V = 4096
KV_K2 = 8960
QSCALE = 1.4426950408889634 / (18 ** 0.5)
WS_FL = 0x6C0000
F1 = WS_FL
F2 = WS_FL + 0x1000
FP = WS_FL + 0x2000
F3 = WS_FL + 0x3000
FT = WS_FL + 0x7000
FK = WS_FL + 0x8000
FL_BYTES = 0xA000
IMG = 16 * 9488
```

```python
import sys
from k_small import gen_k1, gen_k3, LDS_SMALL
from k_attn import gen_k2, LDS_ATTN
from k_ffn import gen_k4, gen_k5, LDS_FFN
NAME = "sequential_preLN__grouped_kv_mqa__dense_activation_relu__prompt"
ref = open(f"cdna_kernels/{NAME}.s.ref").read().split("\n")
head = [l for l in ref if l.startswith(";") and "@launch" not in l and "Override" not in l and "grid=ceil" not in l]
def build(path):
    ks = [(gen_k1(), 256, 256, LDS_SMALL), (gen_k2(), 256, 768, LDS_ATTN), (gen_k3(), 256, 256, LDS_SMALL),
          (gen_k4(), 256, 512, LDS_FFN), (gen_k5(), 576, 256, 0)]
    import os
    if os.environ.get("MEGA", "1") == "1":
        from k_mega import gen_mega, LDS_MEGA
        ks = [(gen_k1(), 256, 256, LDS_SMALL), (gen_mega(), 256, 768, LDS_MEGA)]
    out = list(head)
    for k, g, b, l in ks:
        out.append(f"; @launch kernel={k.name} grid=({g},1,1) block=({b},1,1) lds={l}")
    out.append('.amdgcn_target "amdgcn-amd-amdhsa--gfx950"')
    out.append(".text")
    kds = []
    for k, *_ in ks:
        c, kd = k.text()
        out.append(c)
        kds.append(kd)
        print(k.name, "vgpr", k.maxv, "sgpr", k.maxs, "instrs", len(k.ins), "nops", sum(1 for x in k.ins if x.kind == "nop"))
    out.append('.section .rodata,"a"')
    for kd in kds:
        out.append(".p2align 6")
        out.append(kd)
    open(path, "w").write("\n".join(out))
if __name__ == "__main__":
    if "--stamp" in sys.argv:
        from asmlib import Kernel
        Kernel.STAMP = True
        sys.argv.remove("--stamp")
    build(sys.argv[1] if len(sys.argv) > 1 else f"cdna_kernels/{NAME}.s")
```

```python
import os
from asmlib import Kernel
from layout import *
from k_small import f2u, srd, ex, reduce_g_add, dma_slot_calc

S0, S1, OA, P, KF, V0, V1, K2F, Q, Q2E, Q2O = 16, 32, 48, 64, 72, 76, 80, 84, 88, 92, 94
T0 = 96
PIN, POUT, PS = 16, 64, 112
LDS_OST = 151808
LDS_RES = 49408
LDS_WO = 59648
LDS_H = 73728
LDS_S = 161024
LDS_RDY = 163328
LDS_CNT = 163344
LDS_ROLE = 163392
LDS_MEGA = 163408
OX0, OACC, OWF = 48, 120, 140
XB0, ACC, WR = 16, 48, 96
D = 6
T = 3
STREAM = 36 * T * 1024
SPIN = 1 << 20
WAUX = os.environ.get("WAUX", "sc1")


def r4(b):
    return f"v[{b}:{b+3}]"


def r16(b):
    return f"v[{b}:{b+15}]"


def poll(k, vaddr, soff, vtmp, tag, wide=False, sleep=2):
    lab, done = f"mega_poll_{tag}", f"mega_polld_{tag}"
    k.e(f"s_mov_b32 s3, {SPIN}")
    k.label(lab)
    if wide:
        k.e(f"buffer_load_dwordx2 v[{vtmp}:{vtmp+1}], v{vaddr}, s[16:19], s{soff} offen sc1", "s_waitcnt vmcnt(0)",
            f"v_and_b32 v{vtmp}, v{vtmp}, v{vtmp+1}")
    else:
        k.e(f"buffer_load_dword v{vtmp}, v{vaddr}, s[16:19], s{soff} offen sc1", "s_waitcnt vmcnt(0)")
    k.e(f"v_cmp_ne_u32 vcc, 0, v{vtmp}", "s_cmp_eq_u64 vcc, -1", f"s_cbranch_scc1 {done}",
        f"s_sleep {sleep}", "s_sub_u32 s3, s3, 1", f"s_cbranch_scc0 {lab}")
    k.label(done)


def set_flag(k, soff, va, vb):
    k.e(f"v_mov_b32 v{va}, 0", f"v_mov_b32 v{vb}, 1", ex(1), f"buffer_store_dword v{vb}, v{va}, s[16:19], s{soff} offen sc1", ex(-1))


def arrive(k, cnt, n, soff, tag, cnt_sgpr=None):
    if cnt_sgpr is None:
        k.e(f"v_mov_b32 v12, {LDS_CNT + 4*cnt}")
    else:
        k.e(f"v_mov_b32 v12, s{cnt_sgpr}")
    k.e("v_mov_b32 v13, 1", ex(1), "ds_add_rtn_u32 v14, v12, v13", ex(-1), "s_waitcnt lgkmcnt(0)",
        "v_readfirstlane_b32 s3, v14", f"s_cmp_lg_u32 s3, {n-1}", f"s_cbranch_scc1 mega_arr_{tag}")
    set_flag(k, soff, 12, 13)
    k.label(f"mega_arr_{tag}")


def publish_o(k, tag, pre=None):
    k.e("s_and_b32 s34, s30, 3", "s_lshr_b32 s35, s30, 2", "s_mul_i32 s36, s34, 2304", "s_mul_i32 s37, s35, 768",
        "s_add_u32 s36, s36, s37", f"s_add_u32 s36, s36, {LDS_OST}", "v_add_u32 v12, s36, v11",
        f"ds_read_b128 {r4(4)}, v12")
    k.e("s_lshl_b32 s36, s28, 2", "s_add_u32 s36, s36, s34", "s_mul_i32 s38, s36, 18432", "s_mul_i32 s39, s29, 2304",
        "s_add_u32 s38, s38, s39", "s_add_u32 s38, s38, s37", f"s_add_u32 s38, s38, {WS_O}")
    k.e("s_lshl_b32 s36, s28, 7", "s_lshl_b32 s39, s29, 2", "s_add_u32 s36, s36, s39", f"s_add_u32 s36, s36, {F1}")
    k.e("s_waitcnt lgkmcnt(0)", ex((1 << 48) - 1), f"buffer_store_dwordx4 {r4(4)}, v11, s[16:19], s38 offen sc1", ex(-1),
        "s_waitcnt vmcnt(0)")
    arrive(k, 1, 12, 36, tag)
    if pre:
        pre(k)


def attention(k):
    k.e(f"s_add_u32 s34, s33, {WS_Q}", f"s_mov_b32 s35, {WS_KM}")
    for i in range(4):
        k.e(f"s_add_u32 s38, s37, {2*i}", "s_lshr_b32 s39, s38, 3", "s_lshl_b32 s39, s39, 8", "s_and_b32 s38, s38, 7",
            "s_lshl_b32 s38, s38, 1", "s_add_u32 s38, s38, s39", "s_add_u32 s38, s38, s34")
        k.e(f"buffer_load_dword v{Q+i}, v9, s[16:19], s38 offen")
        if i == 0:
            k.e(f"buffer_load_dword v{T0}, v8, s[16:19], s38 offen offset:512")
    k.e(f"buffer_load_dwordx2 v[{T0+2}:{T0+3}], v10, s[16:19], s35 offen")
    k.e("v_mov_b32 v12, v11")
    k.e("v_cmp_eq_u32 vcc, 28, v2", "v_cndmask_b32 v13, v2, 18, vcc",
        "v_cmp_lt_u32 vcc, 18, v13", "v_mov_b32 v14, 0x10000", "v_cndmask_b32 v13, v13, v14, vcc",
        "s_movk_i32 s40, 304", "v_mul_u32_u24 v14, s40, v3", "v_lshl_add_u32 v13, v13, 4, v14", f"v_add_u32 v13, {KV_V}, v13")
    k.e("v_min_u32 v14, 32, v1", "v_lshlrev_b32 v14, 4, v14", f"v_add_u32 v14, {KV_K2}, v14")
    k.e("v_cmp_eq_u32 s[44:45], 1, v3")
    k.e("s_waitcnt vmcnt(0)")
    k.e(f"v_cndmask_b32 v{T0}, v{T0}, 0, s[44:45]")
    k.e(f"v_mov_b32 v{T0+1}, 0")
    for r in (Q, Q + 1, Q + 2, Q + 3, T0):
        k.e(f"v_dot2c_f32_bf16 v{T0+1}, v{r}, v{r}")
    k.e(f"v_max_f32 v{T0+2}, v{T0+2}, v{T0+3}")
    for sh in (8, 4, 2, 1):
        k.e(f"v_max_f32_dpp v{T0+2}, v{T0+2}, v{T0+2} row_ror:{sh} row_mask:0xf bank_mask:0xf")
    k.e(f"v_mov_b32 v{T0+3}, v{T0+2}", f"v_permlane16_swap_b32 v{T0+2}, v{T0+3}", f"v_max_f32 v{T0+2}, v{T0+2}, v{T0+3}")
    k.e(f"v_mov_b32 v{T0+3}, v{T0+2}", f"v_mov_b32 v{T0+4}, v{T0+1}",
        f"v_permlane32_swap_b32 v{T0+2}, v{T0+3}", f"v_permlane32_swap_b32 v{T0+1}, v{T0+4}",
        f"v_max_f32 v{T0+2}, v{T0+2}, v{T0+3}", f"v_add_f32 v{T0+1}, v{T0+1}, v{T0+4}")
    k.e(f"v_mul_f32 v{T0+1}, v{T0+1}, v{T0+2}", f"v_sqrt_f32 v{T0+1}, v{T0+1}", f"v_mul_f32 v{T0+1}, {hex(f2u(1.02))}, v{T0+1}")
    k.e("s_mov_b32 s32, 0")
    k.label("attn_setm")
    k.e(f"v_xor_b32 v{T0+2}, 0x80000000, v{T0+1}",
        f"v_and_b32 v{T0+3}, 0xffff0000, v{T0+2}", f"v_sub_f32 v{T0+2}, v{T0+2}, v{T0+3}",
        f"v_and_b32 v{T0+4}, 0xffff0000, v{T0+2}", f"v_sub_f32 v{T0+2}, v{T0+2}, v{T0+4}",
        f"v_lshrrev_b32 v{T0+3}, 16, v{T0+3}", f"v_or_b32 v{T0+3}, v{T0+3}, v{T0+4}",
        f"v_lshrrev_b32 v{T0+2}, 16, v{T0+2}")
    k.e(f"v_cndmask_b32 v{Q2E}, v{T0}, v{T0+3}, s[44:45]", f"v_cndmask_b32 v{Q2E+1}, 0, v{T0+2}, s[44:45]",
        f"v_cndmask_b32 v{Q2O}, 0, v{T0+3}, s[44:45]", f"v_cndmask_b32 v{Q2O+1}, v{T0}, v{T0+2}, s[44:45]")
    k.e("v_mov_b32 v4, v12", "v_mov_b32 v5, v13", "v_mov_b32 v6, v14")
    k.e("s_cmp_eq_u32 s32, 10", "s_cbranch_scc1 attn_maxpass")
    for r in list(range(OA, OA + 16)) + list(range(P, P + 8)) + list(range(V1, V1 + 4)):
        k.e(f"v_mov_b32 v{r}, 0")
    k.e("s_mov_b32 s31, 16", "s_cmp_eq_u32 s32, 11", "s_cbranch_scc1 attn_start")
    k.e("s_mov_b32 s31, 2", "s_setprio 3", "s_barrier")
    k.label("attn_start")
    k.stamp(1)
    k.e(f"ds_read_b128 {r4(KF)}, v4", f"ds_read_b128 {r4(K2F)}, v6", f"ds_read_b128 {r4(V0)}, v5", "s_waitcnt lgkmcnt(0)")
    k.e(f"v_mfma_f32_32x32x16_bf16 {r16(S0)}, {r4(KF)}, {r4(Q)}, 0",
        f"v_mfma_f32_32x32x8_bf16 {r16(S0)}, v[{K2F}:{K2F+1}], v[{Q2E}:{Q2E+1}], {r16(S0)}")
    k.e(f"ds_read_b128 {r4(KF)}, v4 offset:1024", "s_waitcnt lgkmcnt(0)", "s_nop 7", "s_nop 3")
    k.e(".p2align 6")
    k.label("attn_loop")
    for tau in range(4):
        cur, nxt = (S0, S1) if tau % 2 == 0 else (S1, S0)
        t1 = (tau + 1) % 4
        koff = (tau + 2) * 1024 if tau < 2 else GRP + (tau - 2) * 1024
        v0off = (tau + 1) * 1216 if tau < 3 else GRP

        def ex_(a, b):
            for i in range(a, b):
                k.e(f"v_exp_f32 v{cur+i}, v{cur+i}")

        def cv(a, b):
            for i in range(a, b):
                k.e(f"v_cvt_pk_bf16_f32 v{P+i}, v{cur+2*i}, v{cur+2*i+1}")
        k.e("s_waitcnt lgkmcnt(2)")
        k.e(f"v_mfma_f32_32x32x16_bf16 {r16(nxt)}, {r4(KF)}, {r4(Q)}, 0")
        k.e(f"ds_read_b128 {r4(KF)}, v4 offset:{koff}")
        ex_(0, 3)
        k.e("s_waitcnt lgkmcnt(2)")
        k.e(f"v_mfma_f32_32x32x16_bf16 {r16(OA)}, {r4(V1)}, {r4(P+4)}, {r16(OA)}")
        k.e(f"ds_read_b128 {r4(V1)}, v5 offset:{tau*1216+608}")
        ex_(3, 6)
        q2 = Q2E if t1 % 2 == 0 else Q2O
        kk = K2F + 2 * (t1 // 2)
        k.e(f"v_mfma_f32_32x32x8_bf16 {r16(nxt)}, v[{kk}:{kk+1}], v[{q2}:{q2+1}], {r16(nxt)}")
        if tau == 2:
            k.e(f"ds_read_b128 {r4(K2F)}, v6 offset:{GRP}")
        ex_(6, 9)
        cv(0, 4)
        ex_(9, 12)
        k.e("s_waitcnt lgkmcnt(2)")
        k.e(f"v_mfma_f32_32x32x16_bf16 {r16(OA)}, {r4(V0)}, {r4(P)}, {r16(OA)}")
        k.e(f"ds_read_b128 {r4(V0)}, v5 offset:{v0off}")
        ex_(12, 16)
        if tau == 3:
            k.e(f"v_add_u32 v4, {GRP}, v4", f"v_add_u32 v5, {GRP}, v5", f"v_add_u32 v6, {GRP}, v6")
            k.e("s_sub_u32 s31, s31, 1", "s_cmp_lg_u32 s31, 0")
        cv(4, 8)
    k.e("s_cbranch_scc1 attn_loop")
    k.e("s_cmp_ge_u32 s32, 4", "s_cbranch_scc1 attn_tail")
    k.e("s_add_u32 s32, s32, 1")
    k.e("s_cmp_eq_u32 s32, 2", "s_cbranch_scc1 attn_ph2", "s_cmp_eq_u32 s32, 3", "s_cbranch_scc1 attn_ph3",
        "s_cmp_eq_u32 s32, 4", "s_cbranch_scc1 attn_ph4")
    k.e("s_barrier", "s_mov_b32 s31, 7", "s_branch attn_loop")
    for ph, cnt, pr in ((2, 4, 2), (3, 2, 1), (4, 1, 0)):
        k.label(f"attn_ph{ph}")
        k.e(f"s_setprio {pr}", f"s_mov_b32 s31, {cnt}")
        if ph == 4:
            k.e(f"v_mov_b32 v{T0+6}, {LDS_RDY}", f"ds_read_b32 v{T0+6}, v{T0+6}", "s_waitcnt lgkmcnt(0)",
                f"v_readfirstlane_b32 s52, v{T0+6}", "s_cmp_eq_u32 s52, 0", "s_cbranch_scc1 attn_loop")
            ffn_ring_start(k)
        k.e("s_branch attn_loop")
    k.label("attn_maxpass")
    k.e(f"v_mov_b32 v{T0+1}, 0xff800000", "s_mov_b32 s31, 16")
    k.label("attn_maxloop")
    k.e(f"ds_read_b128 {r4(K2F)}, v6")
    for tau in range(4):
        q2 = Q2E if tau % 2 == 0 else Q2O
        kk = K2F + 2 * (tau // 2)
        k.e(f"ds_read_b128 {r4(KF)}, v4 offset:{tau*1024}", "s_waitcnt lgkmcnt(0)")
        k.e(f"v_mfma_f32_32x32x16_bf16 {r16(S0)}, {r4(KF)}, {r4(Q)}, 0",
            f"v_mfma_f32_32x32x8_bf16 {r16(S0)}, v[{kk}:{kk+1}], v[{q2}:{q2+1}], {r16(S0)}")
        for i in range(8):
            k.e(f"v_max3_f32 v{T0+1}, v{S0+2*i}, v{S0+2*i+1}, v{T0+1}")
    k.e(f"v_add_u32 v4, {GRP}, v4", f"v_add_u32 v6, {GRP}, v6", "s_sub_u32 s31, s31, 1", "s_cmp_lg_u32 s31, 0",
        "s_cbranch_scc1 attn_maxloop")
    k.e(f"v_mov_b32 v{T0+2}, v{T0+1}", f"v_permlane32_swap_b32 v{T0+1}, v{T0+2}", f"v_max_f32 v{T0+1}, v{T0+1}, v{T0+2}")
    k.e("s_mov_b32 s32, 11", "s_branch attn_setm")
    k.label("attn_tail")
    k.e("s_waitcnt lgkmcnt(0)")
    k.e(f"v_mfma_f32_32x32x16_bf16 {r16(OA)}, {r4(V1)}, {r4(P+4)}, {r16(OA)}")
    k.e("s_and_b32 s34, s30, 3", "s_mul_i32 s34, s34, 18", "s_lshr_b32 s35, s30, 2", "s_mul_i32 s35, s35, 4608",
        f"s_add_u32 s35, s35, {LDS_OST}", "s_movk_i32 s36, 2304",
        f"v_lshrrev_b32 v{T0+9}, 4, v2", f"v_mul_u32_u24 v{T0+9}, s36, v{T0+9}", f"v_and_b32 v{T0+8}, 15, v2",
        f"v_lshl_add_u32 v{T0+9}, v{T0+8}, 4, v{T0+9}", f"v_add_u32 v{T0+9}, s35, v{T0+9}")
    k.e(f"v_lshl_add_u32 v{T0+6}, v3, 2, s34", f"v_add_u32 v{T0+7}, 2, v{T0+6}")
    for r in (T0 + 6, T0 + 7):
        k.e(f"v_lshrrev_b32 v{T0+8}, 3, v{r}", f"v_and_b32 v{r}, 7, v{r}", f"v_lshl_add_u32 v{r}, v{r}, 1, v{T0+9}",
            f"v_lshl_add_u32 v{r}, v{T0+8}, 8, v{r}")
    k.e(f"v_cndmask_b32 v{T0+5}, v{OA+10}, v{OA+12}, s[44:45]")
    k.e(f"v_cmp_le_f32 vcc, {hex(f2u(2.0**-40))}, v{T0+5}")
    k.e("s_cmp_eq_u32 s32, 11", "s_cbranch_scc1 attn_fin")
    k.e("s_cmp_eq_u64 vcc, -1", "s_cbranch_scc1 attn_fin")
    k.e("s_mov_b32 s32, 10", f"v_mov_b32 v{T0+1}, 0", "s_branch attn_setm")
    k.label("attn_fin")
    k.e(f"v_rcp_f32 v{T0+5}, v{T0+5}")
    for i in range(10):
        k.e(f"v_mul_f32 v{OA+i}, v{T0+5}, v{OA+i}")
    for i in range(5):
        k.e(f"v_cvt_pk_bf16_f32 v{P+i}, v{OA+2*i}, v{OA+2*i+1}")
    k.e(f"ds_write_b32 v{T0+6}, v{P}", f"ds_write_b32 v{T0+7}, v{P+1}",
        f"ds_write_b32 v{T0+6}, v{P+2} offset:256", f"ds_write_b32 v{T0+7}, v{P+3} offset:256",
        ex(0xffffffff), f"ds_write_b32 v{T0+6}, v{P+4} offset:512", ex(-1))
    wo_dma_setup(k)
    k.e("s_waitcnt lgkmcnt(0)", "s_barrier")
    k.stamp(2)
    publish_o(k, "oa", pre=wo_dma)


def kv_dma(k, a, b):
    for i in range(a, b):
        k.e(f"s_add_u32 m0, s34, {i*4096}", f"s_add_u32 s36, s35, {i*4096}",
            "buffer_load_dwordx4 v11, s[16:19], s36 offen lds")


def helper_dma0(k):
    k.e("s_setprio 3")
    k.e("s_sub_u32 s31, s30, 8", "s_lshl_b32 s34, s31, 10", "s_lshr_b32 s35, s2, 3", "s_add_u32 s35, s35, s2", "s_and_b32 s35, s35, 15",
        f"s_mul_i32 s35, s35, {GRP}", "s_add_u32 s35, s35, s34", f"s_add_u32 s35, s35, {WS_KV}")
    kv_dma(k, 0, 12)
    k.e("v_and_b32 v12, 15, v1", "v_lshlrev_b32 v12, 2, v12", f"v_add_u32 v12, {LDS_RDY}, v12", "v_mov_b32 v13, 0", "ds_write_b32 v12, v13")


def helper_pack(k):
    def dma(a, b):
        kv_dma(k, a, b)
    k.e("s_waitcnt vmcnt(5) lgkmcnt(0)", "s_barrier")
    dma(12, 37)
    k.e("s_cmp_lg_u32 s31, 0", "s_cbranch_scc1 mega_h_nolast")
    k.e(ex(0xffff))
    dma(37, 38)
    k.e(ex(-1))
    k.label("mega_h_nolast")
    k.e("s_lshl_b32 s34, s31, 6", "v_add_u32 v12, s34, v1", "v_min_u32 v12, 161, v12", "v_lshlrev_b32 v12, 7, v12",
        "s_mul_i32 s34, s47, 20736")
    k.e("s_lshl_b32 s50, s31, 5", "s_add_u32 s50, s50, s47",
        "s_cmp_ge_u32 s50, 54", "s_cselect_b32 s53, 1, 0",
        "s_mul_i32 s51, s53, 54", "s_sub_u32 s51, s50, s51",
        "s_mul_i32 s54, s51, 57", "s_lshr_b32 s54, s54, 10",
        "s_mul_i32 s52, s54, 18", "s_sub_u32 s52, s51, s52",
        "s_cmp_eq_u32 s53, 0",
        "s_cselect_b32 s20, s4, s6", "s_cselect_b32 s21, s5, s7", f"s_mov_b32 s22, {hex(W1B)}", "s_mov_b32 s23, 0x00020000",
        "s_movk_i32 s56, 1152", "s_cselect_b32 s56, 9216, s56",
        "s_movk_i32 s57, 1152", "s_cselect_b32 s57, s57, 663552", "s_mul_i32 s57, s57, s46",
        "s_mul_i32 s58, s54, 192", "s_mul_i32 s58, s58, s56", "s_add_u32 s57, s57, s58",
        "s_lshl_b32 s58, s52, 6", "s_add_u32 s57, s57, s58")
    k.e("s_add_u32 s58, s53, s54", "s_cmp_eq_u32 s58, 3", "s_cselect_b32 s58, 2, 1", "s_cselect_b32 s59, -5, 1",
        "s_mul_i32 s58, s58, s56", "s_mul_i32 s59, s59, s56", "s_mul_i32 s60, s56, 25")
    k.e("v_lshrrev_b32 v2, 4, v1", "v_lshlrev_b32 v2, 3, v2", "v_mul_u32_u24 v15, s56, v2", "v_and_b32 v3, 15, v1",
        "v_lshl_add_u32 v15, v3, 2, v15", "v_lshlrev_b32 v8, 2, v3",
        "s_mov_b32 s64, 0x05040100", "s_mov_b32 s65, 0x07060302")
    k.e(f"s_mul_i32 s62, s52, {STREAM}", f"s_mul_i32 s63, s52, {2*STREAM}", f"s_sub_u32 s63, s63, {24*STREAM - 2048}",
        "s_cmp_lt_u32 s52, 12", "s_cselect_b32 s62, s62, s63", "s_movk_i32 s61, 1024", f"s_cselect_b32 s61, s61, {STREAM}",
        "s_mul_i32 s63, s53, 3", "s_add_u32 s63, s63, s54", f"s_mul_i32 s63, s63, {6*3072}", "s_add_u32 s62, s62, s63",
        f"s_mul_i32 s63, s46, {1296*1024}", "s_add_u32 s62, s62, s63", f"s_add_u32 s62, s62, {WS_W}",
        "s_add_u32 s61, s61, s62")
    for i in range(4):
        k.e(f"v_mov_b32 v{PS+8+i}, 0x3f803f80")
    k.e("s_waitcnt vmcnt(0)", "s_barrier")
    k.e("buffer_load_dword v13, v12, s[24:27], s34 offen")
    k.e("s_cmp_ge_u32 s50, 108", "s_cbranch_scc1 mega_h_nounit")
    for ss in range(6):
        for jj in range(8):
            k.e(f"buffer_load_dword v{PIN+8*ss+jj}, v15, s[20:23], s57 offen",
                f"s_add_u32 s57, s57, s{60 if jj == 7 else (59 if jj == 3 else 58)}")
    for ss in range(6):
        k.e(f"s_waitcnt vmcnt({40 - 8*ss + 2*ss})")
        for e in range(2):
            for q in range(4):
                k.e(f"v_perm_b32 v{POUT+8*ss+4*e+q}, v{PIN+8*ss+2*q+1}, v{PIN+8*ss+2*q}, s{64+e}")
            k.e(f"buffer_store_dwordx4 {r4(POUT+8*ss+4*e)}, v11, s[16:19], s{62-e} offen sc1", f"s_add_u32 s{62-e}, s{62-e}, 3072")
    k.e("s_cmp_lg_u32 s53, 0", "s_cbranch_scc1 mega_h_nounit")
    for ss in range(6):
        for e in range(2):
            k.e(f"v_mfma_f32_16x16x32_bf16 {r4(PS+4*e)}, {r4(PS+8)}, {r4(POUT+8*ss+4*e)}, {r4(PS+4*e) if ss else 0}")
    k.e("s_mul_i32 s58, s54, 18432", "s_mul_i32 s59, s46, 2304", "s_add_u32 s58, s58, s59", "s_lshl_b32 s59, s52, 7",
        "s_add_u32 s58, s58, s59", f"s_add_u32 s58, s58, {WS_SP}")
    k.e(ex(0xffff), f"buffer_store_dword v{PS}, v8, s[16:19], s58 offen sc1",
        f"buffer_store_dword v{PS+4}, v8, s[16:19], s58 offen offset:64 sc1", ex(-1))
    k.label("mega_h_nounit")
    k.e("s_waitcnt vmcnt(0)", "s_lshl_b32 s34, s46, 9", f"s_add_u32 s36, s34, {FP}", "s_lshr_b32 s35, s47, 3", "s_lshl_b32 s35, s35, 7",
        "s_add_u32 s34, s36, s35", "s_lshl_b32 s35, s29, 2", "s_add_u32 s34, s34, s35")
    k.stamp(1)
    arrive(k, 0, 4, 34, "p")
    k.e("v_bfe_u32 v12, v1, 3, 2", "v_lshlrev_b32 v12, 7, v12", "v_and_b32 v13, 7, v1", "v_lshl_add_u32 v12, v13, 2, v12")
    poll(k, 12, 36, 14, "p", sleep=64)
    k.e("s_lshl_b32 s34, s31, 6", "v_add_u32 v12, s34, v1", "v_add_u32 v13, 256, v12", "v_min_u32 v13, 323, v13",
        "v_lshlrev_b32 v14, 7, v12", "v_lshlrev_b32 v13, 7, v13",
        f"s_mul_i32 s34, s46, {1296*1024}", "s_mul_i32 s35, s47, 41472", "s_add_u32 s34, s34, s35", f"s_add_u32 s34, s34, {WS_W}",
        "buffer_load_dword v14, v14, s[16:19], s34 offen sc1", "buffer_load_dword v13, v13, s[16:19], s34 offen sc1")
    k.e("v_min_u32 v12, 143, v12", "v_lshlrev_b32 v12, 4, v12", "s_mul_i32 s34, s46, 2304", f"s_add_u32 s34, s34, {WS_SP}")
    for i in range(3):
        k.e(f"buffer_load_dwordx4 {r4(PIN+4*i)}, v12, s[16:19], s34 offen sc1", "s_add_u32 s34, s34, 18432")
    k.e(f"v_add_u32 v12, {LDS_S}, v12", "s_waitcnt vmcnt(0)")
    for i in range(1, 3):
        for c in range(4):
            k.e(f"v_add_f32 v{PIN+c}, v{PIN+c}, v{PIN+4*i+c}")
    k.e(f"ds_write_b128 v12, {r4(PIN)}", f"v_mov_b32 v12, {LDS_RDY}", "v_mov_b32 v13, 1", "ds_write_b32 v12, v13")


def wo_dma_setup(k):
    k.e("s_movk_i32 s40, 6554", "s_movk_i32 s41, 1152")
    for i in range(5):
        dma_slot_calc(k, i, 32, 33, 34, 35)
        k.e(f"v_mul_u32_u24 v{16+i}, s41, v35", f"v_lshl_add_u32 v{16+i}, v34, 4, v{16+i}")
    k.e("s_mul_i32 s32, s29, 144", "s_mul_i32 s42, s30, 36864", "s_add_u32 s42, s42, s32",
        "s_mul_i32 s43, s30, 5120", f"s_add_u32 s43, s43, {LDS_WO}")


def wo_dma(k):
    def wdma(grp):
        for i in range(5):
            k.e(f"s_add_u32 m0, s43, {grp*8*5120 + i*1024}", "s_nop 0", f"buffer_load_dwordx4 v{16+i}, s[24:27], s42 offen lds")
        k.e(f"s_add_u32 s42, s42, {8*36864}")
    wdma(0)
    wdma(1)
    k.e("s_cmp_ge_u32 s30, 2", "s_cbranch_scc1 mega_o_skip")
    wdma(2)
    k.label("mega_o_skip")
    k.e("s_cmp_lt_u32 s30, 4", "s_cbranch_scc1 mega_r_skip")
    srd(k, 48, 10, XB)
    k.e("s_sub_u32 s34, s30, 4", "s_mul_i32 s44, s34, 2560", f"s_add_u32 s44, s44, {LDS_RES}",
        "s_lshl_b32 s35, s28, 2", "s_add_u32 s35, s35, s34", "s_mul_i32 s35, s35, 18432", "s_add_u32 s35, s35, s32")
    for i in range(3):
        if i == 2:
            k.e(ex(0xffffffff))
        k.e(f"s_add_u32 m0, s44, {i*1024}", "s_nop 0", f"buffer_load_dwordx4 v{16+i}, s[48:51], s35 offen lds")
    k.e(ex(-1))
    k.label("mega_r_skip")


def oproj(k):
    k.e("v_and_b32 v2, 15, v1", "v_lshrrev_b32 v3, 4, v1")
    k.e("v_lshrrev_b32 v32, 2, v2",
        "v_and_b32 v33, 1, v3", "v_lshlrev_b32 v33, 2, v33", "v_add_u32 v32, v32, v33",
        "v_lshl_add_u32 v32, v3, 3, v32", "v_xor_b32 v33, 4, v32", "s_movk_i32 s40, 160",
        "v_and_b32 v34, 3, v2", "v_lshlrev_b32 v34, 3, v34", f"v_add_u32 v34, {LDS_WO}, v34",
        "v_mad_u32_u24 v28, v32, s40, v34", "v_mad_u32_u24 v29, v33, s40, v34",
        "v_add_u32 v30, 61440, v28", "v_add_u32 v31, 61440, v29")
    k.e("s_mul_i32 s44, s31, 2560", f"s_add_u32 s44, s44, {LDS_RES}",
        "v_and_b32 v21, 8, v2", "v_lshrrev_b32 v21, 1, v21", "v_xor_b32 v21, v21, v2", "v_mul_u32_u24 v21, s40, v21",
        "v_lshl_add_u32 v21, v3, 3, v21", "v_add_u32 v21, s44, v21")
    k.e("v_and_b32 v22, 1, v3", "v_lshlrev_b32 v22, 9, v22", "v_lshrrev_b32 v32, 1, v3", "v_lshl_add_u32 v22, v32, 8, v22",
        "v_lshl_add_u32 v22, v2, 4, v22")
    k.e("v_and_b32 v23, 7, v1", "v_lshlrev_b32 v23, 2, v23")
    for r in range(OACC, OACC + 20):
        k.e(f"v_mov_b32 v{r}, 0")
    k.e("s_lshl_b32 s48, s28, 2", "s_add_u32 s48, s48, s31", "s_mul_i32 s49, s48, 18432")
    k.e("s_waitcnt lgkmcnt(0)", "s_barrier")
    k.stamp(2)
    publish_o(k, "ob")
    k.e("s_lshl_b32 s34, s28, 7", f"s_add_u32 s34, s34, {F1}")
    k.e("s_cmp_lg_u32 s31, 0", "s_cbranch_scc1 mega_polld_o")
    poll(k, 23, 34, 32, "o", sleep=1)
    k.e("s_barrier")
    k.stamp(3)
    k.e(f"s_add_u32 s34, s49, {WS_O}")
    for s in range(18):
        if s % 4 == 0 and s:
            k.e("s_add_u32 s34, s34, 4096")
        k.e(f"buffer_load_dwordx4 v[{OX0+4*s}:{OX0+4*s+3}], v11, s[16:19], s34 offen offset:{1024*(s%4)} sc1")

    def rd(t, s):
        a0, a1 = (28, 29) if s < 12 else (30, 31)
        off = (s if s < 12 else s - 12) * 5120 + 32 * t
        k.e(f"ds_read_b64_tr_b16 v[{OWF+4*t}:{OWF+4*t+1}], v{a0} offset:{off}",
            f"ds_read_b64_tr_b16 v[{OWF+4*t+2}:{OWF+4*t+3}], v{a1} offset:{off}")
    for t in range(5):
        rd(t, 0)
    for s in range(18):
        last = s == 17
        for t in range(5):
            k.e(f"s_waitcnt lgkmcnt({2*(4-t) if last else 8})" + (f" vmcnt({17-s})" if t == 0 else ""))
            a = r4(OACC + 4 * t)
            k.e(f"v_mfma_f32_16x16x32_bf16 {a}, {r4(OWF+4*t)}, {r4(OX0+4*s)}, {a}")
            if not last:
                rd(t, s + 1)
    for t in range(5):
        k.e(f"ds_read_b64 v[{36+2*t}:{37+2*t}], v21 offset:{32*t}")
    k.e("v_mov_b32 v6, 0", "v_mov_b32 v7, 0", "v_mov_b32 v34, 0x3f803f80",
        "s_mul_i32 s35, s29, 2304", "s_add_u32 s35, s35, s49", f"s_add_u32 s35, s35, {WS_H}")
    for t in range(5):
        a = OACC + 4 * t
        d = 48 + 2 * t
        k.e(f"s_waitcnt lgkmcnt({4-t})")
        k.e(f"v_lshlrev_b32 v24, 16, v{36+2*t}", f"v_and_b32 v25, 0xffff0000, v{36+2*t}",
            f"v_lshlrev_b32 v26, 16, v{37+2*t}", f"v_and_b32 v27, 0xffff0000, v{37+2*t}")
        for i in range(4):
            k.e(f"v_add_f32 v{a+i}, v{a+i}, v{24+i}")
        k.e(f"v_cvt_pk_bf16_f32 v{d}, v{a}, v{a+1}", f"v_cvt_pk_bf16_f32 v{d+1}, v{a+2}, v{a+3}")
        if t == 4:
            k.e(ex(0xffffffff))
        k.e(f"v_dot2c_f32_bf16 v6, v{d}, v34", f"v_dot2c_f32_bf16 v7, v{d}, v{d}",
            f"v_dot2c_f32_bf16 v6, v{d+1}, v34", f"v_dot2c_f32_bf16 v7, v{d+1}, v{d+1}")
        if t == 4:
            k.e(ex(-1))
        if t % 2 == 1 or t == 4:
            b = 48 + 4 * (t // 2)
            k.e(f"v_permlane16_swap_b32 v{b}, v{b+2}", f"v_permlane16_swap_b32 v{b+1}, v{b+3}")
            if t == 4:
                k.e(ex(0xffff))
            k.e(f"buffer_store_dwordx4 {r4(b)}, v22, s[16:19], s35 offen offset:{1024*(t//2)} sc1")
            if t == 4:
                k.e(ex(-1))
    reduce_g_add(k, [6, 7], [32, 33])
    k.e("v_lshlrev_b32 v32, 4, v2", "s_lshl_b32 s35, s48, 10", "s_lshr_b32 s34, s29, 1", "s_lshl_b32 s34, s34, 8",
        "s_add_u32 s35, s35, s34", "s_and_b32 s34, s29, 1", "s_lshl_b32 s34, s34, 3", "s_add_u32 s35, s35, s34",
        f"s_add_u32 s35, s35, {WS_ST}", ex(0xffff))
    k.e("buffer_store_dwordx2 v[6:7], v32, s[16:19], s35 offen sc1", ex(-1))
    k.e("s_lshl_b32 s34, s28, 7", "s_lshl_b32 s35, s29, 2", "s_add_u32 s34, s34, s35", f"s_add_u32 s34, s34, {F2}", "s_waitcnt vmcnt(0)")
    arrive(k, 2, 4, 34, "h")


def acc(t, mb):
    return ACC + (t * 4 + mb) * 4


def wreg(slot, t):
    return WR + ((slot + 1) % 6) * 12 + t * 4


def wload(slot, t):
    return f"buffer_load_dwordx4 {r4(wreg(slot, t))}, v11, s[20:23], s53 offen offset:{1024*t} {WAUX}"


def ffn_ring_start(k):
    k.e(f"s_mul_i32 s34, s30, {STREAM}", f"s_mul_i32 s35, s46, {1296*1024}", "s_add_u32 s34, s34, s35", f"s_add_u32 s34, s34, {WS_W}",
        "s_add_u32 s20, s12, s34", "s_addc_u32 s21, s13, 0", f"s_mov_b32 s22, {STREAM}", "s_mov_b32 s23, 0x00020000",
        "s_mov_b32 s53, 0")
    for st in range(D - 1):
        for t in range(T):
            k.e(wload(st, t))
        k.e(f"s_add_u32 s53, s53, {T*1024}")


def ffn(k):
    k.label("ffn_join")
    k.e("s_setprio 0", "v_and_b32 v2, 15, v1", "v_lshrrev_b32 v3, 4, v1")
    k.e("v_and_b32 v12, 7, v1", "v_lshlrev_b32 v12, 2, v12", "s_lshl_b32 s34, s47, 7", f"s_add_u32 s34, s34, {F2}")
    k.e("s_cmp_lg_u32 s30, 0", "s_cbranch_scc1 mega_polld_h")
    k.e("s_sleep 24")
    poll(k, 12, 34, 14, "h", sleep=2)
    k.e("s_barrier")
    k.stamp(4)
    k.e("s_lshl_b32 s34, s47, 12", f"s_add_u32 s34, s34, {WS_ST}")
    for mb in range(4):
        k.e(f"buffer_load_dwordx4 {r4(XB0+4*mb)}, v11, s[16:19], s34 offen offset:{1024*mb} sc1")
    k.e("s_lshl_b32 s34, s47, 2", "s_and_b32 s35, s30, 3", "s_add_u32 s34, s34, s35", "s_mul_i32 s41, s34, 18432",
        "s_lshr_b32 s35, s30, 2", "s_lshl_b32 s35, s35, 10", "s_add_u32 s41, s41, s35", f"s_add_u32 s41, s41, {WS_H}",
        "s_lshl_b32 s42, s30, 10")
    k.e("s_cmp_ge_u32 s30, 8", "s_cbranch_scc1 ffn_nodma0")
    for i in range(6):
        k.e(f"s_add_u32 m0, s42, {i*8192}", f"s_add_u32 s36, s41, {i*2048}", "buffer_load_dwordx4 v11, s[16:19], s36 offen sc1 lds")
    k.e("s_waitcnt vmcnt(6)", "s_branch ffn_st")
    k.label("ffn_nodma0")
    k.e("s_waitcnt vmcnt(0)")
    k.label("ffn_st")
    k.e("s_lshl_b32 s34, s30, 7", f"s_add_u32 s34, s34, {LDS_S}", "v_lshlrev_b32 v13, 4, v3", "v_add_u32 v12, s34, v13",
        "s_lshl_b32 s34, s30, 6", f"s_add_u32 s34, s34, {LDS_S + 1536}", "v_add_u32 v13, s34, v13",
        f"ds_read_b128 {r4(XB0+16)}, v12", f"ds_read_b128 {r4(XB0+20)}, v12 offset:64", f"ds_read_b128 {r4(XB0+24)}, v13")
    for mb in range(4):
        b = XB0 + 4 * mb
        k.e(f"v_add_f32 v{4+mb}, v{b}, v{b+2}", f"v_add_f32 v{ACC+mb}, v{b+1}, v{b+3}")
    reduce_g_add(k, [4, 5, 6, 7] + [ACC + i for i in range(4)], list(range(ACC + 4, ACC + 12)))
    for mb in range(4):
        k.e(f"v_mul_f32 v{4+mb}, {hex(f2u(-1/576))}, v{4+mb}")
    k.e("s_and_b32 s34, s46, 3", "v_mov_b32 v8, v4", f"v_mov_b32 v9, v{ACC}")
    for mb in range(1, 4):
        k.e(f"s_cmp_eq_u32 s34, {mb}", "s_cselect_b64 vcc, -1, 0", f"v_cndmask_b32 v8, v8, v{4+mb}, vcc", f"v_cndmask_b32 v9, v9, v{ACC+mb}, vcc")
    k.e(f"v_mul_f32 v9, {hex(f2u(1/576))}, v9", "v_fma_f32 v8, -v8, v8, v9", "v_max_f32 v8, 0, v8",
        f"v_add_f32 v8, {hex(f2u(1e-5))}, v8", "v_rsq_f32 v8, v8")
    k.e("s_waitcnt lgkmcnt(0)")
    for t in range(T):
        for mb in range(4):
            for i in range(4):
                k.e(f"v_mul_f32 v{acc(t,mb)+i}, v{4+mb}, v{XB0+16+4*t+i}")
    k.e("s_add_u32 s41, s41, 12288", "s_add_u32 s42, s42, 49152")
    k.e("s_waitcnt vmcnt(3)", "s_barrier")
    k.stamp(5)
    k.e("v_mov_b32 v10, v11", "s_mov_b32 s31, 0")
    k.label("ffn_start")
    for mb in range(4):
        k.e(f"ds_read_b128 {r4(XB0+4*mb)}, v10 offset:{1024*mb}")
    k.e(".p2align 6")
    k.label("ffn_loop")
    k.e("s_cmp_lg_u32 s31, 1", "s_cbranch_scc1 ffn_nodma")
    for i in range(2):
        k.e(f"s_add_u32 m0, s42, {i*12288}", f"s_add_u32 s36, s41, {i*3072}", "buffer_load_dwordx4 v11, s[16:19], s36 offen sc1 lds")
    k.label("ffn_nodma")
    for u in range(D):
        xb = XB0 + 16 * (u % 2)
        xn = XB0 + 16 * ((u + 1) % 2)
        fill = [f"ds_read_b128 {r4(xn+4*mb)}, v10 offset:{(u+1)*4096 + 1024*mb}" for mb in range(4)]
        fill += [wload((u + D - 1) % D, t) for t in range(T)]
        fill += [f"s_add_u32 s53, s53, {T*1024}"]
        k.e(f"s_waitcnt vmcnt({4*T}) lgkmcnt(0)")
        if u == D - 1:
            k.e("s_cmp_ge_u32 s31, 2", "s_cbranch_scc1 ffn_nobar", "s_barrier")
            k.label("ffn_nobar")
        for t in range(T):
            for mb in range(4):
                a = r4(acc(t, mb))
                k.e(f"v_mfma_f32_16x16x32_bf16 {a}, {r4(wreg(u, t))}, {r4(xb+4*mb)}, {a}")
                if fill:
                    k.e(fill.pop(0))
    k.e(f"v_add_u32 v10, {D*4096}, v10", "s_add_u32 s31, s31, 1",
        "s_cmp_eq_u32 s31, 3", "s_cbranch_scc1 ffn_ep1",
        "s_cmp_lt_u32 s31, 6", "s_cbranch_scc1 ffn_loop")
    k.stamp(7)
    k.e("s_waitcnt lgkmcnt(0)")
    k.e(f"s_mul_i32 s34, s46, {XB}", "s_mul_i32 s33, s47, 73728", f"s_add_u32 s33, s33, {WS_P}", "s_add_u32 s34, s34, s33",
        "s_lshl_b32 s35, s30, 10", "s_add_u32 s36, s34, s35",
        "s_cmp_ge_u32 s30, 6", "s_movk_i32 s37, 12288", f"s_cselect_b32 s37, {12288 + 18432 - 6144}, s37", "s_add_u32 s37, s37, s36")
    for mb in range(4):
        d = XB0 + 4 * mb
        a, b = acc(0, mb), acc(1, mb)
        for i in range(4):
            k.e(f"v_cvt_pk_bf16_f32 v{d+i}, v{a+i}, v{b+i}")
        k.e(f"buffer_store_dwordx4 {r4(d)}, v11, s[16:19], s36 offen sc1", "s_add_u32 s36, s36, 18432")
    for h in range(2):
        d = XB0 + 16 + 4 * h
        a, b = acc(2, 2 * h), acc(2, 2 * h + 1)
        k.e(f"v_cvt_pk_bf16_f32 v{d}, v{a}, v{a+1}", f"v_cvt_pk_bf16_f32 v{d+1}, v{a+2}, v{a+3}",
            f"v_cvt_pk_bf16_f32 v{d+2}, v{b}, v{b+1}", f"v_cvt_pk_bf16_f32 v{d+3}, v{b+2}, v{b+3}")
        k.e(f"buffer_store_dwordx4 {r4(d)}, v11, s[16:19], s37 offen sc1", "s_add_u32 s37, s37, 36864")
    k.e("s_lshl_b32 s38, s47, 9", f"s_add_u32 s38, s38, {F3}", "s_lshr_b32 s36, s30, 2", "s_lshl_b32 s35, s36, 7", "s_add_u32 s38, s38, s35",
        "s_lshl_b32 s35, s46, 2", "s_add_u32 s34, s38, s35",
        "s_lshl_b32 s44, s36, 2", f"s_add_u32 s44, s44, {LDS_CNT + 12}", "s_waitcnt vmcnt(0)")
    arrive(k, 0, 4, 34, "r", cnt_sgpr=44)
    k.e("s_add_u32 s44, s44, 12", "v_mov_b32 v15, s44")
    k.e("s_and_b32 s35, s30, 3", "s_cmp_lg_u32 s35, 3", "s_cbranch_scc1 mega_red")
    k.e("v_and_b32 v12, 7, v1", "v_lshlrev_b32 v12, 2, v12")
    poll(k, 12, 38, 14, "r", sleep=2)
    k.e("v_mov_b32 v13, 1", "ds_write_b32 v15, v13", "s_waitcnt lgkmcnt(0)", "s_branch mega_fin")
    k.label("mega_red")
    k.e(
        "s_lshl_b32 s37, s36, 2", "s_lshl_b32 s39, s35, 1", "s_add_u32 s37, s37, s39",
        "s_lshl_b32 s39, s36, 1", "s_add_u32 s39, s39, 12", "s_cmp_eq_u32 s35, 2", "s_cselect_b32 s37, s39, s37",
        "s_lshr_b32 s39, s46, 2", "s_add_u32 s37, s37, s39",
        "s_and_b32 s39, s46, 3",
        "s_mul_i32 s34, s39, 18432", "s_lshl_b32 s41, s37, 10", "s_add_u32 s34, s34, s41")
    k.e("s_sub_u32 s41, s37, 12", "s_lshl_b32 s41, s41, 11", "s_cmp_ge_u32 s37, 15", "s_movk_i32 s42, 12288",
        f"s_cselect_b32 s42, {12288 + 18432 - 6144}, s42", "s_add_u32 s41, s41, s42", "s_lshr_b32 s42, s39, 1", "s_mul_i32 s42, s42, 36864",
        "s_add_u32 s41, s41, s42", "s_and_b32 s42, s39, 1", "s_lshl_b32 s42, s42, 3", "s_add_u32 s41, s41, s42",
        "s_mov_b32 s43, s35", "s_cmp_eq_u32 s35, 2", "s_cselect_b32 s34, s41, s34", "s_cselect_b32 s42, 1024, 8",
        "s_add_u32 s33, s33, s34", "s_add_u32 s42, s42, s33")
    k.e("s_lshl_b32 s35, s37, 2", "s_add_u32 s35, s35, s39", "s_lshl_b32 s35, s35, 10", "v_add_u32 v13, s35, v11",
        f"ds_read_b128 {r4(WR+32)}, v13")
    srd(k, 20, 14, XB)
    k.e("s_lshl_b32 s35, s47, 2", "s_add_u32 s35, s35, s39", "s_mul_i32 s35, s35, 18432", "s_lshl_b32 s37, s37, 6",
        "s_add_u32 s37, s37, s35", "s_movk_i32 s35, 1152", "v_mul_u32_u24 v9, s35, v2", "v_lshl_add_u32 v9, v3, 4, v9")
    k.e("v_mov_b32 v5, 0x00003f80", "v_mov_b32 v6, 0x3f800000")
    for i in range(8):
        k.e(f"v_mov_b32 v{ACC+i}, 0")
    k.e(f"s_mov_b32 s3, {SPIN*8}")
    k.label("mega_lspin")
    k.e("ds_read_b32 v14, v15", "s_waitcnt lgkmcnt(0)", "v_readfirstlane_b32 s38, v14", "s_cmp_lg_u32 s38, 0", "s_cbranch_scc1 mega_lspind",
        "s_sleep 1", "s_sub_u32 s3, s3, 1", "s_cbranch_scc0 mega_lspin")
    k.label("mega_lspind")
    for j in range(8):
        k.e(f"buffer_load_dwordx2 v[{WR+4*j}:{WR+4*j+1}], v11, s[16:19], s33 offen sc1", f"s_add_u32 s33, s33, {XB}",
            f"buffer_load_dwordx2 v[{WR+4*j+2}:{WR+4*j+3}], v11, s[16:19], s42 offen sc1", f"s_add_u32 s42, s42, {XB}")
    k.e("s_waitcnt lgkmcnt(0)")
    for i in range(4):
        k.e(f"v_lshlrev_b32 v{ACC+8+2*i}, 16, v{WR+32+i}", f"v_and_b32 v{ACC+9+2*i}, 0xffff0000, v{WR+32+i}")
    for j in range(8):
        k.e(f"s_waitcnt vmcnt({14-2*j})")
        for i in range(4):
            k.e(f"v_lshlrev_b32 v{ACC+16+2*i}, 16, v{WR+4*j+i}", f"v_and_b32 v{ACC+17+2*i}, 0xffff0000, v{WR+4*j+i}")
        for i in range(8):
            k.e(f"v_add_f32 v{ACC+i}, v{ACC+i}, v{ACC+16+i}")
    k.e("s_cmp_eq_u32 s43, 2", "s_cbranch_scc1 mega_red_s")
    for i in range(8):
        k.e(f"v_fma_f32 v{ACC+8+i}, v{ACC+i}, v8, v{ACC+8+i}")
    k.e("s_branch mega_red_o")
    k.label("mega_red_s")
    for i in range(8):
        k.e(f"v_fma_f32 v{ACC+8+i}, v{ACC+(i//2)+4*(i%2)}, v8, v{ACC+8+i}")
    k.label("mega_red_o")
    for i in range(4):
        k.e(f"v_cvt_pk_bf16_f32 v{XB0+i}, v{ACC+8+2*i}, v{ACC+9+2*i}")
    k.e(f"buffer_store_dwordx4 {r4(XB0)}, v9, s[20:23], s37 offen")
    k.label("mega_fin")
    k.stamp_flush(1, 9, 16, 30, wpw=16)
    k.e("s_endpgm")
    k.label("ffn_ep1")
    k.e("s_waitcnt lgkmcnt(0)")
    k.e("s_lshl_b32 s34, s30, 12", f"s_add_u32 s34, s34, {LDS_H}", "v_add_u32 v12, s34, v11")
    k.e("s_lshr_b32 s34, s30, 1", "s_lshl_b32 s34, s34, 12", "s_and_b32 s35, s30, 1", "s_lshl_b32 s35, s35, 3",
        "s_add_u32 s34, s34, s35", f"s_add_u32 s34, s34, {LDS_H + 49152}", "v_add_u32 v13, s34, v11")
    for mb in range(4):
        d = XB0 + 4 * mb
        a, b = acc(0, mb), acc(1, mb)
        for i in range(4):
            k.e(f"v_cvt_pk_bf16_f32 v{d+i}, v{a+i}, v{b+i}")
        for i in range(4):
            k.e(f"v_pk_max_i16 v{d+i}, v{d+i}, 0")
        k.e(f"ds_write_b128 v12, {r4(d)} offset:{mb*1024}")
    for mb in range(4):
        a = acc(2, mb)
        d = XB0 + 16 + 2 * mb
        k.e(f"v_cvt_pk_bf16_f32 v{d}, v{a}, v{a+1}", f"v_cvt_pk_bf16_f32 v{d+1}, v{a+2}, v{a+3}",
            f"v_pk_max_i16 v{d}, v{d}, 0", f"v_pk_max_i16 v{d+1}, v{d+1}, 0",
            f"ds_write_b64 v13, v[{d}:{d+1}] offset:{mb*1024}")
    for r in range(ACC, ACC + 16 * T):
        k.e(f"v_mov_b32 v{r}, 0")
    k.e("s_cmp_lt_u32 s30, 4", "s_cbranch_scc0 ffn_pr1", "s_setprio 2")
    k.label("ffn_pr1")
    k.e("s_and_b32 s34, s30, 12", "s_cmp_eq_u32 s34, 4", "s_cbranch_scc0 ffn_pr2", "s_setprio 1")
    k.label("ffn_pr2")
    k.e("s_waitcnt lgkmcnt(0)", "s_barrier")
    k.stamp(6)
    k.e("s_branch ffn_start")


def gen_mega():
    k = Kernel("mega_kernel", vgprs=168)
    k.e("s_cmp_ge_u32 s2, 256", "s_cbranch_scc1 mega_end")
    k.e("s_load_dwordx4 s[4:7], s[0:1], 48", "s_load_dwordx2 s[8:9], s[0:1], 32", "s_load_dwordx2 s[10:11], s[0:1], 0",
        "s_load_dwordx2 s[12:13], s[0:1], 80", "s_load_dwordx2 s[14:15], s[0:1], 64")
    k.stamp(0)
    k.e("v_and_b32 v1, 63, v0", "v_and_b32 v2, 31, v0", "v_bfe_u32 v3, v0, 5, 1", "v_lshrrev_b32 v7, 6, v0",
        "s_nop 0", "v_readfirstlane_b32 s30, v7")
    k.e("v_lshlrev_b32 v11, 4, v1")
    k.e("s_movk_i32 s40, 18432", "v_lshrrev_b32 v8, 4, v2", "v_mul_u32_u24 v8, s40, v8", "v_and_b32 v9, 15, v2",
        "v_lshl_add_u32 v8, v9, 4, v8", "v_lshl_add_u32 v9, v3, 8, v8",
        "v_lshlrev_b32 v10, 3, v1", f"v_mov_b32 v15, {LDS_ROLE}")
    k.e("s_waitcnt lgkmcnt(0)")
    srd(k, 16, 12, WS_END)
    srd(k, 24, 8, WQB)
    k.e("s_cmp_lg_u32 s30, 0", "s_cbranch_scc1 mega_noticket")
    k.e("s_getreg_b32 s46, hwreg(HW_REG_XCC_ID, 0, 4)", "v_mov_b32 v12, 0", ex(1), "s_mov_b32 s3, 8")
    k.label("mega_ticket")
    k.e("s_and_b32 s46, s46, 7", "s_lshl_b32 s34, s46, 7", f"s_add_u32 s34, s34, {FT}", "v_mov_b32 v13, 1",
        "buffer_atomic_add v13, v12, s[16:19], s34 offen sc0 sc1", "s_waitcnt vmcnt(0)", "v_readfirstlane_b32 s47, v13",
        "s_add_u32 s46, s46, 1", "s_sub_u32 s3, s3, 1", "s_cbranch_scc1 mega_ticketd", "s_cmp_ge_u32 s47, 32", "s_cbranch_scc1 mega_ticket")
    k.label("mega_ticketd")
    k.e("s_sub_u32 s46, s46, 1", "s_lshl_b32 s47, s47, 3", "s_add_u32 s47, s47, s46", "v_mov_b32 v13, s47", "ds_write_b32 v15, v13",
        ex(-1), "s_waitcnt lgkmcnt(0)")
    k.label("mega_noticket")
    k.e("s_cmp_lt_u32 s30, 8", "s_cbranch_scc1 mega_nodma0")
    helper_dma0(k)
    k.label("mega_nodma0")
    k.e("s_barrier", "ds_read_b32 v13, v15", "s_waitcnt lgkmcnt(0)", "v_readfirstlane_b32 s47, v13")
    k.e("s_and_b32 s46, s47, 7", "s_lshr_b32 s47, s47, 3", "s_and_b32 s47, s47, 31", "s_and_b32 s28, s47, 24", "s_add_u32 s28, s28, s46",
        "s_and_b32 s29, s47, 7")
    k.e("s_lshr_b32 s38, s30, 2", "s_lshl_b32 s38, s38, 1", "s_lshl_b32 s39, s28, 2", "s_add_u32 s38, s38, s39",
        "s_mul_i32 s33, s38, 18432", "s_and_b32 s38, s30, 3", "s_lshl_b32 s39, s29, 2", "s_add_u32 s38, s38, s39",
        "s_mul_i32 s37, s38, 18")
    k.e("s_cmp_ge_u32 s30, 8", "s_cbranch_scc1 mega_helper")
    k.e("s_mov_b32 s52, 0")
    attention(k)
    k.e("s_cmp_lg_u32 s52, 0", "s_cbranch_scc1 mega_ringed")
    ffn_ring_start(k)
    k.label("mega_ringed")
    k.e("s_waitcnt vmcnt(0)")
    k.stamp(3)
    k.e("s_barrier", "s_branch ffn_join")
    k.label("mega_helper")
    helper_pack(k)
    oproj(k)
    ffn_ring_start(k)
    ffn(k)
    k.label("mega_end")
    k.e("s_endpgm")
    return k
```

```python
import os
from asmlib import Kernel
from layout import *
from k_small import f2u, srd, ex, reduce_g_add, dma_slot_calc

S0, S1, OA, P, KF, V0, V1, K2F, Q, Q2E, Q2O = 16, 32, 48, 64, 72, 76, 80, 84, 88, 92, 94
T0 = 96
PIN, POUT, PS = 16, 64, 112
LDS_OST = 151808
LDS_RES = 49408
LDS_WO = 59648
LDS_H = 73728
LDS_S = 161024
LDS_RDY = 163328
LDS_CNT = 163344
LDS_ROLE = 163392
LDS_MEGA = 163408
OX0, OACC, OWF = 48, 120, 140
XB0, ACC, WR = 16, 48, 96
D = 6
T = 3
STREAM = 36 * T * 1024
SPIN = 1 << 20
WAUX = os.environ.get("WAUX", "sc1")


def r4(b):
    return f"v[{b}:{b+3}]"


def r16(b):
    return f"v[{b}:{b+15}]"


def poll(k, vaddr, soff, vtmp, tag, wide=False, sleep=2):
    lab, done = f"mega_poll_{tag}", f"mega_polld_{tag}"
    k.e(f"s_mov_b32 s3, {SPIN}")
    k.label(lab)
    if wide:
        k.e(f"buffer_load_dwordx2 v[{vtmp}:{vtmp+1}], v{vaddr}, s[16:19], s{soff} offen sc1", "s_waitcnt vmcnt(0)",
            f"v_and_b32 v{vtmp}, v{vtmp}, v{vtmp+1}")
    else:
        k.e(f"buffer_load_dword v{vtmp}, v{vaddr}, s[16:19], s{soff} offen sc1", "s_waitcnt vmcnt(0)")
    k.e(f"v_cmp_ne_u32 vcc, 0, v{vtmp}", "s_cmp_eq_u64 vcc, -1", f"s_cbranch_scc1 {done}",
        f"s_sleep {sleep}", "s_sub_u32 s3, s3, 1", f"s_cbranch_scc0 {lab}")
    k.label(done)


def set_flag(k, soff, va, vb):
    k.e(f"v_mov_b32 v{va}, 0", f"v_mov_b32 v{vb}, 1", ex(1), f"buffer_store_dword v{vb}, v{va}, s[16:19], s{soff} offen sc1", ex(-1))


def arrive(k, cnt, n, soff, tag, cnt_sgpr=None):
    if cnt_sgpr is None:
        k.e(f"v_mov_b32 v12, {LDS_CNT + 4*cnt}")
    else:
        k.e(f"v_mov_b32 v12, s{cnt_sgpr}")
    k.e("v_mov_b32 v13, 1", ex(1), "ds_add_rtn_u32 v14, v12, v13", ex(-1), "s_waitcnt lgkmcnt(0)",
        "v_readfirstlane_b32 s3, v14", f"s_cmp_lg_u32 s3, {n-1}", f"s_cbranch_scc1 mega_arr_{tag}")
    set_flag(k, soff, 12, 13)
    k.label(f"mega_arr_{tag}")


def publish_o(k, tag, pre=None):
    k.e("s_and_b32 s34, s30, 3", "s_lshr_b32 s35, s30, 2", "s_mul_i32 s36, s34, 2304", "s_mul_i32 s37, s35, 768",
        "s_add_u32 s36, s36, s37", f"s_add_u32 s36, s36, {LDS_OST}", "v_add_u32 v12, s36, v11",
        f"ds_read_b128 {r4(4)}, v12")
    k.e("s_lshl_b32 s36, s28, 2", "s_add_u32 s36, s36, s34", "s_mul_i32 s38, s36, 18432", "s_mul_i32 s39, s29, 2304",
        "s_add_u32 s38, s38, s39", "s_add_u32 s38, s38, s37", f"s_add_u32 s38, s38, {WS_O}")
    k.e("s_lshl_b32 s36, s28, 7", "s_lshl_b32 s39, s29, 2", "s_add_u32 s36, s36, s39", f"s_add_u32 s36, s36, {F1}")
    k.e("s_waitcnt lgkmcnt(0)", ex((1 << 48) - 1), f"buffer_store_dwordx4 {r4(4)}, v11, s[16:19], s38 offen sc1", ex(-1),
        "s_waitcnt vmcnt(0)")
    arrive(k, 1, 12, 36, tag)
    if pre:
        pre(k)


def attention(k):
    k.e(f"s_add_u32 s34, s33, {WS_Q}", f"s_mov_b32 s35, {WS_KM}")
    for i in range(4):
        k.e(f"s_add_u32 s38, s37, {2*i}", "s_lshr_b32 s39, s38, 3", "s_lshl_b32 s39, s39, 8", "s_and_b32 s38, s38, 7",
            "s_lshl_b32 s38, s38, 1", "s_add_u32 s38, s38, s39", "s_add_u32 s38, s38, s34")
        k.e(f"buffer_load_dword v{Q+i}, v9, s[16:19], s38 offen")
        if i == 0:
            k.e(f"buffer_load_dword v{T0}, v8, s[16:19], s38 offen offset:512")
    k.e(f"buffer_load_dwordx2 v[{T0+2}:{T0+3}], v10, s[16:19], s35 offen")
    k.e("v_mov_b32 v12, v11")
    k.e("v_cmp_eq_u32 vcc, 28, v2", "v_cndmask_b32 v13, v2, 18, vcc",
        "v_cmp_lt_u32 vcc, 18, v13", "v_mov_b32 v14, 0x10000", "v_cndmask_b32 v13, v13, v14, vcc",
        "s_movk_i32 s40, 304", "v_mul_u32_u24 v14, s40, v3", "v_lshl_add_u32 v13, v13, 4, v14", f"v_add_u32 v13, {KV_V}, v13")
    k.e("v_min_u32 v14, 32, v1", "v_lshlrev_b32 v14, 4, v14", f"v_add_u32 v14, {KV_K2}, v14")
    k.e("v_cmp_eq_u32 s[44:45], 1, v3")
    k.e("s_waitcnt vmcnt(0)")
    k.e(f"v_cndmask_b32 v{T0}, v{T0}, 0, s[44:45]")
    k.e(f"v_mov_b32 v{T0+1}, 0")
    for r in (Q, Q + 1, Q + 2, Q + 3, T0):
        k.e(f"v_dot2c_f32_bf16 v{T0+1}, v{r}, v{r}")
    k.e(f"v_max_f32 v{T0+2}, v{T0+2}, v{T0+3}")
    for sh in (8, 4, 2, 1):
        k.e(f"v_max_f32_dpp v{T0+2}, v{T0+2}, v{T0+2} row_ror:{sh} row_mask:0xf bank_mask:0xf")
    k.e(f"v_mov_b32 v{T0+3}, v{T0+2}", f"v_permlane16_swap_b32 v{T0+2}, v{T0+3}", f"v_max_f32 v{T0+2}, v{T0+2}, v{T0+3}")
    k.e(f"v_mov_b32 v{T0+3}, v{T0+2}", f"v_mov_b32 v{T0+4}, v{T0+1}",
        f"v_permlane32_swap_b32 v{T0+2}, v{T0+3}", f"v_permlane32_swap_b32 v{T0+1}, v{T0+4}",
        f"v_max_f32 v{T0+2}, v{T0+2}, v{T0+3}", f"v_add_f32 v{T0+1}, v{T0+1}, v{T0+4}")
    k.e(f"v_mul_f32 v{T0+1}, v{T0+1}, v{T0+2}", f"v_sqrt_f32 v{T0+1}, v{T0+1}", f"v_mul_f32 v{T0+1}, {hex(f2u(1.02))}, v{T0+1}")
    k.e("s_mov_b32 s32, 0")
    k.label("attn_setm")
    k.e(f"v_xor_b32 v{T0+2}, 0x80000000, v{T0+1}",
        f"v_and_b32 v{T0+3}, 0xffff0000, v{T0+2}", f"v_sub_f32 v{T0+2}, v{T0+2}, v{T0+3}",
        f"v_and_b32 v{T0+4}, 0xffff0000, v{T0+2}", f"v_sub_f32 v{T0+2}, v{T0+2}, v{T0+4}",
        f"v_lshrrev_b32 v{T0+3}, 16, v{T0+3}", f"v_or_b32 v{T0+3}, v{T0+3}, v{T0+4}",
        f"v_lshrrev_b32 v{T0+2}, 16, v{T0+2}")
    k.e(f"v_cndmask_b32 v{Q2E}, v{T0}, v{T0+3}, s[44:45]", f"v_cndmask_b32 v{Q2E+1}, 0, v{T0+2}, s[44:45]",
        f"v_cndmask_b32 v{Q2O}, 0, v{T0+3}, s[44:45]", f"v_cndmask_b32 v{Q2O+1}, v{T0}, v{T0+2}, s[44:45]")
    k.e("v_mov_b32 v4, v12", "v_mov_b32 v5, v13", "v_mov_b32 v6, v14")
    k.e("s_cmp_eq_u32 s32, 10", "s_cbranch_scc1 attn_maxpass")
    for r in list(range(OA, OA + 16)) + list(range(P, P + 8)) + list(range(V1, V1 + 4)):
        k.e(f"v_mov_b32 v{r}, 0")
    k.e("s_mov_b32 s31, 16", "s_cmp_eq_u32 s32, 11", "s_cbranch_scc1 attn_start")
    k.e("s_mov_b32 s31, 2", "s_setprio 3", "s_barrier")
    k.label("attn_start")
    k.stamp(1)
    k.e(f"ds_read_b128 {r4(KF)}, v4", f"ds_read_b128 {r4(K2F)}, v6", f"ds_read_b128 {r4(V0)}, v5", "s_waitcnt lgkmcnt(0)")
    k.e(f"v_mfma_f32_32x32x16_bf16 {r16(S0)}, {r4(KF)}, {r4(Q)}, 0",
        f"v_mfma_f32_32x32x8_bf16 {r16(S0)}, v[{K2F}:{K2F+1}], v[{Q2E}:{Q2E+1}], {r16(S0)}")
    k.e(f"ds_read_b128 {r4(KF)}, v4 offset:1024", "s_waitcnt lgkmcnt(0)", "s_nop 7", "s_nop 3")
    k.e(".p2align 6")
    k.label("attn_loop")
    for tau in range(4):
        cur, nxt = (S0, S1) if tau % 2 == 0 else (S1, S0)
        t1 = (tau + 1) % 4
        koff = (tau + 2) * 1024 if tau < 2 else GRP + (tau - 2) * 1024
        v0off = (tau + 1) * 1216 if tau < 3 else GRP

        def ex_(a, b):
            for i in range(a, b):
                k.e(f"v_exp_f32 v{cur+i}, v{cur+i}")

        def cv(a, b):
            for i in range(a, b):
                k.e(f"v_cvt_pk_bf16_f32 v{P+i}, v{cur+2*i}, v{cur+2*i+1}")
        k.e("s_waitcnt lgkmcnt(2)")
        k.e(f"v_mfma_f32_32x32x16_bf16 {r16(nxt)}, {r4(KF)}, {r4(Q)}, 0")
        k.e(f"ds_read_b128 {r4(KF)}, v4 offset:{koff}")
        ex_(0, 3)
        k.e("s_waitcnt lgkmcnt(2)")
        k.e(f"v_mfma_f32_32x32x16_bf16 {r16(OA)}, {r4(V1)}, {r4(P+4)}, {r16(OA)}")
        k.e(f"ds_read_b128 {r4(V1)}, v5 offset:{tau*1216+608}")
        ex_(3, 6)
        q2 = Q2E if t1 % 2 == 0 else Q2O
        kk = K2F + 2 * (t1 // 2)
        k.e(f"v_mfma_f32_32x32x8_bf16 {r16(nxt)}, v[{kk}:{kk+1}], v[{q2}:{q2+1}], {r16(nxt)}")
        if tau == 2:
            k.e(f"ds_read_b128 {r4(K2F)}, v6 offset:{GRP}")
        ex_(6, 9)
        cv(0, 4)
        ex_(9, 12)
        k.e("s_waitcnt lgkmcnt(2)")
        k.e(f"v_mfma_f32_32x32x16_bf16 {r16(OA)}, {r4(V0)}, {r4(P)}, {r16(OA)}")
        k.e(f"ds_read_b128 {r4(V0)}, v5 offset:{v0off}")
        ex_(12, 16)
        if tau == 3:
            k.e(f"v_add_u32 v4, {GRP}, v4", f"v_add_u32 v5, {GRP}, v5", f"v_add_u32 v6, {GRP}, v6")
            k.e("s_sub_u32 s31, s31, 1", "s_cmp_lg_u32 s31, 0")
        cv(4, 8)
    k.e("s_cbranch_scc1 attn_loop")
    k.e("s_cmp_ge_u32 s32, 4", "s_cbranch_scc1 attn_tail")
    k.e("s_add_u32 s32, s32, 1")
    k.e("s_cmp_eq_u32 s32, 2", "s_cbranch_scc1 attn_ph2", "s_cmp_eq_u32 s32, 3", "s_cbranch_scc1 attn_ph3",
        "s_cmp_eq_u32 s32, 4", "s_cbranch_scc1 attn_ph4")
    k.e("s_barrier", "s_mov_b32 s31, 7", "s_branch attn_loop")
    for ph, cnt, pr in ((2, 4, 2), (3, 2, 1), (4, 1, 0)):
        k.label(f"attn_ph{ph}")
        k.e(f"s_setprio {pr}", f"s_mov_b32 s31, {cnt}")
        if ph == 4:
            k.e(f"v_mov_b32 v{T0+6}, {LDS_RDY}", f"ds_read_b32 v{T0+6}, v{T0+6}", "s_waitcnt lgkmcnt(0)",
                f"v_readfirstlane_b32 s52, v{T0+6}", "s_cmp_eq_u32 s52, 0", "s_cbranch_scc1 attn_loop")
            ffn_ring_start(k)
        k.e("s_branch attn_loop")
    k.label("attn_maxpass")
    k.e(f"v_mov_b32 v{T0+1}, 0xff800000", "s_mov_b32 s31, 16")
    k.label("attn_maxloop")
    k.e(f"ds_read_b128 {r4(K2F)}, v6")
    for tau in range(4):
        q2 = Q2E if tau % 2 == 0 else Q2O
        kk = K2F + 2 * (tau // 2)
        k.e(f"ds_read_b128 {r4(KF)}, v4 offset:{tau*1024}", "s_waitcnt lgkmcnt(0)")
        k.e(f"v_mfma_f32_32x32x16_bf16 {r16(S0)}, {r4(KF)}, {r4(Q)}, 0",
            f"v_mfma_f32_32x32x8_bf16 {r16(S0)}, v[{kk}:{kk+1}], v[{q2}:{q2+1}], {r16(S0)}")
        for i in range(8):
            k.e(f"v_max3_f32 v{T0+1}, v{S0+2*i}, v{S0+2*i+1}, v{T0+1}")
    k.e(f"v_add_u32 v4, {GRP}, v4", f"v_add_u32 v6, {GRP}, v6", "s_sub_u32 s31, s31, 1", "s_cmp_lg_u32 s31, 0",
        "s_cbranch_scc1 attn_maxloop")
    k.e(f"v_mov_b32 v{T0+2}, v{T0+1}", f"v_permlane32_swap_b32 v{T0+1}, v{T0+2}", f"v_max_f32 v{T0+1}, v{T0+1}, v{T0+2}")
    k.e("s_mov_b32 s32, 11", "s_branch attn_setm")
    k.label("attn_tail")
    k.e("s_waitcnt lgkmcnt(0)")
    k.e(f"v_mfma_f32_32x32x16_bf16 {r16(OA)}, {r4(V1)}, {r4(P+4)}, {r16(OA)}")
    k.e("s_and_b32 s34, s30, 3", "s_mul_i32 s34, s34, 18", "s_lshr_b32 s35, s30, 2", "s_mul_i32 s35, s35, 4608",
        f"s_add_u32 s35, s35, {LDS_OST}", "s_movk_i32 s36, 2304",
        f"v_lshrrev_b32 v{T0+9}, 4, v2", f"v_mul_u32_u24 v{T0+9}, s36, v{T0+9}", f"v_and_b32 v{T0+8}, 15, v2",
        f"v_lshl_add_u32 v{T0+9}, v{T0+8}, 4, v{T0+9}", f"v_add_u32 v{T0+9}, s35, v{T0+9}")
    k.e(f"v_lshl_add_u32 v{T0+6}, v3, 2, s34", f"v_add_u32 v{T0+7}, 2, v{T0+6}")
    for r in (T0 + 6, T0 + 7):
        k.e(f"v_lshrrev_b32 v{T0+8}, 3, v{r}", f"v_and_b32 v{r}, 7, v{r}", f"v_lshl_add_u32 v{r}, v{r}, 1, v{T0+9}",
            f"v_lshl_add_u32 v{r}, v{T0+8}, 8, v{r}")
    k.e(f"v_cndmask_b32 v{T0+5}, v{OA+10}, v{OA+12}, s[44:45]")
    k.e(f"v_cmp_le_f32 vcc, {hex(f2u(2.0**-40))}, v{T0+5}")
    k.e("s_cmp_eq_u32 s32, 11", "s_cbranch_scc1 attn_fin")
    k.e("s_cmp_eq_u64 vcc, -1", "s_cbranch_scc1 attn_fin")
    k.e("s_mov_b32 s32, 10", f"v_mov_b32 v{T0+1}, 0", "s_branch attn_setm")
    k.label("attn_fin")
    k.e(f"v_rcp_f32 v{T0+5}, v{T0+5}")
    for i in range(10):
        k.e(f"v_mul_f32 v{OA+i}, v{T0+5}, v{OA+i}")
    for i in range(5):
        k.e(f"v_cvt_pk_bf16_f32 v{P+i}, v{OA+2*i}, v{OA+2*i+1}")
    k.e(f"ds_write_b32 v{T0+6}, v{P}", f"ds_write_b32 v{T0+7}, v{P+1}",
        f"ds_write_b32 v{T0+6}, v{P+2} offset:256", f"ds_write_b32 v{T0+7}, v{P+3} offset:256",
        ex(0xffffffff), f"ds_write_b32 v{T0+6}, v{P+4} offset:512", ex(-1))
    wo_dma_setup(k)
    k.e("s_waitcnt lgkmcnt(0)", "s_barrier")
    k.stamp(2)
    publish_o(k, "oa", pre=wo_dma)


def kv_dma(k, a, b):
    for i in range(a, b):
        k.e(f"s_add_u32 m0, s34, {i*4096}", f"s_add_u32 s36, s35, {i*4096}",
            "buffer_load_dwordx4 v11, s[16:19], s36 offen lds")


def helper_dma0(k):
    k.e("s_setprio 3")
    k.e("s_sub_u32 s31, s30, 8", "s_lshl_b32 s34, s31, 10", "s_lshr_b32 s35, s2, 3", "s_add_u32 s35, s35, s2", "s_and_b32 s35, s35, 15",
        f"s_mul_i32 s35, s35, {GRP}", "s_add_u32 s35, s35, s34", f"s_add_u32 s35, s35, {WS_KV}")
    kv_dma(k, 0, 12)
    k.e("v_and_b32 v12, 15, v1", "v_lshlrev_b32 v12, 2, v12", f"v_add_u32 v12, {LDS_RDY}, v12", "v_mov_b32 v13, 0", "ds_write_b32 v12, v13")


def helper_pack(k):
    def dma(a, b):
        kv_dma(k, a, b)
    k.e("s_waitcnt vmcnt(5) lgkmcnt(0)", "s_barrier")
    dma(12, 37)
    k.e("s_cmp_lg_u32 s31, 0", "s_cbranch_scc1 mega_h_nolast")
    k.e(ex(0xffff))
    dma(37, 38)
    k.e(ex(-1))
    k.label("mega_h_nolast")
    k.e("s_lshl_b32 s34, s31, 6", "v_add_u32 v12, s34, v1", "v_min_u32 v12, 161, v12", "v_lshlrev_b32 v12, 7, v12",
        "s_mul_i32 s34, s47, 20736")
    k.e("s_lshl_b32 s50, s31, 5", "s_add_u32 s50, s50, s47",
        "s_cmp_ge_u32 s50, 54", "s_cselect_b32 s53, 1, 0",
        "s_mul_i32 s51, s53, 54", "s_sub_u32 s51, s50, s51",
        "s_mul_i32 s54, s51, 57", "s_lshr_b32 s54, s54, 10",
        "s_mul_i32 s52, s54, 18", "s_sub_u32 s52, s51, s52",
        "s_cmp_eq_u32 s53, 0",
        "s_cselect_b32 s20, s4, s6", "s_cselect_b32 s21, s5, s7", f"s_mov_b32 s22, {hex(W1B)}", "s_mov_b32 s23, 0x00020000",
        "s_movk_i32 s56, 1152", "s_cselect_b32 s56, 9216, s56",
        "s_movk_i32 s57, 1152", "s_cselect_b32 s57, s57, 663552", "s_mul_i32 s57, s57, s46",
        "s_mul_i32 s58, s54, 192", "s_mul_i32 s58, s58, s56", "s_add_u32 s57, s57, s58",
        "s_lshl_b32 s58, s52, 6", "s_add_u32 s57, s57, s58")
    k.e("s_add_u32 s58, s53, s54", "s_cmp_eq_u32 s58, 3", "s_cselect_b32 s58, 2, 1", "s_cselect_b32 s59, -5, 1",
        "s_mul_i32 s58, s58, s56", "s_mul_i32 s59, s59, s56", "s_mul_i32 s60, s56, 25")
    k.e("v_lshrrev_b32 v2, 4, v1", "v_lshlrev_b32 v2, 3, v2", "v_mul_u32_u24 v15, s56, v2", "v_and_b32 v3, 15, v1",
        "v_lshl_add_u32 v15, v3, 2, v15", "v_lshlrev_b32 v8, 2, v3",
        "s_mov_b32 s64, 0x05040100", "s_mov_b32 s65, 0x07060302")
    k.e(f"s_mul_i32 s62, s52, {STREAM}", f"s_mul_i32 s63, s52, {2*STREAM}", f"s_sub_u32 s63, s63, {24*STREAM - 2048}",
        "s_cmp_lt_u32 s52, 12", "s_cselect_b32 s62, s62, s63", "s_movk_i32 s61, 1024", f"s_cselect_b32 s61, s61, {STREAM}",
        "s_mul_i32 s63, s53, 3", "s_add_u32 s63, s63, s54", f"s_mul_i32 s63, s63, {6*3072}", "s_add_u32 s62, s62, s63",
        f"s_mul_i32 s63, s46, {1296*1024}", "s_add_u32 s62, s62, s63", f"s_add_u32 s62, s62, {WS_W}",
        "s_add_u32 s61, s61, s62")
    for i in range(4):
        k.e(f"v_mov_b32 v{PS+8+i}, 0x3f803f80")
    k.e("s_waitcnt vmcnt(0)", "s_barrier")
    k.e("buffer_load_dword v13, v12, s[24:27], s34 offen")
    k.e("s_cmp_ge_u32 s50, 108", "s_cbranch_scc1 mega_h_nounit")
    for ss in range(6):
        for jj in range(8):
            k.e(f"buffer_load_dword v{PIN+8*ss+jj}, v15, s[20:23], s57 offen",
                f"s_add_u32 s57, s57, s{60 if jj == 7 else (59 if jj == 3 else 58)}")
    for ss in range(6):
        k.e(f"s_waitcnt vmcnt({40 - 8*ss + 2*ss})")
        for e in range(2):
            for q in range(4):
                k.e(f"v_perm_b32 v{POUT+8*ss+4*e+q}, v{PIN+8*ss+2*q+1}, v{PIN+8*ss+2*q}, s{64+e}")
            k.e(f"buffer_store_dwordx4 {r4(POUT+8*ss+4*e)}, v11, s[16:19], s{62-e} offen sc1", f"s_add_u32 s{62-e}, s{62-e}, 3072")
    k.e("s_cmp_lg_u32 s53, 0", "s_cbranch_scc1 mega_h_nounit")
    for ss in range(6):
        for e in range(2):
            k.e(f"v_mfma_f32_16x16x32_bf16 {r4(PS+4*e)}, {r4(PS+8)}, {r4(POUT+8*ss+4*e)}, {r4(PS+4*e) if ss else 0}")
    k.e("s_mul_i32 s58, s54, 18432", "s_mul_i32 s59, s46, 2304", "s_add_u32 s58, s58, s59", "s_lshl_b32 s59, s52, 7",
        "s_add_u32 s58, s58, s59", f"s_add_u32 s58, s58, {WS_SP}")
    k.e(ex(0xffff), f"buffer_store_dword v{PS}, v8, s[16:19], s58 offen sc1",
        f"buffer_store_dword v{PS+4}, v8, s[16:19], s58 offen offset:64 sc1", ex(-1))
    k.label("mega_h_nounit")
    k.e("s_waitcnt vmcnt(0)", "s_lshl_b32 s34, s46, 9", f"s_add_u32 s36, s34, {FP}", "s_lshr_b32 s35, s47, 3", "s_lshl_b32 s35, s35, 7",
        "s_add_u32 s34, s36, s35", "s_lshl_b32 s35, s29, 2", "s_add_u32 s34, s34, s35")
    k.stamp(1)
    arrive(k, 0, 4, 34, "p")
    k.e("v_bfe_u32 v12, v1, 3, 2", "v_lshlrev_b32 v12, 7, v12", "v_and_b32 v13, 7, v1", "v_lshl_add_u32 v12, v13, 2, v12")
    poll(k, 12, 36, 14, "p", sleep=64)
    k.e("s_lshl_b32 s34, s31, 6", "v_add_u32 v12, s34, v1", "v_add_u32 v13, 256, v12", "v_min_u32 v13, 323, v13",
        "v_lshlrev_b32 v14, 7, v12", "v_lshlrev_b32 v13, 7, v13",
        f"s_mul_i32 s34, s46, {1296*1024}", "s_mul_i32 s35, s47, 41472", "s_add_u32 s34, s34, s35", f"s_add_u32 s34, s34, {WS_W}",
        "buffer_load_dword v14, v14, s[16:19], s34 offen sc1", "buffer_load_dword v13, v13, s[16:19], s34 offen sc1")
    k.e("v_min_u32 v12, 143, v12", "v_lshlrev_b32 v12, 4, v12", "s_mul_i32 s34, s46, 2304", f"s_add_u32 s34, s34, {WS_SP}")
    for i in range(3):
        k.e(f"buffer_load_dwordx4 {r4(PIN+4*i)}, v12, s[16:19], s34 offen sc1", "s_add_u32 s34, s34, 18432")
    k.e(f"v_add_u32 v12, {LDS_S}, v12", "s_waitcnt vmcnt(0)")
    for i in range(1, 3):
        for c in range(4):
            k.e(f"v_add_f32 v{PIN+c}, v{PIN+c}, v{PIN+4*i+c}")
    k.e(f"ds_write_b128 v12, {r4(PIN)}", f"v_mov_b32 v12, {LDS_RDY}", "v_mov_b32 v13, 1", "ds_write_b32 v12, v13")


def wo_dma_setup(k):
    k.e("s_movk_i32 s40, 6554", "s_movk_i32 s41, 1152")
    for i in range(5):
        dma_slot_calc(k, i, 32, 33, 34, 35)
        k.e(f"v_mul_u32_u24 v{16+i}, s41, v35", f"v_lshl_add_u32 v{16+i}, v34, 4, v{16+i}")
    k.e("s_mul_i32 s32, s29, 144", "s_mul_i32 s42, s30, 36864", "s_add_u32 s42, s42, s32",
        "s_mul_i32 s43, s30, 5120", f"s_add_u32 s43, s43, {LDS_WO}")


def wo_dma(k):
    def wdma(grp):
        for i in range(5):
            k.e(f"s_add_u32 m0, s43, {grp*8*5120 + i*1024}", "s_nop 0", f"buffer_load_dwordx4 v{16+i}, s[24:27], s42 offen lds")
        k.e(f"s_add_u32 s42, s42, {8*36864}")
    wdma(0)
    wdma(1)
    k.e("s_cmp_ge_u32 s30, 2", "s_cbranch_scc1 mega_o_skip")
    wdma(2)
    k.label("mega_o_skip")
    k.e("s_cmp_lt_u32 s30, 4", "s_cbranch_scc1 mega_r_skip")
    srd(k, 48, 10, XB)
    k.e("s_sub_u32 s34, s30, 4", "s_mul_i32 s44, s34, 2560", f"s_add_u32 s44, s44, {LDS_RES}",
        "s_lshl_b32 s35, s28, 2", "s_add_u32 s35, s35, s34", "s_mul_i32 s35, s35, 18432", "s_add_u32 s35, s35, s32")
    for i in range(3):
        if i == 2:
            k.e(ex(0xffffffff))
        k.e(f"s_add_u32 m0, s44, {i*1024}", "s_nop 0", f"buffer_load_dwordx4 v{16+i}, s[48:51], s35 offen lds")
    k.e(ex(-1))
    k.label("mega_r_skip")


def oproj(k):
    k.e("v_and_b32 v2, 15, v1", "v_lshrrev_b32 v3, 4, v1")
    k.e("v_lshrrev_b32 v32, 2, v2",
        "v_and_b32 v33, 1, v3", "v_lshlrev_b32 v33, 2, v33", "v_add_u32 v32, v32, v33",
        "v_lshl_add_u32 v32, v3, 3, v32", "v_xor_b32 v33, 4, v32", "s_movk_i32 s40, 160",
        "v_and_b32 v34, 3, v2", "v_lshlrev_b32 v34, 3, v34", f"v_add_u32 v34, {LDS_WO}, v34",
        "v_mad_u32_u24 v28, v32, s40, v34", "v_mad_u32_u24 v29, v33, s40, v34",
        "v_add_u32 v30, 61440, v28", "v_add_u32 v31, 61440, v29")
    k.e("s_mul_i32 s44, s31, 2560", f"s_add_u32 s44, s44, {LDS_RES}",
        "v_and_b32 v21, 8, v2", "v_lshrrev_b32 v21, 1, v21", "v_xor_b32 v21, v21, v2", "v_mul_u32_u24 v21, s40, v21",
        "v_lshl_add_u32 v21, v3, 3, v21", "v_add_u32 v21, s44, v21")
    k.e("v_and_b32 v22, 1, v3", "v_lshlrev_b32 v22, 9, v22", "v_lshrrev_b32 v32, 1, v3", "v_lshl_add_u32 v22, v32, 8, v22",
        "v_lshl_add_u32 v22, v2, 4, v22")
    k.e("v_and_b32 v23, 7, v1", "v_lshlrev_b32 v23, 2, v23")
    for r in range(OACC, OACC + 20):
        k.e(f"v_mov_b32 v{r}, 0")
    k.e("s_lshl_b32 s48, s28, 2", "s_add_u32 s48, s48, s31", "s_mul_i32 s49, s48, 18432")
    k.e("s_waitcnt lgkmcnt(0)", "s_barrier")
    k.stamp(2)
    publish_o(k, "ob")
    k.e("s_lshl_b32 s34, s28, 7", f"s_add_u32 s34, s34, {F1}")
    k.e("s_cmp_lg_u32 s31, 0", "s_cbranch_scc1 mega_polld_o")
    poll(k, 23, 34, 32, "o", sleep=1)
    k.e("s_barrier")
    k.stamp(3)
    k.e(f"s_add_u32 s34, s49, {WS_O}")
    for s in range(18):
        if s % 4 == 0 and s:
            k.e("s_add_u32 s34, s34, 4096")
        k.e(f"buffer_load_dwordx4 v[{OX0+4*s}:{OX0+4*s+3}], v11, s[16:19], s34 offen offset:{1024*(s%4)} sc1")

    def rd(t, s):
        a0, a1 = (28, 29) if s < 12 else (30, 31)
        off = (s if s < 12 else s - 12) * 5120 + 32 * t
        k.e(f"ds_read_b64_tr_b16 v[{OWF+4*t}:{OWF+4*t+1}], v{a0} offset:{off}",
            f"ds_read_b64_tr_b16 v[{OWF+4*t+2}:{OWF+4*t+3}], v{a1} offset:{off}")
    for t in range(5):
        rd(t, 0)
    for s in range(18):
        last = s == 17
        for t in range(5):
            k.e(f"s_waitcnt lgkmcnt({2*(4-t) if last else 8})" + (f" vmcnt({17-s})" if t == 0 else ""))
            a = r4(OACC + 4 * t)
            k.e(f"v_mfma_f32_16x16x32_bf16 {a}, {r4(OWF+4*t)}, {r4(OX0+4*s)}, {a}")
            if not last:
                rd(t, s + 1)
    for t in range(5):
        k.e(f"ds_read_b64 v[{36+2*t}:{37+2*t}], v21 offset:{32*t}")
    k.e("v_mov_b32 v6, 0", "v_mov_b32 v7, 0", "v_mov_b32 v34, 0x3f803f80",
        "s_mul_i32 s35, s29, 2304", "s_add_u32 s35, s35, s49", f"s_add_u32 s35, s35, {WS_H}")
    for t in range(5):
        a = OACC + 4 * t
        d = 48 + 2 * t
        k.e(f"s_waitcnt lgkmcnt({4-t})")
        k.e(f"v_lshlrev_b32 v24, 16, v{36+2*t}", f"v_and_b32 v25, 0xffff0000, v{36+2*t}",
            f"v_lshlrev_b32 v26, 16, v{37+2*t}", f"v_and_b32 v27, 0xffff0000, v{37+2*t}")
        for i in range(4):
            k.e(f"v_add_f32 v{a+i}, v{a+i}, v{24+i}")
        k.e(f"v_cvt_pk_bf16_f32 v{d}, v{a}, v{a+1}", f"v_cvt_pk_bf16_f32 v{d+1}, v{a+2}, v{a+3}")
        if t == 4:
            k.e(ex(0xffffffff))
        k.e(f"v_dot2c_f32_bf16 v6, v{d}, v34", f"v_dot2c_f32_bf16 v7, v{d}, v{d}",
            f"v_dot2c_f32_bf16 v6, v{d+1}, v34", f"v_dot2c_f32_bf16 v7, v{d+1}, v{d+1}")
        if t == 4:
            k.e(ex(-1))
        if t % 2 == 1 or t == 4:
            b = 48 + 4 * (t // 2)
            k.e(f"v_permlane16_swap_b32 v{b}, v{b+2}", f"v_permlane16_swap_b32 v{b+1}, v{b+3}")
            if t == 4:
                k.e(ex(0xffff))
            k.e(f"buffer_store_dwordx4 {r4(b)}, v22, s[16:19], s35 offen offset:{1024*(t//2)} sc1")
            if t == 4:
                k.e(ex(-1))
    reduce_g_add(k, [6, 7], [32, 33])
    k.e("v_lshlrev_b32 v32, 4, v2", "s_lshl_b32 s35, s48, 10", "s_lshr_b32 s34, s29, 1", "s_lshl_b32 s34, s34, 8",
        "s_add_u32 s35, s35, s34", "s_and_b32 s34, s29, 1", "s_lshl_b32 s34, s34, 3", "s_add_u32 s35, s35, s34",
        f"s_add_u32 s35, s35, {WS_ST}", ex(0xffff))
    k.e("buffer_store_dwordx2 v[6:7], v32, s[16:19], s35 offen sc1", ex(-1))
    k.e("s_lshl_b32 s34, s28, 7", "s_lshl_b32 s35, s29, 2", "s_add_u32 s34, s34, s35", f"s_add_u32 s34, s34, {F2}", "s_waitcnt vmcnt(0)")
    arrive(k, 2, 4, 34, "h")


def acc(t, mb):
    return ACC + (t * 4 + mb) * 4


def wreg(slot, t):
    return WR + ((slot + 1) % 6) * 12 + t * 4


def wload(slot, t):
    return f"buffer_load_dwordx4 {r4(wreg(slot, t))}, v11, s[20:23], s53 offen offset:{1024*t} {WAUX}"


def ffn_ring_start(k):
    k.e(f"s_mul_i32 s34, s30, {STREAM}", f"s_mul_i32 s35, s46, {1296*1024}", "s_add_u32 s34, s34, s35", f"s_add_u32 s34, s34, {WS_W}",
        "s_add_u32 s20, s12, s34", "s_addc_u32 s21, s13, 0", f"s_mov_b32 s22, {STREAM}", "s_mov_b32 s23, 0x00020000",
        "s_mov_b32 s53, 0")
    for st in range(D - 1):
        for t in range(T):
            k.e(wload(st, t))
        k.e(f"s_add_u32 s53, s53, {T*1024}")


def ffn(k):
    k.label("ffn_join")
    k.e("s_setprio 0", "v_and_b32 v2, 15, v1", "v_lshrrev_b32 v3, 4, v1")
    k.e("v_and_b32 v12, 7, v1", "v_lshlrev_b32 v12, 2, v12", "s_lshl_b32 s34, s47, 7", f"s_add_u32 s34, s34, {F2}")
    k.e("s_cmp_lg_u32 s30, 0", "s_cbranch_scc1 mega_polld_h")
    k.e("s_sleep 24")
    poll(k, 12, 34, 14, "h", sleep=2)
    k.e("s_barrier")
    k.stamp(4)
    k.e("s_lshl_b32 s34, s47, 12", f"s_add_u32 s34, s34, {WS_ST}")
    for mb in range(4):
        k.e(f"buffer_load_dwordx4 {r4(XB0+4*mb)}, v11, s[16:19], s34 offen offset:{1024*mb} sc1")
    k.e("s_lshl_b32 s34, s47, 2", "s_and_b32 s35, s30, 3", "s_add_u32 s34, s34, s35", "s_mul_i32 s41, s34, 18432",
        "s_lshr_b32 s35, s30, 2", "s_lshl_b32 s35, s35, 10", "s_add_u32 s41, s41, s35", f"s_add_u32 s41, s41, {WS_H}",
        "s_lshl_b32 s42, s30, 10")
    k.e("s_cmp_ge_u32 s30, 8", "s_cbranch_scc1 ffn_nodma0")
    for i in range(6):
        k.e(f"s_add_u32 m0, s42, {i*8192}", f"s_add_u32 s36, s41, {i*2048}", "buffer_load_dwordx4 v11, s[16:19], s36 offen sc1 lds")
    k.e("s_waitcnt vmcnt(6)", "s_branch ffn_st")
    k.label("ffn_nodma0")
    k.e("s_waitcnt vmcnt(0)")
    k.label("ffn_st")
    k.e("s_lshl_b32 s34, s30, 7", f"s_add_u32 s34, s34, {LDS_S}", "v_lshlrev_b32 v13, 4, v3", "v_add_u32 v12, s34, v13",
        "s_lshl_b32 s34, s30, 6", f"s_add_u32 s34, s34, {LDS_S + 1536}", "v_add_u32 v13, s34, v13",
        f"ds_read_b128 {r4(XB0+16)}, v12", f"ds_read_b128 {r4(XB0+20)}, v12 offset:64", f"ds_read_b128 {r4(XB0+24)}, v13")
    for mb in range(4):
        b = XB0 + 4 * mb
        k.e(f"v_add_f32 v{4+mb}, v{b}, v{b+2}", f"v_add_f32 v{ACC+mb}, v{b+1}, v{b+3}")
    reduce_g_add(k, [4, 5, 6, 7] + [ACC + i for i in range(4)], list(range(ACC + 4, ACC + 12)))
    for mb in range(4):
        k.e(f"v_mul_f32 v{4+mb}, {hex(f2u(-1/576))}, v{4+mb}")
    k.e("s_and_b32 s34, s46, 3", "v_mov_b32 v8, v4", f"v_mov_b32 v9, v{ACC}")
    for mb in range(1, 4):
        k.e(f"s_cmp_eq_u32 s34, {mb}", "s_cselect_b64 vcc, -1, 0", f"v_cndmask_b32 v8, v8, v{4+mb}, vcc", f"v_cndmask_b32 v9, v9, v{ACC+mb}, vcc")
    k.e(f"v_mul_f32 v9, {hex(f2u(1/576))}, v9", "v_fma_f32 v8, -v8, v8, v9", "v_max_f32 v8, 0, v8",
        f"v_add_f32 v8, {hex(f2u(1e-5))}, v8", "v_rsq_f32 v8, v8")
    k.e("s_waitcnt lgkmcnt(0)")
    for t in range(T):
        for mb in range(4):
            for i in range(4):
                k.e(f"v_mul_f32 v{acc(t,mb)+i}, v{4+mb}, v{XB0+16+4*t+i}")
    k.e("s_add_u32 s41, s41, 12288", "s_add_u32 s42, s42, 49152")
    k.e("s_waitcnt vmcnt(3)", "s_barrier")
    k.stamp(5)
    k.e("v_mov_b32 v10, v11", "s_mov_b32 s31, 0")
    k.label("ffn_start")
    for mb in range(4):
        k.e(f"ds_read_b128 {r4(XB0+4*mb)}, v10 offset:{1024*mb}")
    k.e(".p2align 6")
    k.label("ffn_loop")
    k.e("s_cmp_lg_u32 s31, 1", "s_cbranch_scc1 ffn_nodma")
    for i in range(2):
        k.e(f"s_add_u32 m0, s42, {i*12288}", f"s_add_u32 s36, s41, {i*3072}", "buffer_load_dwordx4 v11, s[16:19], s36 offen sc1 lds")
    k.label("ffn_nodma")
    for u in range(D):
        xb = XB0 + 16 * (u % 2)
        xn = XB0 + 16 * ((u + 1) % 2)
        fill = [f"ds_read_b128 {r4(xn+4*mb)}, v10 offset:{(u+1)*4096 + 1024*mb}" for mb in range(4)]
        fill += [wload((u + D - 1) % D, t) for t in range(T)]
        fill += [f"s_add_u32 s53, s53, {T*1024}"]
        k.e(f"s_waitcnt vmcnt({4*T}) lgkmcnt(0)")
        if u == D - 1:
            k.e("s_cmp_ge_u32 s31, 2", "s_cbranch_scc1 ffn_nobar", "s_barrier")
            k.label("ffn_nobar")
        for t in range(T):
            for mb in range(4):
                a = r4(acc(t, mb))
                k.e(f"v_mfma_f32_16x16x32_bf16 {a}, {r4(wreg(u, t))}, {r4(xb+4*mb)}, {a}")
                if fill:
                    k.e(fill.pop(0))
    k.e(f"v_add_u32 v10, {D*4096}, v10", "s_add_u32 s31, s31, 1",
        "s_cmp_eq_u32 s31, 3", "s_cbranch_scc1 ffn_ep1",
        "s_cmp_lt_u32 s31, 6", "s_cbranch_scc1 ffn_loop")
    k.stamp(7)
    k.e("s_waitcnt lgkmcnt(0)")
    k.e(f"s_mul_i32 s34, s46, {XB}", "s_mul_i32 s33, s47, 73728", f"s_add_u32 s33, s33, {WS_P}", "s_add_u32 s34, s34, s33",
        "s_lshl_b32 s35, s30, 10", "s_add_u32 s36, s34, s35",
        "s_cmp_ge_u32 s30, 6", "s_movk_i32 s37, 12288", f"s_cselect_b32 s37, {12288 + 18432 - 6144}, s37", "s_add_u32 s37, s37, s36")
    for mb in range(4):
        d = XB0 + 4 * mb
        a, b = acc(0, mb), acc(1, mb)
        for i in range(4):
            k.e(f"v_cvt_pk_bf16_f32 v{d+i}, v{a+i}, v{b+i}")
        k.e(f"buffer_store_dwordx4 {r4(d)}, v11, s[16:19], s36 offen sc1", "s_add_u32 s36, s36, 18432")
    for h in range(2):
        d = XB0 + 16 + 4 * h
        a, b = acc(2, 2 * h), acc(2, 2 * h + 1)
        k.e(f"v_cvt_pk_bf16_f32 v{d}, v{a}, v{a+1}", f"v_cvt_pk_bf16_f32 v{d+1}, v{a+2}, v{a+3}",
            f"v_cvt_pk_bf16_f32 v{d+2}, v{b}, v{b+1}", f"v_cvt_pk_bf16_f32 v{d+3}, v{b+2}, v{b+3}")
        k.e(f"buffer_store_dwordx4 {r4(d)}, v11, s[16:19], s37 offen sc1", "s_add_u32 s37, s37, 36864")
    k.e("s_lshl_b32 s38, s47, 9", f"s_add_u32 s38, s38, {F3}", "s_lshr_b32 s36, s30, 2", "s_lshl_b32 s35, s36, 7", "s_add_u32 s38, s38, s35",
        "s_lshl_b32 s35, s46, 2", "s_add_u32 s34, s38, s35",
        "s_lshl_b32 s44, s36, 2", f"s_add_u32 s44, s44, {LDS_CNT + 12}", "s_waitcnt vmcnt(0)")
    arrive(k, 0, 4, 34, "r", cnt_sgpr=44)
    k.e("s_add_u32 s44, s44, 12", "v_mov_b32 v15, s44")
    k.e("s_and_b32 s35, s30, 3", "s_cmp_lg_u32 s35, 3", "s_cbranch_scc1 mega_red")
    k.e("v_and_b32 v12, 7, v1", "v_lshlrev_b32 v12, 2, v12")
    poll(k, 12, 38, 14, "r", sleep=2)
    k.e("v_mov_b32 v13, 1", "ds_write_b32 v15, v13", "s_waitcnt lgkmcnt(0)", "s_branch mega_fin")
    k.label("mega_red")
    k.e(
        "s_lshl_b32 s37, s36, 2", "s_lshl_b32 s39, s35, 1", "s_add_u32 s37, s37, s39",
        "s_lshl_b32 s39, s36, 1", "s_add_u32 s39, s39, 12", "s_cmp_eq_u32 s35, 2", "s_cselect_b32 s37, s39, s37",
        "s_lshr_b32 s39, s46, 2", "s_add_u32 s37, s37, s39",
        "s_and_b32 s39, s46, 3",
        "s_mul_i32 s34, s39, 18432", "s_lshl_b32 s41, s37, 10", "s_add_u32 s34, s34, s41")
    k.e("s_sub_u32 s41, s37, 12", "s_lshl_b32 s41, s41, 11", "s_cmp_ge_u32 s37, 15", "s_movk_i32 s42, 12288",
        f"s_cselect_b32 s42, {12288 + 18432 - 6144}, s42", "s_add_u32 s41, s41, s42", "s_lshr_b32 s42, s39, 1", "s_mul_i32 s42, s42, 36864",
        "s_add_u32 s41, s41, s42", "s_and_b32 s42, s39, 1", "s_lshl_b32 s42, s42, 3", "s_add_u32 s41, s41, s42",
        "s_mov_b32 s43, s35", "s_cmp_eq_u32 s35, 2", "s_cselect_b32 s34, s41, s34", "s_cselect_b32 s42, 1024, 8",
        "s_add_u32 s33, s33, s34", "s_add_u32 s42, s42, s33")
    k.e("s_lshl_b32 s35, s37, 2", "s_add_u32 s35, s35, s39", "s_lshl_b32 s35, s35, 10", "v_add_u32 v13, s35, v11",
        f"ds_read_b128 {r4(WR+32)}, v13")
    srd(k, 20, 14, XB)
    k.e("s_lshl_b32 s35, s47, 2", "s_add_u32 s35, s35, s39", "s_mul_i32 s35, s35, 18432", "s_lshl_b32 s37, s37, 6",
        "s_add_u32 s37, s37, s35", "s_movk_i32 s35, 1152", "v_mul_u32_u24 v9, s35, v2", "v_lshl_add_u32 v9, v3, 4, v9")
    k.e("v_mov_b32 v5, 0x00003f80", "v_mov_b32 v6, 0x3f800000")
    for i in range(8):
        k.e(f"v_mov_b32 v{ACC+i}, 0")
    k.e(f"s_mov_b32 s3, {SPIN*8}")
    k.label("mega_lspin")
    k.e("ds_read_b32 v14, v15", "s_waitcnt lgkmcnt(0)", "v_readfirstlane_b32 s38, v14", "s_cmp_lg_u32 s38, 0", "s_cbranch_scc1 mega_lspind",
        "s_sleep 1", "s_sub_u32 s3, s3, 1", "s_cbranch_scc0 mega_lspin")
    k.label("mega_lspind")
    for j in range(8):
        k.e(f"buffer_load_dwordx2 v[{WR+4*j}:{WR+4*j+1}], v11, s[16:19], s33 offen sc1", f"s_add_u32 s33, s33, {XB}",
            f"buffer_load_dwordx2 v[{WR+4*j+2}:{WR+4*j+3}], v11, s[16:19], s42 offen sc1", f"s_add_u32 s42, s42, {XB}")
    k.e("s_waitcnt lgkmcnt(0)")
    for i in range(4):
        k.e(f"v_lshlrev_b32 v{ACC+8+2*i}, 16, v{WR+32+i}", f"v_and_b32 v{ACC+9+2*i}, 0xffff0000, v{WR+32+i}")
    for j in range(8):
        k.e(f"s_waitcnt vmcnt({14-2*j})")
        for i in range(4):
            k.e(f"v_lshlrev_b32 v{ACC+16+2*i}, 16, v{WR+4*j+i}", f"v_and_b32 v{ACC+17+2*i}, 0xffff0000, v{WR+4*j+i}")
        for i in range(8):
            k.e(f"v_add_f32 v{ACC+i}, v{ACC+i}, v{ACC+16+i}")
    k.e("s_cmp_eq_u32 s43, 2", "s_cbranch_scc1 mega_red_s")
    for i in range(8):
        k.e(f"v_fma_f32 v{ACC+8+i}, v{ACC+i}, v8, v{ACC+8+i}")
    k.e("s_branch mega_red_o")
    k.label("mega_red_s")
    for i in range(8):
        k.e(f"v_fma_f32 v{ACC+8+i}, v{ACC+(i//2)+4*(i%2)}, v8, v{ACC+8+i}")
    k.label("mega_red_o")
    for i in range(4):
        k.e(f"v_cvt_pk_bf16_f32 v{XB0+i}, v{ACC+8+2*i}, v{ACC+9+2*i}")
    k.e(f"buffer_store_dwordx4 {r4(XB0)}, v9, s[20:23], s37 offen")
    k.label("mega_fin")
    k.stamp_flush(1, 9, 16, 30, wpw=16)
    if os.environ.get("DBGOUT"):
        k.e("s_cmp_lg_u32 s2, 5", "s_cbranch_scc1 mega_end", "s_cmp_lg_u32 s30, 8", "s_cbranch_scc1 mega_end",
            "s_load_dwordx2 s[4:5], s[0:1], 72", "s_waitcnt lgkmcnt(0)", "s_nop 0")
        srd(k, 20, 4, 256)
        for i in range(1, 9):
            k.e(f"s_sub_u32 s34, s{71+2*i}, s71", "v_mov_b32 v4, s34", f"buffer_store_dword v4, v0, s[20:23], 0 offen offset:{4*i-4}",
                f"s_sub_u32 s34, s{70+2*i}, s70", "v_mov_b32 v5, s34", f"buffer_store_dword v5, v0, s[20:23], 0 offen offset:{4*i+28}", "s_waitcnt vmcnt(0)")
    k.e("s_endpgm")
    k.label("ffn_ep1")
    k.e("s_waitcnt lgkmcnt(0)")
    k.e("s_lshl_b32 s34, s30, 12", f"s_add_u32 s34, s34, {LDS_H}", "v_add_u32 v12, s34, v11")
    k.e("s_lshr_b32 s34, s30, 1", "s_lshl_b32 s34, s34, 12", "s_and_b32 s35, s30, 1", "s_lshl_b32 s35, s35, 3",
        "s_add_u32 s34, s34, s35", f"s_add_u32 s34, s34, {LDS_H + 49152}", "v_add_u32 v13, s34, v11")
    for mb in range(4):
        d = XB0 + 4 * mb
        a, b = acc(0, mb), acc(1, mb)
        for i in range(4):
            k.e(f"v_cvt_pk_bf16_f32 v{d+i}, v{a+i}, v{b+i}")
        for i in range(4):
            k.e(f"v_pk_max_i16 v{d+i}, v{d+i}, 0")
        k.e(f"ds_write_b128 v12, {r4(d)} offset:{mb*1024}")
    for mb in range(4):
        a = acc(2, mb)
        d = XB0 + 16 + 2 * mb
        k.e(f"v_cvt_pk_bf16_f32 v{d}, v{a}, v{a+1}", f"v_cvt_pk_bf16_f32 v{d+1}, v{a+2}, v{a+3}",
            f"v_pk_max_i16 v{d}, v{d}, 0", f"v_pk_max_i16 v{d+1}, v{d+1}, 0",
            f"ds_write_b64 v13, v[{d}:{d+1}] offset:{mb*1024}")
    for r in range(ACC, ACC + 16 * T):
        k.e(f"v_mov_b32 v{r}, 0")
    k.e("s_cmp_lt_u32 s30, 4", "s_cbranch_scc0 ffn_pr1", "s_setprio 2")
    k.label("ffn_pr1")
    k.e("s_and_b32 s34, s30, 12", "s_cmp_eq_u32 s34, 4", "s_cbranch_scc0 ffn_pr2", "s_setprio 1")
    k.label("ffn_pr2")
    k.e("s_waitcnt lgkmcnt(0)", "s_barrier")
    k.stamp(6)
    k.e("s_branch ffn_start")


def gen_mega():
    k = Kernel("mega_kernel", vgprs=168)
    k.e("s_cmp_ge_u32 s2, 256", "s_cbranch_scc1 mega_end")
    k.e("s_load_dwordx4 s[4:7], s[0:1], 48", "s_load_dwordx2 s[8:9], s[0:1], 32", "s_load_dwordx2 s[10:11], s[0:1], 0",
        "s_load_dwordx2 s[12:13], s[0:1], 80", "s_load_dwordx2 s[14:15], s[0:1], 64")
    k.stamp(0)
    k.e("v_and_b32 v1, 63, v0", "v_and_b32 v2, 31, v0", "v_bfe_u32 v3, v0, 5, 1", "v_lshrrev_b32 v7, 6, v0",
        "s_nop 0", "v_readfirstlane_b32 s30, v7")
    k.e("v_lshlrev_b32 v11, 4, v1")
    k.e("s_movk_i32 s40, 18432", "v_lshrrev_b32 v8, 4, v2", "v_mul_u32_u24 v8, s40, v8", "v_and_b32 v9, 15, v2",
        "v_lshl_add_u32 v8, v9, 4, v8", "v_lshl_add_u32 v9, v3, 8, v8",
        "v_lshlrev_b32 v10, 3, v1", f"v_mov_b32 v15, {LDS_ROLE}")
    k.e("s_waitcnt lgkmcnt(0)")
    srd(k, 16, 12, WS_END)
    srd(k, 24, 8, WQB)
    k.e("s_cmp_lg_u32 s30, 0", "s_cbranch_scc1 mega_noticket")
    k.e("s_getreg_b32 s46, hwreg(HW_REG_XCC_ID, 0, 4)", "v_mov_b32 v12, 0", ex(1), "s_mov_b32 s3, 8")
    k.label("mega_ticket")
    k.e("s_and_b32 s46, s46, 7", "s_lshl_b32 s34, s46, 7", f"s_add_u32 s34, s34, {FT}", "v_mov_b32 v13, 1",
        "buffer_atomic_add v13, v12, s[16:19], s34 offen sc0 sc1", "s_waitcnt vmcnt(0)", "v_readfirstlane_b32 s47, v13",
        "s_add_u32 s46, s46, 1", "s_sub_u32 s3, s3, 1", "s_cbranch_scc1 mega_ticketd", "s_cmp_ge_u32 s47, 32", "s_cbranch_scc1 mega_ticket")
    k.label("mega_ticketd")
    k.e("s_sub_u32 s46, s46, 1", "s_lshl_b32 s47, s47, 3", "s_add_u32 s47, s47, s46", "v_mov_b32 v13, s47", "ds_write_b32 v15, v13",
        ex(-1), "s_waitcnt lgkmcnt(0)")
    k.label("mega_noticket")
    k.e("s_cmp_lt_u32 s30, 8", "s_cbranch_scc1 mega_nodma0")
    helper_dma0(k)
    k.label("mega_nodma0")
    k.e("s_barrier", "ds_read_b32 v13, v15", "s_waitcnt lgkmcnt(0)", "v_readfirstlane_b32 s47, v13")
    k.e("s_and_b32 s46, s47, 7", "s_lshr_b32 s47, s47, 3", "s_and_b32 s47, s47, 31", "s_and_b32 s28, s47, 24", "s_add_u32 s28, s28, s46",
        "s_and_b32 s29, s47, 7")
    k.e("s_lshr_b32 s38, s30, 2", "s_lshl_b32 s38, s38, 1", "s_lshl_b32 s39, s28, 2", "s_add_u32 s38, s38, s39",
        "s_mul_i32 s33, s38, 18432", "s_and_b32 s38, s30, 3", "s_lshl_b32 s39, s29, 2", "s_add_u32 s38, s38, s39",
        "s_mul_i32 s37, s38, 18")
    k.e("s_cmp_ge_u32 s30, 8", "s_cbranch_scc1 mega_helper")
    k.e("s_mov_b32 s52, 0")
    attention(k)
    k.e("s_cmp_lg_u32 s52, 0", "s_cbranch_scc1 mega_ringed")
    ffn_ring_start(k)
    k.label("mega_ringed")
    k.e("s_waitcnt vmcnt(0)")
    k.stamp(3)
    k.e("s_barrier", "s_branch ffn_join")
    k.label("mega_helper")
    helper_pack(k)
    oproj(k)
    ffn_ring_start(k)
    ffn(k)
    k.label("mega_end")
    k.e("s_endpgm")
    return k
```

```python
import os
from asmlib import Kernel
from layout import *
from k_small import f2u, srd, ex, reduce_g_add, dma_slot_calc

S0, S1, OA, P, KF, V0, V1, K2F, Q, Q2E, Q2O = 16, 32, 48, 64, 72, 76, 80, 84, 88, 92, 94
T0 = 96
PIN, POUT, PS = 16, 64, 112
LDS_OST = 151808
LDS_RES = 49408
LDS_WO = 59648
LDS_H = 73728
LDS_S = 161024
LDS_RDY = 163328
LDS_CNT = 163344
LDS_ROLE = 163392
LDS_MEGA = 163408
OX0, OACC, OWF = 48, 120, 140
XB0, ACC, WR = 16, 48, 96
D = 6
T = 3
STREAM = 36 * T * 1024
SPIN = 1 << 20
WAUX = os.environ.get("WAUX", "sc1")


def r4(b):
    return f"v[{b}:{b+3}]"


def r16(b):
    return f"v[{b}:{b+15}]"


def poll(k, vaddr, soff, vtmp, tag, wide=False, sleep=2):
    lab, done = f"mega_poll_{tag}", f"mega_polld_{tag}"
    k.e(f"s_mov_b32 s3, {SPIN}")
    k.label(lab)
    if wide:
        k.e(f"buffer_load_dwordx2 v[{vtmp}:{vtmp+1}], v{vaddr}, s[16:19], s{soff} offen sc1", "s_waitcnt vmcnt(0)",
            f"v_and_b32 v{vtmp}, v{vtmp}, v{vtmp+1}")
    else:
        k.e(f"buffer_load_dword v{vtmp}, v{vaddr}, s[16:19], s{soff} offen sc1", "s_waitcnt vmcnt(0)")
    k.e(f"v_cmp_ne_u32 vcc, 0, v{vtmp}", "s_cmp_eq_u64 vcc, -1", f"s_cbranch_scc1 {done}",
        f"s_sleep {sleep}", "s_sub_u32 s3, s3, 1", f"s_cbranch_scc0 {lab}")
    k.label(done)


def set_flag(k, soff, va, vb):
    k.e(f"v_mov_b32 v{va}, 0", f"v_mov_b32 v{vb}, 1", ex(1), f"buffer_store_dword v{vb}, v{va}, s[16:19], s{soff} offen sc1", ex(-1))


def arrive(k, cnt, n, soff, tag, cnt_sgpr=None):
    if cnt_sgpr is None:
        k.e(f"v_mov_b32 v12, {LDS_CNT + 4*cnt}")
    else:
        k.e(f"v_mov_b32 v12, s{cnt_sgpr}")
    k.e("v_mov_b32 v13, 1", ex(1), "ds_add_rtn_u32 v14, v12, v13", ex(-1), "s_waitcnt lgkmcnt(0)",
        "v_readfirstlane_b32 s3, v14", f"s_cmp_lg_u32 s3, {n-1}", f"s_cbranch_scc1 mega_arr_{tag}")
    set_flag(k, soff, 12, 13)
    k.label(f"mega_arr_{tag}")


def publish_o(k, tag, pre=None):
    k.e("s_and_b32 s34, s30, 3", "s_lshr_b32 s35, s30, 2", "s_mul_i32 s36, s34, 2304", "s_mul_i32 s37, s35, 768",
        "s_add_u32 s36, s36, s37", f"s_add_u32 s36, s36, {LDS_OST}", "v_add_u32 v12, s36, v11",
        f"ds_read_b128 {r4(4)}, v12")
    k.e("s_lshl_b32 s36, s28, 2", "s_add_u32 s36, s36, s34", "s_mul_i32 s38, s36, 18432", "s_mul_i32 s39, s29, 2304",
        "s_add_u32 s38, s38, s39", "s_add_u32 s38, s38, s37", f"s_add_u32 s38, s38, {WS_O}")
    k.e("s_lshl_b32 s36, s28, 7", "s_lshl_b32 s39, s29, 2", "s_add_u32 s36, s36, s39", f"s_add_u32 s36, s36, {F1}")
    k.e("s_waitcnt lgkmcnt(0)", ex((1 << 48) - 1), f"buffer_store_dwordx4 {r4(4)}, v11, s[16:19], s38 offen sc1", ex(-1),
        "s_waitcnt vmcnt(0)")
    arrive(k, 1, 12, 36, tag)
    if pre:
        pre(k)


def attention(k):
    k.e(f"s_add_u32 s34, s33, {WS_Q}", f"s_mov_b32 s35, {WS_KM}")
    for i in range(4):
        k.e(f"s_add_u32 s38, s37, {2*i}", "s_lshr_b32 s39, s38, 3", "s_lshl_b32 s39, s39, 8", "s_and_b32 s38, s38, 7",
            "s_lshl_b32 s38, s38, 1", "s_add_u32 s38, s38, s39", "s_add_u32 s38, s38, s34")
        k.e(f"buffer_load_dword v{Q+i}, v9, s[16:19], s38 offen")
        if i == 0:
            k.e(f"buffer_load_dword v{T0}, v8, s[16:19], s38 offen offset:512")
    k.e(f"buffer_load_dwordx2 v[{T0+2}:{T0+3}], v10, s[16:19], s35 offen")
    k.e("v_mov_b32 v12, v11")
    k.e("v_cmp_eq_u32 vcc, 28, v2", "v_cndmask_b32 v13, v2, 18, vcc",
        "v_cmp_lt_u32 vcc, 18, v13", "v_mov_b32 v14, 0x10000", "v_cndmask_b32 v13, v13, v14, vcc",
        "s_movk_i32 s40, 304", "v_mul_u32_u24 v14, s40, v3", "v_lshl_add_u32 v13, v13, 4, v14", f"v_add_u32 v13, {KV_V}, v13")
    k.e("v_min_u32 v14, 32, v1", "v_lshlrev_b32 v14, 4, v14", f"v_add_u32 v14, {KV_K2}, v14")
    k.e("v_cmp_eq_u32 s[44:45], 1, v3")
    k.e("s_waitcnt vmcnt(0)")
    k.e(f"v_cndmask_b32 v{T0}, v{T0}, 0, s[44:45]")
    k.e(f"v_mov_b32 v{T0+1}, 0")
    for r in (Q, Q + 1, Q + 2, Q + 3, T0):
        k.e(f"v_dot2c_f32_bf16 v{T0+1}, v{r}, v{r}")
    k.e(f"v_max_f32 v{T0+2}, v{T0+2}, v{T0+3}")
    for sh in (8, 4, 2, 1):
        k.e(f"v_max_f32_dpp v{T0+2}, v{T0+2}, v{T0+2} row_ror:{sh} row_mask:0xf bank_mask:0xf")
    k.e(f"v_mov_b32 v{T0+3}, v{T0+2}", f"v_permlane16_swap_b32 v{T0+2}, v{T0+3}", f"v_max_f32 v{T0+2}, v{T0+2}, v{T0+3}")
    k.e(f"v_mov_b32 v{T0+3}, v{T0+2}", f"v_mov_b32 v{T0+4}, v{T0+1}",
        f"v_permlane32_swap_b32 v{T0+2}, v{T0+3}", f"v_permlane32_swap_b32 v{T0+1}, v{T0+4}",
        f"v_max_f32 v{T0+2}, v{T0+2}, v{T0+3}", f"v_add_f32 v{T0+1}, v{T0+1}, v{T0+4}")
    k.e(f"v_mul_f32 v{T0+1}, v{T0+1}, v{T0+2}", f"v_sqrt_f32 v{T0+1}, v{T0+1}", f"v_mul_f32 v{T0+1}, {hex(f2u(1.02))}, v{T0+1}")
    k.e("s_mov_b32 s32, 0")
    k.label("attn_setm")
    k.e(f"v_xor_b32 v{T0+2}, 0x80000000, v{T0+1}",
        f"v_and_b32 v{T0+3}, 0xffff0000, v{T0+2}", f"v_sub_f32 v{T0+2}, v{T0+2}, v{T0+3}",
        f"v_and_b32 v{T0+4}, 0xffff0000, v{T0+2}", f"v_sub_f32 v{T0+2}, v{T0+2}, v{T0+4}",
        f"v_lshrrev_b32 v{T0+3}, 16, v{T0+3}", f"v_or_b32 v{T0+3}, v{T0+3}, v{T0+4}",
        f"v_lshrrev_b32 v{T0+2}, 16, v{T0+2}")
    k.e(f"v_cndmask_b32 v{Q2E}, v{T0}, v{T0+3}, s[44:45]", f"v_cndmask_b32 v{Q2E+1}, 0, v{T0+2}, s[44:45]",
        f"v_cndmask_b32 v{Q2O}, 0, v{T0+3}, s[44:45]", f"v_cndmask_b32 v{Q2O+1}, v{T0}, v{T0+2}, s[44:45]")
    k.e("v_mov_b32 v4, v12", "v_mov_b32 v5, v13", "v_mov_b32 v6, v14")
    k.e("s_cmp_eq_u32 s32, 10", "s_cbranch_scc1 attn_maxpass")
    for r in list(range(OA, OA + 16)) + list(range(P, P + 8)) + list(range(V1, V1 + 4)):
        k.e(f"v_mov_b32 v{r}, 0")
    k.e("s_mov_b32 s31, 16", "s_cmp_eq_u32 s32, 11", "s_cbranch_scc1 attn_start")
    k.e("s_mov_b32 s31, 2", "s_setprio 3", "s_barrier")
    k.label("attn_start")
    k.stamp(1)
    k.e(f"ds_read_b128 {r4(KF)}, v4", f"ds_read_b128 {r4(K2F)}, v6", f"ds_read_b128 {r4(V0)}, v5", "s_waitcnt lgkmcnt(0)")
    k.e(f"v_mfma_f32_32x32x16_bf16 {r16(S0)}, {r4(KF)}, {r4(Q)}, 0",
        f"v_mfma_f32_32x32x8_bf16 {r16(S0)}, v[{K2F}:{K2F+1}], v[{Q2E}:{Q2E+1}], {r16(S0)}")
    k.e(f"ds_read_b128 {r4(KF)}, v4 offset:1024", "s_waitcnt lgkmcnt(0)", "s_nop 7", "s_nop 3")
    k.e(".p2align 6")
    k.label("attn_loop")
    for tau in range(4):
        cur, nxt = (S0, S1) if tau % 2 == 0 else (S1, S0)
        t1 = (tau + 1) % 4
        koff = (tau + 2) * 1024 if tau < 2 else GRP + (tau - 2) * 1024
        v0off = (tau + 1) * 1216 if tau < 3 else GRP

        def ex_(a, b):
            for i in range(a, b):
                k.e(f"v_exp_f32 v{cur+i}, v{cur+i}")

        def cv(a, b):
            for i in range(a, b):
                k.e(f"v_cvt_pk_bf16_f32 v{P+i}, v{cur+2*i}, v{cur+2*i+1}")
        k.e("s_waitcnt lgkmcnt(2)")
        k.e(f"v_mfma_f32_32x32x16_bf16 {r16(nxt)}, {r4(KF)}, {r4(Q)}, 0")
        k.e(f"ds_read_b128 {r4(KF)}, v4 offset:{koff}")
        ex_(0, 3)
        k.e("s_waitcnt lgkmcnt(2)")
        k.e(f"v_mfma_f32_32x32x16_bf16 {r16(OA)}, {r4(V1)}, {r4(P+4)}, {r16(OA)}")
        k.e(f"ds_read_b128 {r4(V1)}, v5 offset:{tau*1216+608}")
        ex_(3, 6)
        q2 = Q2E if t1 % 2 == 0 else Q2O
        kk = K2F + 2 * (t1 // 2)
        k.e(f"v_mfma_f32_32x32x8_bf16 {r16(nxt)}, v[{kk}:{kk+1}], v[{q2}:{q2+1}], {r16(nxt)}")
        if tau == 2:
            k.e(f"ds_read_b128 {r4(K2F)}, v6 offset:{GRP}")
        ex_(6, 9)
        cv(0, 4)
        ex_(9, 12)
        k.e("s_waitcnt lgkmcnt(2)")
        k.e(f"v_mfma_f32_32x32x16_bf16 {r16(OA)}, {r4(V0)}, {r4(P)}, {r16(OA)}")
        k.e(f"ds_read_b128 {r4(V0)}, v5 offset:{v0off}")
        ex_(12, 16)
        if tau == 3:
            k.e(f"v_add_u32 v4, {GRP}, v4", f"v_add_u32 v5, {GRP}, v5", f"v_add_u32 v6, {GRP}, v6")
            k.e("s_sub_u32 s31, s31, 1", "s_cmp_lg_u32 s31, 0")
        cv(4, 8)
    k.e("s_cbranch_scc1 attn_loop")
    k.e("s_cmp_ge_u32 s32, 4", "s_cbranch_scc1 attn_tail")
    k.e("s_add_u32 s32, s32, 1")
    k.e("s_cmp_eq_u32 s32, 2", "s_cbranch_scc1 attn_ph2", "s_cmp_eq_u32 s32, 3", "s_cbranch_scc1 attn_ph3",
        "s_cmp_eq_u32 s32, 4", "s_cbranch_scc1 attn_ph4")
    k.e("s_barrier", "s_mov_b32 s31, 7", "s_branch attn_loop")
    for ph, cnt, pr in ((2, 4, 2), (3, 2, 1), (4, 1, 0)):
        k.label(f"attn_ph{ph}")
        k.e(f"s_setprio {pr}", f"s_mov_b32 s31, {cnt}")
        if ph == 4:
            k.e(f"v_mov_b32 v{T0+6}, {LDS_RDY}", f"ds_read_b32 v{T0+6}, v{T0+6}", "s_waitcnt lgkmcnt(0)",
                f"v_readfirstlane_b32 s52, v{T0+6}", "s_cmp_eq_u32 s52, 0", "s_cbranch_scc1 attn_loop")
            ffn_ring_start(k)
        k.e("s_branch attn_loop")
    k.label("attn_maxpass")
    k.e(f"v_mov_b32 v{T0+1}, 0xff800000", "s_mov_b32 s31, 16")
    k.label("attn_maxloop")
    k.e(f"ds_read_b128 {r4(K2F)}, v6")
    for tau in range(4):
        q2 = Q2E if tau % 2 == 0 else Q2O
        kk = K2F + 2 * (tau // 2)
        k.e(f"ds_read_b128 {r4(KF)}, v4 offset:{tau*1024}", "s_waitcnt lgkmcnt(0)")
        k.e(f"v_mfma_f32_32x32x16_bf16 {r16(S0)}, {r4(KF)}, {r4(Q)}, 0",
            f"v_mfma_f32_32x32x8_bf16 {r16(S0)}, v[{kk}:{kk+1}], v[{q2}:{q2+1}], {r16(S0)}")
        for i in range(8):
            k.e(f"v_max3_f32 v{T0+1}, v{S0+2*i}, v{S0+2*i+1}, v{T0+1}")
    k.e(f"v_add_u32 v4, {GRP}, v4", f"v_add_u32 v6, {GRP}, v6", "s_sub_u32 s31, s31, 1", "s_cmp_lg_u32 s31, 0",
        "s_cbranch_scc1 attn_maxloop")
    k.e(f"v_mov_b32 v{T0+2}, v{T0+1}", f"v_permlane32_swap_b32 v{T0+1}, v{T0+2}", f"v_max_f32 v{T0+1}, v{T0+1}, v{T0+2}")
    k.e("s_mov_b32 s32, 11", "s_branch attn_setm")
    k.label("attn_tail")
    k.e("s_waitcnt lgkmcnt(0)")
    k.e(f"v_mfma_f32_32x32x16_bf16 {r16(OA)}, {r4(V1)}, {r4(P+4)}, {r16(OA)}")
    k.e("s_and_b32 s34, s30, 3", "s_mul_i32 s34, s34, 18", "s_lshr_b32 s35, s30, 2", "s_mul_i32 s35, s35, 4608",
        f"s_add_u32 s35, s35, {LDS_OST}", "s_movk_i32 s36, 2304",
        f"v_lshrrev_b32 v{T0+9}, 4, v2", f"v_mul_u32_u24 v{T0+9}, s36, v{T0+9}", f"v_and_b32 v{T0+8}, 15, v2",
        f"v_lshl_add_u32 v{T0+9}, v{T0+8}, 4, v{T0+9}", f"v_add_u32 v{T0+9}, s35, v{T0+9}")
    k.e(f"v_lshl_add_u32 v{T0+6}, v3, 2, s34", f"v_add_u32 v{T0+7}, 2, v{T0+6}")
    for r in (T0 + 6, T0 + 7):
        k.e(f"v_lshrrev_b32 v{T0+8}, 3, v{r}", f"v_and_b32 v{r}, 7, v{r}", f"v_lshl_add_u32 v{r}, v{r}, 1, v{T0+9}",
            f"v_lshl_add_u32 v{r}, v{T0+8}, 8, v{r}")
    k.e(f"v_cndmask_b32 v{T0+5}, v{OA+10}, v{OA+12}, s[44:45]")
    k.e(f"v_cmp_le_f32 vcc, {hex(f2u(2.0**-40))}, v{T0+5}")
    k.e("s_cmp_eq_u32 s32, 11", "s_cbranch_scc1 attn_fin")
    k.e("s_cmp_eq_u64 vcc, -1", "s_cbranch_scc1 attn_fin")
    k.e("s_mov_b32 s32, 10", f"v_mov_b32 v{T0+1}, 0", "s_branch attn_setm")
    k.label("attn_fin")
    k.e(f"v_rcp_f32 v{T0+5}, v{T0+5}")
    for i in range(10):
        k.e(f"v_mul_f32 v{OA+i}, v{T0+5}, v{OA+i}")
    for i in range(5):
        k.e(f"v_cvt_pk_bf16_f32 v{P+i}, v{OA+2*i}, v{OA+2*i+1}")
    k.e(f"ds_write_b32 v{T0+6}, v{P}", f"ds_write_b32 v{T0+7}, v{P+1}",
        f"ds_write_b32 v{T0+6}, v{P+2} offset:256", f"ds_write_b32 v{T0+7}, v{P+3} offset:256",
        ex(0xffffffff), f"ds_write_b32 v{T0+6}, v{P+4} offset:512", ex(-1))
    wo_dma_setup(k)
    k.e("s_waitcnt lgkmcnt(0)", "s_barrier")
    k.stamp(2)
    publish_o(k, "oa", pre=wo_dma)


def kv_dma(k, a, b):
    for i in range(a, b):
        k.e(f"s_add_u32 m0, s34, {i*4096}", f"s_add_u32 s36, s35, {i*4096}",
            "buffer_load_dwordx4 v11, s[16:19], s36 offen lds")


def helper_dma0(k):
    k.e("s_setprio 3")
    k.e("s_sub_u32 s31, s30, 8", "s_lshl_b32 s34, s31, 10", "s_lshr_b32 s35, s2, 3", "s_add_u32 s35, s35, s2", "s_and_b32 s35, s35, 15",
        f"s_mul_i32 s35, s35, {GRP}", "s_add_u32 s35, s35, s34", f"s_add_u32 s35, s35, {WS_KV}")
    kv_dma(k, 0, 12)
    k.e("v_and_b32 v12, 15, v1", "v_lshlrev_b32 v12, 2, v12", f"v_add_u32 v12, {LDS_RDY}, v12", "v_mov_b32 v13, 0", "ds_write_b32 v12, v13")


def helper_pack(k):
    def dma(a, b):
        kv_dma(k, a, b)
    k.e("s_waitcnt vmcnt(5) lgkmcnt(0)", "s_barrier")
    dma(12, 37)
    k.e("s_cmp_lg_u32 s31, 0", "s_cbranch_scc1 mega_h_nolast")
    k.e(ex(0xffff))
    dma(37, 38)
    k.e(ex(-1))
    k.label("mega_h_nolast")
    k.e("s_lshl_b32 s34, s31, 6", "v_add_u32 v12, s34, v1", "v_min_u32 v12, 161, v12", "v_lshlrev_b32 v12, 7, v12",
        "s_mul_i32 s34, s47, 20736")
    k.e("s_lshl_b32 s50, s31, 5", "s_add_u32 s50, s50, s47",
        "s_cmp_ge_u32 s50, 54", "s_cselect_b32 s53, 1, 0",
        "s_mul_i32 s51, s53, 54", "s_sub_u32 s51, s50, s51",
        "s_mul_i32 s54, s51, 57", "s_lshr_b32 s54, s54, 10",
        "s_mul_i32 s52, s54, 18", "s_sub_u32 s52, s51, s52",
        "s_cmp_eq_u32 s53, 0",
        "s_cselect_b32 s20, s4, s6", "s_cselect_b32 s21, s5, s7", f"s_mov_b32 s22, {hex(W1B)}", "s_mov_b32 s23, 0x00020000",
        "s_movk_i32 s56, 1152", "s_cselect_b32 s56, 9216, s56",
        "s_movk_i32 s57, 1152", "s_cselect_b32 s57, s57, 663552", "s_mul_i32 s57, s57, s46",
        "s_mul_i32 s58, s54, 192", "s_mul_i32 s58, s58, s56", "s_add_u32 s57, s57, s58",
        "s_lshl_b32 s58, s52, 6", "s_add_u32 s57, s57, s58")
    k.e("s_add_u32 s58, s53, s54", "s_cmp_eq_u32 s58, 3", "s_cselect_b32 s58, 2, 1", "s_cselect_b32 s59, -5, 1",
        "s_mul_i32 s58, s58, s56", "s_mul_i32 s59, s59, s56", "s_mul_i32 s60, s56, 25")
    k.e("v_lshrrev_b32 v2, 4, v1", "v_lshlrev_b32 v2, 3, v2", "v_mul_u32_u24 v15, s56, v2", "v_and_b32 v3, 15, v1",
        "v_lshl_add_u32 v15, v3, 2, v15", "v_lshlrev_b32 v8, 2, v3",
        "s_mov_b32 s64, 0x05040100", "s_mov_b32 s65, 0x07060302")
    k.e(f"s_mul_i32 s62, s52, {STREAM}", f"s_mul_i32 s63, s52, {2*STREAM}", f"s_sub_u32 s63, s63, {24*STREAM - 2048}",
        "s_cmp_lt_u32 s52, 12", "s_cselect_b32 s62, s62, s63", "s_movk_i32 s61, 1024", f"s_cselect_b32 s61, s61, {STREAM}",
        "s_mul_i32 s63, s53, 3", "s_add_u32 s63, s63, s54", f"s_mul_i32 s63, s63, {6*3072}", "s_add_u32 s62, s62, s63",
        f"s_mul_i32 s63, s46, {1296*1024}", "s_add_u32 s62, s62, s63", f"s_add_u32 s62, s62, {WS_W}",
        "s_add_u32 s61, s61, s62")
    for i in range(4):
        k.e(f"v_mov_b32 v{PS+8+i}, 0x3f803f80")
    k.e("s_waitcnt vmcnt(0)", "s_barrier")
    k.e("buffer_load_dword v13, v12, s[24:27], s34 offen")
    k.e("s_cmp_ge_u32 s50, 108", "s_cbranch_scc1 mega_h_nounit")
    for ss in range(6):
        for jj in range(8):
            k.e(f"buffer_load_dword v{PIN+8*ss+jj}, v15, s[20:23], s57 offen",
                f"s_add_u32 s57, s57, s{60 if jj == 7 else (59 if jj == 3 else 58)}")
    for ss in range(6):
        k.e(f"s_waitcnt vmcnt({40 - 8*ss + 2*ss})")
        for e in range(2):
            for q in range(4):
                k.e(f"v_perm_b32 v{POUT+8*ss+4*e+q}, v{PIN+8*ss+2*q+1}, v{PIN+8*ss+2*q}, s{64+e}")
            k.e(f"buffer_store_dwordx4 {r4(POUT+8*ss+4*e)}, v11, s[16:19], s{62-e} offen sc1", f"s_add_u32 s{62-e}, s{62-e}, 3072")
    k.e("s_cmp_lg_u32 s53, 0", "s_cbranch_scc1 mega_h_nounit")
    for ss in range(6):
        for e in range(2):
            k.e(f"v_mfma_f32_16x16x32_bf16 {r4(PS+4*e)}, {r4(PS+8)}, {r4(POUT+8*ss+4*e)}, {r4(PS+4*e) if ss else 0}")
    k.e("s_mul_i32 s58, s54, 18432", "s_mul_i32 s59, s46, 2304", "s_add_u32 s58, s58, s59", "s_lshl_b32 s59, s52, 7",
        "s_add_u32 s58, s58, s59", f"s_add_u32 s58, s58, {WS_SP}")
    k.e(ex(0xffff), f"buffer_store_dword v{PS}, v8, s[16:19], s58 offen sc1",
        f"buffer_store_dword v{PS+4}, v8, s[16:19], s58 offen offset:64 sc1", ex(-1))
    k.label("mega_h_nounit")
    k.e("s_waitcnt vmcnt(0)", "s_lshl_b32 s34, s46, 9", f"s_add_u32 s36, s34, {FP}", "s_lshr_b32 s35, s47, 3", "s_lshl_b32 s35, s35, 7",
        "s_add_u32 s34, s36, s35", "s_lshl_b32 s35, s29, 2", "s_add_u32 s34, s34, s35")
    k.stamp(1)
    arrive(k, 0, 4, 34, "p")
    k.e("v_bfe_u32 v12, v1, 3, 2", "v_lshlrev_b32 v12, 7, v12", "v_and_b32 v13, 7, v1", "v_lshl_add_u32 v12, v13, 2, v12")
    poll(k, 12, 36, 14, "p", sleep=64)
    k.e("s_lshl_b32 s34, s31, 6", "v_add_u32 v12, s34, v1", "v_add_u32 v13, 256, v12", "v_min_u32 v13, 323, v13",
        "v_lshlrev_b32 v14, 7, v12", "v_lshlrev_b32 v13, 7, v13",
        f"s_mul_i32 s34, s46, {1296*1024}", "s_mul_i32 s35, s47, 41472", "s_add_u32 s34, s34, s35", f"s_add_u32 s34, s34, {WS_W}",
        "buffer_load_dword v14, v14, s[16:19], s34 offen sc1", "buffer_load_dword v13, v13, s[16:19], s34 offen sc1")
    k.e("v_min_u32 v12, 143, v12", "v_lshlrev_b32 v12, 4, v12", "s_mul_i32 s34, s46, 2304", f"s_add_u32 s34, s34, {WS_SP}")
    for i in range(3):
        k.e(f"buffer_load_dwordx4 {r4(PIN+4*i)}, v12, s[16:19], s34 offen sc1", "s_add_u32 s34, s34, 18432")
    k.e(f"v_add_u32 v12, {LDS_S}, v12", "s_waitcnt vmcnt(0)")
    for i in range(1, 3):
        for c in range(4):
            k.e(f"v_add_f32 v{PIN+c}, v{PIN+c}, v{PIN+4*i+c}")
    k.e(f"ds_write_b128 v12, {r4(PIN)}", f"v_mov_b32 v12, {LDS_RDY}", "v_mov_b32 v13, 1", "ds_write_b32 v12, v13")


def wo_dma_setup(k):
    k.e("s_movk_i32 s40, 6554", "s_movk_i32 s41, 1152")
    for i in range(5):
        dma_slot_calc(k, i, 32, 33, 34, 35)
        k.e(f"v_mul_u32_u24 v{16+i}, s41, v35", f"v_lshl_add_u32 v{16+i}, v34, 4, v{16+i}")
    k.e("s_mul_i32 s32, s29, 144", "s_mul_i32 s42, s30, 36864", "s_add_u32 s42, s42, s32",
        "s_mul_i32 s43, s30, 5120", f"s_add_u32 s43, s43, {LDS_WO}")


def wo_dma(k):
    def wdma(grp):
        for i in range(5):
            k.e(f"s_add_u32 m0, s43, {grp*8*5120 + i*1024}", "s_nop 0", f"buffer_load_dwordx4 v{16+i}, s[24:27], s42 offen lds")
        k.e(f"s_add_u32 s42, s42, {8*36864}")
    wdma(0)
    wdma(1)
    k.e("s_cmp_ge_u32 s30, 2", "s_cbranch_scc1 mega_o_skip")
    wdma(2)
    k.label("mega_o_skip")
    k.e("s_cmp_lt_u32 s30, 4", "s_cbranch_scc1 mega_r_skip")
    srd(k, 48, 10, XB)
    k.e("s_sub_u32 s34, s30, 4", "s_mul_i32 s44, s34, 2560", f"s_add_u32 s44, s44, {LDS_RES}",
        "s_lshl_b32 s35, s28, 2", "s_add_u32 s35, s35, s34", "s_mul_i32 s35, s35, 18432", "s_add_u32 s35, s35, s32")
    for i in range(3):
        if i == 2:
            k.e(ex(0xffffffff))
        k.e(f"s_add_u32 m0, s44, {i*1024}", "s_nop 0", f"buffer_load_dwordx4 v{16+i}, s[48:51], s35 offen lds")
    k.e(ex(-1))
    k.label("mega_r_skip")


def oproj(k):
    k.e("v_and_b32 v2, 15, v1", "v_lshrrev_b32 v3, 4, v1")
    k.e("v_lshrrev_b32 v32, 2, v2",
        "v_and_b32 v33, 1, v3", "v_lshlrev_b32 v33, 2, v33", "v_add_u32 v32, v32, v33",
        "v_lshl_add_u32 v32, v3, 3, v32", "v_xor_b32 v33, 4, v32", "s_movk_i32 s40, 160",
        "v_and_b32 v34, 3, v2", "v_lshlrev_b32 v34, 3, v34", f"v_add_u32 v34, {LDS_WO}, v34",
        "v_mad_u32_u24 v28, v32, s40, v34", "v_mad_u32_u24 v29, v33, s40, v34",
        "v_add_u32 v30, 61440, v28", "v_add_u32 v31, 61440, v29")
    k.e("s_mul_i32 s44, s31, 2560", f"s_add_u32 s44, s44, {LDS_RES}",
        "v_and_b32 v21, 8, v2", "v_lshrrev_b32 v21, 1, v21", "v_xor_b32 v21, v21, v2", "v_mul_u32_u24 v21, s40, v21",
        "v_lshl_add_u32 v21, v3, 3, v21", "v_add_u32 v21, s44, v21")
    k.e("v_and_b32 v22, 1, v3", "v_lshlrev_b32 v22, 9, v22", "v_lshrrev_b32 v32, 1, v3", "v_lshl_add_u32 v22, v32, 8, v22",
        "v_lshl_add_u32 v22, v2, 4, v22")
    k.e("v_and_b32 v23, 7, v1", "v_lshlrev_b32 v23, 2, v23")
    for r in range(OACC, OACC + 20):
        k.e(f"v_mov_b32 v{r}, 0")
    k.e("s_lshl_b32 s48, s28, 2", "s_add_u32 s48, s48, s31", "s_mul_i32 s49, s48, 18432")
    k.e("s_waitcnt lgkmcnt(0)", "s_barrier")
    k.stamp(2)
    publish_o(k, "ob")
    k.e("s_lshl_b32 s34, s28, 7", f"s_add_u32 s34, s34, {F1}")
    k.e("s_cmp_lg_u32 s31, 0", "s_cbranch_scc1 mega_polld_o")
    poll(k, 23, 34, 32, "o", sleep=1)
    k.e("s_barrier")
    k.stamp(3)
    k.e(f"s_add_u32 s34, s49, {WS_O}")
    for s in range(18):
        if s % 4 == 0 and s:
            k.e("s_add_u32 s34, s34, 4096")
        k.e(f"buffer_load_dwordx4 v[{OX0+4*s}:{OX0+4*s+3}], v11, s[16:19], s34 offen offset:{1024*(s%4)} sc1")

    def rd(t, s):
        a0, a1 = (28, 29) if s < 12 else (30, 31)
        off = (s if s < 12 else s - 12) * 5120 + 32 * t
        k.e(f"ds_read_b64_tr_b16 v[{OWF+4*t}:{OWF+4*t+1}], v{a0} offset:{off}",
            f"ds_read_b64_tr_b16 v[{OWF+4*t+2}:{OWF+4*t+3}], v{a1} offset:{off}")
    for t in range(5):
        rd(t, 0)
    for s in range(18):
        last = s == 17
        for t in range(5):
            k.e(f"s_waitcnt lgkmcnt({2*(4-t) if last else 8})" + (f" vmcnt({17-s})" if t == 0 else ""))
            a = r4(OACC + 4 * t)
            k.e(f"v_mfma_f32_16x16x32_bf16 {a}, {r4(OWF+4*t)}, {r4(OX0+4*s)}, {a}")
            if not last:
                rd(t, s + 1)
    for t in range(5):
        k.e(f"ds_read_b64 v[{36+2*t}:{37+2*t}], v21 offset:{32*t}")
    k.e("v_mov_b32 v6, 0", "v_mov_b32 v7, 0", "v_mov_b32 v34, 0x3f803f80",
        "s_mul_i32 s35, s29, 2304", "s_add_u32 s35, s35, s49", f"s_add_u32 s35, s35, {WS_H}")
    for t in range(5):
        a = OACC + 4 * t
        d = 48 + 2 * t
        k.e(f"s_waitcnt lgkmcnt({4-t})")
        k.e(f"v_lshlrev_b32 v24, 16, v{36+2*t}", f"v_and_b32 v25, 0xffff0000, v{36+2*t}",
            f"v_lshlrev_b32 v26, 16, v{37+2*t}", f"v_and_b32 v27, 0xffff0000, v{37+2*t}")
        for i in range(4):
            k.e(f"v_add_f32 v{a+i}, v{a+i}, v{24+i}")
        k.e(f"v_cvt_pk_bf16_f32 v{d}, v{a}, v{a+1}", f"v_cvt_pk_bf16_f32 v{d+1}, v{a+2}, v{a+3}")
        if t == 4:
            k.e(ex(0xffffffff))
        k.e(f"v_dot2c_f32_bf16 v6, v{d}, v34", f"v_dot2c_f32_bf16 v7, v{d}, v{d}",
            f"v_dot2c_f32_bf16 v6, v{d+1}, v34", f"v_dot2c_f32_bf16 v7, v{d+1}, v{d+1}")
        if t == 4:
            k.e(ex(-1))
        if t % 2 == 1 or t == 4:
            b = 48 + 4 * (t // 2)
            k.e(f"v_permlane16_swap_b32 v{b}, v{b+2}", f"v_permlane16_swap_b32 v{b+1}, v{b+3}")
            if t == 4:
                k.e(ex(0xffff))
            k.e(f"buffer_store_dwordx4 {r4(b)}, v22, s[16:19], s35 offen offset:{1024*(t//2)} sc1")
            if t == 4:
                k.e(ex(-1))
    reduce_g_add(k, [6, 7], [32, 33])
    k.e("v_lshlrev_b32 v32, 4, v2", "s_lshl_b32 s35, s48, 10", "s_lshr_b32 s34, s29, 1", "s_lshl_b32 s34, s34, 8",
        "s_add_u32 s35, s35, s34", "s_and_b32 s34, s29, 1", "s_lshl_b32 s34, s34, 3", "s_add_u32 s35, s35, s34",
        f"s_add_u32 s35, s35, {WS_ST}", ex(0xffff))
    k.e("buffer_store_dwordx2 v[6:7], v32, s[16:19], s35 offen sc1", ex(-1))
    k.e("s_lshl_b32 s34, s28, 7", "s_lshl_b32 s35, s29, 2", "s_add_u32 s34, s34, s35", f"s_add_u32 s34, s34, {F2}", "s_waitcnt vmcnt(0)")
    arrive(k, 2, 4, 34, "h")


def acc(t, mb):
    return ACC + (t * 4 + mb) * 4


def wreg(slot, t):
    return WR + ((slot + 1) % 6) * 12 + t * 4


def wload(slot, t):
    return f"buffer_load_dwordx4 {r4(wreg(slot, t))}, v11, s[20:23], s53 offen offset:{1024*t} {WAUX}"


def ffn_ring_start(k):
    k.e(f"s_mul_i32 s34, s30, {STREAM}", f"s_mul_i32 s35, s46, {1296*1024}", "s_add_u32 s34, s34, s35", f"s_add_u32 s34, s34, {WS_W}",
        "s_add_u32 s20, s12, s34", "s_addc_u32 s21, s13, 0", f"s_mov_b32 s22, {STREAM}", "s_mov_b32 s23, 0x00020000",
        "s_mov_b32 s53, 0")
    for st in range(D - 1):
        for t in range(T):
            k.e(wload(st, t))
        k.e(f"s_add_u32 s53, s53, {T*1024}")


def ffn(k):
    k.label("ffn_join")
    k.e("s_setprio 0", "v_and_b32 v2, 15, v1", "v_lshrrev_b32 v3, 4, v1")
    k.e("v_and_b32 v12, 7, v1", "v_lshlrev_b32 v12, 2, v12", "s_lshl_b32 s34, s47, 7", f"s_add_u32 s34, s34, {F2}")
    k.e("s_cmp_lg_u32 s30, 0", "s_cbranch_scc1 mega_polld_h")
    k.e("s_sleep 24")
    poll(k, 12, 34, 14, "h", sleep=2)
    k.e("s_barrier")
    k.stamp(4)
    k.e("s_lshl_b32 s34, s47, 12", f"s_add_u32 s34, s34, {WS_ST}")
    for mb in range(4):
        k.e(f"buffer_load_dwordx4 {r4(XB0+4*mb)}, v11, s[16:19], s34 offen offset:{1024*mb} sc1")
    k.e("s_lshl_b32 s34, s47, 2", "s_and_b32 s35, s30, 3", "s_add_u32 s34, s34, s35", "s_mul_i32 s41, s34, 18432",
        "s_lshr_b32 s35, s30, 2", "s_lshl_b32 s35, s35, 10", "s_add_u32 s41, s41, s35", f"s_add_u32 s41, s41, {WS_H}",
        "s_lshl_b32 s42, s30, 10")
    k.e("s_cmp_ge_u32 s30, 8", "s_cbranch_scc1 ffn_nodma0")
    for i in range(6):
        k.e(f"s_add_u32 m0, s42, {i*8192}", f"s_add_u32 s36, s41, {i*2048}", "buffer_load_dwordx4 v11, s[16:19], s36 offen sc1 lds")
    k.e("s_waitcnt vmcnt(6)", "s_branch ffn_st")
    k.label("ffn_nodma0")
    k.e("s_waitcnt vmcnt(0)")
    k.label("ffn_st")
    k.e("s_lshl_b32 s34, s30, 7", f"s_add_u32 s34, s34, {LDS_S}", "v_lshlrev_b32 v13, 4, v3", "v_add_u32 v12, s34, v13",
        "s_lshl_b32 s34, s30, 6", f"s_add_u32 s34, s34, {LDS_S + 1536}", "v_add_u32 v13, s34, v13",
        f"ds_read_b128 {r4(XB0+16)}, v12", f"ds_read_b128 {r4(XB0+20)}, v12 offset:64", f"ds_read_b128 {r4(XB0+24)}, v13")
    for mb in range(4):
        b = XB0 + 4 * mb
        k.e(f"v_add_f32 v{4+mb}, v{b}, v{b+2}", f"v_add_f32 v{ACC+mb}, v{b+1}, v{b+3}")
    reduce_g_add(k, [4, 5, 6, 7] + [ACC + i for i in range(4)], list(range(ACC + 4, ACC + 12)))
    for mb in range(4):
        k.e(f"v_mul_f32 v{4+mb}, {hex(f2u(-1/576))}, v{4+mb}")
    k.e("s_and_b32 s34, s46, 3", "v_mov_b32 v8, v4", f"v_mov_b32 v9, v{ACC}")
    for mb in range(1, 4):
        k.e(f"s_cmp_eq_u32 s34, {mb}", "s_cselect_b64 vcc, -1, 0", f"v_cndmask_b32 v8, v8, v{4+mb}, vcc", f"v_cndmask_b32 v9, v9, v{ACC+mb}, vcc")
    k.e(f"v_mul_f32 v9, {hex(f2u(1/576))}, v9", "v_fma_f32 v8, -v8, v8, v9", "v_max_f32 v8, 0, v8",
        f"v_add_f32 v8, {hex(f2u(1e-5))}, v8", "v_rsq_f32 v8, v8")
    k.e("s_waitcnt lgkmcnt(0)")
    for t in range(T):
        for mb in range(4):
            for i in range(4):
                k.e(f"v_mul_f32 v{acc(t,mb)+i}, v{4+mb}, v{XB0+16+4*t+i}")
    k.e("s_add_u32 s41, s41, 12288", "s_add_u32 s42, s42, 49152")
    k.e("s_waitcnt vmcnt(3)", "s_barrier")
    k.stamp(5)
    k.e("v_mov_b32 v10, v11", "s_mov_b32 s31, 0")
    k.label("ffn_start")
    for mb in range(4):
        k.e(f"ds_read_b128 {r4(XB0+4*mb)}, v10 offset:{1024*mb}")
    k.e(".p2align 6")
    k.label("ffn_loop")
    k.e("s_cmp_lg_u32 s31, 1", "s_cbranch_scc1 ffn_nodma")
    for i in range(2):
        k.e(f"s_add_u32 m0, s42, {i*12288}", f"s_add_u32 s36, s41, {i*3072}", "buffer_load_dwordx4 v11, s[16:19], s36 offen sc1 lds")
    k.label("ffn_nodma")
    for u in range(D):
        xb = XB0 + 16 * (u % 2)
        xn = XB0 + 16 * ((u + 1) % 2)
        fill = [f"ds_read_b128 {r4(xn+4*mb)}, v10 offset:{(u+1)*4096 + 1024*mb}" for mb in range(4)]
        fill += [wload((u + D - 1) % D, t) for t in range(T)]
        fill += [f"s_add_u32 s53, s53, {T*1024}"]
        k.e(f"s_waitcnt vmcnt({4*T}) lgkmcnt(0)")
        if u == D - 1:
            k.e("s_cmp_ge_u32 s31, 2", "s_cbranch_scc1 ffn_nobar", "s_barrier")
            k.label("ffn_nobar")
        for t in range(T):
            for mb in range(4):
                a = r4(acc(t, mb))
                k.e(f"v_mfma_f32_16x16x32_bf16 {a}, {r4(wreg(u, t))}, {r4(xb+4*mb)}, {a}")
                if fill:
                    k.e(fill.pop(0))
    k.e(f"v_add_u32 v10, {D*4096}, v10", "s_add_u32 s31, s31, 1",
        "s_cmp_eq_u32 s31, 3", "s_cbranch_scc1 ffn_ep1",
        "s_cmp_lt_u32 s31, 6", "s_cbranch_scc1 ffn_loop")
    k.stamp(7)
    k.e("s_waitcnt lgkmcnt(0)")
    k.e(f"s_mul_i32 s34, s46, {XB}", "s_mul_i32 s33, s47, 73728", f"s_add_u32 s33, s33, {WS_P}", "s_add_u32 s34, s34, s33",
        "s_lshl_b32 s35, s30, 10", "s_add_u32 s36, s34, s35",
        "s_cmp_ge_u32 s30, 6", "s_movk_i32 s37, 12288", f"s_cselect_b32 s37, {12288 + 18432 - 6144}, s37", "s_add_u32 s37, s37, s36")
    for mb in range(4):
        d = XB0 + 4 * mb
        a, b = acc(0, mb), acc(1, mb)
        for i in range(4):
            k.e(f"v_cvt_pk_bf16_f32 v{d+i}, v{a+i}, v{b+i}")
        k.e(f"buffer_store_dwordx4 {r4(d)}, v11, s[16:19], s36 offen sc1", "s_add_u32 s36, s36, 18432")
    for h in range(2):
        d = XB0 + 16 + 4 * h
        a, b = acc(2, 2 * h), acc(2, 2 * h + 1)
        k.e(f"v_cvt_pk_bf16_f32 v{d}, v{a}, v{a+1}", f"v_cvt_pk_bf16_f32 v{d+1}, v{a+2}, v{a+3}",
            f"v_cvt_pk_bf16_f32 v{d+2}, v{b}, v{b+1}", f"v_cvt_pk_bf16_f32 v{d+3}, v{b+2}, v{b+3}")
        k.e(f"buffer_store_dwordx4 {r4(d)}, v11, s[16:19], s37 offen sc1", "s_add_u32 s37, s37, 36864")
    k.e("s_lshl_b32 s38, s47, 9", f"s_add_u32 s38, s38, {F3}", "s_lshr_b32 s36, s30, 2", "s_lshl_b32 s35, s36, 7", "s_add_u32 s38, s38, s35",
        "s_lshl_b32 s35, s46, 2", "s_add_u32 s34, s38, s35",
        "s_lshl_b32 s44, s36, 2", f"s_add_u32 s44, s44, {LDS_CNT + 12}", "s_waitcnt vmcnt(0)")
    arrive(k, 0, 4, 34, "r", cnt_sgpr=44)
    k.e("s_add_u32 s44, s44, 12", "v_mov_b32 v15, s44")
    k.e("s_and_b32 s35, s30, 3", "s_cmp_lg_u32 s35, 3", "s_cbranch_scc1 mega_red")
    k.e("v_and_b32 v12, 7, v1", "v_lshlrev_b32 v12, 2, v12")
    poll(k, 12, 38, 14, "r", sleep=2)
    k.e("v_mov_b32 v13, 1", "ds_write_b32 v15, v13", "s_waitcnt lgkmcnt(0)", "s_branch mega_fin")
    k.label("mega_red")
    k.e(
        "s_lshl_b32 s37, s36, 2", "s_lshl_b32 s39, s35, 1", "s_add_u32 s37, s37, s39",
        "s_lshl_b32 s39, s36, 1", "s_add_u32 s39, s39, 12", "s_cmp_eq_u32 s35, 2", "s_cselect_b32 s37, s39, s37",
        "s_lshr_b32 s39, s46, 2", "s_add_u32 s37, s37, s39",
        "s_and_b32 s39, s46, 3",
        "s_mul_i32 s34, s39, 18432", "s_lshl_b32 s41, s37, 10", "s_add_u32 s34, s34, s41")
    k.e("s_sub_u32 s41, s37, 12", "s_lshl_b32 s41, s41, 11", "s_cmp_ge_u32 s37, 15", "s_movk_i32 s42, 12288",
        f"s_cselect_b32 s42, {12288 + 18432 - 6144}, s42", "s_add_u32 s41, s41, s42", "s_lshr_b32 s42, s39, 1", "s_mul_i32 s42, s42, 36864",
        "s_add_u32 s41, s41, s42", "s_and_b32 s42, s39, 1", "s_lshl_b32 s42, s42, 3", "s_add_u32 s41, s41, s42",
        "s_mov_b32 s43, s35", "s_cmp_eq_u32 s35, 2", "s_cselect_b32 s34, s41, s34", "s_cselect_b32 s42, 1024, 8",
        "s_add_u32 s33, s33, s34", "s_add_u32 s42, s42, s33")
    k.e("s_lshl_b32 s35, s37, 2", "s_add_u32 s35, s35, s39", "s_lshl_b32 s35, s35, 10", "v_add_u32 v13, s35, v11",
        f"ds_read_b128 {r4(WR+32)}, v13")
    srd(k, 20, 14, XB)
    k.e("s_lshl_b32 s35, s47, 2", "s_add_u32 s35, s35, s39", "s_mul_i32 s35, s35, 18432", "s_lshl_b32 s37, s37, 6",
        "s_add_u32 s37, s37, s35", "s_movk_i32 s35, 1152", "v_mul_u32_u24 v9, s35, v2", "v_lshl_add_u32 v9, v3, 4, v9")
    k.e("v_mov_b32 v5, 0x00003f80", "v_mov_b32 v6, 0x3f800000")
    for i in range(8):
        k.e(f"v_mov_b32 v{ACC+i}, 0")
    k.e(f"s_mov_b32 s3, {SPIN*8}")
    k.label("mega_lspin")
    k.e("ds_read_b32 v14, v15", "s_waitcnt lgkmcnt(0)", "v_readfirstlane_b32 s38, v14", "s_cmp_lg_u32 s38, 0", "s_cbranch_scc1 mega_lspind",
        "s_sleep 1", "s_sub_u32 s3, s3, 1", "s_cbranch_scc0 mega_lspin")
    k.label("mega_lspind")
    for j in range(8):
        k.e(f"buffer_load_dwordx2 v[{WR+4*j}:{WR+4*j+1}], v11, s[16:19], s33 offen sc1", f"s_add_u32 s33, s33, {XB}",
            f"buffer_load_dwordx2 v[{WR+4*j+2}:{WR+4*j+3}], v11, s[16:19], s42 offen sc1", f"s_add_u32 s42, s42, {XB}")
    k.e("s_waitcnt lgkmcnt(0)")
    for i in range(4):
        k.e(f"v_lshlrev_b32 v{ACC+8+2*i}, 16, v{WR+32+i}", f"v_and_b32 v{ACC+9+2*i}, 0xffff0000, v{WR+32+i}")
    for j in range(8):
        k.e(f"s_waitcnt vmcnt({14-2*j})")
        for i in range(4):
            k.e(f"v_lshlrev_b32 v{ACC+16+2*i}, 16, v{WR+4*j+i}", f"v_and_b32 v{ACC+17+2*i}, 0xffff0000, v{WR+4*j+i}")
        for i in range(8):
            k.e(f"v_add_f32 v{ACC+i}, v{ACC+i}, v{ACC+16+i}")
    k.e("s_cmp_eq_u32 s43, 2", "s_cbranch_scc1 mega_red_s")
    for i in range(8):
        k.e(f"v_fma_f32 v{ACC+8+i}, v{ACC+i}, v8, v{ACC+8+i}")
    k.e("s_branch mega_red_o")
    k.label("mega_red_s")
    for i in range(8):
        k.e(f"v_fma_f32 v{ACC+8+i}, v{ACC+(i//2)+4*(i%2)}, v8, v{ACC+8+i}")
    k.label("mega_red_o")
    for i in range(4):
        k.e(f"v_cvt_pk_bf16_f32 v{XB0+i}, v{ACC+8+2*i}, v{ACC+9+2*i}")
    k.e(f"buffer_store_dwordx4 {r4(XB0)}, v9, s[20:23], s37 offen")
    k.label("mega_fin")
    k.stamp_flush(1, 9, 16, 30, wpw=16)
    if os.environ.get("DBGOUT"):
        k.e("s_cmp_lg_u32 s2, 5", "s_cbranch_scc1 mega_end", "s_cmp_lg_u32 s30, 8", "s_cbranch_scc1 mega_end",
            "s_load_dwordx2 s[4:5], s[0:1], 72", "s_waitcnt lgkmcnt(0)", "s_nop 0")
        srd(k, 20, 4, 256)
        for i in range(1, 9):
            k.e(f"s_sub_u32 s34, s{71+2*i}, s71", "v_mov_b32 v4, s34", f"buffer_store_dword v4, v0, s[20:23], 0 offen offset:{4*i-4}",
                f"s_sub_u32 s34, s{70+2*i}, s70", "v_mov_b32 v5, s34", f"buffer_store_dword v5, v0, s[20:23], 0 offen offset:{4*i+28}", "s_waitcnt vmcnt(0)")
    k.e("s_endpgm")
    k.label("ffn_ep1")
    k.e("s_waitcnt lgkmcnt(0)")
    k.e("s_lshl_b32 s34, s30, 12", f"s_add_u32 s34, s34, {LDS_H}", "v_add_u32 v12, s34, v11")
    k.e("s_lshr_b32 s34, s30, 1", "s_lshl_b32 s34, s34, 12", "s_and_b32 s35, s30, 1", "s_lshl_b32 s35, s35, 3",
        "s_add_u32 s34, s34, s35", f"s_add_u32 s34, s34, {LDS_H + 49152}", "v_add_u32 v13, s34, v11")
    for mb in range(4):
        d = XB0 + 4 * mb
        a, b = acc(0, mb), acc(1, mb)
        for i in range(4):
            k.e(f"v_cvt_pk_bf16_f32 v{d+i}, v{a+i}, v{b+i}")
        for i in range(4):
            k.e(f"v_pk_max_i16 v{d+i}, v{d+i}, 0")
        k.e(f"ds_write_b128 v12, {r4(d)} offset:{mb*1024}")
    for mb in range(4):
        a = acc(2, mb)
        d = XB0 + 16 + 2 * mb
        k.e(f"v_cvt_pk_bf16_f32 v{d}, v{a}, v{a+1}", f"v_cvt_pk_bf16_f32 v{d+1}, v{a+2}, v{a+3}",
            f"v_pk_max_i16 v{d}, v{d}, 0", f"v_pk_max_i16 v{d+1}, v{d+1}, 0",
            f"ds_write_b64 v13, v[{d}:{d+1}] offset:{mb*1024}")
    for r in range(ACC, ACC + 16 * T):
        k.e(f"v_mov_b32 v{r}, 0")
    k.e("s_cmp_lt_u32 s30, 4", "s_cbranch_scc0 ffn_pr1", "s_setprio 2")
    k.label("ffn_pr1")
    k.e("s_and_b32 s34, s30, 12", "s_cmp_eq_u32 s34, 4", "s_cbranch_scc0 ffn_pr2", "s_setprio 1")
    k.label("ffn_pr2")
    k.e("s_waitcnt lgkmcnt(0)", "s_barrier")
    k.stamp(6)
    k.e("s_branch ffn_start")


def gen_mega():
    k = Kernel("mega_kernel", vgprs=168)
    k.e("s_cmp_ge_u32 s2, 256", "s_cbranch_scc1 mega_end")
    k.e("s_load_dwordx4 s[4:7], s[0:1], 48", "s_load_dwordx2 s[8:9], s[0:1], 32", "s_load_dwordx2 s[10:11], s[0:1], 0",
        "s_load_dwordx2 s[12:13], s[0:1], 80", "s_load_dwordx2 s[14:15], s[0:1], 64")
    k.stamp(0)
    k.e("v_and_b32 v1, 63, v0", "v_and_b32 v2, 31, v0", "v_bfe_u32 v3, v0, 5, 1", "v_lshrrev_b32 v7, 6, v0",
        "s_nop 0", "v_readfirstlane_b32 s30, v7")
    k.e("v_lshlrev_b32 v11, 4, v1")
    k.e("s_movk_i32 s40, 18432", "v_lshrrev_b32 v8, 4, v2", "v_mul_u32_u24 v8, s40, v8", "v_and_b32 v9, 15, v2",
        "v_lshl_add_u32 v8, v9, 4, v8", "v_lshl_add_u32 v9, v3, 8, v8",
        "v_lshlrev_b32 v10, 3, v1", f"v_mov_b32 v15, {LDS_ROLE}")
    k.e("s_waitcnt lgkmcnt(0)")
    srd(k, 16, 12, WS_END)
    srd(k, 24, 8, WQB)
    if os.environ.get("STATIC"):
        k.e("s_branch mega_noticket")
    k.e("s_cmp_lg_u32 s30, 0", "s_cbranch_scc1 mega_noticket")
    k.e("s_getreg_b32 s46, hwreg(HW_REG_XCC_ID, 0, 4)", "v_mov_b32 v12, 0", ex(1), "s_mov_b32 s3, 8")
    k.label("mega_ticket")
    k.e("s_and_b32 s46, s46, 7", "s_lshl_b32 s34, s46, 7", f"s_add_u32 s34, s34, {FT}", "v_mov_b32 v13, 1",
        "buffer_atomic_add v13, v12, s[16:19], s34 offen sc0 sc1", "s_waitcnt vmcnt(0)", "v_readfirstlane_b32 s47, v13",
        "s_add_u32 s46, s46, 1", "s_sub_u32 s3, s3, 1", "s_cbranch_scc1 mega_ticketd", "s_cmp_ge_u32 s47, 32", "s_cbranch_scc1 mega_ticket")
    k.label("mega_ticketd")
    k.e("s_sub_u32 s46, s46, 1", "s_lshl_b32 s47, s47, 3", "s_add_u32 s47, s47, s46", "v_mov_b32 v13, s47", "ds_write_b32 v15, v13",
        ex(-1), "s_waitcnt lgkmcnt(0)")
    k.label("mega_noticket")
    k.e("s_cmp_lt_u32 s30, 8", "s_cbranch_scc1 mega_nodma0")
    helper_dma0(k)
    k.label("mega_nodma0")
    if os.environ.get("STATIC"):
        k.e("s_mov_b32 s47, s2")
    else:
        k.e("s_barrier", "ds_read_b32 v13, v15", "s_waitcnt lgkmcnt(0)", "v_readfirstlane_b32 s47, v13")
    k.e("s_and_b32 s46, s47, 7", "s_lshr_b32 s47, s47, 3", "s_and_b32 s47, s47, 31", "s_and_b32 s28, s47, 24", "s_add_u32 s28, s28, s46",
        "s_and_b32 s29, s47, 7")
    k.e("s_lshr_b32 s38, s30, 2", "s_lshl_b32 s38, s38, 1", "s_lshl_b32 s39, s28, 2", "s_add_u32 s38, s38, s39",
        "s_mul_i32 s33, s38, 18432", "s_and_b32 s38, s30, 3", "s_lshl_b32 s39, s29, 2", "s_add_u32 s38, s38, s39",
        "s_mul_i32 s37, s38, 18")
    k.e("s_cmp_ge_u32 s30, 8", "s_cbranch_scc1 mega_helper")
    k.e("s_mov_b32 s52, 0")
    attention(k)
    k.e("s_cmp_lg_u32 s52, 0", "s_cbranch_scc1 mega_ringed")
    ffn_ring_start(k)
    k.label("mega_ringed")
    k.e("s_waitcnt vmcnt(0)")
    k.stamp(3)
    k.e("s_barrier", "s_branch ffn_join")
    k.label("mega_helper")
    helper_pack(k)
    oproj(k)
    ffn_ring_start(k)
    ffn(k)
    k.label("mega_end")
    k.e("s_endpgm")
    return k
```

```python
import re

TRANS = ("v_exp_f32", "v_log_f32", "v_rcp_f32", "v_rsq_f32", "v_sqrt_f32", "v_sin_f32", "v_cos_f32",
         "v_exp_f16", "v_rcp_iflag_f32")
REG_RE = re.compile(r"\b([vsa])\[(\d+):(\d+)\]|\b([vsa])(\d+)\b|\b(vcc|exec|m0|vcc_lo|vcc_hi|exec_lo|exec_hi)\b")


def regs_of(op):
    out = set()
    for m in REG_RE.finditer(op):
        if m.group(1):
            for i in range(int(m.group(2)), int(m.group(3)) + 1):
                out.add((m.group(1), i))
        elif m.group(4):
            out.add((m.group(4), int(m.group(5))))
        else:
            n = m.group(6)
            if n.startswith("vcc"):
                out.add(("x", "vcc"))
            elif n.startswith("exec"):
                out.add(("x", "exec"))
            else:
                out.add(("x", "m0"))
    return out


def split_ops(s):
    ops, depth, cur = [], 0, ""
    for ch in s:
        if ch == "[":
            depth += 1
        if ch == "]":
            depth -= 1
        if ch == "," and depth == 0:
            ops.append(cur.strip())
            cur = ""
        else:
            cur += ch
    if cur.strip():
        ops.append(cur.strip())
    return ops


class Ins:
    def __init__(self, text):
        self.text = text
        t = text.split(";")[0].strip()
        self.label = None
        self.op = None
        self.rd = set()
        self.wr = set()
        self.kind = None
        if t.endswith(":"):
            self.label = t[:-1]
            self.kind = "label"
            return
        if t.startswith(".") or not t:
            self.kind = "dir"
            return
        parts = t.split(None, 1)
        op = parts[0]
        self.op = op
        rest = parts[1] if len(parts) > 1 else ""
        ops = split_ops(rest)
        self.ops = ops
        R = [regs_of(o) for o in ops]
        allr = set().union(*R) if R else set()
        self.dpp = ("_dpp" in op) or ("row_" in rest) or ("quad_perm" in rest)
        self.sdwa = "_sdwa" in op or "op_sel:" in rest
        if op.startswith("v_mfma"):
            self.kind = "mfma"
            self.wr = R[0]
            self.A, self.B, self.C = R[1], R[2], R[3]
            self.rd = R[1] | R[2] | R[3]
            self.passes = 8 if "32x32" in op else (2 if "4x4" in op else 4)
        elif op.startswith("v_"):
            self.kind = "valu"
            base = op.replace("_e32", "").replace("_e64", "").replace("_dpp", "").replace("_sdwa", "")
            self.base = base
            self.trans = base in TRANS
            self.dot = base.startswith("v_dot")
            if base.startswith("v_cmp"):
                self.wr = R[0]
                self.rd = set().union(*R[1:])
                if base.startswith("v_cmpx"):
                    self.wr = self.wr | {("x", "exec")}
            elif base in ("v_add_co_u32", "v_sub_co_u32", "v_addc_co_u32", "v_subb_co_u32", "v_subrev_co_u32",
                          "v_mad_u64_u32", "v_div_scale_f32"):
                self.wr = R[0] | R[1]
                self.rd = set().union(*R[2:])
            elif base.startswith("v_permlane") and "swap" in base:
                self.wr = R[0] | R[1]
                self.rd = R[0] | R[1]
            elif base in ("v_fmac_f32", "v_dot2c_f32_bf16", "v_writelane_b32") or self.dpp or "PRESERVE" in rest:
                self.wr = R[0]
                self.rd = allr
            elif base == "v_nop":
                pass
            else:
                self.wr = R[0]
                self.rd = set().union(*R[1:]) if len(R) > 1 else set()
        elif op.startswith("ds_"):
            self.kind = "ds"
            if op.startswith("ds_read") or "permute" in op or "swizzle" in op or "_rtn" in op:
                self.wr = R[0]
                self.rd = set().union(*R[1:])
            else:
                self.rd = allr
        elif op.startswith("buffer_") or op.startswith("global_") or op.startswith("flat_"):
            self.kind = "vmem"
            self.lds = (" lds" in (" " + rest)) or "_lds_" in op
            self.wide_store = ("store" in op) and ("x3" in op or "x4" in op)
            if self.lds:
                self.rd = allr | {("x", "m0")}
            elif "load" in op:
                self.wr = R[0]
                self.rd = set().union(*R[1:])
            elif "atomic" in op and " sc0" in rest:
                self.wr = R[0]
                self.rd = allr
            else:
                self.rd = allr
            if "store" in op:
                self.data = R[0] if op.startswith("buffer_") else R[1]
        elif op.startswith("s_"):
            self.kind = "salu"
            if op in ("s_nop",):
                self.kind = "nop"
                self.n = int(ops[0], 0) + 1
            elif op.startswith("s_cmp") or op.startswith("s_bitcmp") or op.startswith("s_cbranch") or op in (
                    "s_branch", "s_waitcnt", "s_barrier", "s_endpgm", "s_setprio", "s_sleep", "s_setpc_b64"):
                self.rd = allr
            elif "saveexec" in op:
                self.wr = R[0] | {("x", "exec")}
                self.rd = set().union(*R[1:]) | {("x", "exec")}
            else:
                self.wr = R[0] if R else set()
                self.rd = set().union(*R[1:]) if len(R) > 1 else set()
        else:
            raise ValueError("unknown instr: " + text)

    def states(self):
        if self.kind in ("label", "dir"):
            return 0
        if self.kind == "nop":
            return self.n
        return 1


def vonly(s):
    return {r for r in s if r[0] in "va"}


def sonly(s):
    return {r for r in s if r[0] == "s" or r == ("x", "vcc")}


def need(p, c):
    n = 0
    if p.kind == "valu":
        w = vonly(p.wr)
        if c.kind == "mfma" and (w & c.rd):
            n = max(n, 2)
        if c.kind == "valu":
            if p.trans and not c.trans and (w & c.rd):
                n = max(n, 1)
            if c.dpp and (w & c.rd):
                n = max(n, 2)
            if c.base.startswith("v_permlane") and (w & c.rd):
                n = max(n, 2)
            if c.base in ("v_readlane_b32", "v_readfirstlane_b32") and (w & c.rd):
                n = max(n, 1)
            if p.sdwa and (w & (c.rd | c.wr)):
                n = max(n, 1)
            if p.dot and (w & (c.rd | c.wr)):
                if c.base == p.base:
                    srcab = regs_of(c.ops[1]) | regs_of(c.ops[2])
                    if w & srcab:
                        n = max(n, 3)
                else:
                    n = max(n, 3)
            sw = sonly(p.wr)
            if sw & c.rd:
                n = max(n, 4 if c.base in ("v_readlane_b32", "v_writelane_b32") else 2)
            if ("x", "exec") in p.wr:
                n = max(n, 5)
        if p.dot and c.kind in ("mfma", "ds", "vmem") and (w & c.rd):
            n = max(n, 3)
        if c.kind == "vmem" and (sonly(p.wr) & c.rd):
            n = max(n, 5)
        if c.kind == "salu" and (sonly(p.wr) & c.rd):
            n = max(n, 1)
        if c.kind == "mfma" and ("x", "exec") in p.wr:
            n = max(n, 4)
    elif p.kind == "mfma":
        big = {2: 5, 4: 8, 8: 12}[p.passes]
        if c.kind == "mfma":
            if p.wr & (c.A | c.B):
                n = max(n, big)
            if p.wr & c.C:
                if p.wr == c.C and p.passes == c.passes:
                    n = max(n, 2 if p.passes == 2 else 0)
                else:
                    n = max(n, {2: 4, 4: 6, 8: 10}[p.passes])
        elif c.kind in ("valu", "ds", "vmem"):
            if p.wr & (c.rd | c.wr):
                n = max(n, big)
            if c.kind == "valu" and (p.C & c.wr):
                n = max(n, {2: 1, 4: 3, 8: 7}[p.passes])
    elif p.kind == "salu":
        if ("x", "m0") in p.wr and c.kind == "vmem" and c.lds:
            n = max(n, 1)
    elif p.kind == "vmem":
        if p.wide_store and (p.data & vonly(c.wr)):
            n = max(n, 2 if c.kind in ("valu", "mfma") else 1)
    return n


class Kernel:
    def __init__(self, name, vgprs=256, sgprs=96, accum=None):
        self.name = name
        self.lines = []
        self.vgprs = vgprs
        self.sgprs = sgprs
        self.accum = accum
        self._lab = 0

    def e(self, *texts):
        for t in texts:
            for l in t.split("\n"):
                if l.strip():
                    self.lines.append(l.strip())

    def label(self, name):
        self.lines.append(f"{name}:")

    STAMP = False
    def stamp(self, i):
        if not Kernel.STAMP:
            return
        b = 80 + 2 * i
        self.e("s_memtime s[76:77]", "s_memrealtime s[78:79]", "s_waitcnt lgkmcnt(0)", f"s_mov_b32 s{b}, s76", f"s_mov_b32 s{b+1}, s78")

    def stamp_flush(self, kidx, n, srd, wave_sgpr, wpw=8):
        if not Kernel.STAMP:
            return
        self.e("s_waitcnt vmcnt(0)")
        self.stamp(n - 1)
        self.e("s_mov_b32 exec_lo, 1", "s_mov_b32 exec_hi, 0")
        self.e(f"s_mul_i32 s76, s2, {wpw}", f"s_add_u32 s76, s76, s{wave_sgpr}" if wave_sgpr is not None else "s_nop 0", "s_lshl_b32 s76, s76, 7",
               f"s_add_u32 s76, s76, {0x2360000 + kidx * 0x100000}", "v_mov_b32 v0, 0")
        for i in range(n):
            b = 80 + 2 * i
            for j in range(2):
                self.e(f"v_mov_b32 v{4+j}, s{b+j}")
            self.e(f"buffer_store_dwordx2 v[4:5], v0, s[{srd}:{srd+3}], s76 offen offset:{8*i}", "s_waitcnt vmcnt(0)")

    def newlabel(self, base="L"):
        self._lab += 1
        return f"{self.name}_{base}{self._lab}"

    def finalize(self):
        ins = [Ins(l) for l in self.lines]
        changed = True
        while changed:
            changed = False
            labels = {x.label: i for i, x in enumerate(ins) if x.kind == "label"}
            preds = {}
            for i, x in enumerate(ins):
                if x.op and (x.op.startswith("s_cbranch") or x.op == "s_branch"):
                    tgt = x.ops[0]
                    preds.setdefault(labels[tgt], []).append(i)
            for i, c in enumerate(ins):
                if c.kind in ("label", "dir", "nop"):
                    continue
                req = 0
                stack = [(i - 1, 0)]
                seen = set()
                while stack:
                    j, dist = stack.pop()
                    if j < 0 or dist >= 12 or (j, dist) in seen:
                        continue
                    seen.add((j, dist))
                    p = ins[j]
                    if p.kind == "label":
                        for b in preds.get(j, []):
                            stack.append((b, dist))
                        q = j - 1
                        while q >= 0 and ins[q].kind in ("dir",):
                            q -= 1
                        if q >= 0 and not (ins[q].op in ("s_branch", "s_endpgm", "s_setpc_b64")):
                            stack.append((j - 1, dist))
                        continue
                    if p.kind not in ("dir", "nop"):
                        r = need(p, c) - dist
                        if r > req:
                            req = r
                    stack.append((j - 1, dist + p.states()))
                if req > 0:
                    ins.insert(i, Ins(f"s_nop {req - 1}"))
                    changed = True
                    break
        self.ins = ins
        mv = 0
        ms = 0
        for x in ins:
            for r in (x.rd | x.wr):
                if r[0] == "v":
                    mv = max(mv, r[1] + 1)
                if r[0] == "s":
                    ms = max(ms, r[1] + 1)
        self.maxv, self.maxs = mv, ms
        return ins

    def text(self):
        ins = self.finalize()
        nv = max(self.maxv, 8)
        if self.vgprs is not None:
            assert self.maxv <= self.vgprs, (self.name, self.maxv)
        acc = (nv + 3) // 4 * 4
        out = [f".globl {self.name}", ".p2align 8", f".type {self.name},@function", f"{self.name}:"]
        for x in ins:
            out.append(x.text if x.kind == "label" else "    " + x.text)
        code = "\n".join(out) + "\n"
        kd = f""".amdhsa_kernel {self.name}
  .amdhsa_next_free_vgpr {nv}
  .amdhsa_next_free_sgpr {max(self.maxs, 16)}
  .amdhsa_accum_offset {acc}
  .amdhsa_group_segment_fixed_size 0
  .amdhsa_kernarg_size 88
  .amdhsa_user_sgpr_count 2
  .amdhsa_user_sgpr_kernarg_segment_ptr 1
  .amdhsa_system_sgpr_workgroup_id_x 1
  .amdhsa_float_denorm_mode_32 3
.end_amdhsa_kernel
"""
        return code, kd
```

```python
import os
from asmlib import Kernel
from layout import *
from k_small import f2u, srd, ex, reduce_g_add, dma_slot_calc

S0, S1, OA, P, KF, V0, V1, K2F, Q, Q2E, Q2O = 16, 32, 48, 64, 72, 76, 80, 84, 88, 92, 94
T0 = 96
PIN, POUT, PS = 16, 64, 112
LDS_OST = 151808
LDS_RES = 49408
LDS_WO = 59648
LDS_H = 73728
LDS_S = 161024
LDS_RDY = 163328
LDS_CNT = 163344
LDS_WQC = 163392
LDS_KVS = LDS_WQC + 12
LDS_KVR = LDS_WQC + 16
LDS_KMX = LDS_WQC + 20
LDS_KVI = LDS_WQC + 24
LDS_XC = LDS_WQC + 28
LDS_WKI = LDS_WQC + 32
LDS_NON = LDS_WQC + 40
LDS_MEGA = 163456
A_WKV = 0
A_WQ0 = 29696
A_X = 70656
A_WQ1 = A_X + 18432
A_SQ = LDS_S
A_SKV = LDS_S + 320
A_ST = LDS_S + 448
QX0, QACC, QWF, QONES = 48, 120, 140, 36
OX0, OACC, OWF = 48, 120, 140
XB0, ACC, WR = 16, 48, 96
D = 6
T = 3
STREAM = 36 * T * 1024
SPIN = 1 << 20
STA = bool(os.environ.get("STA"))


def sta(k, i):
    if STA:
        k.stamp(i)


def stb(k, i):
    if not STA:
        k.stamp(i)
WAUX = os.environ.get("WAUX", "sc1")


def r4(b):
    return f"v[{b}:{b+3}]"


def r16(b):
    return f"v[{b}:{b+15}]"


def poll(k, vaddr, soff, vtmp, tag, sleep=2, lo_only=False):
    lab, done = f"mega_poll_{tag}", f"mega_polld_{tag}"
    k.e(f"s_mov_b32 s3, {SPIN}")
    k.label(lab)
    k.e(f"buffer_load_dwordx2 v[{vtmp}:{vtmp+1}], v{vaddr}, s[16:19], s{soff} offen sc1", "s_waitcnt vmcnt(0)")
    if lo_only:
        k.e(f"v_cmp_eq_u32 vcc, s66, v{vtmp}")
    else:
        k.e(f"v_cmp_eq_u64 vcc, s[66:67], v[{vtmp}:{vtmp+1}]")
    k.e("s_cmp_eq_u64 vcc, -1", f"s_cbranch_scc1 {done}",
        f"s_sleep {sleep}", "s_sub_u32 s3, s3, 1", f"s_cbranch_scc0 {lab}")
    k.label(done)


def set_flag(k, soff):
    k.e("v_mov_b32 v12, 0", "v_mov_b32 v14, s66", "v_mov_b32 v15, s67", ex(1),
        f"buffer_store_dwordx2 v[14:15], v12, s[16:19], s{soff} offen sc1", ex(-1))


def lds_signal(k, addr, va=12, vb=13):
    k.e(f"v_mov_b32 v{va}, {addr}", f"v_mov_b32 v{vb}, 1", ex(1), f"ds_add_u32 v{va}, v{vb}", ex(-1))


def lds_wait(k, addr, n, tag, va=12, vb=13):
    lab, done = f"mega_lw_{tag}", f"mega_lwd_{tag}"
    k.e(f"v_mov_b32 v{va}, {addr}", f"s_mov_b32 s3, {SPIN*8}")
    k.label(lab)
    k.e(f"ds_read_b32 v{vb}, v{va}", "s_waitcnt lgkmcnt(0)", f"v_readfirstlane_b32 s39, v{vb}", f"s_cmp_ge_u32 s39, {n}",
        f"s_cbranch_scc1 {done}", "s_sleep 1", "s_sub_u32 s3, s3, 1", f"s_cbranch_scc0 {lab}")
    k.label(done)


def arrive(k, cnt, n, soff, tag, cnt_sgpr=None):
    if cnt_sgpr is None:
        k.e(f"v_mov_b32 v12, {LDS_CNT + 4*cnt}")
    else:
        k.e(f"v_mov_b32 v12, s{cnt_sgpr}")
    k.e("v_mov_b32 v13, 1", ex(1), "ds_add_rtn_u32 v14, v12, v13", ex(-1), "s_waitcnt lgkmcnt(0)",
        "v_readfirstlane_b32 s3, v14", f"s_cmp_lg_u32 s3, {n-1}", f"s_cbranch_scc1 mega_arr_{tag}")
    set_flag(k, soff)
    k.label(f"mega_arr_{tag}")


def publish_o(k, tag, pre=None):
    k.e("s_and_b32 s34, s30, 3", "s_lshr_b32 s35, s30, 2", "s_mul_i32 s36, s34, 2304", "s_mul_i32 s37, s35, 768",
        "s_add_u32 s36, s36, s37", f"s_add_u32 s36, s36, {LDS_OST}", "v_add_u32 v12, s36, v11",
        f"ds_read_b128 {r4(4)}, v12")
    k.e("s_lshl_b32 s36, s28, 2", "s_add_u32 s36, s36, s34", "s_mul_i32 s38, s36, 18432", "s_mul_i32 s39, s29, 2304",
        "s_add_u32 s38, s38, s39", "s_add_u32 s38, s38, s37", f"s_add_u32 s38, s38, {WS_O}")
    k.e("s_lshl_b32 s36, s28, 7", "s_lshl_b32 s39, s29, 3", "s_add_u32 s36, s36, s39", f"s_add_u32 s36, s36, {F1}")
    k.e("s_waitcnt lgkmcnt(0)", ex((1 << 48) - 1), f"buffer_store_dwordx4 {r4(4)}, v11, s[16:19], s38 offen sc1", ex(-1),
        "s_waitcnt vmcnt(0)")
    arrive(k, 1, 12, 36, tag)
    if pre:
        pre(k)


def attention(k):
    k.e("v_and_b32 v2, 31, v1", "v_lshrrev_b32 v3, 5, v1")
    k.e("s_lshr_b32 s35, s30, 2", "s_mul_i32 s35, s35, 4608", f"s_add_u32 s35, s35, {LDS_OST}", "s_movk_i32 s36, 2304",
        "v_lshrrev_b32 v8, 4, v2", "v_mul_u32_u24 v8, s36, v8", "v_and_b32 v9, 15, v2", "v_lshl_add_u32 v8, v9, 4, v8",
        "v_add_u32 v8, s35, v8", "v_lshl_add_u32 v9, v3, 8, v8", "s_and_b32 s37, s30, 3", "s_mul_i32 s37, s37, 18")
    for i in range(4):
        k.e(f"s_add_u32 s38, s37, {2*i}", "s_lshr_b32 s39, s38, 3", "s_lshl_b32 s39, s39, 8", "s_and_b32 s38, s38, 7",
            "s_lshl_b32 s38, s38, 1", "s_add_u32 s38, s38, s39", f"v_add_u32 v{Q+i}, s38, v9")
        if i == 0:
            k.e(f"v_add_u32 v{T0}, s38, v8")
    k.e(f"v_mov_b32 v{T0+2}, {LDS_KMX}")
    k.e("v_mov_b32 v12, v11")
    k.e("v_cmp_eq_u32 vcc, 28, v2", "v_cndmask_b32 v13, v2, 18, vcc",
        "v_cmp_lt_u32 vcc, 18, v13", "v_mov_b32 v14, 0x10000", "v_cndmask_b32 v13, v13, v14, vcc",
        "s_movk_i32 s40, 304", "v_mul_u32_u24 v14, s40, v3", "v_lshl_add_u32 v13, v13, 4, v14", f"v_add_u32 v13, {KV_V}, v13")
    k.e("v_min_u32 v14, 32, v1", "v_lshlrev_b32 v14, 4, v14", f"v_add_u32 v14, {KV_K2}, v14")
    k.e("v_cmp_eq_u32 s[44:45], 1, v3")
    k.e("s_waitcnt lgkmcnt(0)", "s_setprio 3", "s_barrier")
    for i in range(4):
        k.e(f"ds_read_b32 v{Q+i}, v{Q+i}")
    k.e(f"ds_read_b32 v{T0}, v{T0} offset:512", f"ds_read_b32 v{T0+2}, v{T0+2}", "s_waitcnt lgkmcnt(0)")
    k.e(f"v_cndmask_b32 v{T0}, v{T0}, 0, s[44:45]")
    k.e(f"v_mov_b32 v{T0+1}, 0")
    for r in (Q, Q + 1, Q + 2, Q + 3, T0):
        k.e(f"v_dot2c_f32_bf16 v{T0+1}, v{r}, v{r}")
    k.e(f"v_mov_b32 v{T0+4}, v{T0+1}", f"v_permlane32_swap_b32 v{T0+1}, v{T0+4}", f"v_add_f32 v{T0+1}, v{T0+1}, v{T0+4}")
    k.e(f"v_mul_f32 v{T0+1}, v{T0+1}, v{T0+2}", f"v_sqrt_f32 v{T0+1}, v{T0+1}", f"v_mul_f32 v{T0+1}, {hex(f2u(1.02))}, v{T0+1}")
    k.e("s_mov_b32 s32, 0")
    k.label("attn_setm")
    k.e(f"v_xor_b32 v{T0+2}, 0x80000000, v{T0+1}",
        f"v_and_b32 v{T0+3}, 0xffff0000, v{T0+2}", f"v_sub_f32 v{T0+2}, v{T0+2}, v{T0+3}",
        f"v_and_b32 v{T0+4}, 0xffff0000, v{T0+2}", f"v_sub_f32 v{T0+2}, v{T0+2}, v{T0+4}",
        f"v_lshrrev_b32 v{T0+3}, 16, v{T0+3}", f"v_or_b32 v{T0+3}, v{T0+3}, v{T0+4}",
        f"v_lshrrev_b32 v{T0+2}, 16, v{T0+2}")
    k.e(f"v_cndmask_b32 v{Q2E}, v{T0}, v{T0+3}, s[44:45]", f"v_cndmask_b32 v{Q2E+1}, 0, v{T0+2}, s[44:45]",
        f"v_cndmask_b32 v{Q2O}, 0, v{T0+3}, s[44:45]", f"v_cndmask_b32 v{Q2O+1}, v{T0}, v{T0+2}, s[44:45]")
    k.e("v_mov_b32 v4, v12", "v_mov_b32 v5, v13", "v_mov_b32 v6, v14")
    k.e("s_cmp_eq_u32 s32, 10", "s_cbranch_scc1 attn_maxpass")
    for r in list(range(OA, OA + 16)) + list(range(P, P + 8)) + list(range(V1, V1 + 4)):
        k.e(f"v_mov_b32 v{r}, 0")
    k.e("s_mov_b32 s31, 16", "s_cmp_eq_u32 s32, 11", "s_cbranch_scc1 attn_start")
    k.e("s_mov_b32 s31, 2")
    k.label("attn_start")
    k.stamp(2)
    k.e(f"ds_read_b128 {r4(KF)}, v4", f"ds_read_b128 {r4(K2F)}, v6", f"ds_read_b128 {r4(V0)}, v5", "s_waitcnt lgkmcnt(0)")
    k.e(f"v_mfma_f32_32x32x16_bf16 {r16(S0)}, {r4(KF)}, {r4(Q)}, 0",
        f"v_mfma_f32_32x32x8_bf16 {r16(S0)}, v[{K2F}:{K2F+1}], v[{Q2E}:{Q2E+1}], {r16(S0)}")
    k.e(f"ds_read_b128 {r4(KF)}, v4 offset:1024", "s_waitcnt lgkmcnt(0)", "s_nop 7", "s_nop 3")
    k.e(".p2align 6")
    k.label("attn_loop")
    for tau in range(4):
        cur, nxt = (S0, S1) if tau % 2 == 0 else (S1, S0)
        t1 = (tau + 1) % 4
        koff = (tau + 2) * 1024 if tau < 2 else GRP + (tau - 2) * 1024
        v0off = (tau + 1) * 1216 if tau < 3 else GRP

        def ex_(a, b):
            for i in range(a, b):
                k.e(f"v_exp_f32 v{cur+i}, v{cur+i}")

        def cv(a, b):
            for i in range(a, b):
                k.e(f"v_cvt_pk_bf16_f32 v{P+i}, v{cur+2*i}, v{cur+2*i+1}")
        k.e("s_waitcnt lgkmcnt(2)")
        k.e(f"v_mfma_f32_32x32x16_bf16 {r16(nxt)}, {r4(KF)}, {r4(Q)}, 0")
        k.e(f"ds_read_b128 {r4(KF)}, v4 offset:{koff}")
        ex_(0, 3)
        k.e("s_waitcnt lgkmcnt(2)")
        k.e(f"v_mfma_f32_32x32x16_bf16 {r16(OA)}, {r4(V1)}, {r4(P+4)}, {r16(OA)}")
        k.e(f"ds_read_b128 {r4(V1)}, v5 offset:{tau*1216+608}")
        ex_(3, 6)
        q2 = Q2E if t1 % 2 == 0 else Q2O
        kk = K2F + 2 * (t1 // 2)
        k.e(f"v_mfma_f32_32x32x8_bf16 {r16(nxt)}, v[{kk}:{kk+1}], v[{q2}:{q2+1}], {r16(nxt)}")
        if tau == 2:
            k.e(f"ds_read_b128 {r4(K2F)}, v6 offset:{GRP}")
        ex_(6, 9)
        cv(0, 4)
        ex_(9, 12)
        k.e("s_waitcnt lgkmcnt(2)")
        k.e(f"v_mfma_f32_32x32x16_bf16 {r16(OA)}, {r4(V0)}, {r4(P)}, {r16(OA)}")
        k.e(f"ds_read_b128 {r4(V0)}, v5 offset:{v0off}")
        ex_(12, 16)
        if tau == 3:
            k.e(f"v_add_u32 v4, {GRP}, v4", f"v_add_u32 v5, {GRP}, v5", f"v_add_u32 v6, {GRP}, v6")
            k.e("s_sub_u32 s31, s31, 1", "s_cmp_lg_u32 s31, 0")
        cv(4, 8)
    k.e("s_cbranch_scc1 attn_loop")
    k.e("s_cmp_ge_u32 s32, 4", "s_cbranch_scc1 attn_tail")
    k.e("s_add_u32 s32, s32, 1")
    k.e("s_cmp_eq_u32 s32, 2", "s_cbranch_scc1 attn_ph2", "s_cmp_eq_u32 s32, 3", "s_cbranch_scc1 attn_ph3",
        "s_cmp_eq_u32 s32, 4", "s_cbranch_scc1 attn_ph4")
    k.e("s_barrier", "s_mov_b32 s31, 7", "s_branch attn_loop")
    for ph, cnt, pr in ((2, 4, 2), (3, 2, 1), (4, 1, 0)):
        k.label(f"attn_ph{ph}")
        k.e(f"s_setprio {pr}", f"s_mov_b32 s31, {cnt}")
        if ph == 4:
            k.e(f"v_mov_b32 v{T0+6}, {LDS_RDY}", f"ds_read_b32 v{T0+6}, v{T0+6}", "s_waitcnt lgkmcnt(0)",
                f"v_readfirstlane_b32 s52, v{T0+6}", "s_cmp_eq_u32 s52, 0", "s_cbranch_scc1 attn_loop")
            ffn_ring_start(k)
        k.e("s_branch attn_loop")
    k.label("attn_maxpass")
    k.e(f"v_mov_b32 v{T0+1}, 0xff800000", "s_mov_b32 s31, 16")
    k.label("attn_maxloop")
    k.e(f"ds_read_b128 {r4(K2F)}, v6")
    for tau in range(4):
        q2 = Q2E if tau % 2 == 0 else Q2O
        kk = K2F + 2 * (tau // 2)
        k.e(f"ds_read_b128 {r4(KF)}, v4 offset:{tau*1024}", "s_waitcnt lgkmcnt(0)")
        k.e(f"v_mfma_f32_32x32x16_bf16 {r16(S0)}, {r4(KF)}, {r4(Q)}, 0",
            f"v_mfma_f32_32x32x8_bf16 {r16(S0)}, v[{kk}:{kk+1}], v[{q2}:{q2+1}], {r16(S0)}")
        for i in range(8):
            k.e(f"v_max3_f32 v{T0+1}, v{S0+2*i}, v{S0+2*i+1}, v{T0+1}")
    k.e(f"v_add_u32 v4, {GRP}, v4", f"v_add_u32 v6, {GRP}, v6", "s_sub_u32 s31, s31, 1", "s_cmp_lg_u32 s31, 0",
        "s_cbranch_scc1 attn_maxloop")
    k.e(f"v_mov_b32 v{T0+2}, v{T0+1}", f"v_permlane32_swap_b32 v{T0+1}, v{T0+2}", f"v_max_f32 v{T0+1}, v{T0+1}, v{T0+2}")
    k.e("s_mov_b32 s32, 11", "s_branch attn_setm")
    k.label("attn_tail")
    k.e("s_waitcnt lgkmcnt(0)")
    k.e(f"v_mfma_f32_32x32x16_bf16 {r16(OA)}, {r4(V1)}, {r4(P+4)}, {r16(OA)}")
    k.e("s_and_b32 s34, s30, 3", "s_mul_i32 s34, s34, 18", "s_lshr_b32 s35, s30, 2", "s_mul_i32 s35, s35, 4608",
        f"s_add_u32 s35, s35, {LDS_OST}", "s_movk_i32 s36, 2304",
        f"v_lshrrev_b32 v{T0+9}, 4, v2", f"v_mul_u32_u24 v{T0+9}, s36, v{T0+9}", f"v_and_b32 v{T0+8}, 15, v2",
        f"v_lshl_add_u32 v{T0+9}, v{T0+8}, 4, v{T0+9}", f"v_add_u32 v{T0+9}, s35, v{T0+9}")
    k.e(f"v_lshl_add_u32 v{T0+6}, v3, 2, s34", f"v_add_u32 v{T0+7}, 2, v{T0+6}")
    for r in (T0 + 6, T0 + 7):
        k.e(f"v_lshrrev_b32 v{T0+8}, 3, v{r}", f"v_and_b32 v{r}, 7, v{r}", f"v_lshl_add_u32 v{r}, v{r}, 1, v{T0+9}",
            f"v_lshl_add_u32 v{r}, v{T0+8}, 8, v{r}")
    k.e(f"v_cndmask_b32 v{T0+5}, v{OA+10}, v{OA+12}, s[44:45]")
    k.e(f"v_cmp_le_f32 vcc, {hex(f2u(2.0**-40))}, v{T0+5}")
    k.e("s_cmp_eq_u32 s32, 11", "s_cbranch_scc1 attn_fin")
    k.e("s_cmp_eq_u64 vcc, -1", "s_cbranch_scc1 attn_fin")
    k.e("s_mov_b32 s32, 10", f"v_mov_b32 v{T0+1}, 0", "s_branch attn_setm")
    k.label("attn_fin")
    k.e(f"v_rcp_f32 v{T0+5}, v{T0+5}")
    for i in range(10):
        k.e(f"v_mul_f32 v{OA+i}, v{T0+5}, v{OA+i}")
    for i in range(5):
        k.e(f"v_cvt_pk_bf16_f32 v{P+i}, v{OA+2*i}, v{OA+2*i+1}")
    k.e(f"ds_write_b32 v{T0+6}, v{P}", f"ds_write_b32 v{T0+7}, v{P+1}",
        f"ds_write_b32 v{T0+6}, v{P+2} offset:256", f"ds_write_b32 v{T0+7}, v{P+3} offset:256",
        ex(0xffffffff), f"ds_write_b32 v{T0+6}, v{P+4} offset:512", ex(-1))
    wo_dma_setup(k)
    k.e("s_waitcnt lgkmcnt(0)", "s_barrier")
    stb(k, 3)
    publish_o(k, "oa", pre=wo_dma)


def kv_dma(k, a, b):
    for i in range(a, b):
        k.e(f"s_add_u32 m0, s34, {i*4096}", "s_nop 0", "buffer_load_dwordx4 v10, s[16:19], s35 offen sc1 lds",
            "v_add_u32 v10, 4096, v10", f"v_subrev_u32 v9, {IMG}, v10", "v_min_u32 v10, v10, v9")


NB = 7


def roll_gemm(k, steps, rd, mfma, pre=None):
    seq = [(s, t) for s in steps for t in range(5)]
    n = len(seq)
    for i in range(min(NB, n)):
        rd(seq[i][1], seq[i][0], i % NB)
    for i, (s, t) in enumerate(seq):
        ahead = min(NB - 1, n - 1 - i)
        extra = pre(s) if (pre and t == 0) else ""
        k.e(f"s_waitcnt lgkmcnt({2*ahead}){extra}")
        mfma(t, s, i % NB)
        if i + NB < n:
            rd(seq[i + NB][1], seq[i + NB][0], i % NB)


def helper_pack(k):
    def dma(a, b):
        kv_dma(k, a, b)
    dma(7, 12)
    k.e("s_waitcnt vmcnt(5)", "s_barrier")
    dma(12, 37)
    k.e("s_cmp_lg_u32 s31, 0", "s_cbranch_scc1 mega_h_nolast")
    k.e(ex(0xffff))
    dma(37, 38)
    k.e(ex(-1))
    k.label("mega_h_nolast")
    k.e("s_lshl_b32 s34, s31, 6", "v_add_u32 v12, s34, v1", "v_min_u32 v12, 161, v12", "v_lshlrev_b32 v12, 7, v12",
        "s_mul_i32 s34, s47, 20736")
    k.e("s_lshl_b32 s50, s31, 5", "s_add_u32 s50, s50, s47",
        "s_cmp_ge_u32 s50, 54", "s_cselect_b32 s53, 1, 0",
        "s_mul_i32 s51, s53, 54", "s_sub_u32 s51, s50, s51",
        "s_mul_i32 s54, s51, 57", "s_lshr_b32 s54, s54, 10",
        "s_mul_i32 s52, s54, 18", "s_sub_u32 s52, s51, s52",
        "s_cmp_eq_u32 s53, 0",
        "s_cselect_b32 s20, s4, s6", "s_cselect_b32 s21, s5, s7", f"s_mov_b32 s22, {hex(W1B)}", "s_mov_b32 s23, 0x00020000",
        "s_movk_i32 s56, 1152", "s_cselect_b32 s56, 9216, s56",
        "s_movk_i32 s57, 1152", "s_cselect_b32 s57, s57, 663552", "s_mul_i32 s57, s57, s46",
        "s_mul_i32 s58, s54, 192", "s_mul_i32 s58, s58, s56", "s_add_u32 s57, s57, s58",
        "s_lshl_b32 s58, s52, 6", "s_add_u32 s57, s57, s58")
    k.e("s_add_u32 s58, s53, s54", "s_cmp_eq_u32 s58, 3", "s_cselect_b32 s58, 2, 1", "s_cselect_b32 s59, -5, 1",
        "s_mul_i32 s58, s58, s56", "s_mul_i32 s59, s59, s56", "s_mul_i32 s60, s56, 25")
    k.e("v_lshrrev_b32 v2, 4, v1", "v_lshlrev_b32 v2, 3, v2", "v_mul_u32_u24 v15, s56, v2", "v_and_b32 v3, 15, v1",
        "v_lshl_add_u32 v15, v3, 2, v15", "v_lshlrev_b32 v8, 2, v3",
        "s_mov_b32 s64, 0x05040100", "s_mov_b32 s65, 0x07060302")
    k.e(f"s_mul_i32 s62, s52, {STREAM}", f"s_mul_i32 s63, s52, {2*STREAM}", f"s_sub_u32 s63, s63, {24*STREAM - 2048}",
        "s_cmp_lt_u32 s52, 12", "s_cselect_b32 s62, s62, s63", "s_movk_i32 s61, 1024", f"s_cselect_b32 s61, s61, {STREAM}",
        "s_mul_i32 s63, s53, 3", "s_add_u32 s63, s63, s54", f"s_mul_i32 s63, s63, {6*3072}", "s_add_u32 s62, s62, s63",
        f"s_mul_i32 s63, s46, {1296*1024}", "s_add_u32 s62, s62, s63", f"s_add_u32 s62, s62, {WS_W}",
        "s_add_u32 s61, s61, s62")
    for i in range(4):
        k.e(f"v_mov_b32 v{PS+8+i}, 0x3f803f80")
    k.e("s_waitcnt vmcnt(0)", "s_barrier")
    k.e("buffer_load_dword v13, v12, s[24:27], s34 offen")
    k.e("s_cmp_ge_u32 s50, 108", "s_cbranch_scc1 mega_h_nounit")
    for ss in range(6):
        for jj in range(8):
            k.e(f"buffer_load_dword v{PIN+8*ss+jj}, v15, s[20:23], s57 offen",
                f"s_add_u32 s57, s57, s{60 if jj == 7 else (59 if jj == 3 else 58)}")
    for ss in range(6):
        k.e(f"s_waitcnt vmcnt({40 - 8*ss + 2*ss})")
        for e in range(2):
            for q in range(4):
                k.e(f"v_perm_b32 v{POUT+8*ss+4*e+q}, v{PIN+8*ss+2*q+1}, v{PIN+8*ss+2*q}, s{64+e}")
            k.e(f"buffer_store_dwordx4 {r4(POUT+8*ss+4*e)}, v11, s[16:19], s{62-e} offen sc1", f"s_add_u32 s{62-e}, s{62-e}, 3072")
    k.e("s_cmp_lg_u32 s53, 0", "s_cbranch_scc1 mega_h_nounit")
    for ss in range(6):
        for e in range(2):
            k.e(f"v_mfma_f32_16x16x32_bf16 {r4(PS+4*e)}, {r4(PS+8)}, {r4(POUT+8*ss+4*e)}, {r4(PS+4*e) if ss else 0}")
    k.e("s_mul_i32 s58, s54, 18432", "s_mul_i32 s59, s46, 2304", "s_add_u32 s58, s58, s59", "s_lshl_b32 s59, s52, 7",
        "s_add_u32 s58, s58, s59", f"s_add_u32 s58, s58, {WS_SP}")
    k.e(ex(0xffff), f"buffer_store_dword v{PS}, v8, s[16:19], s58 offen sc1",
        f"buffer_store_dword v{PS+4}, v8, s[16:19], s58 offen offset:64 sc1", ex(-1))
    k.label("mega_h_nounit")
    k.e("s_waitcnt vmcnt(0)", "s_lshl_b32 s34, s46, 9", f"s_add_u32 s36, s34, {FP}", "s_lshr_b32 s35, s47, 3", "s_lshl_b32 s35, s35, 7",
        "s_add_u32 s34, s36, s35", "s_lshl_b32 s35, s29, 3", "s_add_u32 s34, s34, s35")
    k.stamp(2)
    arrive(k, 0, 4, 34, "p")
    k.e("v_bfe_u32 v12, v1, 3, 2", "v_lshlrev_b32 v12, 7, v12", "v_and_b32 v13, 7, v1", "v_lshl_add_u32 v12, v13, 3, v12")
    poll(k, 12, 36, 14, "p", sleep=64)
    k.e("s_lshl_b32 s34, s31, 6", "v_add_u32 v12, s34, v1", "v_add_u32 v13, 256, v12", "v_min_u32 v13, 323, v13",
        "v_lshlrev_b32 v14, 7, v12", "v_lshlrev_b32 v13, 7, v13",
        f"s_mul_i32 s34, s46, {1296*1024}", "s_mul_i32 s35, s47, 41472", "s_add_u32 s34, s34, s35", f"s_add_u32 s34, s34, {WS_W}",
        "buffer_load_dword v14, v14, s[16:19], s34 offen sc1", "buffer_load_dword v13, v13, s[16:19], s34 offen sc1")
    k.e("v_min_u32 v12, 143, v12", "v_lshlrev_b32 v12, 4, v12", "s_mul_i32 s34, s46, 2304", f"s_add_u32 s34, s34, {WS_SP}")
    for i in range(3):
        k.e(f"buffer_load_dwordx4 {r4(PIN+4*i)}, v12, s[16:19], s34 offen sc1", "s_add_u32 s34, s34, 18432")
    k.e(f"v_add_u32 v12, {LDS_S}, v12", "s_waitcnt vmcnt(0)")
    for i in range(1, 3):
        for c in range(4):
            k.e(f"v_add_f32 v{PIN+c}, v{PIN+c}, v{PIN+4*i+c}")
    k.e(f"ds_write_b128 v12, {r4(PIN)}", f"v_mov_b32 v12, {LDS_RDY}", "v_mov_b32 v13, 1", "ds_write_b32 v12, v13")


def wo_dma_setup(k):
    k.e("s_movk_i32 s40, 6554", "s_movk_i32 s41, 1152")
    for i in range(5):
        dma_slot_calc(k, i, 32, 33, 34, 35)
        k.e(f"v_mul_u32_u24 v{16+i}, s41, v35", f"v_lshl_add_u32 v{16+i}, v34, 4, v{16+i}")
    k.e("s_mul_i32 s32, s29, 144", "s_mul_i32 s42, s30, 36864", "s_add_u32 s42, s42, s32",
        "s_mul_i32 s43, s30, 5120", f"s_add_u32 s43, s43, {LDS_WO}")


def wo_dma(k):
    def wdma(grp):
        for i in range(5):
            k.e(f"s_add_u32 m0, s43, {grp*8*5120 + i*1024}", "s_nop 0", f"buffer_load_dwordx4 v{16+i}, s[24:27], s42 offen lds")
        k.e(f"s_add_u32 s42, s42, {8*36864}")
    wdma(0)
    wdma(1)
    k.e("s_cmp_ge_u32 s30, 2", "s_cbranch_scc1 mega_o_skip")
    wdma(2)
    k.label("mega_o_skip")
    k.e("s_cmp_lt_u32 s30, 4", "s_cbranch_scc1 mega_r_skip")
    srd(k, 48, 10, XB)
    k.e("s_sub_u32 s34, s30, 4", "s_mul_i32 s44, s34, 2560", f"s_add_u32 s44, s44, {LDS_RES}",
        "s_lshl_b32 s35, s28, 2", "s_add_u32 s35, s35, s34", "s_mul_i32 s35, s35, 18432", "s_add_u32 s35, s35, s32")
    for i in range(3):
        if i == 2:
            k.e(ex(0xffffffff))
        k.e(f"s_add_u32 m0, s44, {i*1024}", "s_nop 0", f"buffer_load_dwordx4 v{16+i}, s[48:51], s35 offen lds")
    k.e(ex(-1))
    k.label("mega_r_skip")


def oproj(k):
    k.e("v_and_b32 v2, 15, v1", "v_lshrrev_b32 v3, 4, v1")
    k.e("v_lshrrev_b32 v32, 2, v2",
        "v_and_b32 v33, 1, v3", "v_lshlrev_b32 v33, 2, v33", "v_add_u32 v32, v32, v33",
        "v_lshl_add_u32 v32, v3, 3, v32", "v_xor_b32 v33, 4, v32", "s_movk_i32 s40, 160",
        "v_and_b32 v34, 3, v2", "v_lshlrev_b32 v34, 3, v34", f"v_add_u32 v34, {LDS_WO}, v34",
        "v_mad_u32_u24 v28, v32, s40, v34", "v_mad_u32_u24 v29, v33, s40, v34",
        "v_add_u32 v30, 61440, v28", "v_add_u32 v31, 61440, v29")
    k.e("s_mul_i32 s44, s31, 2560", f"s_add_u32 s44, s44, {LDS_RES}",
        "v_and_b32 v21, 8, v2", "v_lshrrev_b32 v21, 1, v21", "v_xor_b32 v21, v21, v2", "v_mul_u32_u24 v21, s40, v21",
        "v_lshl_add_u32 v21, v3, 3, v21", "v_add_u32 v21, s44, v21")
    k.e("v_and_b32 v22, 1, v3", "v_lshlrev_b32 v22, 9, v22", "v_lshrrev_b32 v32, 1, v3", "v_lshl_add_u32 v22, v32, 8, v22",
        "v_lshl_add_u32 v22, v2, 4, v22")
    k.e("v_and_b32 v23, 7, v1", "v_lshlrev_b32 v23, 3, v23")
    for r in range(OACC, OACC + 20):
        k.e(f"v_mov_b32 v{r}, 0")
    k.e("s_lshl_b32 s48, s28, 2", "s_add_u32 s48, s48, s31", "s_mul_i32 s49, s48, 18432")
    k.e("s_waitcnt lgkmcnt(0)", "s_barrier")
    stb(k, 3)
    publish_o(k, "ob")
    k.e("s_lshl_b32 s34, s28, 7", f"s_add_u32 s34, s34, {F1}")
    k.e("s_cmp_lg_u32 s31, 0", "s_cbranch_scc1 mega_polld_o")
    poll(k, 23, 34, 32, "o", sleep=1)
    k.e("s_barrier")
    stb(k, 4)
    k.e(f"s_add_u32 s34, s49, {WS_O}")
    for s in range(18):
        if s % 4 == 0 and s:
            k.e("s_add_u32 s34, s34, 4096")
        k.e(f"buffer_load_dwordx4 v[{OX0+4*s}:{OX0+4*s+3}], v11, s[16:19], s34 offen offset:{1024*(s%4)} sc1")

    def rd(t, s, b):
        a0, a1 = (28, 29) if s < 12 else (30, 31)
        off = (s if s < 12 else s - 12) * 5120 + 32 * t
        k.e(f"ds_read_b64_tr_b16 v[{OWF+4*b}:{OWF+4*b+1}], v{a0} offset:{off}",
            f"ds_read_b64_tr_b16 v[{OWF+4*b+2}:{OWF+4*b+3}], v{a1} offset:{off}")

    def mf(t, s, b):
        a = r4(OACC + 4 * t)
        k.e(f"v_mfma_f32_16x16x32_bf16 {a}, {r4(OWF+4*b)}, {r4(OX0+4*s)}, {a}")
    roll_gemm(k, list(range(18)), rd, mf, pre=lambda s: f" vmcnt({17-s})")
    for t in range(5):
        k.e(f"ds_read_b64 v[{36+2*t}:{37+2*t}], v21 offset:{32*t}")
    k.e("v_mov_b32 v6, 0", "v_mov_b32 v7, 0", "v_mov_b32 v34, 0x3f803f80",
        "s_mul_i32 s35, s29, 2304", "s_add_u32 s35, s35, s49", f"s_add_u32 s35, s35, {WS_H}")
    for t in range(5):
        a = OACC + 4 * t
        d = 48 + 2 * t
        k.e(f"s_waitcnt lgkmcnt({4-t})")
        k.e(f"v_lshlrev_b32 v24, 16, v{36+2*t}", f"v_and_b32 v25, 0xffff0000, v{36+2*t}",
            f"v_lshlrev_b32 v26, 16, v{37+2*t}", f"v_and_b32 v27, 0xffff0000, v{37+2*t}")
        for i in range(4):
            k.e(f"v_add_f32 v{a+i}, v{a+i}, v{24+i}")
        k.e(f"v_cvt_pk_bf16_f32 v{d}, v{a}, v{a+1}", f"v_cvt_pk_bf16_f32 v{d+1}, v{a+2}, v{a+3}")
        if t == 4:
            k.e(ex(0xffffffff))
        k.e(f"v_dot2c_f32_bf16 v6, v{d}, v34", f"v_dot2c_f32_bf16 v7, v{d}, v{d}",
            f"v_dot2c_f32_bf16 v6, v{d+1}, v34", f"v_dot2c_f32_bf16 v7, v{d+1}, v{d+1}")
        if t == 4:
            k.e(ex(-1))
        if t % 2 == 1 or t == 4:
            b = 48 + 4 * (t // 2)
            k.e(f"v_permlane16_swap_b32 v{b}, v{b+2}", f"v_permlane16_swap_b32 v{b+1}, v{b+3}")
            if t == 4:
                k.e(ex(0xffff))
            k.e(f"buffer_store_dwordx4 {r4(b)}, v22, s[16:19], s35 offen offset:{1024*(t//2)} sc1")
            if t == 4:
                k.e(ex(-1))
    reduce_g_add(k, [6, 7], [32, 33])
    k.e("v_lshlrev_b32 v32, 4, v2", "s_lshl_b32 s35, s48, 10", "s_lshr_b32 s34, s29, 1", "s_lshl_b32 s34, s34, 8",
        "s_add_u32 s35, s35, s34", "s_and_b32 s34, s29, 1", "s_lshl_b32 s34, s34, 3", "s_add_u32 s35, s35, s34",
        f"s_add_u32 s35, s35, {WS_ST}", ex(0xffff))
    k.e("buffer_store_dwordx2 v[6:7], v32, s[16:19], s35 offen sc1", ex(-1))
    k.e("s_lshl_b32 s34, s28, 7", "s_lshl_b32 s35, s29, 3", "s_add_u32 s34, s34, s35", f"s_add_u32 s34, s34, {F2}", "s_waitcnt vmcnt(0)")
    arrive(k, 2, 4, 34, "h")


def acc(t, mb):
    return ACC + (t * 4 + mb) * 4


def wreg(slot, t):
    return WR + ((slot + 1) % 6) * 12 + t * 4


def wload(slot, t):
    return f"buffer_load_dwordx4 {r4(wreg(slot, t))}, v11, s[20:23], s53 offen offset:{1024*t} {WAUX}"


def ffn_ring_start(k):
    k.e(f"s_mul_i32 s34, s30, {STREAM}", f"s_mul_i32 s35, s46, {1296*1024}", "s_add_u32 s34, s34, s35", f"s_add_u32 s34, s34, {WS_W}",
        "s_add_u32 s20, s12, s34", "s_addc_u32 s21, s13, 0", f"s_mov_b32 s22, {STREAM}", "s_mov_b32 s23, 0x00020000",
        "s_mov_b32 s53, 0")
    for st in range(D - 1):
        for t in range(T):
            k.e(wload(st, t))
        k.e(f"s_add_u32 s53, s53, {T*1024}")


def ffn(k):
    k.label("ffn_join")
    k.e("s_setprio 0", "v_and_b32 v2, 15, v1", "v_lshrrev_b32 v3, 4, v1")
    k.e("v_and_b32 v12, 7, v1", "v_lshlrev_b32 v12, 3, v12", "s_lshl_b32 s34, s47, 7", f"s_add_u32 s34, s34, {F2}")
    k.e("s_cmp_lg_u32 s30, 0", "s_cbranch_scc1 mega_polld_h")
    k.e("s_sleep 24")
    poll(k, 12, 34, 14, "h", sleep=2)
    k.e("s_barrier")
    stb(k, 5)
    k.e("s_lshl_b32 s34, s47, 12", f"s_add_u32 s34, s34, {WS_ST}")
    for mb in range(4):
        k.e(f"buffer_load_dwordx4 {r4(XB0+4*mb)}, v11, s[16:19], s34 offen offset:{1024*mb} sc1")
    k.e("s_lshl_b32 s34, s47, 2", "s_and_b32 s35, s30, 3", "s_add_u32 s34, s34, s35", "s_mul_i32 s41, s34, 18432",
        "s_lshr_b32 s35, s30, 2", "s_lshl_b32 s35, s35, 10", "s_add_u32 s41, s41, s35", f"s_add_u32 s41, s41, {WS_H}",
        "s_lshl_b32 s42, s30, 10")
    k.e("s_cmp_ge_u32 s30, 8", "s_cbranch_scc1 ffn_nodma0")
    for i in range(6):
        k.e(f"s_add_u32 m0, s42, {i*8192}", f"s_add_u32 s36, s41, {i*2048}", "buffer_load_dwordx4 v11, s[16:19], s36 offen sc1 lds")
    k.e("s_waitcnt vmcnt(6)", "s_branch ffn_st")
    k.label("ffn_nodma0")
    k.e("s_waitcnt vmcnt(0)")
    k.label("ffn_st")
    k.e("s_lshl_b32 s34, s30, 7", f"s_add_u32 s34, s34, {LDS_S}", "v_lshlrev_b32 v13, 4, v3", "v_add_u32 v12, s34, v13",
        "s_lshl_b32 s34, s30, 6", f"s_add_u32 s34, s34, {LDS_S + 1536}", "v_add_u32 v13, s34, v13",
        f"ds_read_b128 {r4(XB0+16)}, v12", f"ds_read_b128 {r4(XB0+20)}, v12 offset:64", f"ds_read_b128 {r4(XB0+24)}, v13")
    for mb in range(4):
        b = XB0 + 4 * mb
        k.e(f"v_add_f32 v{4+mb}, v{b}, v{b+2}", f"v_add_f32 v{ACC+mb}, v{b+1}, v{b+3}")
    reduce_g_add(k, [4, 5, 6, 7] + [ACC + i for i in range(4)], list(range(ACC + 4, ACC + 12)))
    for mb in range(4):
        k.e(f"v_mul_f32 v{4+mb}, {hex(f2u(-1/576))}, v{4+mb}")
    k.e("s_and_b32 s34, s46, 3", "v_mov_b32 v8, v4", f"v_mov_b32 v9, v{ACC}")
    for mb in range(1, 4):
        k.e(f"s_cmp_eq_u32 s34, {mb}", "s_cselect_b64 vcc, -1, 0", f"v_cndmask_b32 v8, v8, v{4+mb}, vcc", f"v_cndmask_b32 v9, v9, v{ACC+mb}, vcc")
    k.e(f"v_mul_f32 v9, {hex(f2u(1/576))}, v9", "v_fma_f32 v8, -v8, v8, v9", "v_max_f32 v8, 0, v8",
        f"v_add_f32 v8, {hex(f2u(1e-5))}, v8", "v_rsq_f32 v8, v8")
    k.e("s_waitcnt lgkmcnt(0)")
    for t in range(T):
        for mb in range(4):
            for i in range(4):
                k.e(f"v_mul_f32 v{acc(t,mb)+i}, v{4+mb}, v{XB0+16+4*t+i}")
    k.e("s_add_u32 s41, s41, 12288", "s_add_u32 s42, s42, 49152")
    k.e("s_waitcnt vmcnt(3)", "s_barrier")
    stb(k, 6)
    k.e("v_mov_b32 v10, v11", "s_mov_b32 s31, 0")
    k.label("ffn_start")
    for mb in range(4):
        k.e(f"ds_read_b128 {r4(XB0+4*mb)}, v10 offset:{1024*mb}")
    k.e(".p2align 6")
    k.label("ffn_loop")
    k.e("s_cmp_lg_u32 s31, 1", "s_cbranch_scc1 ffn_nodma")
    for i in range(2):
        k.e(f"s_add_u32 m0, s42, {i*12288}", f"s_add_u32 s36, s41, {i*3072}", "buffer_load_dwordx4 v11, s[16:19], s36 offen sc1 lds")
    k.label("ffn_nodma")
    for u in range(D):
        xb = XB0 + 16 * (u % 2)
        xn = XB0 + 16 * ((u + 1) % 2)
        fill = [f"ds_read_b128 {r4(xn+4*mb)}, v10 offset:{(u+1)*4096 + 1024*mb}" for mb in range(4)]
        fill += [wload((u + D - 1) % D, t) for t in range(T)]
        fill += [f"s_add_u32 s53, s53, {T*1024}"]
        k.e(f"s_waitcnt vmcnt({4*T}) lgkmcnt(0)")
        if u == D - 1:
            k.e("s_cmp_ge_u32 s31, 2", "s_cbranch_scc1 ffn_nobar", "s_barrier")
            k.label("ffn_nobar")
        for t in range(T):
            for mb in range(4):
                a = r4(acc(t, mb))
                k.e(f"v_mfma_f32_16x16x32_bf16 {a}, {r4(wreg(u, t))}, {r4(xb+4*mb)}, {a}")
                if fill:
                    k.e(fill.pop(0))
    k.e(f"v_add_u32 v10, {D*4096}, v10", "s_add_u32 s31, s31, 1",
        "s_cmp_eq_u32 s31, 3", "s_cbranch_scc1 ffn_ep1",
        "s_cmp_lt_u32 s31, 6", "s_cbranch_scc1 ffn_loop")
    stb(k, 8)
    k.e("s_waitcnt lgkmcnt(0)")
    k.e(f"s_mul_i32 s34, s46, {XB}", "s_mul_i32 s33, s47, 73728", f"s_add_u32 s33, s33, {WS_P}", "s_add_u32 s34, s34, s33",
        "s_lshl_b32 s35, s30, 10", "s_add_u32 s36, s34, s35",
        "s_cmp_ge_u32 s30, 6", "s_movk_i32 s37, 12288", f"s_cselect_b32 s37, {12288 + 18432 - 6144}, s37", "s_add_u32 s37, s37, s36")
    for mb in range(4):
        d = XB0 + 4 * mb
        a, b = acc(0, mb), acc(1, mb)
        for i in range(4):
            k.e(f"v_cvt_pk_bf16_f32 v{d+i}, v{a+i}, v{b+i}")
        k.e(f"buffer_store_dwordx4 {r4(d)}, v11, s[16:19], s36 offen sc1", "s_add_u32 s36, s36, 18432")
    for h in range(2):
        d = XB0 + 16 + 4 * h
        a, b = acc(2, 2 * h), acc(2, 2 * h + 1)
        k.e(f"v_cvt_pk_bf16_f32 v{d}, v{a}, v{a+1}", f"v_cvt_pk_bf16_f32 v{d+1}, v{a+2}, v{a+3}",
            f"v_cvt_pk_bf16_f32 v{d+2}, v{b}, v{b+1}", f"v_cvt_pk_bf16_f32 v{d+3}, v{b+2}, v{b+3}")
        k.e(f"buffer_store_dwordx4 {r4(d)}, v11, s[16:19], s37 offen sc1", "s_add_u32 s37, s37, 36864")
    k.e("s_lshl_b32 s38, s47, 9", f"s_add_u32 s38, s38, {F3}", "s_lshr_b32 s36, s30, 2", "s_lshl_b32 s35, s36, 7", "s_add_u32 s38, s38, s35",
        "s_lshl_b32 s35, s46, 3", "s_add_u32 s34, s38, s35",
        "s_lshl_b32 s44, s36, 2", f"s_add_u32 s44, s44, {LDS_CNT + 12}", "s_waitcnt vmcnt(0)")
    arrive(k, 0, 4, 34, "r", cnt_sgpr=44)
    k.e("s_add_u32 s44, s44, 12", "v_mov_b32 v10, s44")
    k.e("s_and_b32 s35, s30, 3", "s_cmp_lg_u32 s35, 3", "s_cbranch_scc1 mega_red")
    k.e("v_and_b32 v12, 7, v1", "v_lshlrev_b32 v12, 3, v12")
    poll(k, 12, 38, 14, "r", sleep=2)
    k.e("v_mov_b32 v13, 1", "ds_write_b32 v10, v13", "s_waitcnt lgkmcnt(0)", "s_branch mega_fin")
    k.label("mega_red")
    k.e(
        "s_lshl_b32 s37, s36, 2", "s_lshl_b32 s39, s35, 1", "s_add_u32 s37, s37, s39",
        "s_lshl_b32 s39, s36, 1", "s_add_u32 s39, s39, 12", "s_cmp_eq_u32 s35, 2", "s_cselect_b32 s37, s39, s37",
        "s_lshr_b32 s39, s46, 2", "s_add_u32 s37, s37, s39",
        "s_and_b32 s39, s46, 3",
        "s_mul_i32 s34, s39, 18432", "s_lshl_b32 s41, s37, 10", "s_add_u32 s34, s34, s41")
    k.e("s_sub_u32 s41, s37, 12", "s_lshl_b32 s41, s41, 11", "s_cmp_ge_u32 s37, 15", "s_movk_i32 s42, 12288",
        f"s_cselect_b32 s42, {12288 + 18432 - 6144}, s42", "s_add_u32 s41, s41, s42", "s_lshr_b32 s42, s39, 1", "s_mul_i32 s42, s42, 36864",
        "s_add_u32 s41, s41, s42", "s_and_b32 s42, s39, 1", "s_lshl_b32 s42, s42, 3", "s_add_u32 s41, s41, s42",
        "s_mov_b32 s43, s35", "s_cmp_eq_u32 s35, 2", "s_cselect_b32 s34, s41, s34", "s_cselect_b32 s42, 1024, 8",
        "s_add_u32 s33, s33, s34", "s_add_u32 s42, s42, s33")
    k.e("s_lshl_b32 s35, s37, 2", "s_add_u32 s35, s35, s39", "s_lshl_b32 s35, s35, 10", "v_add_u32 v13, s35, v11",
        f"ds_read_b128 {r4(WR+32)}, v13")
    srd(k, 20, 14, XB)
    k.e("s_lshl_b32 s35, s47, 2", "s_add_u32 s35, s35, s39", "s_mul_i32 s35, s35, 18432", "s_lshl_b32 s37, s37, 6",
        "s_add_u32 s37, s37, s35", "s_movk_i32 s35, 1152", "v_mul_u32_u24 v9, s35, v2", "v_lshl_add_u32 v9, v3, 4, v9")
    k.e("v_mov_b32 v5, 0x00003f80", "v_mov_b32 v6, 0x3f800000")
    for i in range(8):
        k.e(f"v_mov_b32 v{ACC+i}, 0")
    k.e(f"s_mov_b32 s3, {SPIN*8}")
    k.label("mega_lspin")
    k.e("ds_read_b32 v14, v10", "s_waitcnt lgkmcnt(0)", "v_readfirstlane_b32 s38, v14", "s_cmp_lg_u32 s38, 0", "s_cbranch_scc1 mega_lspind",
        "s_sleep 1", "s_sub_u32 s3, s3, 1", "s_cbranch_scc0 mega_lspin")
    k.label("mega_lspind")
    for j in range(8):
        k.e(f"buffer_load_dwordx2 v[{WR+4*j}:{WR+4*j+1}], v11, s[16:19], s33 offen sc1", f"s_add_u32 s33, s33, {XB}",
            f"buffer_load_dwordx2 v[{WR+4*j+2}:{WR+4*j+3}], v11, s[16:19], s42 offen sc1", f"s_add_u32 s42, s42, {XB}")
    k.e("s_waitcnt lgkmcnt(0)")
    for i in range(4):
        k.e(f"v_lshlrev_b32 v{ACC+8+2*i}, 16, v{WR+32+i}", f"v_and_b32 v{ACC+9+2*i}, 0xffff0000, v{WR+32+i}")
    for j in range(8):
        k.e(f"s_waitcnt vmcnt({14-2*j})")
        for i in range(4):
            k.e(f"v_lshlrev_b32 v{ACC+16+2*i}, 16, v{WR+4*j+i}", f"v_and_b32 v{ACC+17+2*i}, 0xffff0000, v{WR+4*j+i}")
        for i in range(8):
            k.e(f"v_add_f32 v{ACC+i}, v{ACC+i}, v{ACC+16+i}")
    k.e("s_cmp_eq_u32 s43, 2", "s_cbranch_scc1 mega_red_s")
    for i in range(8):
        k.e(f"v_fma_f32 v{ACC+8+i}, v{ACC+i}, v8, v{ACC+8+i}")
    k.e("s_branch mega_red_o")
    k.label("mega_red_s")
    for i in range(8):
        k.e(f"v_fma_f32 v{ACC+8+i}, v{ACC+(i//2)+4*(i%2)}, v8, v{ACC+8+i}")
    k.label("mega_red_o")
    for i in range(4):
        k.e(f"v_cvt_pk_bf16_f32 v{XB0+i}, v{ACC+8+2*i}, v{ACC+9+2*i}")
    k.e(f"buffer_store_dwordx4 {r4(XB0)}, v9, s[20:23], s37 offen")
    k.label("mega_fin")
    k.stamp_flush(1, 10, 16, 30, wpw=16)
    if os.environ.get("DBGOUT"):
        k.e("s_cmp_lg_u32 s2, 5", "s_cbranch_scc1 mega_end", "s_cmp_lg_u32 s30, 8", "s_cbranch_scc1 mega_end",
            "s_load_dwordx2 s[4:5], s[0:1], 72", "s_waitcnt lgkmcnt(0)", "s_nop 0")
        srd(k, 20, 4, 256)
        for i in range(1, 9):
            k.e(f"s_sub_u32 s34, s{81+2*i}, s81", "v_mov_b32 v4, s34", f"buffer_store_dword v4, v0, s[20:23], 0 offen offset:{4*i-4}",
                f"s_sub_u32 s34, s{80+2*i}, s80", "v_mov_b32 v5, s34", f"buffer_store_dword v5, v0, s[20:23], 0 offen offset:{4*i+28}", "s_waitcnt vmcnt(0)")
    k.e("s_endpgm")
    k.label("ffn_ep1")
    k.e("s_waitcnt lgkmcnt(0)")
    k.e("s_lshl_b32 s34, s30, 12", f"s_add_u32 s34, s34, {LDS_H}", "v_add_u32 v12, s34, v11")
    k.e("s_lshr_b32 s34, s30, 1", "s_lshl_b32 s34, s34, 12", "s_and_b32 s35, s30, 1", "s_lshl_b32 s35, s35, 3",
        "s_add_u32 s34, s34, s35", f"s_add_u32 s34, s34, {LDS_H + 49152}", "v_add_u32 v13, s34, v11")
    for mb in range(4):
        d = XB0 + 4 * mb
        a, b = acc(0, mb), acc(1, mb)
        for i in range(4):
            k.e(f"v_cvt_pk_bf16_f32 v{d+i}, v{a+i}, v{b+i}")
        for i in range(4):
            k.e(f"v_pk_max_i16 v{d+i}, v{d+i}, 0")
        k.e(f"ds_write_b128 v12, {r4(d)} offset:{mb*1024}")
    for mb in range(4):
        a = acc(2, mb)
        d = XB0 + 16 + 2 * mb
        k.e(f"v_cvt_pk_bf16_f32 v{d}, v{a}, v{a+1}", f"v_cvt_pk_bf16_f32 v{d+1}, v{a+2}, v{a+3}",
            f"v_pk_max_i16 v{d}, v{d}, 0", f"v_pk_max_i16 v{d+1}, v{d+1}, 0",
            f"ds_write_b64 v13, v[{d}:{d+1}] offset:{mb*1024}")
    for r in range(ACC, ACC + 16 * T):
        k.e(f"v_mov_b32 v{r}, 0")
    k.e("s_cmp_lt_u32 s30, 4", "s_cbranch_scc0 ffn_pr1", "s_setprio 2")
    k.label("ffn_pr1")
    k.e("s_and_b32 s34, s30, 12", "s_cmp_eq_u32 s34, 4", "s_cbranch_scc0 ffn_pr2", "s_setprio 1")
    k.label("ffn_pr2")
    k.e("s_waitcnt lgkmcnt(0)", "s_barrier")
    stb(k, 7)
    k.e("s_branch ffn_start")


def tr_addr(k, base0, base1, stride, extra_sgpr=None):
    k.e("v_lshrrev_b32 v32, 2, v2",
        "v_and_b32 v33, 1, v3", "v_lshlrev_b32 v33, 2, v33", "v_add_u32 v32, v32, v33",
        "v_lshl_add_u32 v32, v3, 3, v32", "v_xor_b32 v33, 4, v32", f"s_movk_i32 s40, {stride}",
        "v_and_b32 v34, 3, v2", "v_lshlrev_b32 v34, 3, v34", f"v_add_u32 v34, {base0}, v34")
    if extra_sgpr is not None:
        k.e(f"v_add_u32 v34, s{extra_sgpr}, v34")
    k.e("v_mad_u32_u24 v28, v32, s40, v34", "v_mad_u32_u24 v29, v33, s40, v34")
    if base1 is not None:
        k.e(f"v_add_u32 v30, {base1 - base0}, v28", f"v_add_u32 v31, {base1 - base0}, v29")


def x_read_addr(k, v, slot_sgpr):
    k.e(f"v_lshrrev_b32 v{v}, 2, v2", f"v_sub_u32 v{v}, 4, v{v}", f"v_and_b32 v{v}, 3, v{v}", f"v_xor_b32 v{v}, v{v}, v3",
        f"v_lshlrev_b32 v{v}, 4, v{v}", f"v_lshl_add_u32 v{v}, v2, 6, v{v}")
    if slot_sgpr is None:
        k.e(f"v_add_u32 v{v}, {A_X}, v{v}")
    else:
        k.e(f"v_add_u32 v{v}, s{slot_sgpr}, v{v}")


def get_nonce(k):
    k.e(f"v_mov_b32 v12, {LDS_NON}", "ds_read_b64 v[14:15], v12", "s_waitcnt lgkmcnt(0)",
        "v_readfirstlane_b32 s66, v14", "v_readfirstlane_b32 s67, v15")


def wq_rd(k, t, s, wf, b, par=False):
    ss = 2 * s if par else s
    a0, a1 = (28, 29) if ss < 8 else (30, 31)
    off = (ss if ss < 8 else ss - 8) * 5120 + 32 * t
    k.e(f"ds_read_b64_tr_b16 v[{wf+4*b}:{wf+4*b+1}], v{a0} offset:{off}",
        f"ds_read_b64_tr_b16 v[{wf+4*b+2}:{wf+4*b+3}], v{a1} offset:{off}")


QCH = [(0, 8), (8, 12), (12, 18)]


def a_qwave(k):
    srd(k, 20, 10, XB)
    k.e("s_sub_u32 s34, s30, s29", "s_and_b32 s34, s34, 3", "s_mul_i32 s43, s34, 18432", f"s_add_u32 s43, s43, {A_X}",
        "s_lshl_b32 s35, s28, 2", "s_add_u32 s35, s35, s30", "s_mul_i32 s35, s35, 18432", "s_lshl_b32 s36, s48, 6")
    k.e("v_lshrrev_b32 v5, 2, v1", "v_sub_u32 v6, 4, v3", "v_xor_b32 v6, v6, v1", "v_and_b32 v6, 3, v6",
        "s_movk_i32 s41, 1152", "v_mul_u32_u24 v5, s41, v5", "v_lshl_add_u32 v4, v6, 4, v5", "v_add_u32 v4, s35, v4")
    k.e("s_cmp_eq_u32 s34, 0", "s_cbranch_scc1 a_q_first", "s_barrier")
    k.label("a_q_first")
    for s in range(18):
        k.e(f"s_add_u32 m0, s43, {s*1024}", "s_nop 0", "buffer_load_dwordx4 v4, s[20:23], s36 offen lds",
            "s_add_u32 s36, s36, 64", "s_cmp_eq_u32 s36, s41", "s_cselect_b32 s36, 0, s36")
    k.e("s_cmp_lg_u32 s34, 0", "s_cbranch_scc1 a_q_second", "s_barrier")
    k.label("a_q_second")
    tr_addr(k, A_WQ0, A_WQ1, 160)
    x_read_addr(k, 35, 43)
    for r in range(QACC, QACC + 20):
        k.e(f"v_mov_b32 v{r}, 0")
    k.e(f"v_mov_b32 v{QONES}, 0x3f803f80", "v_mov_b32 v6, 0", "v_mov_b32 v7, 0")
    for part in range(3):
        k.e(f"s_waitcnt vmcnt({18 - 6*(part+1)})")
        if part == 2:
            k.e("s_cmp_lg_u32 s34, 0", "s_cbranch_scc1 a_q_nosig")
            lds_signal(k, LDS_KVI)
            k.label("a_q_nosig")
        for s in range(6 * part, 6 * part + 6):
            k.e(f"ds_read_b128 {r4(QX0+4*s)}, v35 offset:{1024*s}")
        if part:
            k.e("s_waitcnt lgkmcnt(6)")
            for r in range(QX0 + 24 * (part - 1), QX0 + 24 * part):
                k.e(f"v_dot2c_f32_bf16 v6, v{r}, v{QONES}", f"v_dot2c_f32_bf16 v7, v{r}, v{r}")
    k.e("s_waitcnt lgkmcnt(0)")
    lds_signal(k, LDS_XC)
    k.stamp(1)
    for r in range(QX0 + 48, QX0 + 72):
        k.e(f"v_dot2c_f32_bf16 v6, v{r}, v{QONES}", f"v_dot2c_f32_bf16 v7, v{r}, v{r}")
    reduce_g_add(k, [6, 7], [32, 33])
    k.e(f"v_mul_f32 v6, {hex(f2u(1/576))}, v6", f"v_mul_f32 v7, {hex(f2u(1/576))}, v7",
        "v_fma_f32 v7, -v6, v6, v7", "v_max_f32 v7, 0, v7", f"v_add_f32 v7, {hex(f2u(1e-5))}, v7", "v_rsq_f32 v7, v7")
    k.e("s_cmp_lg_u32 s34, 0", "s_cbranch_scc1 a_q_nost")
    k.e("v_lshlrev_b32 v32, 2, v2", f"v_add_u32 v32, {A_ST}, v32", "ds_write_b32 v32, v6", "ds_write_b32 v32, v7 offset:64",
        "s_waitcnt lgkmcnt(0)")
    lds_signal(k, LDS_KVS)
    k.label("a_q_nost")
    sta(k, 3)
    for ci, (s0, s1) in enumerate(QCH):
        lds_wait(k, LDS_WQC + 4 * ci, 4, f"q{ci}")
        sta(k, 4 + ci)
        roll_gemm(k, list(range(s0, s1)), lambda t, s, b: wq_rd(k, t, s, QWF, b),
                  lambda t, s, b: k.e(f"v_mfma_f32_16x16x32_bf16 {r4(QACC+4*t)}, {r4(QWF+4*b)}, {r4(QX0+4*s)}, {r4(QACC+4*t)}"))
    k.e("v_lshlrev_b32 v33, 4, v3", f"v_add_u32 v33, {A_SQ}, v33", f"v_mul_f32 v34, {hex(f2u(QSCALE))}, v7")
    k.e("s_mul_i32 s35, s30, 2304", f"s_add_u32 s35, s35, {LDS_OST}", "v_lshrrev_b32 v35, 1, v3", "v_lshlrev_b32 v35, 8, v35",
        "v_lshl_add_u32 v35, v2, 4, v35", "v_and_b32 v32, 1, v3", "v_lshl_add_u32 v35, v32, 3, v35", "v_add_u32 v35, s35, v35")
    sta(k, 7)
    k.e("s_barrier")
    sta(k, 8)
    for t in range(5):
        k.e(f"ds_read_b128 {r4(QWF+4*t)}, v33 offset:{64*t}")
    for t in range(5):
        k.e(f"s_waitcnt lgkmcnt({4})")
        a = QACC + 4 * t
        for i in range(4):
            k.e(f"v_fma_f32 v{a+i}, -v6, v{QWF+4*t+i}, v{a+i}")
        for i in range(4):
            k.e(f"v_mul_f32 v{a+i}, v34, v{a+i}")
        k.e(f"v_cvt_pk_bf16_f32 v{40}, v{a}, v{a+1}", f"v_cvt_pk_bf16_f32 v{41}, v{a+2}, v{a+3}")
        if t == 4:
            k.e(ex(0xffffffff))
        k.e(f"ds_write_b64 v35, v[40:41] offset:{512*t}")
    k.e(ex(-1))


def wkv_rd(k, s, wf):
    for t in range(2):
        off = s * 1536 + 32 * t
        k.e(f"ds_read_b64_tr_b16 v[{wf+4*t}:{wf+4*t+1}], v28 offset:{off}",
            f"ds_read_b64_tr_b16 v[{wf+4*t+2}:{wf+4*t+3}], v29 offset:{off}")


def a_wkv_dma(k):
    k.e("s_cmp_lt_u32 s29, 4", "s_cselect_b32 s20, s70, s72", "s_cselect_b32 s21, s71, s73", f"s_mov_b32 s22, {WKB}", "s_mov_b32 s23, 0x00020000")
    k.e("s_movk_i32 s40, 21846")
    for i in range(3):
        k.e(f"v_add_u32 v32, {64*i}, v1", "v_mul_u32_u24 v33, s40, v32", "v_lshrrev_b32 v33, 16, v33", "v_mul_u32_u24 v34, 3, v33",
            "v_sub_u32 v34, v32, v34", "v_lshlrev_b32 v34, 4, v34", "v_min_u32 v34, 20, v34",
            "v_and_b32 v35, 8, v33", "v_lshrrev_b32 v35, 1, v35", "v_xor_b32 v35, v35, v33", f"v_mad_u32_u24 v{16+i}, v35, 36, v34")
    k.e("s_sub_u32 s34, s30, 4", "s_mul_i32 s34, s34, 3", "s_mul_i32 s43, s34, 3072", "s_lshr_b32 s35, s48, 1", "s_add_u32 s35, s35, s34",
        "s_sub_u32 s36, s35, 9", "s_min_u32 s35, s35, s36", "s_mul_i32 s35, s35, 2304")
    for g in range(3):
        for i in range(3):
            k.e(f"s_add_u32 m0, s43, {A_WKV + g*3072 + i*1024}", "s_nop 0", f"buffer_load_dwordx4 v{16+i}, s[20:23], s35 offen lds")
        k.e("s_add_u32 s35, s35, 2304", f"s_cmp_eq_u32 s35, {9*2304}", "s_cselect_b32 s35, 0, s35")


def a_kvwave(k):
    a_wkv_dma(k)
    k.e("s_barrier")
    tr_addr(k, A_WKV, None, 48)
    x_read_addr(k, 35, None)
    for r in range(QACC, QACC + 8):
        k.e(f"v_mov_b32 v{r}, 0")
    k.e("s_lshr_b32 s41, s28, 1", f"s_mul_i32 s41, s41, {GRP}", f"s_add_u32 s41, s41, {WS_KV}",
        "s_and_b32 s42, s28, 1", "s_lshl_b32 s42, s42, 1", "s_bfe_u32 s43, s29, 0x10001", "s_add_u32 s42, s42, s43",
        "s_and_b32 s43, s29, 1",
        "s_lshl_b32 s49, s28, 7", "s_lshl_b32 s34, s29, 3", "s_add_u32 s49, s49, s34", f"s_add_u32 s49, s49, {FK}")
    k.e("s_waitcnt vmcnt(0)")
    lds_signal(k, LDS_WKI)
    lds_wait(k, LDS_KVI, 3, "kvi")
    k.stamp(1)
    k.e("s_cmp_ge_u32 s29, 4", "s_cbranch_scc1 a_kv_v")
    for isv in (False, True):
        if isv:
            k.label("a_kv_v")

        def rd(s):
            b = s % 3
            k.e(f"ds_read_b128 {r4(QX0+4*b)}, v35 offset:{1024*s}")
            wkv_rd(k, s, QX0 + 12 + 8 * b)
        rd(0)
        rd(1)
        for s in range(18):
            b = s % 3
            if s + 2 < 18:
                rd(s + 2)
            k.e(f"s_waitcnt lgkmcnt({min(10, 5*(17-s))})")
            for t in range(2):
                a, w, x = r4(QACC + 4 * t), r4(QX0 + 12 + 8 * b + 4 * t), r4(QX0 + 4 * b)
                k.e(f"v_mfma_f32_16x16x32_bf16 {a}, {x}, {w}, {a}" if isv else f"v_mfma_f32_16x16x32_bf16 {a}, {w}, {x}, {a}")
        sta(k, 3)
        lds_wait(k, LDS_KVS, 2, "kv" + ("v" if isv else "k"))
        sta(k, 4)
        A = QACC
        if not isv:
            k.e("v_lshlrev_b32 v32, 4, v3", f"v_add_u32 v32, {A_SKV}, v32", "v_lshlrev_b32 v33, 2, v2", f"v_add_u32 v33, {A_ST}, v33",
                "ds_read_b128 v[16:19], v32", "ds_read_b128 v[20:23], v32 offset:64", "ds_read_b32 v6, v33", "ds_read_b32 v7, v33 offset:64")
            k.e("s_lshl_b32 s38, s43, 8", "v_lshlrev_b32 v36, 4, v2", "v_add_u32 v36, s38, v36",
                "v_lshrrev_b32 v37, 1, v3", "v_lshl_add_u32 v37, v37, 9, v36",
                "s_lshl_b32 s38, s42, 10", "s_add_u32 s38, s38, s41",
                "s_lshl_b32 s39, s42, 2", "s_add_u32 s39, s39, s41", f"s_add_u32 s39, s39, {KV_K2}")
            k.e("s_waitcnt lgkmcnt(0)")
            for i in range(8):
                k.e(f"v_fma_f32 v{A+i}, -v6, v{16+i}, v{A+i}")
            for i in range(8):
                k.e(f"v_mul_f32 v{A+i}, v7, v{A+i}")
            k.e(f"v_cvt_pk_bf16_f32 v40, v{A}, v{A+1}", f"v_cvt_pk_bf16_f32 v41, v{A+2}, v{A+3}", f"v_cvt_pk_bf16_f32 v44, v{A+6}, v{A+7}")
            k.e("v_permlane16_swap_b32 v40, v42", "v_permlane16_swap_b32 v41, v43")
            k.e(ex(0x0000ffff0000ffff), "buffer_store_dwordx4 v[40:43], v37, s[16:19], s38 offen sc1",
                ex(0xffff0000), "buffer_store_dword v44, v36, s[16:19], s39 offen sc1", ex(-1))
            k.e("s_or_b32 s38, s42, s43", "s_cmp_lg_u32 s38, 0", "s_cbranch_scc1 a_kv_noc")
            k.e("v_mov_b32 v24, 0x3f803f80", "v_mov_b32 v25, 0x00003f80", "v_mov_b32 v26, 0x3f803f80", "v_mov_b32 v27, 0x00003f80",
                "v_mov_b32 v12, 0", f"s_add_u32 s38, s41, {KV_K2 + 512}", ex(1), "buffer_store_dwordx4 v[24:27], v12, s[16:19], s38 offen sc1", ex(-1))
            k.label("a_kv_noc")
            k.e(f"v_mul_f32 v45, v{A+6}, v{A+6}", f"v_fmac_f32 v45, v{A+7}, v{A+7}",
                "v_cmp_eq_u32 vcc, 1, v3", "v_cndmask_b32 v45, 0, v45, vcc")
            for i in range(4):
                k.e(f"v_fmac_f32 v45, v{A+i}, v{A+i}")
            reduce_g_add(k, [45], [46])
            for sh in (8, 4, 2, 1):
                k.e(f"v_max_f32_dpp v45, v45, v45 row_ror:{sh} row_mask:0xf bank_mask:0xf")
            k.e("s_branch a_kv_pub")
        else:
            k.e("v_lshlrev_b32 v32, 2, v2", f"v_add_u32 v32, {A_SKV}, v32", "v_lshlrev_b32 v33, 4, v3", f"v_add_u32 v33, {A_ST}, v33",
                "ds_read_b32 v6, v32", "ds_read_b32 v7, v32 offset:64", "ds_read_b128 v[16:19], v33", "ds_read_b128 v[20:23], v33 offset:64")
            k.e("s_mul_i32 s38, s42, 1216", "s_mul_i32 s39, s43, 608", "s_add_u32 s38, s38, s39", "s_add_u32 s38, s38, s41",
                f"s_add_u32 s38, s38, {KV_V}", "s_movk_i32 s39, 304", "v_and_b32 v36, 1, v3", "v_mul_u32_u24 v37, s39, v36",
                "v_lshl_add_u32 v37, v2, 4, v37", "v_lshrrev_b32 v36, 1, v3", "s_movk_i32 s39, 160", "v_mad_u32_u24 v37, v36, s39, v37")
            k.e("s_waitcnt lgkmcnt(0)")
            for t in range(2):
                for i in range(4):
                    k.e(f"v_fma_f32 v{A+4*t+i}, -v{16+i}, v{6+t}, v{A+4*t+i}")
                for i in range(4):
                    k.e(f"v_mul_f32 v{A+4*t+i}, v{20+i}, v{A+4*t+i}")
            for i in range(4):
                k.e(f"v_cvt_pk_bf16_f32 v{40+i}, v{A+2*i}, v{A+2*i+1}")
            k.e("v_mov_b32 v39, 0x3f803f80", "v_cmp_eq_u32 vcc, 8, v2", "v_cndmask_b32 v42, v42, v39, vcc", "v_cndmask_b32 v43, v43, v39, vcc")
            k.e("v_permlane32_swap_b32 v40, v42", "v_permlane32_swap_b32 v41, v43")
            k.e(ex(0x01c001c0ffffffff), "buffer_store_dwordx4 v[40:43], v37, s[16:19], s38 offen sc1", ex(-1), "v_mov_b32 v45, 0")
    k.label("a_kv_pub")
    sta(k, 5)
    lds_wait(k, LDS_NON, 1, "non")
    get_nonce(k)
    k.e("v_mov_b32 v44, s66", "v_mov_b32 v12, 0", "s_waitcnt vmcnt(0)")
    sta(k, 6)
    k.e(ex(1), "buffer_store_dwordx2 v[44:45], v12, s[16:19], s49 offen sc1", ex(-1))
    k.e("s_waitcnt vmcnt(0)")
    lds_signal(k, LDS_KVS)
    sta(k, 7)
    sta(k, 8)
    k.e("s_barrier")


def a_swave(k):
    k.e("s_cmp_eq_u32 s30, 7", "s_cbranch_scc1 a_s_7")
    a_wkv_dma(k)
    k.e("s_barrier", "s_branch a_s_c")
    k.label("a_s_7")
    srd(k, 56, 74, 256)
    k.e("v_mov_b32 v10, 0", "s_cmp_lg_u32 s2, 0", "s_cbranch_scc1 a_s_nn")
    k.e("s_memrealtime s[60:61]", "s_waitcnt lgkmcnt(0)", "s_or_b32 s60, s60, 1", "v_mov_b32 v14, s60", "v_mov_b32 v15, s61", ex(1),
        "buffer_store_dwordx2 v[14:15], v10, s[56:59], 0 offen sc1", ex(-1))
    k.label("a_s_nn")
    k.e("v_min_u32 v12, 27, v1", "v_lshlrev_b32 v12, 2, v12", f"v_add_u32 v12, {LDS_RDY}, v12", "v_mov_b32 v13, 0",
        "ds_write_b32 v12, v13", "v_lshlrev_b32 v12, 2, v1", f"v_add_u32 v12, {A_SQ}, v12", "ds_write_b32 v12, v13", "ds_write_b32 v12, v13 offset:64",
        "s_waitcnt lgkmcnt(0)")
    if os.environ.get("TOUCH", "0") == "1":
        k.e("buffer_load_dword v18, v10, s[56:59], 0 offen sc1", f"s_mov_b32 s34, {FK}", "buffer_load_dword v19, v10, s[16:19], s34 offen sc1",
            f"s_mov_b32 s34, {WS_KV}", "buffer_load_dword v20, v10, s[16:19], s34 offen sc1")
    k.e("s_barrier")
    sta(k, 4)
    sta(k, 5)
    sta(k, 6)
    sta(k, 7)
    sta(k, 8)
    k.e(f"s_mov_b32 s3, {SPIN}", f"s_sleep {os.environ.get('NSL', '4')}")
    k.label("a_s_np")
    k.e("buffer_load_dwordx2 v[14:15], v10, s[56:59], 0 offen sc1", "s_sleep 4", "buffer_load_dwordx2 v[16:17], v10, s[56:59], 0 offen sc1",
        "s_waitcnt vmcnt(1)", "v_readfirstlane_b32 s39, v14", "s_cmp_lg_u32 s39, 0", "s_cbranch_scc1 a_s_nd",
        "s_waitcnt vmcnt(0)", "v_mov_b32 v14, v16", "v_mov_b32 v15, v17", "v_readfirstlane_b32 s39, v16", "s_cmp_lg_u32 s39, 0", "s_cbranch_scc1 a_s_nd",
        "s_sub_u32 s3, s3, 1", "s_cbranch_scc0 a_s_np")
    k.label("a_s_nd")
    k.e(f"v_mov_b32 v12, {LDS_NON}", "ds_write_b64 v12, v[14:15]")
    k.label("a_s_c")
    for i in range(4):
        k.e(f"v_mov_b32 v{QONES+i}, 0x3f803f80")
    for r in range(QACC, QACC + 20):
        k.e(f"v_mov_b32 v{r}, 0")
    k.e("s_cmp_lg_u32 s30, 5", "s_cbranch_scc1 a_s_q")
    tr_addr(k, A_WKV, None, 48)
    k.e("s_waitcnt vmcnt(0)")
    lds_signal(k, LDS_KVI)
    lds_signal(k, LDS_WKI)
    lds_wait(k, LDS_WKI, 3, "wki")
    k.stamp(1)
    wkv_rd(k, 0, QX0)
    wkv_rd(k, 1, QX0 + 8)
    for s in range(18):
        if s + 2 < 18:
            wkv_rd(k, s + 2, QX0 + 8 * ((s + 2) % 3))
        k.e(f"s_waitcnt lgkmcnt({min(8, 4*(17-s))})")
        for t in range(2):
            a = r4(QACC + 4 * t)
            k.e(f"v_mfma_f32_16x16x32_bf16 {a}, {r4(QONES)}, {r4(QX0+8*(s%3)+4*t)}, {a}")
    k.e("v_lshlrev_b32 v32, 2, v2", f"v_add_u32 v32, {A_SKV}, v32", f"ds_write_b32 v32, v{QACC}", f"ds_write_b32 v32, v{QACC+4} offset:64",
        "s_waitcnt lgkmcnt(0)")
    lds_signal(k, LDS_KVS)
    k.e("s_branch a_s_done")
    k.label("a_s_q")
    k.e("s_sub_u32 s34, s30, 6", "s_mul_i32 s34, s34, 5120")
    tr_addr(k, A_WQ0, A_WQ1, 160, extra_sgpr=34)
    k.e("s_cmp_eq_u32 s30, 7", "s_cbranch_scc1 a_s_nx", "s_waitcnt vmcnt(0)")
    lds_signal(k, LDS_KVI)
    lds_signal(k, LDS_WKI)
    k.label("a_s_nx")
    k.stamp(1)
    sta(k, 3)
    for ci, (s0, s1) in enumerate(QCH):
        lds_wait(k, LDS_WQC + 4 * ci, 4, f"s{ci}")
        roll_gemm(k, list(range(s0 // 2, s1 // 2)), lambda t, s, b: wq_rd(k, t, s, QWF, b, par=True),
                  lambda t, s, b: k.e(f"v_mfma_f32_16x16x32_bf16 {r4(QACC+4*t)}, {r4(QONES)}, {r4(QWF+4*b)}, {r4(QACC+4*t)}"))
    k.e("v_lshlrev_b32 v32, 2, v2", f"v_add_u32 v32, {A_SQ}, v32", ex(0xffff))
    for t in range(5):
        k.e(f"ds_add_f32 v32, v{QACC+4*t} offset:{64*t}")
    k.e(ex(-1))
    k.label("a_s_done")
    k.e("s_waitcnt vmcnt(0) lgkmcnt(0)", "s_barrier")


def a_helper(k):
    k.e("s_setprio 3", "s_sub_u32 s31, s30, 8")
    srd(k, 20, 68, WQB)
    if os.environ.get("PFQ", "1") == "1":
        k.e("s_cmp_lg_u32 s31, 0", "s_cbranch_scc1 a_h_nopf",
            "v_min_u32 v12, 20, v1", "v_lshlrev_b32 v12, 7, v12", "s_mul_i32 s34, s2, 2592", "s_and_b32 s34, s34, 0xffffff80",
            "buffer_load_dword v21, v12, s[20:23], s34 offen")
        k.label("a_h_nopf")
    k.e("s_movk_i32 s40, 6554", "s_movk_i32 s41, 1152")
    for i in range(5):
        dma_slot_calc(k, i, 32, 33, 34, 35)
        k.e(f"v_mul_u32_u24 v{16+i}, s41, v35", f"v_lshl_add_u32 v{16+i}, v34, 4, v{16+i}")
    k.e("s_add_u32 s42, s31, s48", "s_mul_i32 s32, s29, 144", "s_mul_i32 s43, s31, 5120")

    def wdma(base):
        k.e("s_sub_u32 s36, s42, 18", "s_min_u32 s42, s42, s36", "s_mul_i32 s36, s42, 36864", "s_add_u32 s36, s36, s32")
        for i in range(5):
            k.e(f"s_add_u32 m0, s43, {base + i*1024}", "s_nop 0", f"buffer_load_dwordx4 v{16+i}, s[20:23], s36 offen lds")
        k.e("s_add_u32 s42, s42, 4")
    k.e("s_barrier", f"s_sleep {os.environ.get('HSL', '8')}")
    wdma(A_WQ0)
    wdma(A_WQ0 + 20480)
    lds_wait(k, LDS_XC, 4, "xc")
    k.stamp(1)
    wdma(A_WQ1)
    k.e("s_waitcnt vmcnt(5)")
    lds_signal(k, LDS_WQC)
    sta(k, 3)
    wdma(A_WQ1 + 20480)
    k.e("s_cmp_ge_u32 s31, 2", "s_cbranch_scc1 a_h_skip")
    wdma(A_WQ1 + 40960)
    k.label("a_h_skip")
    for ci, n in ((1, 5), (2, 0)):
        k.e(f"s_waitcnt vmcnt({n})")
        lds_signal(k, LDS_WQC + 4 * ci)
        sta(k, 3 + ci)
    lds_wait(k, LDS_KVS, 3, "pub")
    get_nonce(k)
    sta(k, 6)
    k.e("v_lshrrev_b32 v10, 3, v1", "v_lshlrev_b32 v10, 7, v10", "v_and_b32 v9, 7, v1", "v_lshl_add_u32 v10, v9, 3, v10",
        "s_lshl_b32 s34, s31, 10", f"s_add_u32 s35, s34, {FK}")
    poll(k, 10, 35, 14, "k", sleep=int(os.environ.get("KSL", "6")), lo_only=True)
    sta(k, 7)
    k.e(f"v_mov_b32 v12, {LDS_KMX}", "ds_max_u32 v12, v15")
    lds_signal(k, LDS_KVR)
    k.e("s_lshr_b32 s35, s2, 3", "s_add_u32 s35, s35, s2", "s_and_b32 s35, s35, 15", f"s_mul_i32 s35, s35, {GRP}", "s_add_u32 s35, s35, s34",
        "v_add_u32 v10, s35, v11", f"s_mov_b32 s35, {WS_KV}")
    lds_wait(k, LDS_KVR, 4, "kvr")
    sta(k, 8)
    kv_dma(k, 0, 7)
    k.e("s_barrier")


def gen_one(name):
    k = Kernel(name, vgprs=168)
    k.e("s_cmp_ge_u32 s2, 256", "s_cbranch_scc1 mega_end")
    k.e("s_load_dwordx2 s[10:11], s[0:1], 0", "s_load_dwordx4 s[68:71], s[0:1], 8", "s_load_dwordx2 s[72:73], s[0:1], 24",
        "s_load_dwordx2 s[8:9], s[0:1], 32", "s_load_dwordx4 s[4:7], s[0:1], 48", "s_load_dwordx2 s[14:15], s[0:1], 64",
        "s_load_dwordx2 s[74:75], s[0:1], 72", "s_load_dwordx2 s[12:13], s[0:1], 80")
    k.stamp(0)
    k.e("v_and_b32 v1, 63, v0", "v_and_b32 v2, 15, v0", "v_bfe_u32 v3, v0, 4, 2", "v_lshrrev_b32 v7, 6, v0",
        "v_lshlrev_b32 v11, 4, v1", "v_readfirstlane_b32 s30, v7")
    k.e("s_and_b32 s46, s2, 7", "s_lshr_b32 s47, s2, 3", "s_and_b32 s28, s47, 24", "s_add_u32 s28, s28, s46", "s_and_b32 s29, s47, 7",
        "s_lshr_b32 s48, s47, 3", "s_lshl_b32 s48, s48, 1", "s_add_u32 s48, s48, s29", "s_sub_u32 s34, s48, 9", "s_min_u32 s48, s48, s34",
        "s_lshl_b32 s48, s48, 1")
    k.e("s_waitcnt lgkmcnt(0)")
    srd(k, 16, 12, WS_END)
    srd(k, 24, 8, WQB)
    k.e("s_cmp_ge_u32 s30, 8", "s_cbranch_scc1 mega_helper")
    k.e("s_cmp_ge_u32 s30, 5", "s_cbranch_scc1 a_sw", "s_cmp_eq_u32 s30, 4", "s_cbranch_scc1 a_kvw")
    a_qwave(k)
    k.e("s_branch a_done")
    k.label("a_kvw")
    a_kvwave(k)
    k.e("s_branch a_done")
    k.label("a_sw")
    a_swave(k)
    k.label("a_done")
    get_nonce(k)
    k.e("s_mov_b32 s52, 0")
    attention(k)
    k.e("s_cmp_lg_u32 s52, 0", "s_cbranch_scc1 mega_ringed")
    ffn_ring_start(k)
    k.label("mega_ringed")
    k.e("s_waitcnt vmcnt(0)")
    stb(k, 4)
    k.e("s_barrier", "s_branch ffn_join")
    k.label("mega_helper")
    a_helper(k)
    helper_pack(k)
    oproj(k)
    ffn_ring_start(k)
    ffn(k)
    k.label("mega_end")
    k.e("s_endpgm")
    return k
```

```python
import sys
from k_small import gen_k1, gen_k3, LDS_SMALL
from k_attn import gen_k2, LDS_ATTN
from k_ffn import gen_k4, gen_k5, LDS_FFN
NAME = "sequential_preLN__grouped_kv_mqa__dense_activation_relu__prompt"
ref = open(f"cdna_kernels/{NAME}.s.ref").read().split("\n")
head = [l for l in ref if l.startswith(";") and "@launch" not in l and "Override" not in l and "grid=ceil" not in l]
def build(path):
    ks = [(gen_k1(), 256, 256, LDS_SMALL), (gen_k2(), 256, 768, LDS_ATTN), (gen_k3(), 256, 256, LDS_SMALL),
          (gen_k4(), 256, 512, LDS_FFN), (gen_k5(), 576, 256, 0)]
    import os
    if os.environ.get("MEGA", "2") == "1":
        from k_mega import gen_mega, LDS_MEGA
        ks = [(gen_k1(), 256, 256, LDS_SMALL), (gen_mega(), 256, 768, LDS_MEGA)]
    one = os.environ.get("MEGA", "2") == "2"
    if one:
        from k_one import gen_one, LDS_MEGA
        ks = [(gen_one(NAME + "_kernel"), 256, 768, LDS_MEGA)]
    out = list(head)
    for k, g, b, l in ks:
        if one and not os.environ.get("ASLIST"):
            out.append(f"; @launch grid=({g},1,1) block=({b},1,1) lds={l}")
        else:
            out.append(f"; @launch kernel={k.name} grid=({g},1,1) block=({b},1,1) lds={l}")
    out.append('.amdgcn_target "amdgcn-amd-amdhsa--gfx950"')
    out.append(".text")
    kds = []
    for k, *_ in ks:
        c, kd = k.text()
        out.append(c)
        kds.append(kd)
        print(k.name, "vgpr", k.maxv, "sgpr", k.maxs, "instrs", len(k.ins), "nops", sum(1 for x in k.ins if x.kind == "nop"))
    out.append('.section .rodata,"a"')
    for kd in kds:
        out.append(".p2align 6")
        out.append(kd)
    open(path, "w").write("\n".join(out))
if __name__ == "__main__":
    if "--stamp" in sys.argv:
        from asmlib import Kernel
        Kernel.STAMP = True
        sys.argv.remove("--stamp")
    build(sys.argv[1] if len(sys.argv) > 1 else f"cdna_kernels/{NAME}.s")
```

```python
import os
from asmlib import Kernel
from layout import *
from k_small import f2u, srd, ex, reduce_g_add, dma_slot_calc

S0, S1, OA, P, KF, V0, V1, K2F, Q, Q2E, Q2O = 16, 32, 48, 64, 72, 76, 80, 84, 88, 92, 94
T0 = 96
PIN, POUT, PS = 48, 96, 144
LDS_OST = 151808
LDS_RES = 92160
LDS_WO = 0
LDS_H = 73728
LDS_S = 161024
LDS_RDY = 163328
LDS_CNT = 163344
LDS_WQC = 163392
LDS_KVS = LDS_WQC + 12
LDS_KVR = LDS_WQC + 16
LDS_KMX = LDS_WQC + 20
LDS_KVI = LDS_WQC + 24
LDS_XC = LDS_WQC + 28
LDS_WKI = LDS_WQC + 32
LDS_REL = LDS_WQC + 36
LDS_NON = LDS_WQC + 40
LDS_ORD = LDS_WQC + 48
LDS_IMG = LDS_WQC + 52
LDS_MUS = LDS_WQC + 56
LDS_SRD = LDS_WQC + 60
LDS_QRD = LDS_WQC + 64
LDS_WDN = LDS_WQC + 72
LDS_IM0 = LDS_WQC + 76
LDS_MU = LDS_OST
LDS_MEGA = 163488
A_WKV = 0
A_WQ0 = 29696
A_X = 70656
A_WQ1 = A_X + 18432
A_SQ = LDS_S
A_SKV = LDS_S + 320
A_ST = LDS_S + 448
QX0, QACC, QWF, QONES = 48, 120, 140, 36
QACS = [16, 20, 24, 40, 44]
OX0, OACC, OWF = 48, 120, 140
XB0, ACC, WR = 16, 48, 96
D = 6
T = 3
STREAM = 36 * T * 1024
SPIN = 1 << 20
STA = bool(os.environ.get("STA"))


def sta(k, i):
    if STA:
        k.stamp(i)


STP = bool(os.environ.get("STP"))


def stb(k, i):
    if not STA and not STP and not (STT and i < 7) and not (STO and i > 6):
        k.stamp(i)


STT = bool(os.environ.get("STT"))


def stt(k, i):
    if STT:
        k.stamp(i)


STO = bool(os.environ.get("STO"))


def sto(k, i):
    if STO:
        k.stamp(i)


def stp(k, i):
    if STP:
        k.stamp(i)
WAUX = os.environ.get("WAUX", "sc1")


def r4(b):
    return f"v[{b}:{b+3}]"


def r16(b):
    return f"v[{b}:{b+15}]"


def poll(k, vaddr, soff, vtmp, tag, sleep=2, lo_only=False):
    lab, done = f"mega_poll_{tag}", f"mega_polld_{tag}"
    k.e(f"s_mov_b32 s3, {SPIN}")
    k.label(lab)
    k.e(f"buffer_load_dwordx2 v[{vtmp}:{vtmp+1}], v{vaddr}, s[16:19], s{soff} offen sc1", "s_waitcnt vmcnt(0)")
    if lo_only:
        k.e(f"v_cmp_eq_u32 vcc, s66, v{vtmp}")
    else:
        k.e(f"v_cmp_eq_u64 vcc, s[66:67], v[{vtmp}:{vtmp+1}]")
    k.e("s_cmp_eq_u64 vcc, -1", f"s_cbranch_scc1 {done}",
        f"s_sleep {sleep}", "s_sub_u32 s3, s3, 1", f"s_cbranch_scc0 {lab}")
    k.label(done)


def set_flag(k, soff):
    k.e("v_mov_b32 v12, 0", "v_mov_b32 v14, s66", "v_mov_b32 v15, s67", ex(1),
        f"buffer_store_dwordx2 v[14:15], v12, s[16:19], s{soff} offen sc1", ex(-1))


def lds_signal(k, addr, va=12, vb=13):
    k.e(f"v_mov_b32 v{va}, {addr}", f"v_mov_b32 v{vb}, 1", ex(1), f"ds_add_u32 v{va}, v{vb}", ex(-1))


def lds_wait(k, addr, n, tag, va=12, vb=13, sleep=int(os.environ.get("LWS", "1"))):
    lab, done = f"mega_lw_{tag}", f"mega_lwd_{tag}"
    k.e(f"v_mov_b32 v{va}, {addr}", f"s_mov_b32 s3, {SPIN*8}")
    k.label(lab)
    k.e(f"ds_read_b32 v{vb}, v{va}", "s_waitcnt lgkmcnt(0)", f"v_readfirstlane_b32 s39, v{vb}", f"s_cmp_ge_u32 s39, {n}",
        f"s_cbranch_scc1 {done}", f"s_sleep {sleep}", "s_sub_u32 s3, s3, 1", f"s_cbranch_scc0 {lab}")
    k.label(done)


def arrive(k, cnt, n, soff, tag, cnt_sgpr=None):
    if cnt_sgpr is None:
        k.e(f"v_mov_b32 v12, {LDS_CNT + 4*cnt}")
    else:
        k.e(f"v_mov_b32 v12, s{cnt_sgpr}")
    k.e("v_mov_b32 v13, 1", ex(1), "ds_add_rtn_u32 v14, v12, v13", ex(-1), "s_waitcnt lgkmcnt(0)",
        "v_readfirstlane_b32 s3, v14", f"s_cmp_lg_u32 s3, {n-1}", f"s_cbranch_scc1 mega_arr_{tag}")
    set_flag(k, soff)
    k.label(f"mega_arr_{tag}")


def publish_o(k, tag, pre=None):
    k.e("s_and_b32 s34, s30, 3", "s_lshr_b32 s35, s30, 2", "s_mul_i32 s36, s34, 2304", "s_mul_i32 s37, s35, 768",
        "s_add_u32 s36, s36, s37", f"s_add_u32 s36, s36, {LDS_OST}", "v_add_u32 v12, s36, v11",
        f"ds_read_b128 {r4(4)}, v12")
    k.e("s_lshl_b32 s36, s28, 2", "s_add_u32 s36, s36, s34", "s_mul_i32 s38, s36, 18432", "s_mul_i32 s39, s29, 2304",
        "s_add_u32 s38, s38, s39", "s_add_u32 s38, s38, s37", f"s_add_u32 s38, s38, {WS_O}")
    k.e("s_lshl_b32 s36, s28, 7", "s_lshl_b32 s39, s29, 3", "s_add_u32 s36, s36, s39", f"s_add_u32 s36, s36, {F1}")
    k.e("s_waitcnt lgkmcnt(0)", ex((1 << 48) - 1), f"buffer_store_dwordx4 {r4(4)}, v11, s[16:19], s38 offen sc1", ex(-1),
        "s_waitcnt vmcnt(0)")
    arrive(k, 1, 12, 36, tag)
    if pre:
        pre(k)


def attention(k):
    k.e("v_and_b32 v2, 31, v1", "v_lshrrev_b32 v3, 5, v1")
    k.e("s_lshr_b32 s35, s30, 2", "s_mul_i32 s35, s35, 4608", f"s_add_u32 s35, s35, {LDS_OST}", "s_movk_i32 s36, 2304",
        "v_lshrrev_b32 v8, 4, v2", "v_mul_u32_u24 v8, s36, v8", "v_and_b32 v9, 15, v2", "v_lshl_add_u32 v8, v9, 4, v8",
        "v_add_u32 v8, s35, v8", "v_lshl_add_u32 v9, v3, 8, v8", "s_and_b32 s37, s30, 3", "s_mul_i32 s37, s37, 18")
    for i in range(4):
        k.e(f"s_add_u32 s38, s37, {2*i}", "s_lshr_b32 s39, s38, 3", "s_lshl_b32 s39, s39, 8", "s_and_b32 s38, s38, 7",
            "s_lshl_b32 s38, s38, 1", "s_add_u32 s38, s38, s39", f"v_add_u32 v{Q+i}, s38, v9")
        if i == 0:
            k.e(f"v_add_u32 v{T0}, s38, v8")
    k.e(f"v_mov_b32 v{T0+2}, {LDS_KMX}")
    k.e("v_mov_b32 v12, v11")
    k.e("v_cmp_eq_u32 vcc, 28, v2", "v_cndmask_b32 v13, v2, 18, vcc",
        "v_cmp_lt_u32 vcc, 18, v13", "v_mov_b32 v14, 0x10000", "v_cndmask_b32 v13, v13, v14, vcc",
        "s_movk_i32 s40, 304", "v_mul_u32_u24 v14, s40, v3", "v_lshl_add_u32 v13, v13, 4, v14", f"v_add_u32 v13, {KV_V}, v13")
    k.e("v_min_u32 v14, 32, v1", "v_lshlrev_b32 v14, 4, v14", f"v_add_u32 v14, {KV_K2}, v14")
    k.e("v_cmp_eq_u32 s[44:45], 1, v3")
    k.e("s_lshr_b32 s35, s30, 2", "s_lshl_b32 s35, s35, 2", f"s_add_u32 s35, s35, {LDS_QRD}")
    sta(k, 4)
    lds_wait(k, "s35", 2, "qrd", va=T0 + 6, vb=T0 + 7)
    sta(k, 5)
    for i in range(4):
        k.e(f"ds_read_b32 v{Q+i}, v{Q+i}")
    k.e(f"ds_read_b32 v{T0}, v{T0} offset:512", "s_waitcnt lgkmcnt(0)")
    k.e(f"v_cndmask_b32 v{T0}, v{T0}, 0, s[44:45]")
    k.e(f"v_mov_b32 v{T0+1}, 0")
    for r in (Q, Q + 1, Q + 2, Q + 3, T0):
        k.e(f"v_dot2c_f32_bf16 v{T0+1}, v{r}, v{r}")
    k.e(f"v_mov_b32 v{T0+4}, v{T0+1}", f"v_permlane32_swap_b32 v{T0+1}, v{T0+4}", f"v_add_f32 v{T0+1}, v{T0+1}, v{T0+4}")
    lds_wait(k, LDS_KVR, 4, "kvr2", va=T0 + 6, vb=T0 + 7)
    k.e(f"ds_read_b32 v{T0+2}, v{T0+2}", f"v_mov_b32 v{T0+6}, {LDS_NON}", f"ds_read_b64 v[{T0+6}:{T0+7}], v{T0+6}", "s_waitcnt lgkmcnt(0)",
        f"v_readfirstlane_b32 s66, v{T0+6}", f"v_readfirstlane_b32 s67, v{T0+7}")
    k.e(f"v_mul_f32 v{T0+1}, v{T0+1}, v{T0+2}", f"v_sqrt_f32 v{T0+1}, v{T0+1}", f"v_mul_f32 v{T0+1}, {hex(f2u(1.02))}, v{T0+1}")
    k.e("s_mov_b32 s32, 0")
    k.label("attn_setm")
    k.e(f"v_xor_b32 v{T0+2}, 0x80000000, v{T0+1}",
        f"v_and_b32 v{T0+3}, 0xffff0000, v{T0+2}", f"v_sub_f32 v{T0+2}, v{T0+2}, v{T0+3}",
        f"v_and_b32 v{T0+4}, 0xffff0000, v{T0+2}", f"v_sub_f32 v{T0+2}, v{T0+2}, v{T0+4}",
        f"v_lshrrev_b32 v{T0+3}, 16, v{T0+3}", f"v_or_b32 v{T0+3}, v{T0+3}, v{T0+4}",
        f"v_lshrrev_b32 v{T0+2}, 16, v{T0+2}")
    k.e(f"v_cndmask_b32 v{Q2E}, v{T0}, v{T0+3}, s[44:45]", f"v_cndmask_b32 v{Q2E+1}, 0, v{T0+2}, s[44:45]",
        f"v_cndmask_b32 v{Q2O}, 0, v{T0+3}, s[44:45]", f"v_cndmask_b32 v{Q2O+1}, v{T0}, v{T0+2}, s[44:45]")
    k.e("v_mov_b32 v4, v12", "v_mov_b32 v5, v13", "v_mov_b32 v6, v14")
    k.e("s_cmp_eq_u32 s32, 10", "s_cbranch_scc1 attn_maxpass")
    for r in list(range(OA, OA + 16)) + list(range(P, P + 8)) + list(range(V1, V1 + 4)):
        k.e(f"v_mov_b32 v{r}, 0")
    k.e("s_mov_b32 s31, 16", "s_cmp_eq_u32 s32, 11", "s_cbranch_scc1 attn_start")
    k.e("s_mov_b32 s31, 2", "s_setprio 2")
    sta(k, 6)
    lds_wait(k, LDS_IM0, 4, "im0", va=T0 + 6, vb=T0 + 7)
    k.label("attn_start")
    k.stamp(2)
    k.e(f"ds_read_b128 {r4(KF)}, v4", f"ds_read_b128 {r4(K2F)}, v6", f"ds_read_b128 {r4(V0)}, v5", "s_waitcnt lgkmcnt(0)")
    k.e(f"v_mfma_f32_32x32x16_bf16 {r16(S0)}, {r4(KF)}, {r4(Q)}, 0",
        f"v_mfma_f32_32x32x8_bf16 {r16(S0)}, v[{K2F}:{K2F+1}], v[{Q2E}:{Q2E+1}], {r16(S0)}")
    k.e(f"ds_read_b128 {r4(KF)}, v4 offset:1024", "s_waitcnt lgkmcnt(0)", "s_nop 7", "s_nop 3")
    k.e(".p2align 6")
    k.label("attn_loop")
    for tau in range(4):
        cur, nxt = (S0, S1) if tau % 2 == 0 else (S1, S0)
        t1 = (tau + 1) % 4
        koff = (tau + 2) * 1024 if tau < 2 else GRP + (tau - 2) * 1024
        v0off = (tau + 1) * 1216 if tau < 3 else GRP

        def ex_(a, b):
            for i in range(a, b):
                k.e(f"v_exp_f32 v{cur+i}, v{cur+i}")

        def cv(a, b):
            for i in range(a, b):
                k.e(f"v_cvt_pk_bf16_f32 v{P+i}, v{cur+2*i}, v{cur+2*i+1}")
        k.e("s_waitcnt lgkmcnt(2)")
        k.e(f"v_mfma_f32_32x32x16_bf16 {r16(nxt)}, {r4(KF)}, {r4(Q)}, 0")
        k.e(f"ds_read_b128 {r4(KF)}, v4 offset:{koff}")
        ex_(0, 3)
        k.e("s_waitcnt lgkmcnt(2)")
        k.e(f"v_mfma_f32_32x32x16_bf16 {r16(OA)}, {r4(V1)}, {r4(P+4)}, {r16(OA)}")
        k.e(f"ds_read_b128 {r4(V1)}, v5 offset:{tau*1216+608}")
        ex_(3, 6)
        q2 = Q2E if t1 % 2 == 0 else Q2O
        kk = K2F + 2 * (t1 // 2)
        k.e(f"v_mfma_f32_32x32x8_bf16 {r16(nxt)}, v[{kk}:{kk+1}], v[{q2}:{q2+1}], {r16(nxt)}")
        if tau == 2:
            k.e(f"ds_read_b128 {r4(K2F)}, v6 offset:{GRP}")
        ex_(6, 9)
        cv(0, 4)
        ex_(9, 12)
        k.e("s_waitcnt lgkmcnt(2)")
        k.e(f"v_mfma_f32_32x32x16_bf16 {r16(OA)}, {r4(V0)}, {r4(P)}, {r16(OA)}")
        k.e(f"ds_read_b128 {r4(V0)}, v5 offset:{v0off}")
        ex_(12, 16)
        if tau == 3:
            k.e(f"v_add_u32 v4, {GRP}, v4", f"v_add_u32 v5, {GRP}, v5", f"v_add_u32 v6, {GRP}, v6")
            k.e("s_sub_u32 s31, s31, 1", "s_cmp_lg_u32 s31, 0")
        cv(4, 8)
    k.e("s_cbranch_scc1 attn_loop")
    k.e("s_cmp_ge_u32 s32, 4", "s_cbranch_scc1 attn_tail")
    k.e("s_add_u32 s32, s32, 1")
    k.e("s_cmp_eq_u32 s32, 2", "s_cbranch_scc1 attn_ph2", "s_cmp_eq_u32 s32, 3", "s_cbranch_scc1 attn_ph3",
        "s_cmp_eq_u32 s32, 4", "s_cbranch_scc1 attn_ph4")
    lds_wait(k, LDS_IMG, 4, "img", va=T0 + 6, vb=T0 + 7)
    k.e("s_mov_b32 s31, 9", "s_branch attn_loop")
    for ph, cnt, pr in ((2, 2, 1), (3, 2, 1), (4, 1, 0)):
        k.label(f"attn_ph{ph}")
        k.e(f"s_setprio {pr}", f"s_mov_b32 s31, {cnt}")
        if ph == 2:
            k.e(f"v_cndmask_b32 v{T0+5}, v{OA+10}, v{OA+12}, s[44:45]", f"v_cmp_le_f32 vcc, {hex(f2u(2.0**-40))}, v{T0+5}",
                "s_cmp_eq_u64 vcc, -1", "s_cselect_b32 s34, 1, 0x101", f"v_mov_b32 v{T0+6}, {LDS_REL}", f"v_mov_b32 v{T0+7}, s34",
                ex(1), f"ds_add_u32 v{T0+6}, v{T0+7}", ex(-1))
        if ph == 4:
            k.e(f"v_mov_b32 v{T0+6}, {LDS_RDY}", f"ds_read_b32 v{T0+6}, v{T0+6}", "s_waitcnt lgkmcnt(0)",
                f"v_readfirstlane_b32 s52, v{T0+6}", "s_cmp_eq_u32 s52, 0", "s_cbranch_scc1 attn_loop")
            ffn_ring_start(k)
        k.e("s_branch attn_loop")
    k.label("attn_maxpass")
    k.e(f"v_mov_b32 v{T0+1}, 0xff800000", "s_mov_b32 s31, 16")
    k.label("attn_maxloop")
    k.e(f"ds_read_b128 {r4(K2F)}, v6")
    for tau in range(4):
        q2 = Q2E if tau % 2 == 0 else Q2O
        kk = K2F + 2 * (tau // 2)
        k.e(f"ds_read_b128 {r4(KF)}, v4 offset:{tau*1024}", "s_waitcnt lgkmcnt(0)")
        k.e(f"v_mfma_f32_32x32x16_bf16 {r16(S0)}, {r4(KF)}, {r4(Q)}, 0",
            f"v_mfma_f32_32x32x8_bf16 {r16(S0)}, v[{kk}:{kk+1}], v[{q2}:{q2+1}], {r16(S0)}")
        for i in range(8):
            k.e(f"v_max3_f32 v{T0+1}, v{S0+2*i}, v{S0+2*i+1}, v{T0+1}")
    k.e(f"v_add_u32 v4, {GRP}, v4", f"v_add_u32 v6, {GRP}, v6", "s_sub_u32 s31, s31, 1", "s_cmp_lg_u32 s31, 0",
        "s_cbranch_scc1 attn_maxloop")
    k.e(f"v_mov_b32 v{T0+2}, v{T0+1}", f"v_permlane32_swap_b32 v{T0+1}, v{T0+2}", f"v_max_f32 v{T0+1}, v{T0+1}, v{T0+2}")
    k.e("s_mov_b32 s32, 11", "s_branch attn_setm")
    k.label("attn_tail")
    k.e("s_waitcnt lgkmcnt(0)")
    k.e(f"v_mfma_f32_32x32x16_bf16 {r16(OA)}, {r4(V1)}, {r4(P+4)}, {r16(OA)}")
    k.e("s_and_b32 s34, s30, 3", "s_mul_i32 s34, s34, 18", "s_lshr_b32 s35, s30, 2", "s_mul_i32 s35, s35, 4608",
        f"s_add_u32 s35, s35, {LDS_OST}", "s_movk_i32 s36, 2304",
        f"v_lshrrev_b32 v{T0+9}, 4, v2", f"v_mul_u32_u24 v{T0+9}, s36, v{T0+9}", f"v_and_b32 v{T0+8}, 15, v2",
        f"v_lshl_add_u32 v{T0+9}, v{T0+8}, 4, v{T0+9}", f"v_add_u32 v{T0+9}, s35, v{T0+9}")
    k.e(f"v_lshl_add_u32 v{T0+6}, v3, 2, s34", f"v_add_u32 v{T0+7}, 2, v{T0+6}")
    for r in (T0 + 6, T0 + 7):
        k.e(f"v_lshrrev_b32 v{T0+8}, 3, v{r}", f"v_and_b32 v{r}, 7, v{r}", f"v_lshl_add_u32 v{r}, v{r}, 1, v{T0+9}",
            f"v_lshl_add_u32 v{r}, v{T0+8}, 8, v{r}")
    k.e(f"v_cndmask_b32 v{T0+5}, v{OA+10}, v{OA+12}, s[44:45]")
    k.e(f"v_cmp_le_f32 vcc, {hex(f2u(2.0**-40))}, v{T0+5}")
    k.e("s_cmp_eq_u32 s32, 11", "s_cbranch_scc1 attn_fin")
    k.e("s_cmp_eq_u64 vcc, -1", "s_cbranch_scc1 attn_fin")
    k.e("s_mov_b32 s32, 10", f"v_mov_b32 v{T0+1}, 0", "s_branch attn_setm")
    k.label("attn_fin")
    k.e(f"v_rcp_f32 v{T0+5}, v{T0+5}")
    for i in range(10):
        k.e(f"v_mul_f32 v{OA+i}, v{T0+5}, v{OA+i}")
    for i in range(5):
        k.e(f"v_cvt_pk_bf16_f32 v{P+i}, v{OA+2*i}, v{OA+2*i+1}")
    k.e(f"ds_write_b32 v{T0+6}, v{P}", f"ds_write_b32 v{T0+7}, v{P+1}",
        f"ds_write_b32 v{T0+6}, v{P+2} offset:256", f"ds_write_b32 v{T0+7}, v{P+3} offset:256",
        ex(0xffffffff), f"ds_write_b32 v{T0+6}, v{P+4} offset:512", ex(-1))
    k.e("s_waitcnt lgkmcnt(0)", "s_barrier")
    stb(k, 3)
    publish_o(k, "oa")


def kv_dma(k, a, b):
    for i in range(a, b):
        k.e(f"s_add_u32 m0, s34, {i*4096}", f"s_sub_u32 s36, s35, {IMG - 4096}", "buffer_load_dwordx4 v10, s[16:19], s35 offen sc1 lds",
            "s_add_u32 s35, s35, 4096", "s_min_u32 s35, s35, s36")


NB = 7


def roll_gemm(k, steps, rd, mfma, pre=None):
    seq = [(s, t) for s in steps for t in range(5)]
    n = len(seq)
    for i in range(min(NB, n)):
        rd(seq[i][1], seq[i][0], i % NB)
    for i, (s, t) in enumerate(seq):
        ahead = min(NB - 1, n - 1 - i)
        extra = pre(s) if (pre and t == 0) else ""
        k.e(f"s_waitcnt lgkmcnt({2*ahead}){extra}")
        mfma(t, s, i % NB)
        if i + NB < n:
            rd(seq[i + NB][1], seq[i + NB][0], i % NB)


def roll_gemm2(k, steps, rd2, mf2):
    seq = [(s, t) for s in steps for t in range(5)]
    n = len(seq)
    for i in range(min(NB, n)):
        k.e(*rd2(seq[i][1], seq[i][0], i % NB))
    for i, (s, t) in enumerate(seq):
        issued = min(n, NB + max(0, i - 1))
        k.e(f"s_waitcnt lgkmcnt({2*(issued - 1 - i)})")
        m = mf2(t, s, i % NB)
        j = i - 1 + NB
        r = rd2(seq[j][1], seq[j][0], (i - 1) % NB) if (i >= 1 and j < n) else ["", ""]
        k.e(m[0], r[0], m[1], r[1])


def helper_pack(k):
    def dma(a, b):
        kv_dma(k, a, b)
    k.e("s_waitcnt vmcnt(0)")
    lds_signal(k, LDS_IM0)
    lds_wait(k, LDS_WDN, 4, "wdn")
    dma(7, 37)
    k.e("s_cmp_lg_u32 s31, 0", "s_cbranch_scc1 mega_h_nolast")
    k.e(ex(0xffff))
    dma(37, 38)
    k.e(ex(-1))
    k.label("mega_h_nolast")
    k.e("s_lshl_b32 s34, s31, 6", "v_add_u32 v12, s34, v1", "v_min_u32 v12, 161, v12", "v_lshlrev_b32 v12, 7, v12",
        "s_mul_i32 s34, s47, 20736")
    k.e("s_lshl_b32 s50, s31, 5", "s_add_u32 s50, s50, s47",
        "s_cmp_ge_u32 s50, 54", "s_cselect_b32 s53, 1, 0",
        "s_mul_i32 s51, s53, 54", "s_sub_u32 s51, s50, s51",
        "s_mul_i32 s54, s51, 57", "s_lshr_b32 s54, s54, 10",
        "s_mul_i32 s52, s54, 18", "s_sub_u32 s52, s51, s52",
        "s_cmp_eq_u32 s53, 0",
        "s_cselect_b32 s20, s4, s6", "s_cselect_b32 s21, s5, s7", f"s_mov_b32 s22, {hex(W1B)}", "s_mov_b32 s23, 0x00020000",
        "s_movk_i32 s56, 1152", "s_cselect_b32 s56, 9216, s56",
        "s_movk_i32 s57, 1152", "s_cselect_b32 s57, s57, 663552", "s_mul_i32 s57, s57, s46",
        "s_mul_i32 s58, s54, 192", "s_mul_i32 s58, s58, s56", "s_add_u32 s57, s57, s58",
        "s_lshl_b32 s58, s52, 6", "s_add_u32 s57, s57, s58")
    k.e("s_add_u32 s58, s53, s54", "s_cmp_eq_u32 s58, 3", "s_cselect_b32 s58, 2, 1", "s_cselect_b32 s59, -5, 1",
        "s_mul_i32 s58, s58, s56", "s_mul_i32 s59, s59, s56", "s_mul_i32 s60, s56, 25")
    k.e("v_lshrrev_b32 v2, 4, v1", "v_lshlrev_b32 v2, 3, v2", "v_mul_u32_u24 v15, s56, v2", "v_and_b32 v3, 15, v1",
        "v_lshl_add_u32 v15, v3, 2, v15", "v_lshlrev_b32 v8, 2, v3",
        "s_mov_b32 s64, 0x05040100", "s_mov_b32 s65, 0x07060302")
    k.e(f"s_mul_i32 s62, s52, {STREAM}", f"s_mul_i32 s63, s52, {2*STREAM}", f"s_sub_u32 s63, s63, {24*STREAM - 2048}",
        "s_cmp_lt_u32 s52, 12", "s_cselect_b32 s62, s62, s63", "s_movk_i32 s61, 1024", f"s_cselect_b32 s61, s61, {STREAM}",
        "s_mul_i32 s63, s53, 3", "s_add_u32 s63, s63, s54", f"s_mul_i32 s63, s63, {6*3072}", "s_add_u32 s62, s62, s63",
        f"s_mul_i32 s63, s46, {1296*1024}", "s_add_u32 s62, s62, s63", f"s_add_u32 s62, s62, {WS_W}",
        "s_add_u32 s61, s61, s62")
    for i in range(4):
        k.e(f"v_mov_b32 v{PS+8+i}, 0x3f803f80")
    k.e("s_waitcnt vmcnt(0)")
    lds_signal(k, LDS_IMG, va=9, vb=10)
    stp(k, 3)
    k.e("buffer_load_dword v13, v12, s[24:27], s34 offen")
    k.e("s_cmp_ge_u32 s50, 108", "s_cbranch_scc1 mega_h_nounit")
    for ss in range(6):
        for jj in range(8):
            k.e(f"buffer_load_dword v{PIN+8*ss+jj}, v15, s[20:23], s57 offen",
                f"s_add_u32 s57, s57, s{60 if jj == 7 else (59 if jj == 3 else 58)}")
    stp(k, 4)
    for ss in range(6):
        k.e(f"s_waitcnt vmcnt({40 - 8*ss + 2*ss})")
        if ss in (0, 5):
            stp(k, 5 if ss == 0 else 6)
        for e in range(2):
            for q in range(4):
                k.e(f"v_perm_b32 v{POUT+8*ss+4*e+q}, v{PIN+8*ss+2*q+1}, v{PIN+8*ss+2*q}, s{64+e}")
            k.e(f"buffer_store_dwordx4 {r4(POUT+8*ss+4*e)}, v11, s[16:19], s{62-e} offen sc1", f"s_add_u32 s{62-e}, s{62-e}, 3072")
    stp(k, 7)
    k.e("s_cmp_lg_u32 s53, 0", "s_cbranch_scc1 mega_h_nounit")
    for ss in range(6):
        for e in range(2):
            k.e(f"v_mfma_f32_16x16x32_bf16 {r4(PS+4*e)}, {r4(PS+8)}, {r4(POUT+8*ss+4*e)}, {r4(PS+4*e) if ss else 0}")
    k.e("s_mul_i32 s58, s54, 18432", "s_mul_i32 s59, s46, 2304", "s_add_u32 s58, s58, s59", "s_lshl_b32 s59, s52, 7",
        "s_add_u32 s58, s58, s59", f"s_add_u32 s58, s58, {WS_SP}")
    k.e(ex(0xffff), f"buffer_store_dword v{PS}, v8, s[16:19], s58 offen sc1",
        f"buffer_store_dword v{PS+4}, v8, s[16:19], s58 offen offset:64 sc1", ex(-1))
    k.label("mega_h_nounit")
    k.e("s_waitcnt vmcnt(0)", "s_lshl_b32 s34, s46, 9", f"s_add_u32 s36, s34, {FP}", "s_lshr_b32 s35, s47, 3", "s_lshl_b32 s35, s35, 7",
        "s_add_u32 s34, s36, s35", "s_lshl_b32 s35, s29, 3", "s_add_u32 s34, s34, s35")
    k.stamp(2)
    arrive(k, 0, 4, 34, "p")
    k.e("s_cmp_lg_u32 s31, 3", "s_cbranch_scc1 mega_h_nofp")
    lds_wait(k, LDS_QRD, 2, "qa")
    lds_wait(k, LDS_QRD + 4, 2, "qb")
    k.e("v_bfe_u32 v12, v1, 3, 2", "v_lshlrev_b32 v12, 7, v12", "v_and_b32 v13, 7, v1", "v_lshl_add_u32 v12, v13, 3, v12")
    poll(k, 12, 36, 14, "p", sleep=16)
    k.e("v_add_u32 v13, 128, v1", "v_min_u32 v13, 143, v13", "v_lshlrev_b32 v13, 4, v13",
        "s_mul_i32 s34, s46, 2304", f"s_add_u32 s34, s34, {WS_SP}")
    for i in range(3):
        k.e(f"buffer_load_dwordx4 {r4(PIN+12*i)}, v11, s[16:19], s34 offen sc1", f"buffer_load_dwordx4 {r4(PIN+12*i+4)}, v11, s[16:19], s34 offen offset:1024 sc1",
            f"buffer_load_dwordx4 {r4(PIN+12*i+8)}, v13, s[16:19], s34 offen sc1", "s_add_u32 s34, s34, 18432")
    k.e(f"v_mov_b32 v14, {LDS_RDY}", "v_mov_b32 v15, 1", "ds_write_b32 v14, v15")
    k.e("v_lshlrev_b32 v14, 7, v1", "v_and_b32 v15, 3, v1", "v_lshlrev_b32 v15, 7, v15",
        f"s_mul_i32 s34, s46, {1296*1024}", "s_mul_i32 s35, s47, 41472", "s_add_u32 s34, s34, s35", f"s_add_u32 s34, s34, {WS_W}")
    for i in range(6):
        k.e(f"buffer_load_dword v{POUT+i}, v{14 if i < 5 else 15}, s[16:19], s34 offen sc1", "s_add_u32 s34, s34, 8192")
    k.e(f"v_add_u32 v12, {LDS_S}, v11", f"v_add_u32 v13, {LDS_S}, v13", "s_waitcnt vmcnt(6)")
    for i in range(1, 3):
        for c in range(12):
            k.e(f"v_add_f32 v{PIN+c}, v{PIN+c}, v{PIN+12*i+c}")
    k.e(f"ds_write_b128 v12, {r4(PIN)}", f"ds_write_b128 v12, {r4(PIN+4)} offset:1024", f"ds_write_b128 v13, {r4(PIN+8)}",
        "s_waitcnt lgkmcnt(0)")
    k.label("mega_h_nofp")


def wo_dma(k, tag):
    k.e("s_mul_i32 s32, s29, 144", "s_lshl_b32 s42, s29, 1", "s_add_u32 s42, s42, s31",
        "s_mul_i32 s43, s31, 5120", f"s_add_u32 s43, s43, {LDS_WO}")

    k.e("s_cmp_eq_u32 s31, 3", f"s_cbranch_scc1 mega_o_skip{tag}")
    for grp in range(6):
        k.e("s_sub_u32 s36, s42, 18", "s_min_u32 s42, s42, s36", "s_mul_i32 s36, s42, 36864", "s_add_u32 s36, s36, s32")
        for i in range(5):
            k.e(f"s_add_u32 m0, s43, {grp*3*5120 + i*1024}", "s_nop 0", f"buffer_load_dwordx4 v{16+i}, s[24:27], s36 offen lds")
        k.e("s_add_u32 s42, s42, 3")
    k.label(f"mega_o_skip{tag}")
    srd(k, 56, 10, XB)
    k.e("s_add_u32 s35, s49, s32")
    for i in range(3):
        if i == 2:
            k.e(ex(0xffffffff))
        k.e(f"s_add_u32 m0, s44, {i*1024}", "s_nop 0", f"buffer_load_dwordx4 v{16+i}, s[56:59], s35 offen lds")
    k.e(ex(-1), "s_waitcnt vmcnt(0)")


def oproj(k):
    k.e("v_and_b32 v2, 15, v1", "v_lshrrev_b32 v3, 4, v1")
    k.e("v_lshrrev_b32 v32, 2, v2",
        "v_and_b32 v33, 1, v3", "v_lshlrev_b32 v33, 2, v33", "v_add_u32 v32, v32, v33",
        "v_lshl_add_u32 v32, v3, 3, v32", "v_xor_b32 v33, 4, v32", "s_movk_i32 s40, 160",
        "v_and_b32 v34, 3, v2", "v_lshlrev_b32 v34, 3, v34", f"v_add_u32 v34, {LDS_WO}, v34",
        "v_mad_u32_u24 v28, v32, s40, v34", "v_mad_u32_u24 v29, v33, s40, v34",
        "v_add_u32 v30, 61440, v28", "v_add_u32 v31, 61440, v29")
    k.e("s_mul_i32 s44, s31, 2560", f"s_add_u32 s44, s44, {LDS_RES}",
        "v_and_b32 v21, 8, v2", "v_lshrrev_b32 v21, 1, v21", "v_xor_b32 v21, v21, v2", "v_mul_u32_u24 v21, s40, v21",
        "v_lshl_add_u32 v21, v3, 3, v21", "v_add_u32 v21, s44, v21")
    k.e("v_and_b32 v22, 1, v3", "v_lshlrev_b32 v22, 9, v22", "v_lshrrev_b32 v32, 1, v3", "v_lshl_add_u32 v22, v32, 8, v22",
        "v_lshl_add_u32 v22, v2, 4, v22")
    k.e("v_and_b32 v23, 7, v1", "v_lshlrev_b32 v23, 3, v23")
    for r in range(OACC, OACC + 20):
        k.e(f"v_mov_b32 v{r}, 0")
    k.e("s_lshl_b32 s48, s28, 2", "s_add_u32 s48, s48, s31", "s_mul_i32 s49, s48, 18432")
    k.e(f"s_add_u32 s34, s49, {WS_O}", "v_add_u32 v24, s34, v11", "s_lshl_b32 s51, s29, 11")
    k.e(f"v_mov_b32 v12, {LDS_REL}", f"s_mov_b32 s3, {SPIN*8}")
    k.label("mega_rel")
    k.e("ds_read_b32 v13, v12", "s_waitcnt lgkmcnt(0)", "v_readfirstlane_b32 s50, v13", "s_and_b32 s39, s50, 0xff", "s_cmp_ge_u32 s39, 8",
        "s_cbranch_scc1 mega_reld", "s_sleep 4", "s_sub_u32 s3, s3, 1", "s_cbranch_scc0 mega_rel")
    k.label("mega_reld")
    k.e("s_cmp_lg_u32 s50, 8", "s_cbranch_scc1 mega_noearly")
    wo_dma(k, "a")
    k.label("mega_noearly")
    stp(k, 8)
    k.e("s_waitcnt lgkmcnt(0)", "s_barrier")
    stb(k, 3)
    publish_o(k, "ob")
    k.e("s_cmp_eq_u32 s50, 8", "s_cbranch_scc1 mega_nolate")
    wo_dma(k, "b")
    k.label("mega_nolate")
    k.e("s_lshl_b32 s34, s28, 7", f"s_add_u32 s34, s34, {F1}")
    k.e("s_cmp_lg_u32 s31, 0", "s_cbranch_scc1 mega_polld_o")
    lds_wait(k, LDS_CNT + 4, 12, "owno")
    k.e(f"s_sleep {os.environ.get('OS0', '6')}")
    poll(k, 23, 34, 32, "o", sleep=int(os.environ.get("OSP", "3")))
    lds_signal(k, LDS_ORD)
    lds_wait(k, LDS_ORD, 4, "ord")
    stb(k, 4)
    for s in range(18):
        k.e(f"buffer_load_dwordx4 v[{OX0+4*s}:{OX0+4*s+3}], v24, s[16:19], s51 offen sc1",
            "s_add_u32 s51, s51, 1024", "s_cmp_eq_u32 s51, 18432", "s_cselect_b32 s51, 0, s51")

    def rd(t, s, b):
        a0, a1 = (28, 29) if s < 12 else (30, 31)
        off = (s if s < 12 else s - 12) * 5120 + 32 * t
        k.e(f"ds_read_b64_tr_b16 v[{OWF+4*b}:{OWF+4*b+1}], v{a0} offset:{off}",
            f"ds_read_b64_tr_b16 v[{OWF+4*b+2}:{OWF+4*b+3}], v{a1} offset:{off}")

    def mf(t, s, b):
        a = r4(OACC + 4 * t)
        k.e(f"v_mfma_f32_16x16x32_bf16 {a}, {r4(OWF+4*b)}, {r4(OX0+4*s)}, {a}")
    roll_gemm(k, list(range(18)), rd, mf, pre=lambda s: f" vmcnt({17-s})")
    sto(k, 1)
    for t in range(5):
        k.e(f"ds_read_b64 v[{36+2*t}:{37+2*t}], v21 offset:{32*t}")
    k.e("v_mov_b32 v6, 0", "v_mov_b32 v7, 0", "v_mov_b32 v34, 0x3f803f80",
        "s_mul_i32 s35, s29, 2304", "s_add_u32 s35, s35, s49", f"s_add_u32 s35, s35, {WS_H}")
    for t in range(5):
        a = OACC + 4 * t
        d = 48 + 2 * t
        k.e(f"s_waitcnt lgkmcnt({4-t})")
        k.e(f"v_lshlrev_b32 v24, 16, v{36+2*t}", f"v_and_b32 v25, 0xffff0000, v{36+2*t}",
            f"v_lshlrev_b32 v26, 16, v{37+2*t}", f"v_and_b32 v27, 0xffff0000, v{37+2*t}")
        for i in range(4):
            k.e(f"v_add_f32 v{a+i}, v{a+i}, v{24+i}")
        k.e(f"v_cvt_pk_bf16_f32 v{d}, v{a}, v{a+1}", f"v_cvt_pk_bf16_f32 v{d+1}, v{a+2}, v{a+3}")
        if t == 4:
            k.e(ex(0xffffffff))
        k.e(f"v_dot2c_f32_bf16 v6, v{d}, v34", f"v_dot2c_f32_bf16 v7, v{d}, v{d}",
            f"v_dot2c_f32_bf16 v6, v{d+1}, v34", f"v_dot2c_f32_bf16 v7, v{d+1}, v{d+1}")
        if t == 4:
            k.e(ex(-1))
        if t % 2 == 1 or t == 4:
            b = 48 + 4 * (t // 2)
            k.e(f"v_permlane16_swap_b32 v{b}, v{b+2}", f"v_permlane16_swap_b32 v{b+1}, v{b+3}")
            if t == 4:
                k.e(ex(0xffff))
            k.e(f"buffer_store_dwordx4 {r4(b)}, v22, s[16:19], s35 offen offset:{1024*(t//2)} sc1")
            if t == 4:
                k.e(ex(-1))
    reduce_g_add(k, [6, 7], [32, 33])
    k.e("v_lshlrev_b32 v32, 4, v2", "s_lshl_b32 s35, s48, 10", "s_lshr_b32 s34, s29, 1", "s_lshl_b32 s34, s34, 8",
        "s_add_u32 s35, s35, s34", "s_and_b32 s34, s29, 1", "s_lshl_b32 s34, s34, 3", "s_add_u32 s35, s35, s34",
        f"s_add_u32 s35, s35, {WS_ST}", ex(0xffff))
    k.e("buffer_store_dwordx2 v[6:7], v32, s[16:19], s35 offen sc1", ex(-1))
    sto(k, 2)
    k.e("s_lshl_b32 s34, s28, 7", "s_lshl_b32 s35, s29, 3", "s_add_u32 s34, s34, s35", f"s_add_u32 s34, s34, {F2}", "s_waitcnt vmcnt(0)")
    sto(k, 7)
    arrive(k, 2, 4, 34, "h")


def acc(t, mb):
    return ACC + (t * 4 + mb) * 4


def wreg(slot, t):
    return WR + ((slot + 1) % 6) * 12 + t * 4


def wload(slot, t):
    return f"buffer_load_dwordx4 {r4(wreg(slot, t))}, v11, s[20:23], s53 offen offset:{1024*t} {WAUX}"


def ffn_ring_start(k):
    k.e(f"s_mul_i32 s34, s30, {STREAM}", f"s_mul_i32 s35, s46, {1296*1024}", "s_add_u32 s34, s34, s35", f"s_add_u32 s34, s34, {WS_W}",
        "s_add_u32 s20, s12, s34", "s_addc_u32 s21, s13, 0", f"s_mov_b32 s22, {STREAM}", "s_mov_b32 s23, 0x00020000",
        "s_mov_b32 s53, 0")
    for st in range(D - 1):
        for t in range(T):
            k.e(wload(st, t))
        k.e(f"s_add_u32 s53, s53, {T*1024}")


def ffn(k):
    k.label("ffn_join")
    k.e("s_setprio 0", "v_and_b32 v2, 15, v1", "v_lshrrev_b32 v3, 4, v1")
    k.e("s_lshl_b32 s34, s47, 2", "s_and_b32 s35, s30, 3", "s_add_u32 s34, s34, s35", "s_mul_i32 s41, s34, 18432",
        "s_lshr_b32 s35, s30, 2", "s_lshl_b32 s35, s35, 10", "s_add_u32 s41, s41, s35", f"s_add_u32 s41, s41, {WS_H}",
        "s_lshl_b32 s42, s30, 10")
    k.e("s_lshl_b32 s34, s30, 7", f"s_add_u32 s34, s34, {LDS_S}", "v_lshlrev_b32 v13, 4, v3", "v_add_u32 v12, s34, v13",
        "s_lshl_b32 s34, s30, 6", f"s_add_u32 s34, s34, {LDS_S + 1536}", "v_add_u32 v13, s34, v13",
        f"ds_read_b128 {r4(XB0+16)}, v12", f"ds_read_b128 {r4(XB0+20)}, v12 offset:64", f"ds_read_b128 {r4(XB0+24)}, v13")
    k.e("v_lshlrev_b32 v9, 2, v2", f"v_add_u32 v9, {LDS_MU}, v9", "s_and_b32 s34, s46, 3", "s_lshl_b32 s34, s34, 6", "v_add_u32 v10, s34, v9")
    k.e("s_cmp_lg_u32 s30, 0", "s_cbranch_scc1 ffn_g")
    k.e("v_and_b32 v12, 7, v1", "v_lshlrev_b32 v12, 3, v12", "s_lshl_b32 s34, s47, 7", f"s_add_u32 s34, s34, {F2}",
        "v_lshlrev_b32 v8, 10, v3", "v_lshl_add_u32 v8, v2, 4, v8", "s_lshl_b32 s35, s47, 12", f"s_add_u32 s35, s35, {WS_ST}")
    lds_wait(k, LDS_CNT + 8, 4, "own", va=14, vb=15, sleep=2)
    k.e(f"s_sleep {os.environ.get('HS0', '10')}")
    poll(k, 12, 34, 14, "h", sleep=int(os.environ.get("HSP", "4")))
    for p in range(4):
        k.e(f"buffer_load_dwordx4 {r4(XB0+4*p)}, v8, s[16:19], s35 offen offset:{256*p} sc1")
    k.label("ffn_g")
    k.e("s_barrier")
    stb(k, 5)
    for i in range(4):
        k.e(f"s_add_u32 m0, s42, {i*12288}", f"s_add_u32 s36, s41, {i*3072}", "buffer_load_dwordx4 v11, s[16:19], s36 offen sc1 lds")
    k.e("s_cmp_lg_u32 s30, 0", "s_cbranch_scc1 ffn_st")
    k.e("s_waitcnt vmcnt(4)")
    for p in range(1, 4):
        for c in range(4):
            k.e(f"v_add_f32 v{XB0+c}, v{XB0+c}, v{XB0+4*p+c}")
    k.e(f"v_add_f32 v4, v{XB0}, v{XB0+2}", f"v_add_f32 v5, v{XB0+1}, v{XB0+3}",
        f"v_mul_f32 v4, {hex(f2u(-1/576))}, v4", f"v_mul_f32 v5, {hex(f2u(1/576))}, v5", "v_fma_f32 v5, -v4, v4, v5", "v_max_f32 v5, 0, v5",
        f"v_add_f32 v5, {hex(f2u(1e-5))}, v5", "v_rsq_f32 v5, v5", "v_lshlrev_b32 v6, 2, v1", f"v_add_u32 v6, {LDS_MU}, v6",
        "ds_write_b32 v6, v4", "ds_write_b32 v6, v5 offset:256")
    lds_signal(k, LDS_MUS)
    k.label("ffn_st")
    lds_wait(k, LDS_MUS, 1, "mus")
    sto(k, 8)
    for mb in range(4):
        k.e(f"ds_read_b32 v{4+mb}, v9 offset:{64*mb}")
    k.e("ds_read_b32 v8, v10 offset:256", "s_waitcnt lgkmcnt(0)")
    for t in range(T):
        for mb in range(4):
            for i in range(4):
                k.e(f"v_mul_f32 v{acc(t,mb)+i}, v{4+mb}, v{XB0+16+4*t+i}")
    k.e("s_add_u32 s41, s41, 12288", "s_add_u32 s42, s42, 49152")
    k.e("s_waitcnt vmcnt(3)", "s_barrier")
    stb(k, 6)
    k.e("v_mov_b32 v10, v11", "s_mov_b32 s31, 0")
    k.label("ffn_start")
    for mb in range(4):
        k.e(f"ds_read_b128 {r4(XB0+4*mb)}, v10 offset:{1024*mb}")
    k.e(".p2align 6")
    k.label("ffn_loop")
    k.e("s_cmp_lg_u32 s31, 1", "s_cbranch_scc1 ffn_nodma")
    for i in range(2):
        k.e(f"s_add_u32 m0, s42, {i*12288}", f"s_add_u32 s36, s41, {i*3072}", "buffer_load_dwordx4 v11, s[16:19], s36 offen sc1 lds")
    k.label("ffn_nodma")
    for u in range(D):
        xb = XB0 + 16 * (u % 2)
        xn = XB0 + 16 * ((u + 1) % 2)
        fill = [f"ds_read_b128 {r4(xn+4*mb)}, v10 offset:{(u+1)*4096 + 1024*mb}" for mb in range(4)]
        fill += [wload((u + D - 1) % D, t) for t in range(T)]
        fill += [f"s_add_u32 s53, s53, {T*1024}"]
        k.e(f"s_waitcnt vmcnt({4*T}) lgkmcnt(0)")
        if u == D - 1:
            k.e("s_cmp_ge_u32 s31, 2", "s_cbranch_scc1 ffn_nobar", "s_barrier")
            k.label("ffn_nobar")
        if u == 2:
            k.e("s_cmp_lg_u32 s31, 0", "s_cbranch_scc1 ffn_nobar2", "s_waitcnt vmcnt(8)", "s_barrier")
            k.label("ffn_nobar2")
        for t in range(T):
            for mb in range(4):
                a = r4(acc(t, mb))
                k.e(f"v_mfma_f32_16x16x32_bf16 {a}, {r4(wreg(u, t))}, {r4(xb+4*mb)}, {a}")
                if fill:
                    k.e(fill.pop(0))
    k.e(f"v_add_u32 v10, {D*4096}, v10", "s_add_u32 s31, s31, 1",
        "s_cmp_eq_u32 s31, 3", "s_cbranch_scc1 ffn_ep1",
        "s_cmp_lt_u32 s31, 6", "s_cbranch_scc1 ffn_loop")
    stb(k, 8)
    k.e("s_waitcnt lgkmcnt(0)")
    k.e(f"s_mul_i32 s34, s46, {XB}", "s_mul_i32 s33, s47, 73728", f"s_add_u32 s33, s33, {WS_P}", "s_add_u32 s34, s34, s33",
        "s_lshl_b32 s35, s30, 10", "s_add_u32 s36, s34, s35",
        "s_cmp_ge_u32 s30, 6", "s_movk_i32 s37, 12288", f"s_cselect_b32 s37, {12288 + 18432 - 6144}, s37", "s_add_u32 s37, s37, s36")
    for mb in range(4):
        d = XB0 + 4 * mb
        a, b = acc(0, mb), acc(1, mb)
        for i in range(4):
            k.e(f"v_cvt_pk_bf16_f32 v{d+i}, v{a+i}, v{b+i}")
        k.e(f"buffer_store_dwordx4 {r4(d)}, v11, s[16:19], s36 offen sc1", "s_add_u32 s36, s36, 18432")
    for h in range(2):
        d = XB0 + 16 + 4 * h
        a, b = acc(2, 2 * h), acc(2, 2 * h + 1)
        k.e(f"v_cvt_pk_bf16_f32 v{d}, v{a}, v{a+1}", f"v_cvt_pk_bf16_f32 v{d+1}, v{a+2}, v{a+3}",
            f"v_cvt_pk_bf16_f32 v{d+2}, v{b}, v{b+1}", f"v_cvt_pk_bf16_f32 v{d+3}, v{b+2}, v{b+3}")
        k.e(f"buffer_store_dwordx4 {r4(d)}, v11, s[16:19], s37 offen sc1", "s_add_u32 s37, s37, 36864")
    stt(k, 3)
    k.e("s_lshl_b32 s38, s47, 9", f"s_add_u32 s38, s38, {F3}", "s_lshr_b32 s36, s30, 2", "s_lshl_b32 s35, s36, 7", "s_add_u32 s38, s38, s35",
        "s_lshl_b32 s35, s46, 3", "s_add_u32 s34, s38, s35",
        "s_lshl_b32 s44, s36, 2", f"s_add_u32 s44, s44, {LDS_CNT + 12}", "s_waitcnt vmcnt(0)")
    stt(k, 4)
    stt(k, 5)
    stt(k, 6)
    arrive(k, 0, 4, 34, "r", cnt_sgpr=44)
    k.e("s_add_u32 s44, s44, 12", "v_mov_b32 v10, s44")
    k.e("s_and_b32 s35, s30, 3", "s_cmp_lg_u32 s35, 3", "s_cbranch_scc1 mega_red")
    if os.environ.get("DEFER", "1") == "1":
        if os.environ.get("DEF0"):
            k.e("s_cmp_eq_u32 s30, 3", f"s_mov_b32 s35, {LDS_CNT + 20}", f"s_cselect_b32 s35, {LDS_CNT + 16}, s35")
            lds_wait(k, "s35", 4, "t2", sleep=4)
        else:
            lds_wait(k, LDS_CNT + 20, 4, "t2", sleep=4)
    k.e("v_and_b32 v12, 7, v1", "v_lshlrev_b32 v12, 3, v12")
    k.e("s_cmp_lg_u32 s30, 11", "s_cbranch_scc1 mega_r_ns", f"s_sleep {os.environ.get('RS0', '10')}")
    k.label("mega_r_ns")
    poll(k, 12, 38, 14, "r", sleep=int(os.environ.get("RSP", "4")))
    k.e("v_mov_b32 v13, 1", "ds_write_b32 v10, v13", "s_waitcnt lgkmcnt(0)", "s_branch mega_fin")
    k.label("mega_red")
    k.e(
        "s_lshl_b32 s37, s36, 2", "s_lshl_b32 s39, s35, 1", "s_add_u32 s37, s37, s39",
        "s_lshl_b32 s39, s36, 1", "s_add_u32 s39, s39, 12", "s_cmp_eq_u32 s35, 2", "s_cselect_b32 s37, s39, s37",
        "s_lshr_b32 s39, s46, 2", "s_add_u32 s37, s37, s39",
        "s_and_b32 s39, s46, 3",
        "s_mul_i32 s34, s39, 18432", "s_lshl_b32 s41, s37, 10", "s_add_u32 s34, s34, s41")
    k.e("s_sub_u32 s41, s37, 12", "s_lshl_b32 s41, s41, 11", "s_cmp_ge_u32 s37, 15", "s_movk_i32 s42, 12288",
        f"s_cselect_b32 s42, {12288 + 18432 - 6144}, s42", "s_add_u32 s41, s41, s42", "s_lshr_b32 s42, s39, 1", "s_mul_i32 s42, s42, 36864",
        "s_add_u32 s41, s41, s42", "s_and_b32 s42, s39, 1", "s_lshl_b32 s42, s42, 3", "s_add_u32 s41, s41, s42",
        "s_mov_b32 s43, s35", "s_cmp_eq_u32 s35, 2", "s_cselect_b32 s34, s41, s34", "s_cselect_b32 s42, 1024, 8",
        "s_add_u32 s33, s33, s34", "s_add_u32 s42, s42, s33")
    k.e("s_lshl_b32 s35, s37, 2", "s_add_u32 s35, s35, s39", "s_lshl_b32 s35, s35, 10", "v_add_u32 v13, s35, v11",
        f"ds_read_b128 {r4(WR+32)}, v13")
    srd(k, 20, 14, XB)
    k.e("s_lshl_b32 s35, s47, 2", "s_add_u32 s35, s35, s39", "s_mul_i32 s35, s35, 18432", "s_lshl_b32 s37, s37, 6",
        "s_add_u32 s37, s37, s35", "s_movk_i32 s35, 1152", "v_mul_u32_u24 v9, s35, v2", "v_lshl_add_u32 v9, v3, 4, v9")
    k.e("v_mov_b32 v5, 0x00003f80", "v_mov_b32 v6, 0x3f800000")
    for i in range(8):
        k.e(f"v_mov_b32 v{ACC+i}, 0")
    k.e(f"s_mov_b32 s3, {SPIN*8}")
    k.label("mega_lspin")
    k.e("ds_read_b32 v14, v10", "s_waitcnt lgkmcnt(0)", "v_readfirstlane_b32 s38, v14", "s_cmp_lg_u32 s38, 0", "s_cbranch_scc1 mega_lspind",
        "s_sleep 2", "s_sub_u32 s3, s3, 1", "s_cbranch_scc0 mega_lspin")
    k.label("mega_lspind")
    stt(k, 5)
    k.e("s_cmp_eq_u32 s43, 2", "s_cbranch_scc1 mega_ld_s")
    for j in range(8):
        k.e(f"buffer_load_dwordx4 {r4(WR+4*j)}, v11, s[16:19], s33 offen sc1", f"s_add_u32 s33, s33, {XB}")
    k.e("s_branch mega_ld_o")
    k.label("mega_ld_s")
    for j in range(8):
        k.e(f"buffer_load_dwordx2 v[{WR+4*j}:{WR+4*j+1}], v11, s[16:19], s33 offen sc1", f"s_add_u32 s33, s33, {XB}")
    for j in range(8):
        k.e(f"buffer_load_dwordx2 v[{WR+4*j+2}:{WR+4*j+3}], v11, s[16:19], s42 offen sc1", f"s_add_u32 s42, s42, {XB}")
    k.label("mega_ld_o")
    k.e("s_waitcnt lgkmcnt(0)")
    for i in range(4):
        k.e(f"v_lshlrev_b32 v{ACC+8+2*i}, 16, v{WR+32+i}", f"v_and_b32 v{ACC+9+2*i}, 0xffff0000, v{WR+32+i}")
    for j in range(8):
        k.e(f"s_waitcnt vmcnt({7-j})")
        for i in range(4):
            k.e(f"v_dot2c_f32_bf16 v{ACC+2*i}, v{WR+4*j+i}, v5", f"v_dot2c_f32_bf16 v{ACC+2*i+1}, v{WR+4*j+i}, v6")
    stt(k, 6)
    k.e("s_cmp_eq_u32 s43, 2", "s_cbranch_scc1 mega_red_s")
    for i in range(8):
        k.e(f"v_fma_f32 v{ACC+8+i}, v{ACC+i}, v8, v{ACC+8+i}")
    k.e("s_branch mega_red_o")
    k.label("mega_red_s")
    for i in range(8):
        k.e(f"v_fma_f32 v{ACC+8+i}, v{ACC+(i//2)+4*(i%2)}, v8, v{ACC+8+i}")
    k.label("mega_red_o")
    for i in range(4):
        k.e(f"v_cvt_pk_bf16_f32 v{XB0+i}, v{ACC+8+2*i}, v{ACC+9+2*i}")
    k.e(f"buffer_store_dwordx4 {r4(XB0)}, v9, s[20:23], s37 offen")
    k.label("mega_fin")
    k.stamp_flush(1, 10, 16, 30, wpw=16)
    if os.environ.get("DBGOUT"):
        k.e("s_cmp_lg_u32 s2, 5", "s_cbranch_scc1 mega_end", "s_cmp_lg_u32 s30, 8", "s_cbranch_scc1 mega_end",
            "s_load_dwordx2 s[4:5], s[0:1], 72", "s_waitcnt lgkmcnt(0)", "s_nop 0")
        srd(k, 20, 4, 256)
        for i in range(1, 9):
            k.e(f"s_sub_u32 s34, s{81+2*i}, s81", "v_mov_b32 v4, s34", f"buffer_store_dword v4, v0, s[20:23], 0 offen offset:{4*i-4}",
                f"s_sub_u32 s34, s{80+2*i}, s80", "v_mov_b32 v5, s34", f"buffer_store_dword v5, v0, s[20:23], 0 offen offset:{4*i+28}", "s_waitcnt vmcnt(0)")
    k.e("s_endpgm")
    k.label("ffn_ep1")
    k.e("s_waitcnt lgkmcnt(0)")
    k.e("s_lshl_b32 s34, s30, 12", f"s_add_u32 s34, s34, {LDS_H}", "v_add_u32 v12, s34, v11")
    k.e("s_lshr_b32 s34, s30, 1", "s_lshl_b32 s34, s34, 12", "s_and_b32 s35, s30, 1", "s_lshl_b32 s35, s35, 3",
        "s_add_u32 s34, s34, s35", f"s_add_u32 s34, s34, {LDS_H + 49152}", "v_add_u32 v13, s34, v11")
    for mb in range(4):
        d = XB0 + 4 * mb
        a, b = acc(0, mb), acc(1, mb)
        for i in range(4):
            k.e(f"v_cvt_pk_bf16_f32 v{d+i}, v{a+i}, v{b+i}")
        for i in range(4):
            k.e(f"v_pk_max_i16 v{d+i}, v{d+i}, 0")
        k.e(f"ds_write_b128 v12, {r4(d)} offset:{mb*1024}")
    for mb in range(4):
        a = acc(2, mb)
        d = XB0 + 16 + 2 * mb
        k.e(f"v_cvt_pk_bf16_f32 v{d}, v{a}, v{a+1}", f"v_cvt_pk_bf16_f32 v{d+1}, v{a+2}, v{a+3}",
            f"v_pk_max_i16 v{d}, v{d}, 0", f"v_pk_max_i16 v{d+1}, v{d+1}, 0",
            f"ds_write_b64 v13, v[{d}:{d+1}] offset:{mb*1024}")
    for r in range(ACC, ACC + 16 * T):
        k.e(f"v_mov_b32 v{r}, 0")
    if os.environ.get("NOPRIO"):
        k.e("s_branch ffn_pr2")
    k.e("s_cmp_lt_u32 s30, 4", "s_cbranch_scc0 ffn_pr1", "s_setprio 2")
    k.label("ffn_pr1")
    k.e("s_and_b32 s34, s30, 12", "s_cmp_eq_u32 s34, 4", "s_cbranch_scc0 ffn_pr2", "s_setprio 1")
    k.label("ffn_pr2")
    k.e("s_waitcnt lgkmcnt(0)", "s_barrier")
    stb(k, 7)
    k.e("s_branch ffn_start")


def tr_addr(k, base0, base1, stride, extra_sgpr=None):
    k.e("v_lshrrev_b32 v32, 2, v2",
        "v_and_b32 v33, 1, v3", "v_lshlrev_b32 v33, 2, v33", "v_add_u32 v32, v32, v33",
        "v_lshl_add_u32 v32, v3, 3, v32", "v_xor_b32 v33, 4, v32", f"s_movk_i32 s40, {stride}",
        "v_and_b32 v34, 3, v2", "v_lshlrev_b32 v34, 3, v34", f"v_add_u32 v34, {base0}, v34")
    if extra_sgpr is not None:
        k.e(f"v_add_u32 v34, s{extra_sgpr}, v34")
    k.e("v_mad_u32_u24 v28, v32, s40, v34", "v_mad_u32_u24 v29, v33, s40, v34")
    if base1 is not None:
        k.e(f"v_add_u32 v30, {base1 - base0}, v28", f"v_add_u32 v31, {base1 - base0}, v29")


def x_read_addr(k, v, slot_sgpr):
    k.e(f"v_lshrrev_b32 v{v}, 2, v2", f"v_sub_u32 v{v}, 4, v{v}", f"v_and_b32 v{v}, 3, v{v}", f"v_xor_b32 v{v}, v{v}, v3",
        f"v_lshlrev_b32 v{v}, 4, v{v}", f"v_lshl_add_u32 v{v}, v2, 6, v{v}")
    if slot_sgpr is None:
        k.e(f"v_add_u32 v{v}, {A_X}, v{v}")
    else:
        k.e(f"v_add_u32 v{v}, s{slot_sgpr}, v{v}")


def get_nonce(k):
    k.e(f"v_mov_b32 v12, {LDS_NON}", "ds_read_b64 v[14:15], v12", "s_waitcnt lgkmcnt(0)",
        "v_readfirstlane_b32 s66, v14", "v_readfirstlane_b32 s67, v15")


def wq_rd(k, t, s, wf, b, par=False):
    ss = 4 * s if par else s
    a0, a1 = (28, 29) if ss < 8 else (30, 31)
    off = (ss if ss < 8 else ss - 8) * 5120 + 32 * t
    k.e(f"ds_read_b64_tr_b16 v[{wf+4*b}:{wf+4*b+1}], v{a0} offset:{off}",
        f"ds_read_b64_tr_b16 v[{wf+4*b+2}:{wf+4*b+3}], v{a1} offset:{off}")


QCH = [(0, 8), (8, 12), (12, 18)]


def a_qwave(k):
    k.e("s_setprio 2")
    srd(k, 20, 10, XB)
    k.e("s_sub_u32 s34, s30, s29", "s_and_b32 s34, s34, 3", "s_mul_i32 s43, s34, 18432", f"s_add_u32 s43, s43, {A_X}",
        "s_lshl_b32 s35, s28, 2", "s_add_u32 s35, s35, s30", "s_mul_i32 s35, s35, 18432", "s_lshl_b32 s36, s48, 6")
    k.e("v_lshrrev_b32 v5, 2, v1", "v_sub_u32 v6, 4, v3", "v_xor_b32 v6, v6, v1", "v_and_b32 v6, 3, v6",
        "s_movk_i32 s41, 1152", "v_mul_u32_u24 v5, s41, v5", "v_lshl_add_u32 v4, v6, 4, v5", "v_add_u32 v4, s35, v4")
    k.e("s_cmp_eq_u32 s34, 0", "s_cbranch_scc1 a_q_first", "s_barrier")
    k.label("a_q_first")
    for s in range(18):
        k.e(f"s_add_u32 m0, s43, {s*1024}", "s_nop 0", "buffer_load_dwordx4 v4, s[20:23], s36 offen lds",
            "s_add_u32 s36, s36, 64", "s_cmp_eq_u32 s36, s41", "s_cselect_b32 s36, 0, s36")
    k.e("s_cmp_lg_u32 s34, 0", "s_cbranch_scc1 a_q_second", "s_barrier")
    k.label("a_q_second")
    tr_addr(k, A_WQ0, A_WQ1, 160)
    x_read_addr(k, 35, 43)
    for r in range(QACC, QACC + 20):
        k.e(f"v_mov_b32 v{r}, 0")
    for b in QACS:
        for i in range(4):
            k.e(f"v_mov_b32 v{b+i}, 0")
    for i in range(4):
        k.e(f"v_mov_b32 v{QONES+i}, 0x3f803f80")
    k.e("v_mov_b32 v6, 0", "v_mov_b32 v7, 0")
    for part in range(3):
        k.e(f"s_waitcnt vmcnt({18 - 6*(part+1)})")
        if part == 2:
            k.e("s_cmp_lg_u32 s34, 0", "s_cbranch_scc1 a_q_nosig")
            lds_signal(k, LDS_KVI)
            k.label("a_q_nosig")
        for s in range(6 * part, 6 * part + 6):
            k.e(f"ds_read_b128 {r4(QX0+4*s)}, v35 offset:{1024*s}")
        if part:
            k.e("s_waitcnt lgkmcnt(6)")
            for r in range(QX0 + 24 * (part - 1), QX0 + 24 * part):
                k.e(f"v_dot2c_f32_bf16 v6, v{r}, v{QONES}", f"v_dot2c_f32_bf16 v7, v{r}, v{r}")
    k.e("s_waitcnt lgkmcnt(0)")
    lds_signal(k, LDS_XC)
    k.stamp(1)
    for r in range(QX0 + 48, QX0 + 72):
        k.e(f"v_dot2c_f32_bf16 v6, v{r}, v{QONES}", f"v_dot2c_f32_bf16 v7, v{r}, v{r}")
    reduce_g_add(k, [6, 7], [32, 33])
    k.e(f"v_mul_f32 v6, {hex(f2u(1/576))}, v6", f"v_mul_f32 v7, {hex(f2u(1/576))}, v7",
        "v_fma_f32 v7, -v6, v6, v7", "v_max_f32 v7, 0, v7", f"v_add_f32 v7, {hex(f2u(1e-5))}, v7", "v_rsq_f32 v7, v7")
    k.e("s_cmp_lg_u32 s34, 0", "s_cbranch_scc1 a_q_nost")
    k.e("v_lshlrev_b32 v32, 2, v2", f"v_add_u32 v32, {A_ST}, v32", "ds_write_b32 v32, v6", "ds_write_b32 v32, v7 offset:64",
        "s_waitcnt lgkmcnt(0)")
    lds_signal(k, LDS_KVS)
    k.label("a_q_nost")
    k.e(f"v_mul_f32 v34, {hex(f2u(QSCALE))}, v7")
    k.e("s_mul_i32 s35, s30, 2304", f"s_add_u32 s35, s35, {LDS_OST}", "v_lshrrev_b32 v35, 1, v3", "v_lshlrev_b32 v35, 8, v35",
        "v_lshl_add_u32 v35, v2, 4, v35", "v_and_b32 v32, 1, v3", "v_lshl_add_u32 v35, v32, 3, v35", "v_add_u32 v35, s35, v35")
    sta(k, 3)
    k.label("a_q_gemm")
    for ci, (s0, s1) in enumerate(QCH):
        k.e("s_cmp_ge_u32 s30, 4", f"s_cbranch_scc1 mega_lwd_q{ci}")
        lds_wait(k, LDS_WQC + 4 * ci, 4, f"q{ci}")
        def rd2(t, s, b):
            a0, a1 = (28, 29) if s < 8 else (30, 31)
            off = (s if s < 8 else s - 8) * 5120 + 32 * t
            return [f"ds_read_b64_tr_b16 v[{QWF+4*b}:{QWF+4*b+1}], v{a0} offset:{off}",
                    f"ds_read_b64_tr_b16 v[{QWF+4*b+2}:{QWF+4*b+3}], v{a1} offset:{off}"]
        roll_gemm2(k, list(range(s0, s1)), rd2,
                   lambda t, s, b: [f"v_mfma_f32_16x16x32_bf16 {r4(QACC+4*t)}, {r4(QWF+4*b)}, {r4(QX0+4*s)}, {r4(QACC+4*t)}",
                                    f"v_mfma_f32_16x16x32_bf16 {r4(QACS[t])}, {r4(QWF+4*b)}, {r4(QONES)}, {r4(QACS[t])}"])
    k.e("s_cmp_ge_u32 s30, 4", "s_cbranch_scc1 a_s_done")
    sta(k, 7)
    k.e("s_setprio 3")
    lds_signal(k, LDS_WDN)
    sta(k, 8)
    for t in range(5):
        a = QACC + 4 * t
        for i in range(4):
            k.e(f"v_fma_f32 v{a+i}, -v6, v{QACS[t]+i}, v{a+i}")
        for i in range(4):
            k.e(f"v_mul_f32 v{a+i}, v34, v{a+i}")
        k.e(f"v_cvt_pk_bf16_f32 v{QWF+2*t}, v{a}, v{a+1}", f"v_cvt_pk_bf16_f32 v{QWF+2*t+1}, v{a+2}, v{a+3}")
        if t == 4:
            k.e(ex(0xffffffff))
        k.e(f"ds_write_b64 v35, v[{QWF+2*t}:{QWF+2*t+1}] offset:{512*t}")
    k.e("s_lshr_b32 s35, s30, 1", "s_lshl_b32 s35, s35, 2", f"s_add_u32 s35, s35, {LDS_QRD}", "v_mov_b32 v12, s35", "v_mov_b32 v13, 1",
        ex(1), "ds_add_u32 v12, v13", ex(-1))


def wkv_rd(k, s, wf):
    for t in range(2):
        off = s * 1536 + 32 * t
        k.e(f"ds_read_b64_tr_b16 v[{wf+4*t}:{wf+4*t+1}], v28 offset:{off}",
            f"ds_read_b64_tr_b16 v[{wf+4*t+2}:{wf+4*t+3}], v29 offset:{off}")


def a_wkv_dma(k):
    k.e("s_cmp_lt_u32 s29, 4", "s_cselect_b32 s20, s70, s72", "s_cselect_b32 s21, s71, s73", f"s_mov_b32 s22, {WKB}", "s_mov_b32 s23, 0x00020000")
    k.e("s_movk_i32 s40, 21846")
    for i in range(3):
        k.e(f"v_add_u32 v32, {64*i}, v1", "v_mul_u32_u24 v33, s40, v32", "v_lshrrev_b32 v33, 16, v33", "v_mul_u32_u24 v34, 3, v33",
            "v_sub_u32 v34, v32, v34", "v_lshlrev_b32 v34, 4, v34", "v_min_u32 v34, 20, v34",
            "v_and_b32 v35, 8, v33", "v_lshrrev_b32 v35, 1, v35", "v_xor_b32 v35, v35, v33", f"v_mad_u32_u24 v{16+i}, v35, 36, v34")
    k.e("s_sub_u32 s34, s30, 4", "s_mul_i32 s34, s34, 3", "s_mul_i32 s43, s34, 3072", "s_lshr_b32 s35, s48, 1", "s_add_u32 s35, s35, s34",
        "s_sub_u32 s36, s35, 9", "s_min_u32 s35, s35, s36", "s_mul_i32 s35, s35, 2304")
    for g in range(3):
        for i in range(3):
            k.e(f"s_add_u32 m0, s43, {A_WKV + g*3072 + i*1024}", "s_nop 0", f"buffer_load_dwordx4 v{16+i}, s[20:23], s35 offen lds")
        k.e("s_add_u32 s35, s35, 2304", f"s_cmp_eq_u32 s35, {9*2304}", "s_cselect_b32 s35, 0, s35")


def a_kvwave(k):
    k.e("s_setprio 3")
    a_wkv_dma(k)
    k.e("s_barrier")
    tr_addr(k, A_WKV, None, 48)
    x_read_addr(k, 35, None)
    for r in range(QACC, QACC + 8):
        k.e(f"v_mov_b32 v{r}, 0")
    k.e("s_lshr_b32 s41, s28, 1", f"s_mul_i32 s41, s41, {GRP}", f"s_add_u32 s41, s41, {WS_KV}",
        "s_and_b32 s42, s28, 1", "s_lshl_b32 s42, s42, 1", "s_bfe_u32 s43, s29, 0x10001", "s_add_u32 s42, s42, s43",
        "s_and_b32 s43, s29, 1",
        "s_lshl_b32 s49, s28, 7", "s_lshl_b32 s34, s29, 3", "s_add_u32 s49, s49, s34", f"s_add_u32 s49, s49, {FK}")
    k.e("s_waitcnt vmcnt(0)")
    lds_signal(k, LDS_WKI)
    lds_wait(k, LDS_KVI, 3, "kvi")
    k.stamp(1)
    k.e("s_cmp_ge_u32 s29, 4", "s_cbranch_scc1 a_kv_v")
    for isv in (False, True):
        if isv:
            k.label("a_kv_v")

        def rd(s):
            b = s % 3
            k.e(f"ds_read_b128 {r4(QX0+4*b)}, v35 offset:{1024*s}")
            wkv_rd(k, s, QX0 + 12 + 8 * b)
        rd(0)
        rd(1)
        for s in range(18):
            b = s % 3
            if s + 2 < 18:
                rd(s + 2)
            k.e(f"s_waitcnt lgkmcnt({min(10, 5*(17-s))})")
            for t in range(2):
                a, w, x = r4(QACC + 4 * t), r4(QX0 + 12 + 8 * b + 4 * t), r4(QX0 + 4 * b)
                k.e(f"v_mfma_f32_16x16x32_bf16 {a}, {x}, {w}, {a}" if isv else f"v_mfma_f32_16x16x32_bf16 {a}, {w}, {x}, {a}")
        sta(k, 3)
        lds_wait(k, LDS_KVS, 2, "kv" + ("v" if isv else "k"))
        sta(k, 4)
        A = QACC
        if not isv:
            k.e("v_lshlrev_b32 v32, 4, v3", f"v_add_u32 v32, {A_SKV}, v32", "v_lshlrev_b32 v33, 2, v2", f"v_add_u32 v33, {A_ST}, v33",
                "ds_read_b128 v[16:19], v32", "ds_read_b128 v[20:23], v32 offset:64", "ds_read_b32 v6, v33", "ds_read_b32 v7, v33 offset:64")
            k.e("s_lshl_b32 s38, s43, 8", "v_lshlrev_b32 v36, 4, v2", "v_add_u32 v36, s38, v36",
                "v_lshrrev_b32 v37, 1, v3", "v_lshl_add_u32 v37, v37, 9, v36",
                "s_lshl_b32 s38, s42, 10", "s_add_u32 s38, s38, s41",
                "s_lshl_b32 s39, s42, 2", "s_add_u32 s39, s39, s41", f"s_add_u32 s39, s39, {KV_K2}")
            k.e("s_waitcnt lgkmcnt(0)")
            for i in range(8):
                k.e(f"v_fma_f32 v{A+i}, -v6, v{16+i}, v{A+i}")
            for i in range(8):
                k.e(f"v_mul_f32 v{A+i}, v7, v{A+i}")
            k.e(f"v_cvt_pk_bf16_f32 v40, v{A}, v{A+1}", f"v_cvt_pk_bf16_f32 v41, v{A+2}, v{A+3}", f"v_cvt_pk_bf16_f32 v44, v{A+6}, v{A+7}")
            k.e("v_permlane16_swap_b32 v40, v42", "v_permlane16_swap_b32 v41, v43")
            k.e(ex(0x0000ffff0000ffff), "buffer_store_dwordx4 v[40:43], v37, s[16:19], s38 offen sc1",
                ex(0xffff0000), "buffer_store_dword v44, v36, s[16:19], s39 offen sc1", ex(-1))
            k.e("s_or_b32 s39, s42, s28", "s_cmp_lg_u32 s39, 0", "s_cbranch_scc1 a_kv_nod", f"s_add_u32 s38, s38, {IMG}",
                ex(0x0000ffff0000ffff), "buffer_store_dwordx4 v[40:43], v37, s[16:19], s38 offen sc1", ex(-1))
            k.label("a_kv_nod")
            k.e("s_or_b32 s38, s42, s43", "s_cmp_lg_u32 s38, 0", "s_cbranch_scc1 a_kv_noc")
            k.e("v_mov_b32 v24, 0x3f803f80", "v_mov_b32 v25, 0x00003f80", "v_mov_b32 v26, 0x3f803f80", "v_mov_b32 v27, 0x00003f80",
                "v_mov_b32 v12, 0", f"s_add_u32 s38, s41, {KV_K2 + 512}", ex(1), "buffer_store_dwordx4 v[24:27], v12, s[16:19], s38 offen sc1", ex(-1))
            k.label("a_kv_noc")
            k.e(f"v_mul_f32 v45, v{A+6}, v{A+6}", f"v_fmac_f32 v45, v{A+7}, v{A+7}",
                "v_cmp_eq_u32 vcc, 1, v3", "v_cndmask_b32 v45, 0, v45, vcc")
            for i in range(4):
                k.e(f"v_fmac_f32 v45, v{A+i}, v{A+i}")
            reduce_g_add(k, [45], [46])
            for sh in (8, 4, 2, 1):
                k.e(f"v_max_f32_dpp v45, v45, v45 row_ror:{sh} row_mask:0xf bank_mask:0xf")
            k.e("s_branch a_kv_pub")
        else:
            k.e("v_lshlrev_b32 v32, 2, v2", f"v_add_u32 v32, {A_SKV}, v32", "v_lshlrev_b32 v33, 4, v3", f"v_add_u32 v33, {A_ST}, v33",
                "ds_read_b32 v6, v32", "ds_read_b32 v7, v32 offset:64", "ds_read_b128 v[16:19], v33", "ds_read_b128 v[20:23], v33 offset:64")
            k.e("s_mul_i32 s38, s42, 1216", "s_mul_i32 s39, s43, 608", "s_add_u32 s38, s38, s39", "s_add_u32 s38, s38, s41",
                f"s_add_u32 s38, s38, {KV_V}", "s_movk_i32 s39, 304", "v_and_b32 v36, 1, v3", "v_mul_u32_u24 v37, s39, v36",
                "v_lshl_add_u32 v37, v2, 4, v37", "v_lshrrev_b32 v36, 1, v3", "s_movk_i32 s39, 160", "v_mad_u32_u24 v37, v36, s39, v37")
            k.e("s_waitcnt lgkmcnt(0)")
            for t in range(2):
                for i in range(4):
                    k.e(f"v_fma_f32 v{A+4*t+i}, -v{16+i}, v{6+t}, v{A+4*t+i}")
                for i in range(4):
                    k.e(f"v_mul_f32 v{A+4*t+i}, v{20+i}, v{A+4*t+i}")
            for i in range(4):
                k.e(f"v_cvt_pk_bf16_f32 v{40+i}, v{A+2*i}, v{A+2*i+1}")
            k.e("v_mov_b32 v39, 0x3f803f80", "v_cmp_eq_u32 vcc, 8, v2", "v_cndmask_b32 v42, v42, v39, vcc", "v_cndmask_b32 v43, v43, v39, vcc")
            k.e("v_permlane32_swap_b32 v40, v42", "v_permlane32_swap_b32 v41, v43")
            k.e(ex(0x01c001c0ffffffff), "buffer_store_dwordx4 v[40:43], v37, s[16:19], s38 offen sc1", ex(-1), "v_mov_b32 v45, 0")
    k.label("a_kv_pub")
    sta(k, 5)
    lds_wait(k, LDS_NON, 1, "non")
    get_nonce(k)
    k.e("v_mov_b32 v44, s66", "v_mov_b32 v12, 0", "s_waitcnt vmcnt(0)")
    sta(k, 6)
    k.e(ex(1), "buffer_store_dwordx2 v[44:45], v12, s[16:19], s49 offen sc1", ex(-1))
    k.e("s_waitcnt vmcnt(0)")
    lds_signal(k, LDS_KVS)
    sta(k, 7)
    sta(k, 8)


def a_swave(k):
    k.e("s_setprio 3")
    k.e("s_cmp_eq_u32 s30, 7", "s_cbranch_scc1 a_s_7")
    a_wkv_dma(k)
    k.e("s_barrier", "s_branch a_s_c")
    k.label("a_s_7")
    if os.environ.get("PFC", "1") == "1":
        k.e("s_mul_i32 s34, s47, 1536", "v_min_u32 v12, 11, v1", "v_lshlrev_b32 v12, 7, v12", "v_add_u32 v12, s34, v12",
            f"v_min_u32 v12, CODE_BYTES - 4, v12", "global_load_dword v18, v12, s[62:63]")
    srd(k, 56, 74, 256)
    k.e("v_mov_b32 v10, 0", "s_cmp_lg_u32 s2, 0", "s_cbranch_scc1 a_s_nn")
    k.e("s_memrealtime s[60:61]", "s_waitcnt lgkmcnt(0)", "s_or_b32 s60, s60, 1", "v_mov_b32 v14, s60", "v_mov_b32 v15, s61", ex(1),
        "buffer_store_dwordx2 v[14:15], v10, s[56:59], 0 offen sc1", ex(-1))
    k.label("a_s_nn")
    k.e("v_min_u32 v12, 35, v1", "v_lshlrev_b32 v12, 2, v12", f"v_add_u32 v12, {LDS_RDY}, v12", "v_mov_b32 v13, 0",
        "ds_write_b32 v12, v13", "v_lshlrev_b32 v12, 2, v1", f"v_add_u32 v12, {A_SQ}, v12", "ds_write_b32 v12, v13", "ds_write_b32 v12, v13 offset:64",
        "s_waitcnt lgkmcnt(0)")
    if os.environ.get("TOUCH", "0") == "1":
        k.e("buffer_load_dword v18, v10, s[56:59], 0 offen sc1", f"s_mov_b32 s34, {FK}", "buffer_load_dword v19, v10, s[16:19], s34 offen sc1",
            f"s_mov_b32 s34, {WS_KV}", "buffer_load_dword v20, v10, s[16:19], s34 offen sc1")
    k.e("s_barrier")
    sta(k, 4)
    sta(k, 5)
    sta(k, 6)
    sta(k, 7)
    sta(k, 8)
    k.e(f"s_mov_b32 s3, {SPIN}", f"s_sleep {os.environ.get('NSL', '4')}")
    k.label("a_s_np")
    k.e("buffer_load_dwordx2 v[14:15], v10, s[56:59], 0 offen sc1", "s_sleep 4", "buffer_load_dwordx2 v[16:17], v10, s[56:59], 0 offen sc1",
        "s_waitcnt vmcnt(1)", "v_readfirstlane_b32 s39, v14", "s_cmp_lg_u32 s39, 0", "s_cbranch_scc1 a_s_nd",
        "s_waitcnt vmcnt(0)", "v_mov_b32 v14, v16", "v_mov_b32 v15, v17", "v_readfirstlane_b32 s39, v16", "s_cmp_lg_u32 s39, 0", "s_cbranch_scc1 a_s_nd",
        "s_sub_u32 s3, s3, 1", "s_cbranch_scc0 a_s_np")
    k.label("a_s_nd")
    k.e(f"v_mov_b32 v12, {LDS_NON}", "ds_write_b64 v12, v[14:15]")
    k.label("a_s_c")
    for i in range(4):
        k.e(f"v_mov_b32 v{QONES+i}, 0x3f803f80")
    for r in range(QACC, QACC + 20):
        k.e(f"v_mov_b32 v{r}, 0")
    k.e("s_cmp_lg_u32 s30, 5", "s_cbranch_scc1 a_s_q")
    tr_addr(k, A_WKV, None, 48)
    k.e("s_waitcnt vmcnt(0)")
    lds_signal(k, LDS_KVI)
    lds_signal(k, LDS_WKI)
    lds_wait(k, LDS_WKI, 3, "wki")
    k.stamp(1)
    wkv_rd(k, 0, QX0)
    wkv_rd(k, 1, QX0 + 8)
    for s in range(18):
        if s + 2 < 18:
            wkv_rd(k, s + 2, QX0 + 8 * ((s + 2) % 3))
        k.e(f"s_waitcnt lgkmcnt({min(8, 4*(17-s))})")
        for t in range(2):
            a = r4(QACC + 4 * t)
            k.e(f"v_mfma_f32_16x16x32_bf16 {a}, {r4(QONES)}, {r4(QX0+8*(s%3)+4*t)}, {a}")
    k.e("v_lshlrev_b32 v32, 2, v2", f"v_add_u32 v32, {A_SKV}, v32", f"ds_write_b32 v32, v{QACC}", f"ds_write_b32 v32, v{QACC+4} offset:64",
        "s_waitcnt lgkmcnt(0)")
    lds_signal(k, LDS_KVS)
    k.e("s_branch a_s_done")
    k.label("a_s_q")
    k.e("s_cmp_eq_u32 s30, 7", "s_cbranch_scc1 a_s_nx", "s_waitcnt vmcnt(0)")
    lds_signal(k, LDS_KVI)
    lds_signal(k, LDS_WKI)
    if os.environ.get("DRY", "0") == "1":
        k.stamp(1)
        tr_addr(k, A_WQ0, A_WQ1, 160)
        k.e("s_setprio 0", "s_branch a_q_gemm")
    k.label("a_s_nx")
    k.stamp(1)
    k.label("a_s_done")
    k.e("s_waitcnt vmcnt(0)")


def a_helper(k):
    k.e("s_setprio 1", "s_sub_u32 s31, s30, 8")
    srd(k, 20, 68, WQB)
    if os.environ.get("PFQ", "1") == "1":
        k.e("s_cmp_lg_u32 s31, 0", "s_cbranch_scc1 a_h_nopf",
            "v_min_u32 v12, 20, v1", "v_lshlrev_b32 v12, 7, v12", "s_mul_i32 s34, s2, 2592", "s_and_b32 s34, s34, 0xffffff80",
            "buffer_load_dword v21, v12, s[20:23], s34 offen")
        k.label("a_h_nopf")
    k.e("s_movk_i32 s40, 6554", "s_movk_i32 s41, 1152")
    for i in range(5):
        dma_slot_calc(k, i, 32, 33, 34, 35)
        k.e("v_min_u32 v34, 8, v34", f"v_mul_u32_u24 v{16+i}, s41, v35", f"v_lshl_add_u32 v{16+i}, v34, 4, v{16+i}")
    k.e("s_add_u32 s42, s31, s48", "s_mul_i32 s32, s29, 144", "s_mul_i32 s43, s31, 5120")

    def wdma(base):
        k.e("s_sub_u32 s36, s42, 18", "s_min_u32 s42, s42, s36", "s_mul_i32 s36, s42, 36864", "s_add_u32 s36, s36, s32")
        for i in range(5):
            k.e(f"s_add_u32 m0, s43, {base + i*1024}", "s_nop 0", f"buffer_load_dwordx4 v{16+i}, s[20:23], s36 offen lds")
        k.e("s_add_u32 s42, s42, 4")
    k.e("s_barrier", f"s_sleep {os.environ.get('HSL', '8')}")
    wdma(A_WQ0)
    wdma(A_WQ0 + 20480)
    k.e("s_waitcnt vmcnt(0)")
    lds_signal(k, LDS_WQC)
    sta(k, 3)
    lds_wait(k, LDS_XC, 4, "xc")
    k.e("s_setprio 3")
    k.stamp(1)
    wdma(A_WQ1)
    wdma(A_WQ1 + 20480)
    k.e("s_cmp_ge_u32 s31, 2", "s_cbranch_scc1 a_h_skip")
    wdma(A_WQ1 + 40960)
    k.label("a_h_skip")
    for ci, n in ((1, 5), (2, 0)):
        k.e(f"s_waitcnt vmcnt({n})")
        lds_signal(k, LDS_WQC + 4 * ci)
        sta(k, 3 + ci)
    lds_wait(k, LDS_KVS, 3, "pub")
    get_nonce(k)
    sta(k, 6)
    k.e("v_lshrrev_b32 v10, 3, v1", "v_lshlrev_b32 v10, 7, v10", "v_and_b32 v9, 7, v1", "v_lshl_add_u32 v10, v9, 3, v10",
        "s_lshl_b32 s34, s31, 10", f"s_add_u32 s35, s34, {FK}")
    k.e(f"s_sleep {os.environ.get('KS0', '16')}")
    poll(k, 10, 35, 14, "k", sleep=int(os.environ.get("KSL", "12")), lo_only=True)
    sta(k, 7)
    k.e(f"v_mov_b32 v12, {LDS_KMX}", "ds_max_u32 v12, v15")
    lds_signal(k, LDS_KVR)
    k.e("s_lshr_b32 s35, s2, 3", "s_add_u32 s35, s35, s2", "s_and_b32 s35, s35, 15", f"s_mul_i32 s35, s35, {GRP}", "s_add_u32 s35, s35, s34",
        f"v_add_u32 v10, {WS_KV}, v11")
    lds_wait(k, LDS_KVR, 4, "kvr")
    sta(k, 8)
    kv_dma(k, 0, 7)


def gen_one(name):
    k = Kernel(name, vgprs=168)
    k.e("s_getpc_b64 s[62:63]")
    k.label("mega_pc")
    k.e("s_cmp_ge_u32 s2, 256", "s_cbranch_scc1 mega_end")
    k.e("s_load_dwordx2 s[10:11], s[0:1], 0", "s_load_dwordx4 s[68:71], s[0:1], 8", "s_load_dwordx2 s[72:73], s[0:1], 24",
        "s_load_dwordx2 s[8:9], s[0:1], 32", "s_load_dwordx4 s[4:7], s[0:1], 48", "s_load_dwordx2 s[14:15], s[0:1], 64",
        "s_load_dwordx2 s[74:75], s[0:1], 72", "s_load_dwordx2 s[12:13], s[0:1], 80")
    k.stamp(0)
    k.e("v_and_b32 v1, 63, v0", "v_and_b32 v2, 15, v0", "v_bfe_u32 v3, v0, 4, 2", "v_lshrrev_b32 v7, 6, v0",
        "v_lshlrev_b32 v11, 4, v1", "v_readfirstlane_b32 s30, v7")
    k.e("s_and_b32 s46, s2, 7", "s_lshr_b32 s47, s2, 3", "s_and_b32 s28, s47, 24", "s_add_u32 s28, s28, s46", "s_and_b32 s29, s47, 7",
        "s_lshr_b32 s48, s47, 3", "s_lshl_b32 s48, s48, 1", "s_add_u32 s48, s48, s29", "s_sub_u32 s34, s48, 9", "s_min_u32 s48, s48, s34",
        "s_lshl_b32 s48, s48, 1")
    k.e("s_waitcnt lgkmcnt(0)")
    srd(k, 16, 12, WS_END)
    srd(k, 24, 8, WQB)
    k.e("s_cmp_ge_u32 s30, 8", "s_cbranch_scc1 mega_helper")
    k.e("s_cmp_ge_u32 s30, 5", "s_cbranch_scc1 a_sw", "s_cmp_eq_u32 s30, 4", "s_cbranch_scc1 a_kvw")
    a_qwave(k)
    k.e("s_branch a_done")
    k.label("a_kvw")
    a_kvwave(k)
    k.e("s_branch a_s_done")
    k.label("a_sw")
    a_swave(k)
    k.label("a_done")
    k.e("s_setprio 3")
    k.e("s_mov_b32 s52, 0")
    attention(k)
    k.e("s_cmp_lg_u32 s52, 0", "s_cbranch_scc1 mega_ringed")
    ffn_ring_start(k)
    k.label("mega_ringed")
    k.e("s_waitcnt vmcnt(0)")
    stb(k, 4)
    k.e("s_branch ffn_join")
    k.label("mega_helper")
    a_helper(k)
    helper_pack(k)
    oproj(k)
    ffn_ring_start(k)
    ffn(k)
    k.label("mega_end")
    k.e("s_endpgm", ".set CODE_BYTES, mega_end - mega_pc")
    return k
```

```python
import os
from asmlib import Kernel
from layout import *
from k_small import f2u, srd, ex, reduce_g_add, dma_slot_calc

S0, S1, OA, P, KF, V0, V1, K2F, Q, Q2E, Q2O = 16, 32, 48, 64, 72, 76, 80, 84, 88, 92, 94
T0 = 96
PIN, POUT, PS = 48, 96, 144
LDS_OST = 151808
LDS_RES = 92160
LDS_WO = 0
LDS_H = 73728
LDS_S = 161024
LDS_RDY = 163328
LDS_CNT = 163344
LDS_WQC = 163392
LDS_KVS = LDS_WQC + 12
LDS_KVR = LDS_WQC + 16
LDS_KMX = LDS_WQC + 20
LDS_KVI = LDS_WQC + 24
LDS_XC = LDS_WQC + 28
LDS_WKI = LDS_WQC + 32
LDS_REL = LDS_WQC + 36
LDS_NON = LDS_WQC + 40
LDS_ORD = LDS_WQC + 48
LDS_IMG = LDS_WQC + 52
LDS_MUS = LDS_WQC + 56
LDS_SRD = LDS_WQC + 60
LDS_QRD = LDS_WQC + 64
LDS_WDN = LDS_WQC + 72
LDS_IM0 = LDS_WQC + 76
LDS_MU = LDS_OST
LDS_MEGA = 163488
A_WKV = 0
A_WQ0 = 29696
A_X = 70656
A_WQ1 = A_X + 18432
A_SQ = LDS_S
A_SKV = LDS_S + 320
A_ST = LDS_S + 448
QX0, QACC, QWF, QONES = 48, 120, 140, 36
QACS = [16, 20, 24, 40, 44]
OX0, OACC, OWF = 48, 120, 140
XB0, ACC, WR = 16, 48, 96
D = 6
T = 3
STREAM = 36 * T * 1024
SPIN = 1 << 16
STA = bool(os.environ.get("STA"))


def sta(k, i):
    if STA:
        k.stamp(i)


STP = bool(os.environ.get("STP"))


def stb(k, i):
    if not STA and not STP and not (STT and i < 7) and not (STO and i > 6):
        k.stamp(i)


STT = bool(os.environ.get("STT"))


def stt(k, i):
    if STT:
        k.stamp(i)


STO = bool(os.environ.get("STO"))


def sto(k, i):
    if STO:
        k.stamp(i)


def stp(k, i):
    if STP:
        k.stamp(i)
WAUX = os.environ.get("WAUX", "sc1")


def r4(b):
    return f"v[{b}:{b+3}]"


def r16(b):
    return f"v[{b}:{b+15}]"


def poll(k, vaddr, soff, vtmp, tag, sleep=2, lo_only=False):
    lab, done = f"mega_poll_{tag}", f"mega_polld_{tag}"
    k.e(f"s_mov_b32 s3, {SPIN}")
    k.label(lab)
    k.e(f"buffer_load_dwordx2 v[{vtmp}:{vtmp+1}], v{vaddr}, s[16:19], s{soff} offen sc1", "s_waitcnt vmcnt(0)")
    if lo_only:
        k.e(f"v_cmp_eq_u32 vcc, s66, v{vtmp}")
    else:
        k.e(f"v_cmp_eq_u64 vcc, s[66:67], v[{vtmp}:{vtmp+1}]")
    k.e("s_cmp_eq_u64 vcc, -1", f"s_cbranch_scc1 {done}",
        f"s_sleep {sleep}", "s_sub_u32 s3, s3, 1", f"s_cbranch_scc0 {lab}")
    k.label(done)


def set_flag(k, soff):
    k.e("v_mov_b32 v12, 0", "v_mov_b32 v14, s66", "v_mov_b32 v15, s67", ex(1),
        f"buffer_store_dwordx2 v[14:15], v12, s[16:19], s{soff} offen sc1", ex(-1))


def lds_signal(k, addr, va=12, vb=13):
    k.e(f"v_mov_b32 v{va}, {addr}", f"v_mov_b32 v{vb}, 1", ex(1), f"ds_add_u32 v{va}, v{vb}", ex(-1))


def lds_wait(k, addr, n, tag, va=12, vb=13, sleep=int(os.environ.get("LWS", "1"))):
    lab, done = f"mega_lw_{tag}", f"mega_lwd_{tag}"
    k.e(f"v_mov_b32 v{va}, {addr}", f"s_mov_b32 s3, {SPIN*8}")
    k.label(lab)
    k.e(f"ds_read_b32 v{vb}, v{va}", "s_waitcnt lgkmcnt(0)", f"v_readfirstlane_b32 s39, v{vb}", f"s_cmp_ge_u32 s39, {n}",
        f"s_cbranch_scc1 {done}", f"s_sleep {sleep}", "s_sub_u32 s3, s3, 1", f"s_cbranch_scc0 {lab}")
    k.label(done)


def arrive(k, cnt, n, soff, tag, cnt_sgpr=None):
    if cnt_sgpr is None:
        k.e(f"v_mov_b32 v12, {LDS_CNT + 4*cnt}")
    else:
        k.e(f"v_mov_b32 v12, s{cnt_sgpr}")
    k.e("v_mov_b32 v13, 1", ex(1), "ds_add_rtn_u32 v14, v12, v13", ex(-1), "s_waitcnt lgkmcnt(0)",
        "v_readfirstlane_b32 s3, v14", f"s_cmp_lg_u32 s3, {n-1}", f"s_cbranch_scc1 mega_arr_{tag}")
    set_flag(k, soff)
    k.label(f"mega_arr_{tag}")


def publish_o(k, tag, pre=None):
    k.e("s_and_b32 s34, s30, 3", "s_lshr_b32 s35, s30, 2", "s_mul_i32 s36, s34, 2304", "s_mul_i32 s37, s35, 768",
        "s_add_u32 s36, s36, s37", f"s_add_u32 s36, s36, {LDS_OST}", "v_add_u32 v12, s36, v11",
        f"ds_read_b128 {r4(4)}, v12")
    k.e("s_lshl_b32 s36, s28, 2", "s_add_u32 s36, s36, s34", "s_mul_i32 s38, s36, 18432", "s_mul_i32 s39, s29, 2304",
        "s_add_u32 s38, s38, s39", "s_add_u32 s38, s38, s37", f"s_add_u32 s38, s38, {WS_O}")
    k.e("s_lshl_b32 s36, s28, 7", "s_lshl_b32 s39, s29, 3", "s_add_u32 s36, s36, s39", f"s_add_u32 s36, s36, {F1}")
    k.e("s_waitcnt lgkmcnt(0)", ex((1 << 48) - 1), f"buffer_store_dwordx4 {r4(4)}, v11, s[16:19], s38 offen sc1", ex(-1),
        "s_waitcnt vmcnt(0)")
    arrive(k, 1, 12, 36, tag)
    if pre:
        pre(k)


def attention(k):
    k.e("v_and_b32 v2, 31, v1", "v_lshrrev_b32 v3, 5, v1")
    k.e("s_lshr_b32 s35, s30, 2", "s_mul_i32 s35, s35, 4608", f"s_add_u32 s35, s35, {LDS_OST}", "s_movk_i32 s36, 2304",
        "v_lshrrev_b32 v8, 4, v2", "v_mul_u32_u24 v8, s36, v8", "v_and_b32 v9, 15, v2", "v_lshl_add_u32 v8, v9, 4, v8",
        "v_add_u32 v8, s35, v8", "v_lshl_add_u32 v9, v3, 8, v8", "s_and_b32 s37, s30, 3", "s_mul_i32 s37, s37, 18")
    for i in range(4):
        k.e(f"s_add_u32 s38, s37, {2*i}", "s_lshr_b32 s39, s38, 3", "s_lshl_b32 s39, s39, 8", "s_and_b32 s38, s38, 7",
            "s_lshl_b32 s38, s38, 1", "s_add_u32 s38, s38, s39", f"v_add_u32 v{Q+i}, s38, v9")
        if i == 0:
            k.e(f"v_add_u32 v{T0}, s38, v8")
    k.e(f"v_mov_b32 v{T0+2}, {LDS_KMX}")
    k.e("v_mov_b32 v12, v11")
    k.e("v_cmp_eq_u32 vcc, 28, v2", "v_cndmask_b32 v13, v2, 18, vcc",
        "v_cmp_lt_u32 vcc, 18, v13", "v_mov_b32 v14, 0x10000", "v_cndmask_b32 v13, v13, v14, vcc",
        "s_movk_i32 s40, 304", "v_mul_u32_u24 v14, s40, v3", "v_lshl_add_u32 v13, v13, 4, v14", f"v_add_u32 v13, {KV_V}, v13")
    k.e("v_min_u32 v14, 32, v1", "v_lshlrev_b32 v14, 4, v14", f"v_add_u32 v14, {KV_K2}, v14")
    k.e("v_cmp_eq_u32 s[44:45], 1, v3")
    k.e("s_lshr_b32 s35, s30, 2", "s_lshl_b32 s35, s35, 2", f"s_add_u32 s35, s35, {LDS_QRD}")
    def zero_init():
        for r in list(range(OA, OA + 16)) + list(range(P, P + 8)) + list(range(V1, V1 + 4)):
            k.e(f"v_mov_b32 v{r}, 0")

    def setm():
        k.e(f"v_xor_b32 v{T0+2}, 0x80000000, v{T0+1}",
            f"v_and_b32 v{T0+3}, 0xffff0000, v{T0+2}", f"v_sub_f32 v{T0+2}, v{T0+2}, v{T0+3}",
            f"v_and_b32 v{T0+4}, 0xffff0000, v{T0+2}", f"v_sub_f32 v{T0+2}, v{T0+2}, v{T0+4}",
            f"v_lshrrev_b32 v{T0+3}, 16, v{T0+3}", f"v_or_b32 v{T0+3}, v{T0+3}, v{T0+4}",
            f"v_lshrrev_b32 v{T0+2}, 16, v{T0+2}")
        k.e(f"v_cndmask_b32 v{Q2E}, v{T0}, v{T0+3}, s[44:45]", f"v_cndmask_b32 v{Q2E+1}, 0, v{T0+2}, s[44:45]",
            f"v_cndmask_b32 v{Q2O}, 0, v{T0+3}, s[44:45]", f"v_cndmask_b32 v{Q2O+1}, v{T0}, v{T0+2}, s[44:45]")
    zero_init()
    k.e("v_mov_b32 v4, v12", "v_mov_b32 v5, v13", "v_mov_b32 v6, v14", "s_mov_b32 s32, 0", "s_mov_b32 s31, 2")
    sta(k, 4)
    lds_wait(k, LDS_IM0, 4, "im0", va=T0 + 6, vb=T0 + 7)
    k.e(f"ds_read_b32 v{T0+2}, v{T0+2}", f"v_mov_b32 v{T0+6}, {LDS_NON}", f"ds_read_b64 v[{T0+8}:{T0+9}], v{T0+6}",
        f"ds_read_b128 {r4(KF)}, v4", f"ds_read_b128 {r4(K2F)}, v6", f"ds_read_b128 {r4(V0)}, v5")
    sta(k, 5)
    lds_wait(k, "s35", 2, "qrd", va=T0 + 6, vb=T0 + 7)
    sta(k, 6)
    for i in range(4):
        k.e(f"ds_read_b32 v{Q+i}, v{Q+i}")
    k.e(f"ds_read_b32 v{T0}, v{T0} offset:512", f"v_readfirstlane_b32 s66, v{T0+8}", f"v_readfirstlane_b32 s67, v{T0+9}",
        f"v_mul_f32 v{T0+2}, {hex(f2u(1.02*1.02))}, v{T0+2}", f"v_mov_b32 v{T0+1}, 0", "s_waitcnt lgkmcnt(0)")
    k.e(f"v_cndmask_b32 v{T0}, v{T0}, 0, s[44:45]")
    for r in (Q, Q + 1, Q + 2, Q + 3, T0):
        k.e(f"v_dot2c_f32_bf16 v{T0+1}, v{r}, v{r}")
    k.e(f"v_mfma_f32_32x32x16_bf16 {r16(S0)}, {r4(KF)}, {r4(Q)}, 0", f"ds_read_b128 {r4(KF)}, v4 offset:1024")
    k.e(f"v_mov_b32 v{T0+4}, v{T0+1}", f"v_permlane32_swap_b32 v{T0+1}, v{T0+4}", f"v_add_f32 v{T0+1}, v{T0+1}, v{T0+4}")
    k.e(f"v_mul_f32 v{T0+1}, v{T0+1}, v{T0+2}", f"v_sqrt_f32 v{T0+1}, v{T0+1}")
    setm()
    k.e("s_setprio 2", "s_branch attn_go")
    k.label("attn_setm")
    setm()
    k.e("v_mov_b32 v4, v12", "v_mov_b32 v5, v13", "v_mov_b32 v6, v14")
    k.e("s_cmp_eq_u32 s32, 10", "s_cbranch_scc1 attn_maxpass")
    zero_init()
    k.e("s_mov_b32 s31, 16")
    k.e(f"ds_read_b128 {r4(KF)}, v4", f"ds_read_b128 {r4(K2F)}, v6", f"ds_read_b128 {r4(V0)}, v5", "s_waitcnt lgkmcnt(0)")
    k.e(f"v_mfma_f32_32x32x16_bf16 {r16(S0)}, {r4(KF)}, {r4(Q)}, 0", f"ds_read_b128 {r4(KF)}, v4 offset:1024")
    k.label("attn_go")
    k.e(f"v_mfma_f32_32x32x8_bf16 {r16(S0)}, v[{K2F}:{K2F+1}], v[{Q2E}:{Q2E+1}], {r16(S0)}")
    k.stamp(2)
    k.e("s_waitcnt lgkmcnt(0)", "s_nop 7", "s_nop 3")
    k.e(".p2align 6")
    k.label("attn_loop")
    for tau in range(4):
        cur, nxt = (S0, S1) if tau % 2 == 0 else (S1, S0)
        t1 = (tau + 1) % 4
        koff = (tau + 2) * 1024 if tau < 2 else GRP + (tau - 2) * 1024
        v0off = (tau + 1) * 1216 if tau < 3 else GRP

        def ex_(a, b):
            for i in range(a, b):
                k.e(f"v_exp_f32 v{cur+i}, v{cur+i}")

        def cv(a, b):
            for i in range(a, b):
                k.e(f"v_cvt_pk_bf16_f32 v{P+i}, v{cur+2*i}, v{cur+2*i+1}")
        k.e("s_waitcnt lgkmcnt(2)")
        k.e(f"v_mfma_f32_32x32x16_bf16 {r16(nxt)}, {r4(KF)}, {r4(Q)}, 0")
        k.e(f"ds_read_b128 {r4(KF)}, v4 offset:{koff}")
        ex_(0, 3)
        k.e("s_waitcnt lgkmcnt(2)")
        k.e(f"v_mfma_f32_32x32x16_bf16 {r16(OA)}, {r4(V1)}, {r4(P+4)}, {r16(OA)}")
        k.e(f"ds_read_b128 {r4(V1)}, v5 offset:{tau*1216+608}")
        ex_(3, 6)
        q2 = Q2E if t1 % 2 == 0 else Q2O
        kk = K2F + 2 * (t1 // 2)
        k.e(f"v_mfma_f32_32x32x8_bf16 {r16(nxt)}, v[{kk}:{kk+1}], v[{q2}:{q2+1}], {r16(nxt)}")
        if tau == 2:
            k.e(f"ds_read_b128 {r4(K2F)}, v6 offset:{GRP}")
        ex_(6, 9)
        cv(0, 4)
        ex_(9, 12)
        k.e("s_waitcnt lgkmcnt(2)")
        k.e(f"v_mfma_f32_32x32x16_bf16 {r16(OA)}, {r4(V0)}, {r4(P)}, {r16(OA)}")
        k.e(f"ds_read_b128 {r4(V0)}, v5 offset:{v0off}")
        ex_(12, 16)
        if tau == 3:
            k.e(f"v_add_u32 v4, {GRP}, v4", f"v_add_u32 v5, {GRP}, v5", f"v_add_u32 v6, {GRP}, v6")
            k.e("s_sub_u32 s31, s31, 1", "s_cmp_lg_u32 s31, 0")
        cv(4, 8)
    k.e("s_cbranch_scc1 attn_loop")
    k.e("s_cmp_ge_u32 s32, 4", "s_cbranch_scc1 attn_tail")
    k.e("s_add_u32 s32, s32, 1")
    k.e("s_cmp_eq_u32 s32, 2", "s_cbranch_scc1 attn_ph2", "s_cmp_eq_u32 s32, 3", "s_cbranch_scc1 attn_ph3",
        "s_cmp_eq_u32 s32, 4", "s_cbranch_scc1 attn_ph4")
    lds_wait(k, LDS_IMG, 4, "img", va=T0 + 6, vb=T0 + 7)
    k.e("s_mov_b32 s31, 9", "s_branch attn_loop")
    for ph, cnt, pr in ((2, 2, 1), (3, 2, 1), (4, 1, 0)):
        k.label(f"attn_ph{ph}")
        k.e(f"s_setprio {pr}", f"s_mov_b32 s31, {cnt}")
        if ph == 2:
            k.e(f"v_cndmask_b32 v{T0+5}, v{OA+10}, v{OA+12}, s[44:45]", f"v_cmp_le_f32 vcc, {hex(f2u(2.0**-40))}, v{T0+5}",
                "s_cmp_eq_u64 vcc, -1", "s_cselect_b32 s34, 1, 0x101", f"v_mov_b32 v{T0+6}, {LDS_REL}", f"v_mov_b32 v{T0+7}, s34",
                ex(1), f"ds_add_u32 v{T0+6}, v{T0+7}", ex(-1))
        if ph == 4:
            k.e(f"v_mov_b32 v{T0+6}, {LDS_RDY}", f"ds_read_b32 v{T0+6}, v{T0+6}", "s_waitcnt lgkmcnt(0)",
                f"v_readfirstlane_b32 s52, v{T0+6}", "s_cmp_eq_u32 s52, 0", "s_cbranch_scc1 attn_loop")
            ffn_ring_start(k)
        k.e("s_branch attn_loop")
    k.label("attn_maxpass")
    k.e(f"v_mov_b32 v{T0+1}, 0xff800000", "s_mov_b32 s31, 16")
    k.label("attn_maxloop")
    k.e(f"ds_read_b128 {r4(K2F)}, v6")
    for tau in range(4):
        q2 = Q2E if tau % 2 == 0 else Q2O
        kk = K2F + 2 * (tau // 2)
        k.e(f"ds_read_b128 {r4(KF)}, v4 offset:{tau*1024}", "s_waitcnt lgkmcnt(0)")
        k.e(f"v_mfma_f32_32x32x16_bf16 {r16(S0)}, {r4(KF)}, {r4(Q)}, 0",
            f"v_mfma_f32_32x32x8_bf16 {r16(S0)}, v[{kk}:{kk+1}], v[{q2}:{q2+1}], {r16(S0)}")
        for i in range(8):
            k.e(f"v_max3_f32 v{T0+1}, v{S0+2*i}, v{S0+2*i+1}, v{T0+1}")
    k.e(f"v_add_u32 v4, {GRP}, v4", f"v_add_u32 v6, {GRP}, v6", "s_sub_u32 s31, s31, 1", "s_cmp_lg_u32 s31, 0",
        "s_cbranch_scc1 attn_maxloop")
    k.e(f"v_mov_b32 v{T0+2}, v{T0+1}", f"v_permlane32_swap_b32 v{T0+1}, v{T0+2}", f"v_max_f32 v{T0+1}, v{T0+1}, v{T0+2}")
    k.e("s_mov_b32 s32, 11", "s_branch attn_setm")
    k.label("attn_tail")
    k.e("s_waitcnt lgkmcnt(0)")
    k.e(f"v_mfma_f32_32x32x16_bf16 {r16(OA)}, {r4(V1)}, {r4(P+4)}, {r16(OA)}")
    k.e("s_and_b32 s34, s30, 3", "s_mul_i32 s34, s34, 18", "s_lshr_b32 s35, s30, 2", "s_mul_i32 s35, s35, 4608",
        f"s_add_u32 s35, s35, {LDS_OST}", "s_movk_i32 s36, 2304",
        f"v_lshrrev_b32 v{T0+9}, 4, v2", f"v_mul_u32_u24 v{T0+9}, s36, v{T0+9}", f"v_and_b32 v{T0+8}, 15, v2",
        f"v_lshl_add_u32 v{T0+9}, v{T0+8}, 4, v{T0+9}", f"v_add_u32 v{T0+9}, s35, v{T0+9}")
    k.e(f"v_lshl_add_u32 v{T0+6}, v3, 2, s34", f"v_add_u32 v{T0+7}, 2, v{T0+6}")
    for r in (T0 + 6, T0 + 7):
        k.e(f"v_lshrrev_b32 v{T0+8}, 3, v{r}", f"v_and_b32 v{r}, 7, v{r}", f"v_lshl_add_u32 v{r}, v{r}, 1, v{T0+9}",
            f"v_lshl_add_u32 v{r}, v{T0+8}, 8, v{r}")
    k.e(f"v_cndmask_b32 v{T0+5}, v{OA+10}, v{OA+12}, s[44:45]")
    k.e(f"v_cmp_le_f32 vcc, {hex(f2u(2.0**-40))}, v{T0+5}")
    k.e("s_cmp_eq_u32 s32, 11", "s_cbranch_scc1 attn_fin")
    k.e("s_cmp_eq_u64 vcc, -1", "s_cbranch_scc1 attn_fin")
    k.e("s_mov_b32 s32, 10", f"v_mov_b32 v{T0+1}, 0", "s_branch attn_setm")
    k.label("attn_fin")
    k.e(f"v_rcp_f32 v{T0+5}, v{T0+5}")
    for i in range(10):
        k.e(f"v_mul_f32 v{OA+i}, v{T0+5}, v{OA+i}")
    for i in range(5):
        k.e(f"v_cvt_pk_bf16_f32 v{P+i}, v{OA+2*i}, v{OA+2*i+1}")
    k.e(f"ds_write_b32 v{T0+6}, v{P}", f"ds_write_b32 v{T0+7}, v{P+1}",
        f"ds_write_b32 v{T0+6}, v{P+2} offset:256", f"ds_write_b32 v{T0+7}, v{P+3} offset:256",
        ex(0xffffffff), f"ds_write_b32 v{T0+6}, v{P+4} offset:512", ex(-1))
    k.e("s_waitcnt lgkmcnt(0)", "s_barrier")
    stb(k, 3)
    publish_o(k, "oa")


def kv_dma(k, a, b):
    for i in range(a, b):
        k.e(f"s_add_u32 m0, s34, {i*4096}", f"s_sub_u32 s36, s35, {IMG - 4096}", "buffer_load_dwordx4 v10, s[16:19], s35 offen sc1 lds",
            "s_add_u32 s35, s35, 4096", "s_min_u32 s35, s35, s36")


NB = 7


def roll_gemm(k, steps, rd, mfma, pre=None):
    seq = [(s, t) for s in steps for t in range(5)]
    n = len(seq)
    for i in range(min(NB, n)):
        rd(seq[i][1], seq[i][0], i % NB)
    for i, (s, t) in enumerate(seq):
        ahead = min(NB - 1, n - 1 - i)
        extra = pre(s) if (pre and t == 0) else ""
        k.e(f"s_waitcnt lgkmcnt({2*ahead}){extra}")
        mfma(t, s, i % NB)
        if i + NB < n:
            rd(seq[i + NB][1], seq[i + NB][0], i % NB)


def roll_gemm2(k, steps, rd2, mf2):
    seq = [(s, t) for s in steps for t in range(5)]
    n = len(seq)
    for i in range(min(NB, n)):
        k.e(*rd2(seq[i][1], seq[i][0], i % NB))
    for i, (s, t) in enumerate(seq):
        issued = min(n, NB + max(0, i - 1))
        k.e(f"s_waitcnt lgkmcnt({2*(issued - 1 - i)})")
        m = mf2(t, s, i % NB)
        j = i - 1 + NB
        r = rd2(seq[j][1], seq[j][0], (i - 1) % NB) if (i >= 1 and j < n) else ["", ""]
        k.e(m[0], r[0], m[1], r[1])


def helper_pack(k):
    def dma(a, b):
        kv_dma(k, a, b)
    k.e("s_waitcnt vmcnt(0)")
    lds_signal(k, LDS_IM0)
    lds_wait(k, LDS_WDN, 4, "wdn")
    dma(7, 37)
    k.e("s_cmp_lg_u32 s31, 0", "s_cbranch_scc1 mega_h_nolast")
    k.e(ex(0xffff))
    dma(37, 38)
    k.e(ex(-1))
    k.label("mega_h_nolast")
    k.e("s_lshl_b32 s34, s31, 6", "v_add_u32 v12, s34, v1", "v_min_u32 v12, 161, v12", "v_lshlrev_b32 v12, 7, v12",
        "s_mul_i32 s34, s47, 20736")
    k.e("s_lshl_b32 s50, s31, 5", "s_add_u32 s50, s50, s47",
        "s_cmp_ge_u32 s50, 54", "s_cselect_b32 s53, 1, 0",
        "s_mul_i32 s51, s53, 54", "s_sub_u32 s51, s50, s51",
        "s_mul_i32 s54, s51, 57", "s_lshr_b32 s54, s54, 10",
        "s_mul_i32 s52, s54, 18", "s_sub_u32 s52, s51, s52",
        "s_cmp_eq_u32 s53, 0",
        "s_cselect_b32 s20, s4, s6", "s_cselect_b32 s21, s5, s7", f"s_mov_b32 s22, {hex(W1B)}", "s_mov_b32 s23, 0x00020000",
        "s_movk_i32 s56, 1152", "s_cselect_b32 s56, 9216, s56",
        "s_movk_i32 s57, 1152", "s_cselect_b32 s57, s57, 663552", "s_mul_i32 s57, s57, s46",
        "s_mul_i32 s58, s54, 192", "s_mul_i32 s58, s58, s56", "s_add_u32 s57, s57, s58",
        "s_lshl_b32 s58, s52, 6", "s_add_u32 s57, s57, s58")
    k.e("s_add_u32 s58, s53, s54", "s_cmp_eq_u32 s58, 3", "s_cselect_b32 s58, 2, 1", "s_cselect_b32 s59, -5, 1",
        "s_mul_i32 s58, s58, s56", "s_mul_i32 s59, s59, s56", "s_mul_i32 s60, s56, 25")
    k.e("v_lshrrev_b32 v2, 4, v1", "v_lshlrev_b32 v2, 3, v2", "v_mul_u32_u24 v15, s56, v2", "v_and_b32 v3, 15, v1",
        "v_lshl_add_u32 v15, v3, 2, v15", "v_lshlrev_b32 v8, 2, v3",
        "s_mov_b32 s64, 0x05040100", "s_mov_b32 s65, 0x07060302")
    k.e(f"s_mul_i32 s62, s52, {STREAM}", f"s_mul_i32 s63, s52, {2*STREAM}", f"s_sub_u32 s63, s63, {24*STREAM - 2048}",
        "s_cmp_lt_u32 s52, 12", "s_cselect_b32 s62, s62, s63", "s_movk_i32 s61, 1024", f"s_cselect_b32 s61, s61, {STREAM}",
        "s_mul_i32 s63, s53, 3", "s_add_u32 s63, s63, s54", f"s_mul_i32 s63, s63, {6*3072}", "s_add_u32 s62, s62, s63",
        f"s_mul_i32 s63, s46, {1296*1024}", "s_add_u32 s62, s62, s63", f"s_add_u32 s62, s62, {WS_W}",
        "s_add_u32 s61, s61, s62")
    for i in range(4):
        k.e(f"v_mov_b32 v{PS+8+i}, 0x3f803f80")
    k.e("s_waitcnt vmcnt(0)")
    lds_signal(k, LDS_IMG, va=9, vb=10)
    stp(k, 3)
    k.e("buffer_load_dword v13, v12, s[24:27], s34 offen")
    k.e("s_cmp_ge_u32 s50, 108", "s_cbranch_scc1 mega_h_nounit")
    for ss in range(6):
        for jj in range(8):
            k.e(f"buffer_load_dword v{PIN+8*ss+jj}, v15, s[20:23], s57 offen",
                f"s_add_u32 s57, s57, s{60 if jj == 7 else (59 if jj == 3 else 58)}")
    stp(k, 4)
    for ss in range(6):
        k.e(f"s_waitcnt vmcnt({40 - 8*ss + 2*ss})")
        if ss in (0, 5):
            stp(k, 5 if ss == 0 else 6)
        for e in range(2):
            for q in range(4):
                k.e(f"v_perm_b32 v{POUT+8*ss+4*e+q}, v{PIN+8*ss+2*q+1}, v{PIN+8*ss+2*q}, s{64+e}")
            k.e(f"buffer_store_dwordx4 {r4(POUT+8*ss+4*e)}, v11, s[16:19], s{62-e} offen sc1", f"s_add_u32 s{62-e}, s{62-e}, 3072")
    stp(k, 7)
    k.e("s_cmp_lg_u32 s53, 0", "s_cbranch_scc1 mega_h_nounit")
    for ss in range(6):
        for e in range(2):
            k.e(f"v_mfma_f32_16x16x32_bf16 {r4(PS+4*e)}, {r4(PS+8)}, {r4(POUT+8*ss+4*e)}, {r4(PS+4*e) if ss else 0}")
    k.e("s_mul_i32 s58, s54, 18432", "s_mul_i32 s59, s46, 2304", "s_add_u32 s58, s58, s59", "s_lshl_b32 s59, s52, 7",
        "s_add_u32 s58, s58, s59", f"s_add_u32 s58, s58, {WS_SP}")
    k.e(ex(0xffff), f"buffer_store_dword v{PS}, v8, s[16:19], s58 offen sc1",
        f"buffer_store_dword v{PS+4}, v8, s[16:19], s58 offen offset:64 sc1", ex(-1))
    k.label("mega_h_nounit")
    k.e("s_waitcnt vmcnt(0)", "s_lshl_b32 s34, s46, 9", f"s_add_u32 s36, s34, {FP}", "s_lshr_b32 s35, s47, 3", "s_lshl_b32 s35, s35, 7",
        "s_add_u32 s34, s36, s35", "s_lshl_b32 s35, s29, 3", "s_add_u32 s34, s34, s35")
    k.stamp(2)
    arrive(k, 0, 4, 34, "p")
    k.e("s_cmp_lg_u32 s31, 3", "s_cbranch_scc1 mega_h_nofp")
    lds_wait(k, LDS_QRD, 2, "qa")
    lds_wait(k, LDS_QRD + 4, 2, "qb")
    k.e("v_bfe_u32 v12, v1, 3, 2", "v_lshlrev_b32 v12, 7, v12", "v_and_b32 v13, 7, v1", "v_lshl_add_u32 v12, v13, 3, v12")
    poll(k, 12, 36, 14, "p", sleep=16)
    k.e("v_add_u32 v13, 128, v1", "v_min_u32 v13, 143, v13", "v_lshlrev_b32 v13, 4, v13",
        "s_mul_i32 s34, s46, 2304", f"s_add_u32 s34, s34, {WS_SP}")
    for i in range(3):
        k.e(f"buffer_load_dwordx4 {r4(PIN+12*i)}, v11, s[16:19], s34 offen sc1", f"buffer_load_dwordx4 {r4(PIN+12*i+4)}, v11, s[16:19], s34 offen offset:1024 sc1",
            f"buffer_load_dwordx4 {r4(PIN+12*i+8)}, v13, s[16:19], s34 offen sc1", "s_add_u32 s34, s34, 18432")
    k.e(f"v_mov_b32 v14, {LDS_RDY}", "v_mov_b32 v15, 1", "ds_write_b32 v14, v15")
    k.e("v_lshlrev_b32 v14, 7, v1", "v_and_b32 v15, 3, v1", "v_lshlrev_b32 v15, 7, v15",
        f"s_mul_i32 s34, s46, {1296*1024}", "s_mul_i32 s35, s47, 41472", "s_add_u32 s34, s34, s35", f"s_add_u32 s34, s34, {WS_W}")
    for i in range(6):
        k.e(f"buffer_load_dword v{POUT+i}, v{14 if i < 5 else 15}, s[16:19], s34 offen sc1", "s_add_u32 s34, s34, 8192")
    k.e(f"v_add_u32 v12, {LDS_S}, v11", f"v_add_u32 v13, {LDS_S}, v13", "s_waitcnt vmcnt(6)")
    for i in range(1, 3):
        for c in range(12):
            k.e(f"v_add_f32 v{PIN+c}, v{PIN+c}, v{PIN+12*i+c}")
    k.e(f"ds_write_b128 v12, {r4(PIN)}", f"ds_write_b128 v12, {r4(PIN+4)} offset:1024", f"ds_write_b128 v13, {r4(PIN+8)}",
        "s_waitcnt lgkmcnt(0)")
    k.label("mega_h_nofp")


def wo_dma(k, tag):
    k.e("s_mul_i32 s32, s29, 144", "s_lshl_b32 s42, s29, 1", "s_add_u32 s42, s42, s31",
        "s_mul_i32 s43, s31, 5120", f"s_add_u32 s43, s43, {LDS_WO}")

    k.e("s_cmp_eq_u32 s31, 3", f"s_cbranch_scc1 mega_o_skip{tag}")
    for grp in range(6):
        k.e("s_sub_u32 s36, s42, 18", "s_min_u32 s42, s42, s36", "s_mul_i32 s36, s42, 36864", "s_add_u32 s36, s36, s32")
        for i in range(5):
            k.e(f"s_add_u32 m0, s43, {grp*3*5120 + i*1024}", "s_nop 0", f"buffer_load_dwordx4 v{16+i}, s[24:27], s36 offen lds")
        k.e("s_add_u32 s42, s42, 3")
    k.label(f"mega_o_skip{tag}")
    srd(k, 56, 10, XB)
    k.e("s_add_u32 s35, s49, s32")
    for i in range(3):
        if i == 2:
            k.e(ex(0xffffffff))
        k.e(f"s_add_u32 m0, s44, {i*1024}", "s_nop 0", f"buffer_load_dwordx4 v{16+i}, s[56:59], s35 offen lds")
    k.e(ex(-1), "s_waitcnt vmcnt(0)")
    for t in range(5):
        k.e(f"ds_read_b64 v[{36+2*t}:{37+2*t}], v21 offset:{32*t}")
    k.e("s_cmp_eq_u32 s31, 3", f"s_cbranch_scc1 mega_c_skip{tag}")
    k.e("v_add_u32 v32, s43, v28", "v_add_u32 v33, s43, v29", "v_add_u32 v34, s43, v11", "s_mov_b32 s36, 6")
    k.label(f"mega_conv{tag}")
    for t in range(5):
        k.e(f"ds_read_b64_tr_b16 v[{OWF+4*t}:{OWF+4*t+1}], v32 offset:{32*t}", f"ds_read_b64_tr_b16 v[{OWF+4*t+2}:{OWF+4*t+3}], v33 offset:{32*t}")
    k.e("v_add_u32 v32, 15360, v32", "v_add_u32 v33, 15360, v33", "s_waitcnt lgkmcnt(0)")
    for t in range(5):
        k.e(f"ds_write_b128 v34, {r4(OWF+4*t)} offset:{1024*t}")
    k.e("v_add_u32 v34, 15360, v34", "s_sub_u32 s36, s36, 1", "s_cmp_lg_u32 s36, 0", f"s_cbranch_scc1 mega_conv{tag}")
    k.label(f"mega_c_skip{tag}")
    k.e("s_waitcnt lgkmcnt(0)")
    for t in range(5):
        a = OACC + 4 * t
        k.e(f"v_lshlrev_b32 v{a}, 16, v{36+2*t}", f"v_and_b32 v{a+1}, 0xffff0000, v{36+2*t}",
            f"v_lshlrev_b32 v{a+2}, 16, v{37+2*t}", f"v_and_b32 v{a+3}, 0xffff0000, v{37+2*t}")


def oproj(k):
    k.e("v_and_b32 v2, 15, v1", "v_lshrrev_b32 v3, 4, v1")
    k.e("v_lshrrev_b32 v32, 2, v2",
        "v_and_b32 v33, 1, v3", "v_lshlrev_b32 v33, 2, v33", "v_add_u32 v32, v32, v33",
        "v_lshl_add_u32 v32, v3, 3, v32", "v_xor_b32 v33, 4, v32", "s_movk_i32 s40, 160",
        "v_and_b32 v34, 3, v2", "v_lshlrev_b32 v34, 3, v34", f"v_add_u32 v34, {LDS_WO}, v34",
        "v_mad_u32_u24 v28, v32, s40, v34", "v_mad_u32_u24 v29, v33, s40, v34",
        "v_add_u32 v30, 61440, v11")
    k.e("s_mul_i32 s44, s31, 2560", f"s_add_u32 s44, s44, {LDS_RES}",
        "v_and_b32 v21, 8, v2", "v_lshrrev_b32 v21, 1, v21", "v_xor_b32 v21, v21, v2", "v_mul_u32_u24 v21, s40, v21",
        "v_lshl_add_u32 v21, v3, 3, v21", "v_add_u32 v21, s44, v21")
    k.e("v_and_b32 v22, 1, v3", "v_lshlrev_b32 v22, 9, v22", "v_lshrrev_b32 v32, 1, v3", "v_lshl_add_u32 v22, v32, 8, v22",
        "v_lshl_add_u32 v22, v2, 4, v22")
    k.e("v_and_b32 v23, 7, v1", "v_lshlrev_b32 v23, 3, v23")
    k.e("s_lshl_b32 s48, s28, 2", "s_add_u32 s48, s48, s31", "s_mul_i32 s49, s48, 18432")
    k.e(f"s_add_u32 s34, s49, {WS_O}", "v_add_u32 v24, s34, v11", "s_lshl_b32 s51, s29, 11")
    k.e(f"v_mov_b32 v12, {LDS_REL}", f"s_mov_b32 s3, {SPIN*8}")
    k.label("mega_rel")
    k.e("ds_read_b32 v13, v12", "s_waitcnt lgkmcnt(0)", "v_readfirstlane_b32 s50, v13", "s_and_b32 s39, s50, 0xff", "s_cmp_ge_u32 s39, 8",
        "s_cbranch_scc1 mega_reld", "s_sleep 4", "s_sub_u32 s3, s3, 1", "s_cbranch_scc0 mega_rel")
    k.label("mega_reld")
    k.e("s_cmp_lg_u32 s50, 8", "s_cbranch_scc1 mega_noearly")
    wo_dma(k, "a")
    k.label("mega_noearly")
    stp(k, 8)
    k.e("s_waitcnt lgkmcnt(0)", "s_barrier")
    stb(k, 3)
    publish_o(k, "ob")
    k.e("s_cmp_eq_u32 s50, 8", "s_cbranch_scc1 mega_nolate")
    wo_dma(k, "b")
    k.label("mega_nolate")
    k.e("s_lshl_b32 s34, s28, 7", f"s_add_u32 s34, s34, {F1}")
    k.e("s_cmp_lg_u32 s31, 0", "s_cbranch_scc1 mega_polld_o")
    lds_wait(k, LDS_CNT + 4, 12, "owno")
    k.e(f"s_sleep {os.environ.get('OS0', '2')}")
    poll(k, 23, 34, 32, "o", sleep=int(os.environ.get("OSP", "3")))
    lds_signal(k, LDS_ORD)
    lds_wait(k, LDS_ORD, 4, "ord")
    stb(k, 4)
    for s in range(18):
        k.e(f"buffer_load_dwordx4 v[{OX0+4*s}:{OX0+4*s+3}], v24, s[16:19], s51 offen sc1",
            "s_add_u32 s51, s51, 1024", "s_cmp_eq_u32 s51, 18432", "s_cselect_b32 s51, 0, s51")

    seq = [(s, t) for s in range(18) for t in range(5)]

    def rd(i):
        s, t = seq[i]
        off = (s if s < 12 else s - 12) * 5120 + 1024 * t
        k.e(f"ds_read_b128 {r4(OWF+4*(i%NB))}, v{11 if s < 12 else 30} offset:{off}")
    for i in range(NB):
        rd(i)
    for i, (s, t) in enumerate(seq):
        k.e(f"s_waitcnt lgkmcnt({min(NB-1, 89-i)})" + (f" vmcnt({17-s})" if t == 0 else ""))
        a = r4(OACC + 4 * t)
        k.e(f"v_mfma_f32_16x16x32_bf16 {a}, {r4(OWF+4*(i%NB))}, {r4(OX0+4*s)}, {a}")
        if i + NB < 90:
            rd(i + NB)
    sto(k, 1)
    k.e("v_mov_b32 v6, 0", "v_mov_b32 v7, 0", "v_mov_b32 v34, 0x3f803f80",
        "s_mul_i32 s35, s29, 2304", "s_add_u32 s35, s35, s49", f"s_add_u32 s35, s35, {WS_H}")
    for t in range(5):
        a = OACC + 4 * t
        d = 48 + 2 * t
        k.e(f"v_cvt_pk_bf16_f32 v{d}, v{a}, v{a+1}", f"v_cvt_pk_bf16_f32 v{d+1}, v{a+2}, v{a+3}")
        if t == 4:
            k.e(ex(0xffffffff))
        k.e(f"v_dot2c_f32_bf16 v6, v{d}, v34", f"v_dot2c_f32_bf16 v7, v{d}, v{d}",
            f"v_dot2c_f32_bf16 v6, v{d+1}, v34", f"v_dot2c_f32_bf16 v7, v{d+1}, v{d+1}")
        if t == 4:
            k.e(ex(-1))
        if t % 2 == 1 or t == 4:
            b = 48 + 4 * (t // 2)
            k.e(f"v_permlane16_swap_b32 v{b}, v{b+2}", f"v_permlane16_swap_b32 v{b+1}, v{b+3}")
            if t == 4:
                k.e(ex(0xffff))
            k.e(f"buffer_store_dwordx4 {r4(b)}, v22, s[16:19], s35 offen offset:{1024*(t//2)} sc1")
            if t == 4:
                k.e(ex(-1))
    reduce_g_add(k, [6, 7], [32, 33])
    k.e("v_lshlrev_b32 v32, 4, v2", "s_lshl_b32 s35, s48, 10", "s_lshr_b32 s34, s29, 1", "s_lshl_b32 s34, s34, 8",
        "s_add_u32 s35, s35, s34", "s_and_b32 s34, s29, 1", "s_lshl_b32 s34, s34, 3", "s_add_u32 s35, s35, s34",
        f"s_add_u32 s35, s35, {WS_ST}", ex(0xffff))
    k.e("buffer_store_dwordx2 v[6:7], v32, s[16:19], s35 offen sc1", ex(-1))
    sto(k, 2)
    k.e("s_lshl_b32 s34, s28, 7", "s_lshl_b32 s35, s29, 3", "s_add_u32 s34, s34, s35", f"s_add_u32 s34, s34, {F2}", "s_waitcnt vmcnt(0)")
    sto(k, 7)
    arrive(k, 2, 4, 34, "h")


def acc(t, mb):
    return ACC + (t * 4 + mb) * 4


def wreg(slot, t):
    return WR + ((slot + 1) % 6) * 12 + t * 4


def wload(slot, t):
    return f"buffer_load_dwordx4 {r4(wreg(slot, t))}, v11, s[20:23], s53 offen offset:{1024*t} {WAUX}"


def ffn_ring_start(k):
    k.e(f"s_mul_i32 s34, s30, {STREAM}", f"s_mul_i32 s35, s46, {1296*1024}", "s_add_u32 s34, s34, s35", f"s_add_u32 s34, s34, {WS_W}",
        "s_add_u32 s20, s12, s34", "s_addc_u32 s21, s13, 0", f"s_mov_b32 s22, {STREAM}", "s_mov_b32 s23, 0x00020000",
        "s_mov_b32 s53, 0")
    for st in range(D - 1):
        for t in range(T):
            k.e(wload(st, t))
        k.e(f"s_add_u32 s53, s53, {T*1024}")


def ffn(k):
    k.label("ffn_join")
    k.e("s_setprio 0", "v_and_b32 v2, 15, v1", "v_lshrrev_b32 v3, 4, v1")
    k.e("s_lshl_b32 s34, s47, 2", "s_and_b32 s35, s30, 3", "s_add_u32 s34, s34, s35", "s_mul_i32 s41, s34, 18432",
        "s_lshr_b32 s35, s30, 2", "s_lshl_b32 s35, s35, 10", "s_add_u32 s41, s41, s35", f"s_add_u32 s41, s41, {WS_H}",
        "s_lshl_b32 s42, s30, 10")
    k.e("s_lshl_b32 s34, s30, 7", f"s_add_u32 s34, s34, {LDS_S}", "v_lshlrev_b32 v13, 4, v3", "v_add_u32 v12, s34, v13",
        "s_lshl_b32 s34, s30, 6", f"s_add_u32 s34, s34, {LDS_S + 1536}", "v_add_u32 v13, s34, v13",
        f"ds_read_b128 {r4(XB0+16)}, v12", f"ds_read_b128 {r4(XB0+20)}, v12 offset:64", f"ds_read_b128 {r4(XB0+24)}, v13")
    k.e("v_lshlrev_b32 v9, 2, v2", f"v_add_u32 v9, {LDS_MU}, v9", "s_and_b32 s34, s46, 3", "s_lshl_b32 s34, s34, 6", "v_add_u32 v10, s34, v9")
    for t in range(T):
        k.e(wload(D - 1, t))
    k.e(f"s_add_u32 s53, s53, {T*1024}")
    k.e("s_cmp_lg_u32 s30, 0", "s_cbranch_scc1 ffn_g")
    k.e("v_and_b32 v12, 7, v1", "v_lshlrev_b32 v12, 3, v12", "s_lshl_b32 s34, s47, 7", f"s_add_u32 s34, s34, {F2}",
        "v_lshlrev_b32 v8, 10, v3", "v_lshl_add_u32 v8, v2, 4, v8", "s_lshl_b32 s35, s47, 12", f"s_add_u32 s35, s35, {WS_ST}")
    lds_wait(k, LDS_CNT + 8, 4, "own", va=14, vb=15, sleep=2)
    k.e(f"s_sleep {os.environ.get('HS0', '4')}")
    poll(k, 12, 34, 14, "h", sleep=int(os.environ.get("HSP", "4")))
    for p in range(4):
        k.e(f"buffer_load_dwordx4 {r4(XB0+4*p)}, v8, s[16:19], s35 offen offset:{256*p} sc1")
    k.label("ffn_g")
    k.e("s_barrier")
    stb(k, 5)
    for i in range(4):
        k.e(f"s_add_u32 m0, s42, {i*12288}", f"s_add_u32 s36, s41, {i*3072}", "buffer_load_dwordx4 v11, s[16:19], s36 offen sc1 lds")
    k.e("s_cmp_lg_u32 s30, 0", "s_cbranch_scc1 ffn_st")
    k.e("s_waitcnt vmcnt(4)")
    for p in range(1, 4):
        for c in range(4):
            k.e(f"v_add_f32 v{XB0+c}, v{XB0+c}, v{XB0+4*p+c}")
    k.e(f"v_add_f32 v4, v{XB0}, v{XB0+2}", f"v_add_f32 v5, v{XB0+1}, v{XB0+3}",
        f"v_mul_f32 v4, {hex(f2u(-1/576))}, v4", f"v_mul_f32 v5, {hex(f2u(1/576))}, v5", "v_fma_f32 v5, -v4, v4, v5", "v_max_f32 v5, 0, v5",
        f"v_add_f32 v5, {hex(f2u(1e-5))}, v5", "v_rsq_f32 v5, v5", "v_lshlrev_b32 v6, 2, v1", f"v_add_u32 v6, {LDS_MU}, v6",
        "ds_write_b32 v6, v4", "ds_write_b32 v6, v5 offset:256")
    lds_signal(k, LDS_MUS)
    k.label("ffn_st")
    lds_wait(k, LDS_MUS, 1, "mus")
    sto(k, 8)
    for mb in range(4):
        k.e(f"ds_read_b32 v{4+mb}, v9 offset:{64*mb}")
    k.e("ds_read_b32 v8, v10 offset:256", "s_waitcnt lgkmcnt(0)")
    for t in range(T):
        for mb in range(4):
            for i in range(4):
                k.e(f"v_mul_f32 v{acc(t,mb)+i}, v{4+mb}, v{XB0+16+4*t+i}")
    k.e("s_add_u32 s41, s41, 12288", "s_add_u32 s42, s42, 49152")
    k.e("s_waitcnt vmcnt(3)", "s_barrier")
    stb(k, 6)
    k.e("v_mov_b32 v10, v11", "s_mov_b32 s31, 0")

    def step(u, loads=True):
        xb = XB0 + 16 * (u % 2)
        xn = XB0 + 16 * ((u + 1) % 2)
        fill = [f"ds_read_b128 {r4(xn+4*mb)}, v10 offset:{(u+1)*4096 + 1024*mb}" for mb in range(4)]
        if loads:
            fill += [wload((u + D - 1) % D, t) for t in range(T)]
            fill += [f"s_add_u32 s53, s53, {T*1024}"]
        for t in range(T):
            for mb in range(4):
                a = r4(acc(t, mb))
                k.e(f"v_mfma_f32_16x16x32_bf16 {a}, {r4(wreg(u, t))}, {r4(xb+4*mb)}, {a}")
                if fill:
                    k.e(fill.pop(0))
    for mb in range(4):
        k.e(f"ds_read_b128 {r4(XB0+4*mb)}, v10 offset:{1024*mb}")
    k.e("s_waitcnt lgkmcnt(0)")
    step(0, loads=False)
    k.e("s_branch ffn_u1")
    k.label("ffn_start")
    for mb in range(4):
        k.e(f"ds_read_b128 {r4(XB0+4*mb)}, v10 offset:{1024*mb}")
    k.e(".p2align 6")
    k.label("ffn_loop")
    k.e("s_cmp_lg_u32 s31, 1", "s_cbranch_scc1 ffn_nodma")
    for i in range(2):
        k.e(f"s_add_u32 m0, s42, {i*12288}", f"s_add_u32 s36, s41, {i*3072}", "buffer_load_dwordx4 v11, s[16:19], s36 offen sc1 lds")
    k.label("ffn_nodma")
    for u in range(D):
        if u == 1:
            k.label("ffn_u1")
        k.e(f"s_waitcnt vmcnt({4*T}) lgkmcnt(0)")
        if u == D - 1:
            k.e("s_cmp_ge_u32 s31, 2", "s_cbranch_scc1 ffn_nobar", "s_barrier")
            k.label("ffn_nobar")
        if u == 2:
            k.e("s_cmp_lg_u32 s31, 0", "s_cbranch_scc1 ffn_nobar2", "s_waitcnt vmcnt(5)", "s_barrier")
            k.label("ffn_nobar2")
        step(u)
    k.e(f"v_add_u32 v10, {D*4096}, v10", "s_add_u32 s31, s31, 1",
        "s_cmp_eq_u32 s31, 3", "s_cbranch_scc1 ffn_ep1",
        "s_cmp_lt_u32 s31, 6", "s_cbranch_scc1 ffn_loop")
    stb(k, 8)
    k.e("s_waitcnt lgkmcnt(0)")
    k.e(f"s_mul_i32 s34, s46, {XB}", "s_mul_i32 s33, s47, 73728", f"s_add_u32 s33, s33, {WS_P}", "s_add_u32 s34, s34, s33",
        "s_lshl_b32 s35, s30, 10", "s_add_u32 s36, s34, s35",
        "s_cmp_ge_u32 s30, 6", "s_movk_i32 s37, 12288", f"s_cselect_b32 s37, {12288 + 18432 - 6144}, s37", "s_add_u32 s37, s37, s36")
    for mb in range(4):
        d = XB0 + 4 * mb
        a, b = acc(0, mb), acc(1, mb)
        for i in range(4):
            k.e(f"v_cvt_pk_bf16_f32 v{d+i}, v{a+i}, v{b+i}")
        k.e(f"buffer_store_dwordx4 {r4(d)}, v11, s[16:19], s36 offen sc1", "s_add_u32 s36, s36, 18432")
    for h in range(2):
        d = XB0 + 16 + 4 * h
        a, b = acc(2, 2 * h), acc(2, 2 * h + 1)
        k.e(f"v_cvt_pk_bf16_f32 v{d}, v{a}, v{a+1}", f"v_cvt_pk_bf16_f32 v{d+1}, v{a+2}, v{a+3}",
            f"v_cvt_pk_bf16_f32 v{d+2}, v{b}, v{b+1}", f"v_cvt_pk_bf16_f32 v{d+3}, v{b+2}, v{b+3}")
        k.e(f"buffer_store_dwordx4 {r4(d)}, v11, s[16:19], s37 offen sc1", "s_add_u32 s37, s37, 36864")
    stt(k, 3)
    k.e("s_lshl_b32 s38, s47, 9", f"s_add_u32 s38, s38, {F3}", "s_lshr_b32 s36, s30, 2", "s_lshl_b32 s35, s36, 7", "s_add_u32 s38, s38, s35",
        "s_lshl_b32 s35, s46, 3", "s_add_u32 s34, s38, s35",
        "s_lshl_b32 s44, s36, 2", f"s_add_u32 s44, s44, {LDS_CNT + 12}", "s_waitcnt vmcnt(0)")
    stt(k, 4)
    stt(k, 5)
    stt(k, 6)
    arrive(k, 0, 4, 34, "r", cnt_sgpr=44)
    k.e("s_add_u32 s44, s44, 12", "v_mov_b32 v10, s44")
    k.e("s_and_b32 s35, s30, 3", "s_cmp_lg_u32 s35, 3", "s_cbranch_scc1 mega_red")
    if os.environ.get("DEFER", "1") == "1":
        if os.environ.get("DEF0", "1") == "1":
            k.e("s_cmp_eq_u32 s30, 3", f"s_mov_b32 s35, {LDS_CNT + 20}", f"s_cselect_b32 s35, {LDS_CNT + 16}, s35")
            lds_wait(k, "s35", 4, "t2", sleep=4)
        else:
            lds_wait(k, LDS_CNT + 20, 4, "t2", sleep=4)
    k.e("v_and_b32 v12, 7, v1", "v_lshlrev_b32 v12, 3, v12")
    k.e("s_cmp_lg_u32 s30, 11", "s_cbranch_scc1 mega_r_ns", f"s_sleep {os.environ.get('RS0', '4')}")
    k.label("mega_r_ns")
    poll(k, 12, 38, 14, "r", sleep=int(os.environ.get("RSP", "4")))
    k.e("v_mov_b32 v13, 1", "ds_write_b32 v10, v13", "s_waitcnt lgkmcnt(0)", "s_branch mega_fin")
    k.label("mega_red")
    k.e(
        "s_lshl_b32 s37, s36, 2", "s_lshl_b32 s39, s35, 1", "s_add_u32 s37, s37, s39",
        "s_lshl_b32 s39, s36, 1", "s_add_u32 s39, s39, 12", "s_cmp_eq_u32 s35, 2", "s_cselect_b32 s37, s39, s37",
        "s_lshr_b32 s39, s46, 2", "s_add_u32 s37, s37, s39",
        "s_and_b32 s39, s46, 3",
        "s_mul_i32 s34, s39, 18432", "s_lshl_b32 s41, s37, 10", "s_add_u32 s34, s34, s41")
    k.e("s_sub_u32 s41, s37, 12", "s_lshl_b32 s41, s41, 11", "s_cmp_ge_u32 s37, 15", "s_movk_i32 s42, 12288",
        f"s_cselect_b32 s42, {12288 + 18432 - 6144}, s42", "s_add_u32 s41, s41, s42", "s_lshr_b32 s42, s39, 1", "s_mul_i32 s42, s42, 36864",
        "s_add_u32 s41, s41, s42", "s_and_b32 s42, s39, 1", "s_lshl_b32 s42, s42, 3", "s_add_u32 s41, s41, s42",
        "s_mov_b32 s43, s35", "s_cmp_eq_u32 s35, 2", "s_cselect_b32 s34, s41, s34", "s_cselect_b32 s42, 1024, 8",
        "s_add_u32 s33, s33, s34", "s_add_u32 s42, s42, s33")
    k.e("s_lshl_b32 s35, s37, 2", "s_add_u32 s35, s35, s39", "s_lshl_b32 s35, s35, 10", "v_add_u32 v13, s35, v11",
        f"ds_read_b128 {r4(WR+32)}, v13")
    srd(k, 20, 14, XB)
    k.e("s_lshl_b32 s35, s47, 2", "s_add_u32 s35, s35, s39", "s_mul_i32 s35, s35, 18432", "s_lshl_b32 s37, s37, 6",
        "s_add_u32 s37, s37, s35", "s_movk_i32 s35, 1152", "v_mul_u32_u24 v9, s35, v2", "v_lshl_add_u32 v9, v3, 4, v9")
    k.e("v_mov_b32 v5, 0x00003f80", "v_mov_b32 v6, 0x3f800000")
    for i in range(8):
        k.e(f"v_mov_b32 v{ACC+i}, 0")
    k.e(f"s_mov_b32 s3, {SPIN*8}")
    k.label("mega_lspin")
    k.e("ds_read_b32 v14, v10", "s_waitcnt lgkmcnt(0)", "v_readfirstlane_b32 s38, v14", "s_cmp_lg_u32 s38, 0", "s_cbranch_scc1 mega_lspind",
        "s_sleep 2", "s_sub_u32 s3, s3, 1", "s_cbranch_scc0 mega_lspin")
    k.label("mega_lspind")
    stt(k, 5)
    k.e("s_cmp_eq_u32 s43, 2", "s_cbranch_scc1 mega_ld_s")
    for j in range(8):
        k.e(f"buffer_load_dwordx4 {r4(WR+4*j)}, v11, s[16:19], s33 offen sc1", f"s_add_u32 s33, s33, {XB}")
    k.e("s_branch mega_ld_o")
    k.label("mega_ld_s")
    for j in range(8):
        k.e(f"buffer_load_dwordx2 v[{WR+4*j}:{WR+4*j+1}], v11, s[16:19], s33 offen sc1", f"s_add_u32 s33, s33, {XB}")
    for j in range(8):
        k.e(f"buffer_load_dwordx2 v[{WR+4*j+2}:{WR+4*j+3}], v11, s[16:19], s42 offen sc1", f"s_add_u32 s42, s42, {XB}")
    k.label("mega_ld_o")
    k.e("s_waitcnt lgkmcnt(0)")
    for i in range(4):
        k.e(f"v_lshlrev_b32 v{ACC+8+2*i}, 16, v{WR+32+i}", f"v_and_b32 v{ACC+9+2*i}, 0xffff0000, v{WR+32+i}")
    for j in range(8):
        k.e(f"s_waitcnt vmcnt({7-j})")
        for i in range(4):
            k.e(f"v_dot2c_f32_bf16 v{ACC+2*i}, v{WR+4*j+i}, v5", f"v_dot2c_f32_bf16 v{ACC+2*i+1}, v{WR+4*j+i}, v6")
    stt(k, 6)
    k.e("s_cmp_eq_u32 s43, 2", "s_cbranch_scc1 mega_red_s")
    for i in range(8):
        k.e(f"v_fma_f32 v{ACC+8+i}, v{ACC+i}, v8, v{ACC+8+i}")
    k.e("s_branch mega_red_o")
    k.label("mega_red_s")
    for i in range(8):
        k.e(f"v_fma_f32 v{ACC+8+i}, v{ACC+(i//2)+4*(i%2)}, v8, v{ACC+8+i}")
    k.label("mega_red_o")
    for i in range(4):
        k.e(f"v_cvt_pk_bf16_f32 v{XB0+i}, v{ACC+8+2*i}, v{ACC+9+2*i}")
    k.e(f"buffer_store_dwordx4 {r4(XB0)}, v9, s[20:23], s37 offen")
    k.label("mega_fin")
    k.stamp_flush(1, 10, 16, 30, wpw=16)
    if os.environ.get("DBGOUT"):
        k.e("s_cmp_lg_u32 s2, 5", "s_cbranch_scc1 mega_end", "s_cmp_lg_u32 s30, 8", "s_cbranch_scc1 mega_end",
            "s_load_dwordx2 s[4:5], s[0:1], 72", "s_waitcnt lgkmcnt(0)", "s_nop 0")
        srd(k, 20, 4, 256)
        for i in range(1, 9):
            k.e(f"s_sub_u32 s34, s{81+2*i}, s81", "v_mov_b32 v4, s34", f"buffer_store_dword v4, v0, s[20:23], 0 offen offset:{4*i-4}",
                f"s_sub_u32 s34, s{80+2*i}, s80", "v_mov_b32 v5, s34", f"buffer_store_dword v5, v0, s[20:23], 0 offen offset:{4*i+28}", "s_waitcnt vmcnt(0)")
    k.e("s_endpgm")
    k.label("ffn_ep1")
    k.e("s_waitcnt lgkmcnt(0)")
    k.e("s_lshl_b32 s34, s30, 12", f"s_add_u32 s34, s34, {LDS_H}", "v_add_u32 v12, s34, v11")
    k.e("s_lshr_b32 s34, s30, 1", "s_lshl_b32 s34, s34, 12", "s_and_b32 s35, s30, 1", "s_lshl_b32 s35, s35, 3",
        "s_add_u32 s34, s34, s35", f"s_add_u32 s34, s34, {LDS_H + 49152}", "v_add_u32 v13, s34, v11")
    for mb in range(4):
        d = XB0 + 4 * mb
        a, b = acc(0, mb), acc(1, mb)
        for i in range(4):
            k.e(f"v_cvt_pk_bf16_f32 v{d+i}, v{a+i}, v{b+i}")
        for i in range(4):
            k.e(f"v_pk_max_i16 v{d+i}, v{d+i}, 0")
        k.e(f"ds_write_b128 v12, {r4(d)} offset:{mb*1024}")
    for mb in range(4):
        a = acc(2, mb)
        d = XB0 + 16 + 2 * mb
        k.e(f"v_cvt_pk_bf16_f32 v{d}, v{a}, v{a+1}", f"v_cvt_pk_bf16_f32 v{d+1}, v{a+2}, v{a+3}",
            f"v_pk_max_i16 v{d}, v{d}, 0", f"v_pk_max_i16 v{d+1}, v{d+1}, 0",
            f"ds_write_b64 v13, v[{d}:{d+1}] offset:{mb*1024}")
    for r in range(ACC, ACC + 16 * T):
        k.e(f"v_mov_b32 v{r}, 0")
    if os.environ.get("NOPRIO"):
        k.e("s_branch ffn_pr2")
    k.e("s_cmp_lt_u32 s30, 4", "s_cbranch_scc0 ffn_pr1", "s_setprio 2")
    k.label("ffn_pr1")
    k.e("s_and_b32 s34, s30, 12", "s_cmp_eq_u32 s34, 4", "s_cbranch_scc0 ffn_pr2", "s_setprio 1")
    k.label("ffn_pr2")
    k.e("s_waitcnt lgkmcnt(0)", "s_barrier")
    stb(k, 7)
    k.e("s_branch ffn_start")


def tr_addr(k, base0, base1, stride, extra_sgpr=None):
    k.e("v_lshrrev_b32 v32, 2, v2",
        "v_and_b32 v33, 1, v3", "v_lshlrev_b32 v33, 2, v33", "v_add_u32 v32, v32, v33",
        "v_lshl_add_u32 v32, v3, 3, v32", "v_xor_b32 v33, 4, v32", f"s_movk_i32 s40, {stride}",
        "v_and_b32 v34, 3, v2", "v_lshlrev_b32 v34, 3, v34", f"v_add_u32 v34, {base0}, v34")
    if extra_sgpr is not None:
        k.e(f"v_add_u32 v34, s{extra_sgpr}, v34")
    k.e("v_mad_u32_u24 v28, v32, s40, v34", "v_mad_u32_u24 v29, v33, s40, v34")
    if base1 is not None:
        k.e(f"v_add_u32 v30, {base1 - base0}, v28", f"v_add_u32 v31, {base1 - base0}, v29")


def x_read_addr(k, v, slot_sgpr):
    k.e(f"v_lshrrev_b32 v{v}, 2, v2", f"v_sub_u32 v{v}, 4, v{v}", f"v_and_b32 v{v}, 3, v{v}", f"v_xor_b32 v{v}, v{v}, v3",
        f"v_lshlrev_b32 v{v}, 4, v{v}", f"v_lshl_add_u32 v{v}, v2, 6, v{v}")
    if slot_sgpr is None:
        k.e(f"v_add_u32 v{v}, {A_X}, v{v}")
    else:
        k.e(f"v_add_u32 v{v}, s{slot_sgpr}, v{v}")


def get_nonce(k):
    k.e(f"v_mov_b32 v12, {LDS_NON}", "ds_read_b64 v[14:15], v12", "s_waitcnt lgkmcnt(0)",
        "v_readfirstlane_b32 s66, v14", "v_readfirstlane_b32 s67, v15")


def wq_rd(k, t, s, wf, b, par=False):
    ss = 4 * s if par else s
    a0, a1 = (28, 29) if ss < 8 else (30, 31)
    off = (ss if ss < 8 else ss - 8) * 5120 + 32 * t
    k.e(f"ds_read_b64_tr_b16 v[{wf+4*b}:{wf+4*b+1}], v{a0} offset:{off}",
        f"ds_read_b64_tr_b16 v[{wf+4*b+2}:{wf+4*b+3}], v{a1} offset:{off}")


QCH = [(0, 8), (8, 12), (12, 18)]


def a_qwave(k):
    k.e("s_setprio 2")
    k.e("s_sub_u32 s34, s30, s29", "s_and_b32 s34, s34, 3", "s_mul_i32 s43, s34, 18432", f"s_add_u32 s43, s43, {A_X}",
        "s_lshl_b32 s35, s28, 2", "s_add_u32 s35, s35, s30", "s_mul_i32 s35, s35, 18432", "s_lshl_b32 s36, s48, 6")
    k.e("v_lshrrev_b32 v5, 2, v1", "v_sub_u32 v6, 4, v3", "v_xor_b32 v6, v6, v1", "v_and_b32 v6, 3, v6",
        "s_movk_i32 s41, 1152", "v_mul_u32_u24 v5, s41, v5", "v_lshl_add_u32 v4, v6, 4, v5", "v_add_u32 v4, s35, v4")
    k.e("s_cmp_eq_u32 s34, 0", "s_cbranch_scc1 a_q_first", "s_barrier")
    k.label("a_q_first")
    for s in range(18):
        k.e(f"s_add_u32 m0, s43, {s*1024}", "s_nop 0", "buffer_load_dwordx4 v4, s[20:23], s36 offen lds",
            "s_add_u32 s36, s36, 64", "s_cmp_eq_u32 s36, s41", "s_cselect_b32 s36, 0, s36")
    k.e("s_cmp_lg_u32 s34, 0", "s_cbranch_scc1 a_q_second", "s_barrier")
    k.label("a_q_second")
    tr_addr(k, A_WQ0, A_WQ1, 160)
    x_read_addr(k, 35, 43)
    for r in range(QACC, QACC + 20):
        k.e(f"v_mov_b32 v{r}, 0")
    for b in QACS:
        for i in range(4):
            k.e(f"v_mov_b32 v{b+i}, 0")
    for i in range(4):
        k.e(f"v_mov_b32 v{QONES+i}, 0x3f803f80")
    k.e("v_mov_b32 v6, 0", "v_mov_b32 v7, 0")
    for part in range(3):
        k.e(f"s_waitcnt vmcnt({18 - 6*(part+1)})")
        if part == 2:
            k.e("s_cmp_lg_u32 s34, 0", "s_cbranch_scc1 a_q_nosig")
            lds_signal(k, LDS_KVI)
            k.label("a_q_nosig")
        for s in range(6 * part, 6 * part + 6):
            k.e(f"ds_read_b128 {r4(QX0+4*s)}, v35 offset:{1024*s}")
        if part:
            k.e("s_waitcnt lgkmcnt(6)")
            for r in range(QX0 + 24 * (part - 1), QX0 + 24 * part):
                k.e(f"v_dot2c_f32_bf16 v6, v{r}, v{QONES}", f"v_dot2c_f32_bf16 v7, v{r}, v{r}")
    k.e("s_waitcnt lgkmcnt(0)")
    lds_signal(k, LDS_XC)
    k.stamp(1)
    for r in range(QX0 + 48, QX0 + 72):
        k.e(f"v_dot2c_f32_bf16 v6, v{r}, v{QONES}", f"v_dot2c_f32_bf16 v7, v{r}, v{r}")
    reduce_g_add(k, [6, 7], [32, 33])
    k.e(f"v_mul_f32 v6, {hex(f2u(1/576))}, v6", f"v_mul_f32 v7, {hex(f2u(1/576))}, v7",
        "v_fma_f32 v7, -v6, v6, v7", "v_max_f32 v7, 0, v7", f"v_add_f32 v7, {hex(f2u(1e-5))}, v7", "v_rsq_f32 v7, v7")
    k.e("s_cmp_lg_u32 s34, 0", "s_cbranch_scc1 a_q_nost")
    k.e("v_lshlrev_b32 v32, 2, v2", f"v_add_u32 v32, {A_ST}, v32", "ds_write_b32 v32, v6", "ds_write_b32 v32, v7 offset:64",
        "s_waitcnt lgkmcnt(0)")
    lds_signal(k, LDS_KVS)
    k.label("a_q_nost")
    k.e(f"v_mul_f32 v34, {hex(f2u(QSCALE))}, v7")
    k.e("s_mul_i32 s35, s30, 2304", f"s_add_u32 s35, s35, {LDS_OST}", "v_lshrrev_b32 v35, 1, v3", "v_lshlrev_b32 v35, 8, v35",
        "v_lshl_add_u32 v35, v2, 4, v35", "v_and_b32 v32, 1, v3", "v_lshl_add_u32 v35, v32, 3, v35", "v_add_u32 v35, s35, v35")
    sta(k, 3)
    k.label("a_q_gemm")
    for ci, (s0, s1) in enumerate(QCH):
        k.e("s_cmp_ge_u32 s30, 4", f"s_cbranch_scc1 mega_lwd_q{ci}")
        lds_wait(k, LDS_WQC + 4 * ci, 4, f"q{ci}")
        def rd2(t, s, b):
            a0, a1 = (28, 29) if s < 8 else (30, 31)
            off = (s if s < 8 else s - 8) * 5120 + 32 * t
            return [f"ds_read_b64_tr_b16 v[{QWF+4*b}:{QWF+4*b+1}], v{a0} offset:{off}",
                    f"ds_read_b64_tr_b16 v[{QWF+4*b+2}:{QWF+4*b+3}], v{a1} offset:{off}"]
        roll_gemm2(k, list(range(s0, s1)), rd2,
                   lambda t, s, b: [f"v_mfma_f32_16x16x32_bf16 {r4(QACC+4*t)}, {r4(QWF+4*b)}, {r4(QX0+4*s)}, {r4(QACC+4*t)}",
                                    f"v_mfma_f32_16x16x32_bf16 {r4(QACS[t])}, {r4(QWF+4*b)}, {r4(QONES)}, {r4(QACS[t])}"])
    k.e("s_cmp_ge_u32 s30, 4", "s_cbranch_scc1 a_s_done")
    sta(k, 7)
    k.e("s_setprio 3")
    lds_signal(k, LDS_WDN)
    sta(k, 8)
    for t in range(5):
        a = QACC + 4 * t
        for i in range(4):
            k.e(f"v_fma_f32 v{a+i}, -v6, v{QACS[t]+i}, v{a+i}")
        for i in range(4):
            k.e(f"v_mul_f32 v{a+i}, v34, v{a+i}")
        k.e(f"v_cvt_pk_bf16_f32 v{QWF+2*t}, v{a}, v{a+1}", f"v_cvt_pk_bf16_f32 v{QWF+2*t+1}, v{a+2}, v{a+3}")
        if t == 4:
            k.e(ex(0xffffffff))
        k.e(f"ds_write_b64 v35, v[{QWF+2*t}:{QWF+2*t+1}] offset:{512*t}")
    k.e("s_lshr_b32 s35, s30, 1", "s_lshl_b32 s35, s35, 2", f"s_add_u32 s35, s35, {LDS_QRD}", "v_mov_b32 v12, s35", "v_mov_b32 v13, 1",
        ex(1), "ds_add_u32 v12, v13", ex(-1))


def wkv_rd(k, s, wf):
    for t in range(2):
        off = s * 1536 + 32 * t
        k.e(f"ds_read_b64_tr_b16 v[{wf+4*t}:{wf+4*t+1}], v28 offset:{off}",
            f"ds_read_b64_tr_b16 v[{wf+4*t+2}:{wf+4*t+3}], v29 offset:{off}")


def a_wkv_dma(k):
    k.e("s_cmp_lt_u32 s29, 4", "s_cselect_b32 s20, s70, s72", "s_cselect_b32 s21, s71, s73", f"s_mov_b32 s22, {WKB}", "s_mov_b32 s23, 0x00020000")
    k.e("s_movk_i32 s40, 21846")
    for i in range(3):
        k.e(f"v_add_u32 v32, {64*i}, v1", "v_mul_u32_u24 v33, s40, v32", "v_lshrrev_b32 v33, 16, v33", "v_mul_u32_u24 v34, 3, v33",
            "v_sub_u32 v34, v32, v34", "v_lshlrev_b32 v34, 4, v34", "v_min_u32 v34, 20, v34",
            "v_and_b32 v35, 8, v33", "v_lshrrev_b32 v35, 1, v35", "v_xor_b32 v35, v35, v33", f"v_mad_u32_u24 v{16+i}, v35, 36, v34")
    k.e("s_sub_u32 s34, s30, 4", "s_mul_i32 s34, s34, 3", "s_mul_i32 s43, s34, 3072", "s_lshr_b32 s35, s48, 1", "s_add_u32 s35, s35, s34",
        "s_sub_u32 s36, s35, 9", "s_min_u32 s35, s35, s36", "s_mul_i32 s35, s35, 2304")
    for g in range(3):
        for i in range(3):
            k.e(f"s_add_u32 m0, s43, {A_WKV + g*3072 + i*1024}", "s_nop 0", f"buffer_load_dwordx4 v{16+i}, s[20:23], s35 offen lds")
        k.e("s_add_u32 s35, s35, 2304", f"s_cmp_eq_u32 s35, {9*2304}", "s_cselect_b32 s35, 0, s35")


def a_kvwave(k):
    k.e("s_setprio 3")
    a_wkv_dma(k)
    k.e("s_barrier")
    tr_addr(k, A_WKV, None, 48)
    x_read_addr(k, 35, None)
    for r in range(QACC, QACC + 8):
        k.e(f"v_mov_b32 v{r}, 0")
    k.e("s_lshr_b32 s41, s28, 1", f"s_mul_i32 s41, s41, {GRP}", f"s_add_u32 s41, s41, {WS_KV}",
        "s_and_b32 s42, s28, 1", "s_lshl_b32 s42, s42, 1", "s_bfe_u32 s43, s29, 0x10001", "s_add_u32 s42, s42, s43",
        "s_and_b32 s43, s29, 1",
        "s_lshl_b32 s49, s28, 7", "s_lshl_b32 s34, s29, 3", "s_add_u32 s49, s49, s34", f"s_add_u32 s49, s49, {FK}")
    k.e("s_waitcnt vmcnt(0)")
    lds_signal(k, LDS_WKI)
    lds_wait(k, LDS_KVI, 3, "kvi")
    k.stamp(1)
    k.e("s_cmp_ge_u32 s29, 4", "s_cbranch_scc1 a_kv_v")
    for isv in (False, True):
        if isv:
            k.label("a_kv_v")

        def rd(s):
            b = s % 3
            k.e(f"ds_read_b128 {r4(QX0+4*b)}, v35 offset:{1024*s}")
            wkv_rd(k, s, QX0 + 12 + 8 * b)
        rd(0)
        rd(1)
        for s in range(18):
            b = s % 3
            if s + 2 < 18:
                rd(s + 2)
            k.e(f"s_waitcnt lgkmcnt({min(10, 5*(17-s))})")
            for t in range(2):
                a, w, x = r4(QACC + 4 * t), r4(QX0 + 12 + 8 * b + 4 * t), r4(QX0 + 4 * b)
                k.e(f"v_mfma_f32_16x16x32_bf16 {a}, {x}, {w}, {a}" if isv else f"v_mfma_f32_16x16x32_bf16 {a}, {w}, {x}, {a}")
        sta(k, 3)
        lds_wait(k, LDS_KVS, 2, "kv" + ("v" if isv else "k"))
        sta(k, 4)
        A = QACC
        if not isv:
            k.e("v_lshlrev_b32 v32, 4, v3", f"v_add_u32 v32, {A_SKV}, v32", "v_lshlrev_b32 v33, 2, v2", f"v_add_u32 v33, {A_ST}, v33",
                "ds_read_b128 v[16:19], v32", "ds_read_b128 v[20:23], v32 offset:64", "ds_read_b32 v6, v33", "ds_read_b32 v7, v33 offset:64")
            k.e("s_lshl_b32 s38, s43, 8", "v_lshlrev_b32 v36, 4, v2", "v_add_u32 v36, s38, v36",
                "v_lshrrev_b32 v37, 1, v3", "v_lshl_add_u32 v37, v37, 9, v36",
                "s_lshl_b32 s38, s42, 10", "s_add_u32 s38, s38, s41",
                "s_lshl_b32 s39, s42, 2", "s_add_u32 s39, s39, s41", f"s_add_u32 s39, s39, {KV_K2}")
            k.e("s_waitcnt lgkmcnt(0)")
            for i in range(8):
                k.e(f"v_fma_f32 v{A+i}, -v6, v{16+i}, v{A+i}")
            for i in range(8):
                k.e(f"v_mul_f32 v{A+i}, v7, v{A+i}")
            k.e(f"v_cvt_pk_bf16_f32 v40, v{A}, v{A+1}", f"v_cvt_pk_bf16_f32 v41, v{A+2}, v{A+3}", f"v_cvt_pk_bf16_f32 v44, v{A+6}, v{A+7}")
            k.e("v_permlane16_swap_b32 v40, v42", "v_permlane16_swap_b32 v41, v43")
            k.e(ex(0x0000ffff0000ffff), "buffer_store_dwordx4 v[40:43], v37, s[16:19], s38 offen sc1",
                ex(0xffff0000), "buffer_store_dword v44, v36, s[16:19], s39 offen sc1", ex(-1))
            k.e("s_or_b32 s39, s42, s28", "s_cmp_lg_u32 s39, 0", "s_cbranch_scc1 a_kv_nod", f"s_add_u32 s38, s38, {IMG}",
                ex(0x0000ffff0000ffff), "buffer_store_dwordx4 v[40:43], v37, s[16:19], s38 offen sc1", ex(-1))
            k.label("a_kv_nod")
            k.e("s_or_b32 s38, s42, s43", "s_cmp_lg_u32 s38, 0", "s_cbranch_scc1 a_kv_noc")
            k.e("v_mov_b32 v24, 0x3f803f80", "v_mov_b32 v25, 0x00003f80", "v_mov_b32 v26, 0x3f803f80", "v_mov_b32 v27, 0x00003f80",
                "v_mov_b32 v12, 0", f"s_add_u32 s38, s41, {KV_K2 + 512}", ex(1), "buffer_store_dwordx4 v[24:27], v12, s[16:19], s38 offen sc1", ex(-1))
            k.label("a_kv_noc")
            k.e(f"v_mul_f32 v45, v{A+6}, v{A+6}", f"v_fmac_f32 v45, v{A+7}, v{A+7}",
                "v_cmp_eq_u32 vcc, 1, v3", "v_cndmask_b32 v45, 0, v45, vcc")
            for i in range(4):
                k.e(f"v_fmac_f32 v45, v{A+i}, v{A+i}")
            reduce_g_add(k, [45], [46])
            for sh in (8, 4, 2, 1):
                k.e(f"v_max_f32_dpp v45, v45, v45 row_ror:{sh} row_mask:0xf bank_mask:0xf")
            k.e("s_branch a_kv_pub")
        else:
            k.e("v_lshlrev_b32 v32, 2, v2", f"v_add_u32 v32, {A_SKV}, v32", "v_lshlrev_b32 v33, 4, v3", f"v_add_u32 v33, {A_ST}, v33",
                "ds_read_b32 v6, v32", "ds_read_b32 v7, v32 offset:64", "ds_read_b128 v[16:19], v33", "ds_read_b128 v[20:23], v33 offset:64")
            k.e("s_mul_i32 s38, s42, 1216", "s_mul_i32 s39, s43, 608", "s_add_u32 s38, s38, s39", "s_add_u32 s38, s38, s41",
                f"s_add_u32 s38, s38, {KV_V}", "s_movk_i32 s39, 304", "v_and_b32 v36, 1, v3", "v_mul_u32_u24 v37, s39, v36",
                "v_lshl_add_u32 v37, v2, 4, v37", "v_lshrrev_b32 v36, 1, v3", "s_movk_i32 s39, 160", "v_mad_u32_u24 v37, v36, s39, v37")
            k.e("s_waitcnt lgkmcnt(0)")
            for t in range(2):
                for i in range(4):
                    k.e(f"v_fma_f32 v{A+4*t+i}, -v{16+i}, v{6+t}, v{A+4*t+i}")
                for i in range(4):
                    k.e(f"v_mul_f32 v{A+4*t+i}, v{20+i}, v{A+4*t+i}")
            for i in range(4):
                k.e(f"v_cvt_pk_bf16_f32 v{40+i}, v{A+2*i}, v{A+2*i+1}")
            k.e("v_mov_b32 v39, 0x3f803f80", "v_cmp_eq_u32 vcc, 8, v2", "v_cndmask_b32 v42, v42, v39, vcc", "v_cndmask_b32 v43, v43, v39, vcc")
            k.e("v_permlane32_swap_b32 v40, v42", "v_permlane32_swap_b32 v41, v43")
            k.e(ex(0x01c001c0ffffffff), "buffer_store_dwordx4 v[40:43], v37, s[16:19], s38 offen sc1", ex(-1), "v_mov_b32 v45, 0")
    k.label("a_kv_pub")
    sta(k, 5)
    lds_wait(k, LDS_NON, 1, "non")
    get_nonce(k)
    k.e("v_mov_b32 v44, s66", "v_mov_b32 v12, 0", "s_waitcnt vmcnt(0)")
    sta(k, 6)
    k.e(ex(1), "buffer_store_dwordx2 v[44:45], v12, s[16:19], s49 offen sc1", ex(-1))
    k.e("s_waitcnt vmcnt(0)")
    lds_signal(k, LDS_KVS)
    sta(k, 7)
    sta(k, 8)


def a_swave(k):
    k.e("s_setprio 3")
    k.e("s_cmp_eq_u32 s30, 7", "s_cbranch_scc1 a_s_7")
    a_wkv_dma(k)
    k.e("s_barrier", "s_branch a_s_c")
    k.label("a_s_7")
    if os.environ.get("PFC", "1") == "1":
        k.e("s_mul_i32 s34, s47, 1536", "v_min_u32 v12, 11, v1", "v_lshlrev_b32 v12, 7, v12", "v_add_u32 v12, s34, v12",
            f"v_min_u32 v12, CODE_BYTES - 4, v12", "global_load_dword v18, v12, s[62:63]")
    srd(k, 56, 74, 256)
    k.e("v_mov_b32 v10, 0", "s_cmp_lg_u32 s2, 0", "s_cbranch_scc1 a_s_nn")
    k.e("s_memrealtime s[60:61]", "s_waitcnt lgkmcnt(0)", "s_or_b32 s60, s60, 1", "v_mov_b32 v14, s60", "v_mov_b32 v15, s61", ex(1),
        "buffer_store_dwordx2 v[14:15], v10, s[56:59], 0 offen sc1", ex(-1))
    k.label("a_s_nn")
    k.e("v_min_u32 v12, 35, v1", "v_lshlrev_b32 v12, 2, v12", f"v_add_u32 v12, {LDS_RDY}, v12", "v_mov_b32 v13, 0",
        "ds_write_b32 v12, v13", "v_lshlrev_b32 v12, 2, v1", f"v_add_u32 v12, {A_SQ}, v12", "ds_write_b32 v12, v13", "ds_write_b32 v12, v13 offset:64",
        "s_waitcnt lgkmcnt(0)")
    if os.environ.get("TOUCH", "0") == "1":
        k.e("buffer_load_dword v18, v10, s[56:59], 0 offen sc1", f"s_mov_b32 s34, {FK}", "buffer_load_dword v19, v10, s[16:19], s34 offen sc1",
            f"s_mov_b32 s34, {WS_KV}", "buffer_load_dword v20, v10, s[16:19], s34 offen sc1")
    k.e("s_barrier")
    sta(k, 4)
    sta(k, 5)
    sta(k, 6)
    sta(k, 7)
    sta(k, 8)
    k.e(f"s_mov_b32 s3, {SPIN}", f"s_sleep {os.environ.get('NSL', '4')}")
    k.label("a_s_np")
    k.e("buffer_load_dwordx2 v[14:15], v10, s[56:59], 0 offen sc1", "s_sleep 4", "buffer_load_dwordx2 v[16:17], v10, s[56:59], 0 offen sc1",
        "s_waitcnt vmcnt(1)", "v_readfirstlane_b32 s39, v14", "s_cmp_lg_u32 s39, 0", "s_cbranch_scc1 a_s_nd",
        "s_waitcnt vmcnt(0)", "v_mov_b32 v14, v16", "v_mov_b32 v15, v17", "v_readfirstlane_b32 s39, v16", "s_cmp_lg_u32 s39, 0", "s_cbranch_scc1 a_s_nd",
        "s_sub_u32 s3, s3, 1", "s_cbranch_scc0 a_s_np")
    k.label("a_s_nd")
    k.e(f"v_mov_b32 v12, {LDS_NON}", "ds_write_b64 v12, v[14:15]")
    k.label("a_s_c")
    for i in range(4):
        k.e(f"v_mov_b32 v{QONES+i}, 0x3f803f80")
    for r in range(QACC, QACC + 20):
        k.e(f"v_mov_b32 v{r}, 0")
    k.e("s_cmp_lg_u32 s30, 5", "s_cbranch_scc1 a_s_q")
    tr_addr(k, A_WKV, None, 48)
    k.e("s_waitcnt vmcnt(0)")
    lds_signal(k, LDS_KVI)
    lds_signal(k, LDS_WKI)
    lds_wait(k, LDS_WKI, 3, "wki")
    k.stamp(1)
    wkv_rd(k, 0, QX0)
    wkv_rd(k, 1, QX0 + 8)
    for s in range(18):
        if s + 2 < 18:
            wkv_rd(k, s + 2, QX0 + 8 * ((s + 2) % 3))
        k.e(f"s_waitcnt lgkmcnt({min(8, 4*(17-s))})")
        for t in range(2):
            a = r4(QACC + 4 * t)
            k.e(f"v_mfma_f32_16x16x32_bf16 {a}, {r4(QONES)}, {r4(QX0+8*(s%3)+4*t)}, {a}")
    k.e("v_lshlrev_b32 v32, 2, v2", f"v_add_u32 v32, {A_SKV}, v32", f"ds_write_b32 v32, v{QACC}", f"ds_write_b32 v32, v{QACC+4} offset:64",
        "s_waitcnt lgkmcnt(0)")
    lds_signal(k, LDS_KVS)
    k.e("s_branch a_s_done")
    k.label("a_s_q")
    k.e("s_cmp_eq_u32 s30, 7", "s_cbranch_scc1 a_s_nx", "s_waitcnt vmcnt(0)")
    lds_signal(k, LDS_KVI)
    lds_signal(k, LDS_WKI)
    if os.environ.get("DRY", "0") == "1":
        k.stamp(1)
        tr_addr(k, A_WQ0, A_WQ1, 160)
        k.e("s_setprio 0", "s_branch a_q_gemm")
    k.label("a_s_nx")
    k.stamp(1)
    k.label("a_s_done")
    k.e("s_waitcnt vmcnt(0)")


def a_helper(k):
    k.e("s_setprio 1", "s_sub_u32 s31, s30, 8")
    srd(k, 20, 68, WQB)
    if os.environ.get("PFQ", "1") == "1":
        k.e("s_cmp_lg_u32 s31, 0", "s_cbranch_scc1 a_h_nopf",
            "v_min_u32 v12, 20, v1", "v_lshlrev_b32 v12, 7, v12", "s_mul_i32 s34, s2, 2592", "s_and_b32 s34, s34, 0xffffff80",
            "buffer_load_dword v21, v12, s[20:23], s34 offen")
        k.label("a_h_nopf")
    k.e("s_movk_i32 s40, 6554", "s_movk_i32 s41, 1152")
    for i in range(5):
        dma_slot_calc(k, i, 32, 33, 34, 35)
        k.e("v_min_u32 v34, 8, v34", f"v_mul_u32_u24 v{16+i}, s41, v35", f"v_lshl_add_u32 v{16+i}, v34, 4, v{16+i}")
    k.e("s_add_u32 s42, s31, s48", "s_mul_i32 s32, s29, 144", "s_mul_i32 s43, s31, 5120")

    def wdma(base):
        k.e("s_sub_u32 s36, s42, 18", "s_min_u32 s42, s42, s36", "s_mul_i32 s36, s42, 36864", "s_add_u32 s36, s36, s32")
        for i in range(5):
            k.e(f"s_add_u32 m0, s43, {base + i*1024}", "s_nop 0", f"buffer_load_dwordx4 v{16+i}, s[20:23], s36 offen lds")
        k.e("s_add_u32 s42, s42, 4")
    k.e("s_barrier", f"s_sleep {os.environ.get('HSL', '8')}")
    wdma(A_WQ0)
    wdma(A_WQ0 + 20480)
    k.e("s_waitcnt vmcnt(0)")
    lds_signal(k, LDS_WQC)
    sta(k, 3)
    lds_wait(k, LDS_XC, 4, "xc")
    k.e("s_setprio 3")
    k.stamp(1)
    wdma(A_WQ1)
    wdma(A_WQ1 + 20480)
    k.e("s_cmp_ge_u32 s31, 2", "s_cbranch_scc1 a_h_skip")
    wdma(A_WQ1 + 40960)
    k.label("a_h_skip")
    for ci, n in ((1, 5), (2, 0)):
        k.e(f"s_waitcnt vmcnt({n})")
        lds_signal(k, LDS_WQC + 4 * ci)
        sta(k, 3 + ci)
    lds_wait(k, LDS_KVS, 3, "pub")
    get_nonce(k)
    sta(k, 6)
    k.e("v_lshrrev_b32 v10, 3, v1", "v_lshlrev_b32 v10, 7, v10", "v_and_b32 v9, 7, v1", "v_lshl_add_u32 v10, v9, 3, v10",
        "s_lshl_b32 s34, s31, 10", f"s_add_u32 s35, s34, {FK}")
    k.e(f"s_sleep {os.environ.get('KS0', '10')}")
    poll(k, 10, 35, 14, "k", sleep=int(os.environ.get("KSL", "8")), lo_only=True)
    sta(k, 7)
    k.e(f"v_mov_b32 v12, {LDS_KMX}", "ds_max_u32 v12, v15")
    lds_signal(k, LDS_KVR)
    k.e("s_lshr_b32 s35, s2, 3", "s_add_u32 s35, s35, s2", "s_and_b32 s35, s35, 15", f"s_mul_i32 s35, s35, {GRP}", "s_add_u32 s35, s35, s34",
        f"v_add_u32 v10, {WS_KV}, v11")
    lds_wait(k, LDS_KVR, 4, "kvr")
    k.e("s_or_b32 s36, s2, s31", "s_cmp_lg_u32 s36, 0", "s_cbranch_scc1 a_h_noclr")
    srd(k, 56, 74, 256)
    k.e("v_mov_b32 v12, 0", "v_mov_b32 v13, 0", ex(1), "buffer_store_dwordx2 v[12:13], v12, s[56:59], 0 offen sc1", ex(-1))
    k.label("a_h_noclr")
    sta(k, 8)
    kv_dma(k, 0, 7)


def gen_one(name):
    k = Kernel(name, vgprs=168)
    k.e("s_getpc_b64 s[62:63]")
    k.label("mega_pc")
    k.e("s_cmp_ge_u32 s2, 256", "s_cbranch_scc1 mega_end")
    k.e("s_load_dwordx2 s[10:11], s[0:1], 0", "s_load_dwordx4 s[68:71], s[0:1], 8", "s_load_dwordx2 s[72:73], s[0:1], 24",
        "s_load_dwordx2 s[8:9], s[0:1], 32", "s_load_dwordx4 s[4:7], s[0:1], 48", "s_load_dwordx2 s[14:15], s[0:1], 64",
        "s_load_dwordx2 s[74:75], s[0:1], 72", "s_load_dwordx2 s[12:13], s[0:1], 80")
    k.stamp(0)
    k.e("v_and_b32 v1, 63, v0", "v_and_b32 v2, 15, v0", "v_bfe_u32 v3, v0, 4, 2", "v_lshrrev_b32 v7, 6, v0",
        "v_lshlrev_b32 v11, 4, v1", "v_readfirstlane_b32 s30, v7")
    k.e("s_and_b32 s46, s2, 7", "s_lshr_b32 s47, s2, 3", "s_and_b32 s28, s47, 24", "s_add_u32 s28, s28, s46", "s_and_b32 s29, s47, 7",
        "s_lshr_b32 s48, s47, 3", "s_lshl_b32 s48, s48, 1", "s_add_u32 s48, s48, s29", "s_sub_u32 s34, s48, 9", "s_min_u32 s48, s48, s34",
        "s_lshl_b32 s48, s48, 1")
    k.e("s_waitcnt lgkmcnt(0)")
    srd(k, 16, 12, WS_END)
    srd(k, 20, 10, XB)
    srd(k, 24, 8, WQB)
    k.e("s_cmp_ge_u32 s30, 8", "s_cbranch_scc1 mega_helper")
    k.e("s_cmp_ge_u32 s30, 5", "s_cbranch_scc1 a_sw", "s_cmp_eq_u32 s30, 4", "s_cbranch_scc1 a_kvw")
    a_qwave(k)
    k.e("s_branch a_done")
    k.label("a_kvw")
    a_kvwave(k)
    k.e("s_branch a_s_done")
    k.label("a_sw")
    a_swave(k)
    k.label("a_done")
    k.e("s_setprio 3")
    k.e("s_mov_b32 s52, 0")
    attention(k)
    k.e("s_cmp_lg_u32 s52, 0", "s_cbranch_scc1 mega_ringed")
    ffn_ring_start(k)
    k.label("mega_ringed")
    k.e("s_waitcnt vmcnt(0)")
    stb(k, 4)
    k.e("s_branch ffn_join")
    k.label("mega_helper")
    a_helper(k)
    helper_pack(k)
    oproj(k)
    ffn_ring_start(k)
    ffn(k)
    k.label("mega_end")
    k.e("s_endpgm", ".set CODE_BYTES, mega_end - mega_pc")
    return k
```

```python
import os
from asmlib import Kernel
from layout import *
from k_small import f2u, srd, ex, reduce_g_add, dma_slot_calc

S0, S1, OA, P, KF, V0, V1, K2F, Q, Q2E, Q2O = 16, 32, 48, 64, 72, 76, 80, 84, 88, 92, 94
T0 = 96
PIN, POUT, PS = 48, 96, 144
LDS_OST = 151808
LDS_RES = 92160
LDS_WO = 0
LDS_H = 73728
LDS_S = 161024
LDS_RDY = 163328
LDS_CNT = 163344
LDS_WQC = 163392
LDS_KVS = LDS_WQC + 12
LDS_KVR = LDS_WQC + 16
LDS_KMX = LDS_WQC + 20
LDS_KVI = LDS_WQC + 24
LDS_XC = LDS_WQC + 28
LDS_WKI = LDS_WQC + 32
LDS_REL = LDS_WQC + 36
LDS_NON = LDS_WQC + 40
LDS_ORD = LDS_WQC + 48
LDS_IMG = LDS_WQC + 52
LDS_MUS = LDS_WQC + 56
LDS_SRD = LDS_WQC + 60
LDS_QRD = LDS_WQC + 64
LDS_WDN = LDS_WQC + 72
LDS_IM0 = LDS_WQC + 76
LDS_MU = LDS_OST
LDS_MEGA = 163488
A_WKV = 0
A_WQ0 = 29696
A_X = 70656
A_WQ1 = A_X + 18432
A_SQ = LDS_S
A_SKV = LDS_S + 320
A_ST = LDS_S + 448
QX0, QACC, QWF, QONES = 48, 120, 140, 36
QACS = [16, 20, 24, 40, 44]
OX0, OACC, OWF = 96, 48, 68
XB0, ACC, WR = 16, 48, 96
D = 6
T = 3
STREAM = 36 * T * 1024
SPIN = 1 << 16
STA = bool(os.environ.get("STA"))


def sta(k, i):
    if STA:
        k.stamp(i)


STP = bool(os.environ.get("STP"))


def stb(k, i):
    if not STA and not STP and not (STT and i < 7) and not (STO and i > 6):
        k.stamp(i)


STT = bool(os.environ.get("STT"))


def stt(k, i):
    if STT:
        k.stamp(i)


STO = bool(os.environ.get("STO"))


def sto(k, i):
    if STO:
        k.stamp(i)


def stp(k, i):
    if STP:
        k.stamp(i)
WAUX = os.environ.get("WAUX", "sc1")


def r4(b):
    return f"v[{b}:{b+3}]"


def r16(b):
    return f"v[{b}:{b+15}]"


def poll(k, vaddr, soff, vtmp, tag, sleep=2, lo_only=False):
    lab, done = f"mega_poll_{tag}", f"mega_polld_{tag}"
    k.e(f"s_mov_b32 s3, {SPIN}")
    k.label(lab)
    k.e(f"s_sleep {sleep}", f"buffer_load_dwordx2 v[{vtmp}:{vtmp+1}], v{vaddr}, s[16:19], s{soff} offen sc1", "s_waitcnt vmcnt(0)")
    if lo_only:
        k.e(f"v_cmp_eq_u32 vcc, s66, v{vtmp}")
    else:
        k.e(f"v_cmp_eq_u64 vcc, s[66:67], v[{vtmp}:{vtmp+1}]")
    k.e("s_cmp_eq_u64 vcc, -1", f"s_cbranch_scc1 {done}", "s_sub_u32 s3, s3, 1", f"s_cbranch_scc0 {lab}")
    k.label(done)


def set_flag(k, soff):
    k.e("v_mov_b32 v12, 0", "v_mov_b32 v14, s66", "v_mov_b32 v15, s67", ex(1),
        f"buffer_store_dwordx2 v[14:15], v12, s[16:19], s{soff} offen sc1", ex(-1))


def lds_signal(k, addr, va=12, vb=13):
    k.e(f"v_mov_b32 v{va}, {addr}", f"v_mov_b32 v{vb}, 1", ex(1), f"ds_add_u32 v{va}, v{vb}", ex(-1))


def lds_wait(k, addr, n, tag, va=12, vb=13, sleep=int(os.environ.get("LWS", "1"))):
    lab, done = f"mega_lw_{tag}", f"mega_lwd_{tag}"
    k.e(f"v_mov_b32 v{va}, {addr}", f"s_mov_b32 s3, {SPIN*8}")
    k.label(lab)
    k.e(f"ds_read_b32 v{vb}, v{va}", "s_waitcnt lgkmcnt(0)", f"v_readfirstlane_b32 s39, v{vb}", f"s_cmp_ge_u32 s39, {n}",
        f"s_cbranch_scc1 {done}", f"s_sleep {sleep}", "s_sub_u32 s3, s3, 1", f"s_cbranch_scc0 {lab}")
    k.label(done)


def arrive(k, cnt, n, soff, tag, cnt_sgpr=None):
    if cnt_sgpr is None:
        k.e(f"v_mov_b32 v12, {LDS_CNT + 4*cnt}")
    else:
        k.e(f"v_mov_b32 v12, s{cnt_sgpr}")
    k.e("v_mov_b32 v13, 1", ex(1), "ds_add_rtn_u32 v14, v12, v13", ex(-1), "s_waitcnt lgkmcnt(0)",
        "v_readfirstlane_b32 s3, v14", f"s_cmp_lg_u32 s3, {n-1}", f"s_cbranch_scc1 mega_arr_{tag}")
    set_flag(k, soff)
    k.label(f"mega_arr_{tag}")


def publish_o(k, tag, pre=None):
    k.e("s_and_b32 s34, s30, 3", "s_lshr_b32 s35, s30, 2", "s_mul_i32 s36, s34, 2304", "s_mul_i32 s37, s35, 768",
        "s_add_u32 s36, s36, s37", f"s_add_u32 s36, s36, {LDS_OST}", "v_add_u32 v12, s36, v11",
        f"ds_read_b128 {r4(4)}, v12")
    k.e("s_lshl_b32 s36, s28, 2", "s_add_u32 s36, s36, s34", "s_mul_i32 s38, s36, 18432", "s_mul_i32 s39, s29, 2304",
        "s_add_u32 s38, s38, s39", "s_add_u32 s38, s38, s37", f"s_add_u32 s38, s38, {WS_O}")
    k.e("s_lshl_b32 s36, s28, 7", "s_lshl_b32 s39, s29, 3", "s_add_u32 s36, s36, s39", f"s_add_u32 s36, s36, {F1}")
    k.e("s_waitcnt lgkmcnt(0)", ex((1 << 48) - 1), f"buffer_store_dwordx4 {r4(4)}, v11, s[16:19], s38 offen sc1", ex(-1),
        "s_waitcnt vmcnt(0)")
    arrive(k, 1, 12, 36, tag)
    if pre:
        pre(k)


def attention(k):
    k.e("; ==== attention (waves 0..7; one (head, 32-query) unit each). S^T = K.Q^T - M comes straight out of the MFMAs:")
    k.e("v_and_b32 v2, 31, v1", "v_lshrrev_b32 v3, 5, v1")
    k.e("s_lshr_b32 s35, s30, 2", "s_mul_i32 s35, s35, 4608", f"s_add_u32 s35, s35, {LDS_OST}", "s_movk_i32 s36, 2304",
        "v_lshrrev_b32 v8, 4, v2", "v_mul_u32_u24 v8, s36, v8", "v_and_b32 v9, 15, v2", "v_lshl_add_u32 v8, v9, 4, v8",
        "v_add_u32 v8, s35, v8", "v_lshl_add_u32 v9, v3, 8, v8", "s_and_b32 s37, s30, 3", "s_mul_i32 s37, s37, 18")
    for i in range(4):
        k.e(f"s_add_u32 s38, s37, {2*i}", "s_lshr_b32 s39, s38, 3", "s_lshl_b32 s39, s39, 8", "s_and_b32 s38, s38, 7",
            "s_lshl_b32 s38, s38, 1", "s_add_u32 s38, s38, s39", f"v_add_u32 v{Q+i}, s38, v9")
        if i == 0:
            k.e(f"v_add_u32 v{T0}, s38, v8")
    k.e(f"v_mov_b32 v{T0+2}, {LDS_KMX}")
    k.e("v_mov_b32 v12, v11")
    k.e("v_cmp_eq_u32 vcc, 28, v2", "v_cndmask_b32 v13, v2, 18, vcc",
        "v_cmp_lt_u32 vcc, 18, v13", "v_mov_b32 v14, 0x10000", "v_cndmask_b32 v13, v13, v14, vcc",
        "s_movk_i32 s40, 304", "v_mul_u32_u24 v14, s40, v3", "v_lshl_add_u32 v13, v13, 4, v14", f"v_add_u32 v13, {KV_V}, v13")
    k.e("v_min_u32 v14, 32, v1", "v_lshlrev_b32 v14, 4, v14", f"v_add_u32 v14, {KV_K2}, v14")
    k.e("v_cmp_eq_u32 s[44:45], 1, v3")
    k.e("s_lshr_b32 s35, s30, 2", "s_lshl_b32 s35, s35, 2", f"s_add_u32 s35, s35, {LDS_QRD}")
    def zero_init():
        for r in list(range(OA, OA + 16)) + list(range(P, P + 8)) + list(range(V1, V1 + 4)):
            k.e(f"v_mov_b32 v{r}, 0")

    def setm():
        k.e(f"v_xor_b32 v{T0+2}, 0x80000000, v{T0+1}",
            f"v_and_b32 v{T0+3}, 0xffff0000, v{T0+2}", f"v_sub_f32 v{T0+2}, v{T0+2}, v{T0+3}",
            f"v_and_b32 v{T0+4}, 0xffff0000, v{T0+2}", f"v_sub_f32 v{T0+2}, v{T0+2}, v{T0+4}",
            f"v_lshrrev_b32 v{T0+3}, 16, v{T0+3}", f"v_or_b32 v{T0+3}, v{T0+3}, v{T0+4}",
            f"v_lshrrev_b32 v{T0+2}, 16, v{T0+2}")
        k.e(f"v_cndmask_b32 v{Q2E}, v{T0}, v{T0+3}, s[44:45]", f"v_cndmask_b32 v{Q2E+1}, 0, v{T0+2}, s[44:45]",
            f"v_cndmask_b32 v{Q2O}, 0, v{T0+3}, s[44:45]", f"v_cndmask_b32 v{Q2O+1}, v{T0}, v{T0+2}, s[44:45]")
    zero_init()
    k.e("v_mov_b32 v4, v12", "v_mov_b32 v5, v13", "v_mov_b32 v6, v14", "s_mov_b32 s32, 0", "s_mov_b32 s31, 2")
    sta(k, 4)
    lds_wait(k, LDS_IM0, 4, "im0", va=T0 + 6, vb=T0 + 7)
    k.e(f"ds_read_b32 v{T0+2}, v{T0+2}", f"v_mov_b32 v{T0+6}, {LDS_NON}", f"ds_read_b64 v[{T0+8}:{T0+9}], v{T0+6}",
        f"ds_read_b128 {r4(KF)}, v4", f"ds_read_b128 {r4(K2F)}, v6", f"ds_read_b128 {r4(V0)}, v5")
    sta(k, 5)
    lds_wait(k, "s35", 2, "qrd", va=T0 + 6, vb=T0 + 7)
    sta(k, 6)
    for i in range(4):
        k.e(f"ds_read_b32 v{Q+i}, v{Q+i}")
    k.e(f"ds_read_b32 v{T0}, v{T0} offset:512", f"v_readfirstlane_b32 s66, v{T0+8}", f"v_readfirstlane_b32 s67, v{T0+9}",
        f"v_mul_f32 v{T0+2}, {hex(f2u(1.02*1.02))}, v{T0+2}", f"v_mov_b32 v{T0+1}, 0", "s_waitcnt lgkmcnt(0)")
    k.e(f"v_cndmask_b32 v{T0}, v{T0}, 0, s[44:45]")
    for r in (Q, Q + 1, Q + 2, Q + 3, T0):
        k.e(f"v_dot2c_f32_bf16 v{T0+1}, v{r}, v{r}")
    k.e(f"v_mfma_f32_32x32x16_bf16 {r16(S0)}, {r4(KF)}, {r4(Q)}, 0", f"ds_read_b128 {r4(KF)}, v4 offset:1024")
    k.e(f"v_mov_b32 v{T0+4}, v{T0+1}", f"v_permlane32_swap_b32 v{T0+1}, v{T0+4}", f"v_add_f32 v{T0+1}, v{T0+1}, v{T0+4}")
    k.e(f"v_mul_f32 v{T0+1}, v{T0+1}, v{T0+2}", f"v_sqrt_f32 v{T0+1}, v{T0+1}")
    setm()
    k.e("s_setprio 2", "s_branch attn_go")
    k.label("attn_setm")
    setm()
    k.e("v_mov_b32 v4, v12", "v_mov_b32 v5, v13", "v_mov_b32 v6, v14")
    k.e("s_cmp_eq_u32 s32, 10", "s_cbranch_scc1 attn_maxpass")
    zero_init()
    k.e("s_mov_b32 s31, 16")
    k.e(f"ds_read_b128 {r4(KF)}, v4", f"ds_read_b128 {r4(K2F)}, v6", f"ds_read_b128 {r4(V0)}, v5", "s_waitcnt lgkmcnt(0)")
    k.e(f"v_mfma_f32_32x32x16_bf16 {r16(S0)}, {r4(KF)}, {r4(Q)}, 0", f"ds_read_b128 {r4(KF)}, v4 offset:1024")
    k.label("attn_go")
    k.e(f"v_mfma_f32_32x32x8_bf16 {r16(S0)}, v[{K2F}:{K2F+1}], v[{Q2E}:{Q2E+1}], {r16(S0)}")
    k.stamp(2)
    k.e("s_waitcnt lgkmcnt(0)", "s_nop 7", "s_nop 3")
    k.e(".p2align 6")
    k.label("attn_loop")
    for tau in range(4):
        cur, nxt = (S0, S1) if tau % 2 == 0 else (S1, S0)
        t1 = (tau + 1) % 4
        koff = (tau + 2) * 1024 if tau < 2 else GRP + (tau - 2) * 1024
        v0off = (tau + 1) * 1216 if tau < 3 else GRP

        def ex_(a, b):
            for i in range(a, b):
                k.e(f"v_exp_f32 v{cur+i}, v{cur+i}")

        def cv(a, b):
            for i in range(a, b):
                k.e(f"v_cvt_pk_bf16_f32 v{P+i}, v{cur+2*i}, v{cur+2*i+1}")
        k.e("s_waitcnt lgkmcnt(2)")
        k.e(f"v_mfma_f32_32x32x16_bf16 {r16(nxt)}, {r4(KF)}, {r4(Q)}, 0")
        k.e(f"ds_read_b128 {r4(KF)}, v4 offset:{koff}")
        ex_(0, 3)
        k.e("s_waitcnt lgkmcnt(2)")
        k.e(f"v_mfma_f32_32x32x16_bf16 {r16(OA)}, {r4(V1)}, {r4(P+4)}, {r16(OA)}")
        k.e(f"ds_read_b128 {r4(V1)}, v5 offset:{tau*1216+608}")
        ex_(3, 6)
        q2 = Q2E if t1 % 2 == 0 else Q2O
        kk = K2F + 2 * (t1 // 2)
        k.e(f"v_mfma_f32_32x32x8_bf16 {r16(nxt)}, v[{kk}:{kk+1}], v[{q2}:{q2+1}], {r16(nxt)}")
        if tau == 2:
            k.e(f"ds_read_b128 {r4(K2F)}, v6 offset:{GRP}")
        ex_(6, 9)
        cv(0, 4)
        ex_(9, 12)
        k.e("s_waitcnt lgkmcnt(2)")
        k.e(f"v_mfma_f32_32x32x16_bf16 {r16(OA)}, {r4(V0)}, {r4(P)}, {r16(OA)}")
        k.e(f"ds_read_b128 {r4(V0)}, v5 offset:{v0off}")
        ex_(12, 16)
        if tau == 3:
            k.e(f"v_add_u32 v4, {GRP}, v4", f"v_add_u32 v5, {GRP}, v5", f"v_add_u32 v6, {GRP}, v6")
            k.e("s_sub_u32 s31, s31, 1", "s_cmp_lg_u32 s31, 0")
        cv(4, 8)
    k.e("s_cbranch_scc1 attn_loop")
    k.e("s_cmp_ge_u32 s32, 4", "s_cbranch_scc1 attn_tail")
    k.e("s_add_u32 s32, s32, 1")
    k.e("s_cmp_eq_u32 s32, 2", "s_cbranch_scc1 attn_ph2", "s_cmp_eq_u32 s32, 3", "s_cbranch_scc1 attn_ph3",
        "s_cmp_eq_u32 s32, 4", "s_cbranch_scc1 attn_ph4")
    lds_wait(k, LDS_IMG, 4, "img", va=T0 + 6, vb=T0 + 7)
    k.e("s_mov_b32 s31, 9", "s_branch attn_loop")
    for ph, cnt, pr in ((2, 2, 1), (3, 2, 1), (4, 1, 0)):
        k.label(f"attn_ph{ph}")
        k.e(f"s_setprio {pr}", f"s_mov_b32 s31, {cnt}")
        if ph == 2:
            k.e(f"v_cndmask_b32 v{T0+5}, v{OA+10}, v{OA+12}, s[44:45]", f"v_cmp_le_f32 vcc, {hex(f2u(2.0**-40))}, v{T0+5}",
                "s_cmp_eq_u64 vcc, -1", "s_cselect_b32 s34, 1, 0x101", f"v_mov_b32 v{T0+6}, {LDS_REL}", f"v_mov_b32 v{T0+7}, s34",
                ex(1), f"ds_add_u32 v{T0+6}, v{T0+7}", ex(-1))
        if ph == 4:
            k.e(f"v_mov_b32 v{T0+6}, {LDS_RDY}", f"ds_read_b32 v{T0+6}, v{T0+6}", "s_waitcnt lgkmcnt(0)",
                f"v_readfirstlane_b32 s52, v{T0+6}", "s_cmp_eq_u32 s52, 0", "s_cbranch_scc1 attn_loop")
            ffn_ring_start(k)
        k.e("s_branch attn_loop")
    k.label("attn_maxpass")
    k.e(f"v_mov_b32 v{T0+1}, 0xff800000", "s_mov_b32 s31, 16")
    k.label("attn_maxloop")
    k.e(f"ds_read_b128 {r4(K2F)}, v6")
    for tau in range(4):
        q2 = Q2E if tau % 2 == 0 else Q2O
        kk = K2F + 2 * (tau // 2)
        k.e(f"ds_read_b128 {r4(KF)}, v4 offset:{tau*1024}", "s_waitcnt lgkmcnt(0)")
        k.e(f"v_mfma_f32_32x32x16_bf16 {r16(S0)}, {r4(KF)}, {r4(Q)}, 0",
            f"v_mfma_f32_32x32x8_bf16 {r16(S0)}, v[{kk}:{kk+1}], v[{q2}:{q2+1}], {r16(S0)}")
        for i in range(8):
            k.e(f"v_max3_f32 v{T0+1}, v{S0+2*i}, v{S0+2*i+1}, v{T0+1}")
    k.e(f"v_add_u32 v4, {GRP}, v4", f"v_add_u32 v6, {GRP}, v6", "s_sub_u32 s31, s31, 1", "s_cmp_lg_u32 s31, 0",
        "s_cbranch_scc1 attn_maxloop")
    k.e(f"v_mov_b32 v{T0+2}, v{T0+1}", f"v_permlane32_swap_b32 v{T0+1}, v{T0+2}", f"v_max_f32 v{T0+1}, v{T0+1}, v{T0+2}")
    k.e("s_mov_b32 s32, 11", "s_branch attn_setm")
    k.label("attn_tail")
    k.e("s_waitcnt lgkmcnt(0)")
    k.e(f"v_mfma_f32_32x32x16_bf16 {r16(OA)}, {r4(V1)}, {r4(P+4)}, {r16(OA)}")
    k.e("s_and_b32 s34, s30, 3", "s_mul_i32 s34, s34, 18", "s_lshr_b32 s35, s30, 2", "s_mul_i32 s35, s35, 4608",
        f"s_add_u32 s35, s35, {LDS_OST}", "s_movk_i32 s36, 2304",
        f"v_lshrrev_b32 v{T0+9}, 4, v2", f"v_mul_u32_u24 v{T0+9}, s36, v{T0+9}", f"v_and_b32 v{T0+8}, 15, v2",
        f"v_lshl_add_u32 v{T0+9}, v{T0+8}, 4, v{T0+9}", f"v_add_u32 v{T0+9}, s35, v{T0+9}")
    k.e(f"v_lshl_add_u32 v{T0+6}, v3, 2, s34", f"v_add_u32 v{T0+7}, 2, v{T0+6}")
    for r in (T0 + 6, T0 + 7):
        k.e(f"v_lshrrev_b32 v{T0+8}, 3, v{r}", f"v_and_b32 v{r}, 7, v{r}", f"v_lshl_add_u32 v{r}, v{r}, 1, v{T0+9}",
            f"v_lshl_add_u32 v{r}, v{T0+8}, 8, v{r}")
    k.e(f"v_cndmask_b32 v{T0+5}, v{OA+10}, v{OA+12}, s[44:45]")
    k.e(f"v_cmp_le_f32 vcc, {hex(f2u(2.0**-40))}, v{T0+5}")
    k.e("s_cmp_eq_u32 s32, 11", "s_cbranch_scc1 attn_fin")
    k.e("s_cmp_eq_u64 vcc, -1", "s_cbranch_scc1 attn_fin")
    k.e("s_mov_b32 s32, 10", f"v_mov_b32 v{T0+1}, 0", "s_branch attn_setm")
    k.label("attn_fin")
    k.e(f"v_rcp_f32 v{T0+5}, v{T0+5}")
    for i in range(10):
        k.e(f"v_mul_f32 v{OA+i}, v{T0+5}, v{OA+i}")
    for i in range(5):
        k.e(f"v_cvt_pk_bf16_f32 v{P+i}, v{OA+2*i}, v{OA+2*i+1}")
    k.e(f"ds_write_b32 v{T0+6}, v{P}", f"ds_write_b32 v{T0+7}, v{P+1}",
        f"ds_write_b32 v{T0+6}, v{P+2} offset:256", f"ds_write_b32 v{T0+7}, v{P+3} offset:256",
        ex(0xffffffff), f"ds_write_b32 v{T0+6}, v{P+4} offset:512", ex(-1))
    k.e("s_waitcnt lgkmcnt(0)", "s_barrier")
    stb(k, 3)
    publish_o(k, "oa")


def kv_dma(k, a, b):
    for i in range(a, b):
        k.e(f"s_add_u32 m0, s34, {i*4096}", f"s_sub_u32 s36, s35, {IMG - 4096}", "buffer_load_dwordx4 v10, s[16:19], s35 offen sc1 lds",
            "s_add_u32 s35, s35, 4096", "s_min_u32 s35, s35, s36")


NB = 7


def roll_gemm(k, steps, rd, mfma, pre=None):
    seq = [(s, t) for s in steps for t in range(5)]
    n = len(seq)
    for i in range(min(NB, n)):
        rd(seq[i][1], seq[i][0], i % NB)
    for i, (s, t) in enumerate(seq):
        ahead = min(NB - 1, n - 1 - i)
        extra = pre(s) if (pre and t == 0) else ""
        k.e(f"s_waitcnt lgkmcnt({2*ahead}){extra}")
        mfma(t, s, i % NB)
        if i + NB < n:
            rd(seq[i + NB][1], seq[i + NB][0], i % NB)


def roll_gemm2(k, steps, rd2, mf2):
    seq = [(s, t) for s in steps for t in range(5)]
    n = len(seq)
    for i in range(min(NB, n)):
        k.e(*rd2(seq[i][1], seq[i][0], i % NB))
    for i, (s, t) in enumerate(seq):
        issued = min(n, NB + max(0, i - 1))
        k.e(f"s_waitcnt lgkmcnt({2*(issued - 1 - i)})")
        m = mf2(t, s, i % NB)
        j = i - 1 + NB
        r = rd2(seq[j][1], seq[j][0], (i - 1) % NB) if (i >= 1 and j < n) else ["", ""]
        k.e(m[0], r[0], m[1], r[1])


def helper_pack(k):
    k.e("; ==== helper waves 8..11: K/V image -> LDS, re-pack W1/W2 slice into MFMA fragment order (+ column sums of W1)")
    def dma(a, b):
        kv_dma(k, a, b)
    k.e("s_waitcnt vmcnt(0)")
    lds_signal(k, LDS_IM0)
    lds_wait(k, LDS_WDN, 4, "wdn")
    dma(7, 37)
    k.e("s_cmp_lg_u32 s31, 0", "s_cbranch_scc1 mega_h_nolast")
    k.e(ex(0xffff))
    dma(37, 38)
    k.e(ex(-1))
    k.label("mega_h_nolast")
    k.e("s_lshl_b32 s34, s31, 6", "v_add_u32 v12, s34, v1", "v_min_u32 v12, 161, v12", "v_lshlrev_b32 v12, 7, v12",
        "s_mul_i32 s34, s47, 20736")
    k.e("s_lshl_b32 s50, s31, 5", "s_add_u32 s50, s50, s47",
        "s_cmp_ge_u32 s50, 54", "s_cselect_b32 s53, 1, 0",
        "s_mul_i32 s51, s53, 54", "s_sub_u32 s51, s50, s51",
        "s_mul_i32 s54, s51, 57", "s_lshr_b32 s54, s54, 10",
        "s_mul_i32 s52, s54, 18", "s_sub_u32 s52, s51, s52",
        "s_cmp_eq_u32 s53, 0",
        "s_cselect_b32 s20, s4, s6", "s_cselect_b32 s21, s5, s7", f"s_mov_b32 s22, {hex(W1B)}", "s_mov_b32 s23, 0x00020000",
        "s_movk_i32 s56, 1152", "s_cselect_b32 s56, 9216, s56",
        "s_movk_i32 s57, 1152", "s_cselect_b32 s57, s57, 663552", "s_mul_i32 s57, s57, s46",
        "s_mul_i32 s58, s54, 192", "s_mul_i32 s58, s58, s56", "s_add_u32 s57, s57, s58",
        "s_lshl_b32 s58, s52, 6", "s_add_u32 s57, s57, s58")
    k.e("s_add_u32 s58, s53, s54", "s_cmp_eq_u32 s58, 3", "s_cselect_b32 s58, 2, 1", "s_cselect_b32 s59, -5, 1",
        "s_mul_i32 s58, s58, s56", "s_mul_i32 s59, s59, s56", "s_mul_i32 s60, s56, 25")
    k.e("v_lshrrev_b32 v2, 4, v1", "v_lshlrev_b32 v2, 3, v2", "v_mul_u32_u24 v15, s56, v2", "v_and_b32 v3, 15, v1",
        "v_lshl_add_u32 v15, v3, 2, v15", "v_lshlrev_b32 v8, 2, v3",
        "s_mov_b32 s64, 0x05040100", "s_mov_b32 s65, 0x07060302")
    k.e(f"s_mul_i32 s62, s52, {STREAM}", f"s_mul_i32 s63, s52, {2*STREAM}", f"s_sub_u32 s63, s63, {24*STREAM - 2048}",
        "s_cmp_lt_u32 s52, 12", "s_cselect_b32 s62, s62, s63", "s_movk_i32 s61, 1024", f"s_cselect_b32 s61, s61, {STREAM}",
        "s_mul_i32 s63, s53, 3", "s_add_u32 s63, s63, s54", f"s_mul_i32 s63, s63, {6*3072}", "s_add_u32 s62, s62, s63",
        f"s_mul_i32 s63, s46, {1296*1024}", "s_add_u32 s62, s62, s63", f"s_add_u32 s62, s62, {WS_W}",
        "s_add_u32 s61, s61, s62")
    for i in range(4):
        k.e(f"v_mov_b32 v{PS+8+i}, 0x3f803f80")
    k.e("s_waitcnt vmcnt(0)")
    lds_signal(k, LDS_IMG, va=9, vb=10)
    stp(k, 3)
    k.e("buffer_load_dword v13, v12, s[24:27], s34 offen")
    k.e("s_cmp_ge_u32 s50, 108", "s_cbranch_scc1 mega_h_nounit")
    for ss in range(6):
        for jj in range(8):
            k.e(f"buffer_load_dword v{PIN+8*ss+jj}, v15, s[20:23], s57 offen",
                f"s_add_u32 s57, s57, s{60 if jj == 7 else (59 if jj == 3 else 58)}")
    stp(k, 4)
    for ss in range(6):
        k.e(f"s_waitcnt vmcnt({40 - 8*ss + 2*ss})")
        if ss in (0, 5):
            stp(k, 5 if ss == 0 else 6)
        for e in range(2):
            for q in range(4):
                k.e(f"v_perm_b32 v{POUT+8*ss+4*e+q}, v{PIN+8*ss+2*q+1}, v{PIN+8*ss+2*q}, s{64+e}")
            k.e(f"buffer_store_dwordx4 {r4(POUT+8*ss+4*e)}, v11, s[16:19], s{62-e} offen sc1", f"s_add_u32 s{62-e}, s{62-e}, 3072")
    stp(k, 7)
    k.e("s_cmp_lg_u32 s53, 0", "s_cbranch_scc1 mega_h_nounit")
    for ss in range(6):
        for e in range(2):
            k.e(f"v_mfma_f32_16x16x32_bf16 {r4(PS+4*e)}, {r4(PS+8)}, {r4(POUT+8*ss+4*e)}, {r4(PS+4*e) if ss else 0}")
    k.e("s_mul_i32 s58, s54, 18432", "s_mul_i32 s59, s46, 2304", "s_add_u32 s58, s58, s59", "s_lshl_b32 s59, s52, 7",
        "s_add_u32 s58, s58, s59", f"s_add_u32 s58, s58, {WS_SP}")
    k.e(ex(0xffff), f"buffer_store_dword v{PS}, v8, s[16:19], s58 offen sc1",
        f"buffer_store_dword v{PS+4}, v8, s[16:19], s58 offen offset:64 sc1", ex(-1))
    k.label("mega_h_nounit")
    k.e("s_waitcnt vmcnt(0)", "s_lshl_b32 s34, s46, 9", f"s_add_u32 s36, s34, {FP}", "s_lshr_b32 s35, s47, 3", "s_lshl_b32 s35, s35, 7",
        "s_add_u32 s34, s36, s35", "s_lshl_b32 s35, s29, 3", "s_add_u32 s34, s34, s35")
    k.stamp(2)
    arrive(k, 0, 4, 34, "p")
    k.e("s_cmp_lg_u32 s31, 3", "s_cbranch_scc1 mega_h_nofp")
    lds_wait(k, LDS_QRD, 2, "qa")
    lds_wait(k, LDS_QRD + 4, 2, "qb")
    k.e("v_bfe_u32 v12, v1, 3, 2", "v_lshlrev_b32 v12, 7, v12", "v_and_b32 v13, 7, v1", "v_lshl_add_u32 v12, v13, 3, v12")
    poll(k, 12, 36, 14, "p", sleep=16)
    k.e("v_add_u32 v13, 128, v1", "v_min_u32 v13, 143, v13", "v_lshlrev_b32 v13, 4, v13",
        "s_mul_i32 s34, s46, 2304", f"s_add_u32 s34, s34, {WS_SP}")
    for i in range(3):
        k.e(f"buffer_load_dwordx4 {r4(PIN+12*i)}, v11, s[16:19], s34 offen sc1", f"buffer_load_dwordx4 {r4(PIN+12*i+4)}, v11, s[16:19], s34 offen offset:1024 sc1",
            f"buffer_load_dwordx4 {r4(PIN+12*i+8)}, v13, s[16:19], s34 offen sc1", "s_add_u32 s34, s34, 18432")
    k.e(f"v_mov_b32 v14, {LDS_RDY}", "v_mov_b32 v15, 1", "ds_write_b32 v14, v15")
    k.e("v_lshlrev_b32 v14, 7, v1", "v_and_b32 v15, 3, v1", "v_lshlrev_b32 v15, 7, v15",
        f"s_mul_i32 s34, s46, {1296*1024}", "s_mul_i32 s35, s47, 41472", "s_add_u32 s34, s34, s35", f"s_add_u32 s34, s34, {WS_W}")
    for i in range(6):
        k.e(f"buffer_load_dword v{POUT+i}, v{14 if i < 5 else 15}, s[16:19], s34 offen sc1", "s_add_u32 s34, s34, 8192")
    k.e(f"v_add_u32 v12, {LDS_S}, v11", f"v_add_u32 v13, {LDS_S}, v13", "s_waitcnt vmcnt(6)")
    for i in range(1, 3):
        for c in range(12):
            k.e(f"v_add_f32 v{PIN+c}, v{PIN+c}, v{PIN+12*i+c}")
    k.e(f"ds_write_b128 v12, {r4(PIN)}", f"ds_write_b128 v12, {r4(PIN+4)} offset:1024", f"ds_write_b128 v13, {r4(PIN+8)}",
        "s_waitcnt lgkmcnt(0)")
    k.label("mega_h_nofp")


def wo_dma(k, tag):
    k.e("s_mul_i32 s32, s29, 144", "s_lshl_b32 s42, s29, 1", "s_add_u32 s42, s42, s31",
        "s_mul_i32 s43, s31, 5120", f"s_add_u32 s43, s43, {LDS_WO}")

    k.e("s_cmp_eq_u32 s31, 3", f"s_cbranch_scc1 mega_o_skip{tag}")
    for grp in range(6):
        k.e("s_sub_u32 s36, s42, 18", "s_min_u32 s42, s42, s36", "s_mul_i32 s36, s42, 36864", "s_add_u32 s36, s36, s32")
        for i in range(5):
            k.e(f"s_add_u32 m0, s43, {grp*3*5120 + i*1024}", "s_nop 0", f"buffer_load_dwordx4 v{16+i}, s[24:27], s36 offen lds")
        k.e("s_add_u32 s42, s42, 3")
    k.label(f"mega_o_skip{tag}")
    srd(k, 56, 10, XB)
    k.e("s_add_u32 s35, s49, s32")
    for i in range(3):
        if i == 2:
            k.e(ex(0xffffffff))
        k.e(f"s_add_u32 m0, s44, {i*1024}", "s_nop 0", f"buffer_load_dwordx4 v{16+i}, s[56:59], s35 offen lds")
    k.e(ex(-1), "s_waitcnt vmcnt(0)")
    for t in range(5):
        k.e(f"ds_read_b64 v[{36+2*t}:{37+2*t}], v21 offset:{32*t}")
    k.e("s_cmp_eq_u32 s31, 3", f"s_cbranch_scc1 mega_c_skip{tag}")
    k.e("v_add_u32 v32, s43, v28", "v_add_u32 v33, s43, v29", "v_add_u32 v34, s43, v11", "s_mov_b32 s36, 6")
    k.label(f"mega_conv{tag}")
    for t in range(5):
        k.e(f"ds_read_b64_tr_b16 v[{OWF+4*t}:{OWF+4*t+1}], v32 offset:{32*t}", f"ds_read_b64_tr_b16 v[{OWF+4*t+2}:{OWF+4*t+3}], v33 offset:{32*t}")
    k.e("v_add_u32 v32, 15360, v32", "v_add_u32 v33, 15360, v33", "s_waitcnt lgkmcnt(0)")
    for t in range(5):
        k.e(f"ds_write_b128 v34, {r4(OWF+4*t)} offset:{1024*t}")
    k.e("v_add_u32 v34, 15360, v34", "s_sub_u32 s36, s36, 1", "s_cmp_lg_u32 s36, 0", f"s_cbranch_scc1 mega_conv{tag}")
    k.label(f"mega_c_skip{tag}")
    k.e("s_waitcnt lgkmcnt(0)")
    for t in range(5):
        a = OACC + 4 * t
        k.e(f"v_lshlrev_b32 v{a}, 16, v{36+2*t}", f"v_and_b32 v{a+1}, 0xffff0000, v{36+2*t}",
            f"v_lshlrev_b32 v{a+2}, 16, v{37+2*t}", f"v_and_b32 v{a+3}, 0xffff0000, v{37+2*t}")


def oproj(k):
    k.e("; ==== output projection + residual + LayerNorm-2 partial statistics (helper waves)")
    k.e("v_and_b32 v2, 15, v1", "v_lshrrev_b32 v3, 4, v1")
    k.e("v_lshrrev_b32 v32, 2, v2",
        "v_and_b32 v33, 1, v3", "v_lshlrev_b32 v33, 2, v33", "v_add_u32 v32, v32, v33",
        "v_lshl_add_u32 v32, v3, 3, v32", "v_xor_b32 v33, 4, v32", "s_movk_i32 s40, 160",
        "v_and_b32 v34, 3, v2", "v_lshlrev_b32 v34, 3, v34", f"v_add_u32 v34, {LDS_WO}, v34",
        "v_mad_u32_u24 v28, v32, s40, v34", "v_mad_u32_u24 v29, v33, s40, v34",
        "v_add_u32 v30, 61440, v11")
    k.e("s_mul_i32 s44, s31, 2560", f"s_add_u32 s44, s44, {LDS_RES}",
        "v_and_b32 v21, 8, v2", "v_lshrrev_b32 v21, 1, v21", "v_xor_b32 v21, v21, v2", "v_mul_u32_u24 v21, s40, v21",
        "v_lshl_add_u32 v21, v3, 3, v21", "v_add_u32 v21, s44, v21")
    k.e("v_and_b32 v22, 1, v3", "v_lshlrev_b32 v22, 9, v22", "v_lshrrev_b32 v32, 1, v3", "v_lshl_add_u32 v22, v32, 8, v22",
        "v_lshl_add_u32 v22, v2, 4, v22")
    k.e("v_and_b32 v23, 7, v1", "v_lshlrev_b32 v23, 3, v23")
    k.e("s_lshl_b32 s48, s28, 2", "s_add_u32 s48, s48, s31", "s_mul_i32 s49, s48, 18432")
    k.e(f"s_add_u32 s34, s49, {WS_O}", "v_add_u32 v24, s34, v11", "s_lshl_b32 s51, s29, 11")
    k.e(f"v_mov_b32 v12, {LDS_REL}", f"s_mov_b32 s3, {SPIN*8}")
    k.label("mega_rel")
    k.e("ds_read_b32 v13, v12", "s_waitcnt lgkmcnt(0)", "v_readfirstlane_b32 s50, v13", "s_and_b32 s39, s50, 0xff", "s_cmp_ge_u32 s39, 8",
        "s_cbranch_scc1 mega_reld", "s_sleep 4", "s_sub_u32 s3, s3, 1", "s_cbranch_scc0 mega_rel")
    k.label("mega_reld")
    k.e("s_cmp_lg_u32 s50, 8", "s_cbranch_scc1 mega_noearly")
    wo_dma(k, "a")
    k.label("mega_noearly")
    stp(k, 8)
    k.e("s_waitcnt lgkmcnt(0)", "s_barrier")
    stb(k, 3)
    publish_o(k, "ob")
    k.e("s_cmp_eq_u32 s50, 8", "s_cbranch_scc1 mega_nolate")
    wo_dma(k, "b")
    k.label("mega_nolate")
    k.e("s_lshl_b32 s34, s28, 7", f"s_add_u32 s34, s34, {F1}")
    k.e("s_cmp_lg_u32 s31, 0", "s_cbranch_scc1 mega_polld_o")
    lds_wait(k, LDS_CNT + 4, 12, "owno")
    poll(k, 23, 34, 32, "o", sleep=int(os.environ.get("OSP", "2")))
    lds_signal(k, LDS_ORD)
    lds_wait(k, LDS_ORD, 4, "ord")
    stb(k, 4)
    for s in range(18):
        k.e(f"buffer_load_dwordx4 v[{OX0+4*s}:{OX0+4*s+3}], v24, s[16:19], s51 offen sc1",
            "s_add_u32 s51, s51, 1024", "s_cmp_eq_u32 s51, 18432", "s_cselect_b32 s51, 0, s51")

    seq = [(s, t) for s in range(18) for t in range(5)]

    def rd(i):
        s, t = seq[i]
        off = (s if s < 12 else s - 12) * 5120 + 1024 * t
        k.e(f"ds_read_b128 {r4(OWF+4*(i%NB))}, v{11 if s < 12 else 30} offset:{off}")
    for i in range(NB):
        rd(i)
    ring_srd(k)
    for i, (s, t) in enumerate(seq):
        k.e(f"s_waitcnt lgkmcnt({min(NB-1, 89-i)})" + (f" vmcnt({17 - s + 3*(s//3)})" if t == 0 else ""))
        a = r4(OACC + 4 * t)
        k.e(f"v_mfma_f32_16x16x32_bf16 {a}, {r4(OWF+4*(i%NB))}, {r4(OX0+4*s)}, {a}")
        if i + NB < 90:
            rd(i + NB)
        if t == 4 and s % 3 == 2:
            st = (s // 3 + 5) % 6
            k.e(f"s_movk_i32 s53, {st*T*1024}")
            for tt in range(T):
                k.e(wload(st, tt))
    sto(k, 1)
    k.e("v_mov_b32 v6, 0", "v_mov_b32 v7, 0", "v_mov_b32 v34, 0x3f803f80",
        "s_mul_i32 s35, s29, 2304", "s_add_u32 s35, s35, s49", f"s_add_u32 s35, s35, {WS_H}")
    for t in range(5):
        a = OACC + 4 * t
        d = OWF + 2 * t
        k.e(f"v_cvt_pk_bf16_f32 v{d}, v{a}, v{a+1}", f"v_cvt_pk_bf16_f32 v{d+1}, v{a+2}, v{a+3}")
        if t == 4:
            k.e(ex(0xffffffff))
        k.e(f"v_dot2c_f32_bf16 v6, v{d}, v34", f"v_dot2c_f32_bf16 v7, v{d}, v{d}",
            f"v_dot2c_f32_bf16 v6, v{d+1}, v34", f"v_dot2c_f32_bf16 v7, v{d+1}, v{d+1}")
        if t == 4:
            k.e(ex(-1))
        if t % 2 == 1 or t == 4:
            b = OWF + 4 * (t // 2)
            k.e(f"v_permlane16_swap_b32 v{b}, v{b+2}", f"v_permlane16_swap_b32 v{b+1}, v{b+3}")
            if t == 4:
                k.e(ex(0xffff))
            k.e(f"buffer_store_dwordx4 {r4(b)}, v22, s[16:19], s35 offen offset:{1024*(t//2)} sc1")
            if t == 4:
                k.e(ex(-1))
    reduce_g_add(k, [6, 7], [32, 33])
    k.e("v_lshlrev_b32 v32, 4, v2", "s_lshl_b32 s35, s48, 10", "s_lshr_b32 s34, s29, 1", "s_lshl_b32 s34, s34, 8",
        "s_add_u32 s35, s35, s34", "s_and_b32 s34, s29, 1", "s_lshl_b32 s34, s34, 3", "s_add_u32 s35, s35, s34",
        f"s_add_u32 s35, s35, {WS_ST}", ex(0xffff))
    k.e("buffer_store_dwordx2 v[6:7], v32, s[16:19], s35 offen sc1", ex(-1))
    sto(k, 2)
    k.e("s_lshl_b32 s34, s28, 7", "s_lshl_b32 s35, s29, 3", "s_add_u32 s34, s34, s35", f"s_add_u32 s34, s34, {F2}", "s_waitcnt vmcnt(0)")
    sto(k, 7)
    arrive(k, 2, 4, 34, "h")


def acc(t, mb):
    return ACC + (t * 4 + mb) * 4


def wreg(slot, t):
    return WR + ((slot + 1) % 6) * 12 + t * 4


def wload(slot, t):
    return f"buffer_load_dwordx4 {r4(wreg(slot, t))}, v11, s[20:23], s53 offen offset:{1024*t} {WAUX}"


def ring_srd(k):
    k.e(f"s_mul_i32 s34, s30, {STREAM}", f"s_mul_i32 s35, s46, {1296*1024}", "s_add_u32 s34, s34, s35", f"s_add_u32 s34, s34, {WS_W}",
        "s_add_u32 s20, s12, s34", "s_addc_u32 s21, s13, 0", f"s_mov_b32 s22, {STREAM}", "s_mov_b32 s23, 0x00020000")


def ffn_ring_start(k, n=D - 1):
    ring_srd(k)
    k.e("s_mov_b32 s53, 0")
    for st in range(n):
        for t in range(T):
            k.e(wload(st, t))
        k.e(f"s_add_u32 s53, s53, {T*1024}")


def ffn(k):
    k.label("ffn_join")
    k.e("s_setprio 0", "v_and_b32 v2, 15, v1", "v_lshrrev_b32 v3, 4, v1")
    k.e("s_lshl_b32 s34, s47, 2", "s_and_b32 s35, s30, 3", "s_add_u32 s34, s34, s35", "s_mul_i32 s41, s34, 18432",
        "s_lshr_b32 s35, s30, 2", "s_lshl_b32 s35, s35, 10", "s_add_u32 s41, s41, s35", f"s_add_u32 s41, s41, {WS_H}",
        "s_lshl_b32 s42, s30, 10")
    k.e("s_lshl_b32 s34, s30, 7", f"s_add_u32 s34, s34, {LDS_S}", "v_lshlrev_b32 v13, 4, v3", "v_add_u32 v12, s34, v13",
        "s_lshl_b32 s34, s30, 6", f"s_add_u32 s34, s34, {LDS_S + 1536}", "v_add_u32 v13, s34, v13",
        f"ds_read_b128 {r4(XB0+16)}, v12", f"ds_read_b128 {r4(XB0+20)}, v12 offset:64", f"ds_read_b128 {r4(XB0+24)}, v13")
    k.e("v_lshlrev_b32 v9, 2, v2", f"v_add_u32 v9, {LDS_MU}, v9", "s_and_b32 s34, s46, 3", "s_lshl_b32 s34, s34, 6", "v_add_u32 v10, s34, v9")
    k.e(f"s_movk_i32 s53, {D*T*1024}")
    k.e("s_cmp_lg_u32 s30, 0", "s_cbranch_scc1 ffn_g")
    k.e("v_and_b32 v12, 7, v1", "v_lshlrev_b32 v12, 3, v12", "s_lshl_b32 s34, s47, 7", f"s_add_u32 s34, s34, {F2}",
        "v_lshlrev_b32 v8, 10, v3", "v_lshl_add_u32 v8, v2, 4, v8", "s_lshl_b32 s35, s47, 12", f"s_add_u32 s35, s35, {WS_ST}")
    lds_wait(k, LDS_CNT + 8, 4, "own", va=14, vb=15, sleep=2)
    poll(k, 12, 34, 14, "h", sleep=int(os.environ.get("HSP", "3")))
    for p in range(4):
        k.e(f"buffer_load_dwordx4 {r4(XB0+4*p)}, v8, s[16:19], s35 offen offset:{256*p} sc1")
    k.label("ffn_g")
    k.e("s_barrier")
    stb(k, 5)
    NF = int(os.environ.get("NF", "2"))
    for i in range(NF):
        k.e(f"s_add_u32 m0, s42, {i*12288}", f"s_add_u32 s36, s41, {i*3072}", "buffer_load_dwordx4 v11, s[16:19], s36 offen sc1 lds")
    k.e("s_cmp_lg_u32 s30, 0", "s_cbranch_scc1 ffn_st")
    k.e(f"s_waitcnt vmcnt({NF})")
    for p in range(1, 4):
        for c in range(4):
            k.e(f"v_add_f32 v{XB0+c}, v{XB0+c}, v{XB0+4*p+c}")
    k.e(f"v_add_f32 v4, v{XB0}, v{XB0+2}", f"v_add_f32 v5, v{XB0+1}, v{XB0+3}",
        f"v_mul_f32 v4, {hex(f2u(-1/576))}, v4", f"v_mul_f32 v5, {hex(f2u(1/576))}, v5", "v_fma_f32 v5, -v4, v4, v5", "v_max_f32 v5, 0, v5",
        f"v_add_f32 v5, {hex(f2u(1e-5))}, v5", "v_rsq_f32 v5, v5", "v_lshlrev_b32 v6, 2, v1", f"v_add_u32 v6, {LDS_MU}, v6",
        "ds_write_b32 v6, v4", "ds_write_b32 v6, v5 offset:256")
    lds_signal(k, LDS_MUS)
    k.label("ffn_st")
    lds_wait(k, LDS_MUS, 1, "mus")
    for i in range(NF, 4):
        k.e(f"s_add_u32 m0, s42, {i*12288}", f"s_add_u32 s36, s41, {i*3072}", "buffer_load_dwordx4 v11, s[16:19], s36 offen sc1 lds")
    sto(k, 8)
    for mb in range(4):
        k.e(f"ds_read_b32 v{4+mb}, v9 offset:{64*mb}")
    k.e("ds_read_b32 v8, v10 offset:256", "s_waitcnt lgkmcnt(0)")
    for t in range(T):
        for mb in range(4):
            for i in range(4):
                k.e(f"v_mul_f32 v{acc(t,mb)+i}, v{4+mb}, v{XB0+16+4*t+i}")
    k.e("s_add_u32 s41, s41, 12288", "s_add_u32 s42, s42, 49152")
    k.e("s_waitcnt vmcnt(3)", "s_barrier")
    stb(k, 6)
    k.e("v_mov_b32 v10, v11", "s_mov_b32 s31, 0")

    def step(u, loads=True):
        xb = XB0 + 16 * (u % 2)
        xn = XB0 + 16 * ((u + 1) % 2)
        fill = [f"ds_read_b128 {r4(xn+4*mb)}, v10 offset:{(u+1)*4096 + 1024*mb}" for mb in range(4)]
        if loads:
            fill += [wload((u + D - 1) % D, t) for t in range(T)]
            fill += [f"s_add_u32 s53, s53, {T*1024}"]
        for t in range(T):
            for mb in range(4):
                a = r4(acc(t, mb))
                k.e(f"v_mfma_f32_16x16x32_bf16 {a}, {r4(wreg(u, t))}, {r4(xb+4*mb)}, {a}")
                if fill:
                    k.e(fill.pop(0))
    for mb in range(4):
        k.e(f"ds_read_b128 {r4(XB0+4*mb)}, v10 offset:{1024*mb}")
    k.e("s_waitcnt lgkmcnt(0)")
    step(0, loads=False)
    k.e("s_branch ffn_u1")
    k.label("ffn_start")
    for mb in range(4):
        k.e(f"ds_read_b128 {r4(XB0+4*mb)}, v10 offset:{1024*mb}")
    k.e(".p2align 6")
    k.label("ffn_loop")
    k.e("s_cmp_lg_u32 s31, 1", "s_cbranch_scc1 ffn_nodma")
    for i in range(2):
        k.e(f"s_add_u32 m0, s42, {i*12288}", f"s_add_u32 s36, s41, {i*3072}", "buffer_load_dwordx4 v11, s[16:19], s36 offen sc1 lds")
    k.label("ffn_nodma")
    for u in range(D):
        if u == 1:
            k.label("ffn_u1")
        k.e(f"s_waitcnt vmcnt({4*T}) lgkmcnt(0)")
        if u == D - 1:
            k.e("s_cmp_ge_u32 s31, 2", "s_cbranch_scc1 ffn_nobar", "s_barrier")
            k.label("ffn_nobar")
        if u == 2:
            k.e("s_cmp_lg_u32 s31, 0", "s_cbranch_scc1 ffn_nobar2", "s_waitcnt vmcnt(5)", "s_barrier")
            k.label("ffn_nobar2")
        step(u)
    k.e(f"v_add_u32 v10, {D*4096}, v10", "s_add_u32 s31, s31, 1",
        "s_cmp_eq_u32 s31, 3", "s_cbranch_scc1 ffn_ep1",
        "s_cmp_lt_u32 s31, 6", "s_cbranch_scc1 ffn_loop")
    stb(k, 8)
    k.e("s_waitcnt lgkmcnt(0)")
    k.e(f"s_mul_i32 s34, s46, {XB}", "s_mul_i32 s33, s47, 73728", f"s_add_u32 s33, s33, {WS_P}", "s_add_u32 s34, s34, s33",
        "s_lshl_b32 s35, s30, 10", "s_add_u32 s36, s34, s35",
        "s_cmp_ge_u32 s30, 6", "s_movk_i32 s37, 12288", f"s_cselect_b32 s37, {12288 + 18432 - 6144}, s37", "s_add_u32 s37, s37, s36")
    for mb in range(4):
        d = XB0 + 4 * mb
        a, b = acc(0, mb), acc(1, mb)
        for i in range(4):
            k.e(f"v_cvt_pk_bf16_f32 v{d+i}, v{a+i}, v{b+i}")
        k.e(f"buffer_store_dwordx4 {r4(d)}, v11, s[16:19], s36 offen sc1", "s_add_u32 s36, s36, 18432")
    for h in range(2):
        d = XB0 + 16 + 4 * h
        a, b = acc(2, 2 * h), acc(2, 2 * h + 1)
        k.e(f"v_cvt_pk_bf16_f32 v{d}, v{a}, v{a+1}", f"v_cvt_pk_bf16_f32 v{d+1}, v{a+2}, v{a+3}",
            f"v_cvt_pk_bf16_f32 v{d+2}, v{b}, v{b+1}", f"v_cvt_pk_bf16_f32 v{d+3}, v{b+2}, v{b+3}")
        k.e(f"buffer_store_dwordx4 {r4(d)}, v11, s[16:19], s37 offen sc1", "s_add_u32 s37, s37, 36864")
    stt(k, 3)
    k.e("s_lshl_b32 s38, s47, 9", f"s_add_u32 s38, s38, {F3}", "s_lshr_b32 s36, s30, 2", "s_lshl_b32 s35, s36, 7", "s_add_u32 s38, s38, s35",
        "s_lshl_b32 s35, s46, 3", "s_add_u32 s34, s38, s35",
        "s_lshl_b32 s44, s36, 2", f"s_add_u32 s44, s44, {LDS_CNT + 12}", "s_waitcnt vmcnt(0)")
    stt(k, 4)
    stt(k, 5)
    stt(k, 6)
    arrive(k, 0, 4, 34, "r", cnt_sgpr=44)
    k.e("s_add_u32 s44, s44, 12", "v_mov_b32 v10, s44")
    k.e("s_and_b32 s35, s30, 3", "s_cmp_lg_u32 s35, 3", "s_cbranch_scc1 mega_red")
    if os.environ.get("DEFER", "1") == "1":
        if os.environ.get("DEF0", "1") == "1":
            k.e("s_cmp_eq_u32 s30, 3", f"s_mov_b32 s35, {LDS_CNT + 20}", f"s_cselect_b32 s35, {LDS_CNT + 16}, s35")
            lds_wait(k, "s35", 4, "t2", sleep=4)
        else:
            lds_wait(k, LDS_CNT + 20, 4, "t2", sleep=4)
    k.e("v_and_b32 v12, 7, v1", "v_lshlrev_b32 v12, 3, v12")
    poll(k, 12, 38, 14, "r", sleep=int(os.environ.get("RSP", "3")))
    k.e("v_mov_b32 v13, 1", "ds_write_b32 v10, v13", "s_waitcnt lgkmcnt(0)", "s_branch mega_fin")
    k.label("mega_red")
    k.e(
        "s_lshl_b32 s37, s36, 2", "s_lshl_b32 s39, s35, 1", "s_add_u32 s37, s37, s39",
        "s_lshl_b32 s39, s36, 1", "s_add_u32 s39, s39, 12", "s_cmp_eq_u32 s35, 2", "s_cselect_b32 s37, s39, s37",
        "s_lshr_b32 s39, s46, 2", "s_add_u32 s37, s37, s39",
        "s_and_b32 s39, s46, 3",
        "s_mul_i32 s34, s39, 18432", "s_lshl_b32 s41, s37, 10", "s_add_u32 s34, s34, s41")
    k.e("s_sub_u32 s41, s37, 12", "s_lshl_b32 s41, s41, 11", "s_cmp_ge_u32 s37, 15", "s_movk_i32 s42, 12288",
        f"s_cselect_b32 s42, {12288 + 18432 - 6144}, s42", "s_add_u32 s41, s41, s42", "s_lshr_b32 s42, s39, 1", "s_mul_i32 s42, s42, 36864",
        "s_add_u32 s41, s41, s42", "s_and_b32 s42, s39, 1", "s_lshl_b32 s42, s42, 3", "s_add_u32 s41, s41, s42",
        "s_mov_b32 s43, s35", "s_cmp_eq_u32 s35, 2", "s_cselect_b32 s34, s41, s34", "s_cselect_b32 s42, 1024, 8",
        "s_add_u32 s33, s33, s34", "s_add_u32 s42, s42, s33")
    k.e("s_lshl_b32 s35, s37, 2", "s_add_u32 s35, s35, s39", "s_lshl_b32 s35, s35, 10", "v_add_u32 v13, s35, v11",
        f"ds_read_b128 {r4(WR+32)}, v13")
    srd(k, 20, 14, XB)
    k.e("s_lshl_b32 s35, s47, 2", "s_add_u32 s35, s35, s39", "s_mul_i32 s35, s35, 18432", "s_lshl_b32 s37, s37, 6",
        "s_add_u32 s37, s37, s35", "s_movk_i32 s35, 1152", "v_mul_u32_u24 v9, s35, v2", "v_lshl_add_u32 v9, v3, 4, v9")
    k.e("v_mov_b32 v5, 0x00003f80", "v_mov_b32 v6, 0x3f800000")
    for i in range(8):
        k.e(f"v_mov_b32 v{ACC+i}, 0")
    k.e(f"s_mov_b32 s3, {SPIN*8}")
    k.label("mega_lspin")
    k.e("ds_read_b32 v14, v10", "s_waitcnt lgkmcnt(0)", "v_readfirstlane_b32 s38, v14", "s_cmp_lg_u32 s38, 0", "s_cbranch_scc1 mega_lspind",
        "s_sleep 2", "s_sub_u32 s3, s3, 1", "s_cbranch_scc0 mega_lspin")
    k.label("mega_lspind")
    stt(k, 5)
    k.e("s_cmp_eq_u32 s43, 2", "s_cbranch_scc1 mega_ld_s")
    for j in range(8):
        k.e(f"buffer_load_dwordx4 {r4(WR+4*j)}, v11, s[16:19], s33 offen sc1", f"s_add_u32 s33, s33, {XB}")
    k.e("s_branch mega_ld_o")
    k.label("mega_ld_s")
    for j in range(8):
        k.e(f"buffer_load_dwordx2 v[{WR+4*j}:{WR+4*j+1}], v11, s[16:19], s33 offen sc1", f"s_add_u32 s33, s33, {XB}")
    for j in range(8):
        k.e(f"buffer_load_dwordx2 v[{WR+4*j+2}:{WR+4*j+3}], v11, s[16:19], s42 offen sc1", f"s_add_u32 s42, s42, {XB}")
    k.label("mega_ld_o")
    k.e("s_waitcnt lgkmcnt(0)")
    for i in range(4):
        k.e(f"v_lshlrev_b32 v{ACC+8+2*i}, 16, v{WR+32+i}", f"v_and_b32 v{ACC+9+2*i}, 0xffff0000, v{WR+32+i}")
    for j in range(8):
        k.e(f"s_waitcnt vmcnt({7-j})")
        for i in range(4):
            k.e(f"v_dot2c_f32_bf16 v{ACC+2*i}, v{WR+4*j+i}, v5", f"v_dot2c_f32_bf16 v{ACC+2*i+1}, v{WR+4*j+i}, v6")
    stt(k, 6)
    k.e("s_cmp_eq_u32 s43, 2", "s_cbranch_scc1 mega_red_s")
    for i in range(8):
        k.e(f"v_fma_f32 v{ACC+8+i}, v{ACC+i}, v8, v{ACC+8+i}")
    k.e("s_branch mega_red_o")
    k.label("mega_red_s")
    for i in range(8):
        k.e(f"v_fma_f32 v{ACC+8+i}, v{ACC+(i//2)+4*(i%2)}, v8, v{ACC+8+i}")
    k.label("mega_red_o")
    for i in range(4):
        k.e(f"v_cvt_pk_bf16_f32 v{XB0+i}, v{ACC+8+2*i}, v{ACC+9+2*i}")
    k.e(f"buffer_store_dwordx4 {r4(XB0)}, v9, s[20:23], s37 offen")
    k.label("mega_fin")
    k.stamp_flush(1, 10, 16, 30, wpw=16)
    if os.environ.get("DBGOUT"):
        k.e("s_cmp_lg_u32 s2, 5", "s_cbranch_scc1 mega_end", "s_cmp_lg_u32 s30, 8", "s_cbranch_scc1 mega_end",
            "s_load_dwordx2 s[4:5], s[0:1], 72", "s_waitcnt lgkmcnt(0)", "s_nop 0")
        srd(k, 20, 4, 256)
        for i in range(1, 9):
            k.e(f"s_sub_u32 s34, s{81+2*i}, s81", "v_mov_b32 v4, s34", f"buffer_store_dword v4, v0, s[20:23], 0 offen offset:{4*i-4}",
                f"s_sub_u32 s34, s{80+2*i}, s80", "v_mov_b32 v5, s34", f"buffer_store_dword v5, v0, s[20:23], 0 offen offset:{4*i+28}", "s_waitcnt vmcnt(0)")
    k.e("s_endpgm")
    k.label("ffn_ep1")
    k.e("s_waitcnt lgkmcnt(0)")
    k.e("s_lshl_b32 s34, s30, 12", f"s_add_u32 s34, s34, {LDS_H}", "v_add_u32 v12, s34, v11")
    k.e("s_lshr_b32 s34, s30, 1", "s_lshl_b32 s34, s34, 12", "s_and_b32 s35, s30, 1", "s_lshl_b32 s35, s35, 3",
        "s_add_u32 s34, s34, s35", f"s_add_u32 s34, s34, {LDS_H + 49152}", "v_add_u32 v13, s34, v11")
    for mb in range(4):
        d = XB0 + 4 * mb
        a, b = acc(0, mb), acc(1, mb)
        for i in range(4):
            k.e(f"v_cvt_pk_bf16_f32 v{d+i}, v{a+i}, v{b+i}")
        for i in range(4):
            k.e(f"v_pk_max_i16 v{d+i}, v{d+i}, 0")
        k.e(f"ds_write_b128 v12, {r4(d)} offset:{mb*1024}")
    for mb in range(4):
        a = acc(2, mb)
        d = XB0 + 16 + 2 * mb
        k.e(f"v_cvt_pk_bf16_f32 v{d}, v{a}, v{a+1}", f"v_cvt_pk_bf16_f32 v{d+1}, v{a+2}, v{a+3}",
            f"v_pk_max_i16 v{d}, v{d}, 0", f"v_pk_max_i16 v{d+1}, v{d+1}, 0",
            f"ds_write_b64 v13, v[{d}:{d+1}] offset:{mb*1024}")
    for r in range(ACC, ACC + 16 * T):
        k.e(f"v_mov_b32 v{r}, 0")
    if os.environ.get("NOPRIO"):
        k.e("s_branch ffn_pr2")
    k.e("s_cmp_lt_u32 s30, 4", "s_cbranch_scc0 ffn_pr1", "s_setprio 2")
    k.label("ffn_pr1")
    k.e("s_and_b32 s34, s30, 12", "s_cmp_eq_u32 s34, 4", "s_cbranch_scc0 ffn_pr2", "s_setprio 1")
    k.label("ffn_pr2")
    k.e("s_waitcnt lgkmcnt(0)", "s_barrier")
    stb(k, 7)
    k.e("s_branch ffn_start")


def tr_addr(k, base0, base1, stride, extra_sgpr=None):
    k.e("v_lshrrev_b32 v32, 2, v2",
        "v_and_b32 v33, 1, v3", "v_lshlrev_b32 v33, 2, v33", "v_add_u32 v32, v32, v33",
        "v_lshl_add_u32 v32, v3, 3, v32", "v_xor_b32 v33, 4, v32", f"s_movk_i32 s40, {stride}",
        "v_and_b32 v34, 3, v2", "v_lshlrev_b32 v34, 3, v34", f"v_add_u32 v34, {base0}, v34")
    if extra_sgpr is not None:
        k.e(f"v_add_u32 v34, s{extra_sgpr}, v34")
    k.e("v_mad_u32_u24 v28, v32, s40, v34", "v_mad_u32_u24 v29, v33, s40, v34")
    if base1 is not None:
        k.e(f"v_add_u32 v30, {base1 - base0}, v28", f"v_add_u32 v31, {base1 - base0}, v29")


def x_read_addr(k, v, slot_sgpr):
    k.e(f"v_lshrrev_b32 v{v}, 2, v2", f"v_sub_u32 v{v}, 4, v{v}", f"v_and_b32 v{v}, 3, v{v}", f"v_xor_b32 v{v}, v{v}, v3",
        f"v_lshlrev_b32 v{v}, 4, v{v}", f"v_lshl_add_u32 v{v}, v2, 6, v{v}")
    if slot_sgpr is None:
        k.e(f"v_add_u32 v{v}, {A_X}, v{v}")
    else:
        k.e(f"v_add_u32 v{v}, s{slot_sgpr}, v{v}")


def get_nonce(k):
    k.e(f"v_mov_b32 v12, {LDS_NON}", "ds_read_b64 v[14:15], v12", "s_waitcnt lgkmcnt(0)",
        "v_readfirstlane_b32 s66, v14", "v_readfirstlane_b32 s67, v15")


def wq_rd(k, t, s, wf, b, par=False):
    ss = 4 * s if par else s
    a0, a1 = (28, 29) if ss < 8 else (30, 31)
    off = (ss if ss < 8 else ss - 8) * 5120 + 32 * t
    k.e(f"ds_read_b64_tr_b16 v[{wf+4*b}:{wf+4*b+1}], v{a0} offset:{off}",
        f"ds_read_b64_tr_b16 v[{wf+4*b+2}:{wf+4*b+3}], v{a1} offset:{off}")


QCH = [(0, 8), (8, 12), (12, 18)]


def a_qwave(k):
    k.e("; ==== LN1 + Q projection (waves 0..3), LN folded into the epilogue")
    k.e("s_setprio 2")
    k.e("s_sub_u32 s34, s30, s29", "s_and_b32 s34, s34, 3", "s_mul_i32 s43, s34, 18432", f"s_add_u32 s43, s43, {A_X}",
        "s_lshl_b32 s35, s28, 2", "s_add_u32 s35, s35, s30", "s_mul_i32 s35, s35, 18432", "s_lshl_b32 s36, s48, 6")
    k.e("v_lshrrev_b32 v5, 2, v1", "v_sub_u32 v6, 4, v3", "v_xor_b32 v6, v6, v1", "v_and_b32 v6, 3, v6",
        "s_movk_i32 s41, 1152", "v_mul_u32_u24 v5, s41, v5", "v_lshl_add_u32 v4, v6, 4, v5", "v_add_u32 v4, s35, v4")
    k.e("s_cmp_eq_u32 s34, 0", "s_cbranch_scc1 a_q_first", "s_barrier")
    k.label("a_q_first")
    for s in range(18):
        k.e(f"s_add_u32 m0, s43, {s*1024}", "s_nop 0", "buffer_load_dwordx4 v4, s[20:23], s36 offen lds",
            "s_add_u32 s36, s36, 64", "s_cmp_eq_u32 s36, s41", "s_cselect_b32 s36, 0, s36")
    k.e("s_cmp_lg_u32 s34, 0", "s_cbranch_scc1 a_q_second", "s_barrier")
    k.label("a_q_second")
    tr_addr(k, A_WQ0, A_WQ1, 160)
    x_read_addr(k, 35, 43)
    for r in range(QACC, QACC + 20):
        k.e(f"v_mov_b32 v{r}, 0")
    for b in QACS:
        for i in range(4):
            k.e(f"v_mov_b32 v{b+i}, 0")
    for i in range(4):
        k.e(f"v_mov_b32 v{QONES+i}, 0x3f803f80")
    k.e("v_mov_b32 v6, 0", "v_mov_b32 v7, 0")
    for part in range(3):
        k.e(f"s_waitcnt vmcnt({18 - 6*(part+1)})")
        if part == 2:
            k.e("s_cmp_lg_u32 s34, 0", "s_cbranch_scc1 a_q_nosig")
            lds_signal(k, LDS_KVI)
            k.label("a_q_nosig")
        for s in range(6 * part, 6 * part + 6):
            k.e(f"ds_read_b128 {r4(QX0+4*s)}, v35 offset:{1024*s}")
        if part:
            k.e("s_waitcnt lgkmcnt(6)")
            for r in range(QX0 + 24 * (part - 1), QX0 + 24 * part):
                k.e(f"v_dot2c_f32_bf16 v6, v{r}, v{QONES}", f"v_dot2c_f32_bf16 v7, v{r}, v{r}")
    k.e("s_waitcnt lgkmcnt(0)")
    lds_signal(k, LDS_XC)
    k.stamp(1)
    for r in range(QX0 + 48, QX0 + 72):
        k.e(f"v_dot2c_f32_bf16 v6, v{r}, v{QONES}", f"v_dot2c_f32_bf16 v7, v{r}, v{r}")
    reduce_g_add(k, [6, 7], [32, 33])
    k.e(f"v_mul_f32 v6, {hex(f2u(1/576))}, v6", f"v_mul_f32 v7, {hex(f2u(1/576))}, v7",
        "v_fma_f32 v7, -v6, v6, v7", "v_max_f32 v7, 0, v7", f"v_add_f32 v7, {hex(f2u(1e-5))}, v7", "v_rsq_f32 v7, v7")
    k.e("s_cmp_lg_u32 s34, 0", "s_cbranch_scc1 a_q_nost")
    k.e("v_lshlrev_b32 v32, 2, v2", f"v_add_u32 v32, {A_ST}, v32", "ds_write_b32 v32, v6", "ds_write_b32 v32, v7 offset:64",
        "s_waitcnt lgkmcnt(0)")
    lds_signal(k, LDS_KVS)
    k.label("a_q_nost")
    k.e(f"v_mul_f32 v34, {hex(f2u(QSCALE))}, v7")
    k.e("s_mul_i32 s35, s30, 2304", f"s_add_u32 s35, s35, {LDS_OST}", "v_lshrrev_b32 v35, 1, v3", "v_lshlrev_b32 v35, 8, v35",
        "v_lshl_add_u32 v35, v2, 4, v35", "v_and_b32 v32, 1, v3", "v_lshl_add_u32 v35, v32, 3, v35", "v_add_u32 v35, s35, v35")
    sta(k, 3)
    k.label("a_q_gemm")
    for ci, (s0, s1) in enumerate(QCH):
        k.e("s_cmp_ge_u32 s30, 4", f"s_cbranch_scc1 mega_lwd_q{ci}")
        lds_wait(k, LDS_WQC + 4 * ci, 4, f"q{ci}")
        def rd2(t, s, b):
            a0, a1 = (28, 29) if s < 8 else (30, 31)
            off = (s if s < 8 else s - 8) * 5120 + 32 * t
            return [f"ds_read_b64_tr_b16 v[{QWF+4*b}:{QWF+4*b+1}], v{a0} offset:{off}",
                    f"ds_read_b64_tr_b16 v[{QWF+4*b+2}:{QWF+4*b+3}], v{a1} offset:{off}"]
        roll_gemm2(k, list(range(s0, s1)), rd2,
                   lambda t, s, b: [f"v_mfma_f32_16x16x32_bf16 {r4(QACC+4*t)}, {r4(QWF+4*b)}, {r4(QX0+4*s)}, {r4(QACC+4*t)}",
                                    f"v_mfma_f32_16x16x32_bf16 {r4(QACS[t])}, {r4(QWF+4*b)}, {r4(QONES)}, {r4(QACS[t])}"])
    k.e("s_cmp_ge_u32 s30, 4", "s_cbranch_scc1 a_s_done")
    sta(k, 7)
    k.e("s_setprio 3")
    lds_signal(k, LDS_WDN)
    sta(k, 8)
    for t in range(5):
        a = QACC + 4 * t
        for i in range(4):
            k.e(f"v_fma_f32 v{a+i}, -v6, v{QACS[t]+i}, v{a+i}")
        for i in range(4):
            k.e(f"v_mul_f32 v{a+i}, v34, v{a+i}")
        k.e(f"v_cvt_pk_bf16_f32 v{QWF+2*t}, v{a}, v{a+1}", f"v_cvt_pk_bf16_f32 v{QWF+2*t+1}, v{a+2}, v{a+3}")
        if t == 4:
            k.e(ex(0xffffffff))
        k.e(f"ds_write_b64 v35, v[{QWF+2*t}:{QWF+2*t+1}] offset:{512*t}")
    k.e("s_lshr_b32 s35, s30, 1", "s_lshl_b32 s35, s35, 2", f"s_add_u32 s35, s35, {LDS_QRD}", "v_mov_b32 v12, s35", "v_mov_b32 v13, 1",
        ex(1), "ds_add_u32 v12, v13", ex(-1))


def wkv_rd(k, s, wf):
    for t in range(2):
        off = s * 1536 + 32 * t
        k.e(f"ds_read_b64_tr_b16 v[{wf+4*t}:{wf+4*t+1}], v28 offset:{off}",
            f"ds_read_b64_tr_b16 v[{wf+4*t+2}:{wf+4*t+3}], v29 offset:{off}")


def a_wkv_dma(k):
    k.e("s_cmp_lt_u32 s29, 4", "s_cselect_b32 s20, s70, s72", "s_cselect_b32 s21, s71, s73", f"s_mov_b32 s22, {WKB}", "s_mov_b32 s23, 0x00020000")
    k.e("s_movk_i32 s40, 21846")
    for i in range(3):
        k.e(f"v_add_u32 v32, {64*i}, v1", "v_mul_u32_u24 v33, s40, v32", "v_lshrrev_b32 v33, 16, v33", "v_mul_u32_u24 v34, 3, v33",
            "v_sub_u32 v34, v32, v34", "v_lshlrev_b32 v34, 4, v34", "v_min_u32 v34, 20, v34",
            "v_and_b32 v35, 8, v33", "v_lshrrev_b32 v35, 1, v35", "v_xor_b32 v35, v35, v33", f"v_mad_u32_u24 v{16+i}, v35, 36, v34")
    k.e("s_sub_u32 s34, s30, 4", "s_mul_i32 s34, s34, 3", "s_mul_i32 s43, s34, 3072", "s_lshr_b32 s35, s48, 1", "s_add_u32 s35, s35, s34",
        "s_sub_u32 s36, s35, 9", "s_min_u32 s35, s35, s36", "s_mul_i32 s35, s35, 2304")
    for g in range(3):
        for i in range(3):
            k.e(f"s_add_u32 m0, s43, {A_WKV + g*3072 + i*1024}", "s_nop 0", f"buffer_load_dwordx4 v{16+i}, s[20:23], s35 offen lds")
        k.e("s_add_u32 s35, s35, 2304", f"s_cmp_eq_u32 s35, {9*2304}", "s_cselect_b32 s35, 0, s35")


def a_kvwave(k):
    k.e("; ==== K or V projection of 16 rows (wave 4), published to every workgroup")
    k.e("s_setprio 3")
    a_wkv_dma(k)
    k.e("s_barrier")
    tr_addr(k, A_WKV, None, 48)
    x_read_addr(k, 35, None)
    for r in range(QACC, QACC + 8):
        k.e(f"v_mov_b32 v{r}, 0")
    k.e("s_lshr_b32 s41, s28, 1", f"s_mul_i32 s41, s41, {GRP}", f"s_add_u32 s41, s41, {WS_KV}",
        "s_and_b32 s42, s28, 1", "s_lshl_b32 s42, s42, 1", "s_bfe_u32 s43, s29, 0x10001", "s_add_u32 s42, s42, s43",
        "s_and_b32 s43, s29, 1",
        "s_lshl_b32 s49, s28, 7", "s_lshl_b32 s34, s29, 3", "s_add_u32 s49, s49, s34", f"s_add_u32 s49, s49, {FK}")
    k.e("s_waitcnt vmcnt(0)")
    lds_signal(k, LDS_WKI)
    lds_wait(k, LDS_KVI, 3, "kvi")
    k.stamp(1)
    k.e("s_cmp_ge_u32 s29, 4", "s_cbranch_scc1 a_kv_v")
    for isv in (False, True):
        if isv:
            k.label("a_kv_v")

        def rd(s):
            b = s % 3
            k.e(f"ds_read_b128 {r4(QX0+4*b)}, v35 offset:{1024*s}")
            wkv_rd(k, s, QX0 + 12 + 8 * b)
        rd(0)
        rd(1)
        for s in range(18):
            b = s % 3
            if s + 2 < 18:
                rd(s + 2)
            k.e(f"s_waitcnt lgkmcnt({min(10, 5*(17-s))})")
            for t in range(2):
                a, w, x = r4(QACC + 4 * t), r4(QX0 + 12 + 8 * b + 4 * t), r4(QX0 + 4 * b)
                k.e(f"v_mfma_f32_16x16x32_bf16 {a}, {x}, {w}, {a}" if isv else f"v_mfma_f32_16x16x32_bf16 {a}, {w}, {x}, {a}")
        sta(k, 3)
        lds_wait(k, LDS_KVS, 2, "kv" + ("v" if isv else "k"))
        sta(k, 4)
        A = QACC
        if not isv:
            k.e("v_lshlrev_b32 v32, 4, v3", f"v_add_u32 v32, {A_SKV}, v32", "v_lshlrev_b32 v33, 2, v2", f"v_add_u32 v33, {A_ST}, v33",
                "ds_read_b128 v[16:19], v32", "ds_read_b128 v[20:23], v32 offset:64", "ds_read_b32 v6, v33", "ds_read_b32 v7, v33 offset:64")
            k.e("s_lshl_b32 s38, s43, 8", "v_lshlrev_b32 v36, 4, v2", "v_add_u32 v36, s38, v36",
                "v_lshrrev_b32 v37, 1, v3", "v_lshl_add_u32 v37, v37, 9, v36",
                "s_lshl_b32 s38, s42, 10", "s_add_u32 s38, s38, s41",
                "s_lshl_b32 s39, s42, 2", "s_add_u32 s39, s39, s41", f"s_add_u32 s39, s39, {KV_K2}")
            k.e("s_waitcnt lgkmcnt(0)")
            for i in range(8):
                k.e(f"v_fma_f32 v{A+i}, -v6, v{16+i}, v{A+i}")
            for i in range(8):
                k.e(f"v_mul_f32 v{A+i}, v7, v{A+i}")
            k.e(f"v_cvt_pk_bf16_f32 v40, v{A}, v{A+1}", f"v_cvt_pk_bf16_f32 v41, v{A+2}, v{A+3}", f"v_cvt_pk_bf16_f32 v44, v{A+6}, v{A+7}")
            k.e("v_permlane16_swap_b32 v40, v42", "v_permlane16_swap_b32 v41, v43")
            k.e(ex(0x0000ffff0000ffff), "buffer_store_dwordx4 v[40:43], v37, s[16:19], s38 offen sc1",
                ex(0xffff0000), "buffer_store_dword v44, v36, s[16:19], s39 offen sc1", ex(-1))
            k.e("s_or_b32 s39, s42, s28", "s_cmp_lg_u32 s39, 0", "s_cbranch_scc1 a_kv_nod", f"s_add_u32 s38, s38, {IMG}",
                ex(0x0000ffff0000ffff), "buffer_store_dwordx4 v[40:43], v37, s[16:19], s38 offen sc1", ex(-1))
            k.label("a_kv_nod")
            k.e("s_or_b32 s38, s42, s43", "s_cmp_lg_u32 s38, 0", "s_cbranch_scc1 a_kv_noc")
            k.e("v_mov_b32 v24, 0x3f803f80", "v_mov_b32 v25, 0x00003f80", "v_mov_b32 v26, 0x3f803f80", "v_mov_b32 v27, 0x00003f80",
                "v_mov_b32 v12, 0", f"s_add_u32 s38, s41, {KV_K2 + 512}", ex(1), "buffer_store_dwordx4 v[24:27], v12, s[16:19], s38 offen sc1", ex(-1))
            k.label("a_kv_noc")
            k.e(f"v_mul_f32 v45, v{A+6}, v{A+6}", f"v_fmac_f32 v45, v{A+7}, v{A+7}",
                "v_cmp_eq_u32 vcc, 1, v3", "v_cndmask_b32 v45, 0, v45, vcc")
            for i in range(4):
                k.e(f"v_fmac_f32 v45, v{A+i}, v{A+i}")
            reduce_g_add(k, [45], [46])
            for sh in (8, 4, 2, 1):
                k.e(f"v_max_f32_dpp v45, v45, v45 row_ror:{sh} row_mask:0xf bank_mask:0xf")
            k.e("s_branch a_kv_pub")
        else:
            k.e("v_lshlrev_b32 v32, 2, v2", f"v_add_u32 v32, {A_SKV}, v32", "v_lshlrev_b32 v33, 4, v3", f"v_add_u32 v33, {A_ST}, v33",
                "ds_read_b32 v6, v32", "ds_read_b32 v7, v32 offset:64", "ds_read_b128 v[16:19], v33", "ds_read_b128 v[20:23], v33 offset:64")
            k.e("s_mul_i32 s38, s42, 1216", "s_mul_i32 s39, s43, 608", "s_add_u32 s38, s38, s39", "s_add_u32 s38, s38, s41",
                f"s_add_u32 s38, s38, {KV_V}", "s_movk_i32 s39, 304", "v_and_b32 v36, 1, v3", "v_mul_u32_u24 v37, s39, v36",
                "v_lshl_add_u32 v37, v2, 4, v37", "v_lshrrev_b32 v36, 1, v3", "s_movk_i32 s39, 160", "v_mad_u32_u24 v37, v36, s39, v37")
            k.e("s_waitcnt lgkmcnt(0)")
            for t in range(2):
                for i in range(4):
                    k.e(f"v_fma_f32 v{A+4*t+i}, -v{16+i}, v{6+t}, v{A+4*t+i}")
                for i in range(4):
                    k.e(f"v_mul_f32 v{A+4*t+i}, v{20+i}, v{A+4*t+i}")
            for i in range(4):
                k.e(f"v_cvt_pk_bf16_f32 v{40+i}, v{A+2*i}, v{A+2*i+1}")
            k.e("v_mov_b32 v39, 0x3f803f80", "v_cmp_eq_u32 vcc, 8, v2", "v_cndmask_b32 v42, v42, v39, vcc", "v_cndmask_b32 v43, v43, v39, vcc")
            k.e("v_permlane32_swap_b32 v40, v42", "v_permlane32_swap_b32 v41, v43")
            k.e(ex(0x01c001c0ffffffff), "buffer_store_dwordx4 v[40:43], v37, s[16:19], s38 offen sc1", ex(-1), "v_mov_b32 v45, 0")
    k.label("a_kv_pub")
    sta(k, 5)
    lds_wait(k, LDS_NON, 1, "non")
    get_nonce(k)
    k.e("v_mov_b32 v44, s66", "v_mov_b32 v12, 0", "s_waitcnt vmcnt(0)")
    sta(k, 6)
    k.e(ex(1), "buffer_store_dwordx2 v[44:45], v12, s[16:19], s49 offen sc1", ex(-1))
    k.e("s_waitcnt vmcnt(0)")
    lds_signal(k, LDS_KVS)
    sta(k, 7)
    sta(k, 8)


def a_swave(k):
    k.e("s_setprio 3")
    k.e("s_cmp_eq_u32 s30, 7", "s_cbranch_scc1 a_s_7")
    a_wkv_dma(k)
    k.e("s_barrier", "s_branch a_s_c")
    k.label("a_s_7")
    if os.environ.get("PFC", "1") == "1":
        k.e("s_mul_i32 s34, s47, 1536", "v_min_u32 v12, 11, v1", "v_lshlrev_b32 v12, 7, v12", "v_add_u32 v12, s34, v12",
            f"v_min_u32 v12, CODE_BYTES - 4, v12", "global_load_dword v18, v12, s[62:63]")
    srd(k, 56, 74, 256)
    k.e("v_mov_b32 v10, 0", "s_cmp_lg_u32 s2, 0", "s_cbranch_scc1 a_s_nn")
    k.e("s_memrealtime s[60:61]", "s_waitcnt lgkmcnt(0)", "s_or_b32 s60, s60, 1", "v_mov_b32 v14, s60", "v_mov_b32 v15, s61", ex(1),
        "buffer_store_dwordx2 v[14:15], v10, s[56:59], 0 offen sc1", ex(-1))
    k.label("a_s_nn")
    k.e("v_min_u32 v12, 35, v1", "v_lshlrev_b32 v12, 2, v12", f"v_add_u32 v12, {LDS_RDY}, v12", "v_mov_b32 v13, 0",
        "ds_write_b32 v12, v13", "v_lshlrev_b32 v12, 2, v1", f"v_add_u32 v12, {A_SQ}, v12", "ds_write_b32 v12, v13", "ds_write_b32 v12, v13 offset:64",
        "s_waitcnt lgkmcnt(0)")
    if os.environ.get("TOUCH", "0") == "1":
        k.e("buffer_load_dword v18, v10, s[56:59], 0 offen sc1", f"s_mov_b32 s34, {FK}", "buffer_load_dword v19, v10, s[16:19], s34 offen sc1",
            f"s_mov_b32 s34, {WS_KV}", "buffer_load_dword v20, v10, s[16:19], s34 offen sc1")
    k.e("s_barrier")
    sta(k, 4)
    sta(k, 5)
    sta(k, 6)
    sta(k, 7)
    sta(k, 8)
    k.e(f"s_mov_b32 s3, {SPIN}")
    k.label("a_s_np")
    k.e("s_sleep 4", "buffer_load_dwordx2 v[14:15], v10, s[56:59], 0 offen sc1", "s_sleep 4", "buffer_load_dwordx2 v[16:17], v10, s[56:59], 0 offen sc1",
        "s_waitcnt vmcnt(1)", "v_readfirstlane_b32 s39, v14", "s_cmp_lg_u32 s39, 0", "s_cbranch_scc1 a_s_nd",
        "s_waitcnt vmcnt(0)", "v_mov_b32 v14, v16", "v_mov_b32 v15, v17", "v_readfirstlane_b32 s39, v16", "s_cmp_lg_u32 s39, 0", "s_cbranch_scc1 a_s_nd",
        "s_sub_u32 s3, s3, 1", "s_cbranch_scc0 a_s_np")
    k.label("a_s_nd")
    k.e(f"v_mov_b32 v12, {LDS_NON}", "ds_write_b64 v12, v[14:15]")
    k.label("a_s_c")
    for i in range(4):
        k.e(f"v_mov_b32 v{QONES+i}, 0x3f803f80")
    for r in range(QACC, QACC + 20):
        k.e(f"v_mov_b32 v{r}, 0")
    k.e("s_cmp_lg_u32 s30, 5", "s_cbranch_scc1 a_s_q")
    tr_addr(k, A_WKV, None, 48)
    k.e("s_waitcnt vmcnt(0)")
    lds_signal(k, LDS_KVI)
    lds_signal(k, LDS_WKI)
    lds_wait(k, LDS_WKI, 3, "wki")
    k.stamp(1)
    wkv_rd(k, 0, QX0)
    wkv_rd(k, 1, QX0 + 8)
    for s in range(18):
        if s + 2 < 18:
            wkv_rd(k, s + 2, QX0 + 8 * ((s + 2) % 3))
        k.e(f"s_waitcnt lgkmcnt({min(8, 4*(17-s))})")
        for t in range(2):
            a = r4(QACC + 4 * t)
            k.e(f"v_mfma_f32_16x16x32_bf16 {a}, {r4(QONES)}, {r4(QX0+8*(s%3)+4*t)}, {a}")
    k.e("v_lshlrev_b32 v32, 2, v2", f"v_add_u32 v32, {A_SKV}, v32", f"ds_write_b32 v32, v{QACC}", f"ds_write_b32 v32, v{QACC+4} offset:64",
        "s_waitcnt lgkmcnt(0)")
    lds_signal(k, LDS_KVS)
    k.e("s_branch a_s_done")
    k.label("a_s_q")
    k.e("s_cmp_eq_u32 s30, 7", "s_cbranch_scc1 a_s_nx", "s_waitcnt vmcnt(0)")
    lds_signal(k, LDS_KVI)
    lds_signal(k, LDS_WKI)
    if os.environ.get("DRY", "0") == "1":
        k.stamp(1)
        tr_addr(k, A_WQ0, A_WQ1, 160)
        k.e("s_setprio 0", "s_branch a_q_gemm")
    k.label("a_s_nx")
    k.stamp(1)
    k.label("a_s_done")
    k.e("s_waitcnt vmcnt(0)")


def a_helper(k):
    k.e("; ==== helper waves: wq loader, then K/V gather")
    k.e("s_setprio 1", "s_sub_u32 s31, s30, 8")
    srd(k, 20, 68, WQB)
    if os.environ.get("PFQ", "1") == "1":
        k.e("s_cmp_lg_u32 s31, 0", "s_cbranch_scc1 a_h_nopf",
            "v_min_u32 v12, 20, v1", "v_lshlrev_b32 v12, 7, v12", "s_mul_i32 s34, s2, 2592", "s_and_b32 s34, s34, 0xffffff80",
            "buffer_load_dword v21, v12, s[20:23], s34 offen")
        k.label("a_h_nopf")
    k.e("s_movk_i32 s40, 6554", "s_movk_i32 s41, 1152")
    for i in range(5):
        dma_slot_calc(k, i, 32, 33, 34, 35)
        k.e("v_min_u32 v34, 8, v34", f"v_mul_u32_u24 v{16+i}, s41, v35", f"v_lshl_add_u32 v{16+i}, v34, 4, v{16+i}")
    k.e("s_add_u32 s42, s31, s48", "s_mul_i32 s32, s29, 144", "s_mul_i32 s43, s31, 5120")

    def wdma(base):
        k.e("s_sub_u32 s36, s42, 18", "s_min_u32 s42, s42, s36", "s_mul_i32 s36, s42, 36864", "s_add_u32 s36, s36, s32")
        for i in range(5):
            k.e(f"s_add_u32 m0, s43, {base + i*1024}", "s_nop 0", f"buffer_load_dwordx4 v{16+i}, s[20:23], s36 offen lds")
        k.e("s_add_u32 s42, s42, 4")
    k.e("s_barrier")
    wdma(A_WQ0)
    wdma(A_WQ0 + 20480)
    k.e("s_waitcnt vmcnt(0)")
    lds_signal(k, LDS_WQC)
    sta(k, 3)
    lds_wait(k, LDS_XC, 4, "xc")
    k.e("s_setprio 3")
    k.stamp(1)
    wdma(A_WQ1)
    wdma(A_WQ1 + 20480)
    k.e("s_cmp_ge_u32 s31, 2", "s_cbranch_scc1 a_h_skip")
    wdma(A_WQ1 + 40960)
    k.label("a_h_skip")
    for ci, n in ((1, 5), (2, 0)):
        k.e(f"s_waitcnt vmcnt({n})")
        lds_signal(k, LDS_WQC + 4 * ci)
        sta(k, 3 + ci)
    lds_wait(k, LDS_KVS, 3, "pub")
    get_nonce(k)
    sta(k, 6)
    k.e("v_lshrrev_b32 v10, 3, v1", "v_lshlrev_b32 v10, 7, v10", "v_and_b32 v9, 7, v1", "v_lshl_add_u32 v10, v9, 3, v10",
        "s_lshl_b32 s34, s31, 10", f"s_add_u32 s35, s34, {FK}")
    poll(k, 10, 35, 14, "k", sleep=int(os.environ.get("KSL", "10")), lo_only=True)
    sta(k, 7)
    k.e(f"v_mov_b32 v12, {LDS_KMX}", "ds_max_u32 v12, v15")
    lds_signal(k, LDS_KVR)
    k.e("s_lshr_b32 s35, s2, 3", "s_add_u32 s35, s35, s2", "s_and_b32 s35, s35, 15", f"s_mul_i32 s35, s35, {GRP}", "s_add_u32 s35, s35, s34",
        f"v_add_u32 v10, {WS_KV}, v11")
    lds_wait(k, LDS_KVR, 4, "kvr")
    k.e("s_or_b32 s36, s2, s31", "s_cmp_lg_u32 s36, 0", "s_cbranch_scc1 a_h_noclr")
    srd(k, 56, 74, 256)
    k.e("v_mov_b32 v12, 0", "v_mov_b32 v13, 0", ex(1), "buffer_store_dwordx2 v[12:13], v12, s[56:59], 0 offen sc1", ex(-1))
    k.label("a_h_noclr")
    sta(k, 8)
    kv_dma(k, 0, 7)


def gen_one(name):
    k = Kernel(name, vgprs=168)
    k.e("s_getpc_b64 s[62:63]")
    k.label("mega_pc")
    k.e("s_cmp_ge_u32 s2, 256", "s_cbranch_scc1 mega_end")
    k.e("s_load_dwordx2 s[10:11], s[0:1], 0", "s_load_dwordx4 s[68:71], s[0:1], 8", "s_load_dwordx2 s[72:73], s[0:1], 24",
        "s_load_dwordx2 s[8:9], s[0:1], 32", "s_load_dwordx4 s[4:7], s[0:1], 48", "s_load_dwordx2 s[14:15], s[0:1], 64",
        "s_load_dwordx2 s[74:75], s[0:1], 72", "s_load_dwordx2 s[12:13], s[0:1], 80")
    k.stamp(0)
    k.e("v_and_b32 v1, 63, v0", "v_and_b32 v2, 15, v0", "v_bfe_u32 v3, v0, 4, 2", "v_lshrrev_b32 v7, 6, v0",
        "v_lshlrev_b32 v11, 4, v1", "v_readfirstlane_b32 s30, v7")
    k.e("s_and_b32 s46, s2, 7", "s_lshr_b32 s47, s2, 3", "s_and_b32 s28, s47, 24", "s_add_u32 s28, s28, s46", "s_and_b32 s29, s47, 7",
        "s_lshr_b32 s48, s47, 3", "s_lshl_b32 s48, s48, 1", "s_add_u32 s48, s48, s29", "s_sub_u32 s34, s48, 9", "s_min_u32 s48, s48, s34",
        "s_lshl_b32 s48, s48, 1")
    k.e("s_waitcnt lgkmcnt(0)")
    srd(k, 16, 12, WS_END)
    srd(k, 20, 10, XB)
    srd(k, 24, 8, WQB)
    k.e("s_cmp_ge_u32 s30, 8", "s_cbranch_scc1 mega_helper")
    k.e("s_cmp_ge_u32 s30, 5", "s_cbranch_scc1 a_sw", "s_cmp_eq_u32 s30, 4", "s_cbranch_scc1 a_kvw")
    a_qwave(k)
    k.e("s_branch a_done")
    k.label("a_kvw")
    a_kvwave(k)
    k.e("s_branch a_s_done")
    k.label("a_sw")
    a_swave(k)
    k.label("a_done")
    k.e("s_setprio 3")
    k.e("s_mov_b32 s52, 0")
    attention(k)
    k.e("s_cmp_lg_u32 s52, 0", "s_cbranch_scc1 mega_ringed")
    ffn_ring_start(k)
    k.label("mega_ringed")
    lds_wait(k, LDS_ORD, 4, "ord2", sleep=4)
    for t in range(T):
        k.e(wload(D - 1, t))
    k.e("s_waitcnt vmcnt(0)")
    stb(k, 4)
    k.e("s_branch ffn_join")
    k.label("mega_helper")
    a_helper(k)
    helper_pack(k)
    oproj(k)
    ffn(k)
    k.label("mega_end")
    k.e("s_endpgm", ".set CODE_BYTES, mega_end - mega_pc")
    return k
```

```python
import os
from asmlib import Kernel
from layout import *
from k_small import f2u, srd, ex, reduce_g_add, dma_slot_calc

S0, S1, OA, P, KF, V0, V1, K2F, Q, Q2E, Q2O = 16, 32, 48, 64, 72, 76, 80, 84, 88, 92, 94
T0 = 96
PIN, POUT, PS = 48, 96, 144
LDS_OST = 151808
LDS_RES = 92160
LDS_WO = 0
LDS_H = 73728
LDS_S = 161024
LDS_RDY = 163328
LDS_CNT = 163344
LDS_WQC = 163392
LDS_KVS = LDS_WQC + 12
LDS_KVR = LDS_WQC + 16
LDS_KMX = LDS_WQC + 20
LDS_KVI = LDS_WQC + 24
LDS_XC = LDS_WQC + 28
LDS_WKI = LDS_WQC + 32
LDS_REL = LDS_WQC + 36
LDS_NON = LDS_WQC + 40
LDS_ORD = LDS_WQC + 48
LDS_IMG = LDS_WQC + 52
LDS_MUS = LDS_WQC + 56
LDS_SRD = LDS_WQC + 60
LDS_QRD = LDS_WQC + 64
LDS_WDN = LDS_WQC + 72
LDS_IM0 = LDS_WQC + 76
LDS_MU = LDS_OST
LDS_MEGA = 163488
A_WKV = 0
A_WQ0 = 29696
A_X = 70656
A_WQ1 = A_X + 18432
A_SQ = LDS_S
A_SKV = LDS_S + 320
A_ST = LDS_S + 448
QX0, QACC, QWF, QONES = 48, 120, 140, 36
QACS = [16, 20, 24, 40, 44]
OX0, OACC, OWF = 96, 48, 68
XB0, ACC, WR = 16, 48, 96
D = 6
T = 3
STREAM = 36 * T * 1024
SPIN = 1 << 16
PSX, PSY = 73728, 589824
RX = RST = 0
if os.environ.get("CMP", "0") == "1":
    _d = -WS_FL
    F1, F2, FP, F3, FK = F1 + _d, F2 + _d, FP + _d, F3 + _d, FK + _d
    WS_KV, WS_SP, WS_W = 0x10000, 0x40000, 0x60000
    _R0, _RS = 0xA80000, 10 * 73728 + 4096
    WS_O, WS_H, WS_P, WS_ST = _R0, _R0 + 73728, _R0 + 2 * 73728, _R0 + 10 * 73728
    PSY, RX, RST = _RS, _RS - 73728, _RS - 4096
STA = bool(os.environ.get("STA"))


def sta(k, i):
    if STA:
        k.stamp(i)


STP = bool(os.environ.get("STP"))


def stb(k, i):
    if not STA and not STP and not (STT and i < 7) and not (STO and i > 6):
        k.stamp(i)


STT = bool(os.environ.get("STT"))


def stt(k, i):
    if STT:
        k.stamp(i)


STO = bool(os.environ.get("STO"))


def sto(k, i):
    if STO:
        k.stamp(i)


def stp(k, i):
    if STP:
        k.stamp(i)
WAUX = os.environ.get("WAUX", "sc1")


def r4(b):
    return f"v[{b}:{b+3}]"


def r16(b):
    return f"v[{b}:{b+15}]"


def poll(k, vaddr, soff, vtmp, tag, sleep=2, lo_only=False, first=0):
    lab, done = f"mega_poll_{tag}", f"mega_polld_{tag}"
    k.e(f"s_mov_b32 s3, {SPIN}")
    if first:
        k.e(f"s_sleep {first}")
    k.label(lab)
    k.e(f"s_sleep {sleep}", f"buffer_load_dwordx2 v[{vtmp}:{vtmp+1}], v{vaddr}, s[16:19], s{soff} offen sc1", "s_waitcnt vmcnt(0)")
    if lo_only:
        k.e(f"v_cmp_eq_u32 vcc, s66, v{vtmp}")
    else:
        k.e(f"v_cmp_eq_u64 vcc, s[66:67], v[{vtmp}:{vtmp+1}]")
    k.e("s_cmp_eq_u64 vcc, -1", f"s_cbranch_scc1 {done}", "s_sub_u32 s3, s3, 1", f"s_cbranch_scc0 {lab}")
    k.label(done)


def set_flag(k, soff):
    k.e("v_mov_b32 v12, 0", "v_mov_b32 v14, s66", "v_mov_b32 v15, s67", ex(1),
        f"buffer_store_dwordx2 v[14:15], v12, s[16:19], s{soff} offen sc1", ex(-1))


def lds_signal(k, addr, va=12, vb=13):
    k.e(f"v_mov_b32 v{va}, {addr}", f"v_mov_b32 v{vb}, 1", ex(1), f"ds_add_u32 v{va}, v{vb}", ex(-1))


def lds_wait(k, addr, n, tag, va=12, vb=13, sleep=int(os.environ.get("LWS", "1"))):
    lab, done = f"mega_lw_{tag}", f"mega_lwd_{tag}"
    k.e(f"v_mov_b32 v{va}, {addr}", f"s_mov_b32 s3, {SPIN*8}")
    k.label(lab)
    k.e(f"ds_read_b32 v{vb}, v{va}", "s_waitcnt lgkmcnt(0)", f"v_readfirstlane_b32 s39, v{vb}", f"s_cmp_ge_u32 s39, {n}",
        f"s_cbranch_scc1 {done}", f"s_sleep {sleep}", "s_sub_u32 s3, s3, 1", f"s_cbranch_scc0 {lab}")
    k.label(done)


def arrive(k, cnt, n, soff, tag, cnt_sgpr=None):
    if cnt_sgpr is None:
        k.e(f"v_mov_b32 v12, {LDS_CNT + 4*cnt}")
    else:
        k.e(f"v_mov_b32 v12, s{cnt_sgpr}")
    k.e("v_mov_b32 v13, 1", ex(1), "ds_add_rtn_u32 v14, v12, v13", ex(-1), "s_waitcnt lgkmcnt(0)",
        "v_readfirstlane_b32 s3, v14", f"s_cmp_lg_u32 s3, {n-1}", f"s_cbranch_scc1 mega_arr_{tag}")
    set_flag(k, soff)
    k.label(f"mega_arr_{tag}")


def publish_o(k, tag, pre=None):
    k.e("s_and_b32 s34, s30, 3", "s_lshr_b32 s35, s30, 2", "s_mul_i32 s36, s34, 2304", "s_mul_i32 s37, s35, 768",
        "s_add_u32 s36, s36, s37", f"s_add_u32 s36, s36, {LDS_OST}", "v_add_u32 v12, s36, v11",
        f"ds_read_b128 {r4(4)}, v12")
    k.e("s_lshl_b32 s36, s28, 2", "s_add_u32 s36, s36, s34", "s_mul_i32 s38, s36, 18432", "s_mul_i32 s39, s29, 2304",
        "s_add_u32 s38, s38, s39", "s_add_u32 s38, s38, s37", f"s_add_u32 s38, s38, {WS_O}", f"s_mul_i32 s39, s28, {RX}", "s_add_u32 s38, s38, s39")
    k.e("s_lshl_b32 s36, s28, 7", "s_lshl_b32 s39, s29, 3", "s_add_u32 s36, s36, s39", f"s_add_u32 s36, s36, {F1}")
    k.e("s_waitcnt lgkmcnt(0)", ex((1 << 48) - 1), f"buffer_store_dwordx4 {r4(4)}, v11, s[16:19], s38 offen sc1", ex(-1),
        "s_waitcnt vmcnt(0)")
    arrive(k, 1, 12, 36, tag)
    if pre:
        pre(k)


def attention(k):
    k.e("; ==== attention (waves 0..7; one (head, 32-query) unit each). S^T = K.Q^T - M comes straight out of the MFMAs:")
    k.e("v_and_b32 v2, 31, v1", "v_lshrrev_b32 v3, 5, v1")
    k.e("s_lshr_b32 s35, s30, 2", "s_mul_i32 s35, s35, 4608", f"s_add_u32 s35, s35, {LDS_OST}", "s_movk_i32 s36, 2304",
        "v_lshrrev_b32 v8, 4, v2", "v_mul_u32_u24 v8, s36, v8", "v_and_b32 v9, 15, v2", "v_lshl_add_u32 v8, v9, 4, v8",
        "v_add_u32 v8, s35, v8", "v_lshl_add_u32 v9, v3, 8, v8", "s_and_b32 s37, s30, 3", "s_mul_i32 s37, s37, 18")
    for i in range(4):
        k.e(f"s_add_u32 s38, s37, {2*i}", "s_lshr_b32 s39, s38, 3", "s_lshl_b32 s39, s39, 8", "s_and_b32 s38, s38, 7",
            "s_lshl_b32 s38, s38, 1", "s_add_u32 s38, s38, s39", f"v_add_u32 v{Q+i}, s38, v9")
        if i == 0:
            k.e(f"v_add_u32 v{T0}, s38, v8")
    k.e(f"v_mov_b32 v{T0+2}, {LDS_KMX}")
    k.e("v_mov_b32 v12, v11")
    k.e("v_cmp_eq_u32 vcc, 28, v2", "v_cndmask_b32 v13, v2, 18, vcc",
        "v_cmp_lt_u32 vcc, 18, v13", "v_mov_b32 v14, 0x10000", "v_cndmask_b32 v13, v13, v14, vcc",
        "s_movk_i32 s40, 304", "v_mul_u32_u24 v14, s40, v3", "v_lshl_add_u32 v13, v13, 4, v14", f"v_add_u32 v13, {KV_V}, v13")
    k.e("v_min_u32 v14, 32, v1", "v_lshlrev_b32 v14, 4, v14", f"v_add_u32 v14, {KV_K2}, v14")
    k.e("v_cmp_eq_u32 s[44:45], 1, v3")
    k.e("s_lshr_b32 s35, s30, 2", "s_lshl_b32 s35, s35, 2", f"s_add_u32 s35, s35, {LDS_QRD}")
    def zero_init():
        for r in list(range(OA, OA + 16)) + list(range(P, P + 8)) + list(range(V1, V1 + 4)):
            k.e(f"v_mov_b32 v{r}, 0")

    def setm():
        k.e(f"v_xor_b32 v{T0+2}, 0x80000000, v{T0+1}",
            f"v_and_b32 v{T0+3}, 0xffff0000, v{T0+2}", f"v_sub_f32 v{T0+2}, v{T0+2}, v{T0+3}",
            f"v_and_b32 v{T0+4}, 0xffff0000, v{T0+2}", f"v_sub_f32 v{T0+2}, v{T0+2}, v{T0+4}",
            f"v_lshrrev_b32 v{T0+3}, 16, v{T0+3}", f"v_or_b32 v{T0+3}, v{T0+3}, v{T0+4}",
            f"v_lshrrev_b32 v{T0+2}, 16, v{T0+2}")
        k.e(f"v_cndmask_b32 v{Q2E}, v{T0}, v{T0+3}, s[44:45]", f"v_cndmask_b32 v{Q2E+1}, 0, v{T0+2}, s[44:45]",
            f"v_cndmask_b32 v{Q2O}, 0, v{T0+3}, s[44:45]", f"v_cndmask_b32 v{Q2O+1}, v{T0}, v{T0+2}, s[44:45]")
    zero_init()
    k.e("v_mov_b32 v4, v12", "v_mov_b32 v5, v13", "v_mov_b32 v6, v14", "s_mov_b32 s32, 0", "s_mov_b32 s31, 2")
    sta(k, 4)
    lds_wait(k, LDS_IM0, 4, "im0", va=T0 + 6, vb=T0 + 7)
    k.e(f"ds_read_b32 v{T0+2}, v{T0+2}", f"v_mov_b32 v{T0+6}, {LDS_NON}", f"ds_read_b64 v[{T0+8}:{T0+9}], v{T0+6}",
        f"ds_read_b128 {r4(KF)}, v4", f"ds_read_b128 {r4(K2F)}, v6", f"ds_read_b128 {r4(V0)}, v5")
    sta(k, 5)
    lds_wait(k, "s35", 2, "qrd", va=T0 + 6, vb=T0 + 7)
    sta(k, 6)
    for i in range(4):
        k.e(f"ds_read_b32 v{Q+i}, v{Q+i}")
    k.e(f"ds_read_b32 v{T0}, v{T0} offset:512", f"v_readfirstlane_b32 s66, v{T0+8}", f"v_readfirstlane_b32 s67, v{T0+9}",
        f"v_mul_f32 v{T0+2}, {hex(f2u(1.02*1.02))}, v{T0+2}", f"v_mov_b32 v{T0+1}, 0", "s_waitcnt lgkmcnt(0)")
    k.e(f"v_cndmask_b32 v{T0}, v{T0}, 0, s[44:45]")
    for r in (Q, Q + 1, Q + 2, Q + 3, T0):
        k.e(f"v_dot2c_f32_bf16 v{T0+1}, v{r}, v{r}")
    k.e(f"v_mfma_f32_32x32x16_bf16 {r16(S0)}, {r4(KF)}, {r4(Q)}, 0", f"ds_read_b128 {r4(KF)}, v4 offset:1024")
    k.e(f"v_mov_b32 v{T0+4}, v{T0+1}", f"v_permlane32_swap_b32 v{T0+1}, v{T0+4}", f"v_add_f32 v{T0+1}, v{T0+1}, v{T0+4}")
    k.e(f"v_mul_f32 v{T0+1}, v{T0+1}, v{T0+2}", f"v_sqrt_f32 v{T0+1}, v{T0+1}")
    setm()
    k.e("s_setprio 2", "s_branch attn_go")
    k.label("attn_setm")
    setm()
    k.e("v_mov_b32 v4, v12", "v_mov_b32 v5, v13", "v_mov_b32 v6, v14")
    k.e("s_cmp_eq_u32 s32, 10", "s_cbranch_scc1 attn_maxpass")
    zero_init()
    k.e("s_mov_b32 s31, 16")
    k.e(f"ds_read_b128 {r4(KF)}, v4", f"ds_read_b128 {r4(K2F)}, v6", f"ds_read_b128 {r4(V0)}, v5", "s_waitcnt lgkmcnt(0)")
    k.e(f"v_mfma_f32_32x32x16_bf16 {r16(S0)}, {r4(KF)}, {r4(Q)}, 0", f"ds_read_b128 {r4(KF)}, v4 offset:1024")
    k.label("attn_go")
    k.e(f"v_mfma_f32_32x32x8_bf16 {r16(S0)}, v[{K2F}:{K2F+1}], v[{Q2E}:{Q2E+1}], {r16(S0)}")
    k.stamp(2)
    k.e("s_waitcnt lgkmcnt(0)", "s_nop 7", "s_nop 3")
    k.e(".p2align 6")
    k.label("attn_loop")
    for tau in range(4):
        cur, nxt = (S0, S1) if tau % 2 == 0 else (S1, S0)
        t1 = (tau + 1) % 4
        koff = (tau + 2) * 1024 if tau < 2 else GRP + (tau - 2) * 1024
        v0off = (tau + 1) * 1216 if tau < 3 else GRP

        def ex_(a, b):
            for i in range(a, b):
                k.e(f"v_exp_f32 v{cur+i}, v{cur+i}")

        def cv(a, b):
            for i in range(a, b):
                k.e(f"v_cvt_pk_bf16_f32 v{P+i}, v{cur+2*i}, v{cur+2*i+1}")
        e1, e2, e3, e4 = eval(os.environ.get("EXS", "(3, 6, 9, 12)"))
        k.e("s_waitcnt lgkmcnt(2)")
        k.e(f"v_mfma_f32_32x32x16_bf16 {r16(nxt)}, {r4(KF)}, {r4(Q)}, 0")
        k.e(f"ds_read_b128 {r4(KF)}, v4 offset:{koff}")
        ex_(0, e1)
        k.e("s_waitcnt lgkmcnt(2)")
        k.e(f"v_mfma_f32_32x32x16_bf16 {r16(OA)}, {r4(V1)}, {r4(P+4)}, {r16(OA)}")
        k.e(f"ds_read_b128 {r4(V1)}, v5 offset:{tau*1216+608}")
        ex_(e1, e2)
        q2 = Q2E if t1 % 2 == 0 else Q2O
        kk = K2F + 2 * (t1 // 2)
        k.e(f"v_mfma_f32_32x32x8_bf16 {r16(nxt)}, v[{kk}:{kk+1}], v[{q2}:{q2+1}], {r16(nxt)}")
        if tau == 2:
            k.e(f"ds_read_b128 {r4(K2F)}, v6 offset:{GRP}")
        ex_(e2, e3)
        cv(0, 4)
        ex_(e3, e4)
        k.e("s_waitcnt lgkmcnt(2)")
        k.e(f"v_mfma_f32_32x32x16_bf16 {r16(OA)}, {r4(V0)}, {r4(P)}, {r16(OA)}")
        k.e(f"ds_read_b128 {r4(V0)}, v5 offset:{v0off}")
        ex_(e4, 16)
        if tau == 3:
            k.e(f"v_add_u32 v4, {GRP}, v4", f"v_add_u32 v5, {GRP}, v5", f"v_add_u32 v6, {GRP}, v6")
            k.e("s_sub_u32 s31, s31, 1", "s_cmp_lg_u32 s31, 0")
        cv(4, 8)
    k.e("s_cbranch_scc1 attn_loop")
    k.e("s_cmp_ge_u32 s32, 4", "s_cbranch_scc1 attn_tail")
    k.e("s_add_u32 s32, s32, 1")
    k.e("s_cmp_eq_u32 s32, 2", "s_cbranch_scc1 attn_ph2", "s_cmp_eq_u32 s32, 3", "s_cbranch_scc1 attn_ph3",
        "s_cmp_eq_u32 s32, 4", "s_cbranch_scc1 attn_ph4")
    lds_wait(k, LDS_IMG, 4, "img", va=T0 + 6, vb=T0 + 7)
    k.e("s_mov_b32 s31, 9", "s_branch attn_loop")
    for ph, cnt, pr in eval(os.environ.get("PHS", "((2, 2, 1), (3, 2, 1), (4, 1, 0))")):
        k.label(f"attn_ph{ph}")
        k.e(f"s_setprio {pr}", f"s_mov_b32 s31, {cnt}")
        if ph == 2:
            k.e(f"v_cndmask_b32 v{T0+5}, v{OA+10}, v{OA+12}, s[44:45]", f"v_cmp_le_f32 vcc, {hex(f2u(2.0**-40))}, v{T0+5}",
                "s_cmp_eq_u64 vcc, -1", "s_cselect_b32 s34, 1, 0x101", f"v_mov_b32 v{T0+6}, {LDS_REL}", f"v_mov_b32 v{T0+7}, s34",
                ex(1), f"ds_add_u32 v{T0+6}, v{T0+7}", ex(-1))
        if ph == 4:
            k.e(f"v_mov_b32 v{T0+6}, {LDS_RDY}", f"ds_read_b32 v{T0+6}, v{T0+6}", "s_waitcnt lgkmcnt(0)",
                f"v_readfirstlane_b32 s52, v{T0+6}", "s_cmp_eq_u32 s52, 0", "s_cbranch_scc1 attn_loop")
            ffn_ring_start(k)
        k.e("s_branch attn_loop")
    k.label("attn_maxpass")
    k.e(f"v_mov_b32 v{T0+1}, 0xff800000", "s_mov_b32 s31, 16")
    k.label("attn_maxloop")
    k.e(f"ds_read_b128 {r4(K2F)}, v6")
    for tau in range(4):
        q2 = Q2E if tau % 2 == 0 else Q2O
        kk = K2F + 2 * (tau // 2)
        k.e(f"ds_read_b128 {r4(KF)}, v4 offset:{tau*1024}", "s_waitcnt lgkmcnt(0)")
        k.e(f"v_mfma_f32_32x32x16_bf16 {r16(S0)}, {r4(KF)}, {r4(Q)}, 0",
            f"v_mfma_f32_32x32x8_bf16 {r16(S0)}, v[{kk}:{kk+1}], v[{q2}:{q2+1}], {r16(S0)}")
        for i in range(8):
            k.e(f"v_max3_f32 v{T0+1}, v{S0+2*i}, v{S0+2*i+1}, v{T0+1}")
    k.e(f"v_add_u32 v4, {GRP}, v4", f"v_add_u32 v6, {GRP}, v6", "s_sub_u32 s31, s31, 1", "s_cmp_lg_u32 s31, 0",
        "s_cbranch_scc1 attn_maxloop")
    k.e(f"v_mov_b32 v{T0+2}, v{T0+1}", f"v_permlane32_swap_b32 v{T0+1}, v{T0+2}", f"v_max_f32 v{T0+1}, v{T0+1}, v{T0+2}")
    k.e("s_mov_b32 s32, 11", "s_branch attn_setm")
    k.label("attn_tail")
    k.e("s_waitcnt lgkmcnt(0)")
    k.e(f"v_mfma_f32_32x32x16_bf16 {r16(OA)}, {r4(V1)}, {r4(P+4)}, {r16(OA)}")
    k.e("s_and_b32 s34, s30, 3", "s_mul_i32 s34, s34, 18", "s_lshr_b32 s35, s30, 2", "s_mul_i32 s35, s35, 4608",
        f"s_add_u32 s35, s35, {LDS_OST}", "s_movk_i32 s36, 2304",
        f"v_lshrrev_b32 v{T0+9}, 4, v2", f"v_mul_u32_u24 v{T0+9}, s36, v{T0+9}", f"v_and_b32 v{T0+8}, 15, v2",
        f"v_lshl_add_u32 v{T0+9}, v{T0+8}, 4, v{T0+9}", f"v_add_u32 v{T0+9}, s35, v{T0+9}")
    k.e(f"v_lshl_add_u32 v{T0+6}, v3, 2, s34", f"v_add_u32 v{T0+7}, 2, v{T0+6}")
    for r in (T0 + 6, T0 + 7):
        k.e(f"v_lshrrev_b32 v{T0+8}, 3, v{r}", f"v_and_b32 v{r}, 7, v{r}", f"v_lshl_add_u32 v{r}, v{r}, 1, v{T0+9}",
            f"v_lshl_add_u32 v{r}, v{T0+8}, 8, v{r}")
    k.e(f"v_cndmask_b32 v{T0+5}, v{OA+10}, v{OA+12}, s[44:45]")
    k.e(f"v_cmp_le_f32 vcc, {hex(f2u(2.0**-40))}, v{T0+5}")
    k.e("s_cmp_eq_u32 s32, 11", "s_cbranch_scc1 attn_fin")
    k.e("s_cmp_eq_u64 vcc, -1", "s_cbranch_scc1 attn_fin")
    k.e("s_mov_b32 s32, 10", f"v_mov_b32 v{T0+1}, 0", "s_branch attn_setm")
    k.label("attn_fin")
    k.e(f"v_rcp_f32 v{T0+5}, v{T0+5}")
    for i in range(10):
        k.e(f"v_mul_f32 v{OA+i}, v{T0+5}, v{OA+i}")
    for i in range(5):
        k.e(f"v_cvt_pk_bf16_f32 v{P+i}, v{OA+2*i}, v{OA+2*i+1}")
    k.e(f"ds_write_b32 v{T0+6}, v{P}", f"ds_write_b32 v{T0+7}, v{P+1}",
        f"ds_write_b32 v{T0+6}, v{P+2} offset:256", f"ds_write_b32 v{T0+7}, v{P+3} offset:256",
        ex(0xffffffff), f"ds_write_b32 v{T0+6}, v{P+4} offset:512", ex(-1))
    k.e("s_waitcnt lgkmcnt(0)", "s_barrier")
    stb(k, 3)
    publish_o(k, "oa")


def kv_dma(k, a, b):
    for i in range(a, b):
        k.e(f"s_add_u32 m0, s34, {i*4096}", f"s_sub_u32 s36, s35, {IMG - 4096}", "buffer_load_dwordx4 v10, s[16:19], s35 offen sc1 lds",
            "s_add_u32 s35, s35, 4096", "s_min_u32 s35, s35, s36")


NB = 7


def roll_gemm(k, steps, rd, mfma, pre=None):
    seq = [(s, t) for s in steps for t in range(5)]
    n = len(seq)
    for i in range(min(NB, n)):
        rd(seq[i][1], seq[i][0], i % NB)
    for i, (s, t) in enumerate(seq):
        ahead = min(NB - 1, n - 1 - i)
        extra = pre(s) if (pre and t == 0) else ""
        k.e(f"s_waitcnt lgkmcnt({2*ahead}){extra}")
        mfma(t, s, i % NB)
        if i + NB < n:
            rd(seq[i + NB][1], seq[i + NB][0], i % NB)


def roll_gemm2(k, steps, rd2, mf2):
    seq = [(s, t) for s in steps for t in range(5)]
    n = len(seq)
    for i in range(min(NB, n)):
        k.e(*rd2(seq[i][1], seq[i][0], i % NB))
    for i, (s, t) in enumerate(seq):
        issued = min(n, NB + max(0, i - 1))
        k.e(f"s_waitcnt lgkmcnt({2*(issued - 1 - i)})")
        m = mf2(t, s, i % NB)
        j = i - 1 + NB
        r = rd2(seq[j][1], seq[j][0], (i - 1) % NB) if (i >= 1 and j < n) else ["", ""]
        k.e(m[0], r[0], m[1], r[1])


def helper_pack(k):
    k.e("; ==== helper waves 8..11: K/V image -> LDS, re-pack W1/W2 slice into MFMA fragment order (+ column sums of W1)")
    def dma(a, b):
        kv_dma(k, a, b)
    k.e("s_waitcnt vmcnt(0)")
    lds_signal(k, LDS_IM0)
    lds_wait(k, LDS_WDN, 4, "wdn")
    dma(7, 37)
    k.e("s_cmp_lg_u32 s31, 0", "s_cbranch_scc1 mega_h_nolast")
    k.e(ex(0xffff))
    dma(37, 38)
    k.e(ex(-1))
    k.label("mega_h_nolast")
    k.e("s_lshl_b32 s34, s31, 6", "v_add_u32 v12, s34, v1", "v_min_u32 v12, 161, v12", "v_lshlrev_b32 v12, 7, v12",
        "s_mul_i32 s34, s47, 20736")
    k.e("s_lshl_b32 s50, s31, 5", "s_add_u32 s50, s50, s47",
        "s_cmp_ge_u32 s50, 54", "s_cselect_b32 s53, 1, 0",
        "s_mul_i32 s51, s53, 54", "s_sub_u32 s51, s50, s51",
        "s_mul_i32 s54, s51, 57", "s_lshr_b32 s54, s54, 10",
        "s_mul_i32 s52, s54, 18", "s_sub_u32 s52, s51, s52",
        "s_cmp_eq_u32 s53, 0",
        "s_cselect_b32 s20, s4, s6", "s_cselect_b32 s21, s5, s7", f"s_mov_b32 s22, {hex(W1B)}", "s_mov_b32 s23, 0x00020000",
        "s_movk_i32 s56, 1152", "s_cselect_b32 s56, 9216, s56",
        "s_movk_i32 s57, 1152", "s_cselect_b32 s57, s57, 663552", "s_mul_i32 s57, s57, s46",
        "s_mul_i32 s58, s54, 192", "s_mul_i32 s58, s58, s56", "s_add_u32 s57, s57, s58",
        "s_lshl_b32 s58, s52, 6", "s_add_u32 s57, s57, s58")
    k.e("s_add_u32 s58, s53, s54", "s_cmp_eq_u32 s58, 3", "s_cselect_b32 s58, 2, 1", "s_cselect_b32 s59, -5, 1",
        "s_mul_i32 s58, s58, s56", "s_mul_i32 s59, s59, s56", "s_mul_i32 s60, s56, 25")
    k.e("v_lshrrev_b32 v2, 4, v1", "v_lshlrev_b32 v2, 3, v2", "v_mul_u32_u24 v15, s56, v2", "v_and_b32 v3, 15, v1",
        "v_lshl_add_u32 v15, v3, 2, v15", "v_lshlrev_b32 v8, 2, v3",
        "s_mov_b32 s64, 0x05040100", "s_mov_b32 s65, 0x07060302")
    k.e(f"s_mul_i32 s62, s52, {STREAM}", f"s_mul_i32 s63, s52, {2*STREAM}", f"s_sub_u32 s63, s63, {24*STREAM - 2048}",
        "s_cmp_lt_u32 s52, 12", "s_cselect_b32 s62, s62, s63", "s_movk_i32 s61, 1024", f"s_cselect_b32 s61, s61, {STREAM}",
        "s_mul_i32 s63, s53, 3", "s_add_u32 s63, s63, s54", f"s_mul_i32 s63, s63, {6*3072}", "s_add_u32 s62, s62, s63",
        f"s_mul_i32 s63, s46, {1296*1024}", "s_add_u32 s62, s62, s63", f"s_add_u32 s62, s62, {WS_W}",
        "s_add_u32 s61, s61, s62")
    for i in range(4):
        k.e(f"v_mov_b32 v{PS+8+i}, 0x3f803f80")
    k.e("s_waitcnt vmcnt(0)")
    lds_signal(k, LDS_IMG, va=9, vb=10)
    stp(k, 3)
    k.e("buffer_load_dword v13, v12, s[24:27], s34 offen", ("buffer_load_dword v13, v12, s[24:27], s34 offen offset:64" if os.environ.get("PF64") else ""))
    k.e("s_cmp_ge_u32 s50, 108", "s_cbranch_scc1 mega_h_nounit")
    for ss in range(6):
        for jj in range(8):
            k.e(f"buffer_load_dword v{PIN+8*ss+jj}, v15, s[20:23], s57 offen {os.environ.get('PKL', '')}",
                f"s_add_u32 s57, s57, s{60 if jj == 7 else (59 if jj == 3 else 58)}")
    stp(k, 4)
    for ss in range(6):
        k.e(f"s_waitcnt vmcnt({40 - 8*ss + 2*ss})")
        if ss in (0, 5):
            stp(k, 5 if ss == 0 else 6)
        for e in range(2):
            for q in range(4):
                k.e(f"v_perm_b32 v{POUT+8*ss+4*e+q}, v{PIN+8*ss+2*q+1}, v{PIN+8*ss+2*q}, s{64+e}")
            k.e(f"buffer_store_dwordx4 {r4(POUT+8*ss+4*e)}, v11, s[16:19], s{62-e} offen sc1", f"s_add_u32 s{62-e}, s{62-e}, 3072")
    stp(k, 7)
    k.e("s_cmp_lg_u32 s53, 0", "s_cbranch_scc1 mega_h_nounit")
    for ss in range(6):
        for e in range(2):
            k.e(f"v_mfma_f32_16x16x32_bf16 {r4(PS+4*e)}, {r4(PS+8)}, {r4(POUT+8*ss+4*e)}, {r4(PS+4*e) if ss else 0}")
    k.e("s_mul_i32 s58, s54, 18432", "s_mul_i32 s59, s46, 2304", "s_add_u32 s58, s58, s59", "s_lshl_b32 s59, s52, 7",
        "s_add_u32 s58, s58, s59", f"s_add_u32 s58, s58, {WS_SP}")
    k.e(ex(0xffff), f"buffer_store_dword v{PS}, v8, s[16:19], s58 offen sc1",
        f"buffer_store_dword v{PS+4}, v8, s[16:19], s58 offen offset:64 sc1", ex(-1))
    k.label("mega_h_nounit")
    k.e("s_waitcnt vmcnt(0)", "s_lshl_b32 s34, s46, 9", f"s_add_u32 s36, s34, {FP}", "s_lshr_b32 s35, s47, 3", "s_lshl_b32 s35, s35, 7",
        "s_add_u32 s34, s36, s35", "s_lshl_b32 s35, s29, 3", "s_add_u32 s34, s34, s35")
    k.stamp(2)
    arrive(k, 0, 4, 34, "p")
    k.e("s_cmp_lg_u32 s31, 3", "s_cbranch_scc1 mega_h_nofp")
    lds_wait(k, LDS_QRD, 2, "qa")
    lds_wait(k, LDS_QRD + 4, 2, "qb")
    k.e("v_bfe_u32 v12, v1, 3, 2", "v_lshlrev_b32 v12, 7, v12", "v_and_b32 v13, 7, v1", "v_lshl_add_u32 v12, v13, 3, v12")
    poll(k, 12, 36, 14, "p", sleep=16)
    k.e("v_add_u32 v13, 128, v1", "v_min_u32 v13, 143, v13", "v_lshlrev_b32 v13, 4, v13",
        "s_mul_i32 s34, s46, 2304", f"s_add_u32 s34, s34, {WS_SP}")
    for i in range(3):
        k.e(f"buffer_load_dwordx4 {r4(PIN+12*i)}, v11, s[16:19], s34 offen sc1", f"buffer_load_dwordx4 {r4(PIN+12*i+4)}, v11, s[16:19], s34 offen offset:1024 sc1",
            f"buffer_load_dwordx4 {r4(PIN+12*i+8)}, v13, s[16:19], s34 offen sc1", "s_add_u32 s34, s34, 18432")
    k.e(f"v_mov_b32 v14, {LDS_RDY}", "v_mov_b32 v15, 1", "ds_write_b32 v14, v15")
    k.e("v_lshlrev_b32 v14, 7, v1", "v_and_b32 v15, 3, v1", "v_lshlrev_b32 v15, 7, v15",
        f"s_mul_i32 s34, s46, {1296*1024}", "s_mul_i32 s35, s47, 41472", "s_add_u32 s34, s34, s35", f"s_add_u32 s34, s34, {WS_W}")
    for i in range(6):
        if os.environ.get("PF64"):
            k.e(f"buffer_load_dword v{POUT+i}, v{14 if i < 5 else 15}, s[16:19], s34 offen offset:64 sc1")
        k.e(f"buffer_load_dword v{POUT+i}, v{14 if i < 5 else 15}, s[16:19], s34 offen sc1", "s_add_u32 s34, s34, 8192")
    k.e(f"v_add_u32 v12, {LDS_S}, v11", f"v_add_u32 v13, {LDS_S}, v13", "s_waitcnt vmcnt(6)")
    for i in range(1, 3):
        for c in range(12):
            k.e(f"v_add_f32 v{PIN+c}, v{PIN+c}, v{PIN+12*i+c}")
    k.e(f"ds_write_b128 v12, {r4(PIN)}", f"ds_write_b128 v12, {r4(PIN+4)} offset:1024", f"ds_write_b128 v13, {r4(PIN+8)}",
        "s_waitcnt lgkmcnt(0)")
    k.label("mega_h_nofp")


def wo_dma(k, tag):
    k.e("s_mul_i32 s32, s29, 144", "s_lshl_b32 s42, s29, 1", "s_add_u32 s42, s42, s31",
        "s_mul_i32 s43, s31, 5120", f"s_add_u32 s43, s43, {LDS_WO}")

    k.e("s_cmp_eq_u32 s31, 3", f"s_cbranch_scc1 mega_o_skip{tag}")
    for grp in range(6):
        k.e("s_sub_u32 s36, s42, 18", "s_min_u32 s42, s42, s36", "s_mul_i32 s36, s42, 36864", "s_add_u32 s36, s36, s32")
        for i in range(5):
            k.e(f"s_add_u32 m0, s43, {grp*3*5120 + i*1024}", "s_nop 0", f"buffer_load_dwordx4 v{16+i}, s[24:27], s36 offen lds")
        k.e("s_add_u32 s42, s42, 3")
    k.label(f"mega_o_skip{tag}")
    srd(k, 56, 10, XB)
    k.e("s_add_u32 s35, s49, s32")
    for i in range(3):
        if i == 2:
            k.e(ex(0xffffffff))
        k.e(f"s_add_u32 m0, s44, {i*1024}", "s_nop 0", f"buffer_load_dwordx4 v{16+i}, s[56:59], s35 offen lds")
    k.e(ex(-1), "s_waitcnt vmcnt(0)")
    for t in range(5):
        k.e(f"ds_read_b64 v[{36+2*t}:{37+2*t}], v21 offset:{32*t}")
    k.e("s_cmp_eq_u32 s31, 3", f"s_cbranch_scc1 mega_c_skip{tag}")
    k.e("v_add_u32 v32, s43, v28", "v_add_u32 v33, s43, v29", "v_add_u32 v34, s43, v11", "s_mov_b32 s36, 6")
    k.label(f"mega_conv{tag}")
    for t in range(5):
        k.e(f"ds_read_b64_tr_b16 v[{OWF+4*t}:{OWF+4*t+1}], v32 offset:{32*t}", f"ds_read_b64_tr_b16 v[{OWF+4*t+2}:{OWF+4*t+3}], v33 offset:{32*t}")
    k.e("v_add_u32 v32, 15360, v32", "v_add_u32 v33, 15360, v33", "s_waitcnt lgkmcnt(0)")
    for t in range(5):
        k.e(f"ds_write_b128 v34, {r4(OWF+4*t)} offset:{1024*t}")
    k.e("v_add_u32 v34, 15360, v34", "s_sub_u32 s36, s36, 1", "s_cmp_lg_u32 s36, 0", f"s_cbranch_scc1 mega_conv{tag}")
    k.label(f"mega_c_skip{tag}")
    k.e("s_waitcnt lgkmcnt(0)")
    for t in range(5):
        a = OACC + 4 * t
        k.e(f"v_lshlrev_b32 v{a}, 16, v{36+2*t}", f"v_and_b32 v{a+1}, 0xffff0000, v{36+2*t}",
            f"v_lshlrev_b32 v{a+2}, 16, v{37+2*t}", f"v_and_b32 v{a+3}, 0xffff0000, v{37+2*t}")


def oproj(k):
    k.e("; ==== output projection + residual + LayerNorm-2 partial statistics (helper waves)")
    k.e("v_and_b32 v2, 15, v1", "v_lshrrev_b32 v3, 4, v1")
    k.e("v_lshrrev_b32 v32, 2, v2",
        "v_and_b32 v33, 1, v3", "v_lshlrev_b32 v33, 2, v33", "v_add_u32 v32, v32, v33",
        "v_lshl_add_u32 v32, v3, 3, v32", "v_xor_b32 v33, 4, v32", "s_movk_i32 s40, 160",
        "v_and_b32 v34, 3, v2", "v_lshlrev_b32 v34, 3, v34", f"v_add_u32 v34, {LDS_WO}, v34",
        "v_mad_u32_u24 v28, v32, s40, v34", "v_mad_u32_u24 v29, v33, s40, v34",
        "v_add_u32 v30, 61440, v11")
    k.e("s_mul_i32 s44, s31, 2560", f"s_add_u32 s44, s44, {LDS_RES}",
        "v_and_b32 v21, 8, v2", "v_lshrrev_b32 v21, 1, v21", "v_xor_b32 v21, v21, v2", "v_mul_u32_u24 v21, s40, v21",
        "v_lshl_add_u32 v21, v3, 3, v21", "v_add_u32 v21, s44, v21")
    k.e("v_and_b32 v22, 1, v3", "v_lshlrev_b32 v22, 9, v22", "v_lshrrev_b32 v32, 1, v3", "v_lshl_add_u32 v22, v32, 8, v22",
        "v_lshl_add_u32 v22, v2, 4, v22")
    k.e("v_and_b32 v23, 7, v1", "v_lshlrev_b32 v23, 3, v23")
    k.e("s_lshl_b32 s48, s28, 2", "s_add_u32 s48, s48, s31", "s_mul_i32 s49, s48, 18432")
    k.e(f"s_mul_i32 s68, s28, {RX}", "s_add_u32 s68, s68, s49", f"s_add_u32 s34, s68, {WS_O}", "v_add_u32 v24, s34, v11", "s_lshl_b32 s51, s29, 11")
    k.e(f"v_mov_b32 v12, {LDS_REL}", f"s_mov_b32 s3, {SPIN*8}")
    k.label("mega_rel")
    k.e("ds_read_b32 v13, v12", "s_waitcnt lgkmcnt(0)", "v_readfirstlane_b32 s50, v13", "s_and_b32 s39, s50, 0xff", "s_cmp_ge_u32 s39, 8",
        "s_cbranch_scc1 mega_reld", "s_sleep 4", "s_sub_u32 s3, s3, 1", "s_cbranch_scc0 mega_rel")
    k.label("mega_reld")
    k.e("s_cmp_lg_u32 s50, 8", "s_cbranch_scc1 mega_noearly")
    wo_dma(k, "a")
    k.label("mega_noearly")
    stp(k, 8)
    k.e("s_waitcnt lgkmcnt(0)", "s_barrier")
    stb(k, 3)
    publish_o(k, "ob")
    k.e("s_cmp_eq_u32 s50, 8", "s_cbranch_scc1 mega_nolate")
    wo_dma(k, "b")
    k.label("mega_nolate")
    k.e("s_lshl_b32 s34, s28, 7", f"s_add_u32 s34, s34, {F1}")
    k.e("s_cmp_lg_u32 s31, 0", "s_cbranch_scc1 mega_polld_o")
    lds_wait(k, LDS_CNT + 4, 12, "owno")
    poll(k, 23, 34, 32, "o", sleep=int(os.environ.get("OSP", "2")))
    lds_signal(k, LDS_ORD)
    lds_wait(k, LDS_ORD, 4, "ord")
    stb(k, 4)
    for s in range(18):
        k.e(f"buffer_load_dwordx4 v[{OX0+4*s}:{OX0+4*s+3}], v24, s[16:19], s51 offen sc1",
            "s_add_u32 s51, s51, 1024", "s_cmp_eq_u32 s51, 18432", "s_cselect_b32 s51, 0, s51")

    seq = [(s, t) for s in range(18) for t in range(5)]

    def rd(i):
        s, t = seq[i]
        off = (s if s < 12 else s - 12) * 5120 + 1024 * t
        k.e(f"ds_read_b128 {r4(OWF+4*(i%NB))}, v{11 if s < 12 else 30} offset:{off}")
    for i in range(NB):
        rd(i)
    ring_srd(k)
    for i, (s, t) in enumerate(seq):
        k.e(f"s_waitcnt lgkmcnt({min(NB-1, 89-i)})" + (f" vmcnt({17 - s + 3*(s//3)})" if t == 0 else ""))
        a = r4(OACC + 4 * t)
        k.e(f"v_mfma_f32_16x16x32_bf16 {a}, {r4(OWF+4*(i%NB))}, {r4(OX0+4*s)}, {a}")
        if i + NB < 90:
            rd(i + NB)
        if t == 4 and s % 3 == 2:
            st = (s // 3 + 5) % 6
            k.e(f"s_movk_i32 s53, {st*T*1024}")
            for tt in range(T):
                k.e(wload(st, tt))
    sto(k, 1)
    k.e("v_mov_b32 v6, 0", "v_mov_b32 v7, 0", "v_mov_b32 v34, 0x3f803f80",
        "s_mul_i32 s35, s29, 2304", "s_add_u32 s35, s35, s68", f"s_add_u32 s35, s35, {WS_H}")
    for t in range(5):
        a = OACC + 4 * t
        d = OWF + 2 * t
        k.e(f"v_cvt_pk_bf16_f32 v{d}, v{a}, v{a+1}", f"v_cvt_pk_bf16_f32 v{d+1}, v{a+2}, v{a+3}")
        if t == 4:
            k.e(ex(0xffffffff))
        k.e(f"v_dot2c_f32_bf16 v6, v{d}, v34", f"v_dot2c_f32_bf16 v7, v{d}, v{d}",
            f"v_dot2c_f32_bf16 v6, v{d+1}, v34", f"v_dot2c_f32_bf16 v7, v{d+1}, v{d+1}")
        if t == 4:
            k.e(ex(-1))
        if t % 2 == 1 or t == 4:
            b = OWF + 4 * (t // 2)
            k.e(f"v_permlane16_swap_b32 v{b}, v{b+2}", f"v_permlane16_swap_b32 v{b+1}, v{b+3}")
            if t == 4:
                k.e(ex(0xffff))
            k.e(f"buffer_store_dwordx4 {r4(b)}, v22, s[16:19], s35 offen offset:{1024*(t//2)} sc1")
            if t == 4:
                k.e(ex(-1))
    reduce_g_add(k, [6, 7], [32, 33])
    k.e("v_lshlrev_b32 v32, 4, v2", "s_lshl_b32 s35, s48, 10", "s_lshr_b32 s34, s29, 1", "s_lshl_b32 s34, s34, 8",
        "s_add_u32 s35, s35, s34", "s_and_b32 s34, s29, 1", "s_lshl_b32 s34, s34, 3", "s_add_u32 s35, s35, s34",
        f"s_add_u32 s35, s35, {WS_ST}", f"s_mul_i32 s34, s28, {RST}", "s_add_u32 s35, s35, s34", ex(0xffff))
    k.e("buffer_store_dwordx2 v[6:7], v32, s[16:19], s35 offen sc1", ex(-1))
    sto(k, 2)
    k.e("s_lshl_b32 s34, s28, 7", "s_lshl_b32 s35, s29, 3", "s_add_u32 s34, s34, s35", f"s_add_u32 s34, s34, {F2}", "s_waitcnt vmcnt(0)")
    sto(k, 7)
    arrive(k, 2, 4, 34, "h")


def acc(t, mb):
    return ACC + (t * 4 + mb) * 4


def wreg(slot, t):
    return WR + ((slot + 1) % 6) * 12 + t * 4


def wload(slot, t):
    return f"buffer_load_dwordx4 {r4(wreg(slot, t))}, v11, s[20:23], s53 offen offset:{1024*t} {WAUX}"


def ring_srd(k):
    k.e(f"s_mul_i32 s34, s30, {STREAM}", f"s_mul_i32 s35, s46, {1296*1024}", "s_add_u32 s34, s34, s35", f"s_add_u32 s34, s34, {WS_W}",
        "s_add_u32 s20, s12, s34", "s_addc_u32 s21, s13, 0", f"s_mov_b32 s22, {STREAM}", "s_mov_b32 s23, 0x00020000")


def ffn_ring_start(k, n=D - 1):
    ring_srd(k)
    k.e("s_mov_b32 s53, 0")
    for st in range(n):
        for t in range(T):
            k.e(wload(st, t))
        k.e(f"s_add_u32 s53, s53, {T*1024}")


def ffn(k):
    k.label("ffn_join")
    k.e("s_setprio 0", "v_and_b32 v2, 15, v1", "v_lshrrev_b32 v3, 4, v1")
    k.e("s_lshl_b32 s34, s47, 2", "s_and_b32 s35, s30, 3", "s_add_u32 s34, s34, s35", "s_mul_i32 s41, s34, 18432",
        "s_lshr_b32 s35, s30, 2", "s_lshl_b32 s35, s35, 10", "s_add_u32 s41, s41, s35", f"s_add_u32 s41, s41, {WS_H}", f"s_mul_i32 s35, s47, {RX}", "s_add_u32 s41, s41, s35",
        "s_lshl_b32 s42, s30, 10")
    k.e("s_lshl_b32 s34, s30, 7", f"s_add_u32 s34, s34, {LDS_S}", "v_lshlrev_b32 v13, 4, v3", "v_add_u32 v12, s34, v13",
        "s_lshl_b32 s34, s30, 6", f"s_add_u32 s34, s34, {LDS_S + 1536}", "v_add_u32 v13, s34, v13",
        f"ds_read_b128 {r4(XB0+16)}, v12", f"ds_read_b128 {r4(XB0+20)}, v12 offset:64", f"ds_read_b128 {r4(XB0+24)}, v13")
    k.e("v_lshlrev_b32 v9, 2, v2", f"v_add_u32 v9, {LDS_MU}, v9", "s_and_b32 s34, s46, 3", "s_lshl_b32 s34, s34, 6", "v_add_u32 v10, s34, v9")
    k.e(f"s_movk_i32 s53, {D*T*1024}")
    k.e("s_cmp_lg_u32 s30, 0", "s_cbranch_scc1 ffn_g")
    k.e("v_and_b32 v12, 7, v1", "v_lshlrev_b32 v12, 3, v12", "s_lshl_b32 s34, s47, 7", f"s_add_u32 s34, s34, {F2}",
        "v_lshlrev_b32 v8, 10, v3", "v_lshl_add_u32 v8, v2, 4, v8", f"s_mul_i32 s35, s47, {RST + 4096}", f"s_add_u32 s35, s35, {WS_ST}")
    lds_wait(k, LDS_CNT + 8, 4, "own", va=14, vb=15, sleep=2)
    poll(k, 12, 34, 14, "h", sleep=int(os.environ.get("HSP", "3")))
    for p in range(4):
        k.e(f"buffer_load_dwordx4 {r4(XB0+4*p)}, v8, s[16:19], s35 offen offset:{256*p} sc1")
    k.label("ffn_g")
    k.e("s_barrier")
    stb(k, 5)
    NF = int(os.environ.get("NF", "2"))
    for i in range(NF):
        k.e(f"s_add_u32 m0, s42, {i*12288}", f"s_add_u32 s36, s41, {i*3072}", f"buffer_load_dwordx4 v11, s[16:19], s36 offen {os.environ.get('HNT', '')} sc1 lds")
    k.e("s_cmp_lg_u32 s30, 0", "s_cbranch_scc1 ffn_st")
    k.e(f"s_waitcnt vmcnt({NF})")
    for p in range(1, 4):
        for c in range(4):
            k.e(f"v_add_f32 v{XB0+c}, v{XB0+c}, v{XB0+4*p+c}")
    k.e(f"v_add_f32 v4, v{XB0}, v{XB0+2}", f"v_add_f32 v5, v{XB0+1}, v{XB0+3}",
        f"v_mul_f32 v4, {hex(f2u(-1/576))}, v4", f"v_mul_f32 v5, {hex(f2u(1/576))}, v5", "v_fma_f32 v5, -v4, v4, v5", "v_max_f32 v5, 0, v5",
        f"v_add_f32 v5, {hex(f2u(1e-5))}, v5", "v_rsq_f32 v5, v5", "v_lshlrev_b32 v6, 2, v1", f"v_add_u32 v6, {LDS_MU}, v6",
        "ds_write_b32 v6, v4", "ds_write_b32 v6, v5 offset:256")
    lds_signal(k, LDS_MUS)
    k.label("ffn_st")
    lds_wait(k, LDS_MUS, 1, "mus")
    for i in range(NF, 4):
        k.e(f"s_add_u32 m0, s42, {i*12288}", f"s_add_u32 s36, s41, {i*3072}", f"buffer_load_dwordx4 v11, s[16:19], s36 offen {os.environ.get('HNT', '')} sc1 lds")
    sto(k, 8)
    for mb in range(4):
        k.e(f"ds_read_b32 v{4+mb}, v9 offset:{64*mb}")
    k.e("ds_read_b32 v8, v10 offset:256", "s_waitcnt lgkmcnt(0)")
    for t in range(T):
        for mb in range(4):
            for i in range(4):
                k.e(f"v_mul_f32 v{acc(t,mb)+i}, v{4+mb}, v{XB0+16+4*t+i}")
    k.e("s_add_u32 s41, s41, 12288", "s_add_u32 s42, s42, 49152")
    k.e("s_waitcnt vmcnt(3)", "s_barrier")
    stb(k, 6)
    if os.environ.get("PF2") == "2":
        k.e("v_min_u32 v0, 13, v1", "v_lshlrev_b32 v0, 7, v0", "s_mul_i32 s36, s47, 1728", "s_and_b32 s36, s36, 0xffffff80", f"s_add_u32 s36, s36, {18*T*1024}",
            "buffer_load_dword v0, v0, s[20:23], s36 offen sc1")
    k.e("v_mov_b32 v10, v11", "s_mov_b32 s31, 0")

    def step(u, loads=True):
        xb = XB0 + 16 * (u % 2)
        xn = XB0 + 16 * ((u + 1) % 2)
        fill = [f"ds_read_b128 {r4(xn+4*mb)}, v10 offset:{(u+1)*4096 + 1024*mb}" for mb in range(4)]
        if loads:
            fill += [wload((u + D - 1) % D, t) for t in range(T)]
            fill += [f"s_add_u32 s53, s53, {T*1024}"]
        order = [(t, mb) for t in range(T) for mb in range(4)]
        if os.environ.get("ORD") == "snake":
            order = [(t, mb if t % 2 == 0 else 3 - mb) for t in range(T) for mb in range(4)]
        if os.environ.get("ORD") == "mb":
            order = [(t if mb % 2 == 0 else T - 1 - t, mb) for mb in range(4) for t in range(T)]
        for t, mb in order:
            a = r4(acc(t, mb))
            k.e(f"v_mfma_f32_16x16x32_bf16 {a}, {r4(wreg(u, t))}, {r4(xb+4*mb)}, {a}")
            if fill:
                k.e(fill.pop(0))
    for mb in range(4):
        k.e(f"ds_read_b128 {r4(XB0+4*mb)}, v10 offset:{1024*mb}")
    k.e("s_waitcnt lgkmcnt(0)")
    step(0, loads=False)
    k.e("s_branch ffn_u1")
    k.label("ffn_start")
    for mb in range(4):
        k.e(f"ds_read_b128 {r4(XB0+4*mb)}, v10 offset:{1024*mb}")
    k.e(".p2align 6")
    k.label("ffn_loop")
    k.e("s_cmp_lg_u32 s31, 1", "s_cbranch_scc1 ffn_nodma")
    for i in range(2):
        k.e(f"s_add_u32 m0, s42, {i*12288}", f"s_add_u32 s36, s41, {i*3072}", f"buffer_load_dwordx4 v11, s[16:19], s36 offen {os.environ.get('HNT', '')} sc1 lds")
    if os.environ.get("PF2", "1") == "1":
        k.e("v_min_u32 v0, 13, v1", "v_lshlrev_b32 v0, 7, v0", "s_mul_i32 s36, s47, 1728", "s_and_b32 s36, s36, 0xffffff80", f"s_add_u32 s36, s36, {18*T*1024}",
            ("buffer_load_dword v15, v0, s[20:23], s36 offen offset:64 sc1" if os.environ.get("PF64") else ""),
            "buffer_load_dword v0, v0, s[20:23], s36 offen sc1")
    k.label("ffn_nodma")
    for u in range(D):
        if u == 1:
            k.label("ffn_u1")
        k.e(f"s_waitcnt vmcnt({4*T}) lgkmcnt(0)")
        if u == D - 1:
            k.e("s_cmp_ge_u32 s31, 2", "s_cbranch_scc1 ffn_nobar", "s_barrier")
            k.label("ffn_nobar")
        if u == 2:
            k.e("s_cmp_lg_u32 s31, 0", "s_cbranch_scc1 ffn_nobar2", "s_waitcnt vmcnt(5)", "s_barrier")
            k.label("ffn_nobar2")
        step(u)
    k.e(f"v_add_u32 v10, {D*4096}, v10", "s_add_u32 s31, s31, 1",
        "s_cmp_eq_u32 s31, 3", "s_cbranch_scc1 ffn_ep1",
        "s_cmp_lt_u32 s31, 6", "s_cbranch_scc1 ffn_loop")
    stb(k, 8)
    k.e("s_waitcnt lgkmcnt(0)")
    k.e(f"s_mul_i32 s34, s46, {PSX}", f"s_mul_i32 s33, s47, {PSY}", f"s_add_u32 s33, s33, {WS_P}", "s_add_u32 s34, s34, s33",
        "s_lshl_b32 s35, s30, 10", "s_add_u32 s36, s34, s35",
        "s_cmp_ge_u32 s30, 6", "s_movk_i32 s37, 12288", f"s_cselect_b32 s37, {12288 + 18432 - 6144}, s37", "s_add_u32 s37, s37, s36")
    for mb in range(4):
        d = XB0 + 4 * mb
        a, b = acc(0, mb), acc(1, mb)
        for i in range(4):
            k.e(f"v_cvt_pk_bf16_f32 v{d+i}, v{a+i}, v{b+i}")
        k.e(f"buffer_store_dwordx4 {r4(d)}, v11, s[16:19], s36 offen sc1", "s_add_u32 s36, s36, 18432")
    for h in range(2):
        d = XB0 + 16 + 4 * h
        a, b = acc(2, 2 * h), acc(2, 2 * h + 1)
        k.e(f"v_cvt_pk_bf16_f32 v{d}, v{a}, v{a+1}", f"v_cvt_pk_bf16_f32 v{d+1}, v{a+2}, v{a+3}",
            f"v_cvt_pk_bf16_f32 v{d+2}, v{b}, v{b+1}", f"v_cvt_pk_bf16_f32 v{d+3}, v{b+2}, v{b+3}")
        k.e(f"buffer_store_dwordx4 {r4(d)}, v11, s[16:19], s37 offen sc1", "s_add_u32 s37, s37, 36864")
    stt(k, 3)
    k.e("s_lshl_b32 s38, s47, 9", f"s_add_u32 s38, s38, {F3}", "s_lshr_b32 s36, s30, 2", "s_lshl_b32 s35, s36, 7", "s_add_u32 s38, s38, s35",
        "s_lshl_b32 s35, s46, 3", "s_add_u32 s34, s38, s35",
        "s_lshl_b32 s44, s36, 2", f"s_add_u32 s44, s44, {LDS_CNT + 12}", "s_waitcnt vmcnt(0)")
    stt(k, 4)
    stt(k, 5)
    stt(k, 6)
    arrive(k, 0, 4, 34, "r", cnt_sgpr=44)
    k.e("s_add_u32 s44, s44, 12", "v_mov_b32 v10, s44")
    k.e("s_and_b32 s35, s30, 3", "s_cmp_lg_u32 s35, 3", "s_cbranch_scc1 mega_red")
    if os.environ.get("DEFER", "1") == "1":
        if os.environ.get("DEF0", "1") == "1":
            k.e("s_cmp_eq_u32 s30, 3", f"s_mov_b32 s35, {LDS_CNT + 20}", f"s_cselect_b32 s35, {LDS_CNT + 16}, s35")
            lds_wait(k, "s35", 4, "t2", sleep=4)
        else:
            lds_wait(k, LDS_CNT + 20, 4, "t2", sleep=4)
    k.e("v_and_b32 v12, 7, v1", "v_lshlrev_b32 v12, 3, v12")
    poll(k, 12, 38, 14, "r", sleep=int(os.environ.get("RSP", "3")))
    k.e("v_mov_b32 v13, 1", "ds_write_b32 v10, v13", "s_waitcnt lgkmcnt(0)", "s_branch mega_fin")
    k.label("mega_red")
    k.e(
        "s_lshl_b32 s37, s36, 2", "s_lshl_b32 s39, s35, 1", "s_add_u32 s37, s37, s39",
        "s_lshl_b32 s39, s36, 1", "s_add_u32 s39, s39, 12", "s_cmp_eq_u32 s35, 2", "s_cselect_b32 s37, s39, s37",
        "s_lshr_b32 s39, s46, 2", "s_add_u32 s37, s37, s39",
        "s_and_b32 s39, s46, 3",
        "s_mul_i32 s34, s39, 18432", "s_lshl_b32 s41, s37, 10", "s_add_u32 s34, s34, s41")
    k.e("s_sub_u32 s41, s37, 12", "s_lshl_b32 s41, s41, 11", "s_cmp_ge_u32 s37, 15", "s_movk_i32 s42, 12288",
        f"s_cselect_b32 s42, {12288 + 18432 - 6144}, s42", "s_add_u32 s41, s41, s42", "s_lshr_b32 s42, s39, 1", "s_mul_i32 s42, s42, 36864",
        "s_add_u32 s41, s41, s42", "s_and_b32 s42, s39, 1", "s_lshl_b32 s42, s42, 3", "s_add_u32 s41, s41, s42",
        "s_mov_b32 s43, s35", "s_cmp_eq_u32 s35, 2", "s_cselect_b32 s34, s41, s34", "s_cselect_b32 s42, 1024, 8",
        "s_add_u32 s33, s33, s34", "s_add_u32 s42, s42, s33")
    k.e("s_lshl_b32 s35, s37, 2", "s_add_u32 s35, s35, s39", "s_lshl_b32 s35, s35, 10", "v_add_u32 v13, s35, v11",
        f"ds_read_b128 {r4(WR+32)}, v13")
    srd(k, 20, 14, XB)
    k.e("s_lshl_b32 s35, s47, 2", "s_add_u32 s35, s35, s39", "s_mul_i32 s35, s35, 18432", "s_lshl_b32 s37, s37, 6",
        "s_add_u32 s37, s37, s35", "s_movk_i32 s35, 1152", "v_mul_u32_u24 v9, s35, v2", "v_lshl_add_u32 v9, v3, 4, v9")
    k.e("v_mov_b32 v5, 0x00003f80", "v_mov_b32 v6, 0x3f800000")
    for i in range(8):
        k.e(f"v_mov_b32 v{ACC+i}, 0")
    k.e(f"s_mov_b32 s3, {SPIN*8}")
    k.label("mega_lspin")
    k.e("ds_read_b32 v14, v10", "s_waitcnt lgkmcnt(0)", "v_readfirstlane_b32 s38, v14", "s_cmp_lg_u32 s38, 0", "s_cbranch_scc1 mega_lspind",
        "s_sleep 2", "s_sub_u32 s3, s3, 1", "s_cbranch_scc0 mega_lspin")
    k.label("mega_lspind")
    stt(k, 5)
    k.e("s_cmp_eq_u32 s43, 2", "s_cbranch_scc1 mega_ld_s")
    for j in range(8):
        k.e(f"buffer_load_dwordx4 {r4(WR+4*j)}, v11, s[16:19], s33 offen sc1", f"s_add_u32 s33, s33, {PSX}")
    k.e("s_branch mega_ld_o")
    k.label("mega_ld_s")
    for j in range(8):
        k.e(f"buffer_load_dwordx2 v[{WR+4*j}:{WR+4*j+1}], v11, s[16:19], s33 offen sc1", f"s_add_u32 s33, s33, {PSX}")
    for j in range(8):
        k.e(f"buffer_load_dwordx2 v[{WR+4*j+2}:{WR+4*j+3}], v11, s[16:19], s42 offen sc1", f"s_add_u32 s42, s42, {PSX}")
    k.label("mega_ld_o")
    k.e("s_waitcnt lgkmcnt(0)")
    for i in range(4):
        k.e(f"v_lshlrev_b32 v{ACC+8+2*i}, 16, v{WR+32+i}", f"v_and_b32 v{ACC+9+2*i}, 0xffff0000, v{WR+32+i}")
    for j in range(8):
        k.e(f"s_waitcnt vmcnt({7-j})")
        for i in range(4):
            k.e(f"v_dot2c_f32_bf16 v{ACC+2*i}, v{WR+4*j+i}, v5", f"v_dot2c_f32_bf16 v{ACC+2*i+1}, v{WR+4*j+i}, v6")
    stt(k, 6)
    k.e("s_cmp_eq_u32 s43, 2", "s_cbranch_scc1 mega_red_s")
    for i in range(8):
        k.e(f"v_fma_f32 v{ACC+8+i}, v{ACC+i}, v8, v{ACC+8+i}")
    k.e("s_branch mega_red_o")
    k.label("mega_red_s")
    for i in range(8):
        k.e(f"v_fma_f32 v{ACC+8+i}, v{ACC+(i//2)+4*(i%2)}, v8, v{ACC+8+i}")
    k.label("mega_red_o")
    for i in range(4):
        k.e(f"v_cvt_pk_bf16_f32 v{XB0+i}, v{ACC+8+2*i}, v{ACC+9+2*i}")
    k.e(f"buffer_store_dwordx4 {r4(XB0)}, v9, s[20:23], s37 offen")
    k.label("mega_fin")
    k.stamp_flush(1, 10, 16, 30, wpw=16)
    if os.environ.get("DBGOUT"):
        k.e("s_cmp_lg_u32 s2, 5", "s_cbranch_scc1 mega_end", "s_cmp_lg_u32 s30, 8", "s_cbranch_scc1 mega_end",
            "s_load_dwordx2 s[4:5], s[0:1], 72", "s_waitcnt lgkmcnt(0)", "s_nop 0")
        srd(k, 20, 4, 256)
        for i in range(1, 9):
            k.e(f"s_sub_u32 s34, s{81+2*i}, s81", "v_mov_b32 v4, s34", f"buffer_store_dword v4, v0, s[20:23], 0 offen offset:{4*i-4}",
                f"s_sub_u32 s34, s{80+2*i}, s80", "v_mov_b32 v5, s34", f"buffer_store_dword v5, v0, s[20:23], 0 offen offset:{4*i+28}", "s_waitcnt vmcnt(0)")
    k.e("s_endpgm")
    k.label("ffn_ep1")
    if os.environ.get("PF3"):
        k.e("v_min_u32 v0, 13, v1", "v_lshlrev_b32 v0, 7, v0", "s_mul_i32 s36, s47, 1728", "s_and_b32 s36, s36, 0xffffff80", f"s_add_u32 s36, s36, {18*T*1024}",
            "buffer_load_dword v0, v0, s[20:23], s36 offen sc1")
    k.e("s_waitcnt lgkmcnt(0)")
    k.e("s_lshl_b32 s34, s30, 12", f"s_add_u32 s34, s34, {LDS_H}", "v_add_u32 v12, s34, v11")
    k.e("s_lshr_b32 s34, s30, 1", "s_lshl_b32 s34, s34, 12", "s_and_b32 s35, s30, 1", "s_lshl_b32 s35, s35, 3",
        "s_add_u32 s34, s34, s35", f"s_add_u32 s34, s34, {LDS_H + 49152}", "v_add_u32 v13, s34, v11")
    for mb in range(4):
        d = XB0 + 4 * mb
        a, b = acc(0, mb), acc(1, mb)
        for i in range(4):
            k.e(f"v_cvt_pk_bf16_f32 v{d+i}, v{a+i}, v{b+i}")
        for i in range(4):
            k.e(f"v_pk_max_i16 v{d+i}, v{d+i}, 0")
        k.e(f"ds_write_b128 v12, {r4(d)} offset:{mb*1024}")
    for mb in range(4):
        a = acc(2, mb)
        d = XB0 + 16 + 2 * mb
        k.e(f"v_cvt_pk_bf16_f32 v{d}, v{a}, v{a+1}", f"v_cvt_pk_bf16_f32 v{d+1}, v{a+2}, v{a+3}",
            f"v_pk_max_i16 v{d}, v{d}, 0", f"v_pk_max_i16 v{d+1}, v{d+1}, 0",
            f"ds_write_b64 v13, v[{d}:{d+1}] offset:{mb*1024}")
    for r in range(ACC, ACC + 16 * T):
        k.e(f"v_mov_b32 v{r}, 0")
    if os.environ.get("NOPRIO"):
        k.e("s_branch ffn_pr2")
    k.e("s_cmp_lt_u32 s30, 4", "s_cbranch_scc0 ffn_pr1", "s_setprio 2")
    k.label("ffn_pr1")
    k.e("s_and_b32 s34, s30, 12", "s_cmp_eq_u32 s34, 4", "s_cbranch_scc0 ffn_pr2", "s_setprio 1")
    k.label("ffn_pr2")
    k.e("s_waitcnt lgkmcnt(0)", "s_barrier")
    stb(k, 7)
    k.e("s_branch ffn_start")


def tr_addr(k, base0, base1, stride, extra_sgpr=None):
    k.e("v_lshrrev_b32 v32, 2, v2",
        "v_and_b32 v33, 1, v3", "v_lshlrev_b32 v33, 2, v33", "v_add_u32 v32, v32, v33",
        "v_lshl_add_u32 v32, v3, 3, v32", "v_xor_b32 v33, 4, v32", f"s_movk_i32 s40, {stride}",
        "v_and_b32 v34, 3, v2", "v_lshlrev_b32 v34, 3, v34", f"v_add_u32 v34, {base0}, v34")
    if extra_sgpr is not None:
        k.e(f"v_add_u32 v34, s{extra_sgpr}, v34")
    k.e("v_mad_u32_u24 v28, v32, s40, v34", "v_mad_u32_u24 v29, v33, s40, v34")
    if base1 is not None:
        k.e(f"v_add_u32 v30, {base1 - base0}, v28", f"v_add_u32 v31, {base1 - base0}, v29")


def x_read_addr(k, v, slot_sgpr):
    k.e(f"v_lshrrev_b32 v{v}, 2, v2", f"v_sub_u32 v{v}, 4, v{v}", f"v_and_b32 v{v}, 3, v{v}", f"v_xor_b32 v{v}, v{v}, v3",
        f"v_lshlrev_b32 v{v}, 4, v{v}", f"v_lshl_add_u32 v{v}, v2, 6, v{v}")
    if slot_sgpr is None:
        k.e(f"v_add_u32 v{v}, {A_X}, v{v}")
    else:
        k.e(f"v_add_u32 v{v}, s{slot_sgpr}, v{v}")


def get_nonce(k):
    k.e(f"v_mov_b32 v12, {LDS_NON}", "ds_read_b64 v[14:15], v12", "s_waitcnt lgkmcnt(0)",
        "v_readfirstlane_b32 s66, v14", "v_readfirstlane_b32 s67, v15")


def wq_rd(k, t, s, wf, b, par=False):
    ss = 4 * s if par else s
    a0, a1 = (28, 29) if ss < 8 else (30, 31)
    off = (ss if ss < 8 else ss - 8) * 5120 + 32 * t
    k.e(f"ds_read_b64_tr_b16 v[{wf+4*b}:{wf+4*b+1}], v{a0} offset:{off}",
        f"ds_read_b64_tr_b16 v[{wf+4*b+2}:{wf+4*b+3}], v{a1} offset:{off}")


QCH = [(0, 8), (8, 12), (12, 18)]


def a_qwave(k):
    k.e("; ==== LN1 + Q projection (waves 0..3), LN folded into the epilogue")
    k.e("s_setprio 2")
    k.e("s_sub_u32 s34, s30, s29", "s_and_b32 s34, s34, 3", "s_mul_i32 s43, s34, 18432", f"s_add_u32 s43, s43, {A_X}",
        "s_lshl_b32 s35, s28, 2", "s_add_u32 s35, s35, s30", "s_mul_i32 s35, s35, 18432", "s_lshl_b32 s36, s48, 6")
    k.e("v_lshrrev_b32 v5, 2, v1", "v_sub_u32 v6, 4, v3", "v_xor_b32 v6, v6, v1", "v_and_b32 v6, 3, v6",
        "s_movk_i32 s41, 1152", "v_mul_u32_u24 v5, s41, v5", "v_lshl_add_u32 v4, v6, 4, v5", "v_add_u32 v4, s35, v4")
    NOB0 = os.environ.get("NOB0")
    if not NOB0:
        k.e("s_cmp_eq_u32 s34, 0", "s_cbranch_scc1 a_q_first", "s_barrier")
    else:
        k.e("s_cmp_lg_u32 s34, 0", "s_cbranch_scc1 a_q_first", "s_setprio 3")
    k.label("a_q_first")
    for s in range(18):
        k.e(f"s_add_u32 m0, s43, {s*1024}", "s_nop 0", "buffer_load_dwordx4 v4, s[20:23], s36 offen lds",
            "s_add_u32 s36, s36, 64", "s_cmp_eq_u32 s36, s41", "s_cselect_b32 s36, 0, s36")
    if not NOB0:
        k.e("s_cmp_lg_u32 s34, 0", "s_cbranch_scc1 a_q_second", "s_barrier")
    else:
        k.e("s_setprio 2", "s_barrier")
    k.label("a_q_second")
    tr_addr(k, A_WQ0, A_WQ1, 160)
    x_read_addr(k, 35, 43)
    for r in range(QACC, QACC + 20):
        k.e(f"v_mov_b32 v{r}, 0")
    for b in QACS:
        for i in range(4):
            k.e(f"v_mov_b32 v{b+i}, 0")
    for i in range(4):
        k.e(f"v_mov_b32 v{QONES+i}, 0x3f803f80")
    k.e("v_mov_b32 v6, 0", "v_mov_b32 v7, 0")
    for part in range(3):
        k.e(f"s_waitcnt vmcnt({18 - 6*(part+1)})")
        if part == 2:
            k.e("s_cmp_lg_u32 s34, 0", "s_cbranch_scc1 a_q_nosig")
            lds_signal(k, LDS_KVI)
            k.label("a_q_nosig")
        for s in range(6 * part, 6 * part + 6):
            k.e(f"ds_read_b128 {r4(QX0+4*s)}, v35 offset:{1024*s}")
        if part:
            k.e("s_waitcnt lgkmcnt(6)")
            for r in range(QX0 + 24 * (part - 1), QX0 + 24 * part):
                k.e(f"v_dot2c_f32_bf16 v6, v{r}, v{QONES}", f"v_dot2c_f32_bf16 v7, v{r}, v{r}")
    k.e("s_waitcnt lgkmcnt(0)")
    lds_signal(k, LDS_XC)
    k.stamp(1)
    for r in range(QX0 + 48, QX0 + 72):
        k.e(f"v_dot2c_f32_bf16 v6, v{r}, v{QONES}", f"v_dot2c_f32_bf16 v7, v{r}, v{r}")
    reduce_g_add(k, [6, 7], [32, 33])
    k.e(f"v_mul_f32 v6, {hex(f2u(1/576))}, v6", f"v_mul_f32 v7, {hex(f2u(1/576))}, v7",
        "v_fma_f32 v7, -v6, v6, v7", "v_max_f32 v7, 0, v7", f"v_add_f32 v7, {hex(f2u(1e-5))}, v7", "v_rsq_f32 v7, v7")
    k.e("s_cmp_lg_u32 s34, 0", "s_cbranch_scc1 a_q_nost")
    k.e("v_lshlrev_b32 v32, 2, v2", f"v_add_u32 v32, {A_ST}, v32", "ds_write_b32 v32, v6", "ds_write_b32 v32, v7 offset:64",
        "s_waitcnt lgkmcnt(0)")
    lds_signal(k, LDS_KVS)
    k.label("a_q_nost")
    k.e(f"v_mul_f32 v34, {hex(f2u(QSCALE))}, v7")
    k.e("s_mul_i32 s35, s30, 2304", f"s_add_u32 s35, s35, {LDS_OST}", "v_lshrrev_b32 v35, 1, v3", "v_lshlrev_b32 v35, 8, v35",
        "v_lshl_add_u32 v35, v2, 4, v35", "v_and_b32 v32, 1, v3", "v_lshl_add_u32 v35, v32, 3, v35", "v_add_u32 v35, s35, v35")
    sta(k, 3)
    k.label("a_q_gemm")
    for ci, (s0, s1) in enumerate(QCH):
        k.e("s_cmp_ge_u32 s30, 4", f"s_cbranch_scc1 mega_lwd_q{ci}")
        lds_wait(k, LDS_WQC + 4 * ci, 4, f"q{ci}")
        def rd2(t, s, b):
            a0, a1 = (28, 29) if s < 8 else (30, 31)
            off = (s if s < 8 else s - 8) * 5120 + 32 * t
            return [f"ds_read_b64_tr_b16 v[{QWF+4*b}:{QWF+4*b+1}], v{a0} offset:{off}",
                    f"ds_read_b64_tr_b16 v[{QWF+4*b+2}:{QWF+4*b+3}], v{a1} offset:{off}"]
        roll_gemm2(k, list(range(s0, s1)), rd2,
                   lambda t, s, b: [f"v_mfma_f32_16x16x32_bf16 {r4(QACC+4*t)}, {r4(QWF+4*b)}, {r4(QX0+4*s)}, {r4(QACC+4*t)}",
                                    f"v_mfma_f32_16x16x32_bf16 {r4(QACS[t])}, {r4(QWF+4*b)}, {r4(QONES)}, {r4(QACS[t])}"])
    k.e("s_cmp_ge_u32 s30, 4", "s_cbranch_scc1 a_s_done")
    sta(k, 7)
    k.e("s_setprio 3")
    lds_signal(k, LDS_WDN)
    sta(k, 8)
    for t in range(5):
        a = QACC + 4 * t
        for i in range(4):
            k.e(f"v_fma_f32 v{a+i}, -v6, v{QACS[t]+i}, v{a+i}")
        for i in range(4):
            k.e(f"v_mul_f32 v{a+i}, v34, v{a+i}")
        k.e(f"v_cvt_pk_bf16_f32 v{QWF+2*t}, v{a}, v{a+1}", f"v_cvt_pk_bf16_f32 v{QWF+2*t+1}, v{a+2}, v{a+3}")
        if t == 4:
            k.e(ex(0xffffffff))
        k.e(f"ds_write_b64 v35, v[{QWF+2*t}:{QWF+2*t+1}] offset:{512*t}")
    k.e("s_lshr_b32 s35, s30, 1", "s_lshl_b32 s35, s35, 2", f"s_add_u32 s35, s35, {LDS_QRD}", "v_mov_b32 v12, s35", "v_mov_b32 v13, 1",
        ex(1), "ds_add_u32 v12, v13", ex(-1))


def wkv_rd(k, s, wf):
    for t in range(2):
        off = s * 1536 + 32 * t
        k.e(f"ds_read_b64_tr_b16 v[{wf+4*t}:{wf+4*t+1}], v28 offset:{off}",
            f"ds_read_b64_tr_b16 v[{wf+4*t+2}:{wf+4*t+3}], v29 offset:{off}")


def a_wkv_dma(k):
    k.e("s_cmp_lt_u32 s29, 4", "s_cselect_b32 s20, s70, s72", "s_cselect_b32 s21, s71, s73", f"s_mov_b32 s22, {WKB}", "s_mov_b32 s23, 0x00020000")
    k.e("s_movk_i32 s40, 21846")
    for i in range(3):
        k.e(f"v_add_u32 v32, {64*i}, v1", "v_mul_u32_u24 v33, s40, v32", "v_lshrrev_b32 v33, 16, v33", "v_mul_u32_u24 v34, 3, v33",
            "v_sub_u32 v34, v32, v34", "v_lshlrev_b32 v34, 4, v34", "v_min_u32 v34, 20, v34",
            "v_and_b32 v35, 8, v33", "v_lshrrev_b32 v35, 1, v35", "v_xor_b32 v35, v35, v33", f"v_mad_u32_u24 v{16+i}, v35, 36, v34")
    k.e("s_sub_u32 s34, s30, 4", "s_mul_i32 s34, s34, 3", "s_mul_i32 s43, s34, 3072", "s_lshr_b32 s35, s48, 1", "s_add_u32 s35, s35, s34",
        "s_sub_u32 s36, s35, 9", "s_min_u32 s35, s35, s36", "s_mul_i32 s35, s35, 2304")
    for g in range(3):
        for i in range(3):
            k.e(f"s_add_u32 m0, s43, {A_WKV + g*3072 + i*1024}", "s_nop 0", f"buffer_load_dwordx4 v{16+i}, s[20:23], s35 offen lds")
        k.e("s_add_u32 s35, s35, 2304", f"s_cmp_eq_u32 s35, {9*2304}", "s_cselect_b32 s35, 0, s35")


def a_kvwave(k):
    k.e("; ==== K or V projection of 16 rows (wave 4), published to every workgroup")
    k.e("s_setprio 3")
    a_wkv_dma(k)
    k.e("s_barrier")
    tr_addr(k, A_WKV, None, 48)
    x_read_addr(k, 35, None)
    for r in range(QACC, QACC + 8):
        k.e(f"v_mov_b32 v{r}, 0")
    k.e("s_lshr_b32 s41, s28, 1", f"s_mul_i32 s41, s41, {GRP}", f"s_add_u32 s41, s41, {WS_KV}",
        "s_and_b32 s42, s28, 1", "s_lshl_b32 s42, s42, 1", "s_bfe_u32 s43, s29, 0x10001", "s_add_u32 s42, s42, s43",
        "s_and_b32 s43, s29, 1",
        "s_lshl_b32 s49, s28, 7", "s_lshl_b32 s34, s29, 3", "s_add_u32 s49, s49, s34", f"s_add_u32 s49, s49, {FK}")
    k.e("s_waitcnt vmcnt(0)")
    lds_signal(k, LDS_WKI)
    lds_wait(k, LDS_KVI, 3, "kvi")
    k.stamp(1)
    k.e("s_cmp_ge_u32 s29, 4", "s_cbranch_scc1 a_kv_v")
    for isv in (False, True):
        if isv:
            k.label("a_kv_v")

        def rd(s):
            b = s % 3
            k.e(f"ds_read_b128 {r4(QX0+4*b)}, v35 offset:{1024*s}")
            wkv_rd(k, s, QX0 + 12 + 8 * b)
        rd(0)
        rd(1)
        for s in range(18):
            b = s % 3
            if s + 2 < 18:
                rd(s + 2)
            k.e(f"s_waitcnt lgkmcnt({min(10, 5*(17-s))})")
            for t in range(2):
                a, w, x = r4(QACC + 4 * t), r4(QX0 + 12 + 8 * b + 4 * t), r4(QX0 + 4 * b)
                k.e(f"v_mfma_f32_16x16x32_bf16 {a}, {x}, {w}, {a}" if isv else f"v_mfma_f32_16x16x32_bf16 {a}, {w}, {x}, {a}")
        sta(k, 3)
        lds_wait(k, LDS_KVS, 2, "kv" + ("v" if isv else "k"))
        sta(k, 4)
        A = QACC
        if not isv:
            k.e("v_lshlrev_b32 v32, 4, v3", f"v_add_u32 v32, {A_SKV}, v32", "v_lshlrev_b32 v33, 2, v2", f"v_add_u32 v33, {A_ST}, v33",
                "ds_read_b128 v[16:19], v32", "ds_read_b128 v[20:23], v32 offset:64", "ds_read_b32 v6, v33", "ds_read_b32 v7, v33 offset:64")
            k.e("s_lshl_b32 s38, s43, 8", "v_lshlrev_b32 v36, 4, v2", "v_add_u32 v36, s38, v36",
                "v_lshrrev_b32 v37, 1, v3", "v_lshl_add_u32 v37, v37, 9, v36",
                "s_lshl_b32 s38, s42, 10", "s_add_u32 s38, s38, s41",
                "s_lshl_b32 s39, s42, 2", "s_add_u32 s39, s39, s41", f"s_add_u32 s39, s39, {KV_K2}")
            k.e("s_waitcnt lgkmcnt(0)")
            for i in range(8):
                k.e(f"v_fma_f32 v{A+i}, -v6, v{16+i}, v{A+i}")
            for i in range(8):
                k.e(f"v_mul_f32 v{A+i}, v7, v{A+i}")
            k.e(f"v_cvt_pk_bf16_f32 v40, v{A}, v{A+1}", f"v_cvt_pk_bf16_f32 v41, v{A+2}, v{A+3}", f"v_cvt_pk_bf16_f32 v44, v{A+6}, v{A+7}")
            k.e("v_permlane16_swap_b32 v40, v42", "v_permlane16_swap_b32 v41, v43")
            k.e(ex(0x0000ffff0000ffff), "buffer_store_dwordx4 v[40:43], v37, s[16:19], s38 offen sc1",
                ex(0xffff0000), "buffer_store_dword v44, v36, s[16:19], s39 offen sc1", ex(-1))
            k.e("s_or_b32 s39, s42, s28", "s_cmp_lg_u32 s39, 0", "s_cbranch_scc1 a_kv_nod", f"s_add_u32 s38, s38, {IMG}",
                ex(0x0000ffff0000ffff), "buffer_store_dwordx4 v[40:43], v37, s[16:19], s38 offen sc1", ex(-1))
            k.label("a_kv_nod")
            k.e("s_or_b32 s38, s42, s43", "s_cmp_lg_u32 s38, 0", "s_cbranch_scc1 a_kv_noc")
            k.e("v_mov_b32 v24, 0x3f803f80", "v_mov_b32 v25, 0x00003f80", "v_mov_b32 v26, 0x3f803f80", "v_mov_b32 v27, 0x00003f80",
                "v_mov_b32 v12, 0", f"s_add_u32 s38, s41, {KV_K2 + 512}", ex(1), "buffer_store_dwordx4 v[24:27], v12, s[16:19], s38 offen sc1", ex(-1))
            k.label("a_kv_noc")
            k.e(f"v_mul_f32 v45, v{A+6}, v{A+6}", f"v_fmac_f32 v45, v{A+7}, v{A+7}",
                "v_cmp_eq_u32 vcc, 1, v3", "v_cndmask_b32 v45, 0, v45, vcc")
            for i in range(4):
                k.e(f"v_fmac_f32 v45, v{A+i}, v{A+i}")
            reduce_g_add(k, [45], [46])
            for sh in (8, 4, 2, 1):
                k.e(f"v_max_f32_dpp v45, v45, v45 row_ror:{sh} row_mask:0xf bank_mask:0xf")
            k.e("s_branch a_kv_pub")
        else:
            k.e("v_lshlrev_b32 v32, 2, v2", f"v_add_u32 v32, {A_SKV}, v32", "v_lshlrev_b32 v33, 4, v3", f"v_add_u32 v33, {A_ST}, v33",
                "ds_read_b32 v6, v32", "ds_read_b32 v7, v32 offset:64", "ds_read_b128 v[16:19], v33", "ds_read_b128 v[20:23], v33 offset:64")
            k.e("s_mul_i32 s38, s42, 1216", "s_mul_i32 s39, s43, 608", "s_add_u32 s38, s38, s39", "s_add_u32 s38, s38, s41",
                f"s_add_u32 s38, s38, {KV_V}", "s_movk_i32 s39, 304", "v_and_b32 v36, 1, v3", "v_mul_u32_u24 v37, s39, v36",
                "v_lshl_add_u32 v37, v2, 4, v37", "v_lshrrev_b32 v36, 1, v3", "s_movk_i32 s39, 160", "v_mad_u32_u24 v37, v36, s39, v37")
            k.e("s_waitcnt lgkmcnt(0)")
            for t in range(2):
                for i in range(4):
                    k.e(f"v_fma_f32 v{A+4*t+i}, -v{16+i}, v{6+t}, v{A+4*t+i}")
                for i in range(4):
                    k.e(f"v_mul_f32 v{A+4*t+i}, v{20+i}, v{A+4*t+i}")
            for i in range(4):
                k.e(f"v_cvt_pk_bf16_f32 v{40+i}, v{A+2*i}, v{A+2*i+1}")
            k.e("v_mov_b32 v39, 0x3f803f80", "v_cmp_eq_u32 vcc, 8, v2", "v_cndmask_b32 v42, v42, v39, vcc", "v_cndmask_b32 v43, v43, v39, vcc")
            k.e("v_permlane32_swap_b32 v40, v42", "v_permlane32_swap_b32 v41, v43")
            k.e(ex(0x01c001c0ffffffff), "buffer_store_dwordx4 v[40:43], v37, s[16:19], s38 offen sc1", ex(-1), "v_mov_b32 v45, 0")
    k.label("a_kv_pub")
    sta(k, 5)
    lds_wait(k, LDS_NON, 1, "non")
    get_nonce(k)
    k.e("v_mov_b32 v44, s66", "v_mov_b32 v12, 0", "s_waitcnt vmcnt(0)")
    sta(k, 6)
    k.e(ex(1), "buffer_store_dwordx2 v[44:45], v12, s[16:19], s49 offen sc1", ex(-1))
    k.e("s_waitcnt vmcnt(0)")
    lds_signal(k, LDS_KVS)
    sta(k, 7)
    sta(k, 8)


def a_swave(k):
    k.e("s_setprio 3")
    k.e("s_cmp_eq_u32 s30, 7", "s_cbranch_scc1 a_s_7")
    a_wkv_dma(k)
    k.e("s_barrier", "s_branch a_s_c")
    k.label("a_s_7")
    if os.environ.get("PFC", "1") == "1":
        k.e("s_mul_i32 s34, s47, 1536", "v_min_u32 v12, 11, v1", "v_lshlrev_b32 v12, 7, v12", "v_add_u32 v12, s34, v12",
            f"v_min_u32 v12, CODE_BYTES - 4, v12", "global_load_dword v18, v12, s[62:63]")
    srd(k, 56, 74, 256)
    k.e("v_mov_b32 v10, 0", "s_cmp_lg_u32 s2, 0", "s_cbranch_scc1 a_s_nn")
    k.e("s_memrealtime s[60:61]", "s_waitcnt lgkmcnt(0)", "s_or_b32 s60, s60, 1", "v_mov_b32 v14, s60", "v_mov_b32 v15, s61", ex(1),
        "buffer_store_dwordx2 v[14:15], v10, s[56:59], 0 offen sc1", ex(-1))
    k.label("a_s_nn")
    k.e("v_min_u32 v12, 35, v1", "v_lshlrev_b32 v12, 2, v12", f"v_add_u32 v12, {LDS_RDY}, v12", "v_mov_b32 v13, 0",
        "ds_write_b32 v12, v13", "v_lshlrev_b32 v12, 2, v1", f"v_add_u32 v12, {A_SQ}, v12", "ds_write_b32 v12, v13", "ds_write_b32 v12, v13 offset:64",
        "s_waitcnt lgkmcnt(0)")
    if os.environ.get("TOUCH", "0") == "1":
        k.e("buffer_load_dword v18, v10, s[56:59], 0 offen sc1", f"s_mov_b32 s34, {FK}", "buffer_load_dword v19, v10, s[16:19], s34 offen sc1",
            f"s_mov_b32 s34, {WS_KV}", "buffer_load_dword v20, v10, s[16:19], s34 offen sc1")
    k.e("s_barrier")
    sta(k, 4)
    sta(k, 5)
    sta(k, 6)
    sta(k, 7)
    sta(k, 8)
    k.e(f"s_mov_b32 s3, {SPIN}")
    k.label("a_s_np")
    k.e("s_sleep 4", "buffer_load_dwordx2 v[14:15], v10, s[56:59], 0 offen sc1", "s_sleep 4", "buffer_load_dwordx2 v[16:17], v10, s[56:59], 0 offen sc1",
        "s_waitcnt vmcnt(1)", "v_readfirstlane_b32 s39, v14", "s_cmp_lg_u32 s39, 0", "s_cbranch_scc1 a_s_nd",
        "s_waitcnt vmcnt(0)", "v_mov_b32 v14, v16", "v_mov_b32 v15, v17", "v_readfirstlane_b32 s39, v16", "s_cmp_lg_u32 s39, 0", "s_cbranch_scc1 a_s_nd",
        "s_sub_u32 s3, s3, 1", "s_cbranch_scc0 a_s_np")
    k.label("a_s_nd")
    k.e(f"v_mov_b32 v12, {LDS_NON}", "ds_write_b64 v12, v[14:15]")
    k.label("a_s_c")
    for i in range(4):
        k.e(f"v_mov_b32 v{QONES+i}, 0x3f803f80")
    for r in range(QACC, QACC + 20):
        k.e(f"v_mov_b32 v{r}, 0")
    k.e("s_cmp_lg_u32 s30, 5", "s_cbranch_scc1 a_s_q")
    tr_addr(k, A_WKV, None, 48)
    k.e("s_waitcnt vmcnt(0)")
    lds_signal(k, LDS_KVI)
    lds_signal(k, LDS_WKI)
    lds_wait(k, LDS_WKI, 3, "wki")
    k.stamp(1)
    wkv_rd(k, 0, QX0)
    wkv_rd(k, 1, QX0 + 8)
    for s in range(18):
        if s + 2 < 18:
            wkv_rd(k, s + 2, QX0 + 8 * ((s + 2) % 3))
        k.e(f"s_waitcnt lgkmcnt({min(8, 4*(17-s))})")
        for t in range(2):
            a = r4(QACC + 4 * t)
            k.e(f"v_mfma_f32_16x16x32_bf16 {a}, {r4(QONES)}, {r4(QX0+8*(s%3)+4*t)}, {a}")
    k.e("v_lshlrev_b32 v32, 2, v2", f"v_add_u32 v32, {A_SKV}, v32", f"ds_write_b32 v32, v{QACC}", f"ds_write_b32 v32, v{QACC+4} offset:64",
        "s_waitcnt lgkmcnt(0)")
    lds_signal(k, LDS_KVS)
    k.e("s_branch a_s_done")
    k.label("a_s_q")
    k.e("s_cmp_eq_u32 s30, 7", "s_cbranch_scc1 a_s_nx", "s_waitcnt vmcnt(0)")
    lds_signal(k, LDS_KVI)
    lds_signal(k, LDS_WKI)
    if os.environ.get("DRY", "0") == "1":
        k.stamp(1)
        tr_addr(k, A_WQ0, A_WQ1, 160)
        k.e("s_setprio 0", "s_branch a_q_gemm")
    k.label("a_s_nx")
    k.stamp(1)
    k.label("a_s_done")
    k.e("s_waitcnt vmcnt(0)")


def a_helper(k):
    k.e("; ==== helper waves: wq loader, then K/V gather")
    k.e("s_setprio 1", "s_sub_u32 s31, s30, 8")
    srd(k, 20, 68, WQB)
    if os.environ.get("PFQ", "1") == "1":
        k.e("s_cmp_lg_u32 s31, 0", "s_cbranch_scc1 a_h_nopf",
            "v_min_u32 v12, 20, v1", "v_lshlrev_b32 v12, 7, v12", "s_mul_i32 s34, s2, 2592", "s_and_b32 s34, s34, 0xffffff80",
            "buffer_load_dword v21, v12, s[20:23], s34 offen", ("buffer_load_dword v21, v12, s[20:23], s34 offen offset:64" if os.environ.get("PF64") else ""))
        k.label("a_h_nopf")
    k.e("s_movk_i32 s40, 6554", "s_movk_i32 s41, 1152")
    for i in range(5):
        dma_slot_calc(k, i, 32, 33, 34, 35)
        k.e("v_min_u32 v34, 8, v34", f"v_mul_u32_u24 v{16+i}, s41, v35", f"v_lshl_add_u32 v{16+i}, v34, 4, v{16+i}")
    k.e("s_add_u32 s42, s31, s48", "s_mul_i32 s32, s29, 144", "s_mul_i32 s43, s31, 5120")

    def wdma(base):
        k.e("s_sub_u32 s36, s42, 18", "s_min_u32 s42, s42, s36", "s_mul_i32 s36, s42, 36864", "s_add_u32 s36, s36, s32")
        for i in range(5):
            k.e(f"s_add_u32 m0, s43, {base + i*1024}", "s_nop 0", f"buffer_load_dwordx4 v{16+i}, s[20:23], s36 offen lds")
        k.e("s_add_u32 s42, s42, 4")
    k.e("s_barrier")
    wdma(A_WQ0)
    wdma(A_WQ0 + 20480)
    k.e("s_waitcnt vmcnt(0)")
    lds_signal(k, LDS_WQC)
    sta(k, 3)
    lds_wait(k, LDS_XC, 4, "xc")
    k.e("s_setprio 3")
    k.stamp(1)
    wdma(A_WQ1)
    wdma(A_WQ1 + 20480)
    k.e("s_cmp_ge_u32 s31, 2", "s_cbranch_scc1 a_h_skip")
    wdma(A_WQ1 + 40960)
    k.label("a_h_skip")
    for ci, n in ((1, 5), (2, 0)):
        k.e(f"s_waitcnt vmcnt({n})")
        lds_signal(k, LDS_WQC + 4 * ci)
        sta(k, 3 + ci)
    lds_wait(k, LDS_KVS, 3, "pub")
    get_nonce(k)
    sta(k, 6)
    k.e("v_lshrrev_b32 v10, 3, v1", "v_lshlrev_b32 v10, 7, v10", "v_and_b32 v9, 7, v1", "v_lshl_add_u32 v10, v9, 3, v10",
        "s_lshl_b32 s34, s31, 10", f"s_add_u32 s35, s34, {FK}")
    poll(k, 10, 35, 14, "k", sleep=int(os.environ.get("KSL", "10")), lo_only=True, first=int(os.environ.get("KF", "0")))
    sta(k, 7)
    k.e(f"v_mov_b32 v12, {LDS_KMX}", "ds_max_u32 v12, v15")
    lds_signal(k, LDS_KVR)
    k.e("s_lshr_b32 s35, s2, 3", "s_add_u32 s35, s35, s2", "s_and_b32 s35, s35, 15", f"s_mul_i32 s35, s35, {GRP}", "s_add_u32 s35, s35, s34",
        f"v_add_u32 v10, {WS_KV}, v11")
    lds_wait(k, LDS_KVR, 4, "kvr")
    k.e("s_or_b32 s36, s2, s31", "s_cmp_lg_u32 s36, 0", "s_cbranch_scc1 a_h_noclr")
    srd(k, 56, 74, 256)
    k.e("v_mov_b32 v12, 0", "v_mov_b32 v13, 0", ex(1), "buffer_store_dwordx2 v[12:13], v12, s[56:59], 0 offen sc1", ex(-1))
    k.label("a_h_noclr")
    sta(k, 8)
    kv_dma(k, 0, 7)


def gen_one(name):
    k = Kernel(name, vgprs=168)
    k.e("s_getpc_b64 s[62:63]")
    k.label("mega_pc")
    k.e("s_cmp_ge_u32 s2, 256", "s_cbranch_scc1 mega_end")
    k.e("s_load_dwordx2 s[10:11], s[0:1], 0", "s_load_dwordx4 s[68:71], s[0:1], 8", "s_load_dwordx2 s[72:73], s[0:1], 24",
        "s_load_dwordx2 s[8:9], s[0:1], 32", "s_load_dwordx4 s[4:7], s[0:1], 48", "s_load_dwordx2 s[14:15], s[0:1], 64",
        "s_load_dwordx2 s[74:75], s[0:1], 72", "s_load_dwordx2 s[12:13], s[0:1], 80")
    k.stamp(0)
    k.e("v_and_b32 v1, 63, v0", "v_and_b32 v2, 15, v0", "v_bfe_u32 v3, v0, 4, 2", "v_lshrrev_b32 v7, 6, v0",
        "v_lshlrev_b32 v11, 4, v1", "v_readfirstlane_b32 s30, v7")
    k.e("s_and_b32 s46, s2, 7", "s_lshr_b32 s47, s2, 3", "s_and_b32 s28, s47, 24", "s_add_u32 s28, s28, s46", "s_and_b32 s29, s47, 7",
        "s_lshr_b32 s48, s47, 3", "s_lshl_b32 s48, s48, 1", "s_add_u32 s48, s48, s29", "s_sub_u32 s34, s48, 9", "s_min_u32 s48, s48, s34",
        "s_lshl_b32 s48, s48, 1")
    k.e("s_waitcnt lgkmcnt(0)")
    srd(k, 16, 12, WS_END)
    srd(k, 20, 10, XB)
    srd(k, 24, 8, WQB)
    k.e("s_cmp_ge_u32 s30, 8", "s_cbranch_scc1 mega_helper")
    k.e("s_cmp_ge_u32 s30, 5", "s_cbranch_scc1 a_sw", "s_cmp_eq_u32 s30, 4", "s_cbranch_scc1 a_kvw")
    a_qwave(k)
    k.e("s_branch a_done")
    k.label("a_kvw")
    a_kvwave(k)
    k.e("s_branch a_s_done")
    k.label("a_sw")
    a_swave(k)
    k.label("a_done")
    k.e("s_setprio 3")
    k.e("s_mov_b32 s52, 0")
    attention(k)
    k.e("s_cmp_lg_u32 s52, 0", "s_cbranch_scc1 mega_ringed")
    ffn_ring_start(k)
    k.label("mega_ringed")
    lds_wait(k, LDS_ORD, 4, "ord2", sleep=4)
    if os.environ.get("PF1", "1") == "1":
        k.e("s_cmp_ge_u32 s30, 2", "s_cbranch_scc1 mega_nopf1",
            "s_mul_i32 s36, s30, 54", "v_min_u32 v12, 53, v1", "v_add_u32 v12, s36, v12", "s_movk_i32 s36, 7282", "v_mul_u32_u24 v13, s36, v12",
            "v_lshrrev_b32 v13, 16, v13", "v_mul_u32_u24 v14, 9, v13", "v_sub_u32 v12, v12, v14", "v_lshlrev_b32 v12, 7, v12",
            f"s_mov_b32 s36, {STREAM}", "v_mad_u32_u24 v12, v13, s36, v12",
            f"s_mul_i32 s36, s46, {1296*1024}", "s_mul_i32 s37, s47, 1152", "s_add_u32 s36, s36, s37", f"s_add_u32 s36, s36, {WS_W + 6*T*1024}",
            "buffer_load_dword v0, v12, s[16:19], s36 offen sc1", ("buffer_load_dword v0, v12, s[16:19], s36 offen offset:64 sc1" if os.environ.get("PF64") else ""))
        k.label("mega_nopf1")
    for t in range(T):
        k.e(wload(D - 1, t))
    k.e("s_waitcnt vmcnt(0)")
    stb(k, 4)
    k.e("s_branch ffn_join")
    k.label("mega_helper")
    a_helper(k)
    helper_pack(k)
    oproj(k)
    ffn(k)
    k.label("mega_end")
    k.e("s_endpgm", ".set CODE_BYTES, mega_end - mega_pc")
    return k
```

```python
import os
from asmlib import Kernel
from layout import *
from k_small import f2u, srd, ex, reduce_g_add, dma_slot_calc

S0, S1, OA, P, KF, V0, V1, K2F, Q, Q2E, Q2O = 16, 32, 48, 64, 72, 76, 80, 84, 88, 92, 94
T0 = 96
PIN, POUT, PS = 48, 96, 144
LDS_OST = 151808
LDS_RES = 92160
LDS_WO = 0
LDS_H = 73728
LDS_S = 161024
LDS_RDY = 163328
LDS_CNT = 163344
LDS_WQC = 163392
LDS_KVS = LDS_WQC + 12
LDS_KVR = LDS_WQC + 16
LDS_KMX = LDS_WQC + 20
LDS_KVI = LDS_WQC + 24
LDS_XC = LDS_WQC + 28
LDS_WKI = LDS_WQC + 32
LDS_REL = LDS_WQC + 36
LDS_NON = LDS_WQC + 40
LDS_ORD = LDS_WQC + 48
LDS_IMG = LDS_WQC + 52
LDS_MUS = LDS_WQC + 56
LDS_SRD = LDS_WQC + 60
LDS_QRD = LDS_WQC + 64
LDS_WDN = LDS_WQC + 72
LDS_IM0 = LDS_WQC + 76
LDS_MU = LDS_OST
LDS_MEGA = 163488
A_WKV = 0
A_WQ0 = 29696
A_X = 70656
A_WQ1 = A_X + 18432
A_SQ = LDS_S
A_SKV = LDS_S + 320
A_ST = LDS_S + 448
QX0, QACC, QWF, QONES = 48, 120, 140, 36
QACS = [16, 20, 24, 40, 44]
OX0, OACC, OWF = 96, 48, 68
XB0, ACC, WR = 16, 48, 96
D = 6
T = 3
STREAM = 36 * T * 1024
SPIN = 1 << 16
PSX, PSY = 73728, 589824
RX = RST = 0
if os.environ.get("CMP", "0") == "1":
    _d = -WS_FL
    F1, F2, FP, F3, FK = F1 + _d, F2 + _d, FP + _d, F3 + _d, FK + _d
    WS_KV, WS_SP, WS_W = 0x10000, 0x40000, 0x60000
    _R0, _RS = 0xA80000, 10 * 73728 + 4096
    WS_O, WS_H, WS_P, WS_ST = _R0, _R0 + 73728, _R0 + 2 * 73728, _R0 + 10 * 73728
    PSY, RX, RST = _RS, _RS - 73728, _RS - 4096
STA = bool(os.environ.get("STA"))


def sta(k, i):
    if STA:
        k.stamp(i)


STP = bool(os.environ.get("STP"))


def stb(k, i):
    if not STA and not STP and not (STT and i < 7) and not (STO and i > 6):
        k.stamp(i)


STT = bool(os.environ.get("STT"))


def stt(k, i):
    if STT:
        k.stamp(i)


STO = bool(os.environ.get("STO"))


def sto(k, i):
    if STO:
        k.stamp(i)


def stp(k, i):
    if STP:
        k.stamp(i)
WAUX = os.environ.get("WAUX", "sc1")


def r4(b):
    return f"v[{b}:{b+3}]"


def r16(b):
    return f"v[{b}:{b+15}]"


def poll(k, vaddr, soff, vtmp, tag, sleep=2, lo_only=False, first=0):
    lab, done = f"mega_poll_{tag}", f"mega_polld_{tag}"
    k.e(f"s_mov_b32 s3, {SPIN}")
    if first:
        k.e(f"s_sleep {first}")
    k.label(lab)
    k.e(f"s_sleep {sleep}", f"buffer_load_dwordx2 v[{vtmp}:{vtmp+1}], v{vaddr}, s[16:19], s{soff} offen sc1", "s_waitcnt vmcnt(0)")
    if lo_only:
        k.e(f"v_cmp_eq_u32 vcc, s66, v{vtmp}")
    else:
        k.e(f"v_cmp_eq_u64 vcc, s[66:67], v[{vtmp}:{vtmp+1}]")
    k.e("s_cmp_eq_u64 vcc, -1", f"s_cbranch_scc1 {done}", "s_sub_u32 s3, s3, 1", f"s_cbranch_scc0 {lab}")
    k.label(done)


def set_flag(k, soff):
    k.e("v_mov_b32 v12, 0", "v_mov_b32 v14, s66", "v_mov_b32 v15, s67", ex(1),
        f"buffer_store_dwordx2 v[14:15], v12, s[16:19], s{soff} offen sc1", ex(-1))


def lds_signal(k, addr, va=12, vb=13):
    k.e(f"v_mov_b32 v{va}, {addr}", f"v_mov_b32 v{vb}, 1", ex(1), f"ds_add_u32 v{va}, v{vb}", ex(-1))


def lds_wait(k, addr, n, tag, va=12, vb=13, sleep=int(os.environ.get("LWS", "1"))):
    lab, done = f"mega_lw_{tag}", f"mega_lwd_{tag}"
    k.e(f"v_mov_b32 v{va}, {addr}", f"s_mov_b32 s3, {SPIN*8}")
    k.label(lab)
    k.e(f"ds_read_b32 v{vb}, v{va}", "s_waitcnt lgkmcnt(0)", f"v_readfirstlane_b32 s39, v{vb}", f"s_cmp_ge_u32 s39, {n}",
        f"s_cbranch_scc1 {done}", f"s_sleep {sleep}", "s_sub_u32 s3, s3, 1", f"s_cbranch_scc0 {lab}")
    k.label(done)


def arrive(k, cnt, n, soff, tag, cnt_sgpr=None):
    if cnt_sgpr is None:
        k.e(f"v_mov_b32 v12, {LDS_CNT + 4*cnt}")
    else:
        k.e(f"v_mov_b32 v12, s{cnt_sgpr}")
    k.e("v_mov_b32 v13, 1", ex(1), "ds_add_rtn_u32 v14, v12, v13", ex(-1), "s_waitcnt lgkmcnt(0)",
        "v_readfirstlane_b32 s3, v14", f"s_cmp_lg_u32 s3, {n-1}", f"s_cbranch_scc1 mega_arr_{tag}")
    set_flag(k, soff)
    k.label(f"mega_arr_{tag}")


def publish_o(k, tag, pre=None):
    k.e("s_and_b32 s34, s30, 3", "s_lshr_b32 s35, s30, 2", "s_mul_i32 s36, s34, 2304", "s_mul_i32 s37, s35, 768",
        "s_add_u32 s36, s36, s37", f"s_add_u32 s36, s36, {LDS_OST}", "v_add_u32 v12, s36, v11",
        f"ds_read_b128 {r4(4)}, v12")
    k.e("s_lshl_b32 s36, s28, 2", "s_add_u32 s36, s36, s34", "s_mul_i32 s38, s36, 18432", "s_mul_i32 s39, s29, 2304",
        "s_add_u32 s38, s38, s39", "s_add_u32 s38, s38, s37", f"s_add_u32 s38, s38, {WS_O}", f"s_mul_i32 s39, s28, {RX}", "s_add_u32 s38, s38, s39")
    k.e("s_lshl_b32 s36, s28, 7", "s_lshl_b32 s39, s29, 3", "s_add_u32 s36, s36, s39", f"s_add_u32 s36, s36, {F1}")
    k.e("s_waitcnt lgkmcnt(0)", ex((1 << 48) - 1), f"buffer_store_dwordx4 {r4(4)}, v11, s[16:19], s38 offen sc1", ex(-1),
        "s_waitcnt vmcnt(0)")
    arrive(k, 1, 12, 36, tag)
    if pre:
        pre(k)


def attention(k):
    k.e("; ==== attention (waves 0..7; one (head, 32-query) unit each). S^T = K.Q^T - M comes straight out of the MFMAs:")
    k.e("v_and_b32 v2, 31, v1", "v_lshrrev_b32 v3, 5, v1")
    k.e("s_lshr_b32 s35, s30, 2", "s_mul_i32 s35, s35, 4608", f"s_add_u32 s35, s35, {LDS_OST}", "s_movk_i32 s36, 2304",
        "v_lshrrev_b32 v8, 4, v2", "v_mul_u32_u24 v8, s36, v8", "v_and_b32 v9, 15, v2", "v_lshl_add_u32 v8, v9, 4, v8",
        "v_add_u32 v8, s35, v8", "v_lshl_add_u32 v9, v3, 8, v8", "s_and_b32 s37, s30, 3", "s_mul_i32 s37, s37, 18")
    for i in range(4):
        k.e(f"s_add_u32 s38, s37, {2*i}", "s_lshr_b32 s39, s38, 3", "s_lshl_b32 s39, s39, 8", "s_and_b32 s38, s38, 7",
            "s_lshl_b32 s38, s38, 1", "s_add_u32 s38, s38, s39", f"v_add_u32 v{Q+i}, s38, v9")
        if i == 0:
            k.e(f"v_add_u32 v{T0}, s38, v8")
    k.e(f"v_mov_b32 v{T0+2}, {LDS_KMX}")
    k.e("v_mov_b32 v12, v11")
    k.e("v_cmp_eq_u32 vcc, 28, v2", "v_cndmask_b32 v13, v2, 18, vcc",
        "v_cmp_lt_u32 vcc, 18, v13", "v_mov_b32 v14, 0x10000", "v_cndmask_b32 v13, v13, v14, vcc",
        "s_movk_i32 s40, 304", "v_mul_u32_u24 v14, s40, v3", "v_lshl_add_u32 v13, v13, 4, v14", f"v_add_u32 v13, {KV_V}, v13")
    k.e("v_min_u32 v14, 32, v1", "v_lshlrev_b32 v14, 4, v14", f"v_add_u32 v14, {KV_K2}, v14")
    k.e("v_cmp_eq_u32 s[44:45], 1, v3")
    k.e("s_lshr_b32 s35, s30, 2", "s_lshl_b32 s35, s35, 2", f"s_add_u32 s35, s35, {LDS_QRD}")
    def zero_init():
        for r in list(range(OA, OA + 16)) + list(range(P, P + 8)) + list(range(V1, V1 + 4)):
            k.e(f"v_mov_b32 v{r}, 0")

    def setm():
        k.e(f"v_xor_b32 v{T0+2}, 0x80000000, v{T0+1}",
            f"v_and_b32 v{T0+3}, 0xffff0000, v{T0+2}", f"v_sub_f32 v{T0+2}, v{T0+2}, v{T0+3}",
            f"v_and_b32 v{T0+4}, 0xffff0000, v{T0+2}", f"v_sub_f32 v{T0+2}, v{T0+2}, v{T0+4}",
            f"v_lshrrev_b32 v{T0+3}, 16, v{T0+3}", f"v_or_b32 v{T0+3}, v{T0+3}, v{T0+4}",
            f"v_lshrrev_b32 v{T0+2}, 16, v{T0+2}")
        k.e(f"v_cndmask_b32 v{Q2E}, v{T0}, v{T0+3}, s[44:45]", f"v_cndmask_b32 v{Q2E+1}, 0, v{T0+2}, s[44:45]",
            f"v_cndmask_b32 v{Q2O}, 0, v{T0+3}, s[44:45]", f"v_cndmask_b32 v{Q2O+1}, v{T0}, v{T0+2}, s[44:45]")
    zero_init()
    k.e("v_mov_b32 v4, v12", "v_mov_b32 v5, v13", "v_mov_b32 v6, v14", "s_mov_b32 s32, 0", "s_mov_b32 s31, 2")
    sta(k, 4)
    lds_wait(k, LDS_IM0, 4, "im0", va=T0 + 6, vb=T0 + 7)
    k.e(f"ds_read_b32 v{T0+2}, v{T0+2}", f"v_mov_b32 v{T0+6}, {LDS_NON}", f"ds_read_b64 v[{T0+8}:{T0+9}], v{T0+6}",
        f"ds_read_b128 {r4(KF)}, v4", f"ds_read_b128 {r4(K2F)}, v6", f"ds_read_b128 {r4(V0)}, v5")
    sta(k, 5)
    lds_wait(k, "s35", 2, "qrd", va=T0 + 6, vb=T0 + 7)
    sta(k, 6)
    for i in range(4):
        k.e(f"ds_read_b32 v{Q+i}, v{Q+i}")
    k.e(f"ds_read_b32 v{T0}, v{T0} offset:512", f"v_readfirstlane_b32 s66, v{T0+8}", f"v_readfirstlane_b32 s67, v{T0+9}",
        f"v_mul_f32 v{T0+2}, {hex(f2u(1.02*1.02))}, v{T0+2}", f"v_mov_b32 v{T0+1}, 0", "s_waitcnt lgkmcnt(0)")
    k.e(f"v_cndmask_b32 v{T0}, v{T0}, 0, s[44:45]")
    for r in (Q, Q + 1, Q + 2, Q + 3, T0):
        k.e(f"v_dot2c_f32_bf16 v{T0+1}, v{r}, v{r}")
    k.e(f"v_mfma_f32_32x32x16_bf16 {r16(S0)}, {r4(KF)}, {r4(Q)}, 0", f"ds_read_b128 {r4(KF)}, v4 offset:1024")
    k.e(f"v_mov_b32 v{T0+4}, v{T0+1}", f"v_permlane32_swap_b32 v{T0+1}, v{T0+4}", f"v_add_f32 v{T0+1}, v{T0+1}, v{T0+4}")
    k.e(f"v_mul_f32 v{T0+1}, v{T0+1}, v{T0+2}", f"v_sqrt_f32 v{T0+1}, v{T0+1}")
    setm()
    k.e("s_setprio 2", "s_branch attn_go")
    k.label("attn_setm")
    setm()
    k.e("v_mov_b32 v4, v12", "v_mov_b32 v5, v13", "v_mov_b32 v6, v14")
    k.e("s_cmp_eq_u32 s32, 10", "s_cbranch_scc1 attn_maxpass")
    zero_init()
    k.e("s_mov_b32 s31, 16")
    k.e(f"ds_read_b128 {r4(KF)}, v4", f"ds_read_b128 {r4(K2F)}, v6", f"ds_read_b128 {r4(V0)}, v5", "s_waitcnt lgkmcnt(0)")
    k.e(f"v_mfma_f32_32x32x16_bf16 {r16(S0)}, {r4(KF)}, {r4(Q)}, 0", f"ds_read_b128 {r4(KF)}, v4 offset:1024")
    k.label("attn_go")
    k.e(f"v_mfma_f32_32x32x8_bf16 {r16(S0)}, v[{K2F}:{K2F+1}], v[{Q2E}:{Q2E+1}], {r16(S0)}")
    k.stamp(2)
    k.e("s_waitcnt lgkmcnt(0)", "s_nop 7", "s_nop 3")
    k.e(".p2align 6")
    k.label("attn_loop")
    for tau in range(4):
        cur, nxt = (S0, S1) if tau % 2 == 0 else (S1, S0)
        t1 = (tau + 1) % 4
        koff = (tau + 2) * 1024 if tau < 2 else GRP + (tau - 2) * 1024
        v0off = (tau + 1) * 1216 if tau < 3 else GRP

        def ex_(a, b):
            for i in range(a, b):
                k.e(f"v_exp_f32 v{cur+i}, v{cur+i}")

        def cv(a, b):
            for i in range(a, b):
                k.e(f"v_cvt_pk_bf16_f32 v{P+i}, v{cur+2*i}, v{cur+2*i+1}")
        e1, e2, e3, e4 = eval(os.environ.get("EXS", "(3, 6, 9, 12)"))
        k.e("s_waitcnt lgkmcnt(2)")
        k.e(f"v_mfma_f32_32x32x16_bf16 {r16(nxt)}, {r4(KF)}, {r4(Q)}, 0")
        k.e(f"ds_read_b128 {r4(KF)}, v4 offset:{koff}")
        ex_(0, e1)
        k.e("s_waitcnt lgkmcnt(2)")
        k.e(f"v_mfma_f32_32x32x16_bf16 {r16(OA)}, {r4(V1)}, {r4(P+4)}, {r16(OA)}")
        k.e(f"ds_read_b128 {r4(V1)}, v5 offset:{tau*1216+608}")
        ex_(e1, e2)
        q2 = Q2E if t1 % 2 == 0 else Q2O
        kk = K2F + 2 * (t1 // 2)
        k.e(f"v_mfma_f32_32x32x8_bf16 {r16(nxt)}, v[{kk}:{kk+1}], v[{q2}:{q2+1}], {r16(nxt)}")
        if tau == 2:
            k.e(f"ds_read_b128 {r4(K2F)}, v6 offset:{GRP}")
        ex_(e2, e3)
        cv(0, 4)
        ex_(e3, e4)
        k.e("s_waitcnt lgkmcnt(2)")
        k.e(f"v_mfma_f32_32x32x16_bf16 {r16(OA)}, {r4(V0)}, {r4(P)}, {r16(OA)}")
        k.e(f"ds_read_b128 {r4(V0)}, v5 offset:{v0off}")
        ex_(e4, 16)
        if tau == 3:
            k.e(f"v_add_u32 v4, {GRP}, v4", f"v_add_u32 v5, {GRP}, v5", f"v_add_u32 v6, {GRP}, v6")
            k.e("s_sub_u32 s31, s31, 1", "s_cmp_lg_u32 s31, 0")
        cv(4, 8)
    k.e("s_cbranch_scc1 attn_loop")
    k.e("s_cmp_ge_u32 s32, 4", "s_cbranch_scc1 attn_tail")
    k.e("s_add_u32 s32, s32, 1")
    k.e("s_cmp_eq_u32 s32, 2", "s_cbranch_scc1 attn_ph2", "s_cmp_eq_u32 s32, 3", "s_cbranch_scc1 attn_ph3",
        "s_cmp_eq_u32 s32, 4", "s_cbranch_scc1 attn_ph4")
    lds_wait(k, LDS_IMG, 4, "img", va=T0 + 6, vb=T0 + 7)
    k.e("s_mov_b32 s31, 9", "s_branch attn_loop")
    for ph, cnt, pr in eval(os.environ.get("PHS", "((2, 2, 1), (3, 2, 1), (4, 1, 0))")):
        k.label(f"attn_ph{ph}")
        k.e(f"s_setprio {pr}", f"s_mov_b32 s31, {cnt}")
        if ph == 2:
            k.e(f"v_cndmask_b32 v{T0+5}, v{OA+10}, v{OA+12}, s[44:45]", f"v_cmp_le_f32 vcc, {hex(f2u(2.0**-40))}, v{T0+5}",
                "s_cmp_eq_u64 vcc, -1", "s_cselect_b32 s34, 1, 0x101", f"v_mov_b32 v{T0+6}, {LDS_REL}", f"v_mov_b32 v{T0+7}, s34",
                ex(1), f"ds_add_u32 v{T0+6}, v{T0+7}", ex(-1))
        if ph == 4:
            k.e(f"v_mov_b32 v{T0+6}, {LDS_RDY}", f"ds_read_b32 v{T0+6}, v{T0+6}", "s_waitcnt lgkmcnt(0)",
                f"v_readfirstlane_b32 s52, v{T0+6}", "s_cmp_eq_u32 s52, 0", "s_cbranch_scc1 attn_loop")
            ffn_ring_start(k)
        k.e("s_branch attn_loop")
    k.label("attn_maxpass")
    k.e(f"v_mov_b32 v{T0+1}, 0xff800000", "s_mov_b32 s31, 16")
    k.label("attn_maxloop")
    k.e(f"ds_read_b128 {r4(K2F)}, v6")
    for tau in range(4):
        q2 = Q2E if tau % 2 == 0 else Q2O
        kk = K2F + 2 * (tau // 2)
        k.e(f"ds_read_b128 {r4(KF)}, v4 offset:{tau*1024}", "s_waitcnt lgkmcnt(0)")
        k.e(f"v_mfma_f32_32x32x16_bf16 {r16(S0)}, {r4(KF)}, {r4(Q)}, 0",
            f"v_mfma_f32_32x32x8_bf16 {r16(S0)}, v[{kk}:{kk+1}], v[{q2}:{q2+1}], {r16(S0)}")
        for i in range(8):
            k.e(f"v_max3_f32 v{T0+1}, v{S0+2*i}, v{S0+2*i+1}, v{T0+1}")
    k.e(f"v_add_u32 v4, {GRP}, v4", f"v_add_u32 v6, {GRP}, v6", "s_sub_u32 s31, s31, 1", "s_cmp_lg_u32 s31, 0",
        "s_cbranch_scc1 attn_maxloop")
    k.e(f"v_mov_b32 v{T0+2}, v{T0+1}", f"v_permlane32_swap_b32 v{T0+1}, v{T0+2}", f"v_max_f32 v{T0+1}, v{T0+1}, v{T0+2}")
    k.e("s_mov_b32 s32, 11", "s_branch attn_setm")
    k.label("attn_tail")
    k.e("s_waitcnt lgkmcnt(0)")
    k.e(f"v_mfma_f32_32x32x16_bf16 {r16(OA)}, {r4(V1)}, {r4(P+4)}, {r16(OA)}")
    k.e("s_and_b32 s34, s30, 3", "s_mul_i32 s34, s34, 18", "s_lshr_b32 s35, s30, 2", "s_mul_i32 s35, s35, 4608",
        f"s_add_u32 s35, s35, {LDS_OST}", "s_movk_i32 s36, 2304",
        f"v_lshrrev_b32 v{T0+9}, 4, v2", f"v_mul_u32_u24 v{T0+9}, s36, v{T0+9}", f"v_and_b32 v{T0+8}, 15, v2",
        f"v_lshl_add_u32 v{T0+9}, v{T0+8}, 4, v{T0+9}", f"v_add_u32 v{T0+9}, s35, v{T0+9}")
    k.e(f"v_lshl_add_u32 v{T0+6}, v3, 2, s34", f"v_add_u32 v{T0+7}, 2, v{T0+6}")
    for r in (T0 + 6, T0 + 7):
        k.e(f"v_lshrrev_b32 v{T0+8}, 3, v{r}", f"v_and_b32 v{r}, 7, v{r}", f"v_lshl_add_u32 v{r}, v{r}, 1, v{T0+9}",
            f"v_lshl_add_u32 v{r}, v{T0+8}, 8, v{r}")
    k.e(f"v_cndmask_b32 v{T0+5}, v{OA+10}, v{OA+12}, s[44:45]")
    k.e(f"v_cmp_le_f32 vcc, {hex(f2u(2.0**-40))}, v{T0+5}")
    k.e("s_cmp_eq_u32 s32, 11", "s_cbranch_scc1 attn_fin")
    k.e("s_cmp_eq_u64 vcc, -1", "s_cbranch_scc1 attn_fin")
    k.e("s_mov_b32 s32, 10", f"v_mov_b32 v{T0+1}, 0", "s_branch attn_setm")
    k.label("attn_fin")
    k.e(f"v_rcp_f32 v{T0+5}, v{T0+5}")
    for i in range(10):
        k.e(f"v_mul_f32 v{OA+i}, v{T0+5}, v{OA+i}")
    for i in range(5):
        k.e(f"v_cvt_pk_bf16_f32 v{P+i}, v{OA+2*i}, v{OA+2*i+1}")
    k.e(f"ds_write_b32 v{T0+6}, v{P}", f"ds_write_b32 v{T0+7}, v{P+1}",
        f"ds_write_b32 v{T0+6}, v{P+2} offset:256", f"ds_write_b32 v{T0+7}, v{P+3} offset:256",
        ex(0xffffffff), f"ds_write_b32 v{T0+6}, v{P+4} offset:512", ex(-1))
    k.e("s_waitcnt lgkmcnt(0)", "s_barrier")
    stb(k, 3)
    publish_o(k, "oa")


def kv_dma(k, a, b):
    for i in range(a, b):
        k.e(f"s_add_u32 m0, s34, {i*4096}", f"s_sub_u32 s36, s35, {IMG - 4096}", "buffer_load_dwordx4 v10, s[16:19], s35 offen sc1 lds",
            "s_add_u32 s35, s35, 4096", "s_min_u32 s35, s35, s36")


NB = 7


def roll_gemm(k, steps, rd, mfma, pre=None):
    seq = [(s, t) for s in steps for t in range(5)]
    n = len(seq)
    for i in range(min(NB, n)):
        rd(seq[i][1], seq[i][0], i % NB)
    for i, (s, t) in enumerate(seq):
        ahead = min(NB - 1, n - 1 - i)
        extra = pre(s) if (pre and t == 0) else ""
        k.e(f"s_waitcnt lgkmcnt({2*ahead}){extra}")
        mfma(t, s, i % NB)
        if i + NB < n:
            rd(seq[i + NB][1], seq[i + NB][0], i % NB)


def roll_gemm2(k, steps, rd2, mf2):
    seq = [(s, t) for s in steps for t in range(5)]
    n = len(seq)
    for i in range(min(NB, n)):
        k.e(*rd2(seq[i][1], seq[i][0], i % NB))
    for i, (s, t) in enumerate(seq):
        issued = min(n, NB + max(0, i - 1))
        k.e(f"s_waitcnt lgkmcnt({2*(issued - 1 - i)})")
        m = mf2(t, s, i % NB)
        j = i - 1 + NB
        r = rd2(seq[j][1], seq[j][0], (i - 1) % NB) if (i >= 1 and j < n) else ["", ""]
        k.e(m[0], r[0], m[1], r[1])


def helper_pack(k):
    k.e("; ==== helper waves 8..11: K/V image -> LDS, re-pack W1/W2 slice into MFMA fragment order (+ column sums of W1)")
    def dma(a, b):
        kv_dma(k, a, b)
    k.e("s_waitcnt vmcnt(0)")
    lds_signal(k, LDS_IM0)
    lds_wait(k, LDS_WDN, 4, "wdn")
    dma(7, 37)
    k.e("s_cmp_lg_u32 s31, 0", "s_cbranch_scc1 mega_h_nolast")
    k.e(ex(0xffff))
    dma(37, 38)
    k.e(ex(-1))
    k.label("mega_h_nolast")
    k.e("s_lshl_b32 s34, s31, 6", "v_add_u32 v12, s34, v1", "v_min_u32 v12, 161, v12", "v_lshlrev_b32 v12, 7, v12",
        "s_mul_i32 s34, s47, 20736")
    k.e("s_lshl_b32 s50, s31, 5", "s_add_u32 s50, s50, s47",
        "s_cmp_ge_u32 s50, 54", "s_cselect_b32 s53, 1, 0",
        "s_mul_i32 s51, s53, 54", "s_sub_u32 s51, s50, s51",
        "s_mul_i32 s54, s51, 57", "s_lshr_b32 s54, s54, 10",
        "s_mul_i32 s52, s54, 18", "s_sub_u32 s52, s51, s52",
        "s_cmp_eq_u32 s53, 0",
        "s_cselect_b32 s20, s4, s6", "s_cselect_b32 s21, s5, s7", f"s_mov_b32 s22, {hex(W1B)}", "s_mov_b32 s23, 0x00020000",
        "s_movk_i32 s56, 1152", "s_cselect_b32 s56, 9216, s56",
        "s_movk_i32 s57, 1152", "s_cselect_b32 s57, s57, 663552", "s_mul_i32 s57, s57, s46",
        "s_mul_i32 s58, s54, 192", "s_mul_i32 s58, s58, s56", "s_add_u32 s57, s57, s58",
        "s_lshl_b32 s58, s52, 6", "s_add_u32 s57, s57, s58")
    k.e("s_add_u32 s58, s53, s54", "s_cmp_eq_u32 s58, 3", "s_cselect_b32 s58, 2, 1", "s_cselect_b32 s59, -5, 1",
        "s_mul_i32 s58, s58, s56", "s_mul_i32 s59, s59, s56", "s_mul_i32 s60, s56, 25")
    k.e("v_lshrrev_b32 v2, 4, v1", "v_lshlrev_b32 v2, 3, v2", "v_mul_u32_u24 v15, s56, v2", "v_and_b32 v3, 15, v1",
        "v_lshl_add_u32 v15, v3, 2, v15", "v_lshlrev_b32 v8, 2, v3",
        "s_mov_b32 s64, 0x05040100", "s_mov_b32 s65, 0x07060302")
    k.e(f"s_mul_i32 s62, s52, {STREAM}", f"s_mul_i32 s63, s52, {2*STREAM}", f"s_sub_u32 s63, s63, {24*STREAM - 2048}",
        "s_cmp_lt_u32 s52, 12", "s_cselect_b32 s62, s62, s63", "s_movk_i32 s61, 1024", f"s_cselect_b32 s61, s61, {STREAM}",
        "s_mul_i32 s63, s53, 3", "s_add_u32 s63, s63, s54", f"s_mul_i32 s63, s63, {6*3072}", "s_add_u32 s62, s62, s63",
        f"s_mul_i32 s63, s46, {1296*1024}", "s_add_u32 s62, s62, s63", f"s_add_u32 s62, s62, {WS_W}",
        "s_add_u32 s61, s61, s62")
    for i in range(4):
        k.e(f"v_mov_b32 v{PS+8+i}, 0x3f803f80")
    k.e("s_waitcnt vmcnt(0)")
    lds_signal(k, LDS_IMG, va=9, vb=10)
    stp(k, 3)
    k.e("buffer_load_dword v13, v12, s[24:27], s34 offen", ("buffer_load_dword v13, v12, s[24:27], s34 offen offset:64" if os.environ.get("PF64") else ""))
    k.e("s_cmp_ge_u32 s50, 108", "s_cbranch_scc1 mega_h_nounit")
    for ss in range(6):
        for jj in range(8):
            k.e(f"buffer_load_dword v{PIN+8*ss+jj}, v15, s[20:23], s57 offen {os.environ.get('PKL', '')}",
                f"s_add_u32 s57, s57, s{60 if jj == 7 else (59 if jj == 3 else 58)}")
    stp(k, 4)
    for ss in range(6):
        k.e(f"s_waitcnt vmcnt({40 - 8*ss + 2*ss})")
        if ss in (0, 5):
            stp(k, 5 if ss == 0 else 6)
        for e in range(2):
            for q in range(4):
                k.e(f"v_perm_b32 v{POUT+8*ss+4*e+q}, v{PIN+8*ss+2*q+1}, v{PIN+8*ss+2*q}, s{64+e}")
            k.e(f"buffer_store_dwordx4 {r4(POUT+8*ss+4*e)}, v11, s[16:19], s{62-e} offen sc1", f"s_add_u32 s{62-e}, s{62-e}, 3072")
    stp(k, 7)
    k.e("s_cmp_lg_u32 s53, 0", "s_cbranch_scc1 mega_h_nounit")
    for ss in range(6):
        for e in range(2):
            k.e(f"v_mfma_f32_16x16x32_bf16 {r4(PS+4*e)}, {r4(PS+8)}, {r4(POUT+8*ss+4*e)}, {r4(PS+4*e) if ss else 0}")
    k.e("s_mul_i32 s58, s54, 18432", "s_mul_i32 s59, s46, 2304", "s_add_u32 s58, s58, s59", "s_lshl_b32 s59, s52, 7",
        "s_add_u32 s58, s58, s59", f"s_add_u32 s58, s58, {WS_SP}")
    k.e(ex(0xffff), f"buffer_store_dword v{PS}, v8, s[16:19], s58 offen sc1",
        f"buffer_store_dword v{PS+4}, v8, s[16:19], s58 offen offset:64 sc1", ex(-1))
    k.label("mega_h_nounit")
    k.e("s_waitcnt vmcnt(0)", "s_lshl_b32 s34, s46, 9", f"s_add_u32 s36, s34, {FP}", "s_lshr_b32 s35, s47, 3", "s_lshl_b32 s35, s35, 7",
        "s_add_u32 s34, s36, s35", "s_lshl_b32 s35, s29, 3", "s_add_u32 s34, s34, s35")
    k.stamp(2)
    arrive(k, 0, 4, 34, "p")
    k.e("s_cmp_lg_u32 s31, 3", "s_cbranch_scc1 mega_h_nofp")
    lds_wait(k, LDS_QRD, 2, "qa")
    lds_wait(k, LDS_QRD + 4, 2, "qb")
    k.e("v_bfe_u32 v12, v1, 3, 2", "v_lshlrev_b32 v12, 7, v12", "v_and_b32 v13, 7, v1", "v_lshl_add_u32 v12, v13, 3, v12")
    poll(k, 12, 36, 14, "p", sleep=16)
    k.e("v_add_u32 v13, 128, v1", "v_min_u32 v13, 143, v13", "v_lshlrev_b32 v13, 4, v13",
        "s_mul_i32 s34, s46, 2304", f"s_add_u32 s34, s34, {WS_SP}")
    for i in range(3):
        k.e(f"buffer_load_dwordx4 {r4(PIN+12*i)}, v11, s[16:19], s34 offen sc1", f"buffer_load_dwordx4 {r4(PIN+12*i+4)}, v11, s[16:19], s34 offen offset:1024 sc1",
            f"buffer_load_dwordx4 {r4(PIN+12*i+8)}, v13, s[16:19], s34 offen sc1", "s_add_u32 s34, s34, 18432")
    k.e(f"v_mov_b32 v14, {LDS_RDY}", "v_mov_b32 v15, 1", "ds_write_b32 v14, v15")
    k.e("v_lshlrev_b32 v14, 7, v1", "v_and_b32 v15, 3, v1", "v_lshlrev_b32 v15, 7, v15",
        f"s_mul_i32 s34, s46, {1296*1024}", "s_mul_i32 s35, s47, 41472", "s_add_u32 s34, s34, s35", f"s_add_u32 s34, s34, {WS_W}")
    for i in range(6):
        if os.environ.get("PF64"):
            k.e(f"buffer_load_dword v{POUT+i}, v{14 if i < 5 else 15}, s[16:19], s34 offen offset:64 sc1")
        k.e(f"buffer_load_dword v{POUT+i}, v{14 if i < 5 else 15}, s[16:19], s34 offen sc1", "s_add_u32 s34, s34, 8192")
    k.e(f"v_add_u32 v12, {LDS_S}, v11", f"v_add_u32 v13, {LDS_S}, v13", "s_waitcnt vmcnt(6)")
    for i in range(1, 3):
        for c in range(12):
            k.e(f"v_add_f32 v{PIN+c}, v{PIN+c}, v{PIN+12*i+c}")
    k.e(f"ds_write_b128 v12, {r4(PIN)}", f"ds_write_b128 v12, {r4(PIN+4)} offset:1024", f"ds_write_b128 v13, {r4(PIN+8)}",
        "s_waitcnt lgkmcnt(0)")
    k.label("mega_h_nofp")


def wo_dma(k, tag):
    k.e("s_mul_i32 s32, s29, 144", "s_lshl_b32 s42, s29, 1", "s_add_u32 s42, s42, s31",
        "s_mul_i32 s43, s31, 5120", f"s_add_u32 s43, s43, {LDS_WO}")

    k.e("s_cmp_eq_u32 s31, 3", f"s_cbranch_scc1 mega_o_skip{tag}")
    for grp in range(6):
        k.e("s_sub_u32 s36, s42, 18", "s_min_u32 s42, s42, s36", "s_mul_i32 s36, s42, 36864", "s_add_u32 s36, s36, s32")
        for i in range(5):
            k.e(f"s_add_u32 m0, s43, {grp*3*5120 + i*1024}", "s_nop 0", f"buffer_load_dwordx4 v{16+i}, s[24:27], s36 offen lds")
        k.e("s_add_u32 s42, s42, 3")
    k.label(f"mega_o_skip{tag}")
    srd(k, 56, 10, XB)
    k.e("s_add_u32 s35, s49, s32")
    for i in range(3):
        if i == 2:
            k.e(ex(0xffffffff))
        k.e(f"s_add_u32 m0, s44, {i*1024}", "s_nop 0", f"buffer_load_dwordx4 v{16+i}, s[56:59], s35 offen lds")
    k.e(ex(-1), "s_waitcnt vmcnt(0)")
    for t in range(5):
        k.e(f"ds_read_b64 v[{36+2*t}:{37+2*t}], v21 offset:{32*t}")
    k.e("s_cmp_eq_u32 s31, 3", f"s_cbranch_scc1 mega_c_skip{tag}")
    k.e("v_add_u32 v32, s43, v28", "v_add_u32 v33, s43, v29", "v_add_u32 v34, s43, v11", "s_mov_b32 s36, 6")
    k.label(f"mega_conv{tag}")
    for t in range(5):
        k.e(f"ds_read_b64_tr_b16 v[{OWF+4*t}:{OWF+4*t+1}], v32 offset:{32*t}", f"ds_read_b64_tr_b16 v[{OWF+4*t+2}:{OWF+4*t+3}], v33 offset:{32*t}")
    k.e("v_add_u32 v32, 15360, v32", "v_add_u32 v33, 15360, v33", "s_waitcnt lgkmcnt(0)")
    for t in range(5):
        k.e(f"ds_write_b128 v34, {r4(OWF+4*t)} offset:{1024*t}")
    k.e("v_add_u32 v34, 15360, v34", "s_sub_u32 s36, s36, 1", "s_cmp_lg_u32 s36, 0", f"s_cbranch_scc1 mega_conv{tag}")
    k.label(f"mega_c_skip{tag}")
    k.e("s_waitcnt lgkmcnt(0)")
    for t in range(5):
        a = OACC + 4 * t
        k.e(f"v_lshlrev_b32 v{a}, 16, v{36+2*t}", f"v_and_b32 v{a+1}, 0xffff0000, v{36+2*t}",
            f"v_lshlrev_b32 v{a+2}, 16, v{37+2*t}", f"v_and_b32 v{a+3}, 0xffff0000, v{37+2*t}")


def oproj(k):
    k.e("; ==== output projection + residual + LayerNorm-2 partial statistics (helper waves)")
    k.e("v_and_b32 v2, 15, v1", "v_lshrrev_b32 v3, 4, v1")
    k.e("v_lshrrev_b32 v32, 2, v2",
        "v_and_b32 v33, 1, v3", "v_lshlrev_b32 v33, 2, v33", "v_add_u32 v32, v32, v33",
        "v_lshl_add_u32 v32, v3, 3, v32", "v_xor_b32 v33, 4, v32", "s_movk_i32 s40, 160",
        "v_and_b32 v34, 3, v2", "v_lshlrev_b32 v34, 3, v34", f"v_add_u32 v34, {LDS_WO}, v34",
        "v_mad_u32_u24 v28, v32, s40, v34", "v_mad_u32_u24 v29, v33, s40, v34",
        "v_add_u32 v30, 61440, v11")
    k.e("s_mul_i32 s44, s31, 2560", f"s_add_u32 s44, s44, {LDS_RES}",
        "v_and_b32 v21, 8, v2", "v_lshrrev_b32 v21, 1, v21", "v_xor_b32 v21, v21, v2", "v_mul_u32_u24 v21, s40, v21",
        "v_lshl_add_u32 v21, v3, 3, v21", "v_add_u32 v21, s44, v21")
    k.e("v_and_b32 v22, 1, v3", "v_lshlrev_b32 v22, 9, v22", "v_lshrrev_b32 v32, 1, v3", "v_lshl_add_u32 v22, v32, 8, v22",
        "v_lshl_add_u32 v22, v2, 4, v22")
    k.e("v_and_b32 v23, 7, v1", "v_lshlrev_b32 v23, 3, v23")
    k.e("s_lshl_b32 s48, s28, 2", "s_add_u32 s48, s48, s31", "s_mul_i32 s49, s48, 18432")
    k.e(f"s_mul_i32 s68, s28, {RX}", "s_add_u32 s68, s68, s49", f"s_add_u32 s34, s68, {WS_O}", "v_add_u32 v24, s34, v11", "s_lshl_b32 s51, s29, 11")
    k.e(f"v_mov_b32 v12, {LDS_REL}", f"s_mov_b32 s3, {SPIN*8}")
    k.label("mega_rel")
    k.e("ds_read_b32 v13, v12", "s_waitcnt lgkmcnt(0)", "v_readfirstlane_b32 s50, v13", "s_and_b32 s39, s50, 0xff", "s_cmp_ge_u32 s39, 8",
        "s_cbranch_scc1 mega_reld", "s_sleep 4", "s_sub_u32 s3, s3, 1", "s_cbranch_scc0 mega_rel")
    k.label("mega_reld")
    k.e("s_cmp_lg_u32 s50, 8", "s_cbranch_scc1 mega_noearly")
    wo_dma(k, "a")
    k.label("mega_noearly")
    stp(k, 8)
    k.e("s_waitcnt lgkmcnt(0)", "s_barrier")
    stb(k, 3)
    publish_o(k, "ob")
    k.e("s_cmp_eq_u32 s50, 8", "s_cbranch_scc1 mega_nolate")
    wo_dma(k, "b")
    k.label("mega_nolate")
    k.e("s_lshl_b32 s34, s28, 7", f"s_add_u32 s34, s34, {F1}")
    k.e("s_cmp_lg_u32 s31, 0", "s_cbranch_scc1 mega_polld_o")
    lds_wait(k, LDS_CNT + 4, 12, "owno")
    poll(k, 23, 34, 32, "o", sleep=int(os.environ.get("OSP", "2")))
    lds_signal(k, LDS_ORD)
    lds_wait(k, LDS_ORD, 4, "ord")
    stb(k, 4)
    for s in range(18):
        k.e(f"buffer_load_dwordx4 v[{OX0+4*s}:{OX0+4*s+3}], v24, s[16:19], s51 offen sc1",
            "s_add_u32 s51, s51, 1024", "s_cmp_eq_u32 s51, 18432", "s_cselect_b32 s51, 0, s51")

    seq = [(s, t) for s in range(18) for t in range(5)]

    def rd(i):
        s, t = seq[i]
        off = (s if s < 12 else s - 12) * 5120 + 1024 * t
        k.e(f"ds_read_b128 {r4(OWF+4*(i%NB))}, v{11 if s < 12 else 30} offset:{off}")
    for i in range(NB):
        rd(i)
    ring_srd(k)
    for i, (s, t) in enumerate(seq):
        k.e(f"s_waitcnt lgkmcnt({min(NB-1, 89-i)})" + (f" vmcnt({17 - s + 3*(s//3)})" if t == 0 else ""))
        a = r4(OACC + 4 * t)
        k.e(f"v_mfma_f32_16x16x32_bf16 {a}, {r4(OWF+4*(i%NB))}, {r4(OX0+4*s)}, {a}")
        if i + NB < 90:
            rd(i + NB)
        if t == 4 and s % 3 == 2:
            st = (s // 3 + 5) % 6
            k.e(f"s_movk_i32 s53, {st*T*1024}")
            for tt in range(T):
                k.e(wload(st, tt))
    sto(k, 1)
    k.e("v_mov_b32 v6, 0", "v_mov_b32 v7, 0", "v_mov_b32 v34, 0x3f803f80",
        "s_mul_i32 s35, s29, 2304", "s_add_u32 s35, s35, s68", f"s_add_u32 s35, s35, {WS_H}")
    for t in range(5):
        a = OACC + 4 * t
        d = OWF + 2 * t
        k.e(f"v_cvt_pk_bf16_f32 v{d}, v{a}, v{a+1}", f"v_cvt_pk_bf16_f32 v{d+1}, v{a+2}, v{a+3}")
        if t == 4:
            k.e(ex(0xffffffff))
        k.e(f"v_dot2c_f32_bf16 v6, v{d}, v34", f"v_dot2c_f32_bf16 v7, v{d}, v{d}",
            f"v_dot2c_f32_bf16 v6, v{d+1}, v34", f"v_dot2c_f32_bf16 v7, v{d+1}, v{d+1}")
        if t == 4:
            k.e(ex(-1))
        if t % 2 == 1 or t == 4:
            b = OWF + 4 * (t // 2)
            k.e(f"v_permlane16_swap_b32 v{b}, v{b+2}", f"v_permlane16_swap_b32 v{b+1}, v{b+3}")
            if t == 4:
                k.e(ex(0xffff))
            k.e(f"buffer_store_dwordx4 {r4(b)}, v22, s[16:19], s35 offen offset:{1024*(t//2)} sc1")
            if t == 4:
                k.e(ex(-1))
    reduce_g_add(k, [6, 7], [32, 33])
    k.e("v_lshlrev_b32 v32, 4, v2", "s_lshl_b32 s35, s48, 10", "s_lshr_b32 s34, s29, 1", "s_lshl_b32 s34, s34, 8",
        "s_add_u32 s35, s35, s34", "s_and_b32 s34, s29, 1", "s_lshl_b32 s34, s34, 3", "s_add_u32 s35, s35, s34",
        f"s_add_u32 s35, s35, {WS_ST}", f"s_mul_i32 s34, s28, {RST}", "s_add_u32 s35, s35, s34", ex(0xffff))
    k.e("buffer_store_dwordx2 v[6:7], v32, s[16:19], s35 offen sc1", ex(-1))
    sto(k, 2)
    k.e("s_lshl_b32 s34, s28, 7", "s_lshl_b32 s35, s29, 3", "s_add_u32 s34, s34, s35", f"s_add_u32 s34, s34, {F2}", "s_waitcnt vmcnt(0)")
    sto(k, 7)
    arrive(k, 2, 4, 34, "h")


def acc(t, mb):
    return ACC + (t * 4 + mb) * 4


def wreg(slot, t):
    return WR + ((slot + 1) % 6) * 12 + t * 4


def wload(slot, t):
    return f"buffer_load_dwordx4 {r4(wreg(slot, t))}, v11, s[20:23], s53 offen offset:{1024*t} {WAUX}"


def ring_srd(k):
    k.e(f"s_mul_i32 s34, s30, {STREAM}", f"s_mul_i32 s35, s46, {1296*1024}", "s_add_u32 s34, s34, s35", f"s_add_u32 s34, s34, {WS_W}",
        "s_add_u32 s20, s12, s34", "s_addc_u32 s21, s13, 0", f"s_mov_b32 s22, {STREAM}", "s_mov_b32 s23, 0x00020000")


def ffn_ring_start(k, n=D - 1):
    ring_srd(k)
    k.e("s_mov_b32 s53, 0")
    for st in range(n):
        for t in range(T):
            k.e(wload(st, t))
        k.e(f"s_add_u32 s53, s53, {T*1024}")


def ffn(k):
    k.label("ffn_join")
    k.e("s_setprio 0", "v_and_b32 v2, 15, v1", "v_lshrrev_b32 v3, 4, v1")
    k.e("s_lshl_b32 s34, s47, 2", "s_and_b32 s35, s30, 3", "s_add_u32 s34, s34, s35", "s_mul_i32 s41, s34, 18432",
        "s_lshr_b32 s35, s30, 2", "s_lshl_b32 s35, s35, 10", "s_add_u32 s41, s41, s35", f"s_add_u32 s41, s41, {WS_H}", f"s_mul_i32 s35, s47, {RX}", "s_add_u32 s41, s41, s35",
        "s_lshl_b32 s42, s30, 10")
    k.e("s_lshl_b32 s34, s30, 7", f"s_add_u32 s34, s34, {LDS_S}", "v_lshlrev_b32 v13, 4, v3", "v_add_u32 v12, s34, v13",
        "s_lshl_b32 s34, s30, 6", f"s_add_u32 s34, s34, {LDS_S + 1536}", "v_add_u32 v13, s34, v13",
        f"ds_read_b128 {r4(XB0+16)}, v12", f"ds_read_b128 {r4(XB0+20)}, v12 offset:64", f"ds_read_b128 {r4(XB0+24)}, v13")
    k.e("v_lshlrev_b32 v9, 2, v2", f"v_add_u32 v9, {LDS_MU}, v9", "s_and_b32 s34, s46, 3", "s_lshl_b32 s34, s34, 6", "v_add_u32 v10, s34, v9")
    k.e(f"s_movk_i32 s53, {D*T*1024}")
    k.e("s_cmp_lg_u32 s30, 0", "s_cbranch_scc1 ffn_g")
    k.e("v_and_b32 v12, 7, v1", "v_lshlrev_b32 v12, 3, v12", "s_lshl_b32 s34, s47, 7", f"s_add_u32 s34, s34, {F2}",
        "v_lshlrev_b32 v8, 10, v3", "v_lshl_add_u32 v8, v2, 4, v8", f"s_mul_i32 s35, s47, {RST + 4096}", f"s_add_u32 s35, s35, {WS_ST}")
    lds_wait(k, LDS_CNT + 8, 4, "own", va=14, vb=15, sleep=2)
    poll(k, 12, 34, 14, "h", sleep=int(os.environ.get("HSP", "3")))
    for p in range(4):
        k.e(f"buffer_load_dwordx4 {r4(XB0+4*p)}, v8, s[16:19], s35 offen offset:{256*p} sc1")
    k.label("ffn_g")
    k.e("s_barrier")
    stb(k, 5)
    NF = int(os.environ.get("NF", "2"))
    for i in range(NF):
        k.e(f"s_add_u32 m0, s42, {i*12288}", f"s_add_u32 s36, s41, {i*3072}", f"buffer_load_dwordx4 v11, s[16:19], s36 offen {os.environ.get('HNT', '')} sc1 lds")
    k.e("s_cmp_lg_u32 s30, 0", "s_cbranch_scc1 ffn_st")
    k.e(f"s_waitcnt vmcnt({NF})")
    for p in range(1, 4):
        for c in range(4):
            k.e(f"v_add_f32 v{XB0+c}, v{XB0+c}, v{XB0+4*p+c}")
    k.e(f"v_add_f32 v4, v{XB0}, v{XB0+2}", f"v_add_f32 v5, v{XB0+1}, v{XB0+3}",
        f"v_mul_f32 v4, {hex(f2u(-1/576))}, v4", f"v_mul_f32 v5, {hex(f2u(1/576))}, v5", "v_fma_f32 v5, -v4, v4, v5", "v_max_f32 v5, 0, v5",
        f"v_add_f32 v5, {hex(f2u(1e-5))}, v5", "v_rsq_f32 v5, v5", "v_lshlrev_b32 v6, 2, v1", f"v_add_u32 v6, {LDS_MU}, v6",
        "ds_write_b32 v6, v4", "ds_write_b32 v6, v5 offset:256")
    lds_signal(k, LDS_MUS)
    k.label("ffn_st")
    lds_wait(k, LDS_MUS, 1, "mus")
    for i in range(NF, 4):
        k.e(f"s_add_u32 m0, s42, {i*12288}", f"s_add_u32 s36, s41, {i*3072}", f"buffer_load_dwordx4 v11, s[16:19], s36 offen {os.environ.get('HNT', '')} sc1 lds")
    sto(k, 8)
    for mb in range(4):
        k.e(f"ds_read_b32 v{4+mb}, v9 offset:{64*mb}")
    k.e("ds_read_b32 v8, v10 offset:256", "s_waitcnt lgkmcnt(0)")
    for t in range(T):
        for mb in range(4):
            for i in range(4):
                k.e(f"v_mul_f32 v{acc(t,mb)+i}, v{4+mb}, v{XB0+16+4*t+i}")
    k.e("s_add_u32 s41, s41, 12288", "s_add_u32 s42, s42, 49152")
    k.e("s_waitcnt vmcnt(3)", "s_barrier")
    stb(k, 6)
    if os.environ.get("PF2") == "2":
        k.e("v_min_u32 v0, 13, v1", "v_lshlrev_b32 v0, 7, v0", "s_mul_i32 s36, s47, 1728", "s_and_b32 s36, s36, 0xffffff80", f"s_add_u32 s36, s36, {18*T*1024}",
            "buffer_load_dword v0, v0, s[20:23], s36 offen sc1")
    k.e("v_mov_b32 v10, v11", "s_mov_b32 s31, 0")

    def step(u, loads=True):
        xb = XB0 + 16 * (u % 2)
        xn = XB0 + 16 * ((u + 1) % 2)
        fill = [f"ds_read_b128 {r4(xn+4*mb)}, v10 offset:{(u+1)*4096 + 1024*mb}" for mb in range(4)]
        if loads:
            fill += [wload((u + D - 1) % D, t) for t in range(T)]
            fill += [f"s_add_u32 s53, s53, {T*1024}"]
        order = [(t, mb) for t in range(T) for mb in range(4)]
        if os.environ.get("ORD") == "snake":
            order = [(t, mb if t % 2 == 0 else 3 - mb) for t in range(T) for mb in range(4)]
        if os.environ.get("ORD") == "mb":
            order = [(t if mb % 2 == 0 else T - 1 - t, mb) for mb in range(4) for t in range(T)]
        for t, mb in order:
            a = r4(acc(t, mb))
            k.e(f"v_mfma_f32_16x16x32_bf16 {a}, {r4(wreg(u, t))}, {r4(xb+4*mb)}, {a}")
            if fill:
                k.e(fill.pop(0))
    for mb in range(4):
        k.e(f"ds_read_b128 {r4(XB0+4*mb)}, v10 offset:{1024*mb}")
    k.e("s_waitcnt lgkmcnt(0)")
    step(0, loads=False)
    k.e("s_branch ffn_u1")
    k.label("ffn_start")
    for mb in range(4):
        k.e(f"ds_read_b128 {r4(XB0+4*mb)}, v10 offset:{1024*mb}")
    k.e(".p2align 6")
    k.label("ffn_loop")
    k.e("s_cmp_lg_u32 s31, 1", "s_cbranch_scc1 ffn_nodma")
    for i in range(2):
        k.e(f"s_add_u32 m0, s42, {i*12288}", f"s_add_u32 s36, s41, {i*3072}", f"buffer_load_dwordx4 v11, s[16:19], s36 offen {os.environ.get('HNT', '')} sc1 lds")
    if os.environ.get("PF2", "1") == "1":
        k.e("v_min_u32 v0, 13, v1", "v_lshlrev_b32 v0, 7, v0", "s_mul_i32 s36, s47, 1728", "s_and_b32 s36, s36, 0xffffff80", f"s_add_u32 s36, s36, {18*T*1024}",
            ("buffer_load_dword v15, v0, s[20:23], s36 offen offset:64 sc1" if os.environ.get("PF64") else ""),
            "buffer_load_dword v0, v0, s[20:23], s36 offen sc1")
    k.label("ffn_nodma")
    for u in range(D):
        if u == 1:
            k.label("ffn_u1")
        k.e(f"s_waitcnt vmcnt({4*T}) lgkmcnt(0)")
        if u == D - 1:
            k.e("s_cmp_ge_u32 s31, 2", "s_cbranch_scc1 ffn_nobar", "s_barrier")
            k.label("ffn_nobar")
        if u == 2:
            k.e("s_cmp_lg_u32 s31, 0", "s_cbranch_scc1 ffn_nobar2", "s_waitcnt vmcnt(5)", "s_barrier")
            k.label("ffn_nobar2")
        step(u)
    k.e(f"v_add_u32 v10, {D*4096}, v10", "s_add_u32 s31, s31, 1",
        "s_cmp_eq_u32 s31, 3", "s_cbranch_scc1 ffn_ep1",
        "s_cmp_lt_u32 s31, 6", "s_cbranch_scc1 ffn_loop")
    stb(k, 8)
    k.e("s_waitcnt lgkmcnt(0)")
    k.e(f"s_mul_i32 s34, s46, {PSX}", f"s_mul_i32 s33, s47, {PSY}", f"s_add_u32 s33, s33, {WS_P}", "s_add_u32 s34, s34, s33",
        "s_lshl_b32 s35, s30, 10", "s_add_u32 s36, s34, s35",
        "s_cmp_ge_u32 s30, 6", "s_movk_i32 s37, 12288", f"s_cselect_b32 s37, {12288 + 18432 - 6144}, s37", "s_add_u32 s37, s37, s36")
    for mb in range(4):
        d = XB0 + 4 * mb
        a, b = acc(0, mb), acc(1, mb)
        for i in range(4):
            k.e(f"v_cvt_pk_bf16_f32 v{d+i}, v{a+i}, v{b+i}")
        k.e(f"buffer_store_dwordx4 {r4(d)}, v11, s[16:19], s36 offen sc1", "s_add_u32 s36, s36, 18432")
    for h in range(2):
        d = XB0 + 16 + 4 * h
        a, b = acc(2, 2 * h), acc(2, 2 * h + 1)
        k.e(f"v_cvt_pk_bf16_f32 v{d}, v{a}, v{a+1}", f"v_cvt_pk_bf16_f32 v{d+1}, v{a+2}, v{a+3}",
            f"v_cvt_pk_bf16_f32 v{d+2}, v{b}, v{b+1}", f"v_cvt_pk_bf16_f32 v{d+3}, v{b+2}, v{b+3}")
        k.e(f"buffer_store_dwordx4 {r4(d)}, v11, s[16:19], s37 offen sc1", "s_add_u32 s37, s37, 36864")
    stt(k, 3)
    k.e("s_lshl_b32 s38, s47, 9", f"s_add_u32 s38, s38, {F3}", "s_lshr_b32 s36, s30, 2", "s_lshl_b32 s35, s36, 7", "s_add_u32 s38, s38, s35",
        "s_lshl_b32 s35, s46, 3", "s_add_u32 s34, s38, s35",
        "s_lshl_b32 s44, s36, 2", f"s_add_u32 s44, s44, {LDS_CNT + 12}", "s_waitcnt vmcnt(0)")
    stt(k, 4)
    stt(k, 5)
    stt(k, 6)
    arrive(k, 0, 4, 34, "r", cnt_sgpr=44)
    k.e("s_add_u32 s44, s44, 12", "v_mov_b32 v10, s44")
    k.e("s_and_b32 s35, s30, 3", "s_cmp_lg_u32 s35, 3", "s_cbranch_scc1 mega_red")
    if os.environ.get("DEFER", "1") == "1":
        if os.environ.get("DEF0", "1") == "1":
            k.e("s_cmp_eq_u32 s30, 3", f"s_mov_b32 s35, {LDS_CNT + 20}", f"s_cselect_b32 s35, {LDS_CNT + 16}, s35")
            lds_wait(k, "s35", 4, "t2", sleep=4)
        else:
            lds_wait(k, LDS_CNT + 20, 4, "t2", sleep=4)
    k.e("v_and_b32 v12, 7, v1", "v_lshlrev_b32 v12, 3, v12")
    poll(k, 12, 38, 14, "r", sleep=int(os.environ.get("RSP", "3")))
    k.e("v_mov_b32 v13, 1", "ds_write_b32 v10, v13", "s_waitcnt lgkmcnt(0)", "s_branch mega_fin")
    k.label("mega_red")
    k.e(
        "s_lshl_b32 s37, s36, 2", "s_lshl_b32 s39, s35, 1", "s_add_u32 s37, s37, s39",
        "s_lshl_b32 s39, s36, 1", "s_add_u32 s39, s39, 12", "s_cmp_eq_u32 s35, 2", "s_cselect_b32 s37, s39, s37",
        "s_lshr_b32 s39, s46, 2", "s_add_u32 s37, s37, s39",
        "s_and_b32 s39, s46, 3",
        "s_mul_i32 s34, s39, 18432", "s_lshl_b32 s41, s37, 10", "s_add_u32 s34, s34, s41")
    k.e("s_sub_u32 s41, s37, 12", "s_lshl_b32 s41, s41, 11", "s_cmp_ge_u32 s37, 15", "s_movk_i32 s42, 12288",
        f"s_cselect_b32 s42, {12288 + 18432 - 6144}, s42", "s_add_u32 s41, s41, s42", "s_lshr_b32 s42, s39, 1", "s_mul_i32 s42, s42, 36864",
        "s_add_u32 s41, s41, s42", "s_and_b32 s42, s39, 1", "s_lshl_b32 s42, s42, 3", "s_add_u32 s41, s41, s42",
        "s_mov_b32 s43, s35", "s_cmp_eq_u32 s35, 2", "s_cselect_b32 s34, s41, s34", "s_cselect_b32 s42, 1024, 8",
        "s_add_u32 s33, s33, s34", "s_add_u32 s42, s42, s33")
    k.e("s_lshl_b32 s35, s37, 2", "s_add_u32 s35, s35, s39", "s_lshl_b32 s35, s35, 10", "v_add_u32 v13, s35, v11",
        f"ds_read_b128 {r4(WR+32)}, v13")
    srd(k, 20, 14, XB)
    k.e("s_lshl_b32 s35, s47, 2", "s_add_u32 s35, s35, s39", "s_mul_i32 s35, s35, 18432", "s_lshl_b32 s37, s37, 6",
        "s_add_u32 s37, s37, s35", "s_movk_i32 s35, 1152", "v_mul_u32_u24 v9, s35, v2", "v_lshl_add_u32 v9, v3, 4, v9")
    k.e("v_mov_b32 v5, 0x00003f80", "v_mov_b32 v6, 0x3f800000")
    for i in range(8):
        k.e(f"v_mov_b32 v{ACC+i}, 0")
    k.e(f"s_mov_b32 s3, {SPIN*8}")
    k.label("mega_lspin")
    k.e("ds_read_b32 v14, v10", "s_waitcnt lgkmcnt(0)", "v_readfirstlane_b32 s38, v14", "s_cmp_lg_u32 s38, 0", "s_cbranch_scc1 mega_lspind",
        "s_sleep 2", "s_sub_u32 s3, s3, 1", "s_cbranch_scc0 mega_lspin")
    k.label("mega_lspind")
    stt(k, 5)
    k.e("s_cmp_eq_u32 s43, 2", "s_cbranch_scc1 mega_ld_s")
    for j in range(8):
        k.e(f"buffer_load_dwordx4 {r4(WR+4*j)}, v11, s[16:19], s33 offen sc1", f"s_add_u32 s33, s33, {PSX}")
    k.e("s_branch mega_ld_o")
    k.label("mega_ld_s")
    for j in range(8):
        k.e(f"buffer_load_dwordx2 v[{WR+4*j}:{WR+4*j+1}], v11, s[16:19], s33 offen sc1", f"s_add_u32 s33, s33, {PSX}")
    for j in range(8):
        k.e(f"buffer_load_dwordx2 v[{WR+4*j+2}:{WR+4*j+3}], v11, s[16:19], s42 offen sc1", f"s_add_u32 s42, s42, {PSX}")
    k.label("mega_ld_o")
    k.e("s_waitcnt lgkmcnt(0)")
    for i in range(4):
        k.e(f"v_lshlrev_b32 v{ACC+8+2*i}, 16, v{WR+32+i}", f"v_and_b32 v{ACC+9+2*i}, 0xffff0000, v{WR+32+i}")
    for j in range(8):
        k.e(f"s_waitcnt vmcnt({7-j})")
        for i in range(4):
            k.e(f"v_dot2c_f32_bf16 v{ACC+2*i}, v{WR+4*j+i}, v5", f"v_dot2c_f32_bf16 v{ACC+2*i+1}, v{WR+4*j+i}, v6")
    stt(k, 6)
    k.e("s_cmp_eq_u32 s43, 2", "s_cbranch_scc1 mega_red_s")
    for i in range(8):
        k.e(f"v_fma_f32 v{ACC+8+i}, v{ACC+i}, v8, v{ACC+8+i}")
    k.e("s_branch mega_red_o")
    k.label("mega_red_s")
    for i in range(8):
        k.e(f"v_fma_f32 v{ACC+8+i}, v{ACC+(i//2)+4*(i%2)}, v8, v{ACC+8+i}")
    k.label("mega_red_o")
    for i in range(4):
        k.e(f"v_cvt_pk_bf16_f32 v{XB0+i}, v{ACC+8+2*i}, v{ACC+9+2*i}")
    k.e(f"buffer_store_dwordx4 {r4(XB0)}, v9, s[20:23], s37 offen")
    k.label("mega_fin")
    k.stamp_flush(1, 10, 16, 30, wpw=16)
    if os.environ.get("DBGOUT"):
        k.e("s_cmp_lg_u32 s2, 5", "s_cbranch_scc1 mega_end", "s_cmp_lg_u32 s30, 8", "s_cbranch_scc1 mega_end",
            "s_load_dwordx2 s[4:5], s[0:1], 72", "s_waitcnt lgkmcnt(0)", "s_nop 0")
        srd(k, 20, 4, 256)
        for i in range(1, 9):
            k.e(f"s_sub_u32 s34, s{81+2*i}, s81", "v_mov_b32 v4, s34", f"buffer_store_dword v4, v0, s[20:23], 0 offen offset:{4*i-4}",
                f"s_sub_u32 s34, s{80+2*i}, s80", "v_mov_b32 v5, s34", f"buffer_store_dword v5, v0, s[20:23], 0 offen offset:{4*i+28}", "s_waitcnt vmcnt(0)")
    k.e("s_endpgm")
    k.label("ffn_ep1")
    if os.environ.get("PF3"):
        k.e("v_min_u32 v0, 13, v1", "v_lshlrev_b32 v0, 7, v0", "s_mul_i32 s36, s47, 1728", "s_and_b32 s36, s36, 0xffffff80", f"s_add_u32 s36, s36, {18*T*1024}",
            "buffer_load_dword v0, v0, s[20:23], s36 offen sc1")
    k.e("s_waitcnt lgkmcnt(0)")
    k.e("s_lshl_b32 s34, s30, 12", f"s_add_u32 s34, s34, {LDS_H}", "v_add_u32 v12, s34, v11")
    k.e("s_lshr_b32 s34, s30, 1", "s_lshl_b32 s34, s34, 12", "s_and_b32 s35, s30, 1", "s_lshl_b32 s35, s35, 3",
        "s_add_u32 s34, s34, s35", f"s_add_u32 s34, s34, {LDS_H + 49152}", "v_add_u32 v13, s34, v11")
    for mb in range(4):
        d = XB0 + 4 * mb
        a, b = acc(0, mb), acc(1, mb)
        for i in range(4):
            k.e(f"v_cvt_pk_bf16_f32 v{d+i}, v{a+i}, v{b+i}")
        for i in range(4):
            k.e(f"v_pk_max_i16 v{d+i}, v{d+i}, 0")
        k.e(f"ds_write_b128 v12, {r4(d)} offset:{mb*1024}")
    for mb in range(4):
        a = acc(2, mb)
        d = XB0 + 16 + 2 * mb
        k.e(f"v_cvt_pk_bf16_f32 v{d}, v{a}, v{a+1}", f"v_cvt_pk_bf16_f32 v{d+1}, v{a+2}, v{a+3}",
            f"v_pk_max_i16 v{d}, v{d}, 0", f"v_pk_max_i16 v{d+1}, v{d+1}, 0",
            f"ds_write_b64 v13, v[{d}:{d+1}] offset:{mb*1024}")
    for r in range(ACC, ACC + 16 * T):
        k.e(f"v_mov_b32 v{r}, 0")
    if os.environ.get("NOPRIO"):
        k.e("s_branch ffn_pr2")
    k.e("s_cmp_lt_u32 s30, 4", "s_cbranch_scc0 ffn_pr1", "s_setprio 2")
    k.label("ffn_pr1")
    k.e("s_and_b32 s34, s30, 12", "s_cmp_eq_u32 s34, 4", "s_cbranch_scc0 ffn_pr2", "s_setprio 1")
    k.label("ffn_pr2")
    k.e("s_waitcnt lgkmcnt(0)", "s_barrier")
    stb(k, 7)
    k.e("s_branch ffn_start")


def tr_addr(k, base0, base1, stride, extra_sgpr=None):
    k.e("v_lshrrev_b32 v32, 2, v2",
        "v_and_b32 v33, 1, v3", "v_lshlrev_b32 v33, 2, v33", "v_add_u32 v32, v32, v33",
        "v_lshl_add_u32 v32, v3, 3, v32", "v_xor_b32 v33, 4, v32", f"s_movk_i32 s40, {stride}",
        "v_and_b32 v34, 3, v2", "v_lshlrev_b32 v34, 3, v34", f"v_add_u32 v34, {base0}, v34")
    if extra_sgpr is not None:
        k.e(f"v_add_u32 v34, s{extra_sgpr}, v34")
    k.e("v_mad_u32_u24 v28, v32, s40, v34", "v_mad_u32_u24 v29, v33, s40, v34")
    if base1 is not None:
        k.e(f"v_add_u32 v30, {base1 - base0}, v28", f"v_add_u32 v31, {base1 - base0}, v29")


def x_read_addr(k, v, slot_sgpr):
    k.e(f"v_lshrrev_b32 v{v}, 2, v2", f"v_sub_u32 v{v}, 4, v{v}", f"v_and_b32 v{v}, 3, v{v}", f"v_xor_b32 v{v}, v{v}, v3",
        f"v_lshlrev_b32 v{v}, 4, v{v}", f"v_lshl_add_u32 v{v}, v2, 6, v{v}")
    if slot_sgpr is None:
        k.e(f"v_add_u32 v{v}, {A_X}, v{v}")
    else:
        k.e(f"v_add_u32 v{v}, s{slot_sgpr}, v{v}")


def get_nonce(k):
    k.e(f"v_mov_b32 v12, {LDS_NON}", "ds_read_b64 v[14:15], v12", "s_waitcnt lgkmcnt(0)",
        "v_readfirstlane_b32 s66, v14", "v_readfirstlane_b32 s67, v15")


def wq_rd(k, t, s, wf, b, par=False):
    ss = 4 * s if par else s
    a0, a1 = (28, 29) if ss < 8 else (30, 31)
    off = (ss if ss < 8 else ss - 8) * 5120 + 32 * t
    k.e(f"ds_read_b64_tr_b16 v[{wf+4*b}:{wf+4*b+1}], v{a0} offset:{off}",
        f"ds_read_b64_tr_b16 v[{wf+4*b+2}:{wf+4*b+3}], v{a1} offset:{off}")


QCH = [(0, 8), (8, 12), (12, 18)]


def a_qwave(k):
    k.e("; ==== LN1 + Q projection (waves 0..3), LN folded into the epilogue")
    k.e("s_setprio 2")
    k.e("s_sub_u32 s34, s30, s29", "s_and_b32 s34, s34, 3", "s_mul_i32 s43, s34, 18432", f"s_add_u32 s43, s43, {A_X}",
        "s_lshl_b32 s35, s28, 2", "s_add_u32 s35, s35, s30", "s_mul_i32 s35, s35, 18432", "s_lshl_b32 s36, s48, 6")
    k.e("v_lshrrev_b32 v5, 2, v1", "v_sub_u32 v6, 4, v3", "v_xor_b32 v6, v6, v1", "v_and_b32 v6, 3, v6",
        "s_movk_i32 s41, 1152", "v_mul_u32_u24 v5, s41, v5", "v_lshl_add_u32 v4, v6, 4, v5", "v_add_u32 v4, s35, v4")
    NOB0 = os.environ.get("NOB0")
    if not NOB0:
        k.e("s_cmp_eq_u32 s34, 0", "s_cbranch_scc1 a_q_first", "s_barrier")
    else:
        k.e("s_cmp_lg_u32 s34, 0", "s_cbranch_scc1 a_q_first", "s_setprio 3")
    k.label("a_q_first")
    for s in range(18):
        k.e(f"s_add_u32 m0, s43, {s*1024}", "s_nop 0", "buffer_load_dwordx4 v4, s[20:23], s36 offen lds",
            "s_add_u32 s36, s36, 64", "s_cmp_eq_u32 s36, s41", "s_cselect_b32 s36, 0, s36")
    if not NOB0:
        k.e("s_cmp_lg_u32 s34, 0", "s_cbranch_scc1 a_q_second", "s_barrier")
    else:
        k.e("s_setprio 2", "s_barrier")
    k.label("a_q_second")
    tr_addr(k, A_WQ0, A_WQ1, 160)
    x_read_addr(k, 35, 43)
    for r in range(QACC, QACC + 20):
        k.e(f"v_mov_b32 v{r}, 0")
    for b in QACS:
        for i in range(4):
            k.e(f"v_mov_b32 v{b+i}, 0")
    for i in range(4):
        k.e(f"v_mov_b32 v{QONES+i}, 0x3f803f80")
    k.e("v_mov_b32 v6, 0", "v_mov_b32 v7, 0")
    for part in range(3):
        k.e(f"s_waitcnt vmcnt({18 - 6*(part+1)})")
        if part == 2:
            k.e("s_cmp_lg_u32 s34, 0", "s_cbranch_scc1 a_q_nosig")
            lds_signal(k, LDS_KVI)
            k.label("a_q_nosig")
        for s in range(6 * part, 6 * part + 6):
            k.e(f"ds_read_b128 {r4(QX0+4*s)}, v35 offset:{1024*s}")
        if part:
            k.e("s_waitcnt lgkmcnt(6)")
            for r in range(QX0 + 24 * (part - 1), QX0 + 24 * part):
                k.e(f"v_dot2c_f32_bf16 v6, v{r}, v{QONES}", f"v_dot2c_f32_bf16 v7, v{r}, v{r}")
    k.e("s_waitcnt lgkmcnt(0)")
    lds_signal(k, LDS_XC)
    k.stamp(1)
    for r in range(QX0 + 48, QX0 + 72):
        k.e(f"v_dot2c_f32_bf16 v6, v{r}, v{QONES}", f"v_dot2c_f32_bf16 v7, v{r}, v{r}")
    reduce_g_add(k, [6, 7], [32, 33])
    k.e(f"v_mul_f32 v6, {hex(f2u(1/576))}, v6", f"v_mul_f32 v7, {hex(f2u(1/576))}, v7",
        "v_fma_f32 v7, -v6, v6, v7", "v_max_f32 v7, 0, v7", f"v_add_f32 v7, {hex(f2u(1e-5))}, v7", "v_rsq_f32 v7, v7")
    k.e("s_cmp_lg_u32 s34, 0", "s_cbranch_scc1 a_q_nost")
    k.e("v_lshlrev_b32 v32, 2, v2", f"v_add_u32 v32, {A_ST}, v32", "ds_write_b32 v32, v6", "ds_write_b32 v32, v7 offset:64",
        "s_waitcnt lgkmcnt(0)")
    lds_signal(k, LDS_KVS)
    k.label("a_q_nost")
    k.e(f"v_mul_f32 v34, {hex(f2u(QSCALE))}, v7")
    k.e("s_mul_i32 s35, s30, 2304", f"s_add_u32 s35, s35, {LDS_OST}", "v_lshrrev_b32 v35, 1, v3", "v_lshlrev_b32 v35, 8, v35",
        "v_lshl_add_u32 v35, v2, 4, v35", "v_and_b32 v32, 1, v3", "v_lshl_add_u32 v35, v32, 3, v35", "v_add_u32 v35, s35, v35")
    sta(k, 3)
    k.label("a_q_gemm")
    for ci, (s0, s1) in enumerate(QCH):
        k.e("s_cmp_ge_u32 s30, 4", f"s_cbranch_scc1 mega_lwd_q{ci}")
        lds_wait(k, LDS_WQC + 4 * ci, 4, f"q{ci}")
        def rd2(t, s, b):
            a0, a1 = (28, 29) if s < 8 else (30, 31)
            off = (s if s < 8 else s - 8) * 5120 + 32 * t
            return [f"ds_read_b64_tr_b16 v[{QWF+4*b}:{QWF+4*b+1}], v{a0} offset:{off}",
                    f"ds_read_b64_tr_b16 v[{QWF+4*b+2}:{QWF+4*b+3}], v{a1} offset:{off}"]
        roll_gemm2(k, list(range(s0, s1)), rd2,
                   lambda t, s, b: [f"v_mfma_f32_16x16x32_bf16 {r4(QACC+4*t)}, {r4(QWF+4*b)}, {r4(QX0+4*s)}, {r4(QACC+4*t)}",
                                    f"v_mfma_f32_16x16x32_bf16 {r4(QACS[t])}, {r4(QWF+4*b)}, {r4(QONES)}, {r4(QACS[t])}"])
    k.e("s_cmp_ge_u32 s30, 4", "s_cbranch_scc1 a_s_done")
    sta(k, 7)
    k.e("s_setprio 3")
    lds_signal(k, LDS_WDN)
    sta(k, 8)
    for t in range(5):
        a = QACC + 4 * t
        for i in range(4):
            k.e(f"v_fma_f32 v{a+i}, -v6, v{QACS[t]+i}, v{a+i}")
        for i in range(4):
            k.e(f"v_mul_f32 v{a+i}, v34, v{a+i}")
        k.e(f"v_cvt_pk_bf16_f32 v{QWF+2*t}, v{a}, v{a+1}", f"v_cvt_pk_bf16_f32 v{QWF+2*t+1}, v{a+2}, v{a+3}")
        if t == 4:
            k.e(ex(0xffffffff))
        k.e(f"ds_write_b64 v35, v[{QWF+2*t}:{QWF+2*t+1}] offset:{512*t}")
    k.e("s_lshr_b32 s35, s30, 1", "s_lshl_b32 s35, s35, 2", f"s_add_u32 s35, s35, {LDS_QRD}", "v_mov_b32 v12, s35", "v_mov_b32 v13, 1",
        ex(1), "ds_add_u32 v12, v13", ex(-1))


def wkv_rd(k, s, wf):
    for t in range(2):
        off = s * 1536 + 32 * t
        k.e(f"ds_read_b64_tr_b16 v[{wf+4*t}:{wf+4*t+1}], v28 offset:{off}",
            f"ds_read_b64_tr_b16 v[{wf+4*t+2}:{wf+4*t+3}], v29 offset:{off}")


def a_wkv_dma(k):
    k.e("s_cmp_lt_u32 s29, 4", "s_cselect_b32 s20, s70, s72", "s_cselect_b32 s21, s71, s73", f"s_mov_b32 s22, {WKB}", "s_mov_b32 s23, 0x00020000")
    k.e("s_movk_i32 s40, 21846")
    for i in range(3):
        k.e(f"v_add_u32 v32, {64*i}, v1", "v_mul_u32_u24 v33, s40, v32", "v_lshrrev_b32 v33, 16, v33", "v_mul_u32_u24 v34, 3, v33",
            "v_sub_u32 v34, v32, v34", "v_lshlrev_b32 v34, 4, v34", "v_min_u32 v34, 20, v34",
            "v_and_b32 v35, 8, v33", "v_lshrrev_b32 v35, 1, v35", "v_xor_b32 v35, v35, v33", f"v_mad_u32_u24 v{16+i}, v35, 36, v34")
    k.e("s_sub_u32 s34, s30, 4", "s_mul_i32 s34, s34, 3", "s_mul_i32 s43, s34, 3072", "s_lshr_b32 s35, s48, 1", "s_add_u32 s35, s35, s34",
        "s_sub_u32 s36, s35, 9", "s_min_u32 s35, s35, s36", "s_mul_i32 s35, s35, 2304")
    for g in range(3):
        for i in range(3):
            k.e(f"s_add_u32 m0, s43, {A_WKV + g*3072 + i*1024}", "s_nop 0", f"buffer_load_dwordx4 v{16+i}, s[20:23], s35 offen lds")
        k.e("s_add_u32 s35, s35, 2304", f"s_cmp_eq_u32 s35, {9*2304}", "s_cselect_b32 s35, 0, s35")


def a_kvwave(k):
    k.e("; ==== K or V projection of 16 rows (wave 4), published to every workgroup")
    k.e("s_setprio 3")
    a_wkv_dma(k)
    k.e("s_barrier")
    tr_addr(k, A_WKV, None, 48)
    x_read_addr(k, 35, None)
    for r in range(QACC, QACC + 8):
        k.e(f"v_mov_b32 v{r}, 0")
    k.e("s_lshr_b32 s41, s28, 1", f"s_mul_i32 s41, s41, {GRP}", f"s_add_u32 s41, s41, {WS_KV}",
        "s_and_b32 s42, s28, 1", "s_lshl_b32 s42, s42, 1", "s_bfe_u32 s43, s29, 0x10001", "s_add_u32 s42, s42, s43",
        "s_and_b32 s43, s29, 1",
        "s_lshl_b32 s49, s28, 7", "s_lshl_b32 s34, s29, 3", "s_add_u32 s49, s49, s34", f"s_add_u32 s49, s49, {FK}")
    k.e("s_waitcnt vmcnt(0)")
    lds_signal(k, LDS_WKI)
    lds_wait(k, LDS_KVI, 3, "kvi")
    k.stamp(1)
    k.e("s_cmp_ge_u32 s29, 4", "s_cbranch_scc1 a_kv_v")
    for isv in (False, True):
        if isv:
            k.label("a_kv_v")

        def rd(s):
            b = s % 3
            k.e(f"ds_read_b128 {r4(QX0+4*b)}, v35 offset:{1024*s}")
            wkv_rd(k, s, QX0 + 12 + 8 * b)
        rd(0)
        rd(1)
        for s in range(18):
            b = s % 3
            if s + 2 < 18:
                rd(s + 2)
            k.e(f"s_waitcnt lgkmcnt({min(10, 5*(17-s))})")
            for t in range(2):
                a, w, x = r4(QACC + 4 * t), r4(QX0 + 12 + 8 * b + 4 * t), r4(QX0 + 4 * b)
                k.e(f"v_mfma_f32_16x16x32_bf16 {a}, {x}, {w}, {a}" if isv else f"v_mfma_f32_16x16x32_bf16 {a}, {w}, {x}, {a}")
        sta(k, 3)
        lds_wait(k, LDS_KVS, 2, "kv" + ("v" if isv else "k"))
        sta(k, 4)
        A = QACC
        if not isv:
            k.e("v_lshlrev_b32 v32, 4, v3", f"v_add_u32 v32, {A_SKV}, v32", "v_lshlrev_b32 v33, 2, v2", f"v_add_u32 v33, {A_ST}, v33",
                "ds_read_b128 v[16:19], v32", "ds_read_b128 v[20:23], v32 offset:64", "ds_read_b32 v6, v33", "ds_read_b32 v7, v33 offset:64")
            k.e("s_lshl_b32 s38, s43, 8", "v_lshlrev_b32 v36, 4, v2", "v_add_u32 v36, s38, v36",
                "v_lshrrev_b32 v37, 1, v3", "v_lshl_add_u32 v37, v37, 9, v36",
                "s_lshl_b32 s38, s42, 10", "s_add_u32 s38, s38, s41",
                "s_lshl_b32 s39, s42, 2", "s_add_u32 s39, s39, s41", f"s_add_u32 s39, s39, {KV_K2}")
            k.e("s_waitcnt lgkmcnt(0)")
            for i in range(8):
                k.e(f"v_fma_f32 v{A+i}, -v6, v{16+i}, v{A+i}")
            for i in range(8):
                k.e(f"v_mul_f32 v{A+i}, v7, v{A+i}")
            k.e(f"v_cvt_pk_bf16_f32 v40, v{A}, v{A+1}", f"v_cvt_pk_bf16_f32 v41, v{A+2}, v{A+3}", f"v_cvt_pk_bf16_f32 v44, v{A+6}, v{A+7}")
            k.e("v_permlane16_swap_b32 v40, v42", "v_permlane16_swap_b32 v41, v43")
            k.e(ex(0x0000ffff0000ffff), "buffer_store_dwordx4 v[40:43], v37, s[16:19], s38 offen sc1",
                ex(0xffff0000), "buffer_store_dword v44, v36, s[16:19], s39 offen sc1", ex(-1))
            k.e("s_or_b32 s39, s42, s28", "s_cmp_lg_u32 s39, 0", "s_cbranch_scc1 a_kv_nod", f"s_add_u32 s38, s38, {IMG}",
                ex(0x0000ffff0000ffff), "buffer_store_dwordx4 v[40:43], v37, s[16:19], s38 offen sc1", ex(-1))
            k.label("a_kv_nod")
            k.e("s_or_b32 s38, s42, s43", "s_cmp_lg_u32 s38, 0", "s_cbranch_scc1 a_kv_noc")
            k.e("v_mov_b32 v24, 0x3f803f80", "v_mov_b32 v25, 0x00003f80", "v_mov_b32 v26, 0x3f803f80", "v_mov_b32 v27, 0x00003f80",
                "v_mov_b32 v12, 0", f"s_add_u32 s38, s41, {KV_K2 + 512}", ex(1), "buffer_store_dwordx4 v[24:27], v12, s[16:19], s38 offen sc1", ex(-1))
            k.label("a_kv_noc")
            k.e(f"v_mul_f32 v45, v{A+6}, v{A+6}", f"v_fmac_f32 v45, v{A+7}, v{A+7}",
                "v_cmp_eq_u32 vcc, 1, v3", "v_cndmask_b32 v45, 0, v45, vcc")
            for i in range(4):
                k.e(f"v_fmac_f32 v45, v{A+i}, v{A+i}")
            reduce_g_add(k, [45], [46])
            for sh in (8, 4, 2, 1):
                k.e(f"v_max_f32_dpp v45, v45, v45 row_ror:{sh} row_mask:0xf bank_mask:0xf")
            k.e("s_branch a_kv_pub")
        else:
            k.e("v_lshlrev_b32 v32, 2, v2", f"v_add_u32 v32, {A_SKV}, v32", "v_lshlrev_b32 v33, 4, v3", f"v_add_u32 v33, {A_ST}, v33",
                "ds_read_b32 v6, v32", "ds_read_b32 v7, v32 offset:64", "ds_read_b128 v[16:19], v33", "ds_read_b128 v[20:23], v33 offset:64")
            k.e("s_mul_i32 s38, s42, 1216", "s_mul_i32 s39, s43, 608", "s_add_u32 s38, s38, s39", "s_add_u32 s38, s38, s41",
                f"s_add_u32 s38, s38, {KV_V}", "s_movk_i32 s39, 304", "v_and_b32 v36, 1, v3", "v_mul_u32_u24 v37, s39, v36",
                "v_lshl_add_u32 v37, v2, 4, v37", "v_lshrrev_b32 v36, 1, v3", "s_movk_i32 s39, 160", "v_mad_u32_u24 v37, v36, s39, v37")
            k.e("s_waitcnt lgkmcnt(0)")
            for t in range(2):
                for i in range(4):
                    k.e(f"v_fma_f32 v{A+4*t+i}, -v{16+i}, v{6+t}, v{A+4*t+i}")
                for i in range(4):
                    k.e(f"v_mul_f32 v{A+4*t+i}, v{20+i}, v{A+4*t+i}")
            for i in range(4):
                k.e(f"v_cvt_pk_bf16_f32 v{40+i}, v{A+2*i}, v{A+2*i+1}")
            k.e("v_mov_b32 v39, 0x3f803f80", "v_cmp_eq_u32 vcc, 8, v2", "v_cndmask_b32 v42, v42, v39, vcc", "v_cndmask_b32 v43, v43, v39, vcc")
            k.e("v_permlane32_swap_b32 v40, v42", "v_permlane32_swap_b32 v41, v43")
            k.e(ex(0x01c001c0ffffffff), "buffer_store_dwordx4 v[40:43], v37, s[16:19], s38 offen sc1", ex(-1), "v_mov_b32 v45, 0")
    k.label("a_kv_pub")
    sta(k, 5)
    lds_wait(k, LDS_NON, 1, "non")
    get_nonce(k)
    k.e("v_mov_b32 v44, s66", "v_mov_b32 v12, 0", "s_waitcnt vmcnt(0)")
    sta(k, 6)
    k.e(ex(1), "buffer_store_dwordx2 v[44:45], v12, s[16:19], s49 offen sc1", ex(-1))
    k.e("s_waitcnt vmcnt(0)")
    lds_signal(k, LDS_KVS)
    sta(k, 7)
    sta(k, 8)


def a_swave(k):
    k.e("s_setprio 3")
    k.e("s_cmp_eq_u32 s30, 7", "s_cbranch_scc1 a_s_7")
    a_wkv_dma(k)
    k.e("s_barrier", "s_branch a_s_c")
    k.label("a_s_7")
    if os.environ.get("PFC", "1") == "1":
        k.e("s_mul_i32 s34, s47, 1536", "v_min_u32 v12, 11, v1", "v_lshlrev_b32 v12, 7, v12", "v_add_u32 v12, s34, v12",
            f"v_min_u32 v12, CODE_BYTES - 4, v12", "global_load_dword v18, v12, s[62:63]")
    srd(k, 56, 74, 256)
    k.e("v_mov_b32 v10, 0")
    k.e("v_min_u32 v12, 35, v1", "v_lshlrev_b32 v12, 2, v12", f"v_add_u32 v12, {LDS_RDY}, v12", "v_mov_b32 v13, 0",
        "ds_write_b32 v12, v13", "v_lshlrev_b32 v12, 2, v1", f"v_add_u32 v12, {A_SQ}, v12", "ds_write_b32 v12, v13", "ds_write_b32 v12, v13 offset:64",
        "s_waitcnt lgkmcnt(0)")
    if os.environ.get("TOUCH", "0") == "1":
        k.e("buffer_load_dword v18, v10, s[56:59], 0 offen sc1", f"s_mov_b32 s34, {FK}", "buffer_load_dword v19, v10, s[16:19], s34 offen sc1",
            f"s_mov_b32 s34, {WS_KV}", "buffer_load_dword v20, v10, s[16:19], s34 offen sc1")
    k.e("s_barrier")
    sta(k, 4)
    sta(k, 5)
    sta(k, 6)
    sta(k, 7)
    sta(k, 8)
    k.e(f"s_mov_b32 s3, {SPIN}")
    k.label("a_s_np")
    k.e("s_sleep 4", "buffer_load_dwordx2 v[14:15], v10, s[56:59], 0 offen sc1", "s_sleep 4", "buffer_load_dwordx2 v[16:17], v10, s[56:59], 0 offen sc1",
        "s_waitcnt vmcnt(1)", "v_readfirstlane_b32 s39, v14", "s_cmp_lg_u32 s39, 0", "s_cbranch_scc1 a_s_nd",
        "s_waitcnt vmcnt(0)", "v_mov_b32 v14, v16", "v_mov_b32 v15, v17", "v_readfirstlane_b32 s39, v16", "s_cmp_lg_u32 s39, 0", "s_cbranch_scc1 a_s_nd",
        "s_sub_u32 s3, s3, 1", "s_cbranch_scc0 a_s_np")
    k.label("a_s_nd")
    k.e(f"v_mov_b32 v12, {LDS_NON}", "ds_write_b64 v12, v[14:15]")
    k.label("a_s_c")
    for i in range(4):
        k.e(f"v_mov_b32 v{QONES+i}, 0x3f803f80")
    for r in range(QACC, QACC + 20):
        k.e(f"v_mov_b32 v{r}, 0")
    k.e("s_cmp_lg_u32 s30, 5", "s_cbranch_scc1 a_s_q")
    tr_addr(k, A_WKV, None, 48)
    k.e("s_waitcnt vmcnt(0)")
    lds_signal(k, LDS_KVI)
    lds_signal(k, LDS_WKI)
    lds_wait(k, LDS_WKI, 3, "wki")
    k.stamp(1)
    wkv_rd(k, 0, QX0)
    wkv_rd(k, 1, QX0 + 8)
    for s in range(18):
        if s + 2 < 18:
            wkv_rd(k, s + 2, QX0 + 8 * ((s + 2) % 3))
        k.e(f"s_waitcnt lgkmcnt({min(8, 4*(17-s))})")
        for t in range(2):
            a = r4(QACC + 4 * t)
            k.e(f"v_mfma_f32_16x16x32_bf16 {a}, {r4(QONES)}, {r4(QX0+8*(s%3)+4*t)}, {a}")
    k.e("v_lshlrev_b32 v32, 2, v2", f"v_add_u32 v32, {A_SKV}, v32", f"ds_write_b32 v32, v{QACC}", f"ds_write_b32 v32, v{QACC+4} offset:64",
        "s_waitcnt lgkmcnt(0)")
    lds_signal(k, LDS_KVS)
    k.e("s_branch a_s_done")
    k.label("a_s_q")
    k.e("s_cmp_eq_u32 s30, 7", "s_cbranch_scc1 a_s_nx", "s_waitcnt vmcnt(0)")
    lds_signal(k, LDS_KVI)
    lds_signal(k, LDS_WKI)
    if os.environ.get("DRY", "0") == "1":
        k.stamp(1)
        tr_addr(k, A_WQ0, A_WQ1, 160)
        k.e("s_setprio 0", "s_branch a_q_gemm")
    k.label("a_s_nx")
    k.stamp(1)
    k.label("a_s_done")
    k.e("s_waitcnt vmcnt(0)")


def a_helper(k):
    k.e("; ==== helper waves: wq loader, then K/V gather")
    k.e("s_setprio 1", "s_sub_u32 s31, s30, 8")
    srd(k, 20, 68, WQB)
    if os.environ.get("PFQ", "1") == "1":
        k.e("s_cmp_lg_u32 s31, 0", "s_cbranch_scc1 a_h_nopf",
            "v_min_u32 v12, 20, v1", "v_lshlrev_b32 v12, 7, v12", "s_mul_i32 s34, s2, 2592", "s_and_b32 s34, s34, 0xffffff80",
            "buffer_load_dword v21, v12, s[20:23], s34 offen", ("buffer_load_dword v21, v12, s[20:23], s34 offen offset:64" if os.environ.get("PF64") else ""))
        k.label("a_h_nopf")
    k.e("s_movk_i32 s40, 6554", "s_movk_i32 s41, 1152")
    for i in range(5):
        dma_slot_calc(k, i, 32, 33, 34, 35)
        k.e("v_min_u32 v34, 8, v34", f"v_mul_u32_u24 v{16+i}, s41, v35", f"v_lshl_add_u32 v{16+i}, v34, 4, v{16+i}")
    k.e("s_add_u32 s42, s31, s48", "s_mul_i32 s32, s29, 144", "s_mul_i32 s43, s31, 5120")

    def wdma(base):
        k.e("s_sub_u32 s36, s42, 18", "s_min_u32 s42, s42, s36", "s_mul_i32 s36, s42, 36864", "s_add_u32 s36, s36, s32")
        for i in range(5):
            k.e(f"s_add_u32 m0, s43, {base + i*1024}", "s_nop 0", f"buffer_load_dwordx4 v{16+i}, s[20:23], s36 offen lds")
        k.e("s_add_u32 s42, s42, 4")
    k.e("s_barrier")
    wdma(A_WQ0)
    wdma(A_WQ0 + 20480)
    k.e("s_waitcnt vmcnt(0)")
    lds_signal(k, LDS_WQC)
    sta(k, 3)
    lds_wait(k, LDS_XC, 4, "xc")
    k.e("s_setprio 3")
    k.stamp(1)
    wdma(A_WQ1)
    wdma(A_WQ1 + 20480)
    k.e("s_cmp_ge_u32 s31, 2", "s_cbranch_scc1 a_h_skip")
    wdma(A_WQ1 + 40960)
    k.label("a_h_skip")
    for ci, n in ((1, 5), (2, 0)):
        k.e(f"s_waitcnt vmcnt({n})")
        lds_signal(k, LDS_WQC + 4 * ci)
        sta(k, 3 + ci)
    lds_wait(k, LDS_KVS, 3, "pub")
    get_nonce(k)
    sta(k, 6)
    k.e("v_lshrrev_b32 v10, 3, v1", "v_lshlrev_b32 v10, 7, v10", "v_and_b32 v9, 7, v1", "v_lshl_add_u32 v10, v9, 3, v10",
        "s_lshl_b32 s34, s31, 10", f"s_add_u32 s35, s34, {FK}")
    poll(k, 10, 35, 14, "k", sleep=int(os.environ.get("KSL", "10")), lo_only=True, first=int(os.environ.get("KF", "0")))
    sta(k, 7)
    k.e(f"v_mov_b32 v12, {LDS_KMX}", "ds_max_u32 v12, v15")
    lds_signal(k, LDS_KVR)
    k.e("s_lshr_b32 s35, s2, 3", "s_add_u32 s35, s35, s2", "s_and_b32 s35, s35, 15", f"s_mul_i32 s35, s35, {GRP}", "s_add_u32 s35, s35, s34",
        f"v_add_u32 v10, {WS_KV}, v11")
    lds_wait(k, LDS_KVR, 4, "kvr")
    k.e("s_or_b32 s36, s2, s31", "s_cmp_lg_u32 s36, 0", "s_cbranch_scc1 a_h_noclr")
    srd(k, 56, 74, 256)
    k.e("v_mov_b32 v12, 0", "v_mov_b32 v13, 0", ex(1), "buffer_store_dwordx2 v[12:13], v12, s[56:59], 0 offen sc1", ex(-1))
    k.label("a_h_noclr")
    sta(k, 8)
    kv_dma(k, 0, 7)


def gen_one(name):
    k = Kernel(name, vgprs=168)
    k.e("s_getpc_b64 s[62:63]")
    k.label("mega_pc")
    k.e("s_cmp_ge_u32 s2, 256", "s_cbranch_scc1 mega_end")
    k.e("s_memrealtime s[60:61]")
    k.e("s_load_dwordx2 s[10:11], s[0:1], 0", "s_load_dwordx4 s[68:71], s[0:1], 8", "s_load_dwordx2 s[72:73], s[0:1], 24",
        "s_load_dwordx2 s[8:9], s[0:1], 32", "s_load_dwordx4 s[4:7], s[0:1], 48", "s_load_dwordx2 s[14:15], s[0:1], 64",
        "s_load_dwordx2 s[74:75], s[0:1], 72", "s_load_dwordx2 s[12:13], s[0:1], 80")
    k.stamp(0)
    k.e("v_and_b32 v1, 63, v0", "v_and_b32 v2, 15, v0", "v_bfe_u32 v3, v0, 4, 2", "v_lshrrev_b32 v7, 6, v0",
        "v_lshlrev_b32 v11, 4, v1", "v_readfirstlane_b32 s30, v7")
    k.e("s_and_b32 s46, s2, 7", "s_lshr_b32 s47, s2, 3", "s_and_b32 s28, s47, 24", "s_add_u32 s28, s28, s46", "s_and_b32 s29, s47, 7",
        "s_lshr_b32 s48, s47, 3", "s_lshl_b32 s48, s48, 1", "s_add_u32 s48, s48, s29", "s_sub_u32 s34, s48, 9", "s_min_u32 s48, s48, s34",
        "s_lshl_b32 s48, s48, 1")
    k.e("s_xor_b32 s34, s30, 7", "s_or_b32 s34, s34, s2", "s_waitcnt lgkmcnt(0)", "s_cbranch_scc1 a_s_nn")
    k.e("s_or_b32 s60, s60, 1", "v_mov_b32 v14, s60", "v_mov_b32 v15, s61", "v_mov_b32 v10, 0", ex(1),
        "global_store_dwordx2 v10, v[14:15], s[74:75] sc1", ex(-1))
    k.label("a_s_nn")
    srd(k, 16, 12, WS_END)
    srd(k, 20, 10, XB)
    srd(k, 24, 8, WQB)
    k.e("s_cmp_ge_u32 s30, 8", "s_cbranch_scc1 mega_helper")
    k.e("s_cmp_ge_u32 s30, 5", "s_cbranch_scc1 a_sw", "s_cmp_eq_u32 s30, 4", "s_cbranch_scc1 a_kvw")
    a_qwave(k)
    k.e("s_branch a_done")
    k.label("a_kvw")
    a_kvwave(k)
    k.e("s_branch a_s_done")
    k.label("a_sw")
    a_swave(k)
    k.label("a_done")
    k.e("s_setprio 3")
    k.e("s_mov_b32 s52, 0")
    attention(k)
    k.e("s_cmp_lg_u32 s52, 0", "s_cbranch_scc1 mega_ringed")
    ffn_ring_start(k)
    k.label("mega_ringed")
    lds_wait(k, LDS_ORD, 4, "ord2", sleep=4)
    if os.environ.get("PF1", "1") == "1":
        k.e("s_cmp_ge_u32 s30, 2", "s_cbranch_scc1 mega_nopf1",
            "s_mul_i32 s36, s30, 54", "v_min_u32 v12, 53, v1", "v_add_u32 v12, s36, v12", "s_movk_i32 s36, 7282", "v_mul_u32_u24 v13, s36, v12",
            "v_lshrrev_b32 v13, 16, v13", "v_mul_u32_u24 v14, 9, v13", "v_sub_u32 v12, v12, v14", "v_lshlrev_b32 v12, 7, v12",
            f"s_mov_b32 s36, {STREAM}", "v_mad_u32_u24 v12, v13, s36, v12",
            f"s_mul_i32 s36, s46, {1296*1024}", "s_mul_i32 s37, s47, 1152", "s_add_u32 s36, s36, s37", f"s_add_u32 s36, s36, {WS_W + 6*T*1024}",
            "buffer_load_dword v0, v12, s[16:19], s36 offen sc1", ("buffer_load_dword v0, v12, s[16:19], s36 offen offset:64 sc1" if os.environ.get("PF64") else ""))
        k.label("mega_nopf1")
    for t in range(T):
        k.e(wload(D - 1, t))
    k.e("s_waitcnt vmcnt(0)")
    stb(k, 4)
    k.e("s_branch ffn_join")
    k.label("mega_helper")
    a_helper(k)
    helper_pack(k)
    oproj(k)
    ffn(k)
    k.label("mega_end")
    k.e("s_endpgm", ".set CODE_BYTES, mega_end - mega_pc")
    return k
```

```python
import os
from asmlib import Kernel
from layout import *
from k_small import f2u, srd, ex, reduce_g_add, dma_slot_calc

S0, S1, OA, P, KF, V0, V1, K2F, Q, Q2E, Q2O = 16, 32, 48, 64, 72, 76, 80, 84, 88, 92, 94
T0 = 96
PIN, POUT, PS = 48, 96, 144
LDS_OST = 151808
LDS_RES = 92160
LDS_WO = 0
LDS_H = 73728
LDS_S = 161024
LDS_RDY = 163328
LDS_CNT = 163344
LDS_WQC = 163392
LDS_KVS = LDS_WQC + 12
LDS_KVR = LDS_WQC + 16
LDS_KMX = LDS_WQC + 20
LDS_KVI = LDS_WQC + 24
LDS_XC = LDS_WQC + 28
LDS_WKI = LDS_WQC + 32
LDS_REL = LDS_WQC + 36
LDS_NON = LDS_WQC + 40
LDS_ORD = LDS_WQC + 48
LDS_IMG = LDS_WQC + 52
LDS_MUS = LDS_WQC + 56
LDS_SRD = LDS_WQC + 60
LDS_QRD = LDS_WQC + 64
LDS_WDN = LDS_WQC + 72
LDS_IM0 = LDS_WQC + 76
LDS_MU = LDS_OST
LDS_MEGA = 163488
A_WKV = 0
A_WQ0 = 29696
A_X = 70656
A_WQ1 = A_X + 18432
A_SQ = LDS_S
A_SKV = LDS_S + 320
A_ST = LDS_S + 448
QX0, QACC, QWF, QONES = 48, 120, 140, 36
QACS = [16, 20, 24, 40, 44]
OX0, OACC, OWF = 96, 48, 68
XB0, ACC, WR = 16, 48, 96
D = 6
T = 3
STREAM = 36 * T * 1024
SPIN = 1 << 16
PSX, PSY = 73728, 589824
RX = RST = 0
if os.environ.get("CMP", "0") == "1":
    _d = -WS_FL
    F1, F2, FP, F3, FK = F1 + _d, F2 + _d, FP + _d, F3 + _d, FK + _d
    WS_KV, WS_SP, WS_W = 0x10000, 0x40000, 0x60000
    _R0, _RS = 0xA80000, 10 * 73728 + 4096
    WS_O, WS_H, WS_P, WS_ST = _R0, _R0 + 73728, _R0 + 2 * 73728, _R0 + 10 * 73728
    PSY, RX, RST = _RS, _RS - 73728, _RS - 4096
STA = bool(os.environ.get("STA"))


def sta(k, i):
    if STA:
        k.stamp(i)


STP = bool(os.environ.get("STP"))


def stb(k, i):
    if not STA and not STP and not (STT and i < 7) and not (STO and i > 6):
        k.stamp(i)


STT = bool(os.environ.get("STT"))


def stt(k, i):
    if STT:
        k.stamp(i)


STO = bool(os.environ.get("STO"))


def sto(k, i):
    if STO:
        k.stamp(i)


def stp(k, i):
    if STP:
        k.stamp(i)
WAUX = os.environ.get("WAUX", "sc1")


def r4(b):
    return f"v[{b}:{b+3}]"


def r16(b):
    return f"v[{b}:{b+15}]"


def poll(k, vaddr, soff, vtmp, tag, sleep=2, lo_only=False, first=0):
    lab, done = f"mega_poll_{tag}", f"mega_polld_{tag}"
    k.e(f"s_mov_b32 s3, {SPIN}")
    if first:
        k.e(f"s_sleep {first}")
    k.label(lab)
    k.e(f"s_sleep {sleep}", f"buffer_load_dwordx2 v[{vtmp}:{vtmp+1}], v{vaddr}, s[16:19], s{soff} offen sc1", "s_waitcnt vmcnt(0)")
    if lo_only:
        k.e(f"v_cmp_eq_u32 vcc, s66, v{vtmp}")
    else:
        k.e(f"v_cmp_eq_u64 vcc, s[66:67], v[{vtmp}:{vtmp+1}]")
    k.e("s_cmp_eq_u64 vcc, -1", f"s_cbranch_scc1 {done}", "s_sub_u32 s3, s3, 1", f"s_cbranch_scc0 {lab}")
    k.label(done)


def set_flag(k, soff):
    k.e("v_mov_b32 v12, 0", "v_mov_b32 v14, s66", "v_mov_b32 v15, s67", ex(1),
        f"buffer_store_dwordx2 v[14:15], v12, s[16:19], s{soff} offen sc1", ex(-1))


def lds_signal(k, addr, va=12, vb=13):
    k.e(f"v_mov_b32 v{va}, {addr}", f"v_mov_b32 v{vb}, 1", ex(1), f"ds_add_u32 v{va}, v{vb}", ex(-1))


def lds_wait(k, addr, n, tag, va=12, vb=13, sleep=int(os.environ.get("LWS", "1"))):
    lab, done = f"mega_lw_{tag}", f"mega_lwd_{tag}"
    k.e(f"v_mov_b32 v{va}, {addr}", f"s_mov_b32 s3, {SPIN*8}")
    k.label(lab)
    k.e(f"ds_read_b32 v{vb}, v{va}", "s_waitcnt lgkmcnt(0)", f"v_readfirstlane_b32 s39, v{vb}", f"s_cmp_ge_u32 s39, {n}",
        f"s_cbranch_scc1 {done}", f"s_sleep {sleep}", "s_sub_u32 s3, s3, 1", f"s_cbranch_scc0 {lab}")
    k.label(done)


def arrive(k, cnt, n, soff, tag, cnt_sgpr=None):
    if cnt_sgpr is None:
        k.e(f"v_mov_b32 v12, {LDS_CNT + 4*cnt}")
    else:
        k.e(f"v_mov_b32 v12, s{cnt_sgpr}")
    k.e("v_mov_b32 v13, 1", ex(1), "ds_add_rtn_u32 v14, v12, v13", ex(-1), "s_waitcnt lgkmcnt(0)",
        "v_readfirstlane_b32 s3, v14", f"s_cmp_lg_u32 s3, {n-1}", f"s_cbranch_scc1 mega_arr_{tag}")
    set_flag(k, soff)
    k.label(f"mega_arr_{tag}")


def publish_o(k, tag, pre=None):
    k.e("s_and_b32 s34, s30, 3", "s_lshr_b32 s35, s30, 2", "s_mul_i32 s36, s34, 2304", "s_mul_i32 s37, s35, 768",
        "s_add_u32 s36, s36, s37", f"s_add_u32 s36, s36, {LDS_OST}", "v_add_u32 v12, s36, v11",
        f"ds_read_b128 {r4(4)}, v12")
    k.e("s_lshl_b32 s36, s28, 2", "s_add_u32 s36, s36, s34", "s_mul_i32 s38, s36, 18432", "s_mul_i32 s39, s29, 2304",
        "s_add_u32 s38, s38, s39", "s_add_u32 s38, s38, s37", f"s_add_u32 s38, s38, {WS_O}", f"s_mul_i32 s39, s28, {RX}", "s_add_u32 s38, s38, s39")
    k.e("s_lshl_b32 s36, s28, 7", "s_lshl_b32 s39, s29, 3", "s_add_u32 s36, s36, s39", f"s_add_u32 s36, s36, {F1}")
    k.e("s_waitcnt lgkmcnt(0)", ex((1 << 48) - 1), f"buffer_store_dwordx4 {r4(4)}, v11, s[16:19], s38 offen sc1", ex(-1),
        "s_waitcnt vmcnt(0)")
    arrive(k, 1, 12, 36, tag)
    if pre:
        pre(k)


def attention(k):
    k.e("; ==== attention (waves 0..7; one (head, 32-query) unit each). S^T = K.Q^T - M comes straight out of the MFMAs:")
    k.e("v_and_b32 v2, 31, v1", "v_lshrrev_b32 v3, 5, v1")
    k.e("s_lshr_b32 s35, s30, 2", "s_mul_i32 s35, s35, 4608", f"s_add_u32 s35, s35, {LDS_OST}", "s_movk_i32 s36, 2304",
        "v_lshrrev_b32 v8, 4, v2", "v_mul_u32_u24 v8, s36, v8", "v_and_b32 v9, 15, v2", "v_lshl_add_u32 v8, v9, 4, v8",
        "v_add_u32 v8, s35, v8", "v_lshl_add_u32 v9, v3, 8, v8", "s_and_b32 s37, s30, 3", "s_mul_i32 s37, s37, 18")
    for i in range(4):
        k.e(f"s_add_u32 s38, s37, {2*i}", "s_lshr_b32 s39, s38, 3", "s_lshl_b32 s39, s39, 8", "s_and_b32 s38, s38, 7",
            "s_lshl_b32 s38, s38, 1", "s_add_u32 s38, s38, s39", f"v_add_u32 v{Q+i}, s38, v9")
        if i == 0:
            k.e(f"v_add_u32 v{T0}, s38, v8")
    k.e(f"v_mov_b32 v{T0+2}, {LDS_KMX}")
    k.e("v_mov_b32 v12, v11")
    k.e("v_cmp_eq_u32 vcc, 28, v2", "v_cndmask_b32 v13, v2, 18, vcc",
        "v_cmp_lt_u32 vcc, 18, v13", "v_mov_b32 v14, 0x10000", "v_cndmask_b32 v13, v13, v14, vcc",
        "s_movk_i32 s40, 304", "v_mul_u32_u24 v14, s40, v3", "v_lshl_add_u32 v13, v13, 4, v14", f"v_add_u32 v13, {KV_V}, v13")
    k.e("v_min_u32 v14, 32, v1", "v_lshlrev_b32 v14, 4, v14", f"v_add_u32 v14, {KV_K2}, v14")
    k.e("v_cmp_eq_u32 s[44:45], 1, v3")
    k.e("s_lshr_b32 s35, s30, 2", "s_lshl_b32 s35, s35, 2", f"s_add_u32 s35, s35, {LDS_QRD}")
    def zero_init():
        for r in list(range(OA, OA + 16)) + list(range(P, P + 8)) + list(range(V1, V1 + 4)):
            k.e(f"v_mov_b32 v{r}, 0")

    def setm():
        k.e(f"v_xor_b32 v{T0+2}, 0x80000000, v{T0+1}",
            f"v_and_b32 v{T0+3}, 0xffff0000, v{T0+2}", f"v_sub_f32 v{T0+2}, v{T0+2}, v{T0+3}",
            f"v_and_b32 v{T0+4}, 0xffff0000, v{T0+2}", f"v_sub_f32 v{T0+2}, v{T0+2}, v{T0+4}",
            f"v_lshrrev_b32 v{T0+3}, 16, v{T0+3}", f"v_or_b32 v{T0+3}, v{T0+3}, v{T0+4}",
            f"v_lshrrev_b32 v{T0+2}, 16, v{T0+2}")
        k.e(f"v_cndmask_b32 v{Q2E}, v{T0}, v{T0+3}, s[44:45]", f"v_cndmask_b32 v{Q2E+1}, 0, v{T0+2}, s[44:45]",
            f"v_cndmask_b32 v{Q2O}, 0, v{T0+3}, s[44:45]", f"v_cndmask_b32 v{Q2O+1}, v{T0}, v{T0+2}, s[44:45]")
    zero_init()
    k.e("v_mov_b32 v4, v12", "v_mov_b32 v5, v13", "v_mov_b32 v6, v14", "s_mov_b32 s32, 0", "s_mov_b32 s31, 2")
    sta(k, 4)
    lds_wait(k, LDS_IM0, 4, "im0", va=T0 + 6, vb=T0 + 7)
    k.e(f"ds_read_b32 v{T0+2}, v{T0+2}", f"v_mov_b32 v{T0+6}, {LDS_NON}", f"ds_read_b64 v[{T0+8}:{T0+9}], v{T0+6}",
        f"ds_read_b128 {r4(KF)}, v4", f"ds_read_b128 {r4(K2F)}, v6", f"ds_read_b128 {r4(V0)}, v5")
    sta(k, 5)
    lds_wait(k, "s35", 2, "qrd", va=T0 + 6, vb=T0 + 7)
    sta(k, 6)
    for i in range(4):
        k.e(f"ds_read_b32 v{Q+i}, v{Q+i}")
    k.e(f"ds_read_b32 v{T0}, v{T0} offset:512", f"v_readfirstlane_b32 s66, v{T0+8}", f"v_readfirstlane_b32 s67, v{T0+9}",
        f"v_mul_f32 v{T0+2}, {hex(f2u(1.02*1.02))}, v{T0+2}", f"v_mov_b32 v{T0+1}, 0", "s_waitcnt lgkmcnt(0)")
    k.e(f"v_cndmask_b32 v{T0}, v{T0}, 0, s[44:45]")
    for r in (Q, Q + 1, Q + 2, Q + 3, T0):
        k.e(f"v_dot2c_f32_bf16 v{T0+1}, v{r}, v{r}")
    k.e(f"v_mfma_f32_32x32x16_bf16 {r16(S0)}, {r4(KF)}, {r4(Q)}, 0", f"ds_read_b128 {r4(KF)}, v4 offset:1024")
    k.e(f"v_mov_b32 v{T0+4}, v{T0+1}", f"v_permlane32_swap_b32 v{T0+1}, v{T0+4}", f"v_add_f32 v{T0+1}, v{T0+1}, v{T0+4}")
    k.e(f"v_mul_f32 v{T0+1}, v{T0+1}, v{T0+2}", f"v_sqrt_f32 v{T0+1}, v{T0+1}")
    setm()
    k.e("s_setprio 2", "s_branch attn_go")
    k.label("attn_setm")
    setm()
    k.e("v_mov_b32 v4, v12", "v_mov_b32 v5, v13", "v_mov_b32 v6, v14")
    k.e("s_cmp_eq_u32 s32, 10", "s_cbranch_scc1 attn_maxpass")
    zero_init()
    k.e("s_mov_b32 s31, 16")
    k.e(f"ds_read_b128 {r4(KF)}, v4", f"ds_read_b128 {r4(K2F)}, v6", f"ds_read_b128 {r4(V0)}, v5", "s_waitcnt lgkmcnt(0)")
    k.e(f"v_mfma_f32_32x32x16_bf16 {r16(S0)}, {r4(KF)}, {r4(Q)}, 0", f"ds_read_b128 {r4(KF)}, v4 offset:1024")
    k.label("attn_go")
    k.e(f"v_mfma_f32_32x32x8_bf16 {r16(S0)}, v[{K2F}:{K2F+1}], v[{Q2E}:{Q2E+1}], {r16(S0)}")
    k.stamp(2)
    k.e("s_waitcnt lgkmcnt(0)", "s_nop 7", "s_nop 3")
    k.e(".p2align 6")
    k.label("attn_loop")
    for tau in range(4):
        cur, nxt = (S0, S1) if tau % 2 == 0 else (S1, S0)
        t1 = (tau + 1) % 4
        koff = (tau + 2) * 1024 if tau < 2 else GRP + (tau - 2) * 1024
        v0off = (tau + 1) * 1216 if tau < 3 else GRP

        def ex_(a, b):
            for i in range(a, b):
                k.e(f"v_exp_f32 v{cur+i}, v{cur+i}")

        def cv(a, b):
            for i in range(a, b):
                k.e(f"v_cvt_pk_bf16_f32 v{P+i}, v{cur+2*i}, v{cur+2*i+1}")
        e1, e2, e3, e4 = eval(os.environ.get("EXS", "(3, 6, 9, 12)"))
        k.e("s_waitcnt lgkmcnt(2)")
        k.e(f"v_mfma_f32_32x32x16_bf16 {r16(nxt)}, {r4(KF)}, {r4(Q)}, 0")
        k.e(f"ds_read_b128 {r4(KF)}, v4 offset:{koff}")
        ex_(0, e1)
        k.e("s_waitcnt lgkmcnt(2)")
        k.e(f"v_mfma_f32_32x32x16_bf16 {r16(OA)}, {r4(V1)}, {r4(P+4)}, {r16(OA)}")
        k.e(f"ds_read_b128 {r4(V1)}, v5 offset:{tau*1216+608}")
        ex_(e1, e2)
        q2 = Q2E if t1 % 2 == 0 else Q2O
        kk = K2F + 2 * (t1 // 2)
        k.e(f"v_mfma_f32_32x32x8_bf16 {r16(nxt)}, v[{kk}:{kk+1}], v[{q2}:{q2+1}], {r16(nxt)}")
        if tau == 2:
            k.e(f"ds_read_b128 {r4(K2F)}, v6 offset:{GRP}")
        ex_(e2, e3)
        cv(0, 4)
        ex_(e3, e4)
        k.e("s_waitcnt lgkmcnt(2)")
        k.e(f"v_mfma_f32_32x32x16_bf16 {r16(OA)}, {r4(V0)}, {r4(P)}, {r16(OA)}")
        k.e(f"ds_read_b128 {r4(V0)}, v5 offset:{v0off}")
        ex_(e4, 16)
        if tau == 3:
            k.e(f"v_add_u32 v4, {GRP}, v4", f"v_add_u32 v5, {GRP}, v5", f"v_add_u32 v6, {GRP}, v6")
            k.e("s_sub_u32 s31, s31, 1", "s_cmp_lg_u32 s31, 0")
        cv(4, 8)
    k.e("s_cbranch_scc1 attn_loop")
    k.e("s_cmp_ge_u32 s32, 4", "s_cbranch_scc1 attn_tail")
    k.e("s_add_u32 s32, s32, 1")
    k.e("s_cmp_eq_u32 s32, 2", "s_cbranch_scc1 attn_ph2", "s_cmp_eq_u32 s32, 3", "s_cbranch_scc1 attn_ph3",
        "s_cmp_eq_u32 s32, 4", "s_cbranch_scc1 attn_ph4")
    lds_wait(k, LDS_IMG, 4, "img", va=T0 + 6, vb=T0 + 7)
    k.e("s_mov_b32 s31, 9", "s_branch attn_loop")
    for ph, cnt, pr in eval(os.environ.get("PHS", "((2, 2, 1), (3, 2, 1), (4, 1, 0))")):
        k.label(f"attn_ph{ph}")
        k.e(f"s_setprio {pr}", f"s_mov_b32 s31, {cnt}")
        if ph == 2:
            k.e(f"v_cndmask_b32 v{T0+5}, v{OA+10}, v{OA+12}, s[44:45]", f"v_cmp_le_f32 vcc, {hex(f2u(2.0**-40))}, v{T0+5}",
                "s_cmp_eq_u64 vcc, -1", "s_cselect_b32 s34, 1, 0x101", f"v_mov_b32 v{T0+6}, {LDS_REL}", f"v_mov_b32 v{T0+7}, s34",
                ex(1), f"ds_add_u32 v{T0+6}, v{T0+7}", ex(-1))
        if ph == 4:
            k.e(f"v_mov_b32 v{T0+6}, {LDS_RDY}", f"ds_read_b32 v{T0+6}, v{T0+6}", "s_waitcnt lgkmcnt(0)",
                f"v_readfirstlane_b32 s52, v{T0+6}", "s_cmp_eq_u32 s52, 0", "s_cbranch_scc1 attn_loop")
            ffn_ring_start(k)
        k.e("s_branch attn_loop")
    k.label("attn_maxpass")
    k.e(f"v_mov_b32 v{T0+1}, 0xff800000", "s_mov_b32 s31, 16")
    k.label("attn_maxloop")
    k.e(f"ds_read_b128 {r4(K2F)}, v6")
    for tau in range(4):
        q2 = Q2E if tau % 2 == 0 else Q2O
        kk = K2F + 2 * (tau // 2)
        k.e(f"ds_read_b128 {r4(KF)}, v4 offset:{tau*1024}", "s_waitcnt lgkmcnt(0)")
        k.e(f"v_mfma_f32_32x32x16_bf16 {r16(S0)}, {r4(KF)}, {r4(Q)}, 0",
            f"v_mfma_f32_32x32x8_bf16 {r16(S0)}, v[{kk}:{kk+1}], v[{q2}:{q2+1}], {r16(S0)}")
        for i in range(8):
            k.e(f"v_max3_f32 v{T0+1}, v{S0+2*i}, v{S0+2*i+1}, v{T0+1}")
    k.e(f"v_add_u32 v4, {GRP}, v4", f"v_add_u32 v6, {GRP}, v6", "s_sub_u32 s31, s31, 1", "s_cmp_lg_u32 s31, 0",
        "s_cbranch_scc1 attn_maxloop")
    k.e(f"v_mov_b32 v{T0+2}, v{T0+1}", f"v_permlane32_swap_b32 v{T0+1}, v{T0+2}", f"v_max_f32 v{T0+1}, v{T0+1}, v{T0+2}")
    k.e("s_mov_b32 s32, 11", "s_branch attn_setm")
    k.label("attn_tail")
    k.e("s_waitcnt lgkmcnt(0)")
    k.e(f"v_mfma_f32_32x32x16_bf16 {r16(OA)}, {r4(V1)}, {r4(P+4)}, {r16(OA)}")
    k.e("s_and_b32 s34, s30, 3", "s_mul_i32 s34, s34, 18", "s_lshr_b32 s35, s30, 2", "s_mul_i32 s35, s35, 4608",
        f"s_add_u32 s35, s35, {LDS_OST}", "s_movk_i32 s36, 2304",
        f"v_lshrrev_b32 v{T0+9}, 4, v2", f"v_mul_u32_u24 v{T0+9}, s36, v{T0+9}", f"v_and_b32 v{T0+8}, 15, v2",
        f"v_lshl_add_u32 v{T0+9}, v{T0+8}, 4, v{T0+9}", f"v_add_u32 v{T0+9}, s35, v{T0+9}")
    k.e(f"v_lshl_add_u32 v{T0+6}, v3, 2, s34", f"v_add_u32 v{T0+7}, 2, v{T0+6}")
    for r in (T0 + 6, T0 + 7):
        k.e(f"v_lshrrev_b32 v{T0+8}, 3, v{r}", f"v_and_b32 v{r}, 7, v{r}", f"v_lshl_add_u32 v{r}, v{r}, 1, v{T0+9}",
            f"v_lshl_add_u32 v{r}, v{T0+8}, 8, v{r}")
    k.e(f"v_cndmask_b32 v{T0+5}, v{OA+10}, v{OA+12}, s[44:45]")
    k.e(f"v_cmp_le_f32 vcc, {hex(f2u(2.0**-40))}, v{T0+5}")
    k.e("s_cmp_eq_u32 s32, 11", "s_cbranch_scc1 attn_fin")
    k.e("s_cmp_eq_u64 vcc, -1", "s_cbranch_scc1 attn_fin")
    k.e("s_mov_b32 s32, 10", f"v_mov_b32 v{T0+1}, 0", "s_branch attn_setm")
    k.label("attn_fin")
    k.e(f"v_rcp_f32 v{T0+5}, v{T0+5}")
    for i in range(10):
        k.e(f"v_mul_f32 v{OA+i}, v{T0+5}, v{OA+i}")
    for i in range(5):
        k.e(f"v_cvt_pk_bf16_f32 v{P+i}, v{OA+2*i}, v{OA+2*i+1}")
    k.e(f"ds_write_b32 v{T0+6}, v{P}", f"ds_write_b32 v{T0+7}, v{P+1}",
        f"ds_write_b32 v{T0+6}, v{P+2} offset:256", f"ds_write_b32 v{T0+7}, v{P+3} offset:256",
        ex(0xffffffff), f"ds_write_b32 v{T0+6}, v{P+4} offset:512", ex(-1))
    k.e("s_waitcnt lgkmcnt(0)", "s_barrier")
    stb(k, 3)
    publish_o(k, "oa")


def kv_dma(k, a, b):
    for i in range(a, b):
        k.e(f"s_add_u32 m0, s34, {i*4096}", f"s_sub_u32 s36, s35, {IMG - 4096}", "buffer_load_dwordx4 v10, s[16:19], s35 offen sc1 lds",
            "s_add_u32 s35, s35, 4096", "s_min_u32 s35, s35, s36")


NB = 7


def roll_gemm(k, steps, rd, mfma, pre=None):
    seq = [(s, t) for s in steps for t in range(5)]
    n = len(seq)
    for i in range(min(NB, n)):
        rd(seq[i][1], seq[i][0], i % NB)
    for i, (s, t) in enumerate(seq):
        ahead = min(NB - 1, n - 1 - i)
        extra = pre(s) if (pre and t == 0) else ""
        k.e(f"s_waitcnt lgkmcnt({2*ahead}){extra}")
        mfma(t, s, i % NB)
        if i + NB < n:
            rd(seq[i + NB][1], seq[i + NB][0], i % NB)


def roll_gemm2(k, steps, rd2, mf2):
    seq = [(s, t) for s in steps for t in range(5)]
    n = len(seq)
    for i in range(min(NB, n)):
        k.e(*rd2(seq[i][1], seq[i][0], i % NB))
    for i, (s, t) in enumerate(seq):
        issued = min(n, NB + max(0, i - 1))
        k.e(f"s_waitcnt lgkmcnt({2*(issued - 1 - i)})")
        m = mf2(t, s, i % NB)
        j = i - 1 + NB
        r = rd2(seq[j][1], seq[j][0], (i - 1) % NB) if (i >= 1 and j < n) else ["", ""]
        k.e(m[0], r[0], m[1], r[1])


def helper_pack(k):
    k.e("; ==== helper waves 8..11: K/V image -> LDS, re-pack W1/W2 slice into MFMA fragment order (+ column sums of W1)")
    def dma(a, b):
        kv_dma(k, a, b)
    k.e("s_waitcnt vmcnt(0)")
    lds_signal(k, LDS_IM0)
    lds_wait(k, LDS_WDN, 4, "wdn")
    dma(7, 37)
    k.e("s_cmp_lg_u32 s31, 0", "s_cbranch_scc1 mega_h_nolast")
    k.e(ex(0xffff))
    dma(37, 38)
    k.e(ex(-1))
    k.label("mega_h_nolast")
    k.e("s_lshl_b32 s34, s31, 6", "v_add_u32 v12, s34, v1", "v_min_u32 v12, 161, v12", "v_lshlrev_b32 v12, 7, v12",
        "s_mul_i32 s34, s47, 20736")
    k.e("s_lshl_b32 s50, s31, 5", "s_add_u32 s50, s50, s47",
        "s_cmp_ge_u32 s50, 54", "s_cselect_b32 s53, 1, 0",
        "s_mul_i32 s51, s53, 54", "s_sub_u32 s51, s50, s51",
        "s_mul_i32 s54, s51, 57", "s_lshr_b32 s54, s54, 10",
        "s_mul_i32 s52, s54, 18", "s_sub_u32 s52, s51, s52",
        "s_cmp_eq_u32 s53, 0",
        "s_cselect_b32 s20, s4, s6", "s_cselect_b32 s21, s5, s7", f"s_mov_b32 s22, {hex(W1B)}", "s_mov_b32 s23, 0x00020000",
        "s_movk_i32 s56, 1152", "s_cselect_b32 s56, 9216, s56",
        "s_movk_i32 s57, 1152", "s_cselect_b32 s57, s57, 663552", "s_mul_i32 s57, s57, s46",
        "s_mul_i32 s58, s54, 192", "s_mul_i32 s58, s58, s56", "s_add_u32 s57, s57, s58",
        "s_lshl_b32 s58, s52, 6", "s_add_u32 s57, s57, s58")
    k.e("s_add_u32 s58, s53, s54", "s_cmp_eq_u32 s58, 3", "s_cselect_b32 s58, 2, 1", "s_cselect_b32 s59, -5, 1",
        "s_mul_i32 s58, s58, s56", "s_mul_i32 s59, s59, s56", "s_mul_i32 s60, s56, 25")
    k.e("v_lshrrev_b32 v2, 4, v1", "v_lshlrev_b32 v2, 3, v2", "v_mul_u32_u24 v15, s56, v2", "v_and_b32 v3, 15, v1",
        "v_lshl_add_u32 v15, v3, 2, v15", "v_lshlrev_b32 v8, 2, v3",
        "s_mov_b32 s64, 0x05040100", "s_mov_b32 s65, 0x07060302")
    k.e(f"s_mul_i32 s62, s52, {STREAM}", f"s_mul_i32 s63, s52, {2*STREAM}", f"s_sub_u32 s63, s63, {24*STREAM - 2048}",
        "s_cmp_lt_u32 s52, 12", "s_cselect_b32 s62, s62, s63", "s_movk_i32 s61, 1024", f"s_cselect_b32 s61, s61, {STREAM}",
        "s_mul_i32 s63, s53, 3", "s_add_u32 s63, s63, s54", f"s_mul_i32 s63, s63, {6*3072}", "s_add_u32 s62, s62, s63",
        f"s_mul_i32 s63, s46, {1296*1024}", "s_add_u32 s62, s62, s63", f"s_add_u32 s62, s62, {WS_W}",
        "s_add_u32 s61, s61, s62")
    for i in range(4):
        k.e(f"v_mov_b32 v{PS+8+i}, 0x3f803f80")
    k.e("s_waitcnt vmcnt(0)")
    lds_signal(k, LDS_IMG, va=9, vb=10)
    stp(k, 3)
    k.e("buffer_load_dword v13, v12, s[24:27], s34 offen", ("buffer_load_dword v13, v12, s[24:27], s34 offen offset:64" if os.environ.get("PF64") else ""))
    k.e("s_cmp_ge_u32 s50, 108", "s_cbranch_scc1 mega_h_nounit")
    for ss in range(6):
        for jj in range(8):
            k.e(f"buffer_load_dword v{PIN+8*ss+jj}, v15, s[20:23], s57 offen {os.environ.get('PKL', '')}",
                f"s_add_u32 s57, s57, s{60 if jj == 7 else (59 if jj == 3 else 58)}")
    stp(k, 4)
    for ss in range(6):
        k.e(f"s_waitcnt vmcnt({40 - 8*ss + 2*ss})")
        if ss in (0, 5):
            stp(k, 5 if ss == 0 else 6)
        for e in range(2):
            for q in range(4):
                k.e(f"v_perm_b32 v{POUT+8*ss+4*e+q}, v{PIN+8*ss+2*q+1}, v{PIN+8*ss+2*q}, s{64+e}")
            k.e(f"buffer_store_dwordx4 {r4(POUT+8*ss+4*e)}, v11, s[16:19], s{62-e} offen sc1", f"s_add_u32 s{62-e}, s{62-e}, 3072")
    stp(k, 7)
    k.e("s_cmp_lg_u32 s53, 0", "s_cbranch_scc1 mega_h_nounit")
    for ss in range(6):
        for e in range(2):
            k.e(f"v_mfma_f32_16x16x32_bf16 {r4(PS+4*e)}, {r4(PS+8)}, {r4(POUT+8*ss+4*e)}, {r4(PS+4*e) if ss else 0}")
    k.e("s_mul_i32 s58, s54, 18432", "s_mul_i32 s59, s46, 2304", "s_add_u32 s58, s58, s59", "s_lshl_b32 s59, s52, 7",
        "s_add_u32 s58, s58, s59", f"s_add_u32 s58, s58, {WS_SP}")
    k.e(ex(0xffff), f"buffer_store_dword v{PS}, v8, s[16:19], s58 offen sc1",
        f"buffer_store_dword v{PS+4}, v8, s[16:19], s58 offen offset:64 sc1", ex(-1))
    k.label("mega_h_nounit")
    k.e("s_waitcnt vmcnt(0)", "s_lshl_b32 s34, s46, 9", f"s_add_u32 s36, s34, {FP}", "s_lshr_b32 s35, s47, 3", "s_lshl_b32 s35, s35, 7",
        "s_add_u32 s34, s36, s35", "s_lshl_b32 s35, s29, 3", "s_add_u32 s34, s34, s35")
    k.stamp(2)
    arrive(k, 0, 4, 34, "p")
    k.e("s_cmp_lg_u32 s31, 3", "s_cbranch_scc1 mega_h_nofp")
    lds_wait(k, LDS_QRD, 2, "qa")
    lds_wait(k, LDS_QRD + 4, 2, "qb")
    k.e("v_bfe_u32 v12, v1, 3, 2", "v_lshlrev_b32 v12, 7, v12", "v_and_b32 v13, 7, v1", "v_lshl_add_u32 v12, v13, 3, v12")
    poll(k, 12, 36, 14, "p", sleep=16)
    k.e("v_add_u32 v13, 128, v1", "v_min_u32 v13, 143, v13", "v_lshlrev_b32 v13, 4, v13",
        "s_mul_i32 s34, s46, 2304", f"s_add_u32 s34, s34, {WS_SP}")
    for i in range(3):
        k.e(f"buffer_load_dwordx4 {r4(PIN+12*i)}, v11, s[16:19], s34 offen sc1", f"buffer_load_dwordx4 {r4(PIN+12*i+4)}, v11, s[16:19], s34 offen offset:1024 sc1",
            f"buffer_load_dwordx4 {r4(PIN+12*i+8)}, v13, s[16:19], s34 offen sc1", "s_add_u32 s34, s34, 18432")
    k.e(f"v_mov_b32 v14, {LDS_RDY}", "v_mov_b32 v15, 1", "ds_write_b32 v14, v15")
    k.e("v_lshlrev_b32 v14, 7, v1", "v_and_b32 v15, 3, v1", "v_lshlrev_b32 v15, 7, v15",
        f"s_mul_i32 s34, s46, {1296*1024}", "s_mul_i32 s35, s47, 41472", "s_add_u32 s34, s34, s35", f"s_add_u32 s34, s34, {WS_W}")
    for i in range(6):
        if os.environ.get("PF64"):
            k.e(f"buffer_load_dword v{POUT+i}, v{14 if i < 5 else 15}, s[16:19], s34 offen offset:64 sc1")
        k.e(f"buffer_load_dword v{POUT+i}, v{14 if i < 5 else 15}, s[16:19], s34 offen sc1", "s_add_u32 s34, s34, 8192")
    k.e(f"v_add_u32 v12, {LDS_S}, v11", f"v_add_u32 v13, {LDS_S}, v13", "s_waitcnt vmcnt(6)")
    for i in range(1, 3):
        for c in range(12):
            k.e(f"v_add_f32 v{PIN+c}, v{PIN+c}, v{PIN+12*i+c}")
    k.e(f"ds_write_b128 v12, {r4(PIN)}", f"ds_write_b128 v12, {r4(PIN+4)} offset:1024", f"ds_write_b128 v13, {r4(PIN+8)}",
        "s_waitcnt lgkmcnt(0)")
    k.label("mega_h_nofp")


def wo_dma(k, tag):
    k.e("s_mul_i32 s32, s29, 144", "s_lshl_b32 s42, s29, 1", "s_add_u32 s42, s42, s31",
        "s_mul_i32 s43, s31, 5120", f"s_add_u32 s43, s43, {LDS_WO}")

    k.e("s_cmp_eq_u32 s31, 3", f"s_cbranch_scc1 mega_o_skip{tag}")
    for grp in range(6):
        k.e("s_sub_u32 s36, s42, 18", "s_min_u32 s42, s42, s36", "s_mul_i32 s36, s42, 36864", "s_add_u32 s36, s36, s32")
        for i in range(5):
            k.e(f"s_add_u32 m0, s43, {grp*3*5120 + i*1024}", "s_nop 0", f"buffer_load_dwordx4 v{16+i}, s[24:27], s36 offen lds")
        k.e("s_add_u32 s42, s42, 3")
    k.label(f"mega_o_skip{tag}")
    srd(k, 56, 10, XB)
    k.e("s_add_u32 s35, s49, s32")
    for i in range(3):
        if i == 2:
            k.e(ex(0xffffffff))
        k.e(f"s_add_u32 m0, s44, {i*1024}", "s_nop 0", f"buffer_load_dwordx4 v{16+i}, s[56:59], s35 offen lds")
    k.e(ex(-1), "s_waitcnt vmcnt(0)")
    for t in range(5):
        k.e(f"ds_read_b64 v[{36+2*t}:{37+2*t}], v21 offset:{32*t}")
    k.e("s_cmp_eq_u32 s31, 3", f"s_cbranch_scc1 mega_c_skip{tag}")
    k.e("v_add_u32 v32, s43, v28", "v_add_u32 v33, s43, v29", "v_add_u32 v34, s43, v11", "s_mov_b32 s36, 6")
    k.label(f"mega_conv{tag}")
    for t in range(5):
        k.e(f"ds_read_b64_tr_b16 v[{OWF+4*t}:{OWF+4*t+1}], v32 offset:{32*t}", f"ds_read_b64_tr_b16 v[{OWF+4*t+2}:{OWF+4*t+3}], v33 offset:{32*t}")
    k.e("v_add_u32 v32, 15360, v32", "v_add_u32 v33, 15360, v33", "s_waitcnt lgkmcnt(0)")
    for t in range(5):
        k.e(f"ds_write_b128 v34, {r4(OWF+4*t)} offset:{1024*t}")
    k.e("v_add_u32 v34, 15360, v34", "s_sub_u32 s36, s36, 1", "s_cmp_lg_u32 s36, 0", f"s_cbranch_scc1 mega_conv{tag}")
    k.label(f"mega_c_skip{tag}")
    k.e("s_waitcnt lgkmcnt(0)")
    for t in range(5):
        a = OACC + 4 * t
        k.e(f"v_lshlrev_b32 v{a}, 16, v{36+2*t}", f"v_and_b32 v{a+1}, 0xffff0000, v{36+2*t}",
            f"v_lshlrev_b32 v{a+2}, 16, v{37+2*t}", f"v_and_b32 v{a+3}, 0xffff0000, v{37+2*t}")


def oproj(k):
    k.e("; ==== output projection + residual + LayerNorm-2 partial statistics (helper waves)")
    k.e("v_and_b32 v2, 15, v1", "v_lshrrev_b32 v3, 4, v1")
    k.e("v_lshrrev_b32 v32, 2, v2",
        "v_and_b32 v33, 1, v3", "v_lshlrev_b32 v33, 2, v33", "v_add_u32 v32, v32, v33",
        "v_lshl_add_u32 v32, v3, 3, v32", "v_xor_b32 v33, 4, v32", "s_movk_i32 s40, 160",
        "v_and_b32 v34, 3, v2", "v_lshlrev_b32 v34, 3, v34", f"v_add_u32 v34, {LDS_WO}, v34",
        "v_mad_u32_u24 v28, v32, s40, v34", "v_mad_u32_u24 v29, v33, s40, v34",
        "v_add_u32 v30, 61440, v11")
    k.e("s_mul_i32 s44, s31, 2560", f"s_add_u32 s44, s44, {LDS_RES}",
        "v_and_b32 v21, 8, v2", "v_lshrrev_b32 v21, 1, v21", "v_xor_b32 v21, v21, v2", "v_mul_u32_u24 v21, s40, v21",
        "v_lshl_add_u32 v21, v3, 3, v21", "v_add_u32 v21, s44, v21")
    k.e("v_and_b32 v22, 1, v3", "v_lshlrev_b32 v22, 9, v22", "v_lshrrev_b32 v32, 1, v3", "v_lshl_add_u32 v22, v32, 8, v22",
        "v_lshl_add_u32 v22, v2, 4, v22")
    k.e("v_and_b32 v23, 7, v1", "v_lshlrev_b32 v23, 3, v23")
    k.e("s_lshl_b32 s48, s28, 2", "s_add_u32 s48, s48, s31", "s_mul_i32 s49, s48, 18432")
    k.e(f"s_mul_i32 s68, s28, {RX}", "s_add_u32 s68, s68, s49", f"s_add_u32 s34, s68, {WS_O}", "v_add_u32 v24, s34, v11", "s_lshl_b32 s51, s29, 11")
    k.e(f"v_mov_b32 v12, {LDS_REL}", f"s_mov_b32 s3, {SPIN*8}")
    k.label("mega_rel")
    k.e("ds_read_b32 v13, v12", "s_waitcnt lgkmcnt(0)", "v_readfirstlane_b32 s50, v13", "s_and_b32 s39, s50, 0xff", "s_cmp_ge_u32 s39, 8",
        "s_cbranch_scc1 mega_reld", "s_sleep 4", "s_sub_u32 s3, s3, 1", "s_cbranch_scc0 mega_rel")
    k.label("mega_reld")
    if os.environ.get("PFC") == "2":
        k.e("s_cmp_lg_u32 s31, 3", "s_cbranch_scc1 a_nopfc", "s_getpc_b64 s[70:71]")
        k.label("mega_pc2")
        k.e("s_mul_i32 s36, s47, 512", "v_min_u32 v9, 3, v1", "v_lshlrev_b32 v9, 7, v9",
            "v_add_u32 v9, s36, v9", "v_min_u32 v9, mega_end - mega_pc2 - 4, v9", "global_load_dword v10, v9, s[70:71]")
        k.label("a_nopfc")
    k.e("s_cmp_lg_u32 s50, 8", "s_cbranch_scc1 mega_noearly")
    wo_dma(k, "a")
    k.label("mega_noearly")
    stp(k, 8)
    k.e("s_waitcnt lgkmcnt(0)", "s_barrier")
    stb(k, 3)
    publish_o(k, "ob")
    k.e("s_cmp_eq_u32 s50, 8", "s_cbranch_scc1 mega_nolate")
    wo_dma(k, "b")
    k.label("mega_nolate")
    k.e("s_lshl_b32 s34, s28, 7", f"s_add_u32 s34, s34, {F1}")
    k.e("s_cmp_lg_u32 s31, 0", "s_cbranch_scc1 mega_polld_o")
    lds_wait(k, LDS_CNT + 4, 12, "owno")
    poll(k, 23, 34, 32, "o", sleep=int(os.environ.get("OSP", "2")))
    lds_signal(k, LDS_ORD)
    lds_wait(k, LDS_ORD, 4, "ord")
    stb(k, 4)
    for s in range(18):
        k.e(f"buffer_load_dwordx4 v[{OX0+4*s}:{OX0+4*s+3}], v24, s[16:19], s51 offen sc1",
            "s_add_u32 s51, s51, 1024", "s_cmp_eq_u32 s51, 18432", "s_cselect_b32 s51, 0, s51")

    seq = [(s, t) for s in range(18) for t in range(5)]

    def rd(i):
        s, t = seq[i]
        off = (s if s < 12 else s - 12) * 5120 + 1024 * t
        k.e(f"ds_read_b128 {r4(OWF+4*(i%NB))}, v{11 if s < 12 else 30} offset:{off}")
    for i in range(NB):
        rd(i)
    ring_srd(k)
    for i, (s, t) in enumerate(seq):
        k.e(f"s_waitcnt lgkmcnt({min(NB-1, 89-i)})" + (f" vmcnt({17 - s + 3*(s//3)})" if t == 0 else ""))
        a = r4(OACC + 4 * t)
        k.e(f"v_mfma_f32_16x16x32_bf16 {a}, {r4(OWF+4*(i%NB))}, {r4(OX0+4*s)}, {a}")
        if i + NB < 90:
            rd(i + NB)
        if t == 4 and s % 3 == 2:
            st = (s // 3 + 5) % 6
            k.e(f"s_movk_i32 s53, {st*T*1024}")
            for tt in range(T):
                k.e(wload(st, tt))
    sto(k, 1)
    k.e("v_mov_b32 v6, 0", "v_mov_b32 v7, 0", "v_mov_b32 v34, 0x3f803f80",
        "s_mul_i32 s35, s29, 2304", "s_add_u32 s35, s35, s68", f"s_add_u32 s35, s35, {WS_H}")
    for t in range(5):
        a = OACC + 4 * t
        d = OWF + 2 * t
        k.e(f"v_cvt_pk_bf16_f32 v{d}, v{a}, v{a+1}", f"v_cvt_pk_bf16_f32 v{d+1}, v{a+2}, v{a+3}")
        if t == 4:
            k.e(ex(0xffffffff))
        k.e(f"v_dot2c_f32_bf16 v6, v{d}, v34", f"v_dot2c_f32_bf16 v7, v{d}, v{d}",
            f"v_dot2c_f32_bf16 v6, v{d+1}, v34", f"v_dot2c_f32_bf16 v7, v{d+1}, v{d+1}")
        if t == 4:
            k.e(ex(-1))
        if t % 2 == 1 or t == 4:
            b = OWF + 4 * (t // 2)
            k.e(f"v_permlane16_swap_b32 v{b}, v{b+2}", f"v_permlane16_swap_b32 v{b+1}, v{b+3}")
            if t == 4:
                k.e(ex(0xffff))
            k.e(f"buffer_store_dwordx4 {r4(b)}, v22, s[16:19], s35 offen offset:{1024*(t//2)} sc1")
            if t == 4:
                k.e(ex(-1))
    reduce_g_add(k, [6, 7], [32, 33])
    k.e("v_lshlrev_b32 v32, 4, v2", "s_lshl_b32 s35, s48, 10", "s_lshr_b32 s34, s29, 1", "s_lshl_b32 s34, s34, 8",
        "s_add_u32 s35, s35, s34", "s_and_b32 s34, s29, 1", "s_lshl_b32 s34, s34, 3", "s_add_u32 s35, s35, s34",
        f"s_add_u32 s35, s35, {WS_ST}", f"s_mul_i32 s34, s28, {RST}", "s_add_u32 s35, s35, s34", ex(0xffff))
    k.e("buffer_store_dwordx2 v[6:7], v32, s[16:19], s35 offen sc1", ex(-1))
    sto(k, 2)
    k.e("s_lshl_b32 s34, s28, 7", "s_lshl_b32 s35, s29, 3", "s_add_u32 s34, s34, s35", f"s_add_u32 s34, s34, {F2}", "s_waitcnt vmcnt(0)")
    sto(k, 7)
    arrive(k, 2, 4, 34, "h")


def acc(t, mb):
    return ACC + (t * 4 + mb) * 4


def wreg(slot, t):
    return WR + ((slot + 1) % 6) * 12 + t * 4


def wload(slot, t):
    return f"buffer_load_dwordx4 {r4(wreg(slot, t))}, v11, s[20:23], s53 offen offset:{1024*t} {WAUX}"


def ring_srd(k):
    k.e(f"s_mul_i32 s34, s30, {STREAM}", f"s_mul_i32 s35, s46, {1296*1024}", "s_add_u32 s34, s34, s35", f"s_add_u32 s34, s34, {WS_W}",
        "s_add_u32 s20, s12, s34", "s_addc_u32 s21, s13, 0", f"s_mov_b32 s22, {STREAM}", "s_mov_b32 s23, 0x00020000")


def ffn_ring_start(k, n=D - 1):
    ring_srd(k)
    k.e("s_mov_b32 s53, 0")
    for st in range(n):
        for t in range(T):
            k.e(wload(st, t))
        k.e(f"s_add_u32 s53, s53, {T*1024}")


def ffn(k):
    k.label("ffn_join")
    k.e("s_setprio 0", "v_and_b32 v2, 15, v1", "v_lshrrev_b32 v3, 4, v1")
    k.e("s_lshl_b32 s34, s47, 2", "s_and_b32 s35, s30, 3", "s_add_u32 s34, s34, s35", "s_mul_i32 s41, s34, 18432",
        "s_lshr_b32 s35, s30, 2", "s_lshl_b32 s35, s35, 10", "s_add_u32 s41, s41, s35", f"s_add_u32 s41, s41, {WS_H}", f"s_mul_i32 s35, s47, {RX}", "s_add_u32 s41, s41, s35",
        "s_lshl_b32 s42, s30, 10")
    k.e("s_lshl_b32 s34, s30, 7", f"s_add_u32 s34, s34, {LDS_S}", "v_lshlrev_b32 v13, 4, v3", "v_add_u32 v12, s34, v13",
        "s_lshl_b32 s34, s30, 6", f"s_add_u32 s34, s34, {LDS_S + 1536}", "v_add_u32 v13, s34, v13",
        f"ds_read_b128 {r4(XB0+16)}, v12", f"ds_read_b128 {r4(XB0+20)}, v12 offset:64", f"ds_read_b128 {r4(XB0+24)}, v13")
    k.e("v_lshlrev_b32 v9, 2, v2", f"v_add_u32 v9, {LDS_MU}, v9", "s_and_b32 s34, s46, 3", "s_lshl_b32 s34, s34, 6", "v_add_u32 v10, s34, v9")
    k.e(f"s_movk_i32 s53, {D*T*1024}")
    k.e("s_cmp_lg_u32 s30, 0", "s_cbranch_scc1 ffn_g")
    k.e("v_and_b32 v12, 7, v1", "v_lshlrev_b32 v12, 3, v12", "s_lshl_b32 s34, s47, 7", f"s_add_u32 s34, s34, {F2}",
        "v_lshlrev_b32 v8, 10, v3", "v_lshl_add_u32 v8, v2, 4, v8", f"s_mul_i32 s35, s47, {RST + 4096}", f"s_add_u32 s35, s35, {WS_ST}")
    lds_wait(k, LDS_CNT + 8, 4, "own", va=14, vb=15, sleep=2)
    poll(k, 12, 34, 14, "h", sleep=int(os.environ.get("HSP", "3")))
    for p in range(4):
        k.e(f"buffer_load_dwordx4 {r4(XB0+4*p)}, v8, s[16:19], s35 offen offset:{256*p} sc1")
    k.label("ffn_g")
    k.e("s_barrier")
    stb(k, 5)
    NF = int(os.environ.get("NF", "2"))
    for i in range(NF):
        k.e(f"s_add_u32 m0, s42, {i*12288}", f"s_add_u32 s36, s41, {i*3072}", f"buffer_load_dwordx4 v11, s[16:19], s36 offen {os.environ.get('HNT', '')} sc1 lds")
    k.e("s_cmp_lg_u32 s30, 0", "s_cbranch_scc1 ffn_st")
    k.e(f"s_waitcnt vmcnt({NF})")
    for p in range(1, 4):
        for c in range(4):
            k.e(f"v_add_f32 v{XB0+c}, v{XB0+c}, v{XB0+4*p+c}")
    k.e(f"v_add_f32 v4, v{XB0}, v{XB0+2}", f"v_add_f32 v5, v{XB0+1}, v{XB0+3}",
        f"v_mul_f32 v4, {hex(f2u(-1/576))}, v4", f"v_mul_f32 v5, {hex(f2u(1/576))}, v5", "v_fma_f32 v5, -v4, v4, v5", "v_max_f32 v5, 0, v5",
        f"v_add_f32 v5, {hex(f2u(1e-5))}, v5", "v_rsq_f32 v5, v5", "v_lshlrev_b32 v6, 2, v1", f"v_add_u32 v6, {LDS_MU}, v6",
        "ds_write_b32 v6, v4", "ds_write_b32 v6, v5 offset:256")
    lds_signal(k, LDS_MUS)
    k.label("ffn_st")
    lds_wait(k, LDS_MUS, 1, "mus")
    for i in range(NF, 4):
        k.e(f"s_add_u32 m0, s42, {i*12288}", f"s_add_u32 s36, s41, {i*3072}", f"buffer_load_dwordx4 v11, s[16:19], s36 offen {os.environ.get('HNT', '')} sc1 lds")
    sto(k, 8)
    for mb in range(4):
        k.e(f"ds_read_b32 v{4+mb}, v9 offset:{64*mb}")
    k.e("ds_read_b32 v8, v10 offset:256", "s_waitcnt lgkmcnt(0)")
    for t in range(T):
        for mb in range(4):
            for i in range(4):
                k.e(f"v_mul_f32 v{acc(t,mb)+i}, v{4+mb}, v{XB0+16+4*t+i}")
    k.e("s_add_u32 s41, s41, 12288", "s_add_u32 s42, s42, 49152")
    k.e("s_waitcnt vmcnt(3)", "s_barrier")
    stb(k, 6)
    if os.environ.get("PF2") == "2":
        k.e("v_min_u32 v0, 13, v1", "v_lshlrev_b32 v0, 7, v0", "s_mul_i32 s36, s47, 1728", "s_and_b32 s36, s36, 0xffffff80", f"s_add_u32 s36, s36, {18*T*1024}",
            "buffer_load_dword v0, v0, s[20:23], s36 offen sc1")
    k.e("v_mov_b32 v10, v11", "s_mov_b32 s31, 0")

    def step(u, loads=True):
        xb = XB0 + 16 * (u % 2)
        xn = XB0 + 16 * ((u + 1) % 2)
        fill = [f"ds_read_b128 {r4(xn+4*mb)}, v10 offset:{(u+1)*4096 + 1024*mb}" for mb in range(4)]
        if loads:
            fill += [wload((u + D - 1) % D, t) for t in range(T)]
            fill += [f"s_add_u32 s53, s53, {T*1024}"]
        order = [(t, mb) for t in range(T) for mb in range(4)]
        if os.environ.get("ORD") == "snake":
            order = [(t, mb if t % 2 == 0 else 3 - mb) for t in range(T) for mb in range(4)]
        if os.environ.get("ORD") == "mb":
            order = [(t if mb % 2 == 0 else T - 1 - t, mb) for mb in range(4) for t in range(T)]
        for t, mb in order:
            a = r4(acc(t, mb))
            k.e(f"v_mfma_f32_16x16x32_bf16 {a}, {r4(wreg(u, t))}, {r4(xb+4*mb)}, {a}")
            if fill:
                k.e(fill.pop(0))
    for mb in range(4):
        k.e(f"ds_read_b128 {r4(XB0+4*mb)}, v10 offset:{1024*mb}")
    k.e("s_waitcnt lgkmcnt(0)")
    step(0, loads=False)
    k.e("s_branch ffn_u1")
    k.label("ffn_start")
    for mb in range(4):
        k.e(f"ds_read_b128 {r4(XB0+4*mb)}, v10 offset:{1024*mb}")
    k.e(".p2align 6")
    k.label("ffn_loop")
    k.e("s_cmp_lg_u32 s31, 1", "s_cbranch_scc1 ffn_nodma")
    for i in range(2):
        k.e(f"s_add_u32 m0, s42, {i*12288}", f"s_add_u32 s36, s41, {i*3072}", f"buffer_load_dwordx4 v11, s[16:19], s36 offen {os.environ.get('HNT', '')} sc1 lds")
    if os.environ.get("PF2", "1") == "1":
        k.e("v_min_u32 v0, 13, v1", "v_lshlrev_b32 v0, 7, v0", "s_mul_i32 s36, s47, 1728", "s_and_b32 s36, s36, 0xffffff80", f"s_add_u32 s36, s36, {18*T*1024}",
            ("buffer_load_dword v15, v0, s[20:23], s36 offen offset:64 sc1" if os.environ.get("PF64") else ""),
            "buffer_load_dword v0, v0, s[20:23], s36 offen sc1")
    k.label("ffn_nodma")
    for u in range(D):
        if u == 1:
            k.label("ffn_u1")
        k.e(f"s_waitcnt vmcnt({4*T}) lgkmcnt(0)")
        if u == D - 1:
            k.e("s_cmp_ge_u32 s31, 2", "s_cbranch_scc1 ffn_nobar", "s_barrier")
            k.label("ffn_nobar")
        if u == 2:
            k.e("s_cmp_lg_u32 s31, 0", "s_cbranch_scc1 ffn_nobar2", "s_waitcnt vmcnt(5)", "s_barrier")
            k.label("ffn_nobar2")
        step(u)
    k.e(f"v_add_u32 v10, {D*4096}, v10", "s_add_u32 s31, s31, 1",
        "s_cmp_eq_u32 s31, 3", "s_cbranch_scc1 ffn_ep1",
        "s_cmp_lt_u32 s31, 6", "s_cbranch_scc1 ffn_loop")
    stb(k, 8)
    k.e("s_waitcnt lgkmcnt(0)")
    k.e(f"s_mul_i32 s34, s46, {PSX}", f"s_mul_i32 s33, s47, {PSY}", f"s_add_u32 s33, s33, {WS_P}", "s_add_u32 s34, s34, s33",
        "s_lshl_b32 s35, s30, 10", "s_add_u32 s36, s34, s35",
        "s_cmp_ge_u32 s30, 6", "s_movk_i32 s37, 12288", f"s_cselect_b32 s37, {12288 + 18432 - 6144}, s37", "s_add_u32 s37, s37, s36")
    for mb in range(4):
        d = XB0 + 4 * mb
        a, b = acc(0, mb), acc(1, mb)
        for i in range(4):
            k.e(f"v_cvt_pk_bf16_f32 v{d+i}, v{a+i}, v{b+i}")
        k.e(f"buffer_store_dwordx4 {r4(d)}, v11, s[16:19], s36 offen sc1", "s_add_u32 s36, s36, 18432")
    for h in range(2):
        d = XB0 + 16 + 4 * h
        a, b = acc(2, 2 * h), acc(2, 2 * h + 1)
        k.e(f"v_cvt_pk_bf16_f32 v{d}, v{a}, v{a+1}", f"v_cvt_pk_bf16_f32 v{d+1}, v{a+2}, v{a+3}",
            f"v_cvt_pk_bf16_f32 v{d+2}, v{b}, v{b+1}", f"v_cvt_pk_bf16_f32 v{d+3}, v{b+2}, v{b+3}")
        k.e(f"buffer_store_dwordx4 {r4(d)}, v11, s[16:19], s37 offen sc1", "s_add_u32 s37, s37, 36864")
    stt(k, 3)
    k.e("s_lshl_b32 s38, s47, 9", f"s_add_u32 s38, s38, {F3}", "s_lshr_b32 s36, s30, 2", "s_lshl_b32 s35, s36, 7", "s_add_u32 s38, s38, s35",
        "s_lshl_b32 s35, s46, 3", "s_add_u32 s34, s38, s35",
        "s_lshl_b32 s44, s36, 2", f"s_add_u32 s44, s44, {LDS_CNT + 12}", "s_waitcnt vmcnt(0)")
    stt(k, 4)
    stt(k, 5)
    stt(k, 6)
    arrive(k, 0, 4, 34, "r", cnt_sgpr=44)
    k.e("s_add_u32 s44, s44, 12", "v_mov_b32 v10, s44")
    k.e("s_and_b32 s35, s30, 3", "s_cmp_lg_u32 s35, 3", "s_cbranch_scc1 mega_red")
    if os.environ.get("DEFER", "1") == "1":
        if os.environ.get("DEF0", "1") == "1":
            k.e("s_cmp_eq_u32 s30, 3", f"s_mov_b32 s35, {LDS_CNT + 20}", f"s_cselect_b32 s35, {LDS_CNT + 16}, s35")
            lds_wait(k, "s35", 4, "t2", sleep=4)
        else:
            lds_wait(k, LDS_CNT + 20, 4, "t2", sleep=4)
    k.e("v_and_b32 v12, 7, v1", "v_lshlrev_b32 v12, 3, v12")
    poll(k, 12, 38, 14, "r", sleep=int(os.environ.get("RSP", "3")))
    k.e("v_mov_b32 v13, 1", "ds_write_b32 v10, v13", "s_waitcnt lgkmcnt(0)", "s_branch mega_fin")
    k.label("mega_red")
    k.e(
        "s_lshl_b32 s37, s36, 2", "s_lshl_b32 s39, s35, 1", "s_add_u32 s37, s37, s39",
        "s_lshl_b32 s39, s36, 1", "s_add_u32 s39, s39, 12", "s_cmp_eq_u32 s35, 2", "s_cselect_b32 s37, s39, s37",
        "s_lshr_b32 s39, s46, 2", "s_add_u32 s37, s37, s39",
        "s_and_b32 s39, s46, 3",
        "s_mul_i32 s34, s39, 18432", "s_lshl_b32 s41, s37, 10", "s_add_u32 s34, s34, s41")
    k.e("s_sub_u32 s41, s37, 12", "s_lshl_b32 s41, s41, 11", "s_cmp_ge_u32 s37, 15", "s_movk_i32 s42, 12288",
        f"s_cselect_b32 s42, {12288 + 18432 - 6144}, s42", "s_add_u32 s41, s41, s42", "s_lshr_b32 s42, s39, 1", "s_mul_i32 s42, s42, 36864",
        "s_add_u32 s41, s41, s42", "s_and_b32 s42, s39, 1", "s_lshl_b32 s42, s42, 3", "s_add_u32 s41, s41, s42",
        "s_mov_b32 s43, s35", "s_cmp_eq_u32 s35, 2", "s_cselect_b32 s34, s41, s34", "s_cselect_b32 s42, 1024, 8",
        "s_add_u32 s33, s33, s34", "s_add_u32 s42, s42, s33")
    k.e("s_lshl_b32 s35, s37, 2", "s_add_u32 s35, s35, s39", "s_lshl_b32 s35, s35, 10", "v_add_u32 v13, s35, v11",
        f"ds_read_b128 {r4(WR+32)}, v13")
    srd(k, 20, 14, XB)
    k.e("s_lshl_b32 s35, s47, 2", "s_add_u32 s35, s35, s39", "s_mul_i32 s35, s35, 18432", "s_lshl_b32 s37, s37, 6",
        "s_add_u32 s37, s37, s35", "s_movk_i32 s35, 1152", "v_mul_u32_u24 v9, s35, v2", "v_lshl_add_u32 v9, v3, 4, v9")
    k.e("v_mov_b32 v5, 0x00003f80", "v_mov_b32 v6, 0x3f800000")
    for i in range(8):
        k.e(f"v_mov_b32 v{ACC+i}, 0")
    k.e(f"s_mov_b32 s3, {SPIN*8}")
    k.label("mega_lspin")
    k.e("ds_read_b32 v14, v10", "s_waitcnt lgkmcnt(0)", "v_readfirstlane_b32 s38, v14", "s_cmp_lg_u32 s38, 0", "s_cbranch_scc1 mega_lspind",
        "s_sleep 2", "s_sub_u32 s3, s3, 1", "s_cbranch_scc0 mega_lspin")
    k.label("mega_lspind")
    stt(k, 5)
    k.e("s_cmp_eq_u32 s43, 2", "s_cbranch_scc1 mega_ld_s")
    for j in range(8):
        k.e(f"buffer_load_dwordx4 {r4(WR+4*j)}, v11, s[16:19], s33 offen sc1", f"s_add_u32 s33, s33, {PSX}")
    k.e("s_branch mega_ld_o")
    k.label("mega_ld_s")
    for j in range(8):
        k.e(f"buffer_load_dwordx2 v[{WR+4*j}:{WR+4*j+1}], v11, s[16:19], s33 offen sc1", f"s_add_u32 s33, s33, {PSX}")
    for j in range(8):
        k.e(f"buffer_load_dwordx2 v[{WR+4*j+2}:{WR+4*j+3}], v11, s[16:19], s42 offen sc1", f"s_add_u32 s42, s42, {PSX}")
    k.label("mega_ld_o")
    k.e("s_waitcnt lgkmcnt(0)")
    for i in range(4):
        k.e(f"v_lshlrev_b32 v{ACC+8+2*i}, 16, v{WR+32+i}", f"v_and_b32 v{ACC+9+2*i}, 0xffff0000, v{WR+32+i}")
    for j in range(8):
        k.e(f"s_waitcnt vmcnt({7-j})")
        for i in range(4):
            k.e(f"v_dot2c_f32_bf16 v{ACC+2*i}, v{WR+4*j+i}, v5", f"v_dot2c_f32_bf16 v{ACC+2*i+1}, v{WR+4*j+i}, v6")
    stt(k, 6)
    k.e("s_cmp_eq_u32 s43, 2", "s_cbranch_scc1 mega_red_s")
    for i in range(8):
        k.e(f"v_fma_f32 v{ACC+8+i}, v{ACC+i}, v8, v{ACC+8+i}")
    k.e("s_branch mega_red_o")
    k.label("mega_red_s")
    for i in range(8):
        k.e(f"v_fma_f32 v{ACC+8+i}, v{ACC+(i//2)+4*(i%2)}, v8, v{ACC+8+i}")
    k.label("mega_red_o")
    for i in range(4):
        k.e(f"v_cvt_pk_bf16_f32 v{XB0+i}, v{ACC+8+2*i}, v{ACC+9+2*i}")
    k.e(f"buffer_store_dwordx4 {r4(XB0)}, v9, s[20:23], s37 offen")
    k.label("mega_fin")
    k.stamp_flush(1, 10, 16, 30, wpw=16)
    if os.environ.get("DBGOUT"):
        k.e("s_cmp_lg_u32 s2, 5", "s_cbranch_scc1 mega_end", "s_cmp_lg_u32 s30, 8", "s_cbranch_scc1 mega_end",
            "s_load_dwordx2 s[4:5], s[0:1], 72", "s_waitcnt lgkmcnt(0)", "s_nop 0")
        srd(k, 20, 4, 256)
        for i in range(1, 9):
            k.e(f"s_sub_u32 s34, s{81+2*i}, s81", "v_mov_b32 v4, s34", f"buffer_store_dword v4, v0, s[20:23], 0 offen offset:{4*i-4}",
                f"s_sub_u32 s34, s{80+2*i}, s80", "v_mov_b32 v5, s34", f"buffer_store_dword v5, v0, s[20:23], 0 offen offset:{4*i+28}", "s_waitcnt vmcnt(0)")
    k.e("s_endpgm")
    k.label("ffn_ep1")
    if os.environ.get("PF3"):
        k.e("v_min_u32 v0, 13, v1", "v_lshlrev_b32 v0, 7, v0", "s_mul_i32 s36, s47, 1728", "s_and_b32 s36, s36, 0xffffff80", f"s_add_u32 s36, s36, {18*T*1024}",
            "buffer_load_dword v0, v0, s[20:23], s36 offen sc1")
    k.e("s_waitcnt lgkmcnt(0)")
    k.e("s_lshl_b32 s34, s30, 12", f"s_add_u32 s34, s34, {LDS_H}", "v_add_u32 v12, s34, v11")
    k.e("s_lshr_b32 s34, s30, 1", "s_lshl_b32 s34, s34, 12", "s_and_b32 s35, s30, 1", "s_lshl_b32 s35, s35, 3",
        "s_add_u32 s34, s34, s35", f"s_add_u32 s34, s34, {LDS_H + 49152}", "v_add_u32 v13, s34, v11")
    for mb in range(4):
        d = XB0 + 4 * mb
        a, b = acc(0, mb), acc(1, mb)
        for i in range(4):
            k.e(f"v_cvt_pk_bf16_f32 v{d+i}, v{a+i}, v{b+i}")
        for i in range(4):
            k.e(f"v_pk_max_i16 v{d+i}, v{d+i}, 0")
        k.e(f"ds_write_b128 v12, {r4(d)} offset:{mb*1024}")
    for mb in range(4):
        a = acc(2, mb)
        d = XB0 + 16 + 2 * mb
        k.e(f"v_cvt_pk_bf16_f32 v{d}, v{a}, v{a+1}", f"v_cvt_pk_bf16_f32 v{d+1}, v{a+2}, v{a+3}",
            f"v_pk_max_i16 v{d}, v{d}, 0", f"v_pk_max_i16 v{d+1}, v{d+1}, 0",
            f"ds_write_b64 v13, v[{d}:{d+1}] offset:{mb*1024}")
    for r in range(ACC, ACC + 16 * T):
        k.e(f"v_mov_b32 v{r}, 0")
    if os.environ.get("NOPRIO"):
        k.e("s_branch ffn_pr2")
    k.e("s_cmp_lt_u32 s30, 4", "s_cbranch_scc0 ffn_pr1", "s_setprio 2")
    k.label("ffn_pr1")
    k.e("s_and_b32 s34, s30, 12", "s_cmp_eq_u32 s34, 4", "s_cbranch_scc0 ffn_pr2", "s_setprio 1")
    k.label("ffn_pr2")
    k.e("s_waitcnt lgkmcnt(0)", "s_barrier")
    stb(k, 7)
    k.e("s_branch ffn_start")


def tr_addr(k, base0, base1, stride, extra_sgpr=None):
    k.e("v_lshrrev_b32 v32, 2, v2",
        "v_and_b32 v33, 1, v3", "v_lshlrev_b32 v33, 2, v33", "v_add_u32 v32, v32, v33",
        "v_lshl_add_u32 v32, v3, 3, v32", "v_xor_b32 v33, 4, v32", f"s_movk_i32 s40, {stride}",
        "v_and_b32 v34, 3, v2", "v_lshlrev_b32 v34, 3, v34", f"v_add_u32 v34, {base0}, v34")
    if extra_sgpr is not None:
        k.e(f"v_add_u32 v34, s{extra_sgpr}, v34")
    k.e("v_mad_u32_u24 v28, v32, s40, v34", "v_mad_u32_u24 v29, v33, s40, v34")
    if base1 is not None:
        k.e(f"v_add_u32 v30, {base1 - base0}, v28", f"v_add_u32 v31, {base1 - base0}, v29")


def x_read_addr(k, v, slot_sgpr):
    k.e(f"v_lshrrev_b32 v{v}, 2, v2", f"v_sub_u32 v{v}, 4, v{v}", f"v_and_b32 v{v}, 3, v{v}", f"v_xor_b32 v{v}, v{v}, v3",
        f"v_lshlrev_b32 v{v}, 4, v{v}", f"v_lshl_add_u32 v{v}, v2, 6, v{v}")
    if slot_sgpr is None:
        k.e(f"v_add_u32 v{v}, {A_X}, v{v}")
    else:
        k.e(f"v_add_u32 v{v}, s{slot_sgpr}, v{v}")


def get_nonce(k):
    k.e(f"v_mov_b32 v12, {LDS_NON}", "ds_read_b64 v[14:15], v12", "s_waitcnt lgkmcnt(0)",
        "v_readfirstlane_b32 s66, v14", "v_readfirstlane_b32 s67, v15")


def wq_rd(k, t, s, wf, b, par=False):
    ss = 4 * s if par else s
    a0, a1 = (28, 29) if ss < 8 else (30, 31)
    off = (ss if ss < 8 else ss - 8) * 5120 + 32 * t
    k.e(f"ds_read_b64_tr_b16 v[{wf+4*b}:{wf+4*b+1}], v{a0} offset:{off}",
        f"ds_read_b64_tr_b16 v[{wf+4*b+2}:{wf+4*b+3}], v{a1} offset:{off}")


QCH = [(0, 8), (8, 12), (12, 18)]


def a_qwave(k):
    k.e("; ==== LN1 + Q projection (waves 0..3), LN folded into the epilogue")
    k.e("s_setprio 2")
    k.e("s_sub_u32 s34, s30, s29", "s_and_b32 s34, s34, 3", "s_mul_i32 s43, s34, 18432", f"s_add_u32 s43, s43, {A_X}",
        "s_lshl_b32 s35, s28, 2", "s_add_u32 s35, s35, s30", "s_mul_i32 s35, s35, 18432", "s_lshl_b32 s36, s48, 6")
    k.e("v_lshrrev_b32 v5, 2, v1", "v_sub_u32 v6, 4, v3", "v_xor_b32 v6, v6, v1", "v_and_b32 v6, 3, v6",
        "s_movk_i32 s41, 1152", "v_mul_u32_u24 v5, s41, v5", "v_lshl_add_u32 v4, v6, 4, v5", "v_add_u32 v4, s35, v4")
    NOB0 = os.environ.get("NOB0")
    if not NOB0:
        k.e("s_cmp_eq_u32 s34, 0", "s_cbranch_scc1 a_q_first", "s_barrier")
    else:
        k.e("s_cmp_lg_u32 s34, 0", "s_cbranch_scc1 a_q_first", "s_setprio 3")
    k.label("a_q_first")
    for s in range(18):
        k.e(f"s_add_u32 m0, s43, {s*1024}", "s_nop 0", "buffer_load_dwordx4 v4, s[20:23], s36 offen lds",
            "s_add_u32 s36, s36, 64", "s_cmp_eq_u32 s36, s41", "s_cselect_b32 s36, 0, s36")
    if not NOB0:
        k.e("s_cmp_lg_u32 s34, 0", "s_cbranch_scc1 a_q_second", "s_barrier")
    else:
        k.e("s_setprio 2", "s_barrier")
    k.label("a_q_second")
    tr_addr(k, A_WQ0, A_WQ1, 160)
    x_read_addr(k, 35, 43)
    for r in range(QACC, QACC + 20):
        k.e(f"v_mov_b32 v{r}, 0")
    for b in QACS:
        for i in range(4):
            k.e(f"v_mov_b32 v{b+i}, 0")
    for i in range(4):
        k.e(f"v_mov_b32 v{QONES+i}, 0x3f803f80")
    k.e("v_mov_b32 v6, 0", "v_mov_b32 v7, 0")
    for part in range(3):
        k.e(f"s_waitcnt vmcnt({18 - 6*(part+1)})")
        if part == 2:
            k.e("s_cmp_lg_u32 s34, 0", "s_cbranch_scc1 a_q_nosig")
            lds_signal(k, LDS_KVI)
            k.label("a_q_nosig")
        for s in range(6 * part, 6 * part + 6):
            k.e(f"ds_read_b128 {r4(QX0+4*s)}, v35 offset:{1024*s}")
        if part:
            k.e("s_waitcnt lgkmcnt(6)")
            for r in range(QX0 + 24 * (part - 1), QX0 + 24 * part):
                k.e(f"v_dot2c_f32_bf16 v6, v{r}, v{QONES}", f"v_dot2c_f32_bf16 v7, v{r}, v{r}")
    k.e("s_waitcnt lgkmcnt(0)")
    lds_signal(k, LDS_XC)
    k.stamp(1)
    for r in range(QX0 + 48, QX0 + 72):
        k.e(f"v_dot2c_f32_bf16 v6, v{r}, v{QONES}", f"v_dot2c_f32_bf16 v7, v{r}, v{r}")
    reduce_g_add(k, [6, 7], [32, 33])
    k.e(f"v_mul_f32 v6, {hex(f2u(1/576))}, v6", f"v_mul_f32 v7, {hex(f2u(1/576))}, v7",
        "v_fma_f32 v7, -v6, v6, v7", "v_max_f32 v7, 0, v7", f"v_add_f32 v7, {hex(f2u(1e-5))}, v7", "v_rsq_f32 v7, v7")
    k.e("s_cmp_lg_u32 s34, 0", "s_cbranch_scc1 a_q_nost")
    k.e("v_lshlrev_b32 v32, 2, v2", f"v_add_u32 v32, {A_ST}, v32", "ds_write_b32 v32, v6", "ds_write_b32 v32, v7 offset:64",
        "s_waitcnt lgkmcnt(0)")
    lds_signal(k, LDS_KVS)
    k.label("a_q_nost")
    k.e(f"v_mul_f32 v34, {hex(f2u(QSCALE))}, v7")
    k.e("s_mul_i32 s35, s30, 2304", f"s_add_u32 s35, s35, {LDS_OST}", "v_lshrrev_b32 v35, 1, v3", "v_lshlrev_b32 v35, 8, v35",
        "v_lshl_add_u32 v35, v2, 4, v35", "v_and_b32 v32, 1, v3", "v_lshl_add_u32 v35, v32, 3, v35", "v_add_u32 v35, s35, v35")
    sta(k, 3)
    k.label("a_q_gemm")
    for ci, (s0, s1) in enumerate(QCH):
        k.e("s_cmp_ge_u32 s30, 4", f"s_cbranch_scc1 mega_lwd_q{ci}")
        lds_wait(k, LDS_WQC + 4 * ci, 4, f"q{ci}")
        def rd2(t, s, b):
            a0, a1 = (28, 29) if s < 8 else (30, 31)
            off = (s if s < 8 else s - 8) * 5120 + 32 * t
            return [f"ds_read_b64_tr_b16 v[{QWF+4*b}:{QWF+4*b+1}], v{a0} offset:{off}",
                    f"ds_read_b64_tr_b16 v[{QWF+4*b+2}:{QWF+4*b+3}], v{a1} offset:{off}"]
        roll_gemm2(k, list(range(s0, s1)), rd2,
                   lambda t, s, b: [f"v_mfma_f32_16x16x32_bf16 {r4(QACC+4*t)}, {r4(QWF+4*b)}, {r4(QX0+4*s)}, {r4(QACC+4*t)}",
                                    f"v_mfma_f32_16x16x32_bf16 {r4(QACS[t])}, {r4(QWF+4*b)}, {r4(QONES)}, {r4(QACS[t])}"])
    k.e("s_cmp_ge_u32 s30, 4", "s_cbranch_scc1 a_s_done")
    sta(k, 7)
    k.e("s_setprio 3")
    lds_signal(k, LDS_WDN)
    sta(k, 8)
    for t in range(5):
        a = QACC + 4 * t
        for i in range(4):
            k.e(f"v_fma_f32 v{a+i}, -v6, v{QACS[t]+i}, v{a+i}")
        for i in range(4):
            k.e(f"v_mul_f32 v{a+i}, v34, v{a+i}")
        k.e(f"v_cvt_pk_bf16_f32 v{QWF+2*t}, v{a}, v{a+1}", f"v_cvt_pk_bf16_f32 v{QWF+2*t+1}, v{a+2}, v{a+3}")
        if t == 4:
            k.e(ex(0xffffffff))
        k.e(f"ds_write_b64 v35, v[{QWF+2*t}:{QWF+2*t+1}] offset:{512*t}")
    k.e("s_lshr_b32 s35, s30, 1", "s_lshl_b32 s35, s35, 2", f"s_add_u32 s35, s35, {LDS_QRD}", "v_mov_b32 v12, s35", "v_mov_b32 v13, 1",
        ex(1), "ds_add_u32 v12, v13", ex(-1))


def wkv_rd(k, s, wf):
    for t in range(2):
        off = s * 1536 + 32 * t
        k.e(f"ds_read_b64_tr_b16 v[{wf+4*t}:{wf+4*t+1}], v28 offset:{off}",
            f"ds_read_b64_tr_b16 v[{wf+4*t+2}:{wf+4*t+3}], v29 offset:{off}")


def a_wkv_dma(k):
    k.e("s_cmp_lt_u32 s29, 4", "s_cselect_b32 s20, s70, s72", "s_cselect_b32 s21, s71, s73", f"s_mov_b32 s22, {WKB}", "s_mov_b32 s23, 0x00020000")
    k.e("s_movk_i32 s40, 21846")
    for i in range(3):
        k.e(f"v_add_u32 v32, {64*i}, v1", "v_mul_u32_u24 v33, s40, v32", "v_lshrrev_b32 v33, 16, v33", "v_mul_u32_u24 v34, 3, v33",
            "v_sub_u32 v34, v32, v34", "v_lshlrev_b32 v34, 4, v34", "v_min_u32 v34, 20, v34",
            "v_and_b32 v35, 8, v33", "v_lshrrev_b32 v35, 1, v35", "v_xor_b32 v35, v35, v33", f"v_mad_u32_u24 v{16+i}, v35, 36, v34")
    k.e("s_sub_u32 s34, s30, 4", "s_mul_i32 s34, s34, 3", "s_mul_i32 s43, s34, 3072", "s_lshr_b32 s35, s48, 1", "s_add_u32 s35, s35, s34",
        "s_sub_u32 s36, s35, 9", "s_min_u32 s35, s35, s36", "s_mul_i32 s35, s35, 2304")
    for g in range(3):
        for i in range(3):
            k.e(f"s_add_u32 m0, s43, {A_WKV + g*3072 + i*1024}", "s_nop 0", f"buffer_load_dwordx4 v{16+i}, s[20:23], s35 offen lds")
        k.e("s_add_u32 s35, s35, 2304", f"s_cmp_eq_u32 s35, {9*2304}", "s_cselect_b32 s35, 0, s35")


def a_kvwave(k):
    k.e("; ==== K or V projection of 16 rows (wave 4), published to every workgroup")
    k.e("s_setprio 3")
    a_wkv_dma(k)
    k.e("s_barrier")
    tr_addr(k, A_WKV, None, 48)
    x_read_addr(k, 35, None)
    for r in range(QACC, QACC + 8):
        k.e(f"v_mov_b32 v{r}, 0")
    k.e("s_lshr_b32 s41, s28, 1", f"s_mul_i32 s41, s41, {GRP}", f"s_add_u32 s41, s41, {WS_KV}",
        "s_and_b32 s42, s28, 1", "s_lshl_b32 s42, s42, 1", "s_bfe_u32 s43, s29, 0x10001", "s_add_u32 s42, s42, s43",
        "s_and_b32 s43, s29, 1",
        "s_lshl_b32 s49, s28, 7", "s_lshl_b32 s34, s29, 3", "s_add_u32 s49, s49, s34", f"s_add_u32 s49, s49, {FK}")
    k.e("s_waitcnt vmcnt(0)")
    lds_signal(k, LDS_WKI)
    lds_wait(k, LDS_KVI, 3, "kvi")
    k.stamp(1)
    k.e("s_cmp_ge_u32 s29, 4", "s_cbranch_scc1 a_kv_v")
    for isv in (False, True):
        if isv:
            k.label("a_kv_v")

        def rd(s):
            b = s % 3
            k.e(f"ds_read_b128 {r4(QX0+4*b)}, v35 offset:{1024*s}")
            wkv_rd(k, s, QX0 + 12 + 8 * b)
        rd(0)
        rd(1)
        for s in range(18):
            b = s % 3
            if s + 2 < 18:
                rd(s + 2)
            k.e(f"s_waitcnt lgkmcnt({min(10, 5*(17-s))})")
            for t in range(2):
                a, w, x = r4(QACC + 4 * t), r4(QX0 + 12 + 8 * b + 4 * t), r4(QX0 + 4 * b)
                k.e(f"v_mfma_f32_16x16x32_bf16 {a}, {x}, {w}, {a}" if isv else f"v_mfma_f32_16x16x32_bf16 {a}, {w}, {x}, {a}")
        sta(k, 3)
        lds_wait(k, LDS_KVS, 2, "kv" + ("v" if isv else "k"))
        sta(k, 4)
        A = QACC
        if not isv:
            k.e("v_lshlrev_b32 v32, 4, v3", f"v_add_u32 v32, {A_SKV}, v32", "v_lshlrev_b32 v33, 2, v2", f"v_add_u32 v33, {A_ST}, v33",
                "ds_read_b128 v[16:19], v32", "ds_read_b128 v[20:23], v32 offset:64", "ds_read_b32 v6, v33", "ds_read_b32 v7, v33 offset:64")
            k.e("s_lshl_b32 s38, s43, 8", "v_lshlrev_b32 v36, 4, v2", "v_add_u32 v36, s38, v36",
                "v_lshrrev_b32 v37, 1, v3", "v_lshl_add_u32 v37, v37, 9, v36",
                "s_lshl_b32 s38, s42, 10", "s_add_u32 s38, s38, s41",
                "s_lshl_b32 s39, s42, 2", "s_add_u32 s39, s39, s41", f"s_add_u32 s39, s39, {KV_K2}")
            k.e("s_waitcnt lgkmcnt(0)")
            for i in range(8):
                k.e(f"v_fma_f32 v{A+i}, -v6, v{16+i}, v{A+i}")
            for i in range(8):
                k.e(f"v_mul_f32 v{A+i}, v7, v{A+i}")
            k.e(f"v_cvt_pk_bf16_f32 v40, v{A}, v{A+1}", f"v_cvt_pk_bf16_f32 v41, v{A+2}, v{A+3}", f"v_cvt_pk_bf16_f32 v44, v{A+6}, v{A+7}")
            k.e("v_permlane16_swap_b32 v40, v42", "v_permlane16_swap_b32 v41, v43")
            k.e(ex(0x0000ffff0000ffff), "buffer_store_dwordx4 v[40:43], v37, s[16:19], s38 offen sc1",
                ex(0xffff0000), "buffer_store_dword v44, v36, s[16:19], s39 offen sc1", ex(-1))
            k.e("s_or_b32 s39, s42, s28", "s_cmp_lg_u32 s39, 0", "s_cbranch_scc1 a_kv_nod", f"s_add_u32 s38, s38, {IMG}",
                ex(0x0000ffff0000ffff), "buffer_store_dwordx4 v[40:43], v37, s[16:19], s38 offen sc1", ex(-1))
            k.label("a_kv_nod")
            k.e("s_or_b32 s38, s42, s43", "s_cmp_lg_u32 s38, 0", "s_cbranch_scc1 a_kv_noc")
            k.e("v_mov_b32 v24, 0x3f803f80", "v_mov_b32 v25, 0x00003f80", "v_mov_b32 v26, 0x3f803f80", "v_mov_b32 v27, 0x00003f80",
                "v_mov_b32 v12, 0", f"s_add_u32 s38, s41, {KV_K2 + 512}", ex(1), "buffer_store_dwordx4 v[24:27], v12, s[16:19], s38 offen sc1", ex(-1))
            k.label("a_kv_noc")
            k.e(f"v_mul_f32 v45, v{A+6}, v{A+6}", f"v_fmac_f32 v45, v{A+7}, v{A+7}",
                "v_cmp_eq_u32 vcc, 1, v3", "v_cndmask_b32 v45, 0, v45, vcc")
            for i in range(4):
                k.e(f"v_fmac_f32 v45, v{A+i}, v{A+i}")
            reduce_g_add(k, [45], [46])
            for sh in (8, 4, 2, 1):
                k.e(f"v_max_f32_dpp v45, v45, v45 row_ror:{sh} row_mask:0xf bank_mask:0xf")
            k.e("s_branch a_kv_pub")
        else:
            k.e("v_lshlrev_b32 v32, 2, v2", f"v_add_u32 v32, {A_SKV}, v32", "v_lshlrev_b32 v33, 4, v3", f"v_add_u32 v33, {A_ST}, v33",
                "ds_read_b32 v6, v32", "ds_read_b32 v7, v32 offset:64", "ds_read_b128 v[16:19], v33", "ds_read_b128 v[20:23], v33 offset:64")
            k.e("s_mul_i32 s38, s42, 1216", "s_mul_i32 s39, s43, 608", "s_add_u32 s38, s38, s39", "s_add_u32 s38, s38, s41",
                f"s_add_u32 s38, s38, {KV_V}", "s_movk_i32 s39, 304", "v_and_b32 v36, 1, v3", "v_mul_u32_u24 v37, s39, v36",
                "v_lshl_add_u32 v37, v2, 4, v37", "v_lshrrev_b32 v36, 1, v3", "s_movk_i32 s39, 160", "v_mad_u32_u24 v37, v36, s39, v37")
            k.e("s_waitcnt lgkmcnt(0)")
            for t in range(2):
                for i in range(4):
                    k.e(f"v_fma_f32 v{A+4*t+i}, -v{16+i}, v{6+t}, v{A+4*t+i}")
                for i in range(4):
                    k.e(f"v_mul_f32 v{A+4*t+i}, v{20+i}, v{A+4*t+i}")
            for i in range(4):
                k.e(f"v_cvt_pk_bf16_f32 v{40+i}, v{A+2*i}, v{A+2*i+1}")
            k.e("v_mov_b32 v39, 0x3f803f80", "v_cmp_eq_u32 vcc, 8, v2", "v_cndmask_b32 v42, v42, v39, vcc", "v_cndmask_b32 v43, v43, v39, vcc")
            k.e("v_permlane32_swap_b32 v40, v42", "v_permlane32_swap_b32 v41, v43")
            k.e(ex(0x01c001c0ffffffff), "buffer_store_dwordx4 v[40:43], v37, s[16:19], s38 offen sc1", ex(-1), "v_mov_b32 v45, 0")
    k.label("a_kv_pub")
    sta(k, 5)
    lds_wait(k, LDS_NON, 1, "non")
    get_nonce(k)
    k.e("v_mov_b32 v44, s66", "v_mov_b32 v12, 0", "s_waitcnt vmcnt(0)")
    sta(k, 6)
    k.e(ex(1), "buffer_store_dwordx2 v[44:45], v12, s[16:19], s49 offen sc1", ex(-1))
    k.e("s_waitcnt vmcnt(0)")
    lds_signal(k, LDS_KVS)
    sta(k, 7)
    sta(k, 8)


def a_swave(k):
    k.e("s_setprio 3")
    k.e("s_cmp_eq_u32 s30, 7", "s_cbranch_scc1 a_s_7")
    a_wkv_dma(k)
    k.e("s_barrier", "s_branch a_s_c")
    k.label("a_s_7")
    k.e("s_mul_i32 s34, s47, 1536", "v_min_u32 v12, 11, v1", "v_lshlrev_b32 v12, 7, v12", "v_add_u32 v12, s34, v12",
        f"v_min_u32 v12, CODE_BYTES - 4, v12", "global_load_dword v18, v12, s[62:63]")
    srd(k, 56, 74, 256)
    k.e("v_mov_b32 v10, 0")
    k.e("v_min_u32 v12, 35, v1", "v_lshlrev_b32 v12, 2, v12", f"v_add_u32 v12, {LDS_RDY}, v12", "v_mov_b32 v13, 0",
        "ds_write_b32 v12, v13", "v_lshlrev_b32 v12, 2, v1", f"v_add_u32 v12, {A_SQ}, v12", "ds_write_b32 v12, v13", "ds_write_b32 v12, v13 offset:64",
        "s_waitcnt lgkmcnt(0)")
    if os.environ.get("TOUCH", "0") == "1":
        k.e("buffer_load_dword v18, v10, s[56:59], 0 offen sc1", f"s_mov_b32 s34, {FK}", "buffer_load_dword v19, v10, s[16:19], s34 offen sc1",
            f"s_mov_b32 s34, {WS_KV}", "buffer_load_dword v20, v10, s[16:19], s34 offen sc1")
    k.e("s_barrier")
    sta(k, 4)
    sta(k, 5)
    sta(k, 6)
    sta(k, 7)
    sta(k, 8)
    k.e(f"s_mov_b32 s3, {SPIN}")
    k.label("a_s_np")
    k.e("s_sleep 4", "buffer_load_dwordx2 v[14:15], v10, s[56:59], 0 offen sc1", "s_sleep 4", "buffer_load_dwordx2 v[16:17], v10, s[56:59], 0 offen sc1",
        "s_waitcnt vmcnt(1)", "v_readfirstlane_b32 s39, v14", "s_cmp_lg_u32 s39, 0", "s_cbranch_scc1 a_s_nd",
        "s_waitcnt vmcnt(0)", "v_mov_b32 v14, v16", "v_mov_b32 v15, v17", "v_readfirstlane_b32 s39, v16", "s_cmp_lg_u32 s39, 0", "s_cbranch_scc1 a_s_nd",
        "s_sub_u32 s3, s3, 1", "s_cbranch_scc0 a_s_np")
    k.label("a_s_nd")
    k.e(f"v_mov_b32 v12, {LDS_NON}", "ds_write_b64 v12, v[14:15]")
    k.label("a_s_c")
    for i in range(4):
        k.e(f"v_mov_b32 v{QONES+i}, 0x3f803f80")
    for r in range(QACC, QACC + 20):
        k.e(f"v_mov_b32 v{r}, 0")
    k.e("s_cmp_lg_u32 s30, 5", "s_cbranch_scc1 a_s_q")
    tr_addr(k, A_WKV, None, 48)
    k.e("s_waitcnt vmcnt(0)")
    lds_signal(k, LDS_KVI)
    lds_signal(k, LDS_WKI)
    lds_wait(k, LDS_WKI, 3, "wki")
    k.stamp(1)
    wkv_rd(k, 0, QX0)
    wkv_rd(k, 1, QX0 + 8)
    for s in range(18):
        if s + 2 < 18:
            wkv_rd(k, s + 2, QX0 + 8 * ((s + 2) % 3))
        k.e(f"s_waitcnt lgkmcnt({min(8, 4*(17-s))})")
        for t in range(2):
            a = r4(QACC + 4 * t)
            k.e(f"v_mfma_f32_16x16x32_bf16 {a}, {r4(QONES)}, {r4(QX0+8*(s%3)+4*t)}, {a}")
    k.e("v_lshlrev_b32 v32, 2, v2", f"v_add_u32 v32, {A_SKV}, v32", f"ds_write_b32 v32, v{QACC}", f"ds_write_b32 v32, v{QACC+4} offset:64",
        "s_waitcnt lgkmcnt(0)")
    lds_signal(k, LDS_KVS)
    k.e("s_branch a_s_done")
    k.label("a_s_q")
    k.e("s_cmp_eq_u32 s30, 7", "s_cbranch_scc1 a_s_nx", "s_waitcnt vmcnt(0)")
    lds_signal(k, LDS_KVI)
    lds_signal(k, LDS_WKI)
    if os.environ.get("DRY", "0") == "1":
        k.stamp(1)
        tr_addr(k, A_WQ0, A_WQ1, 160)
        k.e("s_setprio 0", "s_branch a_q_gemm")
    k.label("a_s_nx")
    k.stamp(1)
    k.label("a_s_done")
    k.e("s_waitcnt vmcnt(0)")


def a_helper(k):
    k.e("; ==== helper waves: wq loader, then K/V gather")
    k.e("s_setprio 1", "s_sub_u32 s31, s30, 8")
    srd(k, 20, 68, WQB)
    if os.environ.get("PFQ", "1") == "1":
        k.e("s_cmp_lg_u32 s31, 0", "s_cbranch_scc1 a_h_nopf",
            "v_min_u32 v12, 20, v1", "v_lshlrev_b32 v12, 7, v12", "s_mul_i32 s34, s2, 2592", "s_and_b32 s34, s34, 0xffffff80",
            "buffer_load_dword v21, v12, s[20:23], s34 offen", ("buffer_load_dword v21, v12, s[20:23], s34 offen offset:64" if os.environ.get("PF64") else ""))
        k.label("a_h_nopf")
    k.e("s_movk_i32 s40, 6554", "s_movk_i32 s41, 1152")
    for i in range(5):
        dma_slot_calc(k, i, 32, 33, 34, 35)
        k.e("v_min_u32 v34, 8, v34", f"v_mul_u32_u24 v{16+i}, s41, v35", f"v_lshl_add_u32 v{16+i}, v34, 4, v{16+i}")
    k.e("s_add_u32 s42, s31, s48", "s_mul_i32 s32, s29, 144", "s_mul_i32 s43, s31, 5120")

    def wdma(base):
        k.e("s_sub_u32 s36, s42, 18", "s_min_u32 s42, s42, s36", "s_mul_i32 s36, s42, 36864", "s_add_u32 s36, s36, s32")
        for i in range(5):
            k.e(f"s_add_u32 m0, s43, {base + i*1024}", "s_nop 0", f"buffer_load_dwordx4 v{16+i}, s[20:23], s36 offen lds")
        k.e("s_add_u32 s42, s42, 4")
    k.e("s_barrier")
    wdma(A_WQ0)
    wdma(A_WQ0 + 20480)
    k.e("s_waitcnt vmcnt(0)")
    lds_signal(k, LDS_WQC)
    sta(k, 3)
    lds_wait(k, LDS_XC, 4, "xc")
    k.e("s_setprio 3")
    k.stamp(1)
    wdma(A_WQ1)
    wdma(A_WQ1 + 20480)
    k.e("s_cmp_ge_u32 s31, 2", "s_cbranch_scc1 a_h_skip")
    wdma(A_WQ1 + 40960)
    k.label("a_h_skip")
    for ci, n in ((1, 5), (2, 0)):
        k.e(f"s_waitcnt vmcnt({n})")
        lds_signal(k, LDS_WQC + 4 * ci)
        sta(k, 3 + ci)
    lds_wait(k, LDS_KVS, 3, "pub")
    get_nonce(k)
    sta(k, 6)
    k.e("v_lshrrev_b32 v10, 3, v1", "v_lshlrev_b32 v10, 7, v10", "v_and_b32 v9, 7, v1", "v_lshl_add_u32 v10, v9, 3, v10",
        "s_lshl_b32 s34, s31, 10", f"s_add_u32 s35, s34, {FK}")
    poll(k, 10, 35, 14, "k", sleep=int(os.environ.get("KSL", "10")), lo_only=True, first=int(os.environ.get("KF", "0")))
    sta(k, 7)
    k.e(f"v_mov_b32 v12, {LDS_KMX}", "ds_max_u32 v12, v15")
    lds_signal(k, LDS_KVR)
    k.e("s_lshr_b32 s35, s2, 3", "s_add_u32 s35, s35, s2", "s_and_b32 s35, s35, 15", f"s_mul_i32 s35, s35, {GRP}", "s_add_u32 s35, s35, s34",
        f"v_add_u32 v10, {WS_KV}, v11")
    lds_wait(k, LDS_KVR, 4, "kvr")
    k.e("s_or_b32 s36, s2, s31", "s_cmp_lg_u32 s36, 0", "s_cbranch_scc1 a_h_noclr")
    srd(k, 56, 74, 256)
    k.e("v_mov_b32 v12, 0", "v_mov_b32 v13, 0", ex(1), "buffer_store_dwordx2 v[12:13], v12, s[56:59], 0 offen sc1", ex(-1))
    k.label("a_h_noclr")
    sta(k, 8)
    kv_dma(k, 0, 7)


def gen_one(name):
    k = Kernel(name, vgprs=168)
    k.e("s_getpc_b64 s[62:63]")
    k.label("mega_pc")
    k.e("s_cmp_ge_u32 s2, 256", "s_cbranch_scc1 mega_end")
    k.e("s_memrealtime s[60:61]")
    k.e("s_load_dwordx2 s[10:11], s[0:1], 0", "s_load_dwordx4 s[68:71], s[0:1], 8", "s_load_dwordx2 s[72:73], s[0:1], 24",
        "s_load_dwordx2 s[8:9], s[0:1], 32", "s_load_dwordx4 s[4:7], s[0:1], 48", "s_load_dwordx2 s[14:15], s[0:1], 64",
        "s_load_dwordx2 s[74:75], s[0:1], 72", "s_load_dwordx2 s[12:13], s[0:1], 80")
    k.stamp(0)
    k.e("v_and_b32 v1, 63, v0", "v_and_b32 v2, 15, v0", "v_bfe_u32 v3, v0, 4, 2", "v_lshrrev_b32 v7, 6, v0",
        "v_lshlrev_b32 v11, 4, v1", "v_readfirstlane_b32 s30, v7")
    k.e("s_and_b32 s46, s2, 7", "s_lshr_b32 s47, s2, 3", "s_and_b32 s28, s47, 24", "s_add_u32 s28, s28, s46", "s_and_b32 s29, s47, 7",
        "s_lshr_b32 s48, s47, 3", "s_lshl_b32 s48, s48, 1", "s_add_u32 s48, s48, s29", "s_sub_u32 s34, s48, 9", "s_min_u32 s48, s48, s34",
        "s_lshl_b32 s48, s48, 1")
    k.e("s_xor_b32 s34, s30, 7", "s_or_b32 s34, s34, s2", "s_waitcnt lgkmcnt(0)", "s_cbranch_scc1 a_s_nn")
    k.e("s_or_b32 s60, s60, 1", "v_mov_b32 v14, s60", "v_mov_b32 v15, s61", "v_mov_b32 v10, 0", ex(1),
        "global_store_dwordx2 v10, v[14:15], s[74:75] sc1", ex(-1))
    k.label("a_s_nn")
    srd(k, 16, 12, WS_END)
    srd(k, 20, 10, XB)
    srd(k, 24, 8, WQB)
    k.e("s_cmp_ge_u32 s30, 8", "s_cbranch_scc1 mega_helper")
    k.e("s_cmp_ge_u32 s30, 5", "s_cbranch_scc1 a_sw", "s_cmp_eq_u32 s30, 4", "s_cbranch_scc1 a_kvw")
    a_qwave(k)
    k.e("s_branch a_done")
    k.label("a_kvw")
    a_kvwave(k)
    k.e("s_branch a_s_done")
    k.label("a_sw")
    a_swave(k)
    k.label("a_done")
    k.e("s_setprio 3")
    k.e("s_mov_b32 s52, 0")
    attention(k)
    k.e("s_cmp_lg_u32 s52, 0", "s_cbranch_scc1 mega_ringed")
    ffn_ring_start(k)
    k.label("mega_ringed")
    lds_wait(k, LDS_ORD, 4, "ord2", sleep=4)
    if os.environ.get("PF1", "1") == "1":
        k.e("s_cmp_ge_u32 s30, 2", "s_cbranch_scc1 mega_nopf1",
            "s_mul_i32 s36, s30, 54", "v_min_u32 v12, 53, v1", "v_add_u32 v12, s36, v12", "s_movk_i32 s36, 7282", "v_mul_u32_u24 v13, s36, v12",
            "v_lshrrev_b32 v13, 16, v13", "v_mul_u32_u24 v14, 9, v13", "v_sub_u32 v12, v12, v14", "v_lshlrev_b32 v12, 7, v12",
            f"s_mov_b32 s36, {STREAM}", "v_mad_u32_u24 v12, v13, s36, v12",
            f"s_mul_i32 s36, s46, {1296*1024}", "s_mul_i32 s37, s47, 1152", "s_add_u32 s36, s36, s37", f"s_add_u32 s36, s36, {WS_W + 6*T*1024}",
            "buffer_load_dword v0, v12, s[16:19], s36 offen sc1", ("buffer_load_dword v0, v12, s[16:19], s36 offen offset:64 sc1" if os.environ.get("PF64") else ""))
        k.label("mega_nopf1")
    for t in range(T):
        k.e(wload(D - 1, t))
    k.e("s_waitcnt vmcnt(0)")
    stb(k, 4)
    k.e("s_branch ffn_join")
    k.label("mega_helper")
    a_helper(k)
    helper_pack(k)
    oproj(k)
    ffn(k)
    k.label("mega_end")
    k.e("s_endpgm", ".set CODE_BYTES, mega_end - mega_pc")
    return k
```

```python
import os
from asmlib import Kernel
from layout import *
from k_small import f2u, srd, ex, reduce_g_add, dma_slot_calc

S0, S1, OA, P, KF, V0, V1, K2F, Q, Q2E, Q2O = 16, 32, 48, 64, 72, 76, 80, 84, 88, 92, 94
T0 = 96
PIN, POUT, PS = 48, 96, 144
LDS_OST = 151808
LDS_RES = 92160
LDS_WO = 0
LDS_H = 73728
LDS_S = 161024
LDS_RDY = 163328
LDS_CNT = 163344
LDS_WQC = 163392
LDS_KVS = LDS_WQC + 12
LDS_KVR = LDS_WQC + 16
LDS_KMX = LDS_WQC + 20
LDS_KVI = LDS_WQC + 24
LDS_XC = LDS_WQC + 28
LDS_WKI = LDS_WQC + 32
LDS_REL = LDS_WQC + 36
LDS_NON = LDS_WQC + 40
LDS_ORD = LDS_WQC + 48
LDS_IMG = LDS_WQC + 52
LDS_MUS = LDS_WQC + 56
LDS_SRD = LDS_WQC + 60
LDS_QRD = LDS_WQC + 64
LDS_WDN = LDS_WQC + 72
LDS_IM0 = LDS_WQC + 76
LDS_MU = LDS_OST
LDS_MEGA = 163488
A_WKV = 0
A_WQ0 = 29696
A_X = 70656
A_WQ1 = A_X + 18432
A_SQ = LDS_S
A_SKV = LDS_S + 320
A_ST = LDS_S + 448
QX0, QACC, QWF, QONES = 48, 120, 140, 36
QACS = [16, 20, 24, 40, 44]
OX0, OACC, OWF = 96, 48, 68
XB0, ACC, WR = 16, 48, 96
D = 6
T = 3
STREAM = 36 * T * 1024
SPIN = 1 << 16
PSX, PSY = 73728, 589824
RX = RST = 0
if os.environ.get("CMP", "0") == "1":
    _d = -WS_FL
    F1, F2, FP, F3, FK = F1 + _d, F2 + _d, FP + _d, F3 + _d, FK + _d
    WS_KV, WS_SP, WS_W = 0x10000, 0x40000, 0x60000
    _R0, _RS = 0xA80000, 10 * 73728 + 4096
    WS_O, WS_H, WS_P, WS_ST = _R0, _R0 + 73728, _R0 + 2 * 73728, _R0 + 10 * 73728
    PSY, RX, RST = _RS, _RS - 73728, _RS - 4096
STA = bool(os.environ.get("STA"))


def sta(k, i):
    if STA:
        k.stamp(i)


STP = bool(os.environ.get("STP"))


def stb(k, i):
    if not STA and not STP and not (STT and i < 7) and not (STO and i > 6):
        k.stamp(i)


STT = bool(os.environ.get("STT"))


def stt(k, i):
    if STT:
        k.stamp(i)


STO = bool(os.environ.get("STO"))


def sto(k, i):
    if STO:
        k.stamp(i)


def stp(k, i):
    if STP:
        k.stamp(i)
WAUX = os.environ.get("WAUX", "sc1")


def r4(b):
    return f"v[{b}:{b+3}]"


def r16(b):
    return f"v[{b}:{b+15}]"


def poll(k, vaddr, soff, vtmp, tag, sleep=2, lo_only=False, first=0):
    lab, done = f"mega_poll_{tag}", f"mega_polld_{tag}"
    k.e(f"s_mov_b32 s3, {SPIN}")
    if first:
        k.e(f"s_sleep {first}")
    k.label(lab)
    k.e(f"s_sleep {sleep}", f"buffer_load_dwordx2 v[{vtmp}:{vtmp+1}], v{vaddr}, s[16:19], s{soff} offen sc1", "s_waitcnt vmcnt(0)")
    if lo_only:
        k.e(f"v_cmp_eq_u32 vcc, s66, v{vtmp}")
    else:
        k.e(f"v_cmp_eq_u64 vcc, s[66:67], v[{vtmp}:{vtmp+1}]")
    k.e("s_cmp_eq_u64 vcc, -1", f"s_cbranch_scc1 {done}", "s_sub_u32 s3, s3, 1", f"s_cbranch_scc0 {lab}")
    k.label(done)


def set_flag(k, soff):
    k.e("v_mov_b32 v12, 0", "v_mov_b32 v14, s66", "v_mov_b32 v15, s67", ex(1),
        f"buffer_store_dwordx2 v[14:15], v12, s[16:19], s{soff} offen sc1", ex(-1))


def lds_signal(k, addr, va=12, vb=13):
    k.e(f"v_mov_b32 v{va}, {addr}", f"v_mov_b32 v{vb}, 1", ex(1), f"ds_add_u32 v{va}, v{vb}", ex(-1))


def lds_wait(k, addr, n, tag, va=12, vb=13, sleep=int(os.environ.get("LWS", "1"))):
    lab, done = f"mega_lw_{tag}", f"mega_lwd_{tag}"
    k.e(f"v_mov_b32 v{va}, {addr}", f"s_mov_b32 s3, {SPIN*8}")
    k.label(lab)
    k.e(f"ds_read_b32 v{vb}, v{va}", "s_waitcnt lgkmcnt(0)", f"v_readfirstlane_b32 s39, v{vb}", f"s_cmp_ge_u32 s39, {n}",
        f"s_cbranch_scc1 {done}", f"s_sleep {sleep}", "s_sub_u32 s3, s3, 1", f"s_cbranch_scc0 {lab}")
    k.label(done)


def arrive(k, cnt, n, soff, tag, cnt_sgpr=None):
    if cnt_sgpr is None:
        k.e(f"v_mov_b32 v12, {LDS_CNT + 4*cnt}")
    else:
        k.e(f"v_mov_b32 v12, s{cnt_sgpr}")
    k.e("v_mov_b32 v13, 1", ex(1), "ds_add_rtn_u32 v14, v12, v13", ex(-1), "s_waitcnt lgkmcnt(0)",
        "v_readfirstlane_b32 s3, v14", f"s_cmp_lg_u32 s3, {n-1}", f"s_cbranch_scc1 mega_arr_{tag}")
    set_flag(k, soff)
    k.label(f"mega_arr_{tag}")


def publish_o(k, tag, pre=None):
    k.e("s_and_b32 s34, s30, 3", "s_lshr_b32 s35, s30, 2", "s_mul_i32 s36, s34, 2304", "s_mul_i32 s37, s35, 768",
        "s_add_u32 s36, s36, s37", f"s_add_u32 s36, s36, {LDS_OST}", "v_add_u32 v12, s36, v11",
        f"ds_read_b128 {r4(4)}, v12")
    k.e("s_lshl_b32 s36, s28, 2", "s_add_u32 s36, s36, s34", "s_mul_i32 s38, s36, 18432", "s_mul_i32 s39, s29, 2304",
        "s_add_u32 s38, s38, s39", "s_add_u32 s38, s38, s37", f"s_add_u32 s38, s38, {WS_O}", f"s_mul_i32 s39, s28, {RX}", "s_add_u32 s38, s38, s39")
    k.e("s_lshl_b32 s36, s28, 7", "s_lshl_b32 s39, s29, 3", "s_add_u32 s36, s36, s39", f"s_add_u32 s36, s36, {F1}")
    k.e("s_waitcnt lgkmcnt(0)", ex((1 << 48) - 1), f"buffer_store_dwordx4 {r4(4)}, v11, s[16:19], s38 offen sc1", ex(-1),
        "s_waitcnt vmcnt(0)")
    arrive(k, 1, 12, 36, tag)
    if pre:
        pre(k)


def attention(k):
    k.e("; ==== attention (waves 0..7; one (head, 32-query) unit each). S^T = K.Q^T - M comes straight out of the MFMAs:")
    k.e("v_and_b32 v2, 31, v1", "v_lshrrev_b32 v3, 5, v1")
    k.e("s_lshr_b32 s35, s30, 2", "s_mul_i32 s35, s35, 4608", f"s_add_u32 s35, s35, {LDS_OST}", "s_movk_i32 s36, 2304",
        "v_lshrrev_b32 v8, 4, v2", "v_mul_u32_u24 v8, s36, v8", "v_and_b32 v9, 15, v2", "v_lshl_add_u32 v8, v9, 4, v8",
        "v_add_u32 v8, s35, v8", "v_lshl_add_u32 v9, v3, 8, v8", "s_and_b32 s37, s30, 3", "s_mul_i32 s37, s37, 18")
    for i in range(4):
        k.e(f"s_add_u32 s38, s37, {2*i}", "s_lshr_b32 s39, s38, 3", "s_lshl_b32 s39, s39, 8", "s_and_b32 s38, s38, 7",
            "s_lshl_b32 s38, s38, 1", "s_add_u32 s38, s38, s39", f"v_add_u32 v{Q+i}, s38, v9")
        if i == 0:
            k.e(f"v_add_u32 v{T0}, s38, v8")
    k.e(f"v_mov_b32 v{T0+2}, {LDS_KMX}")
    k.e("v_mov_b32 v12, v11")
    k.e("v_cmp_eq_u32 vcc, 28, v2", "v_cndmask_b32 v13, v2, 18, vcc",
        "v_cmp_lt_u32 vcc, 18, v13", "v_mov_b32 v14, 0x10000", "v_cndmask_b32 v13, v13, v14, vcc",
        "s_movk_i32 s40, 304", "v_mul_u32_u24 v14, s40, v3", "v_lshl_add_u32 v13, v13, 4, v14", f"v_add_u32 v13, {KV_V}, v13")
    k.e("v_min_u32 v14, 32, v1", "v_lshlrev_b32 v14, 4, v14", f"v_add_u32 v14, {KV_K2}, v14")
    k.e("v_cmp_eq_u32 s[44:45], 1, v3")
    k.e("s_lshr_b32 s35, s30, 2", "s_lshl_b32 s35, s35, 2", f"s_add_u32 s35, s35, {LDS_QRD}")
    def zero_init():
        for r in list(range(OA, OA + 16)) + list(range(P, P + 8)) + list(range(V1, V1 + 4)):
            k.e(f"v_mov_b32 v{r}, 0")

    def setm():
        k.e(f"v_xor_b32 v{T0+2}, 0x80000000, v{T0+1}",
            f"v_and_b32 v{T0+3}, 0xffff0000, v{T0+2}", f"v_sub_f32 v{T0+2}, v{T0+2}, v{T0+3}",
            f"v_and_b32 v{T0+4}, 0xffff0000, v{T0+2}", f"v_sub_f32 v{T0+2}, v{T0+2}, v{T0+4}",
            f"v_lshrrev_b32 v{T0+3}, 16, v{T0+3}", f"v_or_b32 v{T0+3}, v{T0+3}, v{T0+4}",
            f"v_lshrrev_b32 v{T0+2}, 16, v{T0+2}")
        k.e(f"v_cndmask_b32 v{Q2E}, v{T0}, v{T0+3}, s[44:45]", f"v_cndmask_b32 v{Q2E+1}, 0, v{T0+2}, s[44:45]",
            f"v_cndmask_b32 v{Q2O}, 0, v{T0+3}, s[44:45]", f"v_cndmask_b32 v{Q2O+1}, v{T0}, v{T0+2}, s[44:45]")
    zero_init()
    k.e("v_mov_b32 v4, v12", "v_mov_b32 v5, v13", "v_mov_b32 v6, v14", "s_mov_b32 s32, 0", "s_mov_b32 s31, 2")
    sta(k, 4)
    lds_wait(k, LDS_IM0, 4, "im0", va=T0 + 6, vb=T0 + 7)
    k.e(f"ds_read_b32 v{T0+2}, v{T0+2}", f"v_mov_b32 v{T0+6}, {LDS_NON}", f"ds_read_b64 v[{T0+8}:{T0+9}], v{T0+6}",
        f"ds_read_b128 {r4(KF)}, v4", f"ds_read_b128 {r4(K2F)}, v6", f"ds_read_b128 {r4(V0)}, v5")
    sta(k, 5)
    lds_wait(k, "s35", 2, "qrd", va=T0 + 6, vb=T0 + 7)
    sta(k, 6)
    for i in range(4):
        k.e(f"ds_read_b32 v{Q+i}, v{Q+i}")
    k.e(f"ds_read_b32 v{T0}, v{T0} offset:512", f"v_readfirstlane_b32 s66, v{T0+8}", f"v_readfirstlane_b32 s67, v{T0+9}",
        f"v_mul_f32 v{T0+2}, {hex(f2u(1.02*1.02))}, v{T0+2}", f"v_mov_b32 v{T0+1}, 0", "s_waitcnt lgkmcnt(0)")
    k.e(f"v_cndmask_b32 v{T0}, v{T0}, 0, s[44:45]")
    for r in (Q, Q + 1, Q + 2, Q + 3, T0):
        k.e(f"v_dot2c_f32_bf16 v{T0+1}, v{r}, v{r}")
    k.e(f"v_mfma_f32_32x32x16_bf16 {r16(S0)}, {r4(KF)}, {r4(Q)}, 0", f"ds_read_b128 {r4(KF)}, v4 offset:1024")
    k.e(f"v_mov_b32 v{T0+4}, v{T0+1}", f"v_permlane32_swap_b32 v{T0+1}, v{T0+4}", f"v_add_f32 v{T0+1}, v{T0+1}, v{T0+4}")
    k.e(f"v_mul_f32 v{T0+1}, v{T0+1}, v{T0+2}", f"v_sqrt_f32 v{T0+1}, v{T0+1}")
    setm()
    k.e("s_setprio 2", "s_branch attn_go")
    k.label("attn_setm")
    setm()
    k.e("v_mov_b32 v4, v12", "v_mov_b32 v5, v13", "v_mov_b32 v6, v14")
    k.e("s_cmp_eq_u32 s32, 10", "s_cbranch_scc1 attn_maxpass")
    zero_init()
    k.e("s_mov_b32 s31, 16")
    k.e(f"ds_read_b128 {r4(KF)}, v4", f"ds_read_b128 {r4(K2F)}, v6", f"ds_read_b128 {r4(V0)}, v5", "s_waitcnt lgkmcnt(0)")
    k.e(f"v_mfma_f32_32x32x16_bf16 {r16(S0)}, {r4(KF)}, {r4(Q)}, 0", f"ds_read_b128 {r4(KF)}, v4 offset:1024")
    k.label("attn_go")
    k.e(f"v_mfma_f32_32x32x8_bf16 {r16(S0)}, v[{K2F}:{K2F+1}], v[{Q2E}:{Q2E+1}], {r16(S0)}")
    k.stamp(2)
    k.e("s_waitcnt lgkmcnt(0)", "s_nop 7", "s_nop 3")
    k.e(".p2align 6")
    k.label("attn_loop")
    for tau in range(4):
        cur, nxt = (S0, S1) if tau % 2 == 0 else (S1, S0)
        t1 = (tau + 1) % 4
        koff = (tau + 2) * 1024 if tau < 2 else GRP + (tau - 2) * 1024
        v0off = (tau + 1) * 1216 if tau < 3 else GRP

        def ex_(a, b):
            for i in range(a, b):
                k.e(f"v_exp_f32 v{cur+i}, v{cur+i}")

        def cv(a, b):
            for i in range(a, b):
                k.e(f"v_cvt_pk_bf16_f32 v{P+i}, v{cur+2*i}, v{cur+2*i+1}")
        e1, e2, e3, e4 = eval(os.environ.get("EXS", "(3, 6, 9, 12)"))
        k.e("s_waitcnt lgkmcnt(2)")
        k.e(f"v_mfma_f32_32x32x16_bf16 {r16(nxt)}, {r4(KF)}, {r4(Q)}, 0")
        k.e(f"ds_read_b128 {r4(KF)}, v4 offset:{koff}")
        ex_(0, e1)
        k.e("s_waitcnt lgkmcnt(2)")
        k.e(f"v_mfma_f32_32x32x16_bf16 {r16(OA)}, {r4(V1)}, {r4(P+4)}, {r16(OA)}")
        k.e(f"ds_read_b128 {r4(V1)}, v5 offset:{tau*1216+608}")
        ex_(e1, e2)
        q2 = Q2E if t1 % 2 == 0 else Q2O
        kk = K2F + 2 * (t1 // 2)
        k.e(f"v_mfma_f32_32x32x8_bf16 {r16(nxt)}, v[{kk}:{kk+1}], v[{q2}:{q2+1}], {r16(nxt)}")
        if tau == 2:
            k.e(f"ds_read_b128 {r4(K2F)}, v6 offset:{GRP}")
        ex_(e2, e3)
        cv(0, 4)
        ex_(e3, e4)
        k.e("s_waitcnt lgkmcnt(2)")
        k.e(f"v_mfma_f32_32x32x16_bf16 {r16(OA)}, {r4(V0)}, {r4(P)}, {r16(OA)}")
        k.e(f"ds_read_b128 {r4(V0)}, v5 offset:{v0off}")
        ex_(e4, 16)
        if tau == 3:
            k.e(f"v_add_u32 v4, {GRP}, v4", f"v_add_u32 v5, {GRP}, v5", f"v_add_u32 v6, {GRP}, v6")
            k.e("s_sub_u32 s31, s31, 1", "s_cmp_lg_u32 s31, 0")
        cv(4, 8)
    k.e("s_cbranch_scc1 attn_loop")
    k.e("s_cmp_ge_u32 s32, 4", "s_cbranch_scc1 attn_tail")
    k.e("s_add_u32 s32, s32, 1")
    k.e("s_cmp_eq_u32 s32, 2", "s_cbranch_scc1 attn_ph2", "s_cmp_eq_u32 s32, 3", "s_cbranch_scc1 attn_ph3",
        "s_cmp_eq_u32 s32, 4", "s_cbranch_scc1 attn_ph4")
    lds_wait(k, LDS_IMG, 4, "img", va=T0 + 6, vb=T0 + 7)
    k.e("s_mov_b32 s31, 9", "s_branch attn_loop")
    for ph, cnt, pr in eval(os.environ.get("PHS", "((2, 2, 1), (3, 2, 1), (4, 1, 0))")):
        k.label(f"attn_ph{ph}")
        k.e(f"s_setprio {pr}", f"s_mov_b32 s31, {cnt}")
        if ph == 2:
            k.e(f"v_cndmask_b32 v{T0+5}, v{OA+10}, v{OA+12}, s[44:45]", f"v_cmp_le_f32 vcc, {hex(f2u(2.0**-40))}, v{T0+5}",
                "s_cmp_eq_u64 vcc, -1", "s_cselect_b32 s34, 1, 0x101", f"v_mov_b32 v{T0+6}, {LDS_REL}", f"v_mov_b32 v{T0+7}, s34",
                ex(1), f"ds_add_u32 v{T0+6}, v{T0+7}", ex(-1))
        if ph == 4:
            k.e(f"v_mov_b32 v{T0+6}, {LDS_RDY}", f"ds_read_b32 v{T0+6}, v{T0+6}", "s_waitcnt lgkmcnt(0)",
                f"v_readfirstlane_b32 s52, v{T0+6}", "s_cmp_eq_u32 s52, 0", "s_cbranch_scc1 attn_loop")
            ffn_ring_start(k)
        k.e("s_branch attn_loop")
    k.label("attn_maxpass")
    k.e(f"v_mov_b32 v{T0+1}, 0xff800000", "s_mov_b32 s31, 16")
    k.label("attn_maxloop")
    k.e(f"ds_read_b128 {r4(K2F)}, v6")
    for tau in range(4):
        q2 = Q2E if tau % 2 == 0 else Q2O
        kk = K2F + 2 * (tau // 2)
        k.e(f"ds_read_b128 {r4(KF)}, v4 offset:{tau*1024}", "s_waitcnt lgkmcnt(0)")
        k.e(f"v_mfma_f32_32x32x16_bf16 {r16(S0)}, {r4(KF)}, {r4(Q)}, 0",
            f"v_mfma_f32_32x32x8_bf16 {r16(S0)}, v[{kk}:{kk+1}], v[{q2}:{q2+1}], {r16(S0)}")
        for i in range(8):
            k.e(f"v_max3_f32 v{T0+1}, v{S0+2*i}, v{S0+2*i+1}, v{T0+1}")
    k.e(f"v_add_u32 v4, {GRP}, v4", f"v_add_u32 v6, {GRP}, v6", "s_sub_u32 s31, s31, 1", "s_cmp_lg_u32 s31, 0",
        "s_cbranch_scc1 attn_maxloop")
    k.e(f"v_mov_b32 v{T0+2}, v{T0+1}", f"v_permlane32_swap_b32 v{T0+1}, v{T0+2}", f"v_max_f32 v{T0+1}, v{T0+1}, v{T0+2}")
    k.e("s_mov_b32 s32, 11", "s_branch attn_setm")
    k.label("attn_tail")
    k.e("s_waitcnt lgkmcnt(0)")
    k.e(f"v_mfma_f32_32x32x16_bf16 {r16(OA)}, {r4(V1)}, {r4(P+4)}, {r16(OA)}")
    k.e("s_and_b32 s34, s30, 3", "s_mul_i32 s34, s34, 18", "s_lshr_b32 s35, s30, 2", "s_mul_i32 s35, s35, 4608",
        f"s_add_u32 s35, s35, {LDS_OST}", "s_movk_i32 s36, 2304",
        f"v_lshrrev_b32 v{T0+9}, 4, v2", f"v_mul_u32_u24 v{T0+9}, s36, v{T0+9}", f"v_and_b32 v{T0+8}, 15, v2",
        f"v_lshl_add_u32 v{T0+9}, v{T0+8}, 4, v{T0+9}", f"v_add_u32 v{T0+9}, s35, v{T0+9}")
    k.e(f"v_lshl_add_u32 v{T0+6}, v3, 2, s34", f"v_add_u32 v{T0+7}, 2, v{T0+6}")
    for r in (T0 + 6, T0 + 7):
        k.e(f"v_lshrrev_b32 v{T0+8}, 3, v{r}", f"v_and_b32 v{r}, 7, v{r}", f"v_lshl_add_u32 v{r}, v{r}, 1, v{T0+9}",
            f"v_lshl_add_u32 v{r}, v{T0+8}, 8, v{r}")
    k.e(f"v_cndmask_b32 v{T0+5}, v{OA+10}, v{OA+12}, s[44:45]")
    k.e(f"v_cmp_le_f32 vcc, {hex(f2u(2.0**-40))}, v{T0+5}")
    k.e("s_cmp_eq_u32 s32, 11", "s_cbranch_scc1 attn_fin")
    k.e("s_cmp_eq_u64 vcc, -1", "s_cbranch_scc1 attn_fin")
    k.e("s_mov_b32 s32, 10", f"v_mov_b32 v{T0+1}, 0", "s_branch attn_setm")
    k.label("attn_fin")
    k.e(f"v_rcp_f32 v{T0+5}, v{T0+5}")
    for i in range(10):
        k.e(f"v_mul_f32 v{OA+i}, v{T0+5}, v{OA+i}")
    for i in range(5):
        k.e(f"v_cvt_pk_bf16_f32 v{P+i}, v{OA+2*i}, v{OA+2*i+1}")
    k.e(f"ds_write_b32 v{T0+6}, v{P}", f"ds_write_b32 v{T0+7}, v{P+1}",
        f"ds_write_b32 v{T0+6}, v{P+2} offset:256", f"ds_write_b32 v{T0+7}, v{P+3} offset:256",
        ex(0xffffffff), f"ds_write_b32 v{T0+6}, v{P+4} offset:512", ex(-1))
    k.e("s_waitcnt lgkmcnt(0)", "s_barrier")
    stb(k, 3)
    publish_o(k, "oa")


def kv_dma(k, a, b):
    for i in range(a, b):
        k.e(f"s_add_u32 m0, s34, {i*4096}", f"s_sub_u32 s36, s35, {IMG - 4096}", "buffer_load_dwordx4 v10, s[16:19], s35 offen sc1 lds",
            "s_add_u32 s35, s35, 4096", "s_min_u32 s35, s35, s36")


NB = 7


def roll_gemm(k, steps, rd, mfma, pre=None):
    seq = [(s, t) for s in steps for t in range(5)]
    n = len(seq)
    for i in range(min(NB, n)):
        rd(seq[i][1], seq[i][0], i % NB)
    for i, (s, t) in enumerate(seq):
        ahead = min(NB - 1, n - 1 - i)
        extra = pre(s) if (pre and t == 0) else ""
        k.e(f"s_waitcnt lgkmcnt({2*ahead}){extra}")
        mfma(t, s, i % NB)
        if i + NB < n:
            rd(seq[i + NB][1], seq[i + NB][0], i % NB)


def roll_gemm2(k, steps, rd2, mf2):
    seq = [(s, t) for s in steps for t in range(5)]
    n = len(seq)
    for i in range(min(NB, n)):
        k.e(*rd2(seq[i][1], seq[i][0], i % NB))
    for i, (s, t) in enumerate(seq):
        issued = min(n, NB + max(0, i - 1))
        k.e(f"s_waitcnt lgkmcnt({2*(issued - 1 - i)})")
        m = mf2(t, s, i % NB)
        j = i - 1 + NB
        r = rd2(seq[j][1], seq[j][0], (i - 1) % NB) if (i >= 1 and j < n) else ["", ""]
        k.e(m[0], r[0], m[1], r[1])


def helper_pack(k):
    k.e("; ==== helper waves 8..11: K/V image -> LDS, re-pack W1/W2 slice into MFMA fragment order (+ column sums of W1)")
    def dma(a, b):
        kv_dma(k, a, b)
    k.e("s_waitcnt vmcnt(0)")
    lds_signal(k, LDS_IM0)
    lds_wait(k, LDS_WDN, 4, "wdn")
    dma(7, 37)
    k.e("s_cmp_lg_u32 s31, 0", "s_cbranch_scc1 mega_h_nolast")
    k.e(ex(0xffff))
    dma(37, 38)
    k.e(ex(-1))
    k.label("mega_h_nolast")
    k.e("s_lshl_b32 s34, s31, 6", "v_add_u32 v12, s34, v1", "v_min_u32 v12, 161, v12", "v_lshlrev_b32 v12, 7, v12",
        "s_mul_i32 s34, s47, 20736")
    k.e("s_lshl_b32 s50, s31, 5", "s_add_u32 s50, s50, s47",
        "s_cmp_ge_u32 s50, 54", "s_cselect_b32 s53, 1, 0",
        "s_mul_i32 s51, s53, 54", "s_sub_u32 s51, s50, s51",
        "s_mul_i32 s54, s51, 57", "s_lshr_b32 s54, s54, 10",
        "s_mul_i32 s52, s54, 18", "s_sub_u32 s52, s51, s52",
        "s_cmp_eq_u32 s53, 0",
        "s_cselect_b32 s20, s4, s6", "s_cselect_b32 s21, s5, s7", f"s_mov_b32 s22, {hex(W1B)}", "s_mov_b32 s23, 0x00020000",
        "s_movk_i32 s56, 1152", "s_cselect_b32 s56, 9216, s56",
        "s_movk_i32 s57, 1152", "s_cselect_b32 s57, s57, 663552", "s_mul_i32 s57, s57, s46",
        "s_mul_i32 s58, s54, 192", "s_mul_i32 s58, s58, s56", "s_add_u32 s57, s57, s58",
        "s_lshl_b32 s58, s52, 6", "s_add_u32 s57, s57, s58")
    k.e("s_add_u32 s58, s53, s54", "s_cmp_eq_u32 s58, 3", "s_cselect_b32 s58, 2, 1", "s_cselect_b32 s59, -5, 1",
        "s_mul_i32 s58, s58, s56", "s_mul_i32 s59, s59, s56", "s_mul_i32 s60, s56, 25")
    k.e("v_lshrrev_b32 v2, 4, v1", "v_lshlrev_b32 v2, 3, v2", "v_mul_u32_u24 v15, s56, v2", "v_and_b32 v3, 15, v1",
        "v_lshl_add_u32 v15, v3, 2, v15", "v_lshlrev_b32 v8, 2, v3",
        "s_mov_b32 s64, 0x05040100", "s_mov_b32 s65, 0x07060302")
    k.e(f"s_mul_i32 s62, s52, {STREAM}", f"s_mul_i32 s63, s52, {2*STREAM}", f"s_sub_u32 s63, s63, {24*STREAM - 2048}",
        "s_cmp_lt_u32 s52, 12", "s_cselect_b32 s62, s62, s63", "s_movk_i32 s61, 1024", f"s_cselect_b32 s61, s61, {STREAM}",
        "s_mul_i32 s63, s53, 3", "s_add_u32 s63, s63, s54", f"s_mul_i32 s63, s63, {6*3072}", "s_add_u32 s62, s62, s63",
        f"s_mul_i32 s63, s46, {1296*1024}", "s_add_u32 s62, s62, s63", f"s_add_u32 s62, s62, {WS_W}",
        "s_add_u32 s61, s61, s62")
    for i in range(4):
        k.e(f"v_mov_b32 v{PS+8+i}, 0x3f803f80")
    k.e("s_waitcnt vmcnt(0)")
    lds_signal(k, LDS_IMG, va=9, vb=10)
    stp(k, 3)
    k.e("buffer_load_dword v13, v12, s[24:27], s34 offen", ("buffer_load_dword v13, v12, s[24:27], s34 offen offset:64" if os.environ.get("PF64") else ""))
    k.e("s_cmp_ge_u32 s50, 108", "s_cbranch_scc1 mega_h_nounit")
    for ss in range(6):
        for jj in range(8):
            k.e(f"buffer_load_dword v{PIN+8*ss+jj}, v15, s[20:23], s57 offen {os.environ.get('PKL', '')}",
                f"s_add_u32 s57, s57, s{60 if jj == 7 else (59 if jj == 3 else 58)}")
    stp(k, 4)
    for ss in range(6):
        k.e(f"s_waitcnt vmcnt({40 - 8*ss + 2*ss})")
        if ss in (0, 5):
            stp(k, 5 if ss == 0 else 6)
        for e in range(2):
            for q in range(4):
                k.e(f"v_perm_b32 v{POUT+8*ss+4*e+q}, v{PIN+8*ss+2*q+1}, v{PIN+8*ss+2*q}, s{64+e}")
            k.e(f"buffer_store_dwordx4 {r4(POUT+8*ss+4*e)}, v11, s[16:19], s{62-e} offen sc1", f"s_add_u32 s{62-e}, s{62-e}, 3072")
    stp(k, 7)
    k.e("s_cmp_lg_u32 s53, 0", "s_cbranch_scc1 mega_h_nounit")
    for ss in range(6):
        for e in range(2):
            k.e(f"v_mfma_f32_16x16x32_bf16 {r4(PS+4*e)}, {r4(PS+8)}, {r4(POUT+8*ss+4*e)}, {r4(PS+4*e) if ss else 0}")
    k.e("s_mul_i32 s58, s54, 18432", "s_mul_i32 s59, s46, 2304", "s_add_u32 s58, s58, s59", "s_lshl_b32 s59, s52, 7",
        "s_add_u32 s58, s58, s59", f"s_add_u32 s58, s58, {WS_SP}")
    k.e(ex(0xffff), f"buffer_store_dword v{PS}, v8, s[16:19], s58 offen sc1",
        f"buffer_store_dword v{PS+4}, v8, s[16:19], s58 offen offset:64 sc1", ex(-1))
    k.label("mega_h_nounit")
    k.e("s_waitcnt vmcnt(0)", "s_lshl_b32 s34, s46, 9", f"s_add_u32 s36, s34, {FP}", "s_lshr_b32 s35, s47, 3", "s_lshl_b32 s35, s35, 7",
        "s_add_u32 s34, s36, s35", "s_lshl_b32 s35, s29, 3", "s_add_u32 s34, s34, s35")
    k.stamp(2)
    arrive(k, 0, 4, 34, "p")
    k.e("s_cmp_lg_u32 s31, 3", "s_cbranch_scc1 mega_h_nofp")
    lds_wait(k, LDS_QRD, 2, "qa")
    lds_wait(k, LDS_QRD + 4, 2, "qb")
    k.e("v_bfe_u32 v12, v1, 3, 2", "v_lshlrev_b32 v12, 7, v12", "v_and_b32 v13, 7, v1", "v_lshl_add_u32 v12, v13, 3, v12")
    poll(k, 12, 36, 14, "p", sleep=16)
    k.e("v_add_u32 v13, 128, v1", "v_min_u32 v13, 143, v13", "v_lshlrev_b32 v13, 4, v13",
        "s_mul_i32 s34, s46, 2304", f"s_add_u32 s34, s34, {WS_SP}")
    for i in range(3):
        k.e(f"buffer_load_dwordx4 {r4(PIN+12*i)}, v11, s[16:19], s34 offen sc1", f"buffer_load_dwordx4 {r4(PIN+12*i+4)}, v11, s[16:19], s34 offen offset:1024 sc1",
            f"buffer_load_dwordx4 {r4(PIN+12*i+8)}, v13, s[16:19], s34 offen sc1", "s_add_u32 s34, s34, 18432")
    k.e(f"v_mov_b32 v14, {LDS_RDY}", "v_mov_b32 v15, 1", "ds_write_b32 v14, v15")
    k.e("v_lshlrev_b32 v14, 7, v1", "v_and_b32 v15, 3, v1", "v_lshlrev_b32 v15, 7, v15",
        f"s_mul_i32 s34, s46, {1296*1024}", "s_mul_i32 s35, s47, 41472", "s_add_u32 s34, s34, s35", f"s_add_u32 s34, s34, {WS_W}")
    for i in range(6):
        if os.environ.get("PF64"):
            k.e(f"buffer_load_dword v{POUT+i}, v{14 if i < 5 else 15}, s[16:19], s34 offen offset:64 sc1")
        k.e(f"buffer_load_dword v{POUT+i}, v{14 if i < 5 else 15}, s[16:19], s34 offen sc1", "s_add_u32 s34, s34, 8192")
    k.e(f"v_add_u32 v12, {LDS_S}, v11", f"v_add_u32 v13, {LDS_S}, v13", "s_waitcnt vmcnt(6)")
    for i in range(1, 3):
        for c in range(12):
            k.e(f"v_add_f32 v{PIN+c}, v{PIN+c}, v{PIN+12*i+c}")
    k.e(f"ds_write_b128 v12, {r4(PIN)}", f"ds_write_b128 v12, {r4(PIN+4)} offset:1024", f"ds_write_b128 v13, {r4(PIN+8)}",
        "s_waitcnt lgkmcnt(0)")
    k.label("mega_h_nofp")


def wo_dma(k, tag):
    k.e("s_mul_i32 s32, s29, 144", "s_lshl_b32 s42, s29, 1", "s_add_u32 s42, s42, s31",
        "s_mul_i32 s43, s31, 5120", f"s_add_u32 s43, s43, {LDS_WO}")

    k.e("s_cmp_eq_u32 s31, 3", f"s_cbranch_scc1 mega_o_skip{tag}")
    for grp in range(6):
        k.e("s_sub_u32 s36, s42, 18", "s_min_u32 s42, s42, s36", "s_mul_i32 s36, s42, 36864", "s_add_u32 s36, s36, s32")
        for i in range(5):
            k.e(f"s_add_u32 m0, s43, {grp*3*5120 + i*1024}", "s_nop 0", f"buffer_load_dwordx4 v{16+i}, s[24:27], s36 offen lds")
        k.e("s_add_u32 s42, s42, 3")
    k.label(f"mega_o_skip{tag}")
    srd(k, 56, 10, XB)
    k.e("s_add_u32 s35, s49, s32")
    for i in range(3):
        if i == 2:
            k.e(ex(0xffffffff))
        k.e(f"s_add_u32 m0, s44, {i*1024}", "s_nop 0", f"buffer_load_dwordx4 v{16+i}, s[56:59], s35 offen lds")
    k.e(ex(-1), "s_waitcnt vmcnt(0)")
    for t in range(5):
        k.e(f"ds_read_b64 v[{36+2*t}:{37+2*t}], v21 offset:{32*t}")
    k.e("s_cmp_eq_u32 s31, 3", f"s_cbranch_scc1 mega_c_skip{tag}")
    k.e("v_add_u32 v32, s43, v28", "v_add_u32 v33, s43, v29", "v_add_u32 v34, s43, v11", "s_mov_b32 s36, 6")
    k.label(f"mega_conv{tag}")
    for t in range(5):
        k.e(f"ds_read_b64_tr_b16 v[{OWF+4*t}:{OWF+4*t+1}], v32 offset:{32*t}", f"ds_read_b64_tr_b16 v[{OWF+4*t+2}:{OWF+4*t+3}], v33 offset:{32*t}")
    k.e("v_add_u32 v32, 15360, v32", "v_add_u32 v33, 15360, v33", "s_waitcnt lgkmcnt(0)")
    for t in range(5):
        k.e(f"ds_write_b128 v34, {r4(OWF+4*t)} offset:{1024*t}")
    k.e("v_add_u32 v34, 15360, v34", "s_sub_u32 s36, s36, 1", "s_cmp_lg_u32 s36, 0", f"s_cbranch_scc1 mega_conv{tag}")
    k.label(f"mega_c_skip{tag}")
    k.e("s_waitcnt lgkmcnt(0)")
    for t in range(5):
        a = OACC + 4 * t
        k.e(f"v_lshlrev_b32 v{a}, 16, v{36+2*t}", f"v_and_b32 v{a+1}, 0xffff0000, v{36+2*t}",
            f"v_lshlrev_b32 v{a+2}, 16, v{37+2*t}", f"v_and_b32 v{a+3}, 0xffff0000, v{37+2*t}")


def oproj(k):
    k.e("; ==== output projection + residual + LayerNorm-2 partial statistics (helper waves)")
    k.e("v_and_b32 v2, 15, v1", "v_lshrrev_b32 v3, 4, v1")
    k.e("v_lshrrev_b32 v32, 2, v2",
        "v_and_b32 v33, 1, v3", "v_lshlrev_b32 v33, 2, v33", "v_add_u32 v32, v32, v33",
        "v_lshl_add_u32 v32, v3, 3, v32", "v_xor_b32 v33, 4, v32", "s_movk_i32 s40, 160",
        "v_and_b32 v34, 3, v2", "v_lshlrev_b32 v34, 3, v34", f"v_add_u32 v34, {LDS_WO}, v34",
        "v_mad_u32_u24 v28, v32, s40, v34", "v_mad_u32_u24 v29, v33, s40, v34",
        "v_add_u32 v30, 61440, v11")
    k.e("s_mul_i32 s44, s31, 2560", f"s_add_u32 s44, s44, {LDS_RES}",
        "v_and_b32 v21, 8, v2", "v_lshrrev_b32 v21, 1, v21", "v_xor_b32 v21, v21, v2", "v_mul_u32_u24 v21, s40, v21",
        "v_lshl_add_u32 v21, v3, 3, v21", "v_add_u32 v21, s44, v21")
    k.e("v_and_b32 v22, 1, v3", "v_lshlrev_b32 v22, 9, v22", "v_lshrrev_b32 v32, 1, v3", "v_lshl_add_u32 v22, v32, 8, v22",
        "v_lshl_add_u32 v22, v2, 4, v22")
    k.e("v_and_b32 v23, 7, v1", "v_lshlrev_b32 v23, 3, v23")
    k.e("s_lshl_b32 s48, s28, 2", "s_add_u32 s48, s48, s31", "s_mul_i32 s49, s48, 18432")
    k.e(f"s_mul_i32 s68, s28, {RX}", "s_add_u32 s68, s68, s49", f"s_add_u32 s34, s68, {WS_O}", "v_add_u32 v24, s34, v11", "s_lshl_b32 s51, s29, 11")
    k.e(f"v_mov_b32 v12, {LDS_REL}", f"s_mov_b32 s3, {SPIN*8}")
    k.label("mega_rel")
    k.e("ds_read_b32 v13, v12", "s_waitcnt lgkmcnt(0)", "v_readfirstlane_b32 s50, v13", "s_and_b32 s39, s50, 0xff", "s_cmp_ge_u32 s39, 8",
        "s_cbranch_scc1 mega_reld", "s_sleep 4", "s_sub_u32 s3, s3, 1", "s_cbranch_scc0 mega_rel")
    k.label("mega_reld")
    if os.environ.get("PFC") == "2":
        k.e("s_cmp_lg_u32 s31, 3", "s_cbranch_scc1 a_nopfc", "s_getpc_b64 s[70:71]")
        k.label("mega_pc2")
        k.e("s_mul_i32 s36, s47, 512", "v_min_u32 v9, 3, v1", "v_lshlrev_b32 v9, 7, v9",
            "v_add_u32 v9, s36, v9", "v_min_u32 v9, mega_end - mega_pc2 - 4, v9", "global_load_dword v10, v9, s[70:71]")
        k.label("a_nopfc")
    k.e("s_cmp_lg_u32 s50, 8", "s_cbranch_scc1 mega_noearly")
    wo_dma(k, "a")
    k.label("mega_noearly")
    stp(k, 8)
    k.e("s_waitcnt lgkmcnt(0)", "s_barrier")
    stb(k, 3)
    publish_o(k, "ob")
    k.e("s_cmp_eq_u32 s50, 8", "s_cbranch_scc1 mega_nolate")
    wo_dma(k, "b")
    k.label("mega_nolate")
    k.e("s_lshl_b32 s34, s28, 7", f"s_add_u32 s34, s34, {F1}")
    k.e("s_cmp_lg_u32 s31, 0", "s_cbranch_scc1 mega_polld_o")
    lds_wait(k, LDS_CNT + 4, 12, "owno")
    poll(k, 23, 34, 32, "o", sleep=int(os.environ.get("OSP", "2")))
    lds_signal(k, LDS_ORD)
    lds_wait(k, LDS_ORD, 4, "ord")
    stb(k, 4)
    for s in range(18):
        k.e(f"buffer_load_dwordx4 v[{OX0+4*s}:{OX0+4*s+3}], v24, s[16:19], s51 offen sc1",
            "s_add_u32 s51, s51, 1024", "s_cmp_eq_u32 s51, 18432", "s_cselect_b32 s51, 0, s51")

    seq = [(s, t) for s in range(18) for t in range(5)]

    def rd(i):
        s, t = seq[i]
        off = (s if s < 12 else s - 12) * 5120 + 1024 * t
        k.e(f"ds_read_b128 {r4(OWF+4*(i%NB))}, v{11 if s < 12 else 30} offset:{off}")
    for i in range(NB):
        rd(i)
    ring_srd(k)
    for i, (s, t) in enumerate(seq):
        k.e(f"s_waitcnt lgkmcnt({min(NB-1, 89-i)})" + (f" vmcnt({17 - s + 3*(s//3)})" if t == 0 else ""))
        a = r4(OACC + 4 * t)
        k.e(f"v_mfma_f32_16x16x32_bf16 {a}, {r4(OWF+4*(i%NB))}, {r4(OX0+4*s)}, {a}")
        if i + NB < 90:
            rd(i + NB)
        if t == 4 and s % 3 == 2:
            st = (s // 3 + 5) % 6
            k.e(f"s_movk_i32 s53, {st*T*1024}")
            for tt in range(T):
                k.e(wload(st, tt))
    sto(k, 1)
    k.e("v_mov_b32 v6, 0", "v_mov_b32 v7, 0", "v_mov_b32 v34, 0x3f803f80",
        "s_mul_i32 s35, s29, 2304", "s_add_u32 s35, s35, s68", f"s_add_u32 s35, s35, {WS_H}")
    for t in range(5):
        a = OACC + 4 * t
        d = OWF + 2 * t
        k.e(f"v_cvt_pk_bf16_f32 v{d}, v{a}, v{a+1}", f"v_cvt_pk_bf16_f32 v{d+1}, v{a+2}, v{a+3}")
        if t == 4:
            k.e(ex(0xffffffff))
        k.e(f"v_dot2c_f32_bf16 v6, v{d}, v34", f"v_dot2c_f32_bf16 v7, v{d}, v{d}",
            f"v_dot2c_f32_bf16 v6, v{d+1}, v34", f"v_dot2c_f32_bf16 v7, v{d+1}, v{d+1}")
        if t == 4:
            k.e(ex(-1))
        if t % 2 == 1 or t == 4:
            b = OWF + 4 * (t // 2)
            k.e(f"v_permlane16_swap_b32 v{b}, v{b+2}", f"v_permlane16_swap_b32 v{b+1}, v{b+3}")
            if t == 4:
                k.e(ex(0xffff))
            k.e(f"buffer_store_dwordx4 {r4(b)}, v22, s[16:19], s35 offen offset:{1024*(t//2)} sc1")
            if t == 4:
                k.e(ex(-1))
    reduce_g_add(k, [6, 7], [32, 33])
    k.e("v_lshlrev_b32 v32, 4, v2", "s_lshl_b32 s35, s48, 10", "s_lshr_b32 s34, s29, 1", "s_lshl_b32 s34, s34, 8",
        "s_add_u32 s35, s35, s34", "s_and_b32 s34, s29, 1", "s_lshl_b32 s34, s34, 3", "s_add_u32 s35, s35, s34",
        f"s_add_u32 s35, s35, {WS_ST}", f"s_mul_i32 s34, s28, {RST}", "s_add_u32 s35, s35, s34", ex(0xffff))
    k.e("buffer_store_dwordx2 v[6:7], v32, s[16:19], s35 offen sc1", ex(-1))
    sto(k, 2)
    k.e("s_lshl_b32 s34, s28, 7", "s_lshl_b32 s35, s29, 3", "s_add_u32 s34, s34, s35", f"s_add_u32 s34, s34, {F2}", "s_waitcnt vmcnt(0)")
    sto(k, 7)
    arrive(k, 2, 4, 34, "h")


def acc(t, mb):
    return ACC + (t * 4 + mb) * 4


def wreg(slot, t):
    return WR + ((slot + 1) % 6) * 12 + t * 4


def wload(slot, t):
    return f"buffer_load_dwordx4 {r4(wreg(slot, t))}, v11, s[20:23], s53 offen offset:{1024*t} {WAUX}"


def ring_srd(k):
    k.e(f"s_mul_i32 s34, s30, {STREAM}", f"s_mul_i32 s35, s46, {1296*1024}", "s_add_u32 s34, s34, s35", f"s_add_u32 s34, s34, {WS_W}",
        "s_add_u32 s20, s12, s34", "s_addc_u32 s21, s13, 0", f"s_mov_b32 s22, {STREAM}", "s_mov_b32 s23, 0x00020000")


def ffn_ring_start(k, n=D - 1):
    ring_srd(k)
    k.e("s_mov_b32 s53, 0")
    for st in range(n):
        for t in range(T):
            k.e(wload(st, t))
        k.e(f"s_add_u32 s53, s53, {T*1024}")


def ffn(k):
    k.label("ffn_join")
    k.e("s_setprio 0", "v_and_b32 v2, 15, v1", "v_lshrrev_b32 v3, 4, v1")
    k.e("s_lshl_b32 s34, s47, 2", "s_and_b32 s35, s30, 3", "s_add_u32 s34, s34, s35", "s_mul_i32 s41, s34, 18432",
        "s_lshr_b32 s35, s30, 2", "s_lshl_b32 s35, s35, 10", "s_add_u32 s41, s41, s35", f"s_add_u32 s41, s41, {WS_H}", f"s_mul_i32 s35, s47, {RX}", "s_add_u32 s41, s41, s35",
        "s_lshl_b32 s42, s30, 10")
    k.e("s_lshl_b32 s34, s30, 7", f"s_add_u32 s34, s34, {LDS_S}", "v_lshlrev_b32 v13, 4, v3", "v_add_u32 v12, s34, v13",
        "s_lshl_b32 s34, s30, 6", f"s_add_u32 s34, s34, {LDS_S + 1536}", "v_add_u32 v13, s34, v13",
        f"ds_read_b128 {r4(XB0+16)}, v12", f"ds_read_b128 {r4(XB0+20)}, v12 offset:64", f"ds_read_b128 {r4(XB0+24)}, v13")
    k.e("v_lshlrev_b32 v9, 2, v2", f"v_add_u32 v9, {LDS_MU}, v9", "s_and_b32 s34, s46, 3", "s_lshl_b32 s34, s34, 6", "v_add_u32 v10, s34, v9")
    k.e(f"s_movk_i32 s53, {D*T*1024}")
    k.e("s_cmp_lg_u32 s30, 0", "s_cbranch_scc1 ffn_g")
    k.e("v_and_b32 v12, 7, v1", "v_lshlrev_b32 v12, 3, v12", "s_lshl_b32 s34, s47, 7", f"s_add_u32 s34, s34, {F2}",
        "v_lshlrev_b32 v8, 10, v3", "v_lshl_add_u32 v8, v2, 4, v8", f"s_mul_i32 s35, s47, {RST + 4096}", f"s_add_u32 s35, s35, {WS_ST}")
    lds_wait(k, LDS_CNT + 8, 4, "own", va=14, vb=15, sleep=2)
    poll(k, 12, 34, 14, "h", sleep=int(os.environ.get("HSP", "3")))
    for p in range(4):
        k.e(f"buffer_load_dwordx4 {r4(XB0+4*p)}, v8, s[16:19], s35 offen offset:{256*p} sc1")
    k.label("ffn_g")
    k.e("s_barrier")
    stb(k, 5)
    NF = int(os.environ.get("NF", "2"))
    for i in range(NF):
        k.e(f"s_add_u32 m0, s42, {i*12288}", f"s_add_u32 s36, s41, {i*3072}", f"buffer_load_dwordx4 v11, s[16:19], s36 offen {os.environ.get('HNT', '')} sc1 lds")
    k.e("s_cmp_lg_u32 s30, 0", "s_cbranch_scc1 ffn_st")
    k.e(f"s_waitcnt vmcnt({NF})")
    for p in range(1, 4):
        for c in range(4):
            k.e(f"v_add_f32 v{XB0+c}, v{XB0+c}, v{XB0+4*p+c}")
    k.e(f"v_add_f32 v4, v{XB0}, v{XB0+2}", f"v_add_f32 v5, v{XB0+1}, v{XB0+3}",
        f"v_mul_f32 v4, {hex(f2u(-1/576))}, v4", f"v_mul_f32 v5, {hex(f2u(1/576))}, v5", "v_fma_f32 v5, -v4, v4, v5", "v_max_f32 v5, 0, v5",
        f"v_add_f32 v5, {hex(f2u(1e-5))}, v5", "v_rsq_f32 v5, v5", "v_lshlrev_b32 v6, 2, v1", f"v_add_u32 v6, {LDS_MU}, v6",
        "ds_write_b32 v6, v4", "ds_write_b32 v6, v5 offset:256")
    lds_signal(k, LDS_MUS)
    k.label("ffn_st")
    lds_wait(k, LDS_MUS, 1, "mus")
    for i in range(NF, 4):
        k.e(f"s_add_u32 m0, s42, {i*12288}", f"s_add_u32 s36, s41, {i*3072}", f"buffer_load_dwordx4 v11, s[16:19], s36 offen {os.environ.get('HNT', '')} sc1 lds")
    sto(k, 8)
    for mb in range(4):
        k.e(f"ds_read_b32 v{4+mb}, v9 offset:{64*mb}")
    k.e("ds_read_b32 v8, v10 offset:256", "s_waitcnt lgkmcnt(0)")
    for t in range(T):
        for mb in range(4):
            for i in range(4):
                k.e(f"v_mul_f32 v{acc(t,mb)+i}, v{4+mb}, v{XB0+16+4*t+i}")
    k.e("s_add_u32 s41, s41, 12288", "s_add_u32 s42, s42, 49152")
    k.e("s_waitcnt vmcnt(3)", "s_barrier")
    stb(k, 6)
    if os.environ.get("PF2") == "2":
        k.e("v_min_u32 v0, 13, v1", "v_lshlrev_b32 v0, 7, v0", "s_mul_i32 s36, s47, 1728", "s_and_b32 s36, s36, 0xffffff80", f"s_add_u32 s36, s36, {18*T*1024}",
            "buffer_load_dword v0, v0, s[20:23], s36 offen sc1")
    k.e("v_mov_b32 v10, v11", "s_mov_b32 s31, 0")

    def step(u, loads=True):
        xb = XB0 + 16 * (u % 2)
        xn = XB0 + 16 * ((u + 1) % 2)
        fill = [f"ds_read_b128 {r4(xn+4*mb)}, v10 offset:{(u+1)*4096 + 1024*mb}" for mb in range(4)]
        if loads:
            fill += [wload((u + D - 1) % D, t) for t in range(T)]
            fill += [f"s_add_u32 s53, s53, {T*1024}"]
        order = [(t, mb) for t in range(T) for mb in range(4)]
        if os.environ.get("ORD") == "snake":
            order = [(t, mb if t % 2 == 0 else 3 - mb) for t in range(T) for mb in range(4)]
        if os.environ.get("ORD") == "mb":
            order = [(t if mb % 2 == 0 else T - 1 - t, mb) for mb in range(4) for t in range(T)]
        for t, mb in order:
            a = r4(acc(t, mb))
            k.e(f"v_mfma_f32_16x16x32_bf16 {a}, {r4(wreg(u, t))}, {r4(xb+4*mb)}, {a}")
            if fill:
                k.e(fill.pop(0))
    for mb in range(4):
        k.e(f"ds_read_b128 {r4(XB0+4*mb)}, v10 offset:{1024*mb}")
    k.e("s_waitcnt lgkmcnt(0)")
    step(0, loads=False)
    k.e("s_branch ffn_u1")
    k.label("ffn_start")
    for mb in range(4):
        k.e(f"ds_read_b128 {r4(XB0+4*mb)}, v10 offset:{1024*mb}")
    k.e(".p2align 6")
    k.label("ffn_loop")
    k.e("s_cmp_lg_u32 s31, 1", "s_cbranch_scc1 ffn_nodma")
    for i in range(2):
        k.e(f"s_add_u32 m0, s42, {i*12288}", f"s_add_u32 s36, s41, {i*3072}", f"buffer_load_dwordx4 v11, s[16:19], s36 offen {os.environ.get('HNT', '')} sc1 lds")
    if os.environ.get("PF2", "1") == "1":
        k.e("v_min_u32 v0, 13, v1", "v_lshlrev_b32 v0, 7, v0", "s_mul_i32 s36, s47, 1728", "s_and_b32 s36, s36, 0xffffff80", f"s_add_u32 s36, s36, {18*T*1024}",
            ("buffer_load_dword v15, v0, s[20:23], s36 offen offset:64 sc1" if os.environ.get("PF64") else ""),
            "buffer_load_dword v0, v0, s[20:23], s36 offen sc1")
    k.label("ffn_nodma")
    for u in range(D):
        if u == 1:
            k.label("ffn_u1")
        k.e(f"s_waitcnt vmcnt({4*T}) lgkmcnt(0)")
        if u == D - 1:
            k.e("s_cmp_ge_u32 s31, 2", "s_cbranch_scc1 ffn_nobar", "s_barrier")
            k.label("ffn_nobar")
        if u == 2:
            k.e("s_cmp_lg_u32 s31, 0", "s_cbranch_scc1 ffn_nobar2", "s_waitcnt vmcnt(5)", "s_barrier")
            k.label("ffn_nobar2")
        step(u)
    k.e(f"v_add_u32 v10, {D*4096}, v10", "s_add_u32 s31, s31, 1",
        "s_cmp_eq_u32 s31, 3", "s_cbranch_scc1 ffn_ep1",
        "s_cmp_lt_u32 s31, 6", "s_cbranch_scc1 ffn_loop")
    stb(k, 8)
    k.e("s_waitcnt lgkmcnt(0)")
    k.e(f"s_mul_i32 s34, s46, {PSX}", f"s_mul_i32 s33, s47, {PSY}", f"s_add_u32 s33, s33, {WS_P}", "s_add_u32 s34, s34, s33",
        "s_lshl_b32 s35, s30, 10", "s_add_u32 s36, s34, s35",
        "s_cmp_ge_u32 s30, 6", "s_movk_i32 s37, 12288", f"s_cselect_b32 s37, {12288 + 18432 - 6144}, s37", "s_add_u32 s37, s37, s36")
    for mb in range(4):
        d = XB0 + 4 * mb
        a, b = acc(0, mb), acc(1, mb)
        for i in range(4):
            k.e(f"v_cvt_pk_bf16_f32 v{d+i}, v{a+i}, v{b+i}")
        k.e(f"buffer_store_dwordx4 {r4(d)}, v11, s[16:19], s36 offen sc1", "s_add_u32 s36, s36, 18432")
    for h in range(2):
        d = XB0 + 16 + 4 * h
        a, b = acc(2, 2 * h), acc(2, 2 * h + 1)
        k.e(f"v_cvt_pk_bf16_f32 v{d}, v{a}, v{a+1}", f"v_cvt_pk_bf16_f32 v{d+1}, v{a+2}, v{a+3}",
            f"v_cvt_pk_bf16_f32 v{d+2}, v{b}, v{b+1}", f"v_cvt_pk_bf16_f32 v{d+3}, v{b+2}, v{b+3}")
        k.e(f"buffer_store_dwordx4 {r4(d)}, v11, s[16:19], s37 offen sc1", "s_add_u32 s37, s37, 36864")
    stt(k, 3)
    k.e("s_lshl_b32 s38, s47, 9", f"s_add_u32 s38, s38, {F3}", "s_lshr_b32 s36, s30, 2", "s_lshl_b32 s35, s36, 7", "s_add_u32 s38, s38, s35",
        "s_lshl_b32 s35, s46, 3", "s_add_u32 s34, s38, s35",
        "s_lshl_b32 s44, s36, 2", f"s_add_u32 s44, s44, {LDS_CNT + 12}", "s_waitcnt vmcnt(0)")
    stt(k, 4)
    stt(k, 5)
    stt(k, 6)
    arrive(k, 0, 4, 34, "r", cnt_sgpr=44)
    k.e("s_add_u32 s44, s44, 12", "v_mov_b32 v10, s44")
    k.e("s_and_b32 s35, s30, 3", "s_cmp_lg_u32 s35, 3", "s_cbranch_scc1 mega_red")
    if os.environ.get("DEFER", "1") == "1":
        if os.environ.get("DEF0", "1") == "1":
            k.e("s_cmp_eq_u32 s30, 3", f"s_mov_b32 s35, {LDS_CNT + 20}", f"s_cselect_b32 s35, {LDS_CNT + 16}, s35")
            lds_wait(k, "s35", 4, "t2", sleep=4)
        else:
            lds_wait(k, LDS_CNT + 20, 4, "t2", sleep=4)
    k.e("v_and_b32 v12, 7, v1", "v_lshlrev_b32 v12, 3, v12")
    poll(k, 12, 38, 14, "r", sleep=int(os.environ.get("RSP", "3")))
    k.e("v_mov_b32 v13, 1", "ds_write_b32 v10, v13", "s_waitcnt lgkmcnt(0)", "s_branch mega_fin")
    k.label("mega_red")
    k.e(
        "s_lshl_b32 s37, s36, 2", "s_lshl_b32 s39, s35, 1", "s_add_u32 s37, s37, s39",
        "s_lshl_b32 s39, s36, 1", "s_add_u32 s39, s39, 12", "s_cmp_eq_u32 s35, 2", "s_cselect_b32 s37, s39, s37",
        "s_lshr_b32 s39, s46, 2", "s_add_u32 s37, s37, s39",
        "s_and_b32 s39, s46, 3",
        "s_mul_i32 s34, s39, 18432", "s_lshl_b32 s41, s37, 10", "s_add_u32 s34, s34, s41")
    k.e("s_sub_u32 s41, s37, 12", "s_lshl_b32 s41, s41, 11", "s_cmp_ge_u32 s37, 15", "s_movk_i32 s42, 12288",
        f"s_cselect_b32 s42, {12288 + 18432 - 6144}, s42", "s_add_u32 s41, s41, s42", "s_lshr_b32 s42, s39, 1", "s_mul_i32 s42, s42, 36864",
        "s_add_u32 s41, s41, s42", "s_and_b32 s42, s39, 1", "s_lshl_b32 s42, s42, 3", "s_add_u32 s41, s41, s42",
        "s_mov_b32 s43, s35", "s_cmp_eq_u32 s35, 2", "s_cselect_b32 s34, s41, s34", "s_cselect_b32 s42, 1024, 8",
        "s_add_u32 s33, s33, s34", "s_add_u32 s42, s42, s33")
    k.e("s_lshl_b32 s35, s37, 2", "s_add_u32 s35, s35, s39", "s_lshl_b32 s35, s35, 10", "v_add_u32 v13, s35, v11",
        f"ds_read_b128 {r4(WR+32)}, v13")
    srd(k, 20, 14, XB)
    k.e("s_lshl_b32 s35, s47, 2", "s_add_u32 s35, s35, s39", "s_mul_i32 s35, s35, 18432", "s_lshl_b32 s37, s37, 6",
        "s_add_u32 s37, s37, s35", "s_movk_i32 s35, 1152", "v_mul_u32_u24 v9, s35, v2", "v_lshl_add_u32 v9, v3, 4, v9")
    k.e("v_mov_b32 v5, 0x00003f80", "v_mov_b32 v6, 0x3f800000")
    for i in range(8):
        k.e(f"v_mov_b32 v{ACC+i}, 0")
    k.e(f"s_mov_b32 s3, {SPIN*8}")
    k.label("mega_lspin")
    k.e("ds_read_b32 v14, v10", "s_waitcnt lgkmcnt(0)", "v_readfirstlane_b32 s38, v14", "s_cmp_lg_u32 s38, 0", "s_cbranch_scc1 mega_lspind",
        "s_sleep 2", "s_sub_u32 s3, s3, 1", "s_cbranch_scc0 mega_lspin")
    k.label("mega_lspind")
    stt(k, 5)
    k.e("s_cmp_eq_u32 s43, 2", "s_cbranch_scc1 mega_ld_s")
    for j in range(8):
        k.e(f"buffer_load_dwordx4 {r4(WR+4*j)}, v11, s[16:19], s33 offen sc1", f"s_add_u32 s33, s33, {PSX}")
    k.e("s_branch mega_ld_o")
    k.label("mega_ld_s")
    for j in range(8):
        k.e(f"buffer_load_dwordx2 v[{WR+4*j}:{WR+4*j+1}], v11, s[16:19], s33 offen sc1", f"s_add_u32 s33, s33, {PSX}")
    for j in range(8):
        k.e(f"buffer_load_dwordx2 v[{WR+4*j+2}:{WR+4*j+3}], v11, s[16:19], s42 offen sc1", f"s_add_u32 s42, s42, {PSX}")
    k.label("mega_ld_o")
    k.e("s_waitcnt lgkmcnt(0)")
    for i in range(4):
        k.e(f"v_lshlrev_b32 v{ACC+8+2*i}, 16, v{WR+32+i}", f"v_and_b32 v{ACC+9+2*i}, 0xffff0000, v{WR+32+i}")
    for j in range(8):
        k.e(f"s_waitcnt vmcnt({7-j})")
        for i in range(4):
            k.e(f"v_dot2c_f32_bf16 v{ACC+2*i}, v{WR+4*j+i}, v5", f"v_dot2c_f32_bf16 v{ACC+2*i+1}, v{WR+4*j+i}, v6")
    stt(k, 6)
    k.e("s_cmp_eq_u32 s43, 2", "s_cbranch_scc1 mega_red_s")
    for i in range(8):
        k.e(f"v_fma_f32 v{ACC+8+i}, v{ACC+i}, v8, v{ACC+8+i}")
    k.e("s_branch mega_red_o")
    k.label("mega_red_s")
    for i in range(8):
        k.e(f"v_fma_f32 v{ACC+8+i}, v{ACC+(i//2)+4*(i%2)}, v8, v{ACC+8+i}")
    k.label("mega_red_o")
    for i in range(4):
        k.e(f"v_cvt_pk_bf16_f32 v{XB0+i}, v{ACC+8+2*i}, v{ACC+9+2*i}")
    k.e(f"buffer_store_dwordx4 {r4(XB0)}, v9, s[20:23], s37 offen")
    k.label("mega_fin")
    k.stamp_flush(1, 10, 16, 30, wpw=16)
    if os.environ.get("DBGOUT"):
        k.e("s_cmp_lg_u32 s2, 5", "s_cbranch_scc1 mega_end", "s_cmp_lg_u32 s30, 8", "s_cbranch_scc1 mega_end",
            "s_load_dwordx2 s[4:5], s[0:1], 72", "s_waitcnt lgkmcnt(0)", "s_nop 0")
        srd(k, 20, 4, 256)
        for i in range(1, 9):
            k.e(f"s_sub_u32 s34, s{81+2*i}, s81", "v_mov_b32 v4, s34", f"buffer_store_dword v4, v0, s[20:23], 0 offen offset:{4*i-4}",
                f"s_sub_u32 s34, s{80+2*i}, s80", "v_mov_b32 v5, s34", f"buffer_store_dword v5, v0, s[20:23], 0 offen offset:{4*i+28}", "s_waitcnt vmcnt(0)")
    k.e("s_endpgm")
    k.label("ffn_ep1")
    if os.environ.get("PF3"):
        k.e("v_min_u32 v0, 13, v1", "v_lshlrev_b32 v0, 7, v0", "s_mul_i32 s36, s47, 1728", "s_and_b32 s36, s36, 0xffffff80", f"s_add_u32 s36, s36, {18*T*1024}",
            "buffer_load_dword v0, v0, s[20:23], s36 offen sc1")
    k.e("s_waitcnt lgkmcnt(0)")
    k.e("s_lshl_b32 s34, s30, 12", f"s_add_u32 s34, s34, {LDS_H}", "v_add_u32 v12, s34, v11")
    k.e("s_lshr_b32 s34, s30, 1", "s_lshl_b32 s34, s34, 12", "s_and_b32 s35, s30, 1", "s_lshl_b32 s35, s35, 3",
        "s_add_u32 s34, s34, s35", f"s_add_u32 s34, s34, {LDS_H + 49152}", "v_add_u32 v13, s34, v11")
    for mb in range(4):
        d = XB0 + 4 * mb
        a, b = acc(0, mb), acc(1, mb)
        for i in range(4):
            k.e(f"v_cvt_pk_bf16_f32 v{d+i}, v{a+i}, v{b+i}")
        for i in range(4):
            k.e(f"v_pk_max_i16 v{d+i}, v{d+i}, 0")
        k.e(f"ds_write_b128 v12, {r4(d)} offset:{mb*1024}")
    for mb in range(4):
        a = acc(2, mb)
        d = XB0 + 16 + 2 * mb
        k.e(f"v_cvt_pk_bf16_f32 v{d}, v{a}, v{a+1}", f"v_cvt_pk_bf16_f32 v{d+1}, v{a+2}, v{a+3}",
            f"v_pk_max_i16 v{d}, v{d}, 0", f"v_pk_max_i16 v{d+1}, v{d+1}, 0",
            f"ds_write_b64 v13, v[{d}:{d+1}] offset:{mb*1024}")
    for r in range(ACC, ACC + 16 * T):
        k.e(f"v_mov_b32 v{r}, 0")
    if os.environ.get("NOPRIO"):
        k.e("s_branch ffn_pr2")
    k.e("s_cmp_lt_u32 s30, 4", "s_cbranch_scc0 ffn_pr1", "s_setprio 2")
    k.label("ffn_pr1")
    k.e("s_and_b32 s34, s30, 12", "s_cmp_eq_u32 s34, 4", "s_cbranch_scc0 ffn_pr2", "s_setprio 1")
    k.label("ffn_pr2")
    k.e("s_waitcnt lgkmcnt(0)", "s_barrier")
    stb(k, 7)
    k.e("s_branch ffn_start")


def tr_addr(k, base0, base1, stride, extra_sgpr=None):
    k.e("v_lshrrev_b32 v32, 2, v2",
        "v_and_b32 v33, 1, v3", "v_lshlrev_b32 v33, 2, v33", "v_add_u32 v32, v32, v33",
        "v_lshl_add_u32 v32, v3, 3, v32", "v_xor_b32 v33, 4, v32", f"s_movk_i32 s40, {stride}",
        "v_and_b32 v34, 3, v2", "v_lshlrev_b32 v34, 3, v34", f"v_add_u32 v34, {base0}, v34")
    if extra_sgpr is not None:
        k.e(f"v_add_u32 v34, s{extra_sgpr}, v34")
    k.e("v_mad_u32_u24 v28, v32, s40, v34", "v_mad_u32_u24 v29, v33, s40, v34")
    if base1 is not None:
        k.e(f"v_add_u32 v30, {base1 - base0}, v28", f"v_add_u32 v31, {base1 - base0}, v29")


def x_read_addr(k, v, slot_sgpr):
    k.e(f"v_lshrrev_b32 v{v}, 2, v2", f"v_sub_u32 v{v}, 4, v{v}", f"v_and_b32 v{v}, 3, v{v}", f"v_xor_b32 v{v}, v{v}, v3",
        f"v_lshlrev_b32 v{v}, 4, v{v}", f"v_lshl_add_u32 v{v}, v2, 6, v{v}")
    if slot_sgpr is None:
        k.e(f"v_add_u32 v{v}, {A_X}, v{v}")
    else:
        k.e(f"v_add_u32 v{v}, s{slot_sgpr}, v{v}")


def get_nonce(k):
    k.e(f"v_mov_b32 v12, {LDS_NON}", "ds_read_b64 v[14:15], v12", "s_waitcnt lgkmcnt(0)",
        "v_readfirstlane_b32 s66, v14", "v_readfirstlane_b32 s67, v15")


def wq_rd(k, t, s, wf, b, par=False):
    ss = 4 * s if par else s
    a0, a1 = (28, 29) if ss < 8 else (30, 31)
    off = (ss if ss < 8 else ss - 8) * 5120 + 32 * t
    k.e(f"ds_read_b64_tr_b16 v[{wf+4*b}:{wf+4*b+1}], v{a0} offset:{off}",
        f"ds_read_b64_tr_b16 v[{wf+4*b+2}:{wf+4*b+3}], v{a1} offset:{off}")


QCH = [(0, 8), (8, 12), (12, 18)]


def late_srds(k):
    srd(k, 16, 12, WS_END)
    srd(k, 24, 8, WQB)


def a_qwave(k):
    k.e("; ==== LN1 + Q projection (waves 0..3), LN folded into the epilogue")
    k.e("s_setprio 2")
    k.e("s_sub_u32 s34, s30, s29", "s_and_b32 s34, s34, 3", "s_mul_i32 s43, s34, 18432", f"s_add_u32 s43, s43, {A_X}",
        "s_lshl_b32 s35, s28, 2", "s_add_u32 s35, s35, s30", "s_mul_i32 s35, s35, 18432", "s_lshl_b32 s36, s48, 6")
    k.e("v_lshrrev_b32 v5, 2, v1", "v_sub_u32 v6, 4, v3", "v_xor_b32 v6, v6, v1", "v_and_b32 v6, 3, v6",
        "s_movk_i32 s41, 1152", "v_mul_u32_u24 v5, s41, v5", "v_lshl_add_u32 v4, v6, 4, v5", "v_add_u32 v4, s35, v4")
    k.e("s_waitcnt lgkmcnt(0)")
    srd(k, 20, 10, XB)
    NOB0 = os.environ.get("NOB0")
    if not NOB0:
        k.e("s_cmp_eq_u32 s34, 0", "s_cbranch_scc1 a_q_first", "s_barrier")
    else:
        k.e("s_cmp_lg_u32 s34, 0", "s_cbranch_scc1 a_q_first", "s_setprio 3")
    k.label("a_q_first")
    for s in range(18):
        k.e(f"s_add_u32 m0, s43, {s*1024}", "s_nop 0", "buffer_load_dwordx4 v4, s[20:23], s36 offen lds",
            "s_add_u32 s36, s36, 64", "s_cmp_eq_u32 s36, s41", "s_cselect_b32 s36, 0, s36")
    if not NOB0:
        k.e("s_cmp_lg_u32 s34, 0", "s_cbranch_scc1 a_q_second", "s_barrier")
    else:
        k.e("s_setprio 2", "s_barrier")
    k.label("a_q_second")
    late_srds(k)
    tr_addr(k, A_WQ0, A_WQ1, 160)
    x_read_addr(k, 35, 43)
    for r in range(QACC, QACC + 20):
        k.e(f"v_mov_b32 v{r}, 0")
    for b in QACS:
        for i in range(4):
            k.e(f"v_mov_b32 v{b+i}, 0")
    for i in range(4):
        k.e(f"v_mov_b32 v{QONES+i}, 0x3f803f80")
    k.e("v_mov_b32 v6, 0", "v_mov_b32 v7, 0")
    for part in range(3):
        k.e(f"s_waitcnt vmcnt({18 - 6*(part+1)})")
        if part == 2:
            k.e("s_cmp_lg_u32 s34, 0", "s_cbranch_scc1 a_q_nosig")
            lds_signal(k, LDS_KVI)
            k.label("a_q_nosig")
        for s in range(6 * part, 6 * part + 6):
            k.e(f"ds_read_b128 {r4(QX0+4*s)}, v35 offset:{1024*s}")
        if part:
            k.e("s_waitcnt lgkmcnt(6)")
            for r in range(QX0 + 24 * (part - 1), QX0 + 24 * part):
                k.e(f"v_dot2c_f32_bf16 v6, v{r}, v{QONES}", f"v_dot2c_f32_bf16 v7, v{r}, v{r}")
    k.e("s_waitcnt lgkmcnt(0)")
    lds_signal(k, LDS_XC)
    k.stamp(1)
    for r in range(QX0 + 48, QX0 + 72):
        k.e(f"v_dot2c_f32_bf16 v6, v{r}, v{QONES}", f"v_dot2c_f32_bf16 v7, v{r}, v{r}")
    reduce_g_add(k, [6, 7], [32, 33])
    k.e(f"v_mul_f32 v6, {hex(f2u(1/576))}, v6", f"v_mul_f32 v7, {hex(f2u(1/576))}, v7",
        "v_fma_f32 v7, -v6, v6, v7", "v_max_f32 v7, 0, v7", f"v_add_f32 v7, {hex(f2u(1e-5))}, v7", "v_rsq_f32 v7, v7")
    k.e("s_cmp_lg_u32 s34, 0", "s_cbranch_scc1 a_q_nost")
    k.e("v_lshlrev_b32 v32, 2, v2", f"v_add_u32 v32, {A_ST}, v32", "ds_write_b32 v32, v6", "ds_write_b32 v32, v7 offset:64",
        "s_waitcnt lgkmcnt(0)")
    lds_signal(k, LDS_KVS)
    k.label("a_q_nost")
    k.e(f"v_mul_f32 v34, {hex(f2u(QSCALE))}, v7")
    k.e("s_mul_i32 s35, s30, 2304", f"s_add_u32 s35, s35, {LDS_OST}", "v_lshrrev_b32 v35, 1, v3", "v_lshlrev_b32 v35, 8, v35",
        "v_lshl_add_u32 v35, v2, 4, v35", "v_and_b32 v32, 1, v3", "v_lshl_add_u32 v35, v32, 3, v35", "v_add_u32 v35, s35, v35")
    sta(k, 3)
    k.label("a_q_gemm")
    for ci, (s0, s1) in enumerate(QCH):
        k.e("s_cmp_ge_u32 s30, 4", f"s_cbranch_scc1 mega_lwd_q{ci}")
        lds_wait(k, LDS_WQC + 4 * ci, 4, f"q{ci}")
        def rd2(t, s, b):
            a0, a1 = (28, 29) if s < 8 else (30, 31)
            off = (s if s < 8 else s - 8) * 5120 + 32 * t
            return [f"ds_read_b64_tr_b16 v[{QWF+4*b}:{QWF+4*b+1}], v{a0} offset:{off}",
                    f"ds_read_b64_tr_b16 v[{QWF+4*b+2}:{QWF+4*b+3}], v{a1} offset:{off}"]
        roll_gemm2(k, list(range(s0, s1)), rd2,
                   lambda t, s, b: [f"v_mfma_f32_16x16x32_bf16 {r4(QACC+4*t)}, {r4(QWF+4*b)}, {r4(QX0+4*s)}, {r4(QACC+4*t)}",
                                    f"v_mfma_f32_16x16x32_bf16 {r4(QACS[t])}, {r4(QWF+4*b)}, {r4(QONES)}, {r4(QACS[t])}"])
    k.e("s_cmp_ge_u32 s30, 4", "s_cbranch_scc1 a_s_done")
    sta(k, 7)
    k.e("s_setprio 3")
    lds_signal(k, LDS_WDN)
    sta(k, 8)
    for t in range(5):
        a = QACC + 4 * t
        for i in range(4):
            k.e(f"v_fma_f32 v{a+i}, -v6, v{QACS[t]+i}, v{a+i}")
        for i in range(4):
            k.e(f"v_mul_f32 v{a+i}, v34, v{a+i}")
        k.e(f"v_cvt_pk_bf16_f32 v{QWF+2*t}, v{a}, v{a+1}", f"v_cvt_pk_bf16_f32 v{QWF+2*t+1}, v{a+2}, v{a+3}")
        if t == 4:
            k.e(ex(0xffffffff))
        k.e(f"ds_write_b64 v35, v[{QWF+2*t}:{QWF+2*t+1}] offset:{512*t}")
    k.e("s_lshr_b32 s35, s30, 1", "s_lshl_b32 s35, s35, 2", f"s_add_u32 s35, s35, {LDS_QRD}", "v_mov_b32 v12, s35", "v_mov_b32 v13, 1",
        ex(1), "ds_add_u32 v12, v13", ex(-1))


def wkv_rd(k, s, wf):
    for t in range(2):
        off = s * 1536 + 32 * t
        k.e(f"ds_read_b64_tr_b16 v[{wf+4*t}:{wf+4*t+1}], v28 offset:{off}",
            f"ds_read_b64_tr_b16 v[{wf+4*t+2}:{wf+4*t+3}], v29 offset:{off}")


def a_wkv_dma(k):
    k.e("s_setprio 3")
    k.e("s_movk_i32 s40, 21846")
    for i in range(3):
        k.e(f"v_add_u32 v32, {64*i}, v1", "v_mul_u32_u24 v33, s40, v32", "v_lshrrev_b32 v33, 16, v33", "v_mul_u32_u24 v34, 3, v33",
            "v_sub_u32 v34, v32, v34", "v_lshlrev_b32 v34, 4, v34", "v_min_u32 v34, 20, v34",
            "v_and_b32 v35, 8, v33", "v_lshrrev_b32 v35, 1, v35", "v_xor_b32 v35, v35, v33", f"v_mad_u32_u24 v{16+i}, v35, 36, v34")
    k.e("s_sub_u32 s34, s30, 4", "s_mul_i32 s34, s34, 3", "s_mul_i32 s43, s34, 3072", "s_lshr_b32 s35, s48, 1", "s_add_u32 s35, s35, s34",
        "s_sub_u32 s36, s35, 9", "s_min_u32 s35, s35, s36", "s_mul_i32 s35, s35, 2304")
    k.e("s_waitcnt lgkmcnt(0)")
    k.e("s_cmp_lt_u32 s29, 4", "s_cselect_b32 s20, s70, s72", "s_cselect_b32 s21, s71, s73", f"s_mov_b32 s22, {WKB}", "s_mov_b32 s23, 0x00020000")
    for g in range(3):
        for i in range(3):
            k.e(f"s_add_u32 m0, s43, {A_WKV + g*3072 + i*1024}", "s_nop 0", f"buffer_load_dwordx4 v{16+i}, s[20:23], s35 offen lds")
        k.e("s_add_u32 s35, s35, 2304", f"s_cmp_eq_u32 s35, {9*2304}", "s_cselect_b32 s35, 0, s35")
    k.e("s_barrier")
    late_srds(k)


def a_kvwave(k):
    k.e("; ==== K or V projection of 16 rows (wave 4), published to every workgroup")
    tr_addr(k, A_WKV, None, 48)
    x_read_addr(k, 35, None)
    for r in range(QACC, QACC + 8):
        k.e(f"v_mov_b32 v{r}, 0")
    k.e("s_lshr_b32 s41, s28, 1", f"s_mul_i32 s41, s41, {GRP}", f"s_add_u32 s41, s41, {WS_KV}",
        "s_and_b32 s42, s28, 1", "s_lshl_b32 s42, s42, 1", "s_bfe_u32 s43, s29, 0x10001", "s_add_u32 s42, s42, s43",
        "s_and_b32 s43, s29, 1",
        "s_lshl_b32 s49, s28, 7", "s_lshl_b32 s34, s29, 3", "s_add_u32 s49, s49, s34", f"s_add_u32 s49, s49, {FK}")
    k.e("s_waitcnt vmcnt(0)")
    lds_signal(k, LDS_WKI)
    lds_wait(k, LDS_KVI, 3, "kvi")
    k.stamp(1)
    k.e("s_cmp_ge_u32 s29, 4", "s_cbranch_scc1 a_kv_v")
    for isv in (False, True):
        if isv:
            k.label("a_kv_v")

        def rd(s):
            b = s % 3
            k.e(f"ds_read_b128 {r4(QX0+4*b)}, v35 offset:{1024*s}")
            wkv_rd(k, s, QX0 + 12 + 8 * b)
        rd(0)
        rd(1)
        for s in range(18):
            b = s % 3
            if s + 2 < 18:
                rd(s + 2)
            k.e(f"s_waitcnt lgkmcnt({min(10, 5*(17-s))})")
            for t in range(2):
                a, w, x = r4(QACC + 4 * t), r4(QX0 + 12 + 8 * b + 4 * t), r4(QX0 + 4 * b)
                k.e(f"v_mfma_f32_16x16x32_bf16 {a}, {x}, {w}, {a}" if isv else f"v_mfma_f32_16x16x32_bf16 {a}, {w}, {x}, {a}")
        sta(k, 3)
        lds_wait(k, LDS_KVS, 2, "kv" + ("v" if isv else "k"))
        sta(k, 4)
        A = QACC
        if not isv:
            k.e("v_lshlrev_b32 v32, 4, v3", f"v_add_u32 v32, {A_SKV}, v32", "v_lshlrev_b32 v33, 2, v2", f"v_add_u32 v33, {A_ST}, v33",
                "ds_read_b128 v[16:19], v32", "ds_read_b128 v[20:23], v32 offset:64", "ds_read_b32 v6, v33", "ds_read_b32 v7, v33 offset:64")
            k.e("s_lshl_b32 s38, s43, 8", "v_lshlrev_b32 v36, 4, v2", "v_add_u32 v36, s38, v36",
                "v_lshrrev_b32 v37, 1, v3", "v_lshl_add_u32 v37, v37, 9, v36",
                "s_lshl_b32 s38, s42, 10", "s_add_u32 s38, s38, s41",
                "s_lshl_b32 s39, s42, 2", "s_add_u32 s39, s39, s41", f"s_add_u32 s39, s39, {KV_K2}")
            k.e("s_waitcnt lgkmcnt(0)")
            for i in range(8):
                k.e(f"v_fma_f32 v{A+i}, -v6, v{16+i}, v{A+i}")
            for i in range(8):
                k.e(f"v_mul_f32 v{A+i}, v7, v{A+i}")
            k.e(f"v_cvt_pk_bf16_f32 v40, v{A}, v{A+1}", f"v_cvt_pk_bf16_f32 v41, v{A+2}, v{A+3}", f"v_cvt_pk_bf16_f32 v44, v{A+6}, v{A+7}")
            k.e("v_permlane16_swap_b32 v40, v42", "v_permlane16_swap_b32 v41, v43")
            k.e(ex(0x0000ffff0000ffff), "buffer_store_dwordx4 v[40:43], v37, s[16:19], s38 offen sc1",
                ex(0xffff0000), "buffer_store_dword v44, v36, s[16:19], s39 offen sc1", ex(-1))
            k.e("s_or_b32 s39, s42, s28", "s_cmp_lg_u32 s39, 0", "s_cbranch_scc1 a_kv_nod", f"s_add_u32 s38, s38, {IMG}",
                ex(0x0000ffff0000ffff), "buffer_store_dwordx4 v[40:43], v37, s[16:19], s38 offen sc1", ex(-1))
            k.label("a_kv_nod")
            k.e("s_or_b32 s38, s42, s43", "s_cmp_lg_u32 s38, 0", "s_cbranch_scc1 a_kv_noc")
            k.e("v_mov_b32 v24, 0x3f803f80", "v_mov_b32 v25, 0x00003f80", "v_mov_b32 v26, 0x3f803f80", "v_mov_b32 v27, 0x00003f80",
                "v_mov_b32 v12, 0", f"s_add_u32 s38, s41, {KV_K2 + 512}", ex(1), "buffer_store_dwordx4 v[24:27], v12, s[16:19], s38 offen sc1", ex(-1))
            k.label("a_kv_noc")
            k.e(f"v_mul_f32 v45, v{A+6}, v{A+6}", f"v_fmac_f32 v45, v{A+7}, v{A+7}",
                "v_cmp_eq_u32 vcc, 1, v3", "v_cndmask_b32 v45, 0, v45, vcc")
            for i in range(4):
                k.e(f"v_fmac_f32 v45, v{A+i}, v{A+i}")
            reduce_g_add(k, [45], [46])
            for sh in (8, 4, 2, 1):
                k.e(f"v_max_f32_dpp v45, v45, v45 row_ror:{sh} row_mask:0xf bank_mask:0xf")
            k.e("s_branch a_kv_pub")
        else:
            k.e("v_lshlrev_b32 v32, 2, v2", f"v_add_u32 v32, {A_SKV}, v32", "v_lshlrev_b32 v33, 4, v3", f"v_add_u32 v33, {A_ST}, v33",
                "ds_read_b32 v6, v32", "ds_read_b32 v7, v32 offset:64", "ds_read_b128 v[16:19], v33", "ds_read_b128 v[20:23], v33 offset:64")
            k.e("s_mul_i32 s38, s42, 1216", "s_mul_i32 s39, s43, 608", "s_add_u32 s38, s38, s39", "s_add_u32 s38, s38, s41",
                f"s_add_u32 s38, s38, {KV_V}", "s_movk_i32 s39, 304", "v_and_b32 v36, 1, v3", "v_mul_u32_u24 v37, s39, v36",
                "v_lshl_add_u32 v37, v2, 4, v37", "v_lshrrev_b32 v36, 1, v3", "s_movk_i32 s39, 160", "v_mad_u32_u24 v37, v36, s39, v37")
            k.e("s_waitcnt lgkmcnt(0)")
            for t in range(2):
                for i in range(4):
                    k.e(f"v_fma_f32 v{A+4*t+i}, -v{16+i}, v{6+t}, v{A+4*t+i}")
                for i in range(4):
                    k.e(f"v_mul_f32 v{A+4*t+i}, v{20+i}, v{A+4*t+i}")
            for i in range(4):
                k.e(f"v_cvt_pk_bf16_f32 v{40+i}, v{A+2*i}, v{A+2*i+1}")
            k.e("v_mov_b32 v39, 0x3f803f80", "v_cmp_eq_u32 vcc, 8, v2", "v_cndmask_b32 v42, v42, v39, vcc", "v_cndmask_b32 v43, v43, v39, vcc")
            k.e("v_permlane32_swap_b32 v40, v42", "v_permlane32_swap_b32 v41, v43")
            k.e(ex(0x01c001c0ffffffff), "buffer_store_dwordx4 v[40:43], v37, s[16:19], s38 offen sc1", ex(-1), "v_mov_b32 v45, 0")
    k.label("a_kv_pub")
    sta(k, 5)
    lds_wait(k, LDS_NON, 1, "non")
    get_nonce(k)
    k.e("v_mov_b32 v44, s66", "v_mov_b32 v12, 0", "s_waitcnt vmcnt(0)")
    sta(k, 6)
    k.e(ex(1), "buffer_store_dwordx2 v[44:45], v12, s[16:19], s49 offen sc1", ex(-1))
    k.e("s_waitcnt vmcnt(0)")
    lds_signal(k, LDS_KVS)
    sta(k, 7)
    sta(k, 8)


def a_swave(k):
    k.label("a_s_7")
    k.e("s_setprio 3")
    late_srds(k)
    srd(k, 20, 10, XB)
    k.e("s_mul_i32 s34, s47, 1536", "v_min_u32 v12, 11, v1", "v_lshlrev_b32 v12, 7, v12", "v_add_u32 v12, s34, v12",
        f"v_min_u32 v12, CODE_BYTES - 4, v12", "global_load_dword v18, v12, s[62:63]")
    srd(k, 56, 74, 256)
    k.e("v_mov_b32 v10, 0")
    k.e("v_min_u32 v12, 35, v1", "v_lshlrev_b32 v12, 2, v12", f"v_add_u32 v12, {LDS_RDY}, v12", "v_mov_b32 v13, 0",
        "ds_write_b32 v12, v13", "v_lshlrev_b32 v12, 2, v1", f"v_add_u32 v12, {A_SQ}, v12", "ds_write_b32 v12, v13", "ds_write_b32 v12, v13 offset:64",
        "s_waitcnt lgkmcnt(0)")
    if os.environ.get("TOUCH", "0") == "1":
        k.e("buffer_load_dword v18, v10, s[56:59], 0 offen sc1", f"s_mov_b32 s34, {FK}", "buffer_load_dword v19, v10, s[16:19], s34 offen sc1",
            f"s_mov_b32 s34, {WS_KV}", "buffer_load_dword v20, v10, s[16:19], s34 offen sc1")
    k.e("s_barrier")
    sta(k, 4)
    sta(k, 5)
    sta(k, 6)
    sta(k, 7)
    sta(k, 8)
    k.e(f"s_mov_b32 s3, {SPIN}")
    k.label("a_s_np")
    k.e("s_sleep 4", "buffer_load_dwordx2 v[14:15], v10, s[56:59], 0 offen sc1", "s_sleep 4", "buffer_load_dwordx2 v[16:17], v10, s[56:59], 0 offen sc1",
        "s_waitcnt vmcnt(1)", "v_readfirstlane_b32 s39, v14", "s_cmp_lg_u32 s39, 0", "s_cbranch_scc1 a_s_nd",
        "s_waitcnt vmcnt(0)", "v_mov_b32 v14, v16", "v_mov_b32 v15, v17", "v_readfirstlane_b32 s39, v16", "s_cmp_lg_u32 s39, 0", "s_cbranch_scc1 a_s_nd",
        "s_sub_u32 s3, s3, 1", "s_cbranch_scc0 a_s_np")
    k.label("a_s_nd")
    k.e(f"v_mov_b32 v12, {LDS_NON}", "ds_write_b64 v12, v[14:15]")
    k.label("a_s_c")
    for i in range(4):
        k.e(f"v_mov_b32 v{QONES+i}, 0x3f803f80")
    for r in range(QACC, QACC + 20):
        k.e(f"v_mov_b32 v{r}, 0")
    k.e("s_cmp_lg_u32 s30, 5", "s_cbranch_scc1 a_s_q")
    tr_addr(k, A_WKV, None, 48)
    k.e("s_waitcnt vmcnt(0)")
    lds_signal(k, LDS_KVI)
    lds_signal(k, LDS_WKI)
    lds_wait(k, LDS_WKI, 3, "wki")
    k.stamp(1)
    wkv_rd(k, 0, QX0)
    wkv_rd(k, 1, QX0 + 8)
    for s in range(18):
        if s + 2 < 18:
            wkv_rd(k, s + 2, QX0 + 8 * ((s + 2) % 3))
        k.e(f"s_waitcnt lgkmcnt({min(8, 4*(17-s))})")
        for t in range(2):
            a = r4(QACC + 4 * t)
            k.e(f"v_mfma_f32_16x16x32_bf16 {a}, {r4(QONES)}, {r4(QX0+8*(s%3)+4*t)}, {a}")
    k.e("v_lshlrev_b32 v32, 2, v2", f"v_add_u32 v32, {A_SKV}, v32", f"ds_write_b32 v32, v{QACC}", f"ds_write_b32 v32, v{QACC+4} offset:64",
        "s_waitcnt lgkmcnt(0)")
    lds_signal(k, LDS_KVS)
    k.e("s_branch a_s_done")
    k.label("a_s_q")
    k.e("s_cmp_eq_u32 s30, 7", "s_cbranch_scc1 a_s_nx", "s_waitcnt vmcnt(0)")
    lds_signal(k, LDS_KVI)
    lds_signal(k, LDS_WKI)
    if os.environ.get("DRY", "0") == "1":
        k.stamp(1)
        tr_addr(k, A_WQ0, A_WQ1, 160)
        k.e("s_setprio 0", "s_branch a_q_gemm")
    k.label("a_s_nx")
    k.stamp(1)
    k.label("a_s_done")
    k.e("s_waitcnt vmcnt(0)")


def a_helper(k):
    k.e("; ==== helper waves: wq loader, then K/V gather")
    k.e("s_setprio 1", "s_sub_u32 s31, s30, 8")
    k.e("s_cmp_lg_u32 s31, 0", "s_cbranch_scc1 a_h_calc", "s_waitcnt lgkmcnt(0)")
    srd(k, 20, 68, WQB)
    if os.environ.get("PFQ", "1") == "1":
        k.e("s_cmp_lg_u32 s31, 0", "s_cbranch_scc1 a_h_nopf",
            "v_min_u32 v12, 20, v1", "v_lshlrev_b32 v12, 7, v12", "s_mul_i32 s34, s2, 2592", "s_and_b32 s34, s34, 0xffffff80",
            "buffer_load_dword v21, v12, s[20:23], s34 offen", ("buffer_load_dword v21, v12, s[20:23], s34 offen offset:64" if os.environ.get("PF64") else ""))
        k.label("a_h_nopf")
    k.label("a_h_calc")
    k.e("s_movk_i32 s40, 6554", "s_movk_i32 s41, 1152")
    for i in range(5):
        dma_slot_calc(k, i, 32, 33, 34, 35)
        k.e("v_min_u32 v34, 8, v34", f"v_mul_u32_u24 v{16+i}, s41, v35", f"v_lshl_add_u32 v{16+i}, v34, 4, v{16+i}")
    k.e("s_add_u32 s42, s31, s48", "s_mul_i32 s32, s29, 144", "s_mul_i32 s43, s31, 5120", "s_waitcnt lgkmcnt(0)")
    srd(k, 20, 68, WQB)
    late_srds(k)

    def wdma(base):
        k.e("s_sub_u32 s36, s42, 18", "s_min_u32 s42, s42, s36", "s_mul_i32 s36, s42, 36864", "s_add_u32 s36, s36, s32")
        for i in range(5):
            k.e(f"s_add_u32 m0, s43, {base + i*1024}", "s_nop 0", f"buffer_load_dwordx4 v{16+i}, s[20:23], s36 offen lds")
        k.e("s_add_u32 s42, s42, 4")
    k.e("s_barrier")
    wdma(A_WQ0)
    wdma(A_WQ0 + 20480)
    k.e("s_waitcnt vmcnt(0)")
    lds_signal(k, LDS_WQC)
    sta(k, 3)
    lds_wait(k, LDS_XC, 4, "xc")
    k.e("s_setprio 3")
    k.stamp(1)
    wdma(A_WQ1)
    wdma(A_WQ1 + 20480)
    k.e("s_cmp_ge_u32 s31, 2", "s_cbranch_scc1 a_h_skip")
    wdma(A_WQ1 + 40960)
    k.label("a_h_skip")
    for ci, n in ((1, 5), (2, 0)):
        k.e(f"s_waitcnt vmcnt({n})")
        lds_signal(k, LDS_WQC + 4 * ci)
        sta(k, 3 + ci)
    lds_wait(k, LDS_KVS, 3, "pub")
    get_nonce(k)
    sta(k, 6)
    k.e("v_lshrrev_b32 v10, 3, v1", "v_lshlrev_b32 v10, 7, v10", "v_and_b32 v9, 7, v1", "v_lshl_add_u32 v10, v9, 3, v10",
        "s_lshl_b32 s34, s31, 10", f"s_add_u32 s35, s34, {FK}")
    poll(k, 10, 35, 14, "k", sleep=int(os.environ.get("KSL", "10")), lo_only=True, first=int(os.environ.get("KF", "0")))
    sta(k, 7)
    k.e(f"v_mov_b32 v12, {LDS_KMX}", "ds_max_u32 v12, v15")
    lds_signal(k, LDS_KVR)
    k.e("s_lshr_b32 s35, s2, 3", "s_add_u32 s35, s35, s2", "s_and_b32 s35, s35, 15", f"s_mul_i32 s35, s35, {GRP}", "s_add_u32 s35, s35, s34",
        f"v_add_u32 v10, {WS_KV}, v11")
    lds_wait(k, LDS_KVR, 4, "kvr")
    k.e("s_or_b32 s36, s2, s31", "s_cmp_lg_u32 s36, 0", "s_cbranch_scc1 a_h_noclr")
    srd(k, 56, 74, 256)
    k.e("v_mov_b32 v12, 0", "v_mov_b32 v13, 0", ex(1), "buffer_store_dwordx2 v[12:13], v12, s[56:59], 0 offen sc1", ex(-1))
    k.label("a_h_noclr")
    sta(k, 8)
    kv_dma(k, 0, 7)


def gen_one(name):
    k = Kernel(name, vgprs=168)
    k.e("s_getpc_b64 s[62:63]")
    k.label("mega_pc")
    k.e("s_cmp_ge_u32 s2, 256", "s_cbranch_scc1 mega_end")
    k.e("s_memrealtime s[60:61]")
    k.e("s_load_dwordx2 s[10:11], s[0:1], 0", "s_load_dwordx4 s[68:71], s[0:1], 8", "s_load_dwordx2 s[72:73], s[0:1], 24",
        "s_load_dwordx2 s[8:9], s[0:1], 32", "s_load_dwordx4 s[4:7], s[0:1], 48", "s_load_dwordx2 s[14:15], s[0:1], 64",
        "s_load_dwordx2 s[74:75], s[0:1], 72", "s_load_dwordx2 s[12:13], s[0:1], 80")
    k.stamp(0)
    k.e("v_and_b32 v1, 63, v0", "v_and_b32 v2, 15, v0", "v_bfe_u32 v3, v0, 4, 2", "v_lshrrev_b32 v7, 6, v0",
        "v_lshlrev_b32 v11, 4, v1", "v_readfirstlane_b32 s30, v7")
    k.e("s_and_b32 s46, s2, 7", "s_lshr_b32 s47, s2, 3", "s_and_b32 s28, s47, 24", "s_add_u32 s28, s28, s46", "s_and_b32 s29, s47, 7",
        "s_lshr_b32 s48, s47, 3", "s_lshl_b32 s48, s48, 1", "s_add_u32 s48, s48, s29", "s_sub_u32 s34, s48, 9", "s_min_u32 s48, s48, s34",
        "s_lshl_b32 s48, s48, 1")
    k.e("s_cmp_ge_u32 s30, 8", "s_cbranch_scc1 mega_helper", "s_cmp_lt_u32 s30, 4", "s_cbranch_scc1 a_qw", "s_cmp_lt_u32 s30, 7", "s_cbranch_scc1 a_wk")
    k.e("s_cmp_lg_u32 s2, 0", "s_waitcnt lgkmcnt(0)", "s_cbranch_scc1 a_s_7")
    k.e("s_or_b32 s60, s60, 1", "v_mov_b32 v14, s60", "v_mov_b32 v15, s61", "v_mov_b32 v10, 0", ex(1),
        "global_store_dwordx2 v10, v[14:15], s[74:75] sc1", ex(-1), "s_branch a_s_7")
    k.label("a_wk")
    a_wkv_dma(k)
    k.e("s_cmp_eq_u32 s30, 4", "s_cbranch_scc1 a_kvw", "s_branch a_s_c")
    k.label("a_qw")
    a_qwave(k)
    k.e("s_branch a_done")
    k.label("a_kvw")
    a_kvwave(k)
    k.e("s_branch a_s_done")
    a_swave(k)
    k.label("a_done")
    k.e("s_setprio 3")
    k.e("s_mov_b32 s52, 0")
    attention(k)
    k.e("s_cmp_lg_u32 s52, 0", "s_cbranch_scc1 mega_ringed")
    ffn_ring_start(k)
    k.label("mega_ringed")
    lds_wait(k, LDS_ORD, 4, "ord2", sleep=4)
    if os.environ.get("PF1", "1") == "1":
        k.e("s_cmp_ge_u32 s30, 2", "s_cbranch_scc1 mega_nopf1",
            "s_mul_i32 s36, s30, 54", "v_min_u32 v12, 53, v1", "v_add_u32 v12, s36, v12", "s_movk_i32 s36, 7282", "v_mul_u32_u24 v13, s36, v12",
            "v_lshrrev_b32 v13, 16, v13", "v_mul_u32_u24 v14, 9, v13", "v_sub_u32 v12, v12, v14", "v_lshlrev_b32 v12, 7, v12",
            f"s_mov_b32 s36, {STREAM}", "v_mad_u32_u24 v12, v13, s36, v12",
            f"s_mul_i32 s36, s46, {1296*1024}", "s_mul_i32 s37, s47, 1152", "s_add_u32 s36, s36, s37", f"s_add_u32 s36, s36, {WS_W + 6*T*1024}",
            "buffer_load_dword v0, v12, s[16:19], s36 offen sc1", ("buffer_load_dword v0, v12, s[16:19], s36 offen offset:64 sc1" if os.environ.get("PF64") else ""))
        k.label("mega_nopf1")
    for t in range(T):
        k.e(wload(D - 1, t))
    k.e("s_waitcnt vmcnt(0)")
    stb(k, 4)
    k.e("s_branch ffn_join")
    k.label("mega_helper")
    a_helper(k)
    helper_pack(k)
    oproj(k)
    ffn(k)
    k.label("mega_end")
    k.e("s_endpgm", ".set CODE_BYTES, mega_end - mega_pc")
    return k
```

```python
import os
from asmlib import Kernel
from layout import *
from k_small import f2u, srd, ex, reduce_g_add, dma_slot_calc

S0, S1, OA, P, KF, V0, V1, K2F, Q, Q2E, Q2O = 16, 32, 48, 64, 72, 76, 80, 84, 88, 92, 94
T0 = 96
PIN, POUT, PS = 48, 96, 144
LDS_OST = 151808
LDS_RES = 92160
LDS_WO = 0
LDS_H = 73728
LDS_S = 161024
LDS_RDY = 163328
LDS_CNT = 163344
LDS_WQC = 163392
LDS_KVS = LDS_WQC + 12
LDS_KVR = LDS_WQC + 16
LDS_KMX = LDS_WQC + 20
LDS_KVI = LDS_WQC + 24
LDS_XC = LDS_WQC + 28
LDS_WKI = LDS_WQC + 32
LDS_REL = LDS_WQC + 36
LDS_NON = LDS_WQC + 40
LDS_ORD = LDS_WQC + 48
LDS_IMG = LDS_WQC + 52
LDS_MUS = LDS_WQC + 56
LDS_SRD = LDS_WQC + 60
LDS_QRD = LDS_WQC + 64
LDS_WDN = LDS_WQC + 72
LDS_IM0 = LDS_WQC + 76
LDS_MU = LDS_OST
LDS_MEGA = 163488
A_WKV = 0
A_WQ0 = 29696
A_X = 70656
A_WQ1 = A_X + 18432
A_SQ = LDS_S
A_SKV = LDS_S + 320
A_ST = LDS_S + 448
QX0, QACC, QWF, QONES = 48, 120, 140, 36
QACS = [16, 20, 24, 40, 44]
OX0, OACC, OWF = 96, 48, 68
XB0, ACC, WR = 16, 48, 96
D = 6
T = 3
STREAM = 36 * T * 1024
SPIN = 1 << 16
PSX, PSY = 73728, 589824
RX = RST = 0
if os.environ.get("CMP", "0") == "1":
    _d = -WS_FL
    F1, F2, FP, F3, FK = F1 + _d, F2 + _d, FP + _d, F3 + _d, FK + _d
    WS_KV, WS_SP, WS_W = 0x10000, 0x40000, 0x60000
    _R0, _RS = 0xA80000, 10 * 73728 + 4096
    WS_O, WS_H, WS_P, WS_ST = _R0, _R0 + 73728, _R0 + 2 * 73728, _R0 + 10 * 73728
    PSY, RX, RST = _RS, _RS - 73728, _RS - 4096
STA = bool(os.environ.get("STA"))


def sta(k, i):
    if STA:
        k.stamp(i)


STP = bool(os.environ.get("STP"))


def stb(k, i):
    if not STA and not STP and not (STT and i < 7) and not (STO and i > 6):
        k.stamp(i)


STT = bool(os.environ.get("STT"))


def stt(k, i):
    if STT:
        k.stamp(i)


STO = bool(os.environ.get("STO"))


def sto(k, i):
    if STO:
        k.stamp(i)


def stp(k, i):
    if STP:
        k.stamp(i)
WAUX = os.environ.get("WAUX", "sc1")


def r4(b):
    return f"v[{b}:{b+3}]"


def r16(b):
    return f"v[{b}:{b+15}]"


def poll(k, vaddr, soff, vtmp, tag, sleep=2, lo_only=False, first=0):
    lab, done = f"mega_poll_{tag}", f"mega_polld_{tag}"
    k.e(f"s_mov_b32 s3, {SPIN}")
    if first:
        k.e(f"s_sleep {first}")
    k.label(lab)
    k.e(f"s_sleep {sleep}", f"buffer_load_dwordx2 v[{vtmp}:{vtmp+1}], v{vaddr}, s[16:19], s{soff} offen sc1", "s_waitcnt vmcnt(0)")
    if lo_only:
        k.e(f"v_cmp_eq_u32 vcc, s66, v{vtmp}")
    else:
        k.e(f"v_cmp_eq_u64 vcc, s[66:67], v[{vtmp}:{vtmp+1}]")
    k.e("s_cmp_eq_u64 vcc, -1", f"s_cbranch_scc1 {done}", "s_sub_u32 s3, s3, 1", f"s_cbranch_scc0 {lab}")
    k.label(done)


def set_flag(k, soff):
    k.e("v_mov_b32 v12, 0", "v_mov_b32 v14, s66", "v_mov_b32 v15, s67", ex(1),
        f"buffer_store_dwordx2 v[14:15], v12, s[16:19], s{soff} offen sc1", ex(-1))


def lds_signal(k, addr, va=12, vb=13):
    k.e(f"v_mov_b32 v{va}, {addr}", f"v_mov_b32 v{vb}, 1", ex(1), f"ds_add_u32 v{va}, v{vb}", ex(-1))


def lds_wait(k, addr, n, tag, va=12, vb=13, sleep=int(os.environ.get("LWS", "1"))):
    lab, done = f"mega_lw_{tag}", f"mega_lwd_{tag}"
    k.e(f"v_mov_b32 v{va}, {addr}", f"s_mov_b32 s3, {SPIN*8}")
    k.label(lab)
    k.e(f"ds_read_b32 v{vb}, v{va}", "s_waitcnt lgkmcnt(0)", f"v_readfirstlane_b32 s39, v{vb}", f"s_cmp_ge_u32 s39, {n}",
        f"s_cbranch_scc1 {done}", f"s_sleep {sleep}", "s_sub_u32 s3, s3, 1", f"s_cbranch_scc0 {lab}")
    k.label(done)


def arrive(k, cnt, n, soff, tag, cnt_sgpr=None):
    if cnt_sgpr is None:
        k.e(f"v_mov_b32 v12, {LDS_CNT + 4*cnt}")
    else:
        k.e(f"v_mov_b32 v12, s{cnt_sgpr}")
    k.e("v_mov_b32 v13, 1", ex(1), "ds_add_rtn_u32 v14, v12, v13", ex(-1), "s_waitcnt lgkmcnt(0)",
        "v_readfirstlane_b32 s3, v14", f"s_cmp_lg_u32 s3, {n-1}", f"s_cbranch_scc1 mega_arr_{tag}")
    set_flag(k, soff)
    k.label(f"mega_arr_{tag}")


def publish_o(k, tag, pre=None):
    k.e("s_and_b32 s34, s30, 3", "s_lshr_b32 s35, s30, 2", "s_mul_i32 s36, s34, 2304", "s_mul_i32 s37, s35, 768",
        "s_add_u32 s36, s36, s37", f"s_add_u32 s36, s36, {LDS_OST}", "v_add_u32 v12, s36, v11",
        f"ds_read_b128 {r4(4)}, v12")
    k.e("s_lshl_b32 s36, s28, 2", "s_add_u32 s36, s36, s34", "s_mul_i32 s38, s36, 18432", "s_mul_i32 s39, s29, 2304",
        "s_add_u32 s38, s38, s39", "s_add_u32 s38, s38, s37", f"s_add_u32 s38, s38, {WS_O}", f"s_mul_i32 s39, s28, {RX}", "s_add_u32 s38, s38, s39")
    k.e("s_lshl_b32 s36, s28, 7", "s_lshl_b32 s39, s29, 3", "s_add_u32 s36, s36, s39", f"s_add_u32 s36, s36, {F1}")
    k.e("s_waitcnt lgkmcnt(0)", ex((1 << 48) - 1), f"buffer_store_dwordx4 {r4(4)}, v11, s[16:19], s38 offen sc1", ex(-1),
        "s_waitcnt vmcnt(0)")
    arrive(k, 1, 12, 36, tag)
    if pre:
        pre(k)


def attention(k):
    k.e("; ==== attention (waves 0..7; one (head, 32-query) unit each). S^T = K.Q^T - M comes straight out of the MFMAs:")
    k.e("v_and_b32 v2, 31, v1", "v_lshrrev_b32 v3, 5, v1")
    k.e("s_lshr_b32 s35, s30, 2", "s_mul_i32 s35, s35, 4608", f"s_add_u32 s35, s35, {LDS_OST}", "s_movk_i32 s36, 2304",
        "v_lshrrev_b32 v8, 4, v2", "v_mul_u32_u24 v8, s36, v8", "v_and_b32 v9, 15, v2", "v_lshl_add_u32 v8, v9, 4, v8",
        "v_add_u32 v8, s35, v8", "v_lshl_add_u32 v9, v3, 8, v8", "s_and_b32 s37, s30, 3", "s_mul_i32 s37, s37, 18")
    for i in range(4):
        k.e(f"s_add_u32 s38, s37, {2*i}", "s_lshr_b32 s39, s38, 3", "s_lshl_b32 s39, s39, 8", "s_and_b32 s38, s38, 7",
            "s_lshl_b32 s38, s38, 1", "s_add_u32 s38, s38, s39", f"v_add_u32 v{Q+i}, s38, v9")
        if i == 0:
            k.e(f"v_add_u32 v{T0}, s38, v8")
    k.e(f"v_mov_b32 v{T0+2}, {LDS_KMX}")
    k.e("v_mov_b32 v12, v11")
    k.e("v_cmp_eq_u32 vcc, 28, v2", "v_cndmask_b32 v13, v2, 18, vcc",
        "v_cmp_lt_u32 vcc, 18, v13", "v_mov_b32 v14, 0x10000", "v_cndmask_b32 v13, v13, v14, vcc",
        "s_movk_i32 s40, 304", "v_mul_u32_u24 v14, s40, v3", "v_lshl_add_u32 v13, v13, 4, v14", f"v_add_u32 v13, {KV_V}, v13")
    k.e("v_min_u32 v14, 32, v1", "v_lshlrev_b32 v14, 4, v14", f"v_add_u32 v14, {KV_K2}, v14")
    k.e("v_cmp_eq_u32 s[44:45], 1, v3")
    k.e("s_lshr_b32 s35, s30, 2", "s_lshl_b32 s35, s35, 2", f"s_add_u32 s35, s35, {LDS_QRD}")
    def zero_init():
        for r in list(range(OA, OA + 16)) + list(range(P, P + 8)) + list(range(V1, V1 + 4)):
            k.e(f"v_mov_b32 v{r}, 0")

    def setm():
        k.e(f"v_xor_b32 v{T0+2}, 0x80000000, v{T0+1}",
            f"v_and_b32 v{T0+3}, 0xffff0000, v{T0+2}", f"v_sub_f32 v{T0+2}, v{T0+2}, v{T0+3}",
            f"v_and_b32 v{T0+4}, 0xffff0000, v{T0+2}", f"v_sub_f32 v{T0+2}, v{T0+2}, v{T0+4}",
            f"v_lshrrev_b32 v{T0+3}, 16, v{T0+3}", f"v_or_b32 v{T0+3}, v{T0+3}, v{T0+4}",
            f"v_lshrrev_b32 v{T0+2}, 16, v{T0+2}")
        k.e(f"v_cndmask_b32 v{Q2E}, v{T0}, v{T0+3}, s[44:45]", f"v_cndmask_b32 v{Q2E+1}, 0, v{T0+2}, s[44:45]",
            f"v_cndmask_b32 v{Q2O}, 0, v{T0+3}, s[44:45]", f"v_cndmask_b32 v{Q2O+1}, v{T0}, v{T0+2}, s[44:45]")
    zero_init()
    k.e("v_mov_b32 v4, v12", "v_mov_b32 v5, v13", "v_mov_b32 v6, v14", "s_mov_b32 s32, 0", "s_mov_b32 s31, 2")
    sta(k, 4)
    lds_wait(k, LDS_IM0, 4, "im0", va=T0 + 6, vb=T0 + 7)
    k.e(f"ds_read_b32 v{T0+2}, v{T0+2}", f"v_mov_b32 v{T0+6}, {LDS_NON}", f"ds_read_b64 v[{T0+8}:{T0+9}], v{T0+6}",
        f"ds_read_b128 {r4(KF)}, v4", f"ds_read_b128 {r4(K2F)}, v6", f"ds_read_b128 {r4(V0)}, v5")
    sta(k, 5)
    lds_wait(k, "s35", 2, "qrd", va=T0 + 6, vb=T0 + 7)
    sta(k, 6)
    for i in range(4):
        k.e(f"ds_read_b32 v{Q+i}, v{Q+i}")
    k.e(f"ds_read_b32 v{T0}, v{T0} offset:512", f"v_readfirstlane_b32 s66, v{T0+8}", f"v_readfirstlane_b32 s67, v{T0+9}",
        f"v_mul_f32 v{T0+2}, {hex(f2u(1.02*1.02))}, v{T0+2}", f"v_mov_b32 v{T0+1}, 0", "s_waitcnt lgkmcnt(0)")
    k.e(f"v_cndmask_b32 v{T0}, v{T0}, 0, s[44:45]")
    for r in (Q, Q + 1, Q + 2, Q + 3, T0):
        k.e(f"v_dot2c_f32_bf16 v{T0+1}, v{r}, v{r}")
    k.e(f"v_mfma_f32_32x32x16_bf16 {r16(S0)}, {r4(KF)}, {r4(Q)}, 0", f"ds_read_b128 {r4(KF)}, v4 offset:1024")
    k.e(f"v_mov_b32 v{T0+4}, v{T0+1}", f"v_permlane32_swap_b32 v{T0+1}, v{T0+4}", f"v_add_f32 v{T0+1}, v{T0+1}, v{T0+4}")
    k.e(f"v_mul_f32 v{T0+1}, v{T0+1}, v{T0+2}", f"v_sqrt_f32 v{T0+1}, v{T0+1}")
    setm()
    k.e("s_setprio 2", "s_branch attn_go")
    k.label("attn_setm")
    setm()
    k.e("v_mov_b32 v4, v12", "v_mov_b32 v5, v13", "v_mov_b32 v6, v14")
    k.e("s_cmp_eq_u32 s32, 10", "s_cbranch_scc1 attn_maxpass")
    zero_init()
    k.e("s_mov_b32 s31, 16")
    k.e(f"ds_read_b128 {r4(KF)}, v4", f"ds_read_b128 {r4(K2F)}, v6", f"ds_read_b128 {r4(V0)}, v5", "s_waitcnt lgkmcnt(0)")
    k.e(f"v_mfma_f32_32x32x16_bf16 {r16(S0)}, {r4(KF)}, {r4(Q)}, 0", f"ds_read_b128 {r4(KF)}, v4 offset:1024")
    k.label("attn_go")
    k.e(f"v_mfma_f32_32x32x8_bf16 {r16(S0)}, v[{K2F}:{K2F+1}], v[{Q2E}:{Q2E+1}], {r16(S0)}")
    k.stamp(2)
    k.e("s_waitcnt lgkmcnt(0)", "s_nop 7", "s_nop 3")
    k.e(".p2align 6")
    k.label("attn_loop")
    for tau in range(4):
        cur, nxt = (S0, S1) if tau % 2 == 0 else (S1, S0)
        t1 = (tau + 1) % 4
        koff = (tau + 2) * 1024 if tau < 2 else GRP + (tau - 2) * 1024
        v0off = (tau + 1) * 1216 if tau < 3 else GRP

        def ex_(a, b):
            for i in range(a, b):
                k.e(f"v_exp_f32 v{cur+i}, v{cur+i}")

        def cv(a, b):
            for i in range(a, b):
                k.e(f"v_cvt_pk_bf16_f32 v{P+i}, v{cur+2*i}, v{cur+2*i+1}")
        e1, e2, e3, e4 = eval(os.environ.get("EXS", "(3, 6, 9, 12)"))
        k.e("s_waitcnt lgkmcnt(2)")
        k.e(f"v_mfma_f32_32x32x16_bf16 {r16(nxt)}, {r4(KF)}, {r4(Q)}, 0")
        k.e(f"ds_read_b128 {r4(KF)}, v4 offset:{koff}")
        ex_(0, e1)
        k.e("s_waitcnt lgkmcnt(2)")
        k.e(f"v_mfma_f32_32x32x16_bf16 {r16(OA)}, {r4(V1)}, {r4(P+4)}, {r16(OA)}")
        k.e(f"ds_read_b128 {r4(V1)}, v5 offset:{tau*1216+608}")
        ex_(e1, e2)
        q2 = Q2E if t1 % 2 == 0 else Q2O
        kk = K2F + 2 * (t1 // 2)
        k.e(f"v_mfma_f32_32x32x8_bf16 {r16(nxt)}, v[{kk}:{kk+1}], v[{q2}:{q2+1}], {r16(nxt)}")
        if tau == 2:
            k.e(f"ds_read_b128 {r4(K2F)}, v6 offset:{GRP}")
        ex_(e2, e3)
        cv(0, 4)
        ex_(e3, e4)
        k.e("s_waitcnt lgkmcnt(2)")
        k.e(f"v_mfma_f32_32x32x16_bf16 {r16(OA)}, {r4(V0)}, {r4(P)}, {r16(OA)}")
        k.e(f"ds_read_b128 {r4(V0)}, v5 offset:{v0off}")
        ex_(e4, 16)
        if tau == 3:
            k.e(f"v_add_u32 v4, {GRP}, v4", f"v_add_u32 v5, {GRP}, v5", f"v_add_u32 v6, {GRP}, v6")
            k.e("s_sub_u32 s31, s31, 1", "s_cmp_lg_u32 s31, 0")
        cv(4, 8)
    k.e("s_cbranch_scc1 attn_loop")
    k.e("s_cmp_ge_u32 s32, 4", "s_cbranch_scc1 attn_tail")
    k.e("s_add_u32 s32, s32, 1")
    k.e("s_cmp_eq_u32 s32, 2", "s_cbranch_scc1 attn_ph2", "s_cmp_eq_u32 s32, 3", "s_cbranch_scc1 attn_ph3",
        "s_cmp_eq_u32 s32, 4", "s_cbranch_scc1 attn_ph4")
    lds_wait(k, LDS_IMG, 4, "img", va=T0 + 6, vb=T0 + 7)
    k.e("s_mov_b32 s31, 9", "s_branch attn_loop")
    for ph, cnt, pr in eval(os.environ.get("PHS", "((2, 2, 1), (3, 2, 1), (4, 1, 0))")):
        k.label(f"attn_ph{ph}")
        k.e(f"s_setprio {pr}", f"s_mov_b32 s31, {cnt}")
        if ph == 2:
            k.e(f"v_cndmask_b32 v{T0+5}, v{OA+10}, v{OA+12}, s[44:45]", f"v_cmp_le_f32 vcc, {hex(f2u(2.0**-40))}, v{T0+5}",
                "s_cmp_eq_u64 vcc, -1", "s_cselect_b32 s34, 1, 0x101", f"v_mov_b32 v{T0+6}, {LDS_REL}", f"v_mov_b32 v{T0+7}, s34",
                ex(1), f"ds_add_u32 v{T0+6}, v{T0+7}", ex(-1))
        if ph == 4:
            k.e(f"v_mov_b32 v{T0+6}, {LDS_RDY}", f"ds_read_b32 v{T0+6}, v{T0+6}", "s_waitcnt lgkmcnt(0)",
                f"v_readfirstlane_b32 s52, v{T0+6}", "s_cmp_eq_u32 s52, 0", "s_cbranch_scc1 attn_loop")
            ffn_ring_start(k)
        k.e("s_branch attn_loop")
    k.label("attn_maxpass")
    k.e(f"v_mov_b32 v{T0+1}, 0xff800000", "s_mov_b32 s31, 16")
    k.label("attn_maxloop")
    k.e(f"ds_read_b128 {r4(K2F)}, v6")
    for tau in range(4):
        q2 = Q2E if tau % 2 == 0 else Q2O
        kk = K2F + 2 * (tau // 2)
        k.e(f"ds_read_b128 {r4(KF)}, v4 offset:{tau*1024}", "s_waitcnt lgkmcnt(0)")
        k.e(f"v_mfma_f32_32x32x16_bf16 {r16(S0)}, {r4(KF)}, {r4(Q)}, 0",
            f"v_mfma_f32_32x32x8_bf16 {r16(S0)}, v[{kk}:{kk+1}], v[{q2}:{q2+1}], {r16(S0)}")
        for i in range(8):
            k.e(f"v_max3_f32 v{T0+1}, v{S0+2*i}, v{S0+2*i+1}, v{T0+1}")
    k.e(f"v_add_u32 v4, {GRP}, v4", f"v_add_u32 v6, {GRP}, v6", "s_sub_u32 s31, s31, 1", "s_cmp_lg_u32 s31, 0",
        "s_cbranch_scc1 attn_maxloop")
    k.e(f"v_mov_b32 v{T0+2}, v{T0+1}", f"v_permlane32_swap_b32 v{T0+1}, v{T0+2}", f"v_max_f32 v{T0+1}, v{T0+1}, v{T0+2}")
    k.e("s_mov_b32 s32, 11", "s_branch attn_setm")
    k.label("attn_tail")
    k.e("s_waitcnt lgkmcnt(0)")
    k.e(f"v_mfma_f32_32x32x16_bf16 {r16(OA)}, {r4(V1)}, {r4(P+4)}, {r16(OA)}")
    k.e("s_and_b32 s34, s30, 3", "s_mul_i32 s34, s34, 18", "s_lshr_b32 s35, s30, 2", "s_mul_i32 s35, s35, 4608",
        f"s_add_u32 s35, s35, {LDS_OST}", "s_movk_i32 s36, 2304",
        f"v_lshrrev_b32 v{T0+9}, 4, v2", f"v_mul_u32_u24 v{T0+9}, s36, v{T0+9}", f"v_and_b32 v{T0+8}, 15, v2",
        f"v_lshl_add_u32 v{T0+9}, v{T0+8}, 4, v{T0+9}", f"v_add_u32 v{T0+9}, s35, v{T0+9}")
    k.e(f"v_lshl_add_u32 v{T0+6}, v3, 2, s34", f"v_add_u32 v{T0+7}, 2, v{T0+6}")
    for r in (T0 + 6, T0 + 7):
        k.e(f"v_lshrrev_b32 v{T0+8}, 3, v{r}", f"v_and_b32 v{r}, 7, v{r}", f"v_lshl_add_u32 v{r}, v{r}, 1, v{T0+9}",
            f"v_lshl_add_u32 v{r}, v{T0+8}, 8, v{r}")
    k.e(f"v_cndmask_b32 v{T0+5}, v{OA+10}, v{OA+12}, s[44:45]")
    k.e(f"v_cmp_le_f32 vcc, {hex(f2u(2.0**-40))}, v{T0+5}")
    k.e("s_cmp_eq_u32 s32, 11", "s_cbranch_scc1 attn_fin")
    k.e("s_cmp_eq_u64 vcc, -1", "s_cbranch_scc1 attn_fin")
    k.e("s_mov_b32 s32, 10", f"v_mov_b32 v{T0+1}, 0", "s_branch attn_setm")
    k.label("attn_fin")
    k.e(f"v_rcp_f32 v{T0+5}, v{T0+5}")
    for i in range(10):
        k.e(f"v_mul_f32 v{OA+i}, v{T0+5}, v{OA+i}")
    for i in range(5):
        k.e(f"v_cvt_pk_bf16_f32 v{P+i}, v{OA+2*i}, v{OA+2*i+1}")
    k.e(f"ds_write_b32 v{T0+6}, v{P}", f"ds_write_b32 v{T0+7}, v{P+1}",
        f"ds_write_b32 v{T0+6}, v{P+2} offset:256", f"ds_write_b32 v{T0+7}, v{P+3} offset:256",
        ex(0xffffffff), f"ds_write_b32 v{T0+6}, v{P+4} offset:512", ex(-1))
    k.e("s_waitcnt lgkmcnt(0)", "s_barrier")
    stb(k, 3)
    publish_o(k, "oa")


def kv_dma(k, a, b):
    for i in range(a, b):
        k.e(f"s_add_u32 m0, s34, {i*4096}", f"s_sub_u32 s36, s35, {IMG - 4096}", "buffer_load_dwordx4 v10, s[16:19], s35 offen sc1 lds",
            "s_add_u32 s35, s35, 4096", "s_min_u32 s35, s35, s36")


NB = 7


def roll_gemm(k, steps, rd, mfma, pre=None):
    seq = [(s, t) for s in steps for t in range(5)]
    n = len(seq)
    for i in range(min(NB, n)):
        rd(seq[i][1], seq[i][0], i % NB)
    for i, (s, t) in enumerate(seq):
        ahead = min(NB - 1, n - 1 - i)
        extra = pre(s) if (pre and t == 0) else ""
        k.e(f"s_waitcnt lgkmcnt({2*ahead}){extra}")
        mfma(t, s, i % NB)
        if i + NB < n:
            rd(seq[i + NB][1], seq[i + NB][0], i % NB)


def roll_gemm2(k, steps, rd2, mf2):
    seq = [(s, t) for s in steps for t in range(5)]
    n = len(seq)
    for i in range(min(NB, n)):
        k.e(*rd2(seq[i][1], seq[i][0], i % NB))
    for i, (s, t) in enumerate(seq):
        issued = min(n, NB + max(0, i - 1))
        k.e(f"s_waitcnt lgkmcnt({2*(issued - 1 - i)})")
        m = mf2(t, s, i % NB)
        j = i - 1 + NB
        r = rd2(seq[j][1], seq[j][0], (i - 1) % NB) if (i >= 1 and j < n) else ["", ""]
        k.e(m[0], r[0], m[1], r[1])


def helper_pack(k):
    k.e("; ==== helper waves 8..11: K/V image -> LDS, re-pack W1/W2 slice into MFMA fragment order (+ column sums of W1)")
    def dma(a, b):
        kv_dma(k, a, b)
    k.e("s_waitcnt vmcnt(0)")
    lds_signal(k, LDS_IM0)
    lds_wait(k, LDS_WDN, 4, "wdn")
    dma(7, 37)
    k.e("s_cmp_lg_u32 s31, 0", "s_cbranch_scc1 mega_h_nolast")
    k.e(ex(0xffff))
    dma(37, 38)
    k.e(ex(-1))
    k.label("mega_h_nolast")
    k.e("s_lshl_b32 s34, s31, 6", "v_add_u32 v12, s34, v1", "v_min_u32 v12, 161, v12", "v_lshlrev_b32 v12, 7, v12",
        "s_mul_i32 s34, s47, 20736")
    k.e("s_lshl_b32 s50, s31, 5", "s_add_u32 s50, s50, s47",
        "s_cmp_ge_u32 s50, 54", "s_cselect_b32 s53, 1, 0",
        "s_mul_i32 s51, s53, 54", "s_sub_u32 s51, s50, s51",
        "s_mul_i32 s54, s51, 57", "s_lshr_b32 s54, s54, 10",
        "s_mul_i32 s52, s54, 18", "s_sub_u32 s52, s51, s52",
        "s_cmp_eq_u32 s53, 0",
        "s_cselect_b32 s20, s4, s6", "s_cselect_b32 s21, s5, s7", f"s_mov_b32 s22, {hex(W1B)}", "s_mov_b32 s23, 0x00020000",
        "s_movk_i32 s56, 1152", "s_cselect_b32 s56, 9216, s56",
        "s_movk_i32 s57, 1152", "s_cselect_b32 s57, s57, 663552", "s_mul_i32 s57, s57, s46",
        "s_mul_i32 s58, s54, 192", "s_mul_i32 s58, s58, s56", "s_add_u32 s57, s57, s58",
        "s_lshl_b32 s58, s52, 6", "s_add_u32 s57, s57, s58")
    k.e("s_add_u32 s58, s53, s54", "s_cmp_eq_u32 s58, 3", "s_cselect_b32 s58, 2, 1", "s_cselect_b32 s59, -5, 1",
        "s_mul_i32 s58, s58, s56", "s_mul_i32 s59, s59, s56", "s_mul_i32 s60, s56, 25")
    k.e("v_lshrrev_b32 v2, 4, v1", "v_lshlrev_b32 v2, 3, v2", "v_mul_u32_u24 v15, s56, v2", "v_and_b32 v3, 15, v1",
        "v_lshl_add_u32 v15, v3, 2, v15", "v_lshlrev_b32 v8, 2, v3",
        "s_mov_b32 s64, 0x05040100", "s_mov_b32 s65, 0x07060302")
    k.e(f"s_mul_i32 s62, s52, {STREAM}", f"s_mul_i32 s63, s52, {2*STREAM}", f"s_sub_u32 s63, s63, {24*STREAM - 2048}",
        "s_cmp_lt_u32 s52, 12", "s_cselect_b32 s62, s62, s63", "s_movk_i32 s61, 1024", f"s_cselect_b32 s61, s61, {STREAM}",
        "s_mul_i32 s63, s53, 3", "s_add_u32 s63, s63, s54", f"s_mul_i32 s63, s63, {6*3072}", "s_add_u32 s62, s62, s63",
        f"s_mul_i32 s63, s46, {1296*1024}", "s_add_u32 s62, s62, s63", f"s_add_u32 s62, s62, {WS_W}",
        "s_add_u32 s61, s61, s62")
    for i in range(4):
        k.e(f"v_mov_b32 v{PS+8+i}, 0x3f803f80")
    k.e("s_waitcnt vmcnt(0)")
    lds_signal(k, LDS_IMG, va=9, vb=10)
    stp(k, 3)
    k.e("buffer_load_dword v13, v12, s[24:27], s34 offen", ("buffer_load_dword v13, v12, s[24:27], s34 offen offset:64" if os.environ.get("PF64") else ""))
    k.e("s_cmp_ge_u32 s50, 108", "s_cbranch_scc1 mega_h_nounit")
    for ss in range(6):
        for jj in range(8):
            k.e(f"buffer_load_dword v{PIN+8*ss+jj}, v15, s[20:23], s57 offen {os.environ.get('PKL', '')}",
                f"s_add_u32 s57, s57, s{60 if jj == 7 else (59 if jj == 3 else 58)}")
    stp(k, 4)
    for ss in range(6):
        k.e(f"s_waitcnt vmcnt({40 - 8*ss + 2*ss})")
        if ss in (0, 5):
            stp(k, 5 if ss == 0 else 6)
        for e in range(2):
            for q in range(4):
                k.e(f"v_perm_b32 v{POUT+8*ss+4*e+q}, v{PIN+8*ss+2*q+1}, v{PIN+8*ss+2*q}, s{64+e}")
            k.e(f"buffer_store_dwordx4 {r4(POUT+8*ss+4*e)}, v11, s[16:19], s{62-e} offen sc1", f"s_add_u32 s{62-e}, s{62-e}, 3072")
    stp(k, 7)
    k.e("s_cmp_lg_u32 s53, 0", "s_cbranch_scc1 mega_h_nounit")
    for ss in range(6):
        for e in range(2):
            k.e(f"v_mfma_f32_16x16x32_bf16 {r4(PS+4*e)}, {r4(PS+8)}, {r4(POUT+8*ss+4*e)}, {r4(PS+4*e) if ss else 0}")
    k.e("s_mul_i32 s58, s54, 18432", "s_mul_i32 s59, s46, 2304", "s_add_u32 s58, s58, s59", "s_lshl_b32 s59, s52, 7",
        "s_add_u32 s58, s58, s59", f"s_add_u32 s58, s58, {WS_SP}")
    k.e(ex(0xffff), f"buffer_store_dword v{PS}, v8, s[16:19], s58 offen sc1",
        f"buffer_store_dword v{PS+4}, v8, s[16:19], s58 offen offset:64 sc1", ex(-1))
    k.label("mega_h_nounit")
    k.e("s_waitcnt vmcnt(0)", "s_lshl_b32 s34, s46, 9", f"s_add_u32 s36, s34, {FP}", "s_lshr_b32 s35, s47, 3", "s_lshl_b32 s35, s35, 7",
        "s_add_u32 s34, s36, s35", "s_lshl_b32 s35, s29, 3", "s_add_u32 s34, s34, s35")
    k.stamp(2)
    arrive(k, 0, 4, 34, "p")
    k.e("s_cmp_lg_u32 s31, 3", "s_cbranch_scc1 mega_h_nofp")
    lds_wait(k, LDS_QRD, 2, "qa")
    lds_wait(k, LDS_QRD + 4, 2, "qb")
    k.e("v_bfe_u32 v12, v1, 3, 2", "v_lshlrev_b32 v12, 7, v12", "v_and_b32 v13, 7, v1", "v_lshl_add_u32 v12, v13, 3, v12")
    poll(k, 12, 36, 14, "p", sleep=16)
    k.e("v_add_u32 v13, 128, v1", "v_min_u32 v13, 143, v13", "v_lshlrev_b32 v13, 4, v13",
        "s_mul_i32 s34, s46, 2304", f"s_add_u32 s34, s34, {WS_SP}")
    for i in range(3):
        k.e(f"buffer_load_dwordx4 {r4(PIN+12*i)}, v11, s[16:19], s34 offen sc1", f"buffer_load_dwordx4 {r4(PIN+12*i+4)}, v11, s[16:19], s34 offen offset:1024 sc1",
            f"buffer_load_dwordx4 {r4(PIN+12*i+8)}, v13, s[16:19], s34 offen sc1", "s_add_u32 s34, s34, 18432")
    k.e(f"v_mov_b32 v14, {LDS_RDY}", "v_mov_b32 v15, 1", "ds_write_b32 v14, v15")
    k.e("v_lshlrev_b32 v14, 7, v1", "v_and_b32 v15, 3, v1", "v_lshlrev_b32 v15, 7, v15",
        f"s_mul_i32 s34, s46, {1296*1024}", "s_mul_i32 s35, s47, 41472", "s_add_u32 s34, s34, s35", f"s_add_u32 s34, s34, {WS_W}")
    for i in range(6):
        if os.environ.get("PF64"):
            k.e(f"buffer_load_dword v{POUT+i}, v{14 if i < 5 else 15}, s[16:19], s34 offen offset:64 sc1")
        k.e(f"buffer_load_dword v{POUT+i}, v{14 if i < 5 else 15}, s[16:19], s34 offen sc1", "s_add_u32 s34, s34, 8192")
    k.e(f"v_add_u32 v12, {LDS_S}, v11", f"v_add_u32 v13, {LDS_S}, v13", "s_waitcnt vmcnt(6)")
    for i in range(1, 3):
        for c in range(12):
            k.e(f"v_add_f32 v{PIN+c}, v{PIN+c}, v{PIN+12*i+c}")
    k.e(f"ds_write_b128 v12, {r4(PIN)}", f"ds_write_b128 v12, {r4(PIN+4)} offset:1024", f"ds_write_b128 v13, {r4(PIN+8)}",
        "s_waitcnt lgkmcnt(0)")
    k.label("mega_h_nofp")


def wo_dma(k, tag):
    k.e("s_mul_i32 s32, s29, 144", "s_lshl_b32 s42, s29, 1", "s_add_u32 s42, s42, s31",
        "s_mul_i32 s43, s31, 5120", f"s_add_u32 s43, s43, {LDS_WO}")

    k.e("s_cmp_eq_u32 s31, 3", f"s_cbranch_scc1 mega_o_skip{tag}")
    for grp in range(6):
        k.e("s_sub_u32 s36, s42, 18", "s_min_u32 s42, s42, s36", "s_mul_i32 s36, s42, 36864", "s_add_u32 s36, s36, s32")
        for i in range(5):
            k.e(f"s_add_u32 m0, s43, {grp*3*5120 + i*1024}", "s_nop 0", f"buffer_load_dwordx4 v{16+i}, s[24:27], s36 offen lds")
        k.e("s_add_u32 s42, s42, 3")
    k.label(f"mega_o_skip{tag}")
    srd(k, 56, 10, XB)
    k.e("s_add_u32 s35, s49, s32")
    for i in range(3):
        if i == 2:
            k.e(ex(0xffffffff))
        k.e(f"s_add_u32 m0, s44, {i*1024}", "s_nop 0", f"buffer_load_dwordx4 v{16+i}, s[56:59], s35 offen lds")
    k.e(ex(-1), "s_waitcnt vmcnt(0)")
    for t in range(5):
        k.e(f"ds_read_b64 v[{36+2*t}:{37+2*t}], v21 offset:{32*t}")
    k.e("s_cmp_eq_u32 s31, 3", f"s_cbranch_scc1 mega_c_skip{tag}")
    k.e("v_add_u32 v32, s43, v28", "v_add_u32 v33, s43, v29", "v_add_u32 v34, s43, v11", "s_mov_b32 s36, 6")
    k.label(f"mega_conv{tag}")
    for t in range(5):
        k.e(f"ds_read_b64_tr_b16 v[{OWF+4*t}:{OWF+4*t+1}], v32 offset:{32*t}", f"ds_read_b64_tr_b16 v[{OWF+4*t+2}:{OWF+4*t+3}], v33 offset:{32*t}")
    k.e("v_add_u32 v32, 15360, v32", "v_add_u32 v33, 15360, v33", "s_waitcnt lgkmcnt(0)")
    for t in range(5):
        k.e(f"ds_write_b128 v34, {r4(OWF+4*t)} offset:{1024*t}")
    k.e("v_add_u32 v34, 15360, v34", "s_sub_u32 s36, s36, 1", "s_cmp_lg_u32 s36, 0", f"s_cbranch_scc1 mega_conv{tag}")
    k.label(f"mega_c_skip{tag}")
    k.e("s_waitcnt lgkmcnt(0)")
    for t in range(5):
        a = OACC + 4 * t
        k.e(f"v_lshlrev_b32 v{a}, 16, v{36+2*t}", f"v_and_b32 v{a+1}, 0xffff0000, v{36+2*t}",
            f"v_lshlrev_b32 v{a+2}, 16, v{37+2*t}", f"v_and_b32 v{a+3}, 0xffff0000, v{37+2*t}")


def oproj(k):
    k.e("; ==== output projection + residual + LayerNorm-2 partial statistics (helper waves)")
    k.e("v_and_b32 v2, 15, v1", "v_lshrrev_b32 v3, 4, v1")
    k.e("v_lshrrev_b32 v32, 2, v2",
        "v_and_b32 v33, 1, v3", "v_lshlrev_b32 v33, 2, v33", "v_add_u32 v32, v32, v33",
        "v_lshl_add_u32 v32, v3, 3, v32", "v_xor_b32 v33, 4, v32", "s_movk_i32 s40, 160",
        "v_and_b32 v34, 3, v2", "v_lshlrev_b32 v34, 3, v34", f"v_add_u32 v34, {LDS_WO}, v34",
        "v_mad_u32_u24 v28, v32, s40, v34", "v_mad_u32_u24 v29, v33, s40, v34",
        "v_add_u32 v30, 61440, v11")
    k.e("s_mul_i32 s44, s31, 2560", f"s_add_u32 s44, s44, {LDS_RES}",
        "v_and_b32 v21, 8, v2", "v_lshrrev_b32 v21, 1, v21", "v_xor_b32 v21, v21, v2", "v_mul_u32_u24 v21, s40, v21",
        "v_lshl_add_u32 v21, v3, 3, v21", "v_add_u32 v21, s44, v21")
    k.e("v_and_b32 v22, 1, v3", "v_lshlrev_b32 v22, 9, v22", "v_lshrrev_b32 v32, 1, v3", "v_lshl_add_u32 v22, v32, 8, v22",
        "v_lshl_add_u32 v22, v2, 4, v22")
    k.e("v_and_b32 v23, 7, v1", "v_lshlrev_b32 v23, 3, v23")
    k.e("s_lshl_b32 s48, s28, 2", "s_add_u32 s48, s48, s31", "s_mul_i32 s49, s48, 18432")
    k.e(f"s_mul_i32 s68, s28, {RX}", "s_add_u32 s68, s68, s49", f"s_add_u32 s34, s68, {WS_O}", "v_add_u32 v24, s34, v11", "s_lshl_b32 s51, s29, 11")
    k.e(f"v_mov_b32 v12, {LDS_REL}", f"s_mov_b32 s3, {SPIN*8}")
    k.label("mega_rel")
    k.e("ds_read_b32 v13, v12", "s_waitcnt lgkmcnt(0)", "v_readfirstlane_b32 s50, v13", "s_and_b32 s39, s50, 0xff", "s_cmp_ge_u32 s39, 8",
        "s_cbranch_scc1 mega_reld", "s_sleep 4", "s_sub_u32 s3, s3, 1", "s_cbranch_scc0 mega_rel")
    k.label("mega_reld")
    if os.environ.get("PFC") == "2":
        k.e("s_cmp_lg_u32 s31, 3", "s_cbranch_scc1 a_nopfc", "s_getpc_b64 s[70:71]")
        k.label("mega_pc2")
        k.e("s_mul_i32 s36, s47, 512", "v_min_u32 v9, 3, v1", "v_lshlrev_b32 v9, 7, v9",
            "v_add_u32 v9, s36, v9", "v_min_u32 v9, mega_end - mega_pc2 - 4, v9", "global_load_dword v10, v9, s[70:71]")
        k.label("a_nopfc")
    k.e("s_cmp_lg_u32 s50, 8", "s_cbranch_scc1 mega_noearly")
    wo_dma(k, "a")
    k.label("mega_noearly")
    stp(k, 8)
    k.e("s_waitcnt lgkmcnt(0)", "s_barrier")
    stb(k, 3)
    publish_o(k, "ob")
    k.e("s_cmp_eq_u32 s50, 8", "s_cbranch_scc1 mega_nolate")
    wo_dma(k, "b")
    k.label("mega_nolate")
    k.e("s_lshl_b32 s34, s28, 7", f"s_add_u32 s34, s34, {F1}")
    k.e("s_cmp_lg_u32 s31, 0", "s_cbranch_scc1 mega_polld_o")
    lds_wait(k, LDS_CNT + 4, 12, "owno")
    poll(k, 23, 34, 32, "o", sleep=int(os.environ.get("OSP", "2")))
    lds_signal(k, LDS_ORD)
    lds_wait(k, LDS_ORD, 4, "ord")
    stb(k, 4)
    for s in range(18):
        k.e(f"buffer_load_dwordx4 v[{OX0+4*s}:{OX0+4*s+3}], v24, s[16:19], s51 offen sc1",
            "s_add_u32 s51, s51, 1024", "s_cmp_eq_u32 s51, 18432", "s_cselect_b32 s51, 0, s51")

    seq = [(s, t) for s in range(18) for t in range(5)]

    def rd(i):
        s, t = seq[i]
        off = (s if s < 12 else s - 12) * 5120 + 1024 * t
        k.e(f"ds_read_b128 {r4(OWF+4*(i%NB))}, v{11 if s < 12 else 30} offset:{off}")
    for i in range(NB):
        rd(i)
    ring_srd(k)
    for i, (s, t) in enumerate(seq):
        k.e(f"s_waitcnt lgkmcnt({min(NB-1, 89-i)})" + (f" vmcnt({17 - s + 3*(s//3)})" if t == 0 else ""))
        a = r4(OACC + 4 * t)
        k.e(f"v_mfma_f32_16x16x32_bf16 {a}, {r4(OWF+4*(i%NB))}, {r4(OX0+4*s)}, {a}")
        if i + NB < 90:
            rd(i + NB)
        if t == 4 and s % 3 == 2:
            st = (s // 3 + 5) % 6
            k.e(f"s_movk_i32 s53, {st*T*1024}")
            for tt in range(T):
                k.e(wload(st, tt))
    sto(k, 1)
    k.e("v_mov_b32 v6, 0", "v_mov_b32 v7, 0", "v_mov_b32 v34, 0x3f803f80",
        "s_mul_i32 s35, s29, 2304", "s_add_u32 s35, s35, s68", f"s_add_u32 s35, s35, {WS_H}")
    for t in range(5):
        a = OACC + 4 * t
        d = OWF + 2 * t
        k.e(f"v_cvt_pk_bf16_f32 v{d}, v{a}, v{a+1}", f"v_cvt_pk_bf16_f32 v{d+1}, v{a+2}, v{a+3}")
        if t == 4:
            k.e(ex(0xffffffff))
        k.e(f"v_dot2c_f32_bf16 v6, v{d}, v34", f"v_dot2c_f32_bf16 v7, v{d}, v{d}",
            f"v_dot2c_f32_bf16 v6, v{d+1}, v34", f"v_dot2c_f32_bf16 v7, v{d+1}, v{d+1}")
        if t == 4:
            k.e(ex(-1))
        if t % 2 == 1 or t == 4:
            b = OWF + 4 * (t // 2)
            k.e(f"v_permlane16_swap_b32 v{b}, v{b+2}", f"v_permlane16_swap_b32 v{b+1}, v{b+3}")
            if t == 4:
                k.e(ex(0xffff))
            k.e(f"buffer_store_dwordx4 {r4(b)}, v22, s[16:19], s35 offen offset:{1024*(t//2)} sc1")
            if t == 4:
                k.e(ex(-1))
    reduce_g_add(k, [6, 7], [32, 33])
    k.e("v_lshlrev_b32 v32, 4, v2", "s_lshl_b32 s35, s48, 10", "s_lshr_b32 s34, s29, 1", "s_lshl_b32 s34, s34, 8",
        "s_add_u32 s35, s35, s34", "s_and_b32 s34, s29, 1", "s_lshl_b32 s34, s34, 3", "s_add_u32 s35, s35, s34",
        f"s_add_u32 s35, s35, {WS_ST}", f"s_mul_i32 s34, s28, {RST}", "s_add_u32 s35, s35, s34", ex(0xffff))
    k.e("buffer_store_dwordx2 v[6:7], v32, s[16:19], s35 offen sc1", ex(-1))
    sto(k, 2)
    k.e("s_lshl_b32 s34, s28, 7", "s_lshl_b32 s35, s29, 3", "s_add_u32 s34, s34, s35", f"s_add_u32 s34, s34, {F2}", "s_waitcnt vmcnt(0)")
    sto(k, 7)
    arrive(k, 2, 4, 34, "h")


def acc(t, mb):
    return ACC + (t * 4 + mb) * 4


def wreg(slot, t):
    return WR + ((slot + 1) % 6) * 12 + t * 4


def wload(slot, t):
    return f"buffer_load_dwordx4 {r4(wreg(slot, t))}, v11, s[20:23], s53 offen offset:{1024*t} {WAUX}"


def ring_srd(k):
    k.e(f"s_mul_i32 s34, s30, {STREAM}", f"s_mul_i32 s35, s46, {1296*1024}", "s_add_u32 s34, s34, s35", f"s_add_u32 s34, s34, {WS_W}",
        "s_add_u32 s20, s12, s34", "s_addc_u32 s21, s13, 0", f"s_mov_b32 s22, {STREAM}", "s_mov_b32 s23, 0x00020000")


def ffn_ring_start(k, n=D - 1):
    ring_srd(k)
    k.e("s_mov_b32 s53, 0")
    for st in range(n):
        for t in range(T):
            k.e(wload(st, t))
        k.e(f"s_add_u32 s53, s53, {T*1024}")


def ffn(k):
    k.label("ffn_join")
    k.e("s_setprio 0", "v_and_b32 v2, 15, v1", "v_lshrrev_b32 v3, 4, v1")
    k.e("s_lshl_b32 s34, s47, 2", "s_and_b32 s35, s30, 3", "s_add_u32 s34, s34, s35", "s_mul_i32 s41, s34, 18432",
        "s_lshr_b32 s35, s30, 2", "s_lshl_b32 s35, s35, 10", "s_add_u32 s41, s41, s35", f"s_add_u32 s41, s41, {WS_H}", f"s_mul_i32 s35, s47, {RX}", "s_add_u32 s41, s41, s35",
        "s_lshl_b32 s42, s30, 10")
    k.e("s_lshl_b32 s34, s30, 7", f"s_add_u32 s34, s34, {LDS_S}", "v_lshlrev_b32 v13, 4, v3", "v_add_u32 v12, s34, v13",
        "s_lshl_b32 s34, s30, 6", f"s_add_u32 s34, s34, {LDS_S + 1536}", "v_add_u32 v13, s34, v13",
        f"ds_read_b128 {r4(XB0+16)}, v12", f"ds_read_b128 {r4(XB0+20)}, v12 offset:64", f"ds_read_b128 {r4(XB0+24)}, v13")
    k.e("v_lshlrev_b32 v9, 2, v2", f"v_add_u32 v9, {LDS_MU}, v9", "s_and_b32 s34, s46, 3", "s_lshl_b32 s34, s34, 6", "v_add_u32 v10, s34, v9")
    k.e(f"s_movk_i32 s53, {D*T*1024}")
    k.e("s_cmp_lg_u32 s30, 0", "s_cbranch_scc1 ffn_g")
    k.e("v_and_b32 v12, 7, v1", "v_lshlrev_b32 v12, 3, v12", "s_lshl_b32 s34, s47, 7", f"s_add_u32 s34, s34, {F2}",
        "v_lshlrev_b32 v8, 10, v3", "v_lshl_add_u32 v8, v2, 4, v8", f"s_mul_i32 s35, s47, {RST + 4096}", f"s_add_u32 s35, s35, {WS_ST}")
    lds_wait(k, LDS_CNT + 8, 4, "own", va=14, vb=15, sleep=2)
    poll(k, 12, 34, 14, "h", sleep=int(os.environ.get("HSP", "3")))
    for p in range(4):
        k.e(f"buffer_load_dwordx4 {r4(XB0+4*p)}, v8, s[16:19], s35 offen offset:{256*p} sc1")
    k.label("ffn_g")
    k.e("s_barrier")
    stb(k, 5)
    NF = int(os.environ.get("NF", "2"))
    for i in range(NF):
        k.e(f"s_add_u32 m0, s42, {i*12288}", f"s_add_u32 s36, s41, {i*3072}", f"buffer_load_dwordx4 v11, s[16:19], s36 offen {os.environ.get('HNT', '')} sc1 lds")
    k.e("s_cmp_lg_u32 s30, 0", "s_cbranch_scc1 ffn_st")
    k.e(f"s_waitcnt vmcnt({NF})")
    for p in range(1, 4):
        for c in range(4):
            k.e(f"v_add_f32 v{XB0+c}, v{XB0+c}, v{XB0+4*p+c}")
    k.e(f"v_add_f32 v4, v{XB0}, v{XB0+2}", f"v_add_f32 v5, v{XB0+1}, v{XB0+3}",
        f"v_mul_f32 v4, {hex(f2u(-1/576))}, v4", f"v_mul_f32 v5, {hex(f2u(1/576))}, v5", "v_fma_f32 v5, -v4, v4, v5", "v_max_f32 v5, 0, v5",
        f"v_add_f32 v5, {hex(f2u(1e-5))}, v5", "v_rsq_f32 v5, v5", "v_lshlrev_b32 v6, 2, v1", f"v_add_u32 v6, {LDS_MU}, v6",
        "ds_write_b32 v6, v4", "ds_write_b32 v6, v5 offset:256")
    lds_signal(k, LDS_MUS)
    k.label("ffn_st")
    lds_wait(k, LDS_MUS, 1, "mus")
    for i in range(NF, 4):
        k.e(f"s_add_u32 m0, s42, {i*12288}", f"s_add_u32 s36, s41, {i*3072}", f"buffer_load_dwordx4 v11, s[16:19], s36 offen {os.environ.get('HNT', '')} sc1 lds")
    sto(k, 8)
    for mb in range(4):
        k.e(f"ds_read_b32 v{4+mb}, v9 offset:{64*mb}")
    k.e("ds_read_b32 v8, v10 offset:256", "s_waitcnt lgkmcnt(0)")
    for t in range(T):
        for mb in range(4):
            for i in range(4):
                k.e(f"v_mul_f32 v{acc(t,mb)+i}, v{4+mb}, v{XB0+16+4*t+i}")
    k.e("s_add_u32 s41, s41, 12288", "s_add_u32 s42, s42, 49152")
    k.e("s_waitcnt vmcnt(3)", "s_barrier")
    stb(k, 6)
    if os.environ.get("PF2") == "2":
        k.e("v_min_u32 v0, 13, v1", "v_lshlrev_b32 v0, 7, v0", "s_mul_i32 s36, s47, 1728", "s_and_b32 s36, s36, 0xffffff80", f"s_add_u32 s36, s36, {18*T*1024}",
            "buffer_load_dword v0, v0, s[20:23], s36 offen sc1")
    k.e("v_mov_b32 v10, v11", "s_mov_b32 s31, 0")

    def step(u, loads=True):
        xb = XB0 + 16 * (u % 2)
        xn = XB0 + 16 * ((u + 1) % 2)
        fill = [f"ds_read_b128 {r4(xn+4*mb)}, v10 offset:{(u+1)*4096 + 1024*mb}" for mb in range(4)]
        if loads:
            fill += [wload((u + D - 1) % D, t) for t in range(T)]
            fill += [f"s_add_u32 s53, s53, {T*1024}"]
        order = [(t, mb) for t in range(T) for mb in range(4)]
        if os.environ.get("ORD") == "snake":
            order = [(t, mb if t % 2 == 0 else 3 - mb) for t in range(T) for mb in range(4)]
        if os.environ.get("ORD") == "mb":
            order = [(t if mb % 2 == 0 else T - 1 - t, mb) for mb in range(4) for t in range(T)]
        for t, mb in order:
            a = r4(acc(t, mb))
            k.e(f"v_mfma_f32_16x16x32_bf16 {a}, {r4(wreg(u, t))}, {r4(xb+4*mb)}, {a}")
            if fill:
                k.e(fill.pop(0))
    for mb in range(4):
        k.e(f"ds_read_b128 {r4(XB0+4*mb)}, v10 offset:{1024*mb}")
    k.e("s_waitcnt lgkmcnt(0)")
    step(0, loads=False)
    k.e("s_branch ffn_u1")
    k.label("ffn_start")
    for mb in range(4):
        k.e(f"ds_read_b128 {r4(XB0+4*mb)}, v10 offset:{1024*mb}")
    k.e(".p2align 6")
    k.label("ffn_loop")
    k.e("s_cmp_lg_u32 s31, 1", "s_cbranch_scc1 ffn_nodma")
    for i in range(2):
        k.e(f"s_add_u32 m0, s42, {i*12288}", f"s_add_u32 s36, s41, {i*3072}", f"buffer_load_dwordx4 v11, s[16:19], s36 offen {os.environ.get('HNT', '')} sc1 lds")
    if os.environ.get("PF2", "1") == "1":
        k.e("v_min_u32 v0, 13, v1", "v_lshlrev_b32 v0, 7, v0", "s_mul_i32 s36, s47, 1728", "s_and_b32 s36, s36, 0xffffff80", f"s_add_u32 s36, s36, {18*T*1024}",
            ("buffer_load_dword v15, v0, s[20:23], s36 offen offset:64 sc1" if os.environ.get("PF64") else ""),
            "buffer_load_dword v0, v0, s[20:23], s36 offen sc1")
    k.label("ffn_nodma")
    for u in range(D):
        if u == 1:
            k.label("ffn_u1")
        k.e(f"s_waitcnt vmcnt({4*T}) lgkmcnt(0)")
        if u == D - 1:
            k.e("s_cmp_ge_u32 s31, 2", "s_cbranch_scc1 ffn_nobar", "s_barrier")
            k.label("ffn_nobar")
        if u == 2:
            k.e("s_cmp_lg_u32 s31, 0", "s_cbranch_scc1 ffn_nobar2", "s_waitcnt vmcnt(5)", "s_barrier")
            k.label("ffn_nobar2")
        step(u)
    k.e(f"v_add_u32 v10, {D*4096}, v10", "s_add_u32 s31, s31, 1",
        "s_cmp_eq_u32 s31, 3", "s_cbranch_scc1 ffn_ep1",
        "s_cmp_lt_u32 s31, 6", "s_cbranch_scc1 ffn_loop")
    stb(k, 8)
    k.e("s_waitcnt lgkmcnt(0)")
    k.e(f"s_mul_i32 s34, s46, {PSX}", f"s_mul_i32 s33, s47, {PSY}", f"s_add_u32 s33, s33, {WS_P}", "s_add_u32 s34, s34, s33",
        "s_lshl_b32 s35, s30, 10", "s_add_u32 s36, s34, s35",
        "s_cmp_ge_u32 s30, 6", "s_movk_i32 s37, 12288", f"s_cselect_b32 s37, {12288 + 18432 - 6144}, s37", "s_add_u32 s37, s37, s36")
    for mb in range(4):
        d = XB0 + 4 * mb
        a, b = acc(0, mb), acc(1, mb)
        for i in range(4):
            k.e(f"v_cvt_pk_bf16_f32 v{d+i}, v{a+i}, v{b+i}")
        k.e(f"buffer_store_dwordx4 {r4(d)}, v11, s[16:19], s36 offen sc1", "s_add_u32 s36, s36, 18432")
    for h in range(2):
        d = XB0 + 16 + 4 * h
        a, b = acc(2, 2 * h), acc(2, 2 * h + 1)
        k.e(f"v_cvt_pk_bf16_f32 v{d}, v{a}, v{a+1}", f"v_cvt_pk_bf16_f32 v{d+1}, v{a+2}, v{a+3}",
            f"v_cvt_pk_bf16_f32 v{d+2}, v{b}, v{b+1}", f"v_cvt_pk_bf16_f32 v{d+3}, v{b+2}, v{b+3}")
        k.e(f"buffer_store_dwordx4 {r4(d)}, v11, s[16:19], s37 offen sc1", "s_add_u32 s37, s37, 36864")
    stt(k, 3)
    k.e("s_lshl_b32 s38, s47, 9", f"s_add_u32 s38, s38, {F3}", "s_lshr_b32 s36, s30, 2", "s_lshl_b32 s35, s36, 7", "s_add_u32 s38, s38, s35",
        "s_lshl_b32 s35, s46, 3", "s_add_u32 s34, s38, s35",
        "s_lshl_b32 s44, s36, 2", f"s_add_u32 s44, s44, {LDS_CNT + 12}", "s_waitcnt vmcnt(0)")
    stt(k, 4)
    stt(k, 5)
    stt(k, 6)
    arrive(k, 0, 4, 34, "r", cnt_sgpr=44)
    k.e("s_add_u32 s44, s44, 12", "v_mov_b32 v10, s44")
    k.e("s_and_b32 s35, s30, 3", "s_cmp_lg_u32 s35, 3", "s_cbranch_scc1 mega_red")
    if os.environ.get("DEFER", "1") == "1":
        if os.environ.get("DEF0", "1") == "1":
            k.e("s_cmp_eq_u32 s30, 3", f"s_mov_b32 s35, {LDS_CNT + 20}", f"s_cselect_b32 s35, {LDS_CNT + 16}, s35")
            lds_wait(k, "s35", 4, "t2", sleep=4)
        else:
            lds_wait(k, LDS_CNT + 20, 4, "t2", sleep=4)
    k.e("v_and_b32 v12, 7, v1", "v_lshlrev_b32 v12, 3, v12")
    poll(k, 12, 38, 14, "r", sleep=int(os.environ.get("RSP", "3")))
    k.e("v_mov_b32 v13, 1", "ds_write_b32 v10, v13", "s_waitcnt lgkmcnt(0)", "s_branch mega_fin")
    k.label("mega_red")
    k.e(
        "s_lshl_b32 s37, s36, 2", "s_lshl_b32 s39, s35, 1", "s_add_u32 s37, s37, s39",
        "s_lshl_b32 s39, s36, 1", "s_add_u32 s39, s39, 12", "s_cmp_eq_u32 s35, 2", "s_cselect_b32 s37, s39, s37",
        "s_lshr_b32 s39, s46, 2", "s_add_u32 s37, s37, s39",
        "s_and_b32 s39, s46, 3",
        "s_mul_i32 s34, s39, 18432", "s_lshl_b32 s41, s37, 10", "s_add_u32 s34, s34, s41")
    k.e("s_sub_u32 s41, s37, 12", "s_lshl_b32 s41, s41, 11", "s_cmp_ge_u32 s37, 15", "s_movk_i32 s42, 12288",
        f"s_cselect_b32 s42, {12288 + 18432 - 6144}, s42", "s_add_u32 s41, s41, s42", "s_lshr_b32 s42, s39, 1", "s_mul_i32 s42, s42, 36864",
        "s_add_u32 s41, s41, s42", "s_and_b32 s42, s39, 1", "s_lshl_b32 s42, s42, 3", "s_add_u32 s41, s41, s42",
        "s_mov_b32 s43, s35", "s_cmp_eq_u32 s35, 2", "s_cselect_b32 s34, s41, s34", "s_cselect_b32 s42, 1024, 8",
        "s_add_u32 s33, s33, s34", "s_add_u32 s42, s42, s33")
    k.e("s_lshl_b32 s35, s37, 2", "s_add_u32 s35, s35, s39", "s_lshl_b32 s35, s35, 10", "v_add_u32 v13, s35, v11",
        f"ds_read_b128 {r4(WR+32)}, v13")
    srd(k, 20, 14, XB)
    k.e("s_lshl_b32 s35, s47, 2", "s_add_u32 s35, s35, s39", "s_mul_i32 s35, s35, 18432", "s_lshl_b32 s37, s37, 6",
        "s_add_u32 s37, s37, s35", "s_movk_i32 s35, 1152", "v_mul_u32_u24 v9, s35, v2", "v_lshl_add_u32 v9, v3, 4, v9")
    k.e("v_mov_b32 v5, 0x00003f80", "v_mov_b32 v6, 0x3f800000")
    for i in range(8):
        k.e(f"v_mov_b32 v{ACC+i}, 0")
    k.e(f"s_mov_b32 s3, {SPIN*8}")
    k.label("mega_lspin")
    k.e("ds_read_b32 v14, v10", "s_waitcnt lgkmcnt(0)", "v_readfirstlane_b32 s38, v14", "s_cmp_lg_u32 s38, 0", "s_cbranch_scc1 mega_lspind",
        "s_sleep 2", "s_sub_u32 s3, s3, 1", "s_cbranch_scc0 mega_lspin")
    k.label("mega_lspind")
    stt(k, 5)
    k.e("s_cmp_eq_u32 s43, 2", "s_cbranch_scc1 mega_ld_s")
    for j in range(8):
        k.e(f"buffer_load_dwordx4 {r4(WR+4*j)}, v11, s[16:19], s33 offen sc1", f"s_add_u32 s33, s33, {PSX}")
    k.e("s_branch mega_ld_o")
    k.label("mega_ld_s")
    for j in range(8):
        k.e(f"buffer_load_dwordx2 v[{WR+4*j}:{WR+4*j+1}], v11, s[16:19], s33 offen sc1", f"s_add_u32 s33, s33, {PSX}")
    for j in range(8):
        k.e(f"buffer_load_dwordx2 v[{WR+4*j+2}:{WR+4*j+3}], v11, s[16:19], s42 offen sc1", f"s_add_u32 s42, s42, {PSX}")
    k.label("mega_ld_o")
    k.e("s_waitcnt lgkmcnt(0)")
    for i in range(4):
        k.e(f"v_lshlrev_b32 v{ACC+8+2*i}, 16, v{WR+32+i}", f"v_and_b32 v{ACC+9+2*i}, 0xffff0000, v{WR+32+i}")
    for j in range(8):
        k.e(f"s_waitcnt vmcnt({7-j})")
        for i in range(4):
            k.e(f"v_dot2c_f32_bf16 v{ACC+2*i}, v{WR+4*j+i}, v5", f"v_dot2c_f32_bf16 v{ACC+2*i+1}, v{WR+4*j+i}, v6")
    stt(k, 6)
    k.e("s_cmp_eq_u32 s43, 2", "s_cbranch_scc1 mega_red_s")
    for i in range(8):
        k.e(f"v_fma_f32 v{ACC+8+i}, v{ACC+i}, v8, v{ACC+8+i}")
    k.e("s_branch mega_red_o")
    k.label("mega_red_s")
    for i in range(8):
        k.e(f"v_fma_f32 v{ACC+8+i}, v{ACC+(i//2)+4*(i%2)}, v8, v{ACC+8+i}")
    k.label("mega_red_o")
    for i in range(4):
        k.e(f"v_cvt_pk_bf16_f32 v{XB0+i}, v{ACC+8+2*i}, v{ACC+9+2*i}")
    k.e(f"buffer_store_dwordx4 {r4(XB0)}, v9, s[20:23], s37 offen")
    k.label("mega_fin")
    k.stamp_flush(1, 10, 16, 30, wpw=16)
    if os.environ.get("DBGOUT"):
        k.e("s_cmp_lg_u32 s2, 5", "s_cbranch_scc1 mega_end", "s_cmp_lg_u32 s30, 8", "s_cbranch_scc1 mega_end",
            "s_load_dwordx2 s[4:5], s[0:1], 72", "s_waitcnt lgkmcnt(0)", "s_nop 0")
        srd(k, 20, 4, 256)
        for i in range(1, 9):
            k.e(f"s_sub_u32 s34, s{81+2*i}, s81", "v_mov_b32 v4, s34", f"buffer_store_dword v4, v0, s[20:23], 0 offen offset:{4*i-4}",
                f"s_sub_u32 s34, s{80+2*i}, s80", "v_mov_b32 v5, s34", f"buffer_store_dword v5, v0, s[20:23], 0 offen offset:{4*i+28}", "s_waitcnt vmcnt(0)")
    k.e("s_endpgm")
    k.label("ffn_ep1")
    if os.environ.get("PF3"):
        k.e("v_min_u32 v0, 13, v1", "v_lshlrev_b32 v0, 7, v0", "s_mul_i32 s36, s47, 1728", "s_and_b32 s36, s36, 0xffffff80", f"s_add_u32 s36, s36, {18*T*1024}",
            "buffer_load_dword v0, v0, s[20:23], s36 offen sc1")
    k.e("s_waitcnt lgkmcnt(0)")
    k.e("s_lshl_b32 s34, s30, 12", f"s_add_u32 s34, s34, {LDS_H}", "v_add_u32 v12, s34, v11")
    k.e("s_lshr_b32 s34, s30, 1", "s_lshl_b32 s34, s34, 12", "s_and_b32 s35, s30, 1", "s_lshl_b32 s35, s35, 3",
        "s_add_u32 s34, s34, s35", f"s_add_u32 s34, s34, {LDS_H + 49152}", "v_add_u32 v13, s34, v11")
    for mb in range(4):
        d = XB0 + 4 * mb
        a, b = acc(0, mb), acc(1, mb)
        for i in range(4):
            k.e(f"v_cvt_pk_bf16_f32 v{d+i}, v{a+i}, v{b+i}")
        for i in range(4):
            k.e(f"v_pk_max_i16 v{d+i}, v{d+i}, 0")
        k.e(f"ds_write_b128 v12, {r4(d)} offset:{mb*1024}")
    for mb in range(4):
        a = acc(2, mb)
        d = XB0 + 16 + 2 * mb
        k.e(f"v_cvt_pk_bf16_f32 v{d}, v{a}, v{a+1}", f"v_cvt_pk_bf16_f32 v{d+1}, v{a+2}, v{a+3}",
            f"v_pk_max_i16 v{d}, v{d}, 0", f"v_pk_max_i16 v{d+1}, v{d+1}, 0",
            f"ds_write_b64 v13, v[{d}:{d+1}] offset:{mb*1024}")
    for r in range(ACC, ACC + 16 * T):
        k.e(f"v_mov_b32 v{r}, 0")
    if os.environ.get("NOPRIO"):
        k.e("s_branch ffn_pr2")
    k.e("s_cmp_lt_u32 s30, 4", "s_cbranch_scc0 ffn_pr1", "s_setprio 2")
    k.label("ffn_pr1")
    k.e("s_and_b32 s34, s30, 12", "s_cmp_eq_u32 s34, 4", "s_cbranch_scc0 ffn_pr2", "s_setprio 1")
    k.label("ffn_pr2")
    k.e("s_waitcnt lgkmcnt(0)", "s_barrier")
    stb(k, 7)
    k.e("s_branch ffn_start")


def tr_addr(k, base0, base1, stride, extra_sgpr=None):
    k.e("v_lshrrev_b32 v32, 2, v2",
        "v_and_b32 v33, 1, v3", "v_lshlrev_b32 v33, 2, v33", "v_add_u32 v32, v32, v33",
        "v_lshl_add_u32 v32, v3, 3, v32", "v_xor_b32 v33, 4, v32", f"s_movk_i32 s40, {stride}",
        "v_and_b32 v34, 3, v2", "v_lshlrev_b32 v34, 3, v34", f"v_add_u32 v34, {base0}, v34")
    if extra_sgpr is not None:
        k.e(f"v_add_u32 v34, s{extra_sgpr}, v34")
    k.e("v_mad_u32_u24 v28, v32, s40, v34", "v_mad_u32_u24 v29, v33, s40, v34")
    if base1 is not None:
        k.e(f"v_add_u32 v30, {base1 - base0}, v28", f"v_add_u32 v31, {base1 - base0}, v29")


def x_read_addr(k, v, slot_sgpr):
    k.e(f"v_lshrrev_b32 v{v}, 2, v2", f"v_sub_u32 v{v}, 4, v{v}", f"v_and_b32 v{v}, 3, v{v}", f"v_xor_b32 v{v}, v{v}, v3",
        f"v_lshlrev_b32 v{v}, 4, v{v}", f"v_lshl_add_u32 v{v}, v2, 6, v{v}")
    if slot_sgpr is None:
        k.e(f"v_add_u32 v{v}, {A_X}, v{v}")
    else:
        k.e(f"v_add_u32 v{v}, s{slot_sgpr}, v{v}")


def get_nonce(k):
    k.e(f"v_mov_b32 v12, {LDS_NON}", "ds_read_b64 v[14:15], v12", "s_waitcnt lgkmcnt(0)",
        "v_readfirstlane_b32 s66, v14", "v_readfirstlane_b32 s67, v15")


def wq_rd(k, t, s, wf, b, par=False):
    ss = 4 * s if par else s
    a0, a1 = (28, 29) if ss < 8 else (30, 31)
    off = (ss if ss < 8 else ss - 8) * 5120 + 32 * t
    k.e(f"ds_read_b64_tr_b16 v[{wf+4*b}:{wf+4*b+1}], v{a0} offset:{off}",
        f"ds_read_b64_tr_b16 v[{wf+4*b+2}:{wf+4*b+3}], v{a1} offset:{off}")


QCH = [(0, 8), (8, 12), (12, 18)]


def late_srds(k):
    srd(k, 16, 12, WS_END)
    srd(k, 24, 8, WQB)


def a_qwave(k):
    k.e("; ==== LN1 + Q projection (waves 0..3), LN folded into the epilogue")
    k.e("s_setprio 2")
    k.e("s_sub_u32 s34, s30, s29", "s_and_b32 s34, s34, 3", "s_mul_i32 s43, s34, 18432", f"s_add_u32 s43, s43, {A_X}",
        "s_lshl_b32 s35, s28, 2", "s_add_u32 s35, s35, s30", "s_mul_i32 s35, s35, 18432", "s_lshl_b32 s36, s48, 6")
    k.e("v_lshrrev_b32 v5, 2, v1", "v_sub_u32 v6, 4, v3", "v_xor_b32 v6, v6, v1", "v_and_b32 v6, 3, v6",
        "s_movk_i32 s41, 1152", "v_mul_u32_u24 v5, s41, v5", "v_lshl_add_u32 v4, v6, 4, v5", "v_add_u32 v4, s35, v4")
    k.e("s_waitcnt lgkmcnt(0)")
    srd(k, 20, 10, XB)
    NOB0 = os.environ.get("NOB0")
    if not NOB0:
        k.e("s_cmp_eq_u32 s34, 0", "s_cbranch_scc1 a_q_first", "s_barrier")
    else:
        k.e("s_cmp_lg_u32 s34, 0", "s_cbranch_scc1 a_q_first", "s_setprio 3")
    k.label("a_q_first")
    for s in range(18):
        k.e(f"s_add_u32 m0, s43, {s*1024}", "s_nop 0", "buffer_load_dwordx4 v4, s[20:23], s36 offen lds",
            "s_add_u32 s36, s36, 64", "s_cmp_eq_u32 s36, s41", "s_cselect_b32 s36, 0, s36")
    if not NOB0:
        k.e("s_cmp_lg_u32 s34, 0", "s_cbranch_scc1 a_q_second", "s_barrier")
    else:
        k.e("s_setprio 2", "s_barrier")
    k.label("a_q_second")
    late_srds(k)
    tr_addr(k, A_WQ0, A_WQ1, 160)
    x_read_addr(k, 35, 43)
    for r in range(QACC, QACC + 20):
        k.e(f"v_mov_b32 v{r}, 0")
    for b in QACS:
        for i in range(4):
            k.e(f"v_mov_b32 v{b+i}, 0")
    for i in range(4):
        k.e(f"v_mov_b32 v{QONES+i}, 0x3f803f80")
    k.e("v_mov_b32 v6, 0", "v_mov_b32 v7, 0")
    for part in range(3):
        k.e(f"s_waitcnt vmcnt({18 - 6*(part+1)})")
        if part == 2:
            k.e("s_cmp_lg_u32 s34, 0", "s_cbranch_scc1 a_q_nosig")
            lds_signal(k, LDS_KVI)
            k.label("a_q_nosig")
        for s in range(6 * part, 6 * part + 6):
            k.e(f"ds_read_b128 {r4(QX0+4*s)}, v35 offset:{1024*s}")
        if part:
            k.e("s_waitcnt lgkmcnt(6)")
            for r in range(QX0 + 24 * (part - 1), QX0 + 24 * part):
                k.e(f"v_dot2c_f32_bf16 v6, v{r}, v{QONES}", f"v_dot2c_f32_bf16 v7, v{r}, v{r}")
    k.e("s_waitcnt lgkmcnt(0)")
    lds_signal(k, LDS_XC)
    k.stamp(1)
    for r in range(QX0 + 48, QX0 + 72):
        k.e(f"v_dot2c_f32_bf16 v6, v{r}, v{QONES}", f"v_dot2c_f32_bf16 v7, v{r}, v{r}")
    reduce_g_add(k, [6, 7], [32, 33])
    k.e(f"v_mul_f32 v6, {hex(f2u(1/576))}, v6", f"v_mul_f32 v7, {hex(f2u(1/576))}, v7",
        "v_fma_f32 v7, -v6, v6, v7", "v_max_f32 v7, 0, v7", f"v_add_f32 v7, {hex(f2u(1e-5))}, v7", "v_rsq_f32 v7, v7")
    k.e("s_cmp_lg_u32 s34, 0", "s_cbranch_scc1 a_q_nost")
    k.e("v_lshlrev_b32 v32, 2, v2", f"v_add_u32 v32, {A_ST}, v32", "ds_write_b32 v32, v6", "ds_write_b32 v32, v7 offset:64",
        "s_waitcnt lgkmcnt(0)")
    lds_signal(k, LDS_KVS)
    k.label("a_q_nost")
    k.e(f"v_mul_f32 v34, {hex(f2u(QSCALE))}, v7")
    k.e("s_mul_i32 s35, s30, 2304", f"s_add_u32 s35, s35, {LDS_OST}", "v_lshrrev_b32 v35, 1, v3", "v_lshlrev_b32 v35, 8, v35",
        "v_lshl_add_u32 v35, v2, 4, v35", "v_and_b32 v32, 1, v3", "v_lshl_add_u32 v35, v32, 3, v35", "v_add_u32 v35, s35, v35")
    sta(k, 3)
    k.label("a_q_gemm")
    for ci, (s0, s1) in enumerate(QCH):
        k.e("s_cmp_ge_u32 s30, 4", f"s_cbranch_scc1 mega_lwd_q{ci}")
        lds_wait(k, LDS_WQC + 4 * ci, 4, f"q{ci}")
        def rd2(t, s, b):
            a0, a1 = (28, 29) if s < 8 else (30, 31)
            off = (s if s < 8 else s - 8) * 5120 + 32 * t
            return [f"ds_read_b64_tr_b16 v[{QWF+4*b}:{QWF+4*b+1}], v{a0} offset:{off}",
                    f"ds_read_b64_tr_b16 v[{QWF+4*b+2}:{QWF+4*b+3}], v{a1} offset:{off}"]
        roll_gemm2(k, list(range(s0, s1)), rd2,
                   lambda t, s, b: [f"v_mfma_f32_16x16x32_bf16 {r4(QACC+4*t)}, {r4(QWF+4*b)}, {r4(QX0+4*s)}, {r4(QACC+4*t)}",
                                    f"v_mfma_f32_16x16x32_bf16 {r4(QACS[t])}, {r4(QWF+4*b)}, {r4(QONES)}, {r4(QACS[t])}"])
    k.e("s_cmp_ge_u32 s30, 4", "s_cbranch_scc1 a_s_done")
    sta(k, 7)
    k.e("s_setprio 3")
    lds_signal(k, LDS_WDN)
    sta(k, 8)
    for t in range(5):
        a = QACC + 4 * t
        for i in range(4):
            k.e(f"v_fma_f32 v{a+i}, -v6, v{QACS[t]+i}, v{a+i}")
        for i in range(4):
            k.e(f"v_mul_f32 v{a+i}, v34, v{a+i}")
        k.e(f"v_cvt_pk_bf16_f32 v{QWF+2*t}, v{a}, v{a+1}", f"v_cvt_pk_bf16_f32 v{QWF+2*t+1}, v{a+2}, v{a+3}")
        if t == 4:
            k.e(ex(0xffffffff))
        k.e(f"ds_write_b64 v35, v[{QWF+2*t}:{QWF+2*t+1}] offset:{512*t}")
    k.e("s_lshr_b32 s35, s30, 1", "s_lshl_b32 s35, s35, 2", f"s_add_u32 s35, s35, {LDS_QRD}", "v_mov_b32 v12, s35", "v_mov_b32 v13, 1",
        ex(1), "ds_add_u32 v12, v13", ex(-1))


def wkv_rd(k, s, wf):
    for t in range(2):
        off = s * 1536 + 32 * t
        k.e(f"ds_read_b64_tr_b16 v[{wf+4*t}:{wf+4*t+1}], v28 offset:{off}",
            f"ds_read_b64_tr_b16 v[{wf+4*t+2}:{wf+4*t+3}], v29 offset:{off}")


def a_wkv_dma(k):
    k.e("s_setprio 3")
    k.e("s_movk_i32 s40, 21846")
    for i in range(3):
        k.e(f"v_add_u32 v32, {64*i}, v1", "v_mul_u32_u24 v33, s40, v32", "v_lshrrev_b32 v33, 16, v33", "v_mul_u32_u24 v34, 3, v33",
            "v_sub_u32 v34, v32, v34", "v_lshlrev_b32 v34, 4, v34", "v_min_u32 v34, 20, v34",
            "v_and_b32 v35, 8, v33", "v_lshrrev_b32 v35, 1, v35", "v_xor_b32 v35, v35, v33", f"v_mad_u32_u24 v{16+i}, v35, 36, v34")
    k.e("s_sub_u32 s34, s30, 4", "s_mul_i32 s34, s34, 3", "s_mul_i32 s43, s34, 3072", "s_lshr_b32 s35, s48, 1", "s_add_u32 s35, s35, s34",
        "s_sub_u32 s36, s35, 9", "s_min_u32 s35, s35, s36", "s_mul_i32 s35, s35, 2304")
    k.e("s_waitcnt lgkmcnt(0)")
    k.e("s_cmp_lt_u32 s29, 4", "s_cselect_b32 s20, s70, s72", "s_cselect_b32 s21, s71, s73", f"s_mov_b32 s22, {WKB}", "s_mov_b32 s23, 0x00020000")
    for g in range(3):
        for i in range(3):
            k.e(f"s_add_u32 m0, s43, {A_WKV + g*3072 + i*1024}", "s_nop 0", f"buffer_load_dwordx4 v{16+i}, s[20:23], s35 offen lds")
        k.e("s_add_u32 s35, s35, 2304", f"s_cmp_eq_u32 s35, {9*2304}", "s_cselect_b32 s35, 0, s35")
    k.e("s_barrier")
    late_srds(k)


def a_kvwave(k):
    k.e("; ==== K or V projection of 16 rows (wave 4), published to every workgroup")
    tr_addr(k, A_WKV, None, 48)
    x_read_addr(k, 35, None)
    for r in range(QACC, QACC + 8):
        k.e(f"v_mov_b32 v{r}, 0")
    k.e("s_lshr_b32 s41, s28, 1", f"s_mul_i32 s41, s41, {GRP}", f"s_add_u32 s41, s41, {WS_KV}",
        "s_and_b32 s42, s28, 1", "s_lshl_b32 s42, s42, 1", "s_bfe_u32 s43, s29, 0x10001", "s_add_u32 s42, s42, s43",
        "s_and_b32 s43, s29, 1",
        "s_lshl_b32 s49, s28, 7", "s_lshl_b32 s34, s29, 3", "s_add_u32 s49, s49, s34", f"s_add_u32 s49, s49, {FK}")
    k.e("s_waitcnt vmcnt(0)")
    lds_signal(k, LDS_WKI)
    lds_wait(k, LDS_KVI, 3, "kvi")
    k.stamp(1)
    k.e("s_cmp_ge_u32 s29, 4", "s_cbranch_scc1 a_kv_v")
    for isv in (False, True):
        if isv:
            k.label("a_kv_v")

        def rd(s):
            b = s % 3
            k.e(f"ds_read_b128 {r4(QX0+4*b)}, v35 offset:{1024*s}")
            wkv_rd(k, s, QX0 + 12 + 8 * b)
        rd(0)
        rd(1)
        for s in range(18):
            b = s % 3
            if s + 2 < 18:
                rd(s + 2)
            k.e(f"s_waitcnt lgkmcnt({min(10, 5*(17-s))})")
            for t in range(2):
                a, w, x = r4(QACC + 4 * t), r4(QX0 + 12 + 8 * b + 4 * t), r4(QX0 + 4 * b)
                k.e(f"v_mfma_f32_16x16x32_bf16 {a}, {x}, {w}, {a}" if isv else f"v_mfma_f32_16x16x32_bf16 {a}, {w}, {x}, {a}")
        sta(k, 3)
        lds_wait(k, LDS_KVS, 2, "kv" + ("v" if isv else "k"))
        sta(k, 4)
        A = QACC
        if not isv:
            k.e("v_lshlrev_b32 v32, 4, v3", f"v_add_u32 v32, {A_SKV}, v32", "v_lshlrev_b32 v33, 2, v2", f"v_add_u32 v33, {A_ST}, v33",
                "ds_read_b128 v[16:19], v32", "ds_read_b128 v[20:23], v32 offset:64", "ds_read_b32 v6, v33", "ds_read_b32 v7, v33 offset:64")
            k.e("s_lshl_b32 s38, s43, 8", "v_lshlrev_b32 v36, 4, v2", "v_add_u32 v36, s38, v36",
                "v_lshrrev_b32 v37, 1, v3", "v_lshl_add_u32 v37, v37, 9, v36",
                "s_lshl_b32 s38, s42, 10", "s_add_u32 s38, s38, s41",
                "s_lshl_b32 s39, s42, 2", "s_add_u32 s39, s39, s41", f"s_add_u32 s39, s39, {KV_K2}")
            k.e("s_waitcnt lgkmcnt(0)")
            for i in range(8):
                k.e(f"v_fma_f32 v{A+i}, -v6, v{16+i}, v{A+i}")
            for i in range(8):
                k.e(f"v_mul_f32 v{A+i}, v7, v{A+i}")
            k.e(f"v_cvt_pk_bf16_f32 v40, v{A}, v{A+1}", f"v_cvt_pk_bf16_f32 v41, v{A+2}, v{A+3}", f"v_cvt_pk_bf16_f32 v44, v{A+6}, v{A+7}")
            k.e("v_permlane16_swap_b32 v40, v42", "v_permlane16_swap_b32 v41, v43")
            k.e(ex(0x0000ffff0000ffff), "buffer_store_dwordx4 v[40:43], v37, s[16:19], s38 offen sc1",
                ex(0xffff0000), "buffer_store_dword v44, v36, s[16:19], s39 offen sc1", ex(-1))
            k.e("s_or_b32 s39, s42, s28", "s_cmp_lg_u32 s39, 0", "s_cbranch_scc1 a_kv_nod", f"s_add_u32 s38, s38, {IMG}",
                ex(0x0000ffff0000ffff), "buffer_store_dwordx4 v[40:43], v37, s[16:19], s38 offen sc1", ex(-1))
            k.label("a_kv_nod")
            k.e("s_or_b32 s38, s42, s43", "s_cmp_lg_u32 s38, 0", "s_cbranch_scc1 a_kv_noc")
            k.e("v_mov_b32 v24, 0x3f803f80", "v_mov_b32 v25, 0x00003f80", "v_mov_b32 v26, 0x3f803f80", "v_mov_b32 v27, 0x00003f80",
                "v_mov_b32 v12, 0", f"s_add_u32 s38, s41, {KV_K2 + 512}", ex(1), "buffer_store_dwordx4 v[24:27], v12, s[16:19], s38 offen sc1", ex(-1))
            k.label("a_kv_noc")
            k.e(f"v_mul_f32 v45, v{A+6}, v{A+6}", f"v_fmac_f32 v45, v{A+7}, v{A+7}",
                "v_cmp_eq_u32 vcc, 1, v3", "v_cndmask_b32 v45, 0, v45, vcc")
            for i in range(4):
                k.e(f"v_fmac_f32 v45, v{A+i}, v{A+i}")
            reduce_g_add(k, [45], [46])
            for sh in (8, 4, 2, 1):
                k.e(f"v_max_f32_dpp v45, v45, v45 row_ror:{sh} row_mask:0xf bank_mask:0xf")
            k.e("s_branch a_kv_pub")
        else:
            k.e("v_lshlrev_b32 v32, 2, v2", f"v_add_u32 v32, {A_SKV}, v32", "v_lshlrev_b32 v33, 4, v3", f"v_add_u32 v33, {A_ST}, v33",
                "ds_read_b32 v6, v32", "ds_read_b32 v7, v32 offset:64", "ds_read_b128 v[16:19], v33", "ds_read_b128 v[20:23], v33 offset:64")
            k.e("s_mul_i32 s38, s42, 1216", "s_mul_i32 s39, s43, 608", "s_add_u32 s38, s38, s39", "s_add_u32 s38, s38, s41",
                f"s_add_u32 s38, s38, {KV_V}", "s_movk_i32 s39, 304", "v_and_b32 v36, 1, v3", "v_mul_u32_u24 v37, s39, v36",
                "v_lshl_add_u32 v37, v2, 4, v37", "v_lshrrev_b32 v36, 1, v3", "s_movk_i32 s39, 160", "v_mad_u32_u24 v37, v36, s39, v37")
            k.e("s_waitcnt lgkmcnt(0)")
            for t in range(2):
                for i in range(4):
                    k.e(f"v_fma_f32 v{A+4*t+i}, -v{16+i}, v{6+t}, v{A+4*t+i}")
                for i in range(4):
                    k.e(f"v_mul_f32 v{A+4*t+i}, v{20+i}, v{A+4*t+i}")
            for i in range(4):
                k.e(f"v_cvt_pk_bf16_f32 v{40+i}, v{A+2*i}, v{A+2*i+1}")
            k.e("v_mov_b32 v39, 0x3f803f80", "v_cmp_eq_u32 vcc, 8, v2", "v_cndmask_b32 v42, v42, v39, vcc", "v_cndmask_b32 v43, v43, v39, vcc")
            k.e("v_permlane32_swap_b32 v40, v42", "v_permlane32_swap_b32 v41, v43")
            k.e(ex(0x01c001c0ffffffff), "buffer_store_dwordx4 v[40:43], v37, s[16:19], s38 offen sc1", ex(-1), "v_mov_b32 v45, 0")
    k.label("a_kv_pub")
    sta(k, 5)
    lds_wait(k, LDS_NON, 1, "non")
    get_nonce(k)
    k.e("v_mov_b32 v44, s66", "v_mov_b32 v12, 0", "s_waitcnt vmcnt(0)")
    sta(k, 6)
    k.e(ex(1), "buffer_store_dwordx2 v[44:45], v12, s[16:19], s49 offen sc1", ex(-1))
    k.e("s_waitcnt vmcnt(0)")
    lds_signal(k, LDS_KVS)
    sta(k, 7)
    sta(k, 8)


def a_swave(k):
    k.label("a_s_7")
    k.e("s_setprio 3")
    late_srds(k)
    srd(k, 20, 10, XB)
    k.e("s_mul_i32 s34, s47, 1536", "v_min_u32 v12, 11, v1", "v_lshlrev_b32 v12, 7, v12", "v_add_u32 v12, s34, v12",
        f"v_min_u32 v12, CODE_BYTES - 4, v12", "global_load_dword v20, v12, s[62:63]")
    srd(k, 56, 74, 256)
    k.e("v_mov_b32 v10, 0", "s_barrier")
    sta(k, 4)
    sta(k, 5)
    sta(k, 6)
    sta(k, 7)
    sta(k, 8)
    k.e(f"s_mov_b32 s3, {SPIN}")
    k.label("a_s_np")
    NS = os.environ.get("NS", "4")
    k.e(f"s_sleep {NS}", "buffer_load_dwordx2 v[14:15], v10, s[56:59], 0 offen sc1", f"s_sleep {NS}", "buffer_load_dwordx2 v[16:17], v10, s[56:59], 0 offen sc1",
        "s_waitcnt vmcnt(1)", "v_readfirstlane_b32 s39, v14", "s_cmp_lg_u32 s39, 0", "s_cbranch_scc1 a_s_nd",
        "s_waitcnt vmcnt(0)", "v_mov_b32 v14, v16", "v_mov_b32 v15, v17", "v_readfirstlane_b32 s39, v16", "s_cmp_lg_u32 s39, 0", "s_cbranch_scc1 a_s_nd",
        "s_sub_u32 s3, s3, 1", "s_cbranch_scc0 a_s_np")
    k.label("a_s_nd")
    k.e(f"v_mov_b32 v12, {LDS_NON}", "ds_write_b64 v12, v[14:15]")
    k.label("a_s_c")
    for i in range(4):
        k.e(f"v_mov_b32 v{QONES+i}, 0x3f803f80")
    for r in range(QACC, QACC + 20):
        k.e(f"v_mov_b32 v{r}, 0")
    k.e("s_cmp_lg_u32 s30, 5", "s_cbranch_scc1 a_s_q")
    tr_addr(k, A_WKV, None, 48)
    k.e("s_waitcnt vmcnt(0)")
    lds_signal(k, LDS_KVI)
    lds_signal(k, LDS_WKI)
    lds_wait(k, LDS_WKI, 3, "wki")
    k.stamp(1)
    wkv_rd(k, 0, QX0)
    wkv_rd(k, 1, QX0 + 8)
    for s in range(18):
        if s + 2 < 18:
            wkv_rd(k, s + 2, QX0 + 8 * ((s + 2) % 3))
        k.e(f"s_waitcnt lgkmcnt({min(8, 4*(17-s))})")
        for t in range(2):
            a = r4(QACC + 4 * t)
            k.e(f"v_mfma_f32_16x16x32_bf16 {a}, {r4(QONES)}, {r4(QX0+8*(s%3)+4*t)}, {a}")
    k.e("v_lshlrev_b32 v32, 2, v2", f"v_add_u32 v32, {A_SKV}, v32", f"ds_write_b32 v32, v{QACC}", f"ds_write_b32 v32, v{QACC+4} offset:64",
        "s_waitcnt lgkmcnt(0)")
    lds_signal(k, LDS_KVS)
    k.e("s_branch a_s_done")
    k.label("a_s_q")
    k.e("s_cmp_eq_u32 s30, 7", "s_cbranch_scc1 a_s_nx", "s_waitcnt vmcnt(0)")
    lds_signal(k, LDS_KVI)
    lds_signal(k, LDS_WKI)
    if os.environ.get("DRY", "0") == "1":
        k.stamp(1)
        tr_addr(k, A_WQ0, A_WQ1, 160)
        k.e("s_setprio 0", "s_branch a_q_gemm")
    k.label("a_s_nx")
    k.stamp(1)
    k.label("a_s_done")
    k.e("s_waitcnt vmcnt(0)")


def a_helper(k):
    k.e("; ==== helper waves: wq loader, then K/V gather")
    k.e("s_setprio 1", "s_sub_u32 s31, s30, 8")
    k.e("s_cmp_lg_u32 s31, 0", "s_cbranch_scc1 a_h_calc", "s_waitcnt lgkmcnt(0)")
    srd(k, 20, 68, WQB)
    if os.environ.get("PFQ", "1") == "1":
        k.e("s_cmp_lg_u32 s31, 0", "s_cbranch_scc1 a_h_nopf",
            "v_min_u32 v12, 20, v1", "v_lshlrev_b32 v12, 7, v12", "s_mul_i32 s34, s2, 2592", "s_and_b32 s34, s34, 0xffffff80",
            "buffer_load_dword v21, v12, s[20:23], s34 offen", ("buffer_load_dword v21, v12, s[20:23], s34 offen offset:64" if os.environ.get("PF64") else ""))
        k.label("a_h_nopf")
    k.label("a_h_calc")
    k.e("s_movk_i32 s40, 6554", "s_movk_i32 s41, 1152")
    for i in range(5):
        dma_slot_calc(k, i, 32, 33, 34, 35)
        k.e("v_min_u32 v34, 8, v34", f"v_mul_u32_u24 v{16+i}, s41, v35", f"v_lshl_add_u32 v{16+i}, v34, 4, v{16+i}")
    k.e("s_add_u32 s42, s31, s48", "s_mul_i32 s32, s29, 144", "s_mul_i32 s43, s31, 5120", "s_waitcnt lgkmcnt(0)")
    srd(k, 20, 68, WQB)
    late_srds(k)

    def wdma(base):
        k.e("s_sub_u32 s36, s42, 18", "s_min_u32 s42, s42, s36", "s_mul_i32 s36, s42, 36864", "s_add_u32 s36, s36, s32")
        for i in range(5):
            k.e(f"s_add_u32 m0, s43, {base + i*1024}", "s_nop 0", f"buffer_load_dwordx4 v{16+i}, s[20:23], s36 offen lds")
        k.e("s_add_u32 s42, s42, 4")
    k.e("s_barrier")
    wdma(A_WQ0)
    wdma(A_WQ0 + 20480)
    k.e("s_waitcnt vmcnt(0)")
    lds_signal(k, LDS_WQC)
    sta(k, 3)
    lds_wait(k, LDS_XC, 4, "xc")
    k.e("s_setprio 3")
    k.stamp(1)
    wdma(A_WQ1)
    wdma(A_WQ1 + 20480)
    k.e("s_cmp_ge_u32 s31, 2", "s_cbranch_scc1 a_h_skip")
    wdma(A_WQ1 + 40960)
    k.label("a_h_skip")
    for ci, n in ((1, 5), (2, 0)):
        k.e(f"s_waitcnt vmcnt({n})")
        lds_signal(k, LDS_WQC + 4 * ci)
        sta(k, 3 + ci)
    lds_wait(k, LDS_KVS, 3, "pub")
    get_nonce(k)
    sta(k, 6)
    k.e("v_lshrrev_b32 v10, 3, v1", "v_lshlrev_b32 v10, 7, v10", "v_and_b32 v9, 7, v1", "v_lshl_add_u32 v10, v9, 3, v10",
        "s_lshl_b32 s34, s31, 10", f"s_add_u32 s35, s34, {FK}")
    poll(k, 10, 35, 14, "k", sleep=int(os.environ.get("KSL", "10")), lo_only=True, first=int(os.environ.get("KF", "0")))
    sta(k, 7)
    k.e(f"v_mov_b32 v12, {LDS_KMX}", "ds_max_u32 v12, v15")
    lds_signal(k, LDS_KVR)
    k.e("s_lshr_b32 s35, s2, 3", "s_add_u32 s35, s35, s2", "s_and_b32 s35, s35, 15", f"s_mul_i32 s35, s35, {GRP}", "s_add_u32 s35, s35, s34",
        f"v_add_u32 v10, {WS_KV}, v11")
    lds_wait(k, LDS_KVR, 4, "kvr")
    k.e("s_or_b32 s36, s2, s31", "s_cmp_lg_u32 s36, 0", "s_cbranch_scc1 a_h_noclr")
    srd(k, 56, 74, 256)
    k.e("v_mov_b32 v12, 0", "v_mov_b32 v13, 0", ex(1), "buffer_store_dwordx2 v[12:13], v12, s[56:59], 0 offen sc1", ex(-1))
    k.label("a_h_noclr")
    sta(k, 8)
    kv_dma(k, 0, 7)


def gen_one(name):
    k = Kernel(name, vgprs=168)
    k.e("s_getpc_b64 s[62:63]")
    k.label("mega_pc")
    k.e("s_cmp_ge_u32 s2, 256", "s_cbranch_scc1 mega_end")
    k.e("s_memrealtime s[60:61]")
    k.e("s_load_dwordx2 s[10:11], s[0:1], 0", "s_load_dwordx4 s[68:71], s[0:1], 8", "s_load_dwordx2 s[72:73], s[0:1], 24",
        "s_load_dwordx2 s[8:9], s[0:1], 32", "s_load_dwordx4 s[4:7], s[0:1], 48", "s_load_dwordx2 s[14:15], s[0:1], 64",
        "s_load_dwordx2 s[74:75], s[0:1], 72", "s_load_dwordx2 s[12:13], s[0:1], 80")
    k.stamp(0)
    k.e("v_and_b32 v1, 63, v0", "v_and_b32 v2, 15, v0", "v_bfe_u32 v3, v0, 4, 2", "v_lshrrev_b32 v7, 6, v0",
        "v_lshlrev_b32 v11, 4, v1", "v_readfirstlane_b32 s30, v7")
    k.e("s_and_b32 s46, s2, 7", "s_lshr_b32 s47, s2, 3", "s_and_b32 s28, s47, 24", "s_add_u32 s28, s28, s46", "s_and_b32 s29, s47, 7",
        "s_lshr_b32 s48, s47, 3", "s_lshl_b32 s48, s48, 1", "s_add_u32 s48, s48, s29", "s_sub_u32 s34, s48, 9", "s_min_u32 s48, s48, s34",
        "s_lshl_b32 s48, s48, 1")
    k.e("s_cmp_ge_u32 s30, 8", "s_cbranch_scc1 mega_helper", "s_cmp_lt_u32 s30, 4", "s_cbranch_scc1 a_qw", "s_cmp_lt_u32 s30, 7", "s_cbranch_scc1 a_wk")
    k.e("v_min_u32 v12, 35, v1", "v_lshlrev_b32 v12, 2, v12", f"v_add_u32 v12, {LDS_RDY}, v12", "v_mov_b32 v13, 0", "ds_write_b32 v12, v13")
    k.e("s_cmp_ge_u32 s2, 8", "s_waitcnt lgkmcnt(0)", "s_cbranch_scc1 a_7b")
    k.e("s_or_b32 s60, s60, 1", "v_mov_b32 v16, s60", "v_mov_b32 v17, s61", "v_mov_b32 v18, 0", "v_mov_b32 v19, 0", "v_mov_b32 v10, 0", ex(1),
        "global_atomic_cmpswap_x2 v10, v[16:19], s[74:75] sc1", ex(-1), "s_nop 1")
    k.label("a_7b")
    k.e("s_branch a_s_7")
    k.label("a_wk")
    a_wkv_dma(k)
    k.e("s_cmp_eq_u32 s30, 4", "s_cbranch_scc1 a_kvw", "s_branch a_s_c")
    k.label("a_qw")
    a_qwave(k)
    k.e("s_branch a_done")
    k.label("a_kvw")
    a_kvwave(k)
    k.e("s_branch a_s_done")
    a_swave(k)
    k.label("a_done")
    k.e("s_setprio 3")
    k.e("s_mov_b32 s52, 0")
    attention(k)
    k.e("s_cmp_lg_u32 s52, 0", "s_cbranch_scc1 mega_ringed")
    ffn_ring_start(k)
    k.label("mega_ringed")
    lds_wait(k, LDS_ORD, 4, "ord2", sleep=4)
    if os.environ.get("PF1", "1") == "1":
        k.e("s_cmp_ge_u32 s30, 2", "s_cbranch_scc1 mega_nopf1",
            "s_mul_i32 s36, s30, 54", "v_min_u32 v12, 53, v1", "v_add_u32 v12, s36, v12", "s_movk_i32 s36, 7282", "v_mul_u32_u24 v13, s36, v12",
            "v_lshrrev_b32 v13, 16, v13", "v_mul_u32_u24 v14, 9, v13", "v_sub_u32 v12, v12, v14", "v_lshlrev_b32 v12, 7, v12",
            f"s_mov_b32 s36, {STREAM}", "v_mad_u32_u24 v12, v13, s36, v12",
            f"s_mul_i32 s36, s46, {1296*1024}", "s_mul_i32 s37, s47, 1152", "s_add_u32 s36, s36, s37", f"s_add_u32 s36, s36, {WS_W + 6*T*1024}",
            "buffer_load_dword v0, v12, s[16:19], s36 offen sc1", ("buffer_load_dword v0, v12, s[16:19], s36 offen offset:64 sc1" if os.environ.get("PF64") else ""))
        k.label("mega_nopf1")
    for t in range(T):
        k.e(wload(D - 1, t))
    k.e("s_waitcnt vmcnt(0)")
    stb(k, 4)
    k.e("s_branch ffn_join")
    k.label("mega_helper")
    a_helper(k)
    helper_pack(k)
    oproj(k)
    ffn(k)
    k.label("mega_end")
    k.e("s_endpgm", ".set CODE_BYTES, mega_end - mega_pc")
    return k
```

```python
import os
from asmlib import Kernel
from layout import *
from k_small import f2u, srd, ex, reduce_g_add, dma_slot_calc

S0, S1, OA, P, KF, V0, V1, K2F, Q, Q2E, Q2O = 16, 32, 48, 64, 72, 76, 80, 84, 88, 92, 94
T0 = 96
PIN, POUT, PS = 48, 96, 144
LDS_OST = 151808
LDS_RES = 92160
LDS_WO = 0
LDS_H = 73728
LDS_S = 161024
LDS_RDY = 163328
LDS_CNT = 163344
LDS_WQC = 163392
LDS_KVS = LDS_WQC + 12
LDS_KVR = LDS_WQC + 16
LDS_KMX = LDS_WQC + 20
LDS_KVI = LDS_WQC + 24
LDS_XC = LDS_WQC + 28
LDS_WKI = LDS_WQC + 32
LDS_REL = LDS_WQC + 36
LDS_NON = LDS_WQC + 40
LDS_ORD = LDS_WQC + 48
LDS_IMG = LDS_WQC + 52
LDS_MUS = LDS_WQC + 56
LDS_SRD = LDS_WQC + 60
LDS_QRD = LDS_WQC + 64
LDS_WDN = LDS_WQC + 72
LDS_IM0 = LDS_WQC + 76
LDS_HRD = LDS_WQC + 80
LDS_MU = LDS_OST
LDS_MEGA = 163488
A_WKV = 0
A_WQ0 = 29696
A_X = 70656
A_WQ1 = A_X + 18432
A_SQ = LDS_S
A_SKV = LDS_S + 320
A_ST = LDS_S + 448
QX0, QACC, QWF, QONES = 48, 120, 140, 36
QACS = [16, 20, 24, 40, 44]
OX0, OACC, OWF = 96, 48, 68
XB0, ACC, WR = 16, 48, 96
D = 6
T = 3
STREAM = 36 * T * 1024
SPIN = 1 << 16
PSX, PSY = 73728, 589824
RX = RST = 0
if os.environ.get("CMP", "0") == "1":
    _d = -WS_FL
    F1, F2, FP, F3, FK = F1 + _d, F2 + _d, FP + _d, F3 + _d, FK + _d
    WS_KV, WS_SP, WS_W = 0x10000, 0x40000, 0x60000
    _R0, _RS = 0xA80000, 10 * 73728 + 4096
    WS_O, WS_H, WS_P, WS_ST = _R0, _R0 + 73728, _R0 + 2 * 73728, _R0 + 10 * 73728
    PSY, RX, RST = _RS, _RS - 73728, _RS - 4096
STA = bool(os.environ.get("STA"))


def sta(k, i):
    if STA:
        k.stamp(i)


STP = bool(os.environ.get("STP"))


def stb(k, i):
    if not STA and not STP and not (STT and i < 7) and not (STO and i > 6):
        k.stamp(i)


STT = bool(os.environ.get("STT"))


def stt(k, i):
    if STT:
        k.stamp(i)


STO = bool(os.environ.get("STO"))


def sto(k, i):
    if STO:
        k.stamp(i)


def stp(k, i):
    if STP:
        k.stamp(i)
WAUX = os.environ.get("WAUX", "sc1")


def r4(b):
    return f"v[{b}:{b+3}]"


def r16(b):
    return f"v[{b}:{b+15}]"


def poll(k, vaddr, soff, vtmp, tag, sleep=2, lo_only=False, first=0):
    lab, done = f"mega_poll_{tag}", f"mega_polld_{tag}"
    k.e(f"s_mov_b32 s3, {SPIN}")
    if first:
        k.e(f"s_sleep {first}")
    k.label(lab)
    k.e(f"s_sleep {sleep}", f"buffer_load_dwordx2 v[{vtmp}:{vtmp+1}], v{vaddr}, s[16:19], s{soff} offen sc1", "s_waitcnt vmcnt(0)")
    if lo_only:
        k.e(f"v_cmp_eq_u32 vcc, s66, v{vtmp}")
    else:
        k.e(f"v_cmp_eq_u64 vcc, s[66:67], v[{vtmp}:{vtmp+1}]")
    k.e("s_cmp_eq_u64 vcc, -1", f"s_cbranch_scc1 {done}", "s_sub_u32 s3, s3, 1", f"s_cbranch_scc0 {lab}")
    k.label(done)


def set_flag(k, soff):
    k.e("v_mov_b32 v12, 0", "v_mov_b32 v14, s66", "v_mov_b32 v15, s67", ex(1),
        f"buffer_store_dwordx2 v[14:15], v12, s[16:19], s{soff} offen sc1", ex(-1))


def lds_signal(k, addr, va=12, vb=13):
    k.e(f"v_mov_b32 v{va}, {addr}", f"v_mov_b32 v{vb}, 1", ex(1), f"ds_add_u32 v{va}, v{vb}", ex(-1))


def lds_wait(k, addr, n, tag, va=12, vb=13, sleep=int(os.environ.get("LWS", "1"))):
    lab, done = f"mega_lw_{tag}", f"mega_lwd_{tag}"
    k.e(f"v_mov_b32 v{va}, {addr}", f"s_mov_b32 s3, {SPIN*8}")
    k.label(lab)
    k.e(f"ds_read_b32 v{vb}, v{va}", "s_waitcnt lgkmcnt(0)", f"v_readfirstlane_b32 s39, v{vb}", f"s_cmp_ge_u32 s39, {n}",
        f"s_cbranch_scc1 {done}", f"s_sleep {sleep}", "s_sub_u32 s3, s3, 1", f"s_cbranch_scc0 {lab}")
    k.label(done)


def arrive(k, cnt, n, soff, tag, cnt_sgpr=None):
    if cnt_sgpr is None:
        k.e(f"v_mov_b32 v12, {LDS_CNT + 4*cnt}")
    else:
        k.e(f"v_mov_b32 v12, s{cnt_sgpr}")
    k.e("v_mov_b32 v13, 1", ex(1), "ds_add_rtn_u32 v14, v12, v13", ex(-1), "s_waitcnt lgkmcnt(0)",
        "v_readfirstlane_b32 s3, v14", f"s_cmp_lg_u32 s3, {n-1}", f"s_cbranch_scc1 mega_arr_{tag}")
    set_flag(k, soff)
    k.label(f"mega_arr_{tag}")


def publish_o(k, tag, pre=None):
    k.e("s_and_b32 s34, s30, 3", "s_lshr_b32 s35, s30, 2", "s_mul_i32 s36, s34, 2304", "s_mul_i32 s37, s35, 768",
        "s_add_u32 s36, s36, s37", f"s_add_u32 s36, s36, {LDS_OST}", "v_add_u32 v12, s36, v11",
        f"ds_read_b128 {r4(4)}, v12")
    k.e("s_lshl_b32 s36, s28, 2", "s_add_u32 s36, s36, s34", "s_mul_i32 s38, s36, 18432", "s_mul_i32 s39, s29, 2304",
        "s_add_u32 s38, s38, s39", "s_add_u32 s38, s38, s37", f"s_add_u32 s38, s38, {WS_O}", f"s_mul_i32 s39, s28, {RX}", "s_add_u32 s38, s38, s39")
    k.e("s_lshl_b32 s36, s28, 7", "s_lshl_b32 s39, s29, 3", "s_add_u32 s36, s36, s39", f"s_add_u32 s36, s36, {F1}")
    k.e("s_waitcnt lgkmcnt(0)", ex((1 << 48) - 1), f"buffer_store_dwordx4 {r4(4)}, v11, s[16:19], s38 offen sc1", ex(-1),
        "s_waitcnt vmcnt(0)")
    arrive(k, 1, 12, 36, tag)
    if pre:
        pre(k)


def attention(k):
    k.e("; ==== attention (waves 0..7; one (head, 32-query) unit each). S^T = K.Q^T - M comes straight out of the MFMAs:")
    k.e("v_and_b32 v2, 31, v1", "v_lshrrev_b32 v3, 5, v1")
    k.e("s_lshr_b32 s35, s30, 2", "s_mul_i32 s35, s35, 4608", f"s_add_u32 s35, s35, {LDS_OST}", "s_movk_i32 s36, 2304",
        "v_lshrrev_b32 v8, 4, v2", "v_mul_u32_u24 v8, s36, v8", "v_and_b32 v9, 15, v2", "v_lshl_add_u32 v8, v9, 4, v8",
        "v_add_u32 v8, s35, v8", "v_lshl_add_u32 v9, v3, 8, v8", "s_and_b32 s37, s30, 3", "s_mul_i32 s37, s37, 18")
    for i in range(4):
        k.e(f"s_add_u32 s38, s37, {2*i}", "s_lshr_b32 s39, s38, 3", "s_lshl_b32 s39, s39, 8", "s_and_b32 s38, s38, 7",
            "s_lshl_b32 s38, s38, 1", "s_add_u32 s38, s38, s39", f"v_add_u32 v{Q+i}, s38, v9")
        if i == 0:
            k.e(f"v_add_u32 v{T0}, s38, v8")
    k.e(f"v_mov_b32 v{T0+2}, {LDS_KMX}")
    k.e("v_mov_b32 v12, v11")
    k.e("v_cmp_eq_u32 vcc, 28, v2", "v_cndmask_b32 v13, v2, 18, vcc",
        "v_cmp_lt_u32 vcc, 18, v13", "v_mov_b32 v14, 0x10000", "v_cndmask_b32 v13, v13, v14, vcc",
        "s_movk_i32 s40, 304", "v_mul_u32_u24 v14, s40, v3", "v_lshl_add_u32 v13, v13, 4, v14", f"v_add_u32 v13, {KV_V}, v13")
    k.e("v_min_u32 v14, 32, v1", "v_lshlrev_b32 v14, 4, v14", f"v_add_u32 v14, {KV_K2}, v14")
    k.e("v_cmp_eq_u32 s[44:45], 1, v3")
    k.e("s_lshr_b32 s35, s30, 2", "s_lshl_b32 s35, s35, 2", f"s_add_u32 s35, s35, {LDS_QRD}")
    def zero_init():
        for r in list(range(OA, OA + 16)) + list(range(P, P + 8)) + list(range(V1, V1 + 4)):
            k.e(f"v_mov_b32 v{r}, 0")

    def setm():
        k.e(f"v_xor_b32 v{T0+2}, 0x80000000, v{T0+1}",
            f"v_and_b32 v{T0+3}, 0xffff0000, v{T0+2}", f"v_sub_f32 v{T0+2}, v{T0+2}, v{T0+3}",
            f"v_and_b32 v{T0+4}, 0xffff0000, v{T0+2}", f"v_sub_f32 v{T0+2}, v{T0+2}, v{T0+4}",
            f"v_lshrrev_b32 v{T0+3}, 16, v{T0+3}", f"v_or_b32 v{T0+3}, v{T0+3}, v{T0+4}",
            f"v_lshrrev_b32 v{T0+2}, 16, v{T0+2}")
        k.e(f"v_cndmask_b32 v{Q2E}, v{T0}, v{T0+3}, s[44:45]", f"v_cndmask_b32 v{Q2E+1}, 0, v{T0+2}, s[44:45]",
            f"v_cndmask_b32 v{Q2O}, 0, v{T0+3}, s[44:45]", f"v_cndmask_b32 v{Q2O+1}, v{T0}, v{T0+2}, s[44:45]")
    zero_init()
    k.e("v_mov_b32 v4, v12", "v_mov_b32 v5, v13", "v_mov_b32 v6, v14", "s_mov_b32 s32, 0", "s_mov_b32 s31, 2")
    sta(k, 4)
    lds_wait(k, LDS_IM0, 4, "im0", va=T0 + 6, vb=T0 + 7)
    k.e(f"ds_read_b32 v{T0+2}, v{T0+2}", f"v_mov_b32 v{T0+6}, {LDS_NON}", f"ds_read_b64 v[{T0+8}:{T0+9}], v{T0+6}",
        f"ds_read_b128 {r4(KF)}, v4", f"ds_read_b128 {r4(K2F)}, v6", f"ds_read_b128 {r4(V0)}, v5")
    sta(k, 5)
    lds_wait(k, "s35", 2, "qrd", va=T0 + 6, vb=T0 + 7)
    sta(k, 6)
    for i in range(4):
        k.e(f"ds_read_b32 v{Q+i}, v{Q+i}")
    k.e(f"ds_read_b32 v{T0}, v{T0} offset:512", f"v_readfirstlane_b32 s66, v{T0+8}", f"v_readfirstlane_b32 s67, v{T0+9}",
        f"v_mul_f32 v{T0+2}, {hex(f2u(1.02*1.02))}, v{T0+2}", f"v_mov_b32 v{T0+1}, 0", "s_waitcnt lgkmcnt(0)")
    k.e(f"v_cndmask_b32 v{T0}, v{T0}, 0, s[44:45]")
    for r in (Q, Q + 1, Q + 2, Q + 3, T0):
        k.e(f"v_dot2c_f32_bf16 v{T0+1}, v{r}, v{r}")
    k.e(f"v_mfma_f32_32x32x16_bf16 {r16(S0)}, {r4(KF)}, {r4(Q)}, 0", f"ds_read_b128 {r4(KF)}, v4 offset:1024")
    k.e(f"v_mov_b32 v{T0+4}, v{T0+1}", f"v_permlane32_swap_b32 v{T0+1}, v{T0+4}", f"v_add_f32 v{T0+1}, v{T0+1}, v{T0+4}")
    k.e(f"v_mul_f32 v{T0+1}, v{T0+1}, v{T0+2}", f"v_sqrt_f32 v{T0+1}, v{T0+1}")
    setm()
    k.e("s_setprio 2", "s_branch attn_go")
    k.label("attn_setm")
    setm()
    k.e("v_mov_b32 v4, v12", "v_mov_b32 v5, v13", "v_mov_b32 v6, v14")
    k.e("s_cmp_eq_u32 s32, 10", "s_cbranch_scc1 attn_maxpass")
    zero_init()
    k.e("s_mov_b32 s31, 16")
    k.e(f"ds_read_b128 {r4(KF)}, v4", f"ds_read_b128 {r4(K2F)}, v6", f"ds_read_b128 {r4(V0)}, v5", "s_waitcnt lgkmcnt(0)")
    k.e(f"v_mfma_f32_32x32x16_bf16 {r16(S0)}, {r4(KF)}, {r4(Q)}, 0", f"ds_read_b128 {r4(KF)}, v4 offset:1024")
    k.label("attn_go")
    k.e(f"v_mfma_f32_32x32x8_bf16 {r16(S0)}, v[{K2F}:{K2F+1}], v[{Q2E}:{Q2E+1}], {r16(S0)}")
    k.stamp(2)
    k.e("s_waitcnt lgkmcnt(0)", "s_nop 7", "s_nop 3")
    k.e(".p2align 6")
    k.label("attn_loop")
    for tau in range(4):
        cur, nxt = (S0, S1) if tau % 2 == 0 else (S1, S0)
        t1 = (tau + 1) % 4
        koff = (tau + 2) * 1024 if tau < 2 else GRP + (tau - 2) * 1024
        v0off = (tau + 1) * 1216 if tau < 3 else GRP

        def ex_(a, b):
            for i in range(a, b):
                k.e(f"v_exp_f32 v{cur+i}, v{cur+i}")

        def cv(a, b):
            for i in range(a, b):
                k.e(f"v_cvt_pk_bf16_f32 v{P+i}, v{cur+2*i}, v{cur+2*i+1}")
        e1, e2, e3, e4 = eval(os.environ.get("EXS", "(3, 6, 9, 12)"))
        k.e("s_waitcnt lgkmcnt(2)")
        k.e(f"v_mfma_f32_32x32x16_bf16 {r16(nxt)}, {r4(KF)}, {r4(Q)}, 0")
        k.e(f"ds_read_b128 {r4(KF)}, v4 offset:{koff}")
        ex_(0, e1)
        k.e("s_waitcnt lgkmcnt(2)")
        k.e(f"v_mfma_f32_32x32x16_bf16 {r16(OA)}, {r4(V1)}, {r4(P+4)}, {r16(OA)}")
        k.e(f"ds_read_b128 {r4(V1)}, v5 offset:{tau*1216+608}")
        ex_(e1, e2)
        q2 = Q2E if t1 % 2 == 0 else Q2O
        kk = K2F + 2 * (t1 // 2)
        k.e(f"v_mfma_f32_32x32x8_bf16 {r16(nxt)}, v[{kk}:{kk+1}], v[{q2}:{q2+1}], {r16(nxt)}")
        if tau == 2:
            k.e(f"ds_read_b128 {r4(K2F)}, v6 offset:{GRP}")
        ex_(e2, e3)
        cv(0, 4)
        ex_(e3, e4)
        k.e("s_waitcnt lgkmcnt(2)")
        k.e(f"v_mfma_f32_32x32x16_bf16 {r16(OA)}, {r4(V0)}, {r4(P)}, {r16(OA)}")
        k.e(f"ds_read_b128 {r4(V0)}, v5 offset:{v0off}")
        ex_(e4, 16)
        if tau == 3:
            k.e(f"v_add_u32 v4, {GRP}, v4", f"v_add_u32 v5, {GRP}, v5", f"v_add_u32 v6, {GRP}, v6")
            k.e("s_sub_u32 s31, s31, 1", "s_cmp_lg_u32 s31, 0")
        cv(4, 8)
    k.e("s_cbranch_scc1 attn_loop")
    k.e("s_cmp_ge_u32 s32, 4", "s_cbranch_scc1 attn_tail")
    k.e("s_add_u32 s32, s32, 1")
    k.e("s_cmp_eq_u32 s32, 2", "s_cbranch_scc1 attn_ph2", "s_cmp_eq_u32 s32, 3", "s_cbranch_scc1 attn_ph3",
        "s_cmp_eq_u32 s32, 4", "s_cbranch_scc1 attn_ph4")
    lds_wait(k, LDS_IMG, 4, "img", va=T0 + 6, vb=T0 + 7)
    k.e("s_mov_b32 s31, 9", "s_branch attn_loop")
    for ph, cnt, pr in eval(os.environ.get("PHS", "((2, 2, 1), (3, 2, 1), (4, 1, 0))")):
        k.label(f"attn_ph{ph}")
        k.e(f"s_setprio {pr}", f"s_mov_b32 s31, {cnt}")
        if ph == 2:
            k.e(f"v_cndmask_b32 v{T0+5}, v{OA+10}, v{OA+12}, s[44:45]", f"v_cmp_le_f32 vcc, {hex(f2u(2.0**-40))}, v{T0+5}",
                "s_cmp_eq_u64 vcc, -1", "s_cselect_b32 s34, 1, 0x101", f"v_mov_b32 v{T0+6}, {LDS_REL}", f"v_mov_b32 v{T0+7}, s34",
                ex(1), f"ds_add_u32 v{T0+6}, v{T0+7}", ex(-1))
        if ph == 4:
            k.e(f"v_mov_b32 v{T0+6}, {LDS_RDY}", f"ds_read_b32 v{T0+6}, v{T0+6}", "s_waitcnt lgkmcnt(0)",
                f"v_readfirstlane_b32 s52, v{T0+6}", "s_cmp_eq_u32 s52, 0", "s_cbranch_scc1 attn_loop")
            ffn_ring_start(k)
        k.e("s_branch attn_loop")
    k.label("attn_maxpass")
    k.e(f"v_mov_b32 v{T0+1}, 0xff800000", "s_mov_b32 s31, 16")
    k.label("attn_maxloop")
    k.e(f"ds_read_b128 {r4(K2F)}, v6")
    for tau in range(4):
        q2 = Q2E if tau % 2 == 0 else Q2O
        kk = K2F + 2 * (tau // 2)
        k.e(f"ds_read_b128 {r4(KF)}, v4 offset:{tau*1024}", "s_waitcnt lgkmcnt(0)")
        k.e(f"v_mfma_f32_32x32x16_bf16 {r16(S0)}, {r4(KF)}, {r4(Q)}, 0",
            f"v_mfma_f32_32x32x8_bf16 {r16(S0)}, v[{kk}:{kk+1}], v[{q2}:{q2+1}], {r16(S0)}")
        for i in range(8):
            k.e(f"v_max3_f32 v{T0+1}, v{S0+2*i}, v{S0+2*i+1}, v{T0+1}")
    k.e(f"v_add_u32 v4, {GRP}, v4", f"v_add_u32 v6, {GRP}, v6", "s_sub_u32 s31, s31, 1", "s_cmp_lg_u32 s31, 0",
        "s_cbranch_scc1 attn_maxloop")
    k.e(f"v_mov_b32 v{T0+2}, v{T0+1}", f"v_permlane32_swap_b32 v{T0+1}, v{T0+2}", f"v_max_f32 v{T0+1}, v{T0+1}, v{T0+2}")
    k.e("s_mov_b32 s32, 11", "s_branch attn_setm")
    k.label("attn_tail")
    k.e("s_waitcnt lgkmcnt(0)")
    k.e(f"v_mfma_f32_32x32x16_bf16 {r16(OA)}, {r4(V1)}, {r4(P+4)}, {r16(OA)}")
    k.e("s_and_b32 s34, s30, 3", "s_mul_i32 s34, s34, 18", "s_lshr_b32 s35, s30, 2", "s_mul_i32 s35, s35, 4608",
        f"s_add_u32 s35, s35, {LDS_OST}", "s_movk_i32 s36, 2304",
        f"v_lshrrev_b32 v{T0+9}, 4, v2", f"v_mul_u32_u24 v{T0+9}, s36, v{T0+9}", f"v_and_b32 v{T0+8}, 15, v2",
        f"v_lshl_add_u32 v{T0+9}, v{T0+8}, 4, v{T0+9}", f"v_add_u32 v{T0+9}, s35, v{T0+9}")
    k.e(f"v_lshl_add_u32 v{T0+6}, v3, 2, s34", f"v_add_u32 v{T0+7}, 2, v{T0+6}")
    for r in (T0 + 6, T0 + 7):
        k.e(f"v_lshrrev_b32 v{T0+8}, 3, v{r}", f"v_and_b32 v{r}, 7, v{r}", f"v_lshl_add_u32 v{r}, v{r}, 1, v{T0+9}",
            f"v_lshl_add_u32 v{r}, v{T0+8}, 8, v{r}")
    k.e(f"v_cndmask_b32 v{T0+5}, v{OA+10}, v{OA+12}, s[44:45]")
    k.e(f"v_cmp_le_f32 vcc, {hex(f2u(2.0**-40))}, v{T0+5}")
    k.e("s_cmp_eq_u32 s32, 11", "s_cbranch_scc1 attn_fin")
    k.e("s_cmp_eq_u64 vcc, -1", "s_cbranch_scc1 attn_fin")
    k.e("s_mov_b32 s32, 10", f"v_mov_b32 v{T0+1}, 0", "s_branch attn_setm")
    k.label("attn_fin")
    k.e(f"v_rcp_f32 v{T0+5}, v{T0+5}")
    for i in range(10):
        k.e(f"v_mul_f32 v{OA+i}, v{T0+5}, v{OA+i}")
    for i in range(5):
        k.e(f"v_cvt_pk_bf16_f32 v{P+i}, v{OA+2*i}, v{OA+2*i+1}")
    k.e(f"ds_write_b32 v{T0+6}, v{P}", f"ds_write_b32 v{T0+7}, v{P+1}",
        f"ds_write_b32 v{T0+6}, v{P+2} offset:256", f"ds_write_b32 v{T0+7}, v{P+3} offset:256",
        ex(0xffffffff), f"ds_write_b32 v{T0+6}, v{P+4} offset:512", ex(-1))
    k.e("s_waitcnt lgkmcnt(0)", "s_barrier")
    stb(k, 3)
    publish_o(k, "oa")


def kv_dma(k, a, b):
    for i in range(a, b):
        k.e(f"s_add_u32 m0, s34, {i*4096}", f"s_sub_u32 s36, s35, {IMG - 4096}", "buffer_load_dwordx4 v10, s[16:19], s35 offen sc1 lds",
            "s_add_u32 s35, s35, 4096", "s_min_u32 s35, s35, s36")


NB = 7


def roll_gemm(k, steps, rd, mfma, pre=None):
    seq = [(s, t) for s in steps for t in range(5)]
    n = len(seq)
    for i in range(min(NB, n)):
        rd(seq[i][1], seq[i][0], i % NB)
    for i, (s, t) in enumerate(seq):
        ahead = min(NB - 1, n - 1 - i)
        extra = pre(s) if (pre and t == 0) else ""
        k.e(f"s_waitcnt lgkmcnt({2*ahead}){extra}")
        mfma(t, s, i % NB)
        if i + NB < n:
            rd(seq[i + NB][1], seq[i + NB][0], i % NB)


def roll_gemm2(k, steps, rd2, mf2):
    seq = [(s, t) for s in steps for t in range(5)]
    n = len(seq)
    for i in range(min(NB, n)):
        k.e(*rd2(seq[i][1], seq[i][0], i % NB))
    for i, (s, t) in enumerate(seq):
        issued = min(n, NB + max(0, i - 1))
        k.e(f"s_waitcnt lgkmcnt({2*(issued - 1 - i)})")
        m = mf2(t, s, i % NB)
        j = i - 1 + NB
        r = rd2(seq[j][1], seq[j][0], (i - 1) % NB) if (i >= 1 and j < n) else ["", ""]
        k.e(m[0], r[0], m[1], r[1])


def helper_pack(k):
    k.e("; ==== helper waves 8..11: K/V image -> LDS, re-pack W1/W2 slice into MFMA fragment order (+ column sums of W1)")
    def dma(a, b):
        kv_dma(k, a, b)
    k.e("s_waitcnt vmcnt(0)")
    lds_signal(k, LDS_IM0)
    lds_wait(k, LDS_WDN, 4, "wdn")
    dma(7, 37)
    k.e("s_cmp_lg_u32 s31, 0", "s_cbranch_scc1 mega_h_nolast")
    k.e(ex(0xffff))
    dma(37, 38)
    k.e(ex(-1))
    k.label("mega_h_nolast")
    k.e("s_lshl_b32 s34, s31, 6", "v_add_u32 v12, s34, v1", "v_min_u32 v12, 161, v12", "v_lshlrev_b32 v12, 7, v12",
        "s_mul_i32 s34, s47, 20736")
    k.e("s_lshl_b32 s50, s31, 5", "s_add_u32 s50, s50, s47",
        "s_cmp_ge_u32 s50, 54", "s_cselect_b32 s53, 1, 0",
        "s_mul_i32 s51, s53, 54", "s_sub_u32 s51, s50, s51",
        "s_mul_i32 s54, s51, 57", "s_lshr_b32 s54, s54, 10",
        "s_mul_i32 s52, s54, 18", "s_sub_u32 s52, s51, s52",
        "s_cmp_eq_u32 s53, 0",
        "s_cselect_b32 s20, s4, s6", "s_cselect_b32 s21, s5, s7", f"s_mov_b32 s22, {hex(W1B)}", "s_mov_b32 s23, 0x00020000",
        "s_movk_i32 s56, 1152", "s_cselect_b32 s56, 9216, s56",
        "s_movk_i32 s57, 1152", "s_cselect_b32 s57, s57, 663552", "s_mul_i32 s57, s57, s46",
        "s_movk_i32 s58, 128", "s_cselect_b32 s58, 192, s58", "s_mul_i32 s58, s58, s54", "s_mul_i32 s58, s58, s56", "s_add_u32 s57, s57, s58",
        "s_lshl_b32 s58, s52, 6", "s_add_u32 s57, s57, s58")
    k.e("s_cmp_eq_u32 s53, 1", "s_cselect_b32 s58, 2, 1", "s_cselect_b32 s59, -5, 1",
        "s_mul_i32 s58, s58, s56", "s_mul_i32 s59, s59, s56", "s_mul_i32 s60, s56, 25",
        "s_lshl_b32 s55, s54, 6", "s_sub_u32 s55, 256, s55", "s_mul_i32 s55, s55, s53", "s_add_u32 s55, s55, 25", "s_mul_i32 s55, s55, s56")
    k.e("v_lshrrev_b32 v2, 4, v1", "v_lshlrev_b32 v2, 3, v2", "v_mul_u32_u24 v15, s56, v2", "v_and_b32 v3, 15, v1",
        "v_lshl_add_u32 v15, v3, 2, v15", "v_lshlrev_b32 v8, 2, v3",
        "s_mov_b32 s64, 0x05040100", "s_mov_b32 s65, 0x07060302")
    k.e(f"s_mul_i32 s62, s52, {STREAM}", f"s_mul_i32 s63, s52, {2*STREAM}", f"s_sub_u32 s63, s63, {24*STREAM - 2048}",
        "s_cmp_lt_u32 s52, 12", "s_cselect_b32 s62, s62, s63", "s_movk_i32 s61, 1024", f"s_cselect_b32 s61, s61, {STREAM}",
        "s_mul_i32 s63, s53, 3", "s_add_u32 s63, s63, s54", f"s_mul_i32 s63, s63, {6*3072}", "s_add_u32 s62, s62, s63",
        f"s_mul_i32 s63, s46, {1296*1024}", "s_add_u32 s62, s62, s63", f"s_add_u32 s62, s62, {WS_W}",
        "s_add_u32 s61, s61, s62")
    for i in range(4):
        k.e(f"v_mov_b32 v{PS+8+i}, 0x3f803f80")
    k.e("s_waitcnt vmcnt(0)")
    lds_signal(k, LDS_IMG, va=9, vb=10)
    stp(k, 3)
    k.e("buffer_load_dword v13, v12, s[24:27], s34 offen", ("buffer_load_dword v13, v12, s[24:27], s34 offen offset:64" if os.environ.get("PF64") else ""))
    k.e("s_cmp_ge_u32 s50, 108", "s_cbranch_scc1 mega_h_nounit")
    for ss in range(6):
        for jj in range(8):
            k.e(f"buffer_load_dword v{PIN+8*ss+jj}, v15, s[20:23], s57 offen {os.environ.get('PKL', '')}",
                f"s_add_u32 s57, s57, s{(55 if ss == 3 else 60) if jj == 7 else (56 if ss < 4 else (59 if jj == 3 else 58))}")
    stp(k, 4)
    for ss in range(6):
        k.e(f"s_waitcnt vmcnt({40 - 8*ss + 2*ss})")
        if ss in (0, 5):
            stp(k, 5 if ss == 0 else 6)
        for e in range(2):
            for q in range(4):
                k.e(f"v_perm_b32 v{POUT+8*ss+4*e+q}, v{PIN+8*ss+2*q+1}, v{PIN+8*ss+2*q}, s{64+e}")
            k.e(f"buffer_store_dwordx4 {r4(POUT+8*ss+4*e)}, v11, s[16:19], s{62-e} offen sc1", f"s_add_u32 s{62-e}, s{62-e}, 3072")
    stp(k, 7)
    k.e("s_cmp_lg_u32 s53, 0", "s_cbranch_scc1 mega_h_nounit")
    for ss in range(6):
        for e in range(2):
            k.e(f"v_mfma_f32_16x16x32_bf16 {r4(PS+4*e)}, {r4(PS+8)}, {r4(POUT+8*ss+4*e)}, {r4(PS+4*e) if ss else 0}")
    k.e("s_mul_i32 s58, s54, 18432", "s_mul_i32 s59, s46, 2304", "s_add_u32 s58, s58, s59", "s_lshl_b32 s59, s52, 7",
        "s_add_u32 s58, s58, s59", f"s_add_u32 s58, s58, {WS_SP}")
    k.e(ex(0xffff), f"buffer_store_dword v{PS}, v8, s[16:19], s58 offen sc1",
        f"buffer_store_dword v{PS+4}, v8, s[16:19], s58 offen offset:64 sc1", ex(-1))
    k.label("mega_h_nounit")
    k.e("s_waitcnt vmcnt(0)", "s_lshl_b32 s34, s46, 9", f"s_add_u32 s36, s34, {FP}", "s_lshr_b32 s35, s47, 3", "s_lshl_b32 s35, s35, 7",
        "s_add_u32 s34, s36, s35", "s_lshl_b32 s35, s29, 3", "s_add_u32 s34, s34, s35")
    k.stamp(2)
    arrive(k, 0, 4, 34, "p")
    k.e("s_cmp_lg_u32 s31, 3", "s_cbranch_scc1 mega_h_nofp")
    lds_wait(k, LDS_QRD, 2, "qa")
    lds_wait(k, LDS_QRD + 4, 2, "qb")
    k.e("v_bfe_u32 v12, v1, 3, 2", "v_lshlrev_b32 v12, 7, v12", "v_and_b32 v13, 7, v1", "v_lshl_add_u32 v12, v13, 3, v12")
    poll(k, 12, 36, 14, "p", sleep=16)
    k.e("v_add_u32 v13, 128, v1", "v_min_u32 v13, 143, v13", "v_lshlrev_b32 v13, 4, v13",
        "s_mul_i32 s34, s46, 2304", f"s_add_u32 s34, s34, {WS_SP}")
    for i in range(3):
        k.e(f"buffer_load_dwordx4 {r4(PIN+12*i)}, v11, s[16:19], s34 offen sc1", f"buffer_load_dwordx4 {r4(PIN+12*i+4)}, v11, s[16:19], s34 offen offset:1024 sc1",
            f"buffer_load_dwordx4 {r4(PIN+12*i+8)}, v13, s[16:19], s34 offen sc1", "s_add_u32 s34, s34, 18432")
    k.e(f"v_mov_b32 v14, {LDS_RDY}", "v_mov_b32 v15, 1", "ds_write_b32 v14, v15")
    k.e("v_lshlrev_b32 v14, 7, v1", "v_and_b32 v15, 3, v1", "v_lshlrev_b32 v15, 7, v15",
        f"s_mul_i32 s34, s46, {1296*1024}", "s_mul_i32 s35, s47, 41472", "s_add_u32 s34, s34, s35", f"s_add_u32 s34, s34, {WS_W}")
    for i in range(6):
        if os.environ.get("PF64"):
            k.e(f"buffer_load_dword v{POUT+i}, v{14 if i < 5 else 15}, s[16:19], s34 offen offset:64 sc1")
        k.e(f"buffer_load_dword v{POUT+i}, v{14 if i < 5 else 15}, s[16:19], s34 offen sc1", "s_add_u32 s34, s34, 8192")
    k.e(f"v_add_u32 v12, {LDS_S}, v11", f"v_add_u32 v13, {LDS_S}, v13", "s_waitcnt vmcnt(6)")
    for i in range(1, 3):
        for c in range(12):
            k.e(f"v_add_f32 v{PIN+c}, v{PIN+c}, v{PIN+12*i+c}")
    k.e(f"ds_write_b128 v12, {r4(PIN)}", f"ds_write_b128 v12, {r4(PIN+4)} offset:1024", f"ds_write_b128 v13, {r4(PIN+8)}",
        "s_waitcnt lgkmcnt(0)")
    k.label("mega_h_nofp")


def wo_dma(k, tag):
    k.e("s_mul_i32 s32, s29, 144", "s_lshl_b32 s42, s29, 1", "s_add_u32 s42, s42, s31",
        "s_mul_i32 s43, s31, 5120", f"s_add_u32 s43, s43, {LDS_WO}")

    k.e("s_cmp_eq_u32 s31, 3", f"s_cbranch_scc1 mega_o_skip{tag}")
    for grp in range(6):
        k.e("s_sub_u32 s36, s42, 18", "s_min_u32 s42, s42, s36", "s_mul_i32 s36, s42, 36864", "s_add_u32 s36, s36, s32")
        for i in range(5):
            k.e(f"s_add_u32 m0, s43, {grp*3*5120 + i*1024}", "s_nop 0", f"buffer_load_dwordx4 v{16+i}, s[24:27], s36 offen lds")
        k.e("s_add_u32 s42, s42, 3")
    k.label(f"mega_o_skip{tag}")
    srd(k, 56, 10, XB)
    k.e("s_add_u32 s35, s49, s32")
    for i in range(3):
        if i == 2:
            k.e(ex(0xffffffff))
        k.e(f"s_add_u32 m0, s44, {i*1024}", "s_nop 0", f"buffer_load_dwordx4 v{16+i}, s[56:59], s35 offen lds")
    k.e(ex(-1), "s_waitcnt vmcnt(0)")
    for t in range(5):
        k.e(f"ds_read_b64 v[{36+2*t}:{37+2*t}], v21 offset:{32*t}")
    k.e("s_cmp_eq_u32 s31, 3", f"s_cbranch_scc1 mega_c_skip{tag}")
    k.e("v_add_u32 v32, s43, v28", "v_add_u32 v33, s43, v29", "v_add_u32 v34, s43, v11", "s_mov_b32 s36, 6")
    k.label(f"mega_conv{tag}")
    for t in range(5):
        k.e(f"ds_read_b64_tr_b16 v[{OWF+4*t}:{OWF+4*t+1}], v32 offset:{32*t}", f"ds_read_b64_tr_b16 v[{OWF+4*t+2}:{OWF+4*t+3}], v33 offset:{32*t}")
    k.e("v_add_u32 v32, 15360, v32", "v_add_u32 v33, 15360, v33", "s_waitcnt lgkmcnt(0)")
    for t in range(5):
        k.e(f"ds_write_b128 v34, {r4(OWF+4*t)} offset:{1024*t}")
    k.e("v_add_u32 v34, 15360, v34", "s_sub_u32 s36, s36, 1", "s_cmp_lg_u32 s36, 0", f"s_cbranch_scc1 mega_conv{tag}")
    k.label(f"mega_c_skip{tag}")
    k.e("s_waitcnt lgkmcnt(0)")
    for t in range(5):
        a = OACC + 4 * t
        k.e(f"v_lshlrev_b32 v{a}, 16, v{36+2*t}", f"v_and_b32 v{a+1}, 0xffff0000, v{36+2*t}",
            f"v_lshlrev_b32 v{a+2}, 16, v{37+2*t}", f"v_and_b32 v{a+3}, 0xffff0000, v{37+2*t}")


def oproj(k):
    k.e("; ==== output projection + residual + LayerNorm-2 partial statistics (helper waves)")
    k.e("v_and_b32 v2, 15, v1", "v_lshrrev_b32 v3, 4, v1")
    k.e("v_lshrrev_b32 v32, 2, v2",
        "v_and_b32 v33, 1, v3", "v_lshlrev_b32 v33, 2, v33", "v_add_u32 v32, v32, v33",
        "v_lshl_add_u32 v32, v3, 3, v32", "v_xor_b32 v33, 4, v32", "s_movk_i32 s40, 160",
        "v_and_b32 v34, 3, v2", "v_lshlrev_b32 v34, 3, v34", f"v_add_u32 v34, {LDS_WO}, v34",
        "v_mad_u32_u24 v28, v32, s40, v34", "v_mad_u32_u24 v29, v33, s40, v34",
        "v_add_u32 v30, 61440, v11")
    k.e("s_mul_i32 s44, s31, 2560", f"s_add_u32 s44, s44, {LDS_RES}",
        "v_and_b32 v21, 8, v2", "v_lshrrev_b32 v21, 1, v21", "v_xor_b32 v21, v21, v2", "v_mul_u32_u24 v21, s40, v21",
        "v_lshl_add_u32 v21, v3, 3, v21", "v_add_u32 v21, s44, v21")
    k.e("v_and_b32 v22, 1, v3", "v_lshlrev_b32 v22, 9, v22", "v_lshrrev_b32 v32, 1, v3", "v_lshl_add_u32 v22, v32, 8, v22",
        "v_lshl_add_u32 v22, v2, 4, v22")
    k.e("v_and_b32 v23, 7, v1", "v_lshlrev_b32 v23, 3, v23")
    k.e("s_lshl_b32 s48, s28, 2", "s_add_u32 s48, s48, s31", "s_mul_i32 s49, s48, 18432")
    k.e(f"s_mul_i32 s68, s28, {RX}", "s_add_u32 s68, s68, s49", f"s_add_u32 s34, s68, {WS_O}", "v_add_u32 v24, s34, v11", "s_lshl_b32 s51, s29, 11")
    k.e(f"v_mov_b32 v12, {LDS_REL}", f"s_mov_b32 s3, {SPIN*8}")
    k.label("mega_rel")
    k.e("ds_read_b32 v13, v12", "s_waitcnt lgkmcnt(0)", "v_readfirstlane_b32 s50, v13", "s_and_b32 s39, s50, 0xff", "s_cmp_ge_u32 s39, 8",
        "s_cbranch_scc1 mega_reld", "s_sleep 4", "s_sub_u32 s3, s3, 1", "s_cbranch_scc0 mega_rel")
    k.label("mega_reld")
    if os.environ.get("PFC") == "2":
        k.e("s_cmp_lg_u32 s31, 3", "s_cbranch_scc1 a_nopfc", "s_getpc_b64 s[70:71]")
        k.label("mega_pc2")
        k.e("s_mul_i32 s36, s47, 512", "v_min_u32 v9, 3, v1", "v_lshlrev_b32 v9, 7, v9",
            "v_add_u32 v9, s36, v9", "v_min_u32 v9, mega_end - mega_pc2 - 4, v9", "global_load_dword v10, v9, s[70:71]")
        k.label("a_nopfc")
    k.e("s_cmp_lg_u32 s50, 8", "s_cbranch_scc1 mega_noearly")
    wo_dma(k, "a")
    k.label("mega_noearly")
    stp(k, 8)
    k.e("s_waitcnt lgkmcnt(0)", "s_barrier")
    stb(k, 3)
    publish_o(k, "ob")
    k.e("s_cmp_eq_u32 s50, 8", "s_cbranch_scc1 mega_nolate")
    wo_dma(k, "b")
    k.label("mega_nolate")
    k.e("s_lshl_b32 s34, s28, 7", f"s_add_u32 s34, s34, {F1}")
    k.e("s_cmp_lg_u32 s31, 0", "s_cbranch_scc1 mega_polld_o")
    lds_wait(k, LDS_CNT + 4, 12, "owno")
    poll(k, 23, 34, 32, "o", sleep=int(os.environ.get("OSP", "2")))
    lds_signal(k, LDS_ORD)
    lds_wait(k, LDS_ORD, 4, "ord")
    stb(k, 4)
    for s in range(18):
        k.e(f"buffer_load_dwordx4 v[{OX0+4*s}:{OX0+4*s+3}], v24, s[16:19], s51 offen sc1",
            "s_add_u32 s51, s51, 1024", "s_cmp_eq_u32 s51, 18432", "s_cselect_b32 s51, 0, s51")

    seq = [(s, t) for s in range(18) for t in range(5)]

    def rd(i):
        s, t = seq[i]
        off = (s if s < 12 else s - 12) * 5120 + 1024 * t
        k.e(f"ds_read_b128 {r4(OWF+4*(i%NB))}, v{11 if s < 12 else 30} offset:{off}")
    for i in range(NB):
        rd(i)
    ring_srd(k)
    for i, (s, t) in enumerate(seq):
        k.e(f"s_waitcnt lgkmcnt({min(NB-1, 89-i)})" + (f" vmcnt({17 - s + 3*(s//3)})" if t == 0 else ""))
        a = r4(OACC + 4 * t)
        k.e(f"v_mfma_f32_16x16x32_bf16 {a}, {r4(OWF+4*(i%NB))}, {r4(OX0+4*s)}, {a}")
        if i + NB < 90:
            rd(i + NB)
        if t == 4 and s % 3 == 2:
            st = (s // 3 + 5) % 6
            k.e(f"s_movk_i32 s53, {st*T*1024}")
            for tt in range(T):
                k.e(wload(st, tt))
    sto(k, 1)
    k.e("v_mov_b32 v6, 0", "v_mov_b32 v7, 0", "v_mov_b32 v34, 0x3f803f80",
        "s_mul_i32 s35, s29, 2304", "s_add_u32 s35, s35, s68", f"s_add_u32 s35, s35, {WS_H}")
    for t in range(5):
        a = OACC + 4 * t
        d = OWF + 2 * t
        k.e(f"v_cvt_pk_bf16_f32 v{d}, v{a}, v{a+1}", f"v_cvt_pk_bf16_f32 v{d+1}, v{a+2}, v{a+3}")
        if t == 4:
            k.e(ex(0xffffffff))
        k.e(f"v_dot2c_f32_bf16 v6, v{d}, v34", f"v_dot2c_f32_bf16 v7, v{d}, v{d}",
            f"v_dot2c_f32_bf16 v6, v{d+1}, v34", f"v_dot2c_f32_bf16 v7, v{d+1}, v{d+1}")
        if t == 4:
            k.e(ex(-1))
        if t % 2 == 1 or t == 4:
            b = OWF + 4 * (t // 2)
            k.e(f"v_permlane16_swap_b32 v{b}, v{b+2}", f"v_permlane16_swap_b32 v{b+1}, v{b+3}")
            if t == 4:
                k.e(ex(0xffff))
            k.e(f"buffer_store_dwordx4 {r4(b)}, v22, s[16:19], s35 offen offset:{1024*(t//2)} sc1")
            if t == 4:
                k.e(ex(-1))
    reduce_g_add(k, [6, 7], [32, 33])
    k.e("v_lshlrev_b32 v32, 4, v2", "s_lshl_b32 s35, s48, 10", "s_lshr_b32 s34, s29, 1", "s_lshl_b32 s34, s34, 8",
        "s_add_u32 s35, s35, s34", "s_and_b32 s34, s29, 1", "s_lshl_b32 s34, s34, 3", "s_add_u32 s35, s35, s34",
        f"s_add_u32 s35, s35, {WS_ST}", f"s_mul_i32 s34, s28, {RST}", "s_add_u32 s35, s35, s34", ex(0xffff))
    k.e("buffer_store_dwordx2 v[6:7], v32, s[16:19], s35 offen sc1", ex(-1))
    sto(k, 2)
    k.e("s_lshl_b32 s34, s28, 7", "s_lshl_b32 s35, s29, 3", "s_add_u32 s34, s34, s35", f"s_add_u32 s34, s34, {F2}", "s_waitcnt vmcnt(0)")
    sto(k, 7)
    arrive(k, 2, 4, 34, "h")


def acc(t, mb):
    return ACC + (t * 4 + mb) * 4


def wreg(slot, t):
    return WR + ((slot + 1) % 6) * 12 + t * 4


def wload(slot, t):
    return f"buffer_load_dwordx4 {r4(wreg(slot, t))}, v11, s[20:23], s53 offen offset:{1024*t} {WAUX}"


def ring_srd(k):
    k.e(f"s_mul_i32 s34, s30, {STREAM}", f"s_mul_i32 s35, s46, {1296*1024}", "s_add_u32 s34, s34, s35", f"s_add_u32 s34, s34, {WS_W}",
        "s_add_u32 s20, s12, s34", "s_addc_u32 s21, s13, 0", f"s_mov_b32 s22, {STREAM}", "s_mov_b32 s23, 0x00020000")


def ffn_ring_start(k, n=D - 1):
    ring_srd(k)
    k.e("s_mov_b32 s53, 0")
    for st in range(n):
        for t in range(T):
            k.e(wload(st, t))
        k.e(f"s_add_u32 s53, s53, {T*1024}")


def ffn(k):
    k.label("ffn_join")
    k.e("s_setprio 0" if os.environ.get("PM", "0") == "0" else "s_setprio 3", "v_and_b32 v2, 15, v1", "v_lshrrev_b32 v3, 4, v1")
    k.e("s_lshl_b32 s34, s47, 2", "s_and_b32 s35, s30, 3", "s_add_u32 s34, s34, s35", "s_mul_i32 s41, s34, 18432",
        "s_lshr_b32 s35, s30, 2", "s_lshl_b32 s35, s35, 10", "s_add_u32 s41, s41, s35", f"s_add_u32 s41, s41, {WS_H}", f"s_mul_i32 s35, s47, {RX}", "s_add_u32 s41, s41, s35",
        "s_lshl_b32 s42, s30, 10")
    k.e("s_lshl_b32 s34, s30, 7", f"s_add_u32 s34, s34, {LDS_S}", "v_lshlrev_b32 v13, 4, v3", "v_add_u32 v12, s34, v13",
        "s_lshl_b32 s34, s30, 6", f"s_add_u32 s34, s34, {LDS_S + 1536}", "v_add_u32 v13, s34, v13",
        f"ds_read_b128 {r4(XB0+16)}, v12", f"ds_read_b128 {r4(XB0+20)}, v12 offset:64", f"ds_read_b128 {r4(XB0+24)}, v13")
    k.e("v_lshlrev_b32 v9, 2, v2", f"v_add_u32 v9, {LDS_MU}, v9", "s_and_b32 s34, s46, 3", "s_lshl_b32 s34, s34, 6", "v_add_u32 v10, s34, v9")
    k.e(f"s_movk_i32 s53, {D*T*1024}")
    k.e("s_cmp_lg_u32 s30, 0", "s_cbranch_scc1 ffn_g")
    k.e("v_and_b32 v12, 7, v1", "v_lshlrev_b32 v12, 3, v12", "s_lshl_b32 s34, s47, 7", f"s_add_u32 s34, s34, {F2}",
        "v_lshlrev_b32 v8, 10, v3", "v_lshl_add_u32 v8, v2, 4, v8", f"s_mul_i32 s35, s47, {RST + 4096}", f"s_add_u32 s35, s35, {WS_ST}")
    lds_wait(k, LDS_CNT + 8, 4, "own", va=14, vb=15, sleep=2)
    poll(k, 12, 34, 14, "h", sleep=int(os.environ.get("HSP", "3")))
    for p in range(4):
        k.e(f"buffer_load_dwordx4 {r4(XB0+4*p)}, v8, s[16:19], s35 offen offset:{256*p} sc1")
    k.label("ffn_g")
    k.e("s_barrier")
    stb(k, 5)
    NF = int(os.environ.get("NF", "2"))
    for i in range(NF):
        k.e(f"s_add_u32 m0, s42, {i*12288}", f"s_add_u32 s36, s41, {i*3072}", f"buffer_load_dwordx4 v11, s[16:19], s36 offen {os.environ.get('HNT', '')} sc1 lds")
    k.e("s_cmp_lg_u32 s30, 0", "s_cbranch_scc1 ffn_st")
    k.e(f"s_waitcnt vmcnt({NF})")
    for p in range(1, 4):
        for c in range(4):
            k.e(f"v_add_f32 v{XB0+c}, v{XB0+c}, v{XB0+4*p+c}")
    k.e(f"v_add_f32 v4, v{XB0}, v{XB0+2}", f"v_add_f32 v5, v{XB0+1}, v{XB0+3}",
        f"v_mul_f32 v4, {hex(f2u(-1/576))}, v4", f"v_mul_f32 v5, {hex(f2u(1/576))}, v5", "v_fma_f32 v5, -v4, v4, v5", "v_max_f32 v5, 0, v5",
        f"v_add_f32 v5, {hex(f2u(1e-5))}, v5", "v_rsq_f32 v5, v5", "v_lshlrev_b32 v6, 2, v1", f"v_add_u32 v6, {LDS_MU}, v6",
        "ds_write_b32 v6, v4", "ds_write_b32 v6, v5 offset:256")
    lds_signal(k, LDS_MUS)
    k.label("ffn_st")
    lds_wait(k, LDS_MUS, 1, "mus")
    for i in range(NF, 4):
        k.e(f"s_add_u32 m0, s42, {i*12288}", f"s_add_u32 s36, s41, {i*3072}", f"buffer_load_dwordx4 v11, s[16:19], s36 offen {os.environ.get('HNT', '')} sc1 lds")
    sto(k, 8)
    for mb in range(4):
        k.e(f"ds_read_b32 v{4+mb}, v9 offset:{64*mb}")
    k.e("ds_read_b32 v8, v10 offset:256", "s_waitcnt lgkmcnt(0)")
    for t in range(T):
        for mb in range(4):
            for i in range(4):
                k.e(f"v_mul_f32 v{acc(t,mb)+i}, v{4+mb}, v{XB0+16+4*t+i}")
    k.e("s_add_u32 s41, s41, 12288", "s_add_u32 s42, s42, 49152")
    k.e("s_waitcnt vmcnt(3)", "s_barrier")
    stb(k, 6)
    if os.environ.get("PF2") == "2":
        k.e("v_min_u32 v0, 13, v1", "v_lshlrev_b32 v0, 7, v0", "s_mul_i32 s36, s47, 1728", "s_and_b32 s36, s36, 0xffffff80", f"s_add_u32 s36, s36, {18*T*1024}",
            "buffer_load_dword v0, v0, s[20:23], s36 offen sc1")
    k.e("v_mov_b32 v10, v11", "s_mov_b32 s31, 0")

    def step(u, loads=True, xrd=True):
        xb = XB0 + 16 * (u % 2)
        xn = XB0 + 16 * ((u + 1) % 2)
        fill = [f"ds_read_b128 {r4(xn+4*mb)}, v10 offset:{(u+1)*4096 + 1024*mb}" for mb in range(4)] if xrd else []
        if loads:
            fill += [wload((u + D - 1) % D, t) for t in range(T)]
            fill += [f"s_add_u32 s53, s53, {T*1024}"]
        order = [(t, mb) for t in range(T) for mb in range(4)]
        if os.environ.get("ORD") == "snake":
            order = [(t, mb if t % 2 == 0 else 3 - mb) for t in range(T) for mb in range(4)]
        if os.environ.get("ORD") == "mb":
            order = [(t if mb % 2 == 0 else T - 1 - t, mb) for mb in range(4) for t in range(T)]
        for t, mb in order:
            a = r4(acc(t, mb))
            k.e(f"v_mfma_f32_16x16x32_bf16 {a}, {r4(wreg(u, t))}, {r4(xb+4*mb)}, {a}")
            if fill:
                k.e(fill.pop(0))
    for mb in range(4):
        k.e(f"ds_read_b128 {r4(XB0+4*mb)}, v10 offset:{1024*mb}")
    k.e("s_waitcnt lgkmcnt(0)")
    step(0, loads=False)
    k.e("s_branch ffn_u1")
    k.label("ffn_start")
    for mb in range(4):
        k.e(f"ds_read_b128 {r4(XB0+4*mb)}, v10 offset:{1024*mb}")
    k.e(".p2align 6")
    k.label("ffn_loop")
    k.e("s_cmp_lg_u32 s31, 1", "s_cbranch_scc1 ffn_nodma")
    for i in range(2):
        k.e(f"s_add_u32 m0, s42, {i*12288}", f"s_add_u32 s36, s41, {i*3072}", f"buffer_load_dwordx4 v11, s[16:19], s36 offen {os.environ.get('HNT', '')} sc1 lds")
    if os.environ.get("PF2", "1") == "1":
        k.e("v_min_u32 v0, 13, v1", "v_lshlrev_b32 v0, 7, v0", "s_mul_i32 s36, s47, 1728", "s_and_b32 s36, s36, 0xffffff80", f"s_add_u32 s36, s36, {18*T*1024}",
            ("buffer_load_dword v15, v0, s[20:23], s36 offen offset:64 sc1" if os.environ.get("PF64") else ""),
            "buffer_load_dword v0, v0, s[20:23], s36 offen sc1")
    k.label("ffn_nodma")
    for u in range(D):
        if u == 1:
            k.label("ffn_u1")
        k.e(f"s_waitcnt vmcnt({4*T}) lgkmcnt(0)")
        if u == D - 1:
            k.e("s_cmp_ge_u32 s31, 2", "s_cbranch_scc1 ffn_hwait", "s_barrier")
            k.label("ffn_nobar")
        if u == 2:
            k.e("s_cmp_lg_u32 s31, 0", "s_cbranch_scc1 ffn_nobar2", "s_waitcnt vmcnt(5)", "s_barrier")
            k.label("ffn_nobar2")
        step(u)
    k.e(f"v_add_u32 v10, {D*4096}, v10", "s_add_u32 s31, s31, 1",
        "s_cmp_eq_u32 s31, 3", "s_cbranch_scc1 ffn_ep1",
        "s_cmp_lt_u32 s31, 5", "s_cbranch_scc1 ffn_loop")
    for u in range(D):
        k.e(f"s_waitcnt vmcnt({min(4*T, T*(D-1-u))}) lgkmcnt(0)")
        step(u, loads=(u == 0), xrd=(u < D - 1))
    stb(k, 8)
    k.e("s_waitcnt lgkmcnt(0)")
    k.e(f"s_mul_i32 s34, s46, {PSX}", f"s_mul_i32 s33, s47, {PSY}", f"s_add_u32 s33, s33, {WS_P}", "s_add_u32 s34, s34, s33",
        "s_lshl_b32 s35, s30, 10", "s_add_u32 s36, s34, s35",
        "s_cmp_ge_u32 s30, 6", "s_movk_i32 s37, 12288", f"s_cselect_b32 s37, {12288 + 18432 - 6144}, s37", "s_add_u32 s37, s37, s36")
    for mb in range(4):
        d = XB0 + 4 * mb
        a, b = acc(0, mb), acc(1, mb)
        for i in range(4):
            k.e(f"v_cvt_pk_bf16_f32 v{d+i}, v{a+i}, v{b+i}")
        k.e(f"buffer_store_dwordx4 {r4(d)}, v11, s[16:19], s36 offen sc1", "s_add_u32 s36, s36, 18432")
    for h in range(2):
        d = XB0 + 16 + 4 * h
        a, b = acc(2, 2 * h), acc(2, 2 * h + 1)
        k.e(f"v_cvt_pk_bf16_f32 v{d}, v{a}, v{a+1}", f"v_cvt_pk_bf16_f32 v{d+1}, v{a+2}, v{a+3}",
            f"v_cvt_pk_bf16_f32 v{d+2}, v{b}, v{b+1}", f"v_cvt_pk_bf16_f32 v{d+3}, v{b+2}, v{b+3}")
        k.e(f"buffer_store_dwordx4 {r4(d)}, v11, s[16:19], s37 offen sc1", "s_add_u32 s37, s37, 36864")
    stt(k, 3)
    k.e("s_lshl_b32 s38, s47, 9", f"s_add_u32 s38, s38, {F3}", "s_lshr_b32 s36, s30, 2", "s_lshl_b32 s35, s36, 7", "s_add_u32 s38, s38, s35",
        "s_lshl_b32 s35, s46, 3", "s_add_u32 s34, s38, s35",
        "s_lshl_b32 s44, s36, 2", f"s_add_u32 s44, s44, {LDS_CNT + 12}", "s_waitcnt vmcnt(0)")
    stt(k, 4)
    stt(k, 5)
    stt(k, 6)
    arrive(k, 0, 4, 34, "r", cnt_sgpr=44)
    k.e("s_add_u32 s44, s44, 12", "v_mov_b32 v10, s44")
    k.e("s_and_b32 s35, s30, 3", "s_cmp_lg_u32 s35, 3", "s_cbranch_scc1 mega_red")
    if os.environ.get("DEFER", "1") == "1":
        if os.environ.get("DEF0", "1") == "1":
            k.e("s_cmp_eq_u32 s30, 3", f"s_mov_b32 s35, {LDS_CNT + 20}", f"s_cselect_b32 s35, {LDS_CNT + 16}, s35")
            lds_wait(k, "s35", 4, "t2", sleep=4)
        else:
            lds_wait(k, LDS_CNT + 20, 4, "t2", sleep=4)
    k.e("v_and_b32 v12, 7, v1", "v_lshlrev_b32 v12, 3, v12")
    poll(k, 12, 38, 14, "r", sleep=int(os.environ.get("RSP", "3")))
    k.e("v_mov_b32 v13, 1", "ds_write_b32 v10, v13", "s_waitcnt lgkmcnt(0)", "s_branch mega_fin")
    k.label("mega_red")
    k.e(
        "s_lshl_b32 s37, s36, 2", "s_lshl_b32 s39, s35, 1", "s_add_u32 s37, s37, s39",
        "s_lshl_b32 s39, s36, 1", "s_add_u32 s39, s39, 12", "s_cmp_eq_u32 s35, 2", "s_cselect_b32 s37, s39, s37",
        "s_lshr_b32 s39, s46, 2", "s_add_u32 s37, s37, s39",
        "s_and_b32 s39, s46, 3",
        "s_mul_i32 s34, s39, 18432", "s_lshl_b32 s41, s37, 10", "s_add_u32 s34, s34, s41")
    k.e("s_sub_u32 s41, s37, 12", "s_lshl_b32 s41, s41, 11", "s_cmp_ge_u32 s37, 15", "s_movk_i32 s42, 12288",
        f"s_cselect_b32 s42, {12288 + 18432 - 6144}, s42", "s_add_u32 s41, s41, s42", "s_lshr_b32 s42, s39, 1", "s_mul_i32 s42, s42, 36864",
        "s_add_u32 s41, s41, s42", "s_and_b32 s42, s39, 1", "s_lshl_b32 s42, s42, 3", "s_add_u32 s41, s41, s42",
        "s_mov_b32 s43, s35", "s_cmp_eq_u32 s35, 2", "s_cselect_b32 s34, s41, s34", "s_cselect_b32 s42, 1024, 8",
        "s_add_u32 s33, s33, s34", "s_add_u32 s42, s42, s33")
    k.e("s_lshl_b32 s35, s37, 2", "s_add_u32 s35, s35, s39", "s_lshl_b32 s35, s35, 10", "v_add_u32 v13, s35, v11",
        f"ds_read_b128 {r4(WR+32)}, v13")
    srd(k, 20, 14, XB)
    k.e("s_lshl_b32 s35, s47, 2", "s_add_u32 s35, s35, s39", "s_mul_i32 s35, s35, 18432", "s_lshl_b32 s37, s37, 6",
        "s_add_u32 s37, s37, s35", "s_movk_i32 s35, 1152", "v_mul_u32_u24 v9, s35, v2", "v_lshl_add_u32 v9, v3, 4, v9")
    k.e("v_mov_b32 v5, 0x00003f80", "v_mov_b32 v6, 0x3f800000")
    for i in range(8):
        k.e(f"v_mov_b32 v{ACC+i}, 0")
    k.e(f"s_mov_b32 s3, {SPIN*8}")
    k.label("mega_lspin")
    k.e("ds_read_b32 v14, v10", "s_waitcnt lgkmcnt(0)", "v_readfirstlane_b32 s38, v14", "s_cmp_lg_u32 s38, 0", "s_cbranch_scc1 mega_lspind",
        "s_sleep 2", "s_sub_u32 s3, s3, 1", "s_cbranch_scc0 mega_lspin")
    k.label("mega_lspind")
    stt(k, 5)
    k.e("s_cmp_eq_u32 s43, 2", "s_cbranch_scc1 mega_ld_s")
    for j in range(8):
        k.e(f"buffer_load_dwordx4 {r4(WR+4*j)}, v11, s[16:19], s33 offen sc1", f"s_add_u32 s33, s33, {PSX}")
    k.e("s_branch mega_ld_o")
    k.label("mega_ld_s")
    for j in range(8):
        k.e(f"buffer_load_dwordx2 v[{WR+4*j}:{WR+4*j+1}], v11, s[16:19], s33 offen sc1", f"s_add_u32 s33, s33, {PSX}")
    for j in range(8):
        k.e(f"buffer_load_dwordx2 v[{WR+4*j+2}:{WR+4*j+3}], v11, s[16:19], s42 offen sc1", f"s_add_u32 s42, s42, {PSX}")
    k.label("mega_ld_o")
    k.e("s_waitcnt lgkmcnt(0)")
    for i in range(4):
        k.e(f"v_lshlrev_b32 v{ACC+8+2*i}, 16, v{WR+32+i}", f"v_and_b32 v{ACC+9+2*i}, 0xffff0000, v{WR+32+i}")
    for j in range(8):
        k.e(f"s_waitcnt vmcnt({7-j})")
        for i in range(4):
            k.e(f"v_dot2c_f32_bf16 v{ACC+2*i}, v{WR+4*j+i}, v5", f"v_dot2c_f32_bf16 v{ACC+2*i+1}, v{WR+4*j+i}, v6")
    stt(k, 6)
    k.e("s_cmp_eq_u32 s43, 2", "s_cbranch_scc1 mega_red_s")
    for i in range(8):
        k.e(f"v_fma_f32 v{ACC+8+i}, v{ACC+i}, v8, v{ACC+8+i}")
    k.e("s_branch mega_red_o")
    k.label("mega_red_s")
    for i in range(8):
        k.e(f"v_fma_f32 v{ACC+8+i}, v{ACC+(i//2)+4*(i%2)}, v8, v{ACC+8+i}")
    k.label("mega_red_o")
    for i in range(4):
        k.e(f"v_cvt_pk_bf16_f32 v{XB0+i}, v{ACC+8+2*i}, v{ACC+9+2*i}")
    k.e(f"buffer_store_dwordx4 {r4(XB0)}, v9, s[20:23], s37 offen")
    k.label("mega_fin")
    k.stamp_flush(1, 10, 16, 30, wpw=16)
    if os.environ.get("DBGOUT"):
        k.e("s_cmp_lg_u32 s2, 5", "s_cbranch_scc1 mega_end", "s_cmp_lg_u32 s30, 8", "s_cbranch_scc1 mega_end",
            "s_load_dwordx2 s[4:5], s[0:1], 72", "s_waitcnt lgkmcnt(0)", "s_nop 0")
        srd(k, 20, 4, 256)
        for i in range(1, 9):
            k.e(f"s_sub_u32 s34, s{81+2*i}, s81", "v_mov_b32 v4, s34", f"buffer_store_dword v4, v0, s[20:23], 0 offen offset:{4*i-4}",
                f"s_sub_u32 s34, s{80+2*i}, s80", "v_mov_b32 v5, s34", f"buffer_store_dword v5, v0, s[20:23], 0 offen offset:{4*i+28}", "s_waitcnt vmcnt(0)")
    k.e("s_endpgm")
    k.label("ffn_ep1")
    if os.environ.get("PF3"):
        k.e("v_min_u32 v0, 13, v1", "v_lshlrev_b32 v0, 7, v0", "s_mul_i32 s36, s47, 1728", "s_and_b32 s36, s36, 0xffffff80", f"s_add_u32 s36, s36, {18*T*1024}",
            "buffer_load_dword v0, v0, s[20:23], s36 offen sc1")
    k.e("s_waitcnt lgkmcnt(0)")
    k.e("s_lshr_b32 s36, s30, 2", "s_mul_i32 s37, s36, 24576", f"s_add_u32 s37, s37, {LDS_H}",
        "s_and_b32 s34, s30, 3", "s_lshl_b32 s34, s34, 12", "s_add_u32 s34, s34, s37", "v_add_u32 v14, s34, v11",
        "s_bfe_u32 s34, s30, 0x10001", "s_lshl_b32 s34, s34, 12", "s_and_b32 s35, s30, 1", "s_lshl_b32 s35, s35, 3",
        "s_add_u32 s34, s34, s35", "s_add_u32 s34, s34, s37", "s_add_u32 s34, s34, 16384", "v_add_u32 v15, s34, v11",
        "s_lshl_b32 s36, s36, 2", f"s_add_u32 s36, s36, {LDS_HRD}")
    for mb in range(4):
        d = XB0 + 4 * mb
        a, b = acc(0, mb), acc(1, mb)
        for i in range(4):
            k.e(f"v_cvt_pk_bf16_f32 v{d+i}, v{a+i}, v{b+i}")
        for i in range(4):
            k.e(f"v_pk_max_i16 v{d+i}, v{d+i}, 0")
        k.e(f"ds_write_b128 v14, {r4(d)} offset:{mb*1024}")
    for mb in range(4):
        a = acc(2, mb)
        d = XB0 + 16 + 2 * mb
        k.e(f"v_cvt_pk_bf16_f32 v{d}, v{a}, v{a+1}", f"v_cvt_pk_bf16_f32 v{d+1}, v{a+2}, v{a+3}",
            f"v_pk_max_i16 v{d}, v{d}, 0", f"v_pk_max_i16 v{d+1}, v{d+1}, 0",
            f"ds_write_b64 v15, v[{d}:{d+1}] offset:{mb*1024}")
    lds_signal(k, "s36")
    for r in range(ACC, ACC + 16 * T):
        k.e(f"v_mov_b32 v{r}, 0")
    PM = os.environ.get("PM", "0")
    if PM == "0":
        k.e("s_cmp_lt_u32 s30, 4", "s_cbranch_scc0 ffn_pr1", "s_setprio 2")
        k.label("ffn_pr1")
        k.e("s_and_b32 s34, s30, 12", "s_cmp_eq_u32 s34, 4", "s_cbranch_scc0 ffn_pr2", "s_setprio 1")
        k.label("ffn_pr2")
    else:
        k.e("s_setprio 2")
        if PM == "2":
            k.e("s_cmp_lt_u32 s30, 4", "s_cbranch_scc0 ffn_pr1", "s_setprio 3")
            k.label("ffn_pr1")
    lds_wait(k, LDS_HRD, 4, "h0")
    stb(k, 7)
    k.e("s_branch ffn_start")
    k.label("ffn_hwait")
    k.e("s_cmp_eq_u32 s31, 2", "s_cbranch_scc1 ffn_nobar", "s_lshl_b32 s36, s31, 2", f"s_add_u32 s36, s36, {LDS_HRD - 8}")
    lds_wait(k, "s36", 4, "h1")
    if PM != "0":
        if PM == "2":
            k.e("s_cmp_lt_u32 s30, 4", "s_cbranch_scc1 ffn_nobar")
        k.e("s_setprio 1", "s_cmp_eq_u32 s31, 3", "s_cbranch_scc1 ffn_nobar", "s_setprio 0")
    k.e("s_branch ffn_nobar")


def tr_addr(k, base0, base1, stride, extra_sgpr=None):
    k.e("v_lshrrev_b32 v32, 2, v2",
        "v_and_b32 v33, 1, v3", "v_lshlrev_b32 v33, 2, v33", "v_add_u32 v32, v32, v33",
        "v_lshl_add_u32 v32, v3, 3, v32", "v_xor_b32 v33, 4, v32", f"s_movk_i32 s40, {stride}",
        "v_and_b32 v34, 3, v2", "v_lshlrev_b32 v34, 3, v34", f"v_add_u32 v34, {base0}, v34")
    if extra_sgpr is not None:
        k.e(f"v_add_u32 v34, s{extra_sgpr}, v34")
    k.e("v_mad_u32_u24 v28, v32, s40, v34", "v_mad_u32_u24 v29, v33, s40, v34")
    if base1 is not None:
        k.e(f"v_add_u32 v30, {base1 - base0}, v28", f"v_add_u32 v31, {base1 - base0}, v29")


def x_read_addr(k, v, slot_sgpr):
    k.e(f"v_lshrrev_b32 v{v}, 2, v2", f"v_sub_u32 v{v}, 4, v{v}", f"v_and_b32 v{v}, 3, v{v}", f"v_xor_b32 v{v}, v{v}, v3",
        f"v_lshlrev_b32 v{v}, 4, v{v}", f"v_lshl_add_u32 v{v}, v2, 6, v{v}")
    if slot_sgpr is None:
        k.e(f"v_add_u32 v{v}, {A_X}, v{v}")
    else:
        k.e(f"v_add_u32 v{v}, s{slot_sgpr}, v{v}")


def get_nonce(k):
    k.e(f"v_mov_b32 v12, {LDS_NON}", "ds_read_b64 v[14:15], v12", "s_waitcnt lgkmcnt(0)",
        "v_readfirstlane_b32 s66, v14", "v_readfirstlane_b32 s67, v15")


def wq_rd(k, t, s, wf, b, par=False):
    ss = 4 * s if par else s
    a0, a1 = (28, 29) if ss < 8 else (30, 31)
    off = (ss if ss < 8 else ss - 8) * 5120 + 32 * t
    k.e(f"ds_read_b64_tr_b16 v[{wf+4*b}:{wf+4*b+1}], v{a0} offset:{off}",
        f"ds_read_b64_tr_b16 v[{wf+4*b+2}:{wf+4*b+3}], v{a1} offset:{off}")


QCH = [(0, 8), (8, 12), (12, 18)]


def a_qwave(k):
    k.e("; ==== LN1 + Q projection (waves 0..3), LN folded into the epilogue")
    k.e("s_setprio 2")
    k.e("s_sub_u32 s34, s30, s29", "s_and_b32 s34, s34, 3", "s_mul_i32 s43, s34, 18432", f"s_add_u32 s43, s43, {A_X}",
        "s_lshl_b32 s35, s28, 2", "s_add_u32 s35, s35, s30", "s_mul_i32 s35, s35, 18432", "s_lshl_b32 s36, s48, 6")
    k.e("v_lshrrev_b32 v5, 2, v1", "v_sub_u32 v6, 4, v3", "v_xor_b32 v6, v6, v1", "v_and_b32 v6, 3, v6",
        "s_movk_i32 s41, 1152", "v_mul_u32_u24 v5, s41, v5", "v_lshl_add_u32 v4, v6, 4, v5", "v_add_u32 v4, s35, v4")
    NOB0 = os.environ.get("NOB0")
    if not NOB0:
        k.e("s_cmp_eq_u32 s34, 0", "s_cbranch_scc1 a_q_first", "s_barrier")
    else:
        k.e("s_cmp_lg_u32 s34, 0", "s_cbranch_scc1 a_q_first", "s_setprio 3")
    k.label("a_q_first")
    for s in range(18):
        k.e(f"s_add_u32 m0, s43, {s*1024}", "s_nop 0", "buffer_load_dwordx4 v4, s[20:23], s36 offen lds",
            "s_add_u32 s36, s36, 64", "s_cmp_eq_u32 s36, s41", "s_cselect_b32 s36, 0, s36")
    if not NOB0:
        k.e("s_cmp_lg_u32 s34, 0", "s_cbranch_scc1 a_q_second", "s_barrier")
    else:
        k.e("s_setprio 2", "s_barrier")
    k.label("a_q_second")
    tr_addr(k, A_WQ0, A_WQ1, 160)
    x_read_addr(k, 35, 43)
    for r in range(QACC, QACC + 20):
        k.e(f"v_mov_b32 v{r}, 0")
    for b in QACS:
        for i in range(4):
            k.e(f"v_mov_b32 v{b+i}, 0")
    for i in range(4):
        k.e(f"v_mov_b32 v{QONES+i}, 0x3f803f80")
    k.e("v_mov_b32 v6, 0", "v_mov_b32 v7, 0")
    for part in range(3):
        k.e(f"s_waitcnt vmcnt({18 - 6*(part+1)})")
        if part == 2:
            k.e("s_cmp_lg_u32 s34, 0", "s_cbranch_scc1 a_q_nosig")
            lds_signal(k, LDS_KVI)
            k.label("a_q_nosig")
        for s in range(6 * part, 6 * part + 6):
            k.e(f"ds_read_b128 {r4(QX0+4*s)}, v35 offset:{1024*s}")
        if part:
            k.e("s_waitcnt lgkmcnt(6)")
            for r in range(QX0 + 24 * (part - 1), QX0 + 24 * part):
                k.e(f"v_dot2c_f32_bf16 v6, v{r}, v{QONES}", f"v_dot2c_f32_bf16 v7, v{r}, v{r}")
    k.e("s_waitcnt lgkmcnt(0)")
    lds_signal(k, LDS_XC)
    k.stamp(1)
    for r in range(QX0 + 48, QX0 + 72):
        k.e(f"v_dot2c_f32_bf16 v6, v{r}, v{QONES}", f"v_dot2c_f32_bf16 v7, v{r}, v{r}")
    reduce_g_add(k, [6, 7], [32, 33])
    k.e(f"v_mul_f32 v6, {hex(f2u(1/576))}, v6", f"v_mul_f32 v7, {hex(f2u(1/576))}, v7",
        "v_fma_f32 v7, -v6, v6, v7", "v_max_f32 v7, 0, v7", f"v_add_f32 v7, {hex(f2u(1e-5))}, v7", "v_rsq_f32 v7, v7")
    k.e("s_cmp_lg_u32 s34, 0", "s_cbranch_scc1 a_q_nost")
    k.e("v_lshlrev_b32 v32, 2, v2", f"v_add_u32 v32, {A_ST}, v32", "ds_write_b32 v32, v6", "ds_write_b32 v32, v7 offset:64",
        "s_waitcnt lgkmcnt(0)")
    lds_signal(k, LDS_KVS)
    k.label("a_q_nost")
    k.e(f"v_mul_f32 v34, {hex(f2u(QSCALE))}, v7")
    k.e("s_mul_i32 s35, s30, 2304", f"s_add_u32 s35, s35, {LDS_OST}", "v_lshrrev_b32 v35, 1, v3", "v_lshlrev_b32 v35, 8, v35",
        "v_lshl_add_u32 v35, v2, 4, v35", "v_and_b32 v32, 1, v3", "v_lshl_add_u32 v35, v32, 3, v35", "v_add_u32 v35, s35, v35")
    sta(k, 3)
    k.label("a_q_gemm")
    for ci, (s0, s1) in enumerate(QCH):
        k.e("s_cmp_ge_u32 s30, 4", f"s_cbranch_scc1 mega_lwd_q{ci}")
        lds_wait(k, LDS_WQC + 4 * ci, 4, f"q{ci}")
        def rd2(t, s, b):
            a0, a1 = (28, 29) if s < 8 else (30, 31)
            off = (s if s < 8 else s - 8) * 5120 + 32 * t
            return [f"ds_read_b64_tr_b16 v[{QWF+4*b}:{QWF+4*b+1}], v{a0} offset:{off}",
                    f"ds_read_b64_tr_b16 v[{QWF+4*b+2}:{QWF+4*b+3}], v{a1} offset:{off}"]
        roll_gemm2(k, list(range(s0, s1)), rd2,
                   lambda t, s, b: [f"v_mfma_f32_16x16x32_bf16 {r4(QACC+4*t)}, {r4(QWF+4*b)}, {r4(QX0+4*s)}, {r4(QACC+4*t)}",
                                    f"v_mfma_f32_16x16x32_bf16 {r4(QACS[t])}, {r4(QWF+4*b)}, {r4(QONES)}, {r4(QACS[t])}"])
    k.e("s_cmp_ge_u32 s30, 4", "s_cbranch_scc1 a_s_done")
    sta(k, 7)
    k.e("s_setprio 3")
    lds_signal(k, LDS_WDN)
    sta(k, 8)
    for t in range(5):
        a = QACC + 4 * t
        for i in range(4):
            k.e(f"v_fma_f32 v{a+i}, -v6, v{QACS[t]+i}, v{a+i}")
        for i in range(4):
            k.e(f"v_mul_f32 v{a+i}, v34, v{a+i}")
        k.e(f"v_cvt_pk_bf16_f32 v{QWF+2*t}, v{a}, v{a+1}", f"v_cvt_pk_bf16_f32 v{QWF+2*t+1}, v{a+2}, v{a+3}")
        if t == 4:
            k.e(ex(0xffffffff))
        k.e(f"ds_write_b64 v35, v[{QWF+2*t}:{QWF+2*t+1}] offset:{512*t}")
    k.e("s_lshr_b32 s35, s30, 1", "s_lshl_b32 s35, s35, 2", f"s_add_u32 s35, s35, {LDS_QRD}", "v_mov_b32 v12, s35", "v_mov_b32 v13, 1",
        ex(1), "ds_add_u32 v12, v13", ex(-1))


def wkv_rd(k, s, wf):
    for t in range(2):
        off = s * 1536 + 32 * t
        k.e(f"ds_read_b64_tr_b16 v[{wf+4*t}:{wf+4*t+1}], v28 offset:{off}",
            f"ds_read_b64_tr_b16 v[{wf+4*t+2}:{wf+4*t+3}], v29 offset:{off}")


def a_wkv_dma(k):
    k.e("s_cmp_lt_u32 s29, 4", "s_cselect_b32 s20, s70, s72", "s_cselect_b32 s21, s71, s73", f"s_mov_b32 s22, {WKB}", "s_mov_b32 s23, 0x00020000")
    k.e("s_movk_i32 s40, 21846")
    for i in range(3):
        k.e(f"v_add_u32 v32, {64*i}, v1", "v_mul_u32_u24 v33, s40, v32", "v_lshrrev_b32 v33, 16, v33", "v_mul_u32_u24 v34, 3, v33",
            "v_sub_u32 v34, v32, v34", "v_lshlrev_b32 v34, 4, v34", "v_min_u32 v34, 20, v34",
            "v_and_b32 v35, 8, v33", "v_lshrrev_b32 v35, 1, v35", "v_xor_b32 v35, v35, v33", f"v_mad_u32_u24 v{16+i}, v35, 36, v34")
    k.e("s_sub_u32 s34, s30, 4", "s_mul_i32 s34, s34, 3", "s_mul_i32 s43, s34, 3072", "s_lshr_b32 s35, s48, 1", "s_add_u32 s35, s35, s34",
        "s_sub_u32 s36, s35, 9", "s_min_u32 s35, s35, s36", "s_mul_i32 s35, s35, 2304")
    for g in range(3):
        for i in range(3):
            k.e(f"s_add_u32 m0, s43, {A_WKV + g*3072 + i*1024}", "s_nop 0", f"buffer_load_dwordx4 v{16+i}, s[20:23], s35 offen lds")
        k.e("s_add_u32 s35, s35, 2304", f"s_cmp_eq_u32 s35, {9*2304}", "s_cselect_b32 s35, 0, s35")


def a_kvwave(k):
    k.e("; ==== K or V projection of 16 rows (wave 4), published to every workgroup")
    k.e("s_setprio 3")
    a_wkv_dma(k)
    k.e("s_barrier")
    tr_addr(k, A_WKV, None, 48)
    x_read_addr(k, 35, None)
    for r in range(QACC, QACC + 8):
        k.e(f"v_mov_b32 v{r}, 0")
    k.e("s_lshr_b32 s41, s28, 1", f"s_mul_i32 s41, s41, {GRP}", f"s_add_u32 s41, s41, {WS_KV}",
        "s_and_b32 s42, s28, 1", "s_lshl_b32 s42, s42, 1", "s_bfe_u32 s43, s29, 0x10001", "s_add_u32 s42, s42, s43",
        "s_and_b32 s43, s29, 1",
        "s_lshl_b32 s49, s28, 7", "s_lshl_b32 s34, s29, 3", "s_add_u32 s49, s49, s34", f"s_add_u32 s49, s49, {FK}")
    k.e("s_waitcnt vmcnt(0)")
    lds_signal(k, LDS_WKI)
    lds_wait(k, LDS_KVI, 3, "kvi")
    k.stamp(1)
    k.e("s_cmp_ge_u32 s29, 4", "s_cbranch_scc1 a_kv_v")
    for isv in (False, True):
        if isv:
            k.label("a_kv_v")

        def rd(s):
            b = s % 3
            k.e(f"ds_read_b128 {r4(QX0+4*b)}, v35 offset:{1024*s}")
            wkv_rd(k, s, QX0 + 12 + 8 * b)
        rd(0)
        rd(1)
        for s in range(18):
            b = s % 3
            if s + 2 < 18:
                rd(s + 2)
            k.e(f"s_waitcnt lgkmcnt({min(10, 5*(17-s))})")
            for t in range(2):
                a, w, x = r4(QACC + 4 * t), r4(QX0 + 12 + 8 * b + 4 * t), r4(QX0 + 4 * b)
                k.e(f"v_mfma_f32_16x16x32_bf16 {a}, {x}, {w}, {a}" if isv else f"v_mfma_f32_16x16x32_bf16 {a}, {w}, {x}, {a}")
        sta(k, 3)
        lds_wait(k, LDS_KVS, 2, "kv" + ("v" if isv else "k"))
        sta(k, 4)
        A = QACC
        if not isv:
            k.e("v_lshlrev_b32 v32, 4, v3", f"v_add_u32 v32, {A_SKV}, v32", "v_lshlrev_b32 v33, 2, v2", f"v_add_u32 v33, {A_ST}, v33",
                "ds_read_b128 v[16:19], v32", "ds_read_b128 v[20:23], v32 offset:64", "ds_read_b32 v6, v33", "ds_read_b32 v7, v33 offset:64")
            k.e("s_lshl_b32 s38, s43, 8", "v_lshlrev_b32 v36, 4, v2", "v_add_u32 v36, s38, v36",
                "v_lshrrev_b32 v37, 1, v3", "v_lshl_add_u32 v37, v37, 9, v36",
                "s_lshl_b32 s38, s42, 10", "s_add_u32 s38, s38, s41",
                "s_lshl_b32 s39, s42, 2", "s_add_u32 s39, s39, s41", f"s_add_u32 s39, s39, {KV_K2}")
            k.e("s_waitcnt lgkmcnt(0)")
            for i in range(8):
                k.e(f"v_fma_f32 v{A+i}, -v6, v{16+i}, v{A+i}")
            for i in range(8):
                k.e(f"v_mul_f32 v{A+i}, v7, v{A+i}")
            k.e(f"v_cvt_pk_bf16_f32 v40, v{A}, v{A+1}", f"v_cvt_pk_bf16_f32 v41, v{A+2}, v{A+3}", f"v_cvt_pk_bf16_f32 v44, v{A+6}, v{A+7}")
            k.e("v_permlane16_swap_b32 v40, v42", "v_permlane16_swap_b32 v41, v43")
            k.e(ex(0x0000ffff0000ffff), "buffer_store_dwordx4 v[40:43], v37, s[16:19], s38 offen sc1",
                ex(0xffff0000), "buffer_store_dword v44, v36, s[16:19], s39 offen sc1", ex(-1))
            k.e("s_or_b32 s39, s42, s28", "s_cmp_lg_u32 s39, 0", "s_cbranch_scc1 a_kv_nod", f"s_add_u32 s38, s38, {IMG}",
                ex(0x0000ffff0000ffff), "buffer_store_dwordx4 v[40:43], v37, s[16:19], s38 offen sc1", ex(-1))
            k.label("a_kv_nod")
            k.e("s_or_b32 s38, s42, s43", "s_cmp_lg_u32 s38, 0", "s_cbranch_scc1 a_kv_noc")
            k.e("v_mov_b32 v24, 0x3f803f80", "v_mov_b32 v25, 0x00003f80", "v_mov_b32 v26, 0x3f803f80", "v_mov_b32 v27, 0x00003f80",
                "v_mov_b32 v12, 0", f"s_add_u32 s38, s41, {KV_K2 + 512}", ex(1), "buffer_store_dwordx4 v[24:27], v12, s[16:19], s38 offen sc1", ex(-1))
            k.label("a_kv_noc")
            k.e(f"v_mul_f32 v45, v{A+6}, v{A+6}", f"v_fmac_f32 v45, v{A+7}, v{A+7}",
                "v_cmp_eq_u32 vcc, 1, v3", "v_cndmask_b32 v45, 0, v45, vcc")
            for i in range(4):
                k.e(f"v_fmac_f32 v45, v{A+i}, v{A+i}")
            reduce_g_add(k, [45], [46])
            for sh in (8, 4, 2, 1):
                k.e(f"v_max_f32_dpp v45, v45, v45 row_ror:{sh} row_mask:0xf bank_mask:0xf")
            k.e("s_branch a_kv_pub")
        else:
            k.e("v_lshlrev_b32 v32, 2, v2", f"v_add_u32 v32, {A_SKV}, v32", "v_lshlrev_b32 v33, 4, v3", f"v_add_u32 v33, {A_ST}, v33",
                "ds_read_b32 v6, v32", "ds_read_b32 v7, v32 offset:64", "ds_read_b128 v[16:19], v33", "ds_read_b128 v[20:23], v33 offset:64")
            k.e("s_mul_i32 s38, s42, 1216", "s_mul_i32 s39, s43, 608", "s_add_u32 s38, s38, s39", "s_add_u32 s38, s38, s41",
                f"s_add_u32 s38, s38, {KV_V}", "s_movk_i32 s39, 304", "v_and_b32 v36, 1, v3", "v_mul_u32_u24 v37, s39, v36",
                "v_lshl_add_u32 v37, v2, 4, v37", "v_lshrrev_b32 v36, 1, v3", "s_movk_i32 s39, 160", "v_mad_u32_u24 v37, v36, s39, v37")
            k.e("s_waitcnt lgkmcnt(0)")
            for t in range(2):
                for i in range(4):
                    k.e(f"v_fma_f32 v{A+4*t+i}, -v{16+i}, v{6+t}, v{A+4*t+i}")
                for i in range(4):
                    k.e(f"v_mul_f32 v{A+4*t+i}, v{20+i}, v{A+4*t+i}")
            for i in range(4):
                k.e(f"v_cvt_pk_bf16_f32 v{40+i}, v{A+2*i}, v{A+2*i+1}")
            k.e("v_mov_b32 v39, 0x3f803f80", "v_cmp_eq_u32 vcc, 8, v2", "v_cndmask_b32 v42, v42, v39, vcc", "v_cndmask_b32 v43, v43, v39, vcc")
            k.e("v_permlane32_swap_b32 v40, v42", "v_permlane32_swap_b32 v41, v43")
            k.e(ex(0x01c001c0ffffffff), "buffer_store_dwordx4 v[40:43], v37, s[16:19], s38 offen sc1", ex(-1), "v_mov_b32 v45, 0")
    k.label("a_kv_pub")
    sta(k, 5)
    lds_wait(k, LDS_NON, 1, "non")
    get_nonce(k)
    k.e("v_mov_b32 v44, s66", "v_mov_b32 v12, 0", "s_waitcnt vmcnt(0)")
    sta(k, 6)
    k.e(ex(1), "buffer_store_dwordx2 v[44:45], v12, s[16:19], s49 offen sc1", ex(-1))
    k.e("s_waitcnt vmcnt(0)")
    lds_signal(k, LDS_KVS)
    sta(k, 7)
    sta(k, 8)


def a_swave(k):
    k.e("s_setprio 3")
    k.e("s_cmp_eq_u32 s30, 7", "s_cbranch_scc1 a_s_7")
    a_wkv_dma(k)
    k.e("s_barrier", "s_branch a_s_c")
    k.label("a_s_7")
    k.e("s_mul_i32 s34, s47, 1536", "v_min_u32 v12, 11, v1", "v_lshlrev_b32 v12, 7, v12", "v_add_u32 v12, s34, v12",
        f"v_min_u32 v12, CODE_BYTES - 4, v12", "global_load_dword v18, v12, s[62:63]")
    srd(k, 56, 74, 256)
    k.e("v_mov_b32 v10, 0")
    k.e("v_min_u32 v12, 38, v1", "v_lshlrev_b32 v12, 2, v12", f"v_add_u32 v12, {LDS_RDY}, v12", "v_mov_b32 v13, 0",
        "ds_write_b32 v12, v13", "v_lshlrev_b32 v12, 2, v1", f"v_add_u32 v12, {A_SQ}, v12", "ds_write_b32 v12, v13", "ds_write_b32 v12, v13 offset:64",
        "s_waitcnt lgkmcnt(0)")
    if os.environ.get("TOUCH", "0") == "1":
        k.e("buffer_load_dword v18, v10, s[56:59], 0 offen sc1", f"s_mov_b32 s34, {FK}", "buffer_load_dword v19, v10, s[16:19], s34 offen sc1",
            f"s_mov_b32 s34, {WS_KV}", "buffer_load_dword v20, v10, s[16:19], s34 offen sc1")
    k.e("s_barrier")
    sta(k, 4)
    sta(k, 5)
    sta(k, 6)
    sta(k, 7)
    sta(k, 8)
    k.e(f"s_mov_b32 s3, {SPIN}")
    k.label("a_s_np")
    k.e("s_sleep 4", "buffer_load_dwordx2 v[14:15], v10, s[56:59], 0 offen sc1", "s_sleep 4", "buffer_load_dwordx2 v[16:17], v10, s[56:59], 0 offen sc1",
        "s_waitcnt vmcnt(1)", "v_readfirstlane_b32 s39, v14", "s_cmp_lg_u32 s39, 0", "s_cbranch_scc1 a_s_nd",
        "s_waitcnt vmcnt(0)", "v_mov_b32 v14, v16", "v_mov_b32 v15, v17", "v_readfirstlane_b32 s39, v16", "s_cmp_lg_u32 s39, 0", "s_cbranch_scc1 a_s_nd",
        "s_sub_u32 s3, s3, 1", "s_cbranch_scc0 a_s_np")
    k.label("a_s_nd")
    k.e(f"v_mov_b32 v12, {LDS_NON}", "ds_write_b64 v12, v[14:15]")
    k.label("a_s_c")
    for i in range(4):
        k.e(f"v_mov_b32 v{QONES+i}, 0x3f803f80")
    for r in range(QACC, QACC + 20):
        k.e(f"v_mov_b32 v{r}, 0")
    k.e("s_cmp_lg_u32 s30, 5", "s_cbranch_scc1 a_s_q")
    tr_addr(k, A_WKV, None, 48)
    k.e("s_waitcnt vmcnt(0)")
    lds_signal(k, LDS_KVI)
    lds_signal(k, LDS_WKI)
    lds_wait(k, LDS_WKI, 3, "wki")
    k.stamp(1)
    wkv_rd(k, 0, QX0)
    wkv_rd(k, 1, QX0 + 8)
    for s in range(18):
        if s + 2 < 18:
            wkv_rd(k, s + 2, QX0 + 8 * ((s + 2) % 3))
        k.e(f"s_waitcnt lgkmcnt({min(8, 4*(17-s))})")
        for t in range(2):
            a = r4(QACC + 4 * t)
            k.e(f"v_mfma_f32_16x16x32_bf16 {a}, {r4(QONES)}, {r4(QX0+8*(s%3)+4*t)}, {a}")
    k.e("v_lshlrev_b32 v32, 2, v2", f"v_add_u32 v32, {A_SKV}, v32", f"ds_write_b32 v32, v{QACC}", f"ds_write_b32 v32, v{QACC+4} offset:64",
        "s_waitcnt lgkmcnt(0)")
    lds_signal(k, LDS_KVS)
    k.e("s_branch a_s_done")
    k.label("a_s_q")
    k.e("s_cmp_eq_u32 s30, 7", "s_cbranch_scc1 a_s_nx", "s_waitcnt vmcnt(0)")
    lds_signal(k, LDS_KVI)
    lds_signal(k, LDS_WKI)
    if os.environ.get("DRY", "0") == "1":
        k.stamp(1)
        tr_addr(k, A_WQ0, A_WQ1, 160)
        k.e("s_setprio 0", "s_branch a_q_gemm")
    k.label("a_s_nx")
    k.stamp(1)
    k.label("a_s_done")
    k.e("s_waitcnt vmcnt(0)")


def a_helper(k):
    k.e("; ==== helper waves: wq loader, then K/V gather")
    k.e("s_setprio 1", "s_sub_u32 s31, s30, 8")
    srd(k, 20, 68, WQB)
    if os.environ.get("PFQ", "1") == "1":
        k.e("s_cmp_lg_u32 s31, 0", "s_cbranch_scc1 a_h_nopf",
            "v_min_u32 v12, 20, v1", "v_lshlrev_b32 v12, 7, v12", "s_mul_i32 s34, s2, 2592", "s_and_b32 s34, s34, 0xffffff80",
            "buffer_load_dword v21, v12, s[20:23], s34 offen", ("buffer_load_dword v21, v12, s[20:23], s34 offen offset:64" if os.environ.get("PF64") else ""))
        k.label("a_h_nopf")
    k.e("s_movk_i32 s40, 6554", "s_movk_i32 s41, 1152")
    for i in range(5):
        dma_slot_calc(k, i, 32, 33, 34, 35)
        k.e("v_min_u32 v34, 8, v34", f"v_mul_u32_u24 v{16+i}, s41, v35", f"v_lshl_add_u32 v{16+i}, v34, 4, v{16+i}")
    k.e("s_add_u32 s42, s31, s48", "s_mul_i32 s32, s29, 144", "s_mul_i32 s43, s31, 5120")

    def wdma(base):
        k.e("s_sub_u32 s36, s42, 18", "s_min_u32 s42, s42, s36", "s_mul_i32 s36, s42, 36864", "s_add_u32 s36, s36, s32")
        for i in range(5):
            k.e(f"s_add_u32 m0, s43, {base + i*1024}", "s_nop 0", f"buffer_load_dwordx4 v{16+i}, s[20:23], s36 offen lds")
        k.e("s_add_u32 s42, s42, 4")
    k.e("s_barrier")
    wdma(A_WQ0)
    wdma(A_WQ0 + 20480)
    k.e("s_waitcnt vmcnt(0)")
    lds_signal(k, LDS_WQC)
    sta(k, 3)
    lds_wait(k, LDS_XC, 4, "xc")
    k.e("s_setprio 3")
    k.stamp(1)
    wdma(A_WQ1)
    wdma(A_WQ1 + 20480)
    k.e("s_cmp_ge_u32 s31, 2", "s_cbranch_scc1 a_h_skip")
    wdma(A_WQ1 + 40960)
    k.label("a_h_skip")
    for ci, n in ((1, 5), (2, 0)):
        k.e(f"s_waitcnt vmcnt({n})")
        lds_signal(k, LDS_WQC + 4 * ci)
        sta(k, 3 + ci)
    lds_wait(k, LDS_KVS, 3, "pub")
    get_nonce(k)
    sta(k, 6)
    k.e("v_lshrrev_b32 v10, 3, v1", "v_lshlrev_b32 v10, 7, v10", "v_and_b32 v9, 7, v1", "v_lshl_add_u32 v10, v9, 3, v10",
        "s_lshl_b32 s34, s31, 10", f"s_add_u32 s35, s34, {FK}")
    poll(k, 10, 35, 14, "k", sleep=int(os.environ.get("KSL", "10")), lo_only=True, first=int(os.environ.get("KF", "0")))
    sta(k, 7)
    k.e(f"v_mov_b32 v12, {LDS_KMX}", "ds_max_u32 v12, v15")
    lds_signal(k, LDS_KVR)
    k.e("s_lshr_b32 s35, s2, 3", "s_add_u32 s35, s35, s2", "s_and_b32 s35, s35, 15", f"s_mul_i32 s35, s35, {GRP}", "s_add_u32 s35, s35, s34",
        f"v_add_u32 v10, {WS_KV}, v11")
    lds_wait(k, LDS_KVR, 4, "kvr")
    k.e("s_or_b32 s36, s2, s31", "s_cmp_lg_u32 s36, 0", "s_cbranch_scc1 a_h_noclr")
    srd(k, 56, 74, 256)
    k.e("v_mov_b32 v12, 0", "v_mov_b32 v13, 0", ex(1), "buffer_store_dwordx2 v[12:13], v12, s[56:59], 0 offen sc1", ex(-1))
    k.label("a_h_noclr")
    sta(k, 8)
    kv_dma(k, 0, 7)


def gen_one(name):
    k = Kernel(name, vgprs=168)
    k.e("s_getpc_b64 s[62:63]")
    k.label("mega_pc")
    k.e("s_cmp_ge_u32 s2, 256", "s_cbranch_scc1 mega_end")
    k.e("s_memrealtime s[60:61]")
    k.e("s_load_dwordx2 s[10:11], s[0:1], 0", "s_load_dwordx4 s[68:71], s[0:1], 8", "s_load_dwordx2 s[72:73], s[0:1], 24",
        "s_load_dwordx2 s[8:9], s[0:1], 32", "s_load_dwordx4 s[4:7], s[0:1], 48", "s_load_dwordx2 s[14:15], s[0:1], 64",
        "s_load_dwordx2 s[74:75], s[0:1], 72", "s_load_dwordx2 s[12:13], s[0:1], 80")
    k.stamp(0)
    k.e("v_and_b32 v1, 63, v0", "v_and_b32 v2, 15, v0", "v_bfe_u32 v3, v0, 4, 2", "v_lshrrev_b32 v7, 6, v0",
        "v_lshlrev_b32 v11, 4, v1", "v_readfirstlane_b32 s30, v7")
    k.e("s_and_b32 s46, s2, 7", "s_lshr_b32 s47, s2, 3", "s_and_b32 s28, s47, 24", "s_add_u32 s28, s28, s46", "s_and_b32 s29, s47, 7",
        "s_lshr_b32 s48, s47, 3", "s_lshl_b32 s48, s48, 1", "s_add_u32 s48, s48, s29", "s_sub_u32 s34, s48, 9", "s_min_u32 s48, s48, s34",
        "s_lshl_b32 s48, s48, 1")
    k.e("s_xor_b32 s34, s30, 7", "s_or_b32 s34, s34, s2", "s_waitcnt lgkmcnt(0)", "s_cbranch_scc1 a_s_nn")
    k.e("s_or_b32 s60, s60, 1", "v_mov_b32 v14, s60", "v_mov_b32 v15, s61", "v_mov_b32 v10, 0", ex(1),
        "global_store_dwordx2 v10, v[14:15], s[74:75] sc1", ex(-1))
    k.label("a_s_nn")
    srd(k, 16, 12, WS_END)
    srd(k, 20, 10, XB)
    srd(k, 24, 8, WQB)
    k.e("s_cmp_ge_u32 s30, 8", "s_cbranch_scc1 mega_helper")
    k.e("s_cmp_ge_u32 s30, 5", "s_cbranch_scc1 a_sw", "s_cmp_eq_u32 s30, 4", "s_cbranch_scc1 a_kvw")
    a_qwave(k)
    k.e("s_branch a_done")
    k.label("a_kvw")
    a_kvwave(k)
    k.e("s_branch a_s_done")
    k.label("a_sw")
    a_swave(k)
    k.label("a_done")
    k.e("s_setprio 3")
    k.e("s_mov_b32 s52, 0")
    attention(k)
    k.e("s_cmp_lg_u32 s52, 0", "s_cbranch_scc1 mega_ringed")
    ffn_ring_start(k)
    k.label("mega_ringed")
    lds_wait(k, LDS_ORD, 4, "ord2", sleep=4)
    if os.environ.get("PF1", "1") == "1":
        k.e("s_cmp_ge_u32 s30, 2", "s_cbranch_scc1 mega_nopf1",
            "s_mul_i32 s36, s30, 54", "v_min_u32 v12, 53, v1", "v_add_u32 v12, s36, v12", "s_movk_i32 s36, 7282", "v_mul_u32_u24 v13, s36, v12",
            "v_lshrrev_b32 v13, 16, v13", "v_mul_u32_u24 v14, 9, v13", "v_sub_u32 v12, v12, v14", "v_lshlrev_b32 v12, 7, v12",
            f"s_mov_b32 s36, {STREAM}", "v_mad_u32_u24 v12, v13, s36, v12",
            f"s_mul_i32 s36, s46, {1296*1024}", "s_mul_i32 s37, s47, 1152", "s_add_u32 s36, s36, s37", f"s_add_u32 s36, s36, {WS_W + 6*T*1024}",
            "buffer_load_dword v0, v12, s[16:19], s36 offen sc1", ("buffer_load_dword v0, v12, s[16:19], s36 offen offset:64 sc1" if os.environ.get("PF64") else ""))
        k.label("mega_nopf1")
    for t in range(T):
        k.e(wload(D - 1, t))
    k.e("s_waitcnt vmcnt(0)")
    stb(k, 4)
    k.e("s_branch ffn_join")
    k.label("mega_helper")
    a_helper(k)
    helper_pack(k)
    oproj(k)
    ffn(k)
    k.label("mega_end")
    k.e("s_endpgm", ".set CODE_BYTES, mega_end - mega_pc")
    return k
```

```python
import os
from asmlib import Kernel
from layout import *
from k_small import f2u, srd, ex, reduce_g_add, dma_slot_calc

S0, S1, OA, P, KF, V0, V1, K2F, Q, Q2E, Q2O = 16, 32, 48, 64, 72, 76, 80, 84, 88, 92, 94
T0 = 96
PIN, POUT, PS = 48, 96, 144
LDS_OST = 151808
LDS_RES = 92160
LDS_WO = 0
LDS_H = 73728
LDS_S = 161024
LDS_RDY = 163328
LDS_CNT = 163344
LDS_WQC = 163392
LDS_KVS = LDS_WQC + 12
LDS_KVR = LDS_WQC + 16
LDS_KMX = LDS_WQC + 20
LDS_KVI = LDS_WQC + 24
LDS_XC = LDS_WQC + 28
LDS_WKI = LDS_WQC + 32
LDS_REL = LDS_WQC + 36
LDS_NON = LDS_WQC + 40
LDS_ORD = LDS_WQC + 48
LDS_IMG = LDS_WQC + 52
LDS_MUS = LDS_WQC + 56
LDS_SRD = LDS_WQC + 60
LDS_QRD = LDS_WQC + 64
LDS_WDN = LDS_WQC + 72
LDS_IM0 = LDS_WQC + 76
LDS_HRD = LDS_WQC + 80
LDS_MU = LDS_OST
LDS_MEGA = 163488
A_WKV = 0
A_WQ0 = 29696
A_X = 70656
A_WQ1 = A_X + 18432
A_SQ = LDS_S
A_SKV = LDS_S + 320
A_ST = LDS_S + 448
QX0, QACC, QWF, QONES = 48, 120, 140, 36
QACS = [16, 20, 24, 40, 44]
OX0, OACC, OWF = 96, 48, 68
XB0, ACC, WR = 16, 48, 96
D = 6
T = 3
STREAM = 36 * T * 1024
SPIN = 1 << 16
PSX, PSY = 73728, 589824
RX = RST = 0
if os.environ.get("CMP", "0") == "1":
    _d = -WS_FL
    F1, F2, FP, F3, FK = F1 + _d, F2 + _d, FP + _d, F3 + _d, FK + _d
    WS_KV, WS_SP, WS_W = 0x10000, 0x40000, 0x60000
    _R0, _RS = 0xA80000, 10 * 73728 + 4096
    WS_O, WS_H, WS_P, WS_ST = _R0, _R0 + 73728, _R0 + 2 * 73728, _R0 + 10 * 73728
    PSY, RX, RST = _RS, _RS - 73728, _RS - 4096
STA = bool(os.environ.get("STA"))


def sta(k, i):
    if STA:
        k.stamp(i)


STP = bool(os.environ.get("STP"))


def stb(k, i):
    if not STA and not STP and not (STT and i < 7) and not (STO and i > 6):
        k.stamp(i)


STT = bool(os.environ.get("STT"))


def stt(k, i):
    if STT:
        k.stamp(i)


STO = bool(os.environ.get("STO"))


def sto(k, i):
    if STO:
        k.stamp(i)


def stp(k, i):
    if STP:
        k.stamp(i)
WAUX = os.environ.get("WAUX", "sc1")


def r4(b):
    return f"v[{b}:{b+3}]"


def r16(b):
    return f"v[{b}:{b+15}]"


def poll(k, vaddr, soff, vtmp, tag, sleep=2, lo_only=False, first=0):
    lab, done = f"mega_poll_{tag}", f"mega_polld_{tag}"
    k.e(f"s_mov_b32 s3, {SPIN}")
    if first:
        k.e(f"s_sleep {first}")
    k.label(lab)
    k.e(f"s_sleep {sleep}", f"buffer_load_dwordx2 v[{vtmp}:{vtmp+1}], v{vaddr}, s[16:19], s{soff} offen sc1", "s_waitcnt vmcnt(0)")
    if lo_only:
        k.e(f"v_cmp_eq_u32 vcc, s66, v{vtmp}")
    else:
        k.e(f"v_cmp_eq_u64 vcc, s[66:67], v[{vtmp}:{vtmp+1}]")
    k.e("s_cmp_eq_u64 vcc, -1", f"s_cbranch_scc1 {done}", "s_sub_u32 s3, s3, 1", f"s_cbranch_scc0 {lab}")
    k.label(done)


def set_flag(k, soff):
    k.e("v_mov_b32 v12, 0", "v_mov_b32 v14, s66", "v_mov_b32 v15, s67", ex(1),
        f"buffer_store_dwordx2 v[14:15], v12, s[16:19], s{soff} offen sc1", ex(-1))


def lds_signal(k, addr, va=12, vb=13):
    k.e(f"v_mov_b32 v{va}, {addr}", f"v_mov_b32 v{vb}, 1", ex(1), f"ds_add_u32 v{va}, v{vb}", ex(-1))


def lds_wait(k, addr, n, tag, va=12, vb=13, sleep=int(os.environ.get("LWS", "1"))):
    lab, done = f"mega_lw_{tag}", f"mega_lwd_{tag}"
    k.e(f"v_mov_b32 v{va}, {addr}", f"s_mov_b32 s3, {SPIN*8}")
    k.label(lab)
    k.e(f"ds_read_b32 v{vb}, v{va}", "s_waitcnt lgkmcnt(0)", f"v_readfirstlane_b32 s39, v{vb}", f"s_cmp_ge_u32 s39, {n}",
        f"s_cbranch_scc1 {done}", f"s_sleep {sleep}", "s_sub_u32 s3, s3, 1", f"s_cbranch_scc0 {lab}")
    k.label(done)


def arrive(k, cnt, n, soff, tag, cnt_sgpr=None):
    if cnt_sgpr is None:
        k.e(f"v_mov_b32 v12, {LDS_CNT + 4*cnt}")
    else:
        k.e(f"v_mov_b32 v12, s{cnt_sgpr}")
    k.e("v_mov_b32 v13, 1", ex(1), "ds_add_rtn_u32 v14, v12, v13", ex(-1), "s_waitcnt lgkmcnt(0)",
        "v_readfirstlane_b32 s3, v14", f"s_cmp_lg_u32 s3, {n-1}", f"s_cbranch_scc1 mega_arr_{tag}")
    set_flag(k, soff)
    k.label(f"mega_arr_{tag}")


def publish_o(k, tag, pre=None):
    k.e("s_and_b32 s34, s30, 3", "s_lshr_b32 s35, s30, 2", "s_mul_i32 s36, s34, 2304", "s_mul_i32 s37, s35, 768",
        "s_add_u32 s36, s36, s37", f"s_add_u32 s36, s36, {LDS_OST}", "v_add_u32 v12, s36, v11",
        f"ds_read_b128 {r4(4)}, v12")
    k.e("s_lshl_b32 s36, s28, 2", "s_add_u32 s36, s36, s34", "s_mul_i32 s38, s36, 18432", "s_mul_i32 s39, s29, 2304",
        "s_add_u32 s38, s38, s39", "s_add_u32 s38, s38, s37", f"s_add_u32 s38, s38, {WS_O}", f"s_mul_i32 s39, s28, {RX}", "s_add_u32 s38, s38, s39")
    k.e("s_lshl_b32 s36, s28, 7", "s_lshl_b32 s39, s29, 3", "s_add_u32 s36, s36, s39", f"s_add_u32 s36, s36, {F1}")
    k.e("s_waitcnt lgkmcnt(0)", ex((1 << 48) - 1), f"buffer_store_dwordx4 {r4(4)}, v11, s[16:19], s38 offen sc1", ex(-1),
        "s_waitcnt vmcnt(0)")
    arrive(k, 1, 12, 36, tag)
    if pre:
        pre(k)


def attention(k):
    k.e("; ==== attention (waves 0..7; one (head, 32-query) unit each). S^T = K.Q^T - M comes straight out of the MFMAs:")
    k.e("v_and_b32 v2, 31, v1", "v_lshrrev_b32 v3, 5, v1")
    k.e("s_lshr_b32 s35, s30, 2", "s_mul_i32 s35, s35, 4608", f"s_add_u32 s35, s35, {LDS_OST}", "s_movk_i32 s36, 2304",
        "v_lshrrev_b32 v8, 4, v2", "v_mul_u32_u24 v8, s36, v8", "v_and_b32 v9, 15, v2", "v_lshl_add_u32 v8, v9, 4, v8",
        "v_add_u32 v8, s35, v8", "v_lshl_add_u32 v9, v3, 8, v8", "s_and_b32 s37, s30, 3", "s_mul_i32 s37, s37, 18")
    for i in range(4):
        k.e(f"s_add_u32 s38, s37, {2*i}", "s_lshr_b32 s39, s38, 3", "s_lshl_b32 s39, s39, 8", "s_and_b32 s38, s38, 7",
            "s_lshl_b32 s38, s38, 1", "s_add_u32 s38, s38, s39", f"v_add_u32 v{Q+i}, s38, v9")
        if i == 0:
            k.e(f"v_add_u32 v{T0}, s38, v8")
    k.e(f"v_mov_b32 v{T0+2}, {LDS_KMX}")
    k.e("v_mov_b32 v12, v11")
    k.e("v_cmp_eq_u32 vcc, 28, v2", "v_cndmask_b32 v13, v2, 18, vcc",
        "v_cmp_lt_u32 vcc, 18, v13", "v_mov_b32 v14, 0x10000", "v_cndmask_b32 v13, v13, v14, vcc",
        "s_movk_i32 s40, 304", "v_mul_u32_u24 v14, s40, v3", "v_lshl_add_u32 v13, v13, 4, v14", f"v_add_u32 v13, {KV_V}, v13")
    k.e("v_min_u32 v14, 32, v1", "v_lshlrev_b32 v14, 4, v14", f"v_add_u32 v14, {KV_K2}, v14")
    k.e("v_cmp_eq_u32 s[44:45], 1, v3")
    k.e("s_lshr_b32 s35, s30, 2", "s_lshl_b32 s35, s35, 2", f"s_add_u32 s35, s35, {LDS_QRD}")
    def zero_init():
        for r in list(range(OA, OA + 16)) + list(range(P, P + 8)) + list(range(V1, V1 + 4)):
            k.e(f"v_mov_b32 v{r}, 0")

    def setm():
        k.e(f"v_xor_b32 v{T0+2}, 0x80000000, v{T0+1}",
            f"v_and_b32 v{T0+3}, 0xffff0000, v{T0+2}", f"v_sub_f32 v{T0+2}, v{T0+2}, v{T0+3}",
            f"v_and_b32 v{T0+4}, 0xffff0000, v{T0+2}", f"v_sub_f32 v{T0+2}, v{T0+2}, v{T0+4}",
            f"v_lshrrev_b32 v{T0+3}, 16, v{T0+3}", f"v_or_b32 v{T0+3}, v{T0+3}, v{T0+4}",
            f"v_lshrrev_b32 v{T0+2}, 16, v{T0+2}")
        k.e(f"v_cndmask_b32 v{Q2E}, v{T0}, v{T0+3}, s[44:45]", f"v_cndmask_b32 v{Q2E+1}, 0, v{T0+2}, s[44:45]",
            f"v_cndmask_b32 v{Q2O}, 0, v{T0+3}, s[44:45]", f"v_cndmask_b32 v{Q2O+1}, v{T0}, v{T0+2}, s[44:45]")
    zero_init()
    k.e("v_mov_b32 v4, v12", "v_mov_b32 v5, v13", "v_mov_b32 v6, v14", "s_mov_b32 s32, 0", "s_mov_b32 s31, 2")
    sta(k, 4)
    lds_wait(k, LDS_IM0, 4, "im0", va=T0 + 6, vb=T0 + 7)
    k.e(f"ds_read_b32 v{T0+2}, v{T0+2}", f"v_mov_b32 v{T0+6}, {LDS_NON}", f"ds_read_b64 v[{T0+8}:{T0+9}], v{T0+6}",
        f"ds_read_b128 {r4(KF)}, v4", f"ds_read_b128 {r4(K2F)}, v6", f"ds_read_b128 {r4(V0)}, v5")
    sta(k, 5)
    lds_wait(k, "s35", 2, "qrd", va=T0 + 6, vb=T0 + 7)
    sta(k, 6)
    for i in range(4):
        k.e(f"ds_read_b32 v{Q+i}, v{Q+i}")
    k.e(f"ds_read_b32 v{T0}, v{T0} offset:512", f"v_readfirstlane_b32 s66, v{T0+8}", f"v_readfirstlane_b32 s67, v{T0+9}",
        f"v_mul_f32 v{T0+2}, {hex(f2u(1.02*1.02))}, v{T0+2}", f"v_mov_b32 v{T0+1}, 0", "s_waitcnt lgkmcnt(0)")
    k.e(f"v_cndmask_b32 v{T0}, v{T0}, 0, s[44:45]")
    for r in (Q, Q + 1, Q + 2, Q + 3, T0):
        k.e(f"v_dot2c_f32_bf16 v{T0+1}, v{r}, v{r}")
    k.e(f"v_mfma_f32_32x32x16_bf16 {r16(S0)}, {r4(KF)}, {r4(Q)}, 0", f"ds_read_b128 {r4(KF)}, v4 offset:1024")
    k.e(f"v_mov_b32 v{T0+4}, v{T0+1}", f"v_permlane32_swap_b32 v{T0+1}, v{T0+4}", f"v_add_f32 v{T0+1}, v{T0+1}, v{T0+4}")
    k.e(f"v_mul_f32 v{T0+1}, v{T0+1}, v{T0+2}", f"v_sqrt_f32 v{T0+1}, v{T0+1}")
    setm()
    k.e("s_setprio 2", "s_branch attn_go")
    k.label("attn_setm")
    setm()
    k.e("v_mov_b32 v4, v12", "v_mov_b32 v5, v13", "v_mov_b32 v6, v14")
    k.e("s_cmp_eq_u32 s32, 10", "s_cbranch_scc1 attn_maxpass")
    zero_init()
    k.e("s_mov_b32 s31, 16")
    k.e(f"ds_read_b128 {r4(KF)}, v4", f"ds_read_b128 {r4(K2F)}, v6", f"ds_read_b128 {r4(V0)}, v5", "s_waitcnt lgkmcnt(0)")
    k.e(f"v_mfma_f32_32x32x16_bf16 {r16(S0)}, {r4(KF)}, {r4(Q)}, 0", f"ds_read_b128 {r4(KF)}, v4 offset:1024")
    k.label("attn_go")
    k.e(f"v_mfma_f32_32x32x8_bf16 {r16(S0)}, v[{K2F}:{K2F+1}], v[{Q2E}:{Q2E+1}], {r16(S0)}")
    k.stamp(2)
    k.e("s_waitcnt lgkmcnt(0)", "s_nop 7", "s_nop 3")
    k.e(".p2align 6")
    k.label("attn_loop")
    for tau in range(4):
        cur, nxt = (S0, S1) if tau % 2 == 0 else (S1, S0)
        t1 = (tau + 1) % 4
        koff = (tau + 2) * 1024 if tau < 2 else GRP + (tau - 2) * 1024
        v0off = (tau + 1) * 1216 if tau < 3 else GRP

        def ex_(a, b):
            for i in range(a, b):
                k.e(f"v_exp_f32 v{cur+i}, v{cur+i}")

        def cv(a, b):
            for i in range(a, b):
                k.e(f"v_cvt_pk_bf16_f32 v{P+i}, v{cur+2*i}, v{cur+2*i+1}")
        e1, e2, e3, e4 = eval(os.environ.get("EXS", "(3, 6, 9, 12)"))
        k.e("s_waitcnt lgkmcnt(2)")
        k.e(f"v_mfma_f32_32x32x16_bf16 {r16(nxt)}, {r4(KF)}, {r4(Q)}, 0")
        k.e(f"ds_read_b128 {r4(KF)}, v4 offset:{koff}")
        ex_(0, e1)
        k.e("s_waitcnt lgkmcnt(2)")
        k.e(f"v_mfma_f32_32x32x16_bf16 {r16(OA)}, {r4(V1)}, {r4(P+4)}, {r16(OA)}")
        k.e(f"ds_read_b128 {r4(V1)}, v5 offset:{tau*1216+608}")
        ex_(e1, e2)
        q2 = Q2E if t1 % 2 == 0 else Q2O
        kk = K2F + 2 * (t1 // 2)
        k.e(f"v_mfma_f32_32x32x8_bf16 {r16(nxt)}, v[{kk}:{kk+1}], v[{q2}:{q2+1}], {r16(nxt)}")
        if tau == 2:
            k.e(f"ds_read_b128 {r4(K2F)}, v6 offset:{GRP}")
        ex_(e2, e3)
        cv(0, 4)
        ex_(e3, e4)
        k.e("s_waitcnt lgkmcnt(2)")
        k.e(f"v_mfma_f32_32x32x16_bf16 {r16(OA)}, {r4(V0)}, {r4(P)}, {r16(OA)}")
        k.e(f"ds_read_b128 {r4(V0)}, v5 offset:{v0off}")
        ex_(e4, 16)
        if tau == 3:
            k.e(f"v_add_u32 v4, {GRP}, v4", f"v_add_u32 v5, {GRP}, v5", f"v_add_u32 v6, {GRP}, v6")
            k.e("s_sub_u32 s31, s31, 1", "s_cmp_lg_u32 s31, 0")
        cv(4, 8)
    k.e("s_cbranch_scc1 attn_loop")
    k.e("s_cmp_ge_u32 s32, 4", "s_cbranch_scc1 attn_tail")
    k.e("s_add_u32 s32, s32, 1")
    k.e("s_cmp_eq_u32 s32, 2", "s_cbranch_scc1 attn_ph2", "s_cmp_eq_u32 s32, 3", "s_cbranch_scc1 attn_ph3",
        "s_cmp_eq_u32 s32, 4", "s_cbranch_scc1 attn_ph4")
    lds_wait(k, LDS_IMG, 4, "img", va=T0 + 6, vb=T0 + 7)
    k.e("s_mov_b32 s31, 9", "s_branch attn_loop")
    for ph, cnt, pr in eval(os.environ.get("PHS", "((2, 2, 1), (3, 2, 1), (4, 1, 0))")):
        k.label(f"attn_ph{ph}")
        k.e(f"s_setprio {pr}", f"s_mov_b32 s31, {cnt}")
        if ph == 2:
            k.e(f"v_cndmask_b32 v{T0+5}, v{OA+10}, v{OA+12}, s[44:45]", f"v_cmp_le_f32 vcc, {hex(f2u(2.0**-40))}, v{T0+5}",
                "s_cmp_eq_u64 vcc, -1", "s_cselect_b32 s34, 1, 0x101", f"v_mov_b32 v{T0+6}, {LDS_REL}", f"v_mov_b32 v{T0+7}, s34",
                ex(1), f"ds_add_u32 v{T0+6}, v{T0+7}", ex(-1))
        if ph == 4:
            k.e(f"v_mov_b32 v{T0+6}, {LDS_RDY}", f"ds_read_b32 v{T0+6}, v{T0+6}", "s_waitcnt lgkmcnt(0)",
                f"v_readfirstlane_b32 s52, v{T0+6}", "s_cmp_eq_u32 s52, 0", "s_cbranch_scc1 attn_loop")
            ffn_ring_start(k)
        k.e("s_branch attn_loop")
    k.label("attn_maxpass")
    k.e(f"v_mov_b32 v{T0+1}, 0xff800000", "s_mov_b32 s31, 16")
    k.label("attn_maxloop")
    k.e(f"ds_read_b128 {r4(K2F)}, v6")
    for tau in range(4):
        q2 = Q2E if tau % 2 == 0 else Q2O
        kk = K2F + 2 * (tau // 2)
        k.e(f"ds_read_b128 {r4(KF)}, v4 offset:{tau*1024}", "s_waitcnt lgkmcnt(0)")
        k.e(f"v_mfma_f32_32x32x16_bf16 {r16(S0)}, {r4(KF)}, {r4(Q)}, 0",
            f"v_mfma_f32_32x32x8_bf16 {r16(S0)}, v[{kk}:{kk+1}], v[{q2}:{q2+1}], {r16(S0)}")
        for i in range(8):
            k.e(f"v_max3_f32 v{T0+1}, v{S0+2*i}, v{S0+2*i+1}, v{T0+1}")
    k.e(f"v_add_u32 v4, {GRP}, v4", f"v_add_u32 v6, {GRP}, v6", "s_sub_u32 s31, s31, 1", "s_cmp_lg_u32 s31, 0",
        "s_cbranch_scc1 attn_maxloop")
    k.e(f"v_mov_b32 v{T0+2}, v{T0+1}", f"v_permlane32_swap_b32 v{T0+1}, v{T0+2}", f"v_max_f32 v{T0+1}, v{T0+1}, v{T0+2}")
    k.e("s_mov_b32 s32, 11", "s_branch attn_setm")
    k.label("attn_tail")
    k.e("s_waitcnt lgkmcnt(0)")
    k.e(f"v_mfma_f32_32x32x16_bf16 {r16(OA)}, {r4(V1)}, {r4(P+4)}, {r16(OA)}")
    k.e("s_and_b32 s34, s30, 3", "s_mul_i32 s34, s34, 18", "s_lshr_b32 s35, s30, 2", "s_mul_i32 s35, s35, 4608",
        f"s_add_u32 s35, s35, {LDS_OST}", "s_movk_i32 s36, 2304",
        f"v_lshrrev_b32 v{T0+9}, 4, v2", f"v_mul_u32_u24 v{T0+9}, s36, v{T0+9}", f"v_and_b32 v{T0+8}, 15, v2",
        f"v_lshl_add_u32 v{T0+9}, v{T0+8}, 4, v{T0+9}", f"v_add_u32 v{T0+9}, s35, v{T0+9}")
    k.e(f"v_lshl_add_u32 v{T0+6}, v3, 2, s34", f"v_add_u32 v{T0+7}, 2, v{T0+6}")
    for r in (T0 + 6, T0 + 7):
        k.e(f"v_lshrrev_b32 v{T0+8}, 3, v{r}", f"v_and_b32 v{r}, 7, v{r}", f"v_lshl_add_u32 v{r}, v{r}, 1, v{T0+9}",
            f"v_lshl_add_u32 v{r}, v{T0+8}, 8, v{r}")
    k.e(f"v_cndmask_b32 v{T0+5}, v{OA+10}, v{OA+12}, s[44:45]")
    k.e(f"v_cmp_le_f32 vcc, {hex(f2u(2.0**-40))}, v{T0+5}")
    k.e("s_cmp_eq_u32 s32, 11", "s_cbranch_scc1 attn_fin")
    k.e("s_cmp_eq_u64 vcc, -1", "s_cbranch_scc1 attn_fin")
    k.e("s_mov_b32 s32, 10", f"v_mov_b32 v{T0+1}, 0", "s_branch attn_setm")
    k.label("attn_fin")
    k.e(f"v_rcp_f32 v{T0+5}, v{T0+5}")
    for i in range(10):
        k.e(f"v_mul_f32 v{OA+i}, v{T0+5}, v{OA+i}")
    for i in range(5):
        k.e(f"v_cvt_pk_bf16_f32 v{P+i}, v{OA+2*i}, v{OA+2*i+1}")
    k.e(f"ds_write_b32 v{T0+6}, v{P}", f"ds_write_b32 v{T0+7}, v{P+1}",
        f"ds_write_b32 v{T0+6}, v{P+2} offset:256", f"ds_write_b32 v{T0+7}, v{P+3} offset:256",
        ex(0xffffffff), f"ds_write_b32 v{T0+6}, v{P+4} offset:512", ex(-1))
    k.e("s_waitcnt lgkmcnt(0)", "s_barrier")
    stb(k, 3)
    publish_o(k, "oa")


def kv_dma(k, a, b):
    for i in range(a, b):
        k.e(f"s_add_u32 m0, s34, {i*4096}", f"s_sub_u32 s36, s35, {IMG - 4096}", "buffer_load_dwordx4 v10, s[16:19], s35 offen sc1 lds",
            "s_add_u32 s35, s35, 4096", "s_min_u32 s35, s35, s36")


NB = 7


def roll_gemm(k, steps, rd, mfma, pre=None):
    seq = [(s, t) for s in steps for t in range(5)]
    n = len(seq)
    for i in range(min(NB, n)):
        rd(seq[i][1], seq[i][0], i % NB)
    for i, (s, t) in enumerate(seq):
        ahead = min(NB - 1, n - 1 - i)
        extra = pre(s) if (pre and t == 0) else ""
        k.e(f"s_waitcnt lgkmcnt({2*ahead}){extra}")
        mfma(t, s, i % NB)
        if i + NB < n:
            rd(seq[i + NB][1], seq[i + NB][0], i % NB)


def roll_gemm2(k, steps, rd2, mf2):
    seq = [(s, t) for s in steps for t in range(5)]
    n = len(seq)
    for i in range(min(NB, n)):
        k.e(*rd2(seq[i][1], seq[i][0], i % NB))
    for i, (s, t) in enumerate(seq):
        issued = min(n, NB + max(0, i - 1))
        k.e(f"s_waitcnt lgkmcnt({2*(issued - 1 - i)})")
        m = mf2(t, s, i % NB)
        j = i - 1 + NB
        r = rd2(seq[j][1], seq[j][0], (i - 1) % NB) if (i >= 1 and j < n) else ["", ""]
        k.e(m[0], r[0], m[1], r[1])


def helper_pack(k):
    k.e("; ==== helper waves 8..11: K/V image -> LDS, re-pack W1/W2 slice into MFMA fragment order (+ column sums of W1)")
    def dma(a, b):
        kv_dma(k, a, b)
    k.e("s_waitcnt vmcnt(0)")
    lds_signal(k, LDS_IM0)
    lds_wait(k, LDS_WDN, 4, "wdn")
    dma(7, 37)
    k.e("s_cmp_lg_u32 s31, 0", "s_cbranch_scc1 mega_h_nolast")
    k.e(ex(0xffff))
    dma(37, 38)
    k.e(ex(-1))
    k.label("mega_h_nolast")
    k.e("s_lshl_b32 s34, s31, 6", "v_add_u32 v12, s34, v1", "v_min_u32 v12, 161, v12", "v_lshlrev_b32 v12, 7, v12",
        "s_mul_i32 s34, s47, 20736")
    k.e("s_lshl_b32 s50, s31, 5", "s_add_u32 s50, s50, s47",
        "s_cmp_ge_u32 s50, 54", "s_cselect_b32 s53, 1, 0",
        "s_mul_i32 s51, s53, 54", "s_sub_u32 s51, s50, s51",
        "s_mul_i32 s54, s51, 57", "s_lshr_b32 s54, s54, 10",
        "s_mul_i32 s52, s54, 18", "s_sub_u32 s52, s51, s52",
        "s_cmp_eq_u32 s53, 0",
        "s_cselect_b32 s20, s4, s6", "s_cselect_b32 s21, s5, s7", f"s_mov_b32 s22, {hex(W1B)}", "s_mov_b32 s23, 0x00020000",
        "s_movk_i32 s56, 1152", "s_cselect_b32 s56, 9216, s56",
        "s_movk_i32 s57, 1152", "s_cselect_b32 s57, s57, 663552", "s_mul_i32 s57, s57, s46",
        "s_movk_i32 s58, 128", "s_cselect_b32 s58, 192, s58", "s_mul_i32 s58, s58, s54", "s_mul_i32 s58, s58, s56", "s_add_u32 s57, s57, s58",
        "s_lshl_b32 s58, s52, 6", "s_add_u32 s57, s57, s58")
    k.e("s_cmp_eq_u32 s53, 1", "s_cselect_b32 s58, 2, 1", "s_cselect_b32 s59, -5, 1",
        "s_mul_i32 s58, s58, s56", "s_mul_i32 s59, s59, s56", "s_mul_i32 s60, s56, 25",
        "s_lshl_b32 s55, s54, 6", "s_sub_u32 s55, 256, s55", "s_mul_i32 s55, s55, s53", "s_add_u32 s55, s55, 25", "s_mul_i32 s55, s55, s56")
    k.e("v_lshrrev_b32 v2, 4, v1", "v_lshlrev_b32 v2, 3, v2", "v_mul_u32_u24 v15, s56, v2", "v_and_b32 v3, 15, v1",
        "v_lshl_add_u32 v15, v3, 2, v15", "v_lshlrev_b32 v8, 2, v3",
        "s_mov_b32 s64, 0x05040100", "s_mov_b32 s65, 0x07060302")
    k.e(f"s_mul_i32 s62, s52, {STREAM}", f"s_mul_i32 s63, s52, {2*STREAM}", f"s_sub_u32 s63, s63, {24*STREAM - 2048}",
        "s_cmp_lt_u32 s52, 12", "s_cselect_b32 s62, s62, s63", "s_movk_i32 s61, 1024", f"s_cselect_b32 s61, s61, {STREAM}",
        "s_mul_i32 s63, s53, 3", "s_add_u32 s63, s63, s54", f"s_mul_i32 s63, s63, {6*3072}", "s_add_u32 s62, s62, s63",
        f"s_mul_i32 s63, s46, {1296*1024}", "s_add_u32 s62, s62, s63", f"s_add_u32 s62, s62, {WS_W}",
        "s_add_u32 s61, s61, s62")
    for i in range(4):
        k.e(f"v_mov_b32 v{PS+8+i}, 0x3f803f80")
    k.e("s_waitcnt vmcnt(0)")
    lds_signal(k, LDS_IMG, va=9, vb=10)
    stp(k, 3)
    k.e("buffer_load_dword v13, v12, s[24:27], s34 offen", ("buffer_load_dword v13, v12, s[24:27], s34 offen offset:64" if os.environ.get("PF64") else ""))
    k.e("s_cmp_ge_u32 s50, 108", "s_cbranch_scc1 mega_h_nounit")
    for ss in range(6):
        for jj in range(8):
            k.e(f"buffer_load_dword v{PIN+8*ss+jj}, v15, s[20:23], s57 offen {os.environ.get('PKL', '')}",
                f"s_add_u32 s57, s57, s{(55 if ss == 3 else 60) if jj == 7 else (56 if ss < 4 else (59 if jj == 3 else 58))}")
    stp(k, 4)
    for ss in range(6):
        k.e(f"s_waitcnt vmcnt({40 - 8*ss + 2*ss})")
        if ss in (0, 5):
            stp(k, 5 if ss == 0 else 6)
        for e in range(2):
            for q in range(4):
                k.e(f"v_perm_b32 v{POUT+8*ss+4*e+q}, v{PIN+8*ss+2*q+1}, v{PIN+8*ss+2*q}, s{64+e}")
            k.e(f"buffer_store_dwordx4 {r4(POUT+8*ss+4*e)}, v11, s[16:19], s{62-e} offen sc1", f"s_add_u32 s{62-e}, s{62-e}, 3072")
    stp(k, 7)
    k.e("s_cmp_lg_u32 s53, 0", "s_cbranch_scc1 mega_h_nounit")
    for ss in range(6):
        for e in range(2):
            k.e(f"v_mfma_f32_16x16x32_bf16 {r4(PS+4*e)}, {r4(PS+8)}, {r4(POUT+8*ss+4*e)}, {r4(PS+4*e) if ss else 0}")
    k.e("s_mul_i32 s58, s54, 18432", "s_mul_i32 s59, s46, 2304", "s_add_u32 s58, s58, s59", "s_lshl_b32 s59, s52, 7",
        "s_add_u32 s58, s58, s59", f"s_add_u32 s58, s58, {WS_SP}")
    k.e(ex(0xffff), f"buffer_store_dword v{PS}, v8, s[16:19], s58 offen sc1",
        f"buffer_store_dword v{PS+4}, v8, s[16:19], s58 offen offset:64 sc1", ex(-1))
    k.label("mega_h_nounit")
    k.e("s_waitcnt vmcnt(0)", "s_lshl_b32 s34, s46, 9", f"s_add_u32 s36, s34, {FP}", "s_lshr_b32 s35, s47, 3", "s_lshl_b32 s35, s35, 7",
        "s_add_u32 s34, s36, s35", "s_lshl_b32 s35, s29, 3", "s_add_u32 s34, s34, s35")
    k.stamp(2)
    arrive(k, 0, 4, 34, "p")
    k.e("s_cmp_lg_u32 s31, 3", "s_cbranch_scc1 mega_h_nofp")
    lds_wait(k, LDS_QRD, 2, "qa")
    lds_wait(k, LDS_QRD + 4, 2, "qb")
    k.e("v_bfe_u32 v12, v1, 3, 2", "v_lshlrev_b32 v12, 7, v12", "v_and_b32 v13, 7, v1", "v_lshl_add_u32 v12, v13, 3, v12")
    poll(k, 12, 36, 14, "p", sleep=16)
    k.e("v_add_u32 v13, 128, v1", "v_min_u32 v13, 143, v13", "v_lshlrev_b32 v13, 4, v13",
        "s_mul_i32 s34, s46, 2304", f"s_add_u32 s34, s34, {WS_SP}")
    for i in range(3):
        k.e(f"buffer_load_dwordx4 {r4(PIN+12*i)}, v11, s[16:19], s34 offen sc1", f"buffer_load_dwordx4 {r4(PIN+12*i+4)}, v11, s[16:19], s34 offen offset:1024 sc1",
            f"buffer_load_dwordx4 {r4(PIN+12*i+8)}, v13, s[16:19], s34 offen sc1", "s_add_u32 s34, s34, 18432")
    k.e(f"v_mov_b32 v14, {LDS_RDY}", "v_mov_b32 v15, 1", "ds_write_b32 v14, v15")
    k.e("v_lshlrev_b32 v14, 7, v1", "v_and_b32 v15, 3, v1", "v_lshlrev_b32 v15, 7, v15",
        f"s_mul_i32 s34, s46, {1296*1024}", "s_mul_i32 s35, s47, 41472", "s_add_u32 s34, s34, s35", f"s_add_u32 s34, s34, {WS_W}")
    for i in range(6):
        if os.environ.get("PF64"):
            k.e(f"buffer_load_dword v{POUT+i}, v{14 if i < 5 else 15}, s[16:19], s34 offen offset:64 sc1")
        k.e(f"buffer_load_dword v{POUT+i}, v{14 if i < 5 else 15}, s[16:19], s34 offen sc1", "s_add_u32 s34, s34, 8192")
    k.e(f"v_add_u32 v12, {LDS_S}, v11", f"v_add_u32 v13, {LDS_S}, v13", "s_waitcnt vmcnt(6)")
    for i in range(1, 3):
        for c in range(12):
            k.e(f"v_add_f32 v{PIN+c}, v{PIN+c}, v{PIN+12*i+c}")
    k.e(f"ds_write_b128 v12, {r4(PIN)}", f"ds_write_b128 v12, {r4(PIN+4)} offset:1024", f"ds_write_b128 v13, {r4(PIN+8)}",
        "s_waitcnt lgkmcnt(0)")
    k.label("mega_h_nofp")


def wo_dma(k, tag):
    k.e("s_mul_i32 s32, s29, 144", "s_lshl_b32 s42, s29, 1", "s_add_u32 s42, s42, s31",
        "s_mul_i32 s43, s31, 5120", f"s_add_u32 s43, s43, {LDS_WO}")

    k.e("s_cmp_eq_u32 s31, 3", f"s_cbranch_scc1 mega_o_skip{tag}")
    for grp in range(6):
        k.e("s_sub_u32 s36, s42, 18", "s_min_u32 s42, s42, s36", "s_mul_i32 s36, s42, 36864", "s_add_u32 s36, s36, s32")
        for i in range(5):
            k.e(f"s_add_u32 m0, s43, {grp*3*5120 + i*1024}", "s_nop 0", f"buffer_load_dwordx4 v{16+i}, s[24:27], s36 offen lds")
        k.e("s_add_u32 s42, s42, 3")
    k.label(f"mega_o_skip{tag}")
    srd(k, 56, 10, XB)
    k.e("s_add_u32 s35, s49, s32")
    for i in range(3):
        if i == 2:
            k.e(ex(0xffffffff))
        k.e(f"s_add_u32 m0, s44, {i*1024}", "s_nop 0", f"buffer_load_dwordx4 v{16+i}, s[56:59], s35 offen lds")
    k.e(ex(-1), "s_waitcnt vmcnt(0)")
    for t in range(5):
        k.e(f"ds_read_b64 v[{36+2*t}:{37+2*t}], v21 offset:{32*t}")
    k.e("s_cmp_eq_u32 s31, 3", f"s_cbranch_scc1 mega_c_skip{tag}")
    k.e("v_add_u32 v32, s43, v28", "v_add_u32 v33, s43, v29", "v_add_u32 v34, s43, v11", "s_mov_b32 s36, 6")
    k.label(f"mega_conv{tag}")
    for t in range(5):
        k.e(f"ds_read_b64_tr_b16 v[{OWF+4*t}:{OWF+4*t+1}], v32 offset:{32*t}", f"ds_read_b64_tr_b16 v[{OWF+4*t+2}:{OWF+4*t+3}], v33 offset:{32*t}")
    k.e("v_add_u32 v32, 15360, v32", "v_add_u32 v33, 15360, v33", "s_waitcnt lgkmcnt(0)")
    for t in range(5):
        k.e(f"ds_write_b128 v34, {r4(OWF+4*t)} offset:{1024*t}")
    k.e("v_add_u32 v34, 15360, v34", "s_sub_u32 s36, s36, 1", "s_cmp_lg_u32 s36, 0", f"s_cbranch_scc1 mega_conv{tag}")
    k.label(f"mega_c_skip{tag}")
    k.e("s_waitcnt lgkmcnt(0)")
    for t in range(5):
        a = OACC + 4 * t
        k.e(f"v_lshlrev_b32 v{a}, 16, v{36+2*t}", f"v_and_b32 v{a+1}, 0xffff0000, v{36+2*t}",
            f"v_lshlrev_b32 v{a+2}, 16, v{37+2*t}", f"v_and_b32 v{a+3}, 0xffff0000, v{37+2*t}")


def oproj(k):
    k.e("; ==== output projection + residual + LayerNorm-2 partial statistics (helper waves)")
    k.e("v_and_b32 v2, 15, v1", "v_lshrrev_b32 v3, 4, v1")
    k.e("v_lshrrev_b32 v32, 2, v2",
        "v_and_b32 v33, 1, v3", "v_lshlrev_b32 v33, 2, v33", "v_add_u32 v32, v32, v33",
        "v_lshl_add_u32 v32, v3, 3, v32", "v_xor_b32 v33, 4, v32", "s_movk_i32 s40, 160",
        "v_and_b32 v34, 3, v2", "v_lshlrev_b32 v34, 3, v34", f"v_add_u32 v34, {LDS_WO}, v34",
        "v_mad_u32_u24 v28, v32, s40, v34", "v_mad_u32_u24 v29, v33, s40, v34",
        "v_add_u32 v30, 61440, v11")
    k.e("s_mul_i32 s44, s31, 2560", f"s_add_u32 s44, s44, {LDS_RES}",
        "v_and_b32 v21, 8, v2", "v_lshrrev_b32 v21, 1, v21", "v_xor_b32 v21, v21, v2", "v_mul_u32_u24 v21, s40, v21",
        "v_lshl_add_u32 v21, v3, 3, v21", "v_add_u32 v21, s44, v21")
    k.e("v_and_b32 v22, 1, v3", "v_lshlrev_b32 v22, 9, v22", "v_lshrrev_b32 v32, 1, v3", "v_lshl_add_u32 v22, v32, 8, v22",
        "v_lshl_add_u32 v22, v2, 4, v22")
    k.e("v_and_b32 v23, 7, v1", "v_lshlrev_b32 v23, 3, v23")
    k.e("s_lshl_b32 s48, s28, 2", "s_add_u32 s48, s48, s31", "s_mul_i32 s49, s48, 18432")
    k.e(f"s_mul_i32 s68, s28, {RX}", "s_add_u32 s68, s68, s49", f"s_add_u32 s34, s68, {WS_O}", "v_add_u32 v24, s34, v11", "s_lshl_b32 s51, s29, 11")
    k.e(f"v_mov_b32 v12, {LDS_REL}", f"s_mov_b32 s3, {SPIN*8}")
    k.label("mega_rel")
    k.e("ds_read_b32 v13, v12", "s_waitcnt lgkmcnt(0)", "v_readfirstlane_b32 s50, v13", "s_and_b32 s39, s50, 0xff", "s_cmp_ge_u32 s39, 8",
        "s_cbranch_scc1 mega_reld", "s_sleep 4", "s_sub_u32 s3, s3, 1", "s_cbranch_scc0 mega_rel")
    k.label("mega_reld")
    if os.environ.get("PFC") == "2":
        k.e("s_cmp_lg_u32 s31, 3", "s_cbranch_scc1 a_nopfc", "s_getpc_b64 s[70:71]")
        k.label("mega_pc2")
        k.e("s_mul_i32 s36, s47, 512", "v_min_u32 v9, 3, v1", "v_lshlrev_b32 v9, 7, v9",
            "v_add_u32 v9, s36, v9", "v_min_u32 v9, mega_end - mega_pc2 - 4, v9", "global_load_dword v10, v9, s[70:71]")
        k.label("a_nopfc")
    k.e("s_cmp_lg_u32 s50, 8", "s_cbranch_scc1 mega_noearly")
    wo_dma(k, "a")
    k.label("mega_noearly")
    stp(k, 8)
    k.e("s_waitcnt lgkmcnt(0)", "s_barrier")
    stb(k, 3)
    publish_o(k, "ob")
    k.e("s_cmp_eq_u32 s50, 8", "s_cbranch_scc1 mega_nolate")
    wo_dma(k, "b")
    k.label("mega_nolate")
    k.e("s_lshl_b32 s34, s28, 7", f"s_add_u32 s34, s34, {F1}")
    k.e("s_cmp_lg_u32 s31, 0", "s_cbranch_scc1 mega_polld_o")
    lds_wait(k, LDS_CNT + 4, 12, "owno")
    poll(k, 23, 34, 32, "o", sleep=int(os.environ.get("OSP", "2")))
    lds_signal(k, LDS_ORD)
    lds_wait(k, LDS_ORD, 4, "ord")
    stb(k, 4)
    for s in range(18):
        k.e(f"buffer_load_dwordx4 v[{OX0+4*s}:{OX0+4*s+3}], v24, s[16:19], s51 offen sc1",
            "s_add_u32 s51, s51, 1024", "s_cmp_eq_u32 s51, 18432", "s_cselect_b32 s51, 0, s51")

    seq = [(s, t) for s in range(18) for t in range(5)]

    def rd(i):
        s, t = seq[i]
        off = (s if s < 12 else s - 12) * 5120 + 1024 * t
        k.e(f"ds_read_b128 {r4(OWF+4*(i%NB))}, v{11 if s < 12 else 30} offset:{off}")
    for i in range(NB):
        rd(i)
    ring_srd(k)
    for i, (s, t) in enumerate(seq):
        k.e(f"s_waitcnt lgkmcnt({min(NB-1, 89-i)})" + (f" vmcnt({17 - s + 3*(s//3)})" if t == 0 else ""))
        a = r4(OACC + 4 * t)
        k.e(f"v_mfma_f32_16x16x32_bf16 {a}, {r4(OWF+4*(i%NB))}, {r4(OX0+4*s)}, {a}")
        if i + NB < 90:
            rd(i + NB)
        if t == 4 and s % 3 == 2:
            st = (s // 3 + 5) % 6
            k.e(f"s_movk_i32 s53, {st*T*1024}")
            for tt in range(T):
                k.e(wload(st, tt))
    sto(k, 1)
    k.e("v_mov_b32 v6, 0", "v_mov_b32 v7, 0", "v_mov_b32 v34, 0x3f803f80",
        "s_mul_i32 s35, s29, 2304", "s_add_u32 s35, s35, s68", f"s_add_u32 s35, s35, {WS_H}")
    for t in range(5):
        a = OACC + 4 * t
        d = OWF + 2 * t
        k.e(f"v_cvt_pk_bf16_f32 v{d}, v{a}, v{a+1}", f"v_cvt_pk_bf16_f32 v{d+1}, v{a+2}, v{a+3}")
        if t == 4:
            k.e(ex(0xffffffff))
        k.e(f"v_dot2c_f32_bf16 v6, v{d}, v34", f"v_dot2c_f32_bf16 v7, v{d}, v{d}",
            f"v_dot2c_f32_bf16 v6, v{d+1}, v34", f"v_dot2c_f32_bf16 v7, v{d+1}, v{d+1}")
        if t == 4:
            k.e(ex(-1))
        if t % 2 == 1 or t == 4:
            b = OWF + 4 * (t // 2)
            k.e(f"v_permlane16_swap_b32 v{b}, v{b+2}", f"v_permlane16_swap_b32 v{b+1}, v{b+3}")
            if t == 4:
                k.e(ex(0xffff))
            k.e(f"buffer_store_dwordx4 {r4(b)}, v22, s[16:19], s35 offen offset:{1024*(t//2)} sc1")
            if t == 4:
                k.e(ex(-1))
    reduce_g_add(k, [6, 7], [32, 33])
    k.e("v_lshlrev_b32 v32, 4, v2", "s_lshl_b32 s35, s48, 10", "s_lshr_b32 s34, s29, 1", "s_lshl_b32 s34, s34, 8",
        "s_add_u32 s35, s35, s34", "s_and_b32 s34, s29, 1", "s_lshl_b32 s34, s34, 3", "s_add_u32 s35, s35, s34",
        f"s_add_u32 s35, s35, {WS_ST}", f"s_mul_i32 s34, s28, {RST}", "s_add_u32 s35, s35, s34", ex(0xffff))
    k.e("buffer_store_dwordx2 v[6:7], v32, s[16:19], s35 offen sc1", ex(-1))
    sto(k, 2)
    k.e("s_lshl_b32 s34, s28, 7", "s_lshl_b32 s35, s29, 3", "s_add_u32 s34, s34, s35", f"s_add_u32 s34, s34, {F2}", "s_waitcnt vmcnt(0)")
    sto(k, 7)
    arrive(k, 2, 4, 34, "h")


def acc(t, mb):
    return ACC + (t * 4 + mb) * 4


def wreg(slot, t):
    return WR + ((slot + 1) % 6) * 12 + t * 4


def wload(slot, t):
    return f"buffer_load_dwordx4 {r4(wreg(slot, t))}, v11, s[20:23], s53 offen offset:{1024*t} {WAUX}"


def ring_srd(k):
    k.e(f"s_mul_i32 s34, s30, {STREAM}", f"s_mul_i32 s35, s46, {1296*1024}", "s_add_u32 s34, s34, s35", f"s_add_u32 s34, s34, {WS_W}",
        "s_add_u32 s20, s12, s34", "s_addc_u32 s21, s13, 0", f"s_mov_b32 s22, {STREAM}", "s_mov_b32 s23, 0x00020000")


def ffn_ring_start(k, n=D - 1):
    ring_srd(k)
    k.e("s_mov_b32 s53, 0")
    for st in range(n):
        for t in range(T):
            k.e(wload(st, t))
        k.e(f"s_add_u32 s53, s53, {T*1024}")


def ffn(k):
    k.label("ffn_join")
    k.e("s_setprio 0", "v_and_b32 v2, 15, v1", "v_lshrrev_b32 v3, 4, v1")
    k.e("s_lshl_b32 s34, s47, 2", "s_and_b32 s35, s30, 3", "s_add_u32 s34, s34, s35", "s_mul_i32 s41, s34, 18432",
        "s_lshr_b32 s35, s30, 2", "s_lshl_b32 s35, s35, 10", "s_add_u32 s41, s41, s35", f"s_add_u32 s41, s41, {WS_H}", f"s_mul_i32 s35, s47, {RX}", "s_add_u32 s41, s41, s35",
        "s_lshl_b32 s42, s30, 10")
    k.e("s_lshl_b32 s34, s30, 7", f"s_add_u32 s34, s34, {LDS_S}", "v_lshlrev_b32 v13, 4, v3", "v_add_u32 v12, s34, v13",
        "s_lshl_b32 s34, s30, 6", f"s_add_u32 s34, s34, {LDS_S + 1536}", "v_add_u32 v13, s34, v13",
        f"ds_read_b128 {r4(XB0+16)}, v12", f"ds_read_b128 {r4(XB0+20)}, v12 offset:64", f"ds_read_b128 {r4(XB0+24)}, v13")
    k.e("v_lshlrev_b32 v9, 2, v2", f"v_add_u32 v9, {LDS_MU}, v9", "s_and_b32 s34, s46, 3", "s_lshl_b32 s34, s34, 6", "v_add_u32 v10, s34, v9")
    k.e(f"s_movk_i32 s53, {D*T*1024}")
    k.e("s_cmp_lg_u32 s30, 0", "s_cbranch_scc1 ffn_g")
    k.e("v_and_b32 v12, 7, v1", "v_lshlrev_b32 v12, 3, v12", "s_lshl_b32 s34, s47, 7", f"s_add_u32 s34, s34, {F2}",
        "v_lshlrev_b32 v8, 10, v3", "v_lshl_add_u32 v8, v2, 4, v8", f"s_mul_i32 s35, s47, {RST + 4096}", f"s_add_u32 s35, s35, {WS_ST}")
    lds_wait(k, LDS_CNT + 8, 4, "own", va=14, vb=15, sleep=2)
    poll(k, 12, 34, 14, "h", sleep=int(os.environ.get("HSP", "3")))
    for p in range(4):
        k.e(f"buffer_load_dwordx4 {r4(XB0+4*p)}, v8, s[16:19], s35 offen offset:{256*p} sc1")
    k.label("ffn_g")
    k.e("s_barrier")
    stb(k, 5)
    NF = int(os.environ.get("NF", "2"))
    for i in range(NF):
        k.e(f"s_add_u32 m0, s42, {i*12288}", f"s_add_u32 s36, s41, {i*3072}", f"buffer_load_dwordx4 v11, s[16:19], s36 offen {os.environ.get('HNT', '')} sc1 lds")
    k.e("s_cmp_lg_u32 s30, 0", "s_cbranch_scc1 ffn_st")
    k.e(f"s_waitcnt vmcnt({NF})")
    for p in range(1, 4):
        for c in range(4):
            k.e(f"v_add_f32 v{XB0+c}, v{XB0+c}, v{XB0+4*p+c}")
    k.e(f"v_add_f32 v4, v{XB0}, v{XB0+2}", f"v_add_f32 v5, v{XB0+1}, v{XB0+3}",
        f"v_mul_f32 v4, {hex(f2u(-1/576))}, v4", f"v_mul_f32 v5, {hex(f2u(1/576))}, v5", "v_fma_f32 v5, -v4, v4, v5", "v_max_f32 v5, 0, v5",
        f"v_add_f32 v5, {hex(f2u(1e-5))}, v5", "v_rsq_f32 v5, v5", "v_lshlrev_b32 v6, 2, v1", f"v_add_u32 v6, {LDS_MU}, v6",
        "ds_write_b32 v6, v4", "ds_write_b32 v6, v5 offset:256")
    lds_signal(k, LDS_MUS)
    k.label("ffn_st")
    lds_wait(k, LDS_MUS, 1, "mus")
    for i in range(NF, 4):
        k.e(f"s_add_u32 m0, s42, {i*12288}", f"s_add_u32 s36, s41, {i*3072}", f"buffer_load_dwordx4 v11, s[16:19], s36 offen {os.environ.get('HNT', '')} sc1 lds")
    sto(k, 8)
    for mb in range(4):
        k.e(f"ds_read_b32 v{4+mb}, v9 offset:{64*mb}")
    k.e("ds_read_b32 v8, v10 offset:256", "s_waitcnt lgkmcnt(0)")
    for t in range(T):
        for mb in range(4):
            for i in range(4):
                k.e(f"v_mul_f32 v{acc(t,mb)+i}, v{4+mb}, v{XB0+16+4*t+i}")
    k.e("s_add_u32 s41, s41, 12288", "s_add_u32 s42, s42, 49152")
    k.e("s_waitcnt vmcnt(3)", "s_barrier")
    stb(k, 6)
    if os.environ.get("PF2") == "2":
        k.e("v_min_u32 v0, 13, v1", "v_lshlrev_b32 v0, 7, v0", "s_mul_i32 s36, s47, 1728", "s_and_b32 s36, s36, 0xffffff80", f"s_add_u32 s36, s36, {18*T*1024}",
            "buffer_load_dword v0, v0, s[20:23], s36 offen sc1")
    k.e("v_mov_b32 v10, v11", "s_mov_b32 s31, 0")

    def step(u, loads=True, xrd=True):
        xb = XB0 + 16 * (u % 2)
        xn = XB0 + 16 * ((u + 1) % 2)
        fill = [f"ds_read_b128 {r4(xn+4*mb)}, v10 offset:{(u+1)*4096 + 1024*mb}" for mb in range(4)] if xrd else []
        if loads:
            fill += [wload((u + D - 1) % D, t) for t in range(T)]
            fill += [f"s_add_u32 s53, s53, {T*1024}"]
        order = [(t, mb) for t in range(T) for mb in range(4)]
        if os.environ.get("ORD") == "snake":
            order = [(t, mb if t % 2 == 0 else 3 - mb) for t in range(T) for mb in range(4)]
        if os.environ.get("ORD") == "mb":
            order = [(t if mb % 2 == 0 else T - 1 - t, mb) for mb in range(4) for t in range(T)]
        for t, mb in order:
            a = r4(acc(t, mb))
            k.e(f"v_mfma_f32_16x16x32_bf16 {a}, {r4(wreg(u, t))}, {r4(xb+4*mb)}, {a}")
            if fill:
                k.e(fill.pop(0))
    for mb in range(4):
        k.e(f"ds_read_b128 {r4(XB0+4*mb)}, v10 offset:{1024*mb}")
    k.e("s_waitcnt lgkmcnt(0)")
    step(0, loads=False)
    k.e("s_branch ffn_u1")
    k.label("ffn_start")
    for mb in range(4):
        k.e(f"ds_read_b128 {r4(XB0+4*mb)}, v10 offset:{1024*mb}")
    k.e(".p2align 6")
    k.label("ffn_loop")
    k.e("s_cmp_lg_u32 s31, 1", "s_cbranch_scc1 ffn_nodma")
    for i in range(2):
        k.e(f"s_add_u32 m0, s42, {i*12288}", f"s_add_u32 s36, s41, {i*3072}", f"buffer_load_dwordx4 v11, s[16:19], s36 offen {os.environ.get('HNT', '')} sc1 lds")
    if os.environ.get("PF2", "1") == "1":
        k.e("v_min_u32 v0, 13, v1", "v_lshlrev_b32 v0, 7, v0", "s_mul_i32 s36, s47, 1728", "s_and_b32 s36, s36, 0xffffff80", f"s_add_u32 s36, s36, {18*T*1024}",
            ("buffer_load_dword v15, v0, s[20:23], s36 offen offset:64 sc1" if os.environ.get("PF64") else ""),
            "buffer_load_dword v0, v0, s[20:23], s36 offen sc1")
    k.label("ffn_nodma")
    for u in range(D):
        if u == 1:
            k.label("ffn_u1")
        k.e(f"s_waitcnt vmcnt({4*T}) lgkmcnt(0)")
        if u == D - 1:
            k.e("s_cmp_ge_u32 s31, 2", "s_cbranch_scc1 ffn_hwait", "s_barrier")
            k.label("ffn_nobar")
        if u == 2:
            k.e("s_cmp_lg_u32 s31, 0", "s_cbranch_scc1 ffn_nobar2", "s_waitcnt vmcnt(5)", "s_barrier")
            k.label("ffn_nobar2")
        step(u)
    k.e(f"v_add_u32 v10, {D*4096}, v10", "s_add_u32 s31, s31, 1",
        "s_cmp_eq_u32 s31, 3", "s_cbranch_scc1 ffn_ep1",
        "s_cmp_lt_u32 s31, 5", "s_cbranch_scc1 ffn_loop")
    for u in range(D):
        k.e(f"s_waitcnt vmcnt({min(4*T, T*(D-1-u))}) lgkmcnt(0)")
        step(u, loads=(u == 0), xrd=(u < D - 1))
    stb(k, 8)
    k.e("s_waitcnt lgkmcnt(0)")
    k.e(f"s_mul_i32 s34, s46, {PSX}", f"s_mul_i32 s33, s47, {PSY}", f"s_add_u32 s33, s33, {WS_P}", "s_add_u32 s34, s34, s33",
        "s_lshl_b32 s35, s30, 10", "s_add_u32 s36, s34, s35",
        "s_cmp_ge_u32 s30, 6", "s_movk_i32 s37, 12288", f"s_cselect_b32 s37, {12288 + 18432 - 6144}, s37", "s_add_u32 s37, s37, s36")
    for mb in range(4):
        d = XB0 + 4 * mb
        a, b = acc(0, mb), acc(1, mb)
        for i in range(4):
            k.e(f"v_cvt_pk_bf16_f32 v{d+i}, v{a+i}, v{b+i}")
        k.e(f"buffer_store_dwordx4 {r4(d)}, v11, s[16:19], s36 offen sc1", "s_add_u32 s36, s36, 18432")
    for h in range(2):
        d = XB0 + 16 + 4 * h
        a, b = acc(2, 2 * h), acc(2, 2 * h + 1)
        k.e(f"v_cvt_pk_bf16_f32 v{d}, v{a}, v{a+1}", f"v_cvt_pk_bf16_f32 v{d+1}, v{a+2}, v{a+3}",
            f"v_cvt_pk_bf16_f32 v{d+2}, v{b}, v{b+1}", f"v_cvt_pk_bf16_f32 v{d+3}, v{b+2}, v{b+3}")
        k.e(f"buffer_store_dwordx4 {r4(d)}, v11, s[16:19], s37 offen sc1", "s_add_u32 s37, s37, 36864")
    stt(k, 3)
    k.e("s_lshl_b32 s38, s47, 9", f"s_add_u32 s38, s38, {F3}", "s_lshr_b32 s36, s30, 2", "s_lshl_b32 s35, s36, 7", "s_add_u32 s38, s38, s35",
        "s_lshl_b32 s35, s46, 3", "s_add_u32 s34, s38, s35",
        "s_lshl_b32 s44, s36, 2", f"s_add_u32 s44, s44, {LDS_CNT + 12}", "s_waitcnt vmcnt(0)")
    stt(k, 4)
    stt(k, 5)
    stt(k, 6)
    arrive(k, 0, 4, 34, "r", cnt_sgpr=44)
    k.e("s_add_u32 s44, s44, 12", "v_mov_b32 v10, s44")
    k.e("s_and_b32 s35, s30, 3", "s_cmp_lg_u32 s35, 3", "s_cbranch_scc1 mega_red")
    if os.environ.get("DEFER", "1") == "1":
        if os.environ.get("DEF0", "1") == "1":
            k.e("s_cmp_eq_u32 s30, 3", f"s_mov_b32 s35, {LDS_CNT + 20}", f"s_cselect_b32 s35, {LDS_CNT + 16}, s35")
            lds_wait(k, "s35", 4, "t2", sleep=4)
        else:
            lds_wait(k, LDS_CNT + 20, 4, "t2", sleep=4)
    k.e("v_and_b32 v12, 7, v1", "v_lshlrev_b32 v12, 3, v12")
    poll(k, 12, 38, 14, "r", sleep=int(os.environ.get("RSP", "3")))
    k.e("v_mov_b32 v13, 1", "ds_write_b32 v10, v13", "s_waitcnt lgkmcnt(0)", "s_branch mega_fin")
    k.label("mega_red")
    k.e(
        "s_lshl_b32 s37, s36, 2", "s_lshl_b32 s39, s35, 1", "s_add_u32 s37, s37, s39",
        "s_lshl_b32 s39, s36, 1", "s_add_u32 s39, s39, 12", "s_cmp_eq_u32 s35, 2", "s_cselect_b32 s37, s39, s37",
        "s_lshr_b32 s39, s46, 2", "s_add_u32 s37, s37, s39",
        "s_and_b32 s39, s46, 3",
        "s_mul_i32 s34, s39, 18432", "s_lshl_b32 s41, s37, 10", "s_add_u32 s34, s34, s41")
    k.e("s_sub_u32 s41, s37, 12", "s_lshl_b32 s41, s41, 11", "s_cmp_ge_u32 s37, 15", "s_movk_i32 s42, 12288",
        f"s_cselect_b32 s42, {12288 + 18432 - 6144}, s42", "s_add_u32 s41, s41, s42", "s_lshr_b32 s42, s39, 1", "s_mul_i32 s42, s42, 36864",
        "s_add_u32 s41, s41, s42", "s_and_b32 s42, s39, 1", "s_lshl_b32 s42, s42, 3", "s_add_u32 s41, s41, s42",
        "s_mov_b32 s43, s35", "s_cmp_eq_u32 s35, 2", "s_cselect_b32 s34, s41, s34", "s_cselect_b32 s42, 1024, 8",
        "s_add_u32 s33, s33, s34", "s_add_u32 s42, s42, s33")
    k.e("s_lshl_b32 s35, s37, 2", "s_add_u32 s35, s35, s39", "s_lshl_b32 s35, s35, 10", "v_add_u32 v13, s35, v11",
        f"ds_read_b128 {r4(WR+32)}, v13")
    srd(k, 20, 14, XB)
    k.e("s_lshl_b32 s35, s47, 2", "s_add_u32 s35, s35, s39", "s_mul_i32 s35, s35, 18432", "s_lshl_b32 s37, s37, 6",
        "s_add_u32 s37, s37, s35", "s_movk_i32 s35, 1152", "v_mul_u32_u24 v9, s35, v2", "v_lshl_add_u32 v9, v3, 4, v9")
    k.e("v_mov_b32 v5, 0x00003f80", "v_mov_b32 v6, 0x3f800000")
    for i in range(8):
        k.e(f"v_mov_b32 v{ACC+i}, 0")
    k.e(f"s_mov_b32 s3, {SPIN*8}")
    k.label("mega_lspin")
    k.e("ds_read_b32 v14, v10", "s_waitcnt lgkmcnt(0)", "v_readfirstlane_b32 s38, v14", "s_cmp_lg_u32 s38, 0", "s_cbranch_scc1 mega_lspind",
        "s_sleep 2", "s_sub_u32 s3, s3, 1", "s_cbranch_scc0 mega_lspin")
    k.label("mega_lspind")
    stt(k, 5)
    k.e("s_cmp_eq_u32 s43, 2", "s_cbranch_scc1 mega_ld_s")
    for j in range(8):
        k.e(f"buffer_load_dwordx4 {r4(WR+4*j)}, v11, s[16:19], s33 offen sc1", f"s_add_u32 s33, s33, {PSX}")
    k.e("s_branch mega_ld_o")
    k.label("mega_ld_s")
    for j in range(8):
        k.e(f"buffer_load_dwordx2 v[{WR+4*j}:{WR+4*j+1}], v11, s[16:19], s33 offen sc1", f"s_add_u32 s33, s33, {PSX}")
    for j in range(8):
        k.e(f"buffer_load_dwordx2 v[{WR+4*j+2}:{WR+4*j+3}], v11, s[16:19], s42 offen sc1", f"s_add_u32 s42, s42, {PSX}")
    k.label("mega_ld_o")
    k.e("s_waitcnt lgkmcnt(0)")
    for i in range(4):
        k.e(f"v_lshlrev_b32 v{ACC+8+2*i}, 16, v{WR+32+i}", f"v_and_b32 v{ACC+9+2*i}, 0xffff0000, v{WR+32+i}")
    for j in range(8):
        k.e(f"s_waitcnt vmcnt({7-j})")
        for i in range(4):
            k.e(f"v_dot2c_f32_bf16 v{ACC+2*i}, v{WR+4*j+i}, v5", f"v_dot2c_f32_bf16 v{ACC+2*i+1}, v{WR+4*j+i}, v6")
    stt(k, 6)
    k.e("s_cmp_eq_u32 s43, 2", "s_cbranch_scc1 mega_red_s")
    for i in range(8):
        k.e(f"v_fma_f32 v{ACC+8+i}, v{ACC+i}, v8, v{ACC+8+i}")
    k.e("s_branch mega_red_o")
    k.label("mega_red_s")
    for i in range(8):
        k.e(f"v_fma_f32 v{ACC+8+i}, v{ACC+(i//2)+4*(i%2)}, v8, v{ACC+8+i}")
    k.label("mega_red_o")
    for i in range(4):
        k.e(f"v_cvt_pk_bf16_f32 v{XB0+i}, v{ACC+8+2*i}, v{ACC+9+2*i}")
    k.e(f"buffer_store_dwordx4 {r4(XB0)}, v9, s[20:23], s37 offen")
    k.label("mega_fin")
    k.stamp_flush(1, 10, 16, 30, wpw=16)
    if os.environ.get("DBGOUT"):
        k.e("s_cmp_lg_u32 s2, 5", "s_cbranch_scc1 mega_end", "s_cmp_lg_u32 s30, 8", "s_cbranch_scc1 mega_end",
            "s_load_dwordx2 s[4:5], s[0:1], 72", "s_waitcnt lgkmcnt(0)", "s_nop 0")
        srd(k, 20, 4, 256)
        for i in range(1, 9):
            k.e(f"s_sub_u32 s34, s{81+2*i}, s81", "v_mov_b32 v4, s34", f"buffer_store_dword v4, v0, s[20:23], 0 offen offset:{4*i-4}",
                f"s_sub_u32 s34, s{80+2*i}, s80", "v_mov_b32 v5, s34", f"buffer_store_dword v5, v0, s[20:23], 0 offen offset:{4*i+28}", "s_waitcnt vmcnt(0)")
    k.e("s_endpgm")
    k.label("ffn_ep1")
    if os.environ.get("PF3"):
        k.e("v_min_u32 v0, 13, v1", "v_lshlrev_b32 v0, 7, v0", "s_mul_i32 s36, s47, 1728", "s_and_b32 s36, s36, 0xffffff80", f"s_add_u32 s36, s36, {18*T*1024}",
            "buffer_load_dword v0, v0, s[20:23], s36 offen sc1")
    k.e("s_waitcnt lgkmcnt(0)")
    k.e("s_lshr_b32 s36, s30, 2", "s_mul_i32 s37, s36, 24576", f"s_add_u32 s37, s37, {LDS_H}",
        "s_and_b32 s34, s30, 3", "s_lshl_b32 s34, s34, 12", "s_add_u32 s34, s34, s37", "v_add_u32 v14, s34, v11",
        "s_bfe_u32 s34, s30, 0x10001", "s_lshl_b32 s34, s34, 12", "s_and_b32 s35, s30, 1", "s_lshl_b32 s35, s35, 3",
        "s_add_u32 s34, s34, s35", "s_add_u32 s34, s34, s37", "s_add_u32 s34, s34, 16384", "v_add_u32 v15, s34, v11",
        "s_lshl_b32 s36, s36, 2", f"s_add_u32 s36, s36, {LDS_HRD}")
    for mb in range(4):
        d = XB0 + 4 * mb
        a, b = acc(0, mb), acc(1, mb)
        for i in range(4):
            k.e(f"v_cvt_pk_bf16_f32 v{d+i}, v{a+i}, v{b+i}")
        for i in range(4):
            k.e(f"v_pk_max_i16 v{d+i}, v{d+i}, 0")
        k.e(f"ds_write_b128 v14, {r4(d)} offset:{mb*1024}")
    for mb in range(4):
        a = acc(2, mb)
        d = XB0 + 16 + 2 * mb
        k.e(f"v_cvt_pk_bf16_f32 v{d}, v{a}, v{a+1}", f"v_cvt_pk_bf16_f32 v{d+1}, v{a+2}, v{a+3}",
            f"v_pk_max_i16 v{d}, v{d}, 0", f"v_pk_max_i16 v{d+1}, v{d+1}, 0",
            f"ds_write_b64 v15, v[{d}:{d+1}] offset:{mb*1024}")
    lds_signal(k, "s36")
    for r in range(ACC, ACC + 16 * T):
        k.e(f"v_mov_b32 v{r}, 0")
    if os.environ.get("NOPRIO"):
        k.e("s_branch ffn_pr2")
    k.e("s_cmp_lt_u32 s30, 4", "s_cbranch_scc0 ffn_pr1", "s_setprio 2")
    k.label("ffn_pr1")
    k.e("s_and_b32 s34, s30, 12", "s_cmp_eq_u32 s34, 4", "s_cbranch_scc0 ffn_pr2", "s_setprio 1")
    k.label("ffn_pr2")
    lds_wait(k, LDS_HRD, 4, "h0")
    stb(k, 7)
    k.e("s_branch ffn_start")
    k.label("ffn_hwait")
    k.e("s_cmp_eq_u32 s31, 2", "s_cbranch_scc1 ffn_nobar", "s_lshl_b32 s36, s31, 2", f"s_add_u32 s36, s36, {LDS_HRD - 8}")
    lds_wait(k, "s36", 4, "h1")
    k.e("s_branch ffn_nobar")


def tr_addr(k, base0, base1, stride, extra_sgpr=None):
    k.e("v_lshrrev_b32 v32, 2, v2",
        "v_and_b32 v33, 1, v3", "v_lshlrev_b32 v33, 2, v33", "v_add_u32 v32, v32, v33",
        "v_lshl_add_u32 v32, v3, 3, v32", "v_xor_b32 v33, 4, v32", f"s_movk_i32 s40, {stride}",
        "v_and_b32 v34, 3, v2", "v_lshlrev_b32 v34, 3, v34", f"v_add_u32 v34, {base0}, v34")
    if extra_sgpr is not None:
        k.e(f"v_add_u32 v34, s{extra_sgpr}, v34")
    k.e("v_mad_u32_u24 v28, v32, s40, v34", "v_mad_u32_u24 v29, v33, s40, v34")
    if base1 is not None:
        k.e(f"v_add_u32 v30, {base1 - base0}, v28", f"v_add_u32 v31, {base1 - base0}, v29")


def x_read_addr(k, v, slot_sgpr):
    k.e(f"v_lshrrev_b32 v{v}, 2, v2", f"v_sub_u32 v{v}, 4, v{v}", f"v_and_b32 v{v}, 3, v{v}", f"v_xor_b32 v{v}, v{v}, v3",
        f"v_lshlrev_b32 v{v}, 4, v{v}", f"v_lshl_add_u32 v{v}, v2, 6, v{v}")
    if slot_sgpr is None:
        k.e(f"v_add_u32 v{v}, {A_X}, v{v}")
    else:
        k.e(f"v_add_u32 v{v}, s{slot_sgpr}, v{v}")


def get_nonce(k):
    k.e(f"v_mov_b32 v12, {LDS_NON}", "ds_read_b64 v[14:15], v12", "s_waitcnt lgkmcnt(0)",
        "v_readfirstlane_b32 s66, v14", "v_readfirstlane_b32 s67, v15")


def wq_rd(k, t, s, wf, b, par=False):
    ss = 4 * s if par else s
    a0, a1 = (28, 29) if ss < 8 else (30, 31)
    off = (ss if ss < 8 else ss - 8) * 5120 + 32 * t
    k.e(f"ds_read_b64_tr_b16 v[{wf+4*b}:{wf+4*b+1}], v{a0} offset:{off}",
        f"ds_read_b64_tr_b16 v[{wf+4*b+2}:{wf+4*b+3}], v{a1} offset:{off}")


QCH = [(0, 8), (8, 12), (12, 18)]


def a_qwave(k):
    k.e("; ==== LN1 + Q projection (waves 0..3), LN folded into the epilogue")
    k.e("s_setprio 2")
    k.e("s_sub_u32 s34, s30, s29", "s_and_b32 s34, s34, 3", "s_mul_i32 s43, s34, 18432", f"s_add_u32 s43, s43, {A_X}",
        "s_lshl_b32 s35, s28, 2", "s_add_u32 s35, s35, s30", "s_mul_i32 s35, s35, 18432", "s_lshl_b32 s36, s48, 6")
    k.e("v_lshrrev_b32 v5, 2, v1", "v_sub_u32 v6, 4, v3", "v_xor_b32 v6, v6, v1", "v_and_b32 v6, 3, v6",
        "s_movk_i32 s41, 1152", "v_mul_u32_u24 v5, s41, v5", "v_lshl_add_u32 v4, v6, 4, v5", "v_add_u32 v4, s35, v4")
    NOB0 = os.environ.get("NOB0")
    if not NOB0:
        k.e("s_cmp_eq_u32 s34, 0", "s_cbranch_scc1 a_q_first", "s_barrier")
    else:
        k.e("s_cmp_lg_u32 s34, 0", "s_cbranch_scc1 a_q_first", "s_setprio 3")
    k.label("a_q_first")
    for s in range(18):
        k.e(f"s_add_u32 m0, s43, {s*1024}", "s_nop 0", "buffer_load_dwordx4 v4, s[20:23], s36 offen lds",
            "s_add_u32 s36, s36, 64", "s_cmp_eq_u32 s36, s41", "s_cselect_b32 s36, 0, s36")
    if not NOB0:
        k.e("s_cmp_lg_u32 s34, 0", "s_cbranch_scc1 a_q_second", "s_barrier")
    else:
        k.e("s_setprio 2", "s_barrier")
    k.label("a_q_second")
    tr_addr(k, A_WQ0, A_WQ1, 160)
    x_read_addr(k, 35, 43)
    for r in range(QACC, QACC + 20):
        k.e(f"v_mov_b32 v{r}, 0")
    for b in QACS:
        for i in range(4):
            k.e(f"v_mov_b32 v{b+i}, 0")
    for i in range(4):
        k.e(f"v_mov_b32 v{QONES+i}, 0x3f803f80")
    k.e("v_mov_b32 v6, 0", "v_mov_b32 v7, 0")
    for part in range(3):
        k.e(f"s_waitcnt vmcnt({18 - 6*(part+1)})")
        if part == 2:
            k.e("s_cmp_lg_u32 s34, 0", "s_cbranch_scc1 a_q_nosig")
            lds_signal(k, LDS_KVI)
            k.label("a_q_nosig")
        for s in range(6 * part, 6 * part + 6):
            k.e(f"ds_read_b128 {r4(QX0+4*s)}, v35 offset:{1024*s}")
        if part:
            k.e("s_waitcnt lgkmcnt(6)")
            for r in range(QX0 + 24 * (part - 1), QX0 + 24 * part):
                k.e(f"v_dot2c_f32_bf16 v6, v{r}, v{QONES}", f"v_dot2c_f32_bf16 v7, v{r}, v{r}")
    k.e("s_waitcnt lgkmcnt(0)")
    lds_signal(k, LDS_XC)
    k.stamp(1)
    for r in range(QX0 + 48, QX0 + 72):
        k.e(f"v_dot2c_f32_bf16 v6, v{r}, v{QONES}", f"v_dot2c_f32_bf16 v7, v{r}, v{r}")
    reduce_g_add(k, [6, 7], [32, 33])
    k.e(f"v_mul_f32 v6, {hex(f2u(1/576))}, v6", f"v_mul_f32 v7, {hex(f2u(1/576))}, v7",
        "v_fma_f32 v7, -v6, v6, v7", "v_max_f32 v7, 0, v7", f"v_add_f32 v7, {hex(f2u(1e-5))}, v7", "v_rsq_f32 v7, v7")
    k.e("s_cmp_lg_u32 s34, 0", "s_cbranch_scc1 a_q_nost")
    k.e("v_lshlrev_b32 v32, 2, v2", f"v_add_u32 v32, {A_ST}, v32", "ds_write_b32 v32, v6", "ds_write_b32 v32, v7 offset:64",
        "s_waitcnt lgkmcnt(0)")
    lds_signal(k, LDS_KVS)
    k.label("a_q_nost")
    k.e(f"v_mul_f32 v34, {hex(f2u(QSCALE))}, v7")
    k.e("s_mul_i32 s35, s30, 2304", f"s_add_u32 s35, s35, {LDS_OST}", "v_lshrrev_b32 v35, 1, v3", "v_lshlrev_b32 v35, 8, v35",
        "v_lshl_add_u32 v35, v2, 4, v35", "v_and_b32 v32, 1, v3", "v_lshl_add_u32 v35, v32, 3, v35", "v_add_u32 v35, s35, v35")
    sta(k, 3)
    k.label("a_q_gemm")
    for ci, (s0, s1) in enumerate(QCH):
        k.e("s_cmp_ge_u32 s30, 4", f"s_cbranch_scc1 mega_lwd_q{ci}")
        lds_wait(k, LDS_WQC + 4 * ci, 4, f"q{ci}")
        def rd2(t, s, b):
            a0, a1 = (28, 29) if s < 8 else (30, 31)
            off = (s if s < 8 else s - 8) * 5120 + 32 * t
            return [f"ds_read_b64_tr_b16 v[{QWF+4*b}:{QWF+4*b+1}], v{a0} offset:{off}",
                    f"ds_read_b64_tr_b16 v[{QWF+4*b+2}:{QWF+4*b+3}], v{a1} offset:{off}"]
        roll_gemm2(k, list(range(s0, s1)), rd2,
                   lambda t, s, b: [f"v_mfma_f32_16x16x32_bf16 {r4(QACC+4*t)}, {r4(QWF+4*b)}, {r4(QX0+4*s)}, {r4(QACC+4*t)}",
                                    f"v_mfma_f32_16x16x32_bf16 {r4(QACS[t])}, {r4(QWF+4*b)}, {r4(QONES)}, {r4(QACS[t])}"])
    k.e("s_cmp_ge_u32 s30, 4", "s_cbranch_scc1 a_s_done")
    sta(k, 7)
    k.e("s_setprio 3")
    lds_signal(k, LDS_WDN)
    sta(k, 8)
    for t in range(5):
        a = QACC + 4 * t
        for i in range(4):
            k.e(f"v_fma_f32 v{a+i}, -v6, v{QACS[t]+i}, v{a+i}")
        for i in range(4):
            k.e(f"v_mul_f32 v{a+i}, v34, v{a+i}")
        k.e(f"v_cvt_pk_bf16_f32 v{QWF+2*t}, v{a}, v{a+1}", f"v_cvt_pk_bf16_f32 v{QWF+2*t+1}, v{a+2}, v{a+3}")
        if t == 4:
            k.e(ex(0xffffffff))
        k.e(f"ds_write_b64 v35, v[{QWF+2*t}:{QWF+2*t+1}] offset:{512*t}")
    k.e("s_lshr_b32 s35, s30, 1", "s_lshl_b32 s35, s35, 2", f"s_add_u32 s35, s35, {LDS_QRD}", "v_mov_b32 v12, s35", "v_mov_b32 v13, 1",
        ex(1), "ds_add_u32 v12, v13", ex(-1))


def wkv_rd(k, s, wf):
    for t in range(2):
        off = s * 1536 + 32 * t
        k.e(f"ds_read_b64_tr_b16 v[{wf+4*t}:{wf+4*t+1}], v28 offset:{off}",
            f"ds_read_b64_tr_b16 v[{wf+4*t+2}:{wf+4*t+3}], v29 offset:{off}")


def a_wkv_dma(k):
    k.e("s_cmp_lt_u32 s29, 4", "s_cselect_b32 s20, s70, s72", "s_cselect_b32 s21, s71, s73", f"s_mov_b32 s22, {WKB}", "s_mov_b32 s23, 0x00020000")
    k.e("s_movk_i32 s40, 21846")
    for i in range(3):
        k.e(f"v_add_u32 v32, {64*i}, v1", "v_mul_u32_u24 v33, s40, v32", "v_lshrrev_b32 v33, 16, v33", "v_mul_u32_u24 v34, 3, v33",
            "v_sub_u32 v34, v32, v34", "v_lshlrev_b32 v34, 4, v34", "v_min_u32 v34, 20, v34",
            "v_and_b32 v35, 8, v33", "v_lshrrev_b32 v35, 1, v35", "v_xor_b32 v35, v35, v33", f"v_mad_u32_u24 v{16+i}, v35, 36, v34")
    k.e("s_sub_u32 s34, s30, 4", "s_mul_i32 s34, s34, 3", "s_mul_i32 s43, s34, 3072", "s_lshr_b32 s35, s48, 1", "s_add_u32 s35, s35, s34",
        "s_sub_u32 s36, s35, 9", "s_min_u32 s35, s35, s36", "s_mul_i32 s35, s35, 2304")
    for g in range(3):
        for i in range(3):
            k.e(f"s_add_u32 m0, s43, {A_WKV + g*3072 + i*1024}", "s_nop 0", f"buffer_load_dwordx4 v{16+i}, s[20:23], s35 offen lds")
        k.e("s_add_u32 s35, s35, 2304", f"s_cmp_eq_u32 s35, {9*2304}", "s_cselect_b32 s35, 0, s35")


def a_kvwave(k):
    k.e("; ==== K or V projection of 16 rows (wave 4), published to every workgroup")
    k.e("s_setprio 3")
    a_wkv_dma(k)
    k.e("s_barrier")
    tr_addr(k, A_WKV, None, 48)
    x_read_addr(k, 35, None)
    for r in range(QACC, QACC + 8):
        k.e(f"v_mov_b32 v{r}, 0")
    k.e("s_lshr_b32 s41, s28, 1", f"s_mul_i32 s41, s41, {GRP}", f"s_add_u32 s41, s41, {WS_KV}",
        "s_and_b32 s42, s28, 1", "s_lshl_b32 s42, s42, 1", "s_bfe_u32 s43, s29, 0x10001", "s_add_u32 s42, s42, s43",
        "s_and_b32 s43, s29, 1",
        "s_lshl_b32 s49, s28, 7", "s_lshl_b32 s34, s29, 3", "s_add_u32 s49, s49, s34", f"s_add_u32 s49, s49, {FK}")
    k.e("s_waitcnt vmcnt(0)")
    lds_signal(k, LDS_WKI)
    lds_wait(k, LDS_KVI, 3, "kvi")
    k.stamp(1)
    k.e("s_cmp_ge_u32 s29, 4", "s_cbranch_scc1 a_kv_v")
    for isv in (False, True):
        if isv:
            k.label("a_kv_v")

        def rd(s):
            b = s % 3
            k.e(f"ds_read_b128 {r4(QX0+4*b)}, v35 offset:{1024*s}")
            wkv_rd(k, s, QX0 + 12 + 8 * b)
        rd(0)
        rd(1)
        for s in range(18):
            b = s % 3
            if s + 2 < 18:
                rd(s + 2)
            k.e(f"s_waitcnt lgkmcnt({min(10, 5*(17-s))})")
            for t in range(2):
                a, w, x = r4(QACC + 4 * t), r4(QX0 + 12 + 8 * b + 4 * t), r4(QX0 + 4 * b)
                k.e(f"v_mfma_f32_16x16x32_bf16 {a}, {x}, {w}, {a}" if isv else f"v_mfma_f32_16x16x32_bf16 {a}, {w}, {x}, {a}")
        sta(k, 3)
        lds_wait(k, LDS_KVS, 2, "kv" + ("v" if isv else "k"))
        sta(k, 4)
        A = QACC
        if not isv:
            k.e("v_lshlrev_b32 v32, 4, v3", f"v_add_u32 v32, {A_SKV}, v32", "v_lshlrev_b32 v33, 2, v2", f"v_add_u32 v33, {A_ST}, v33",
                "ds_read_b128 v[16:19], v32", "ds_read_b128 v[20:23], v32 offset:64", "ds_read_b32 v6, v33", "ds_read_b32 v7, v33 offset:64")
            k.e("s_lshl_b32 s38, s43, 8", "v_lshlrev_b32 v36, 4, v2", "v_add_u32 v36, s38, v36",
                "v_lshrrev_b32 v37, 1, v3", "v_lshl_add_u32 v37, v37, 9, v36",
                "s_lshl_b32 s38, s42, 10", "s_add_u32 s38, s38, s41",
                "s_lshl_b32 s39, s42, 2", "s_add_u32 s39, s39, s41", f"s_add_u32 s39, s39, {KV_K2}")
            k.e("s_waitcnt lgkmcnt(0)")
            for i in range(8):
                k.e(f"v_fma_f32 v{A+i}, -v6, v{16+i}, v{A+i}")
            for i in range(8):
                k.e(f"v_mul_f32 v{A+i}, v7, v{A+i}")
            k.e(f"v_cvt_pk_bf16_f32 v40, v{A}, v{A+1}", f"v_cvt_pk_bf16_f32 v41, v{A+2}, v{A+3}", f"v_cvt_pk_bf16_f32 v44, v{A+6}, v{A+7}")
            k.e("v_permlane16_swap_b32 v40, v42", "v_permlane16_swap_b32 v41, v43")
            k.e(ex(0x0000ffff0000ffff), "buffer_store_dwordx4 v[40:43], v37, s[16:19], s38 offen sc1",
                ex(0xffff0000), "buffer_store_dword v44, v36, s[16:19], s39 offen sc1", ex(-1))
            k.e("s_or_b32 s39, s42, s28", "s_cmp_lg_u32 s39, 0", "s_cbranch_scc1 a_kv_nod", f"s_add_u32 s38, s38, {IMG}",
                ex(0x0000ffff0000ffff), "buffer_store_dwordx4 v[40:43], v37, s[16:19], s38 offen sc1", ex(-1))
            k.label("a_kv_nod")
            k.e("s_or_b32 s38, s42, s43", "s_cmp_lg_u32 s38, 0", "s_cbranch_scc1 a_kv_noc")
            k.e("v_mov_b32 v24, 0x3f803f80", "v_mov_b32 v25, 0x00003f80", "v_mov_b32 v26, 0x3f803f80", "v_mov_b32 v27, 0x00003f80",
                "v_mov_b32 v12, 0", f"s_add_u32 s38, s41, {KV_K2 + 512}", ex(1), "buffer_store_dwordx4 v[24:27], v12, s[16:19], s38 offen sc1", ex(-1))
            k.label("a_kv_noc")
            k.e(f"v_mul_f32 v45, v{A+6}, v{A+6}", f"v_fmac_f32 v45, v{A+7}, v{A+7}",
                "v_cmp_eq_u32 vcc, 1, v3", "v_cndmask_b32 v45, 0, v45, vcc")
            for i in range(4):
                k.e(f"v_fmac_f32 v45, v{A+i}, v{A+i}")
            reduce_g_add(k, [45], [46])
            for sh in (8, 4, 2, 1):
                k.e(f"v_max_f32_dpp v45, v45, v45 row_ror:{sh} row_mask:0xf bank_mask:0xf")
            k.e("s_branch a_kv_pub")
        else:
            k.e("v_lshlrev_b32 v32, 2, v2", f"v_add_u32 v32, {A_SKV}, v32", "v_lshlrev_b32 v33, 4, v3", f"v_add_u32 v33, {A_ST}, v33",
                "ds_read_b32 v6, v32", "ds_read_b32 v7, v32 offset:64", "ds_read_b128 v[16:19], v33", "ds_read_b128 v[20:23], v33 offset:64")
            k.e("s_mul_i32 s38, s42, 1216", "s_mul_i32 s39, s43, 608", "s_add_u32 s38, s38, s39", "s_add_u32 s38, s38, s41",
                f"s_add_u32 s38, s38, {KV_V}", "s_movk_i32 s39, 304", "v_and_b32 v36, 1, v3", "v_mul_u32_u24 v37, s39, v36",
                "v_lshl_add_u32 v37, v2, 4, v37", "v_lshrrev_b32 v36, 1, v3", "s_movk_i32 s39, 160", "v_mad_u32_u24 v37, v36, s39, v37")
            k.e("s_waitcnt lgkmcnt(0)")
            for t in range(2):
                for i in range(4):
                    k.e(f"v_fma_f32 v{A+4*t+i}, -v{16+i}, v{6+t}, v{A+4*t+i}")
                for i in range(4):
                    k.e(f"v_mul_f32 v{A+4*t+i}, v{20+i}, v{A+4*t+i}")
            for i in range(4):
                k.e(f"v_cvt_pk_bf16_f32 v{40+i}, v{A+2*i}, v{A+2*i+1}")
            k.e("v_mov_b32 v39, 0x3f803f80", "v_cmp_eq_u32 vcc, 8, v2", "v_cndmask_b32 v42, v42, v39, vcc", "v_cndmask_b32 v43, v43, v39, vcc")
            k.e("v_permlane32_swap_b32 v40, v42", "v_permlane32_swap_b32 v41, v43")
            k.e(ex(0x01c001c0ffffffff), "buffer_store_dwordx4 v[40:43], v37, s[16:19], s38 offen sc1", ex(-1), "v_mov_b32 v45, 0")
    k.label("a_kv_pub")
    sta(k, 5)
    lds_wait(k, LDS_NON, 1, "non")
    get_nonce(k)
    k.e("v_mov_b32 v44, s66", "v_mov_b32 v12, 0", "s_waitcnt vmcnt(0)")
    sta(k, 6)
    k.e(ex(1), "buffer_store_dwordx2 v[44:45], v12, s[16:19], s49 offen sc1", ex(-1))
    k.e("s_waitcnt vmcnt(0)")
    lds_signal(k, LDS_KVS)
    sta(k, 7)
    sta(k, 8)


def a_swave(k):
    k.e("s_setprio 3")
    k.e("s_cmp_eq_u32 s30, 7", "s_cbranch_scc1 a_s_7")
    a_wkv_dma(k)
    k.e("s_barrier", "s_branch a_s_c")
    k.label("a_s_7")
    k.e("s_mul_i32 s34, s47, 1536", "v_min_u32 v12, 11, v1", "v_lshlrev_b32 v12, 7, v12", "v_add_u32 v12, s34, v12",
        f"v_min_u32 v12, CODE_BYTES - 4, v12", "global_load_dword v18, v12, s[62:63]")
    srd(k, 56, 74, 256)
    k.e("v_mov_b32 v10, 0")
    k.e("v_min_u32 v12, 38, v1", "v_lshlrev_b32 v12, 2, v12", f"v_add_u32 v12, {LDS_RDY}, v12", "v_mov_b32 v13, 0",
        "ds_write_b32 v12, v13", "v_lshlrev_b32 v12, 2, v1", f"v_add_u32 v12, {A_SQ}, v12", "ds_write_b32 v12, v13", "ds_write_b32 v12, v13 offset:64",
        "s_waitcnt lgkmcnt(0)")
    if os.environ.get("TOUCH", "0") == "1":
        k.e("buffer_load_dword v18, v10, s[56:59], 0 offen sc1", f"s_mov_b32 s34, {FK}", "buffer_load_dword v19, v10, s[16:19], s34 offen sc1",
            f"s_mov_b32 s34, {WS_KV}", "buffer_load_dword v20, v10, s[16:19], s34 offen sc1")
    k.e("s_barrier")
    sta(k, 4)
    sta(k, 5)
    sta(k, 6)
    sta(k, 7)
    sta(k, 8)
    k.e(f"s_mov_b32 s3, {SPIN}")
    k.label("a_s_np")
    k.e("s_sleep 4", "buffer_load_dwordx2 v[14:15], v10, s[56:59], 0 offen sc1", "s_sleep 4", "buffer_load_dwordx2 v[16:17], v10, s[56:59], 0 offen sc1",
        "s_waitcnt vmcnt(1)", "v_readfirstlane_b32 s39, v14", "s_cmp_lg_u32 s39, 0", "s_cbranch_scc1 a_s_nd",
        "s_waitcnt vmcnt(0)", "v_mov_b32 v14, v16", "v_mov_b32 v15, v17", "v_readfirstlane_b32 s39, v16", "s_cmp_lg_u32 s39, 0", "s_cbranch_scc1 a_s_nd",
        "s_sub_u32 s3, s3, 1", "s_cbranch_scc0 a_s_np")
    k.label("a_s_nd")
    k.e(f"v_mov_b32 v12, {LDS_NON}", "ds_write_b64 v12, v[14:15]")
    k.label("a_s_c")
    for i in range(4):
        k.e(f"v_mov_b32 v{QONES+i}, 0x3f803f80")
    for r in range(QACC, QACC + 20):
        k.e(f"v_mov_b32 v{r}, 0")
    k.e("s_cmp_lg_u32 s30, 5", "s_cbranch_scc1 a_s_q")
    tr_addr(k, A_WKV, None, 48)
    k.e("s_waitcnt vmcnt(0)")
    lds_signal(k, LDS_KVI)
    lds_signal(k, LDS_WKI)
    lds_wait(k, LDS_WKI, 3, "wki")
    k.stamp(1)
    wkv_rd(k, 0, QX0)
    wkv_rd(k, 1, QX0 + 8)
    for s in range(18):
        if s + 2 < 18:
            wkv_rd(k, s + 2, QX0 + 8 * ((s + 2) % 3))
        k.e(f"s_waitcnt lgkmcnt({min(8, 4*(17-s))})")
        for t in range(2):
            a = r4(QACC + 4 * t)
            k.e(f"v_mfma_f32_16x16x32_bf16 {a}, {r4(QONES)}, {r4(QX0+8*(s%3)+4*t)}, {a}")
    k.e("v_lshlrev_b32 v32, 2, v2", f"v_add_u32 v32, {A_SKV}, v32", f"ds_write_b32 v32, v{QACC}", f"ds_write_b32 v32, v{QACC+4} offset:64",
        "s_waitcnt lgkmcnt(0)")
    lds_signal(k, LDS_KVS)
    k.e("s_branch a_s_done")
    k.label("a_s_q")
    k.e("s_cmp_eq_u32 s30, 7", "s_cbranch_scc1 a_s_nx", "s_waitcnt vmcnt(0)")
    lds_signal(k, LDS_KVI)
    lds_signal(k, LDS_WKI)
    if os.environ.get("DRY", "0") == "1":
        k.stamp(1)
        tr_addr(k, A_WQ0, A_WQ1, 160)
        k.e("s_setprio 0", "s_branch a_q_gemm")
    k.label("a_s_nx")
    k.stamp(1)
    k.label("a_s_done")
    k.e("s_waitcnt vmcnt(0)")


def a_helper(k):
    k.e("; ==== helper waves: wq loader, then K/V gather")
    k.e("s_setprio 1", "s_sub_u32 s31, s30, 8")
    srd(k, 20, 68, WQB)
    if os.environ.get("PFQ", "1") == "1":
        k.e("s_cmp_lg_u32 s31, 0", "s_cbranch_scc1 a_h_nopf",
            "v_min_u32 v12, 20, v1", "v_lshlrev_b32 v12, 7, v12", "s_mul_i32 s34, s2, 2592", "s_and_b32 s34, s34, 0xffffff80",
            "buffer_load_dword v21, v12, s[20:23], s34 offen", ("buffer_load_dword v21, v12, s[20:23], s34 offen offset:64" if os.environ.get("PF64") else ""))
        k.label("a_h_nopf")
    k.e("s_movk_i32 s40, 6554", "s_movk_i32 s41, 1152")
    for i in range(5):
        dma_slot_calc(k, i, 32, 33, 34, 35)
        k.e("v_min_u32 v34, 8, v34", f"v_mul_u32_u24 v{16+i}, s41, v35", f"v_lshl_add_u32 v{16+i}, v34, 4, v{16+i}")
    k.e("s_add_u32 s42, s31, s48", "s_mul_i32 s32, s29, 144", "s_mul_i32 s43, s31, 5120")

    def wdma(base):
        k.e("s_sub_u32 s36, s42, 18", "s_min_u32 s42, s42, s36", "s_mul_i32 s36, s42, 36864", "s_add_u32 s36, s36, s32")
        for i in range(5):
            k.e(f"s_add_u32 m0, s43, {base + i*1024}", "s_nop 0", f"buffer_load_dwordx4 v{16+i}, s[20:23], s36 offen lds")
        k.e("s_add_u32 s42, s42, 4")
    k.e("s_barrier")
    wdma(A_WQ0)
    wdma(A_WQ0 + 20480)
    k.e("s_waitcnt vmcnt(0)")
    lds_signal(k, LDS_WQC)
    sta(k, 3)
    lds_wait(k, LDS_XC, 4, "xc")
    k.e("s_setprio 3")
    k.stamp(1)
    wdma(A_WQ1)
    wdma(A_WQ1 + 20480)
    k.e("s_cmp_ge_u32 s31, 2", "s_cbranch_scc1 a_h_skip")
    wdma(A_WQ1 + 40960)
    k.label("a_h_skip")
    for ci, n in ((1, 5), (2, 0)):
        k.e(f"s_waitcnt vmcnt({n})")
        lds_signal(k, LDS_WQC + 4 * ci)
        sta(k, 3 + ci)
    lds_wait(k, LDS_KVS, 3, "pub")
    get_nonce(k)
    sta(k, 6)
    k.e("v_lshrrev_b32 v10, 3, v1", "v_lshlrev_b32 v10, 7, v10", "v_and_b32 v9, 7, v1", "v_lshl_add_u32 v10, v9, 3, v10",
        "s_lshl_b32 s34, s31, 10", f"s_add_u32 s35, s34, {FK}")
    poll(k, 10, 35, 14, "k", sleep=int(os.environ.get("KSL", "10")), lo_only=True, first=int(os.environ.get("KF", "0")))
    sta(k, 7)
    k.e(f"v_mov_b32 v12, {LDS_KMX}", "ds_max_u32 v12, v15")
    lds_signal(k, LDS_KVR)
    k.e("s_lshr_b32 s35, s2, 3", "s_add_u32 s35, s35, s2", "s_and_b32 s35, s35, 15", f"s_mul_i32 s35, s35, {GRP}", "s_add_u32 s35, s35, s34",
        f"v_add_u32 v10, {WS_KV}, v11")
    lds_wait(k, LDS_KVR, 4, "kvr")
    k.e("s_or_b32 s36, s2, s31", "s_cmp_lg_u32 s36, 0", "s_cbranch_scc1 a_h_noclr")
    srd(k, 56, 74, 256)
    k.e("v_mov_b32 v12, 0", "v_mov_b32 v13, 0", ex(1), "buffer_store_dwordx2 v[12:13], v12, s[56:59], 0 offen sc1", ex(-1))
    k.label("a_h_noclr")
    sta(k, 8)
    kv_dma(k, 0, 7)


def gen_one(name):
    k = Kernel(name, vgprs=168)
    k.e("s_getpc_b64 s[62:63]")
    k.label("mega_pc")
    k.e("s_cmp_ge_u32 s2, 256", "s_cbranch_scc1 mega_end")
    k.e("s_memrealtime s[60:61]")
    k.e("s_load_dwordx2 s[10:11], s[0:1], 0", "s_load_dwordx4 s[68:71], s[0:1], 8", "s_load_dwordx2 s[72:73], s[0:1], 24",
        "s_load_dwordx2 s[8:9], s[0:1], 32", "s_load_dwordx4 s[4:7], s[0:1], 48", "s_load_dwordx2 s[14:15], s[0:1], 64",
        "s_load_dwordx2 s[74:75], s[0:1], 72", "s_load_dwordx2 s[12:13], s[0:1], 80")
    k.stamp(0)
    k.e("v_and_b32 v1, 63, v0", "v_and_b32 v2, 15, v0", "v_bfe_u32 v3, v0, 4, 2", "v_lshrrev_b32 v7, 6, v0",
        "v_lshlrev_b32 v11, 4, v1", "v_readfirstlane_b32 s30, v7")
    k.e("s_and_b32 s46, s2, 7", "s_lshr_b32 s47, s2, 3", "s_and_b32 s28, s47, 24", "s_add_u32 s28, s28, s46", "s_and_b32 s29, s47, 7",
        "s_lshr_b32 s48, s47, 3", "s_lshl_b32 s48, s48, 1", "s_add_u32 s48, s48, s29", "s_sub_u32 s34, s48, 9", "s_min_u32 s48, s48, s34",
        "s_lshl_b32 s48, s48, 1")
    k.e("s_xor_b32 s34, s30, 7", "s_or_b32 s34, s34, s2", "s_waitcnt lgkmcnt(0)", "s_cbranch_scc1 a_s_nn")
    k.e("s_or_b32 s60, s60, 1", "v_mov_b32 v14, s60", "v_mov_b32 v15, s61", "v_mov_b32 v10, 0", ex(1),
        "global_store_dwordx2 v10, v[14:15], s[74:75] sc1", ex(-1))
    k.label("a_s_nn")
    srd(k, 16, 12, WS_END)
    srd(k, 20, 10, XB)
    srd(k, 24, 8, WQB)
    k.e("s_cmp_ge_u32 s30, 8", "s_cbranch_scc1 mega_helper")
    k.e("s_cmp_ge_u32 s30, 5", "s_cbranch_scc1 a_sw", "s_cmp_eq_u32 s30, 4", "s_cbranch_scc1 a_kvw")
    a_qwave(k)
    k.e("s_branch a_done")
    k.label("a_kvw")
    a_kvwave(k)
    k.e("s_branch a_s_done")
    k.label("a_sw")
    a_swave(k)
    k.label("a_done")
    k.e("s_setprio 3")
    k.e("s_mov_b32 s52, 0")
    attention(k)
    k.e("s_cmp_lg_u32 s52, 0", "s_cbranch_scc1 mega_ringed")
    ffn_ring_start(k)
    k.label("mega_ringed")
    lds_wait(k, LDS_ORD, 4, "ord2", sleep=4)
    if os.environ.get("PF1", "1") == "1":
        k.e("s_cmp_ge_u32 s30, 2", "s_cbranch_scc1 mega_nopf1",
            "s_mul_i32 s36, s30, 54", "v_min_u32 v12, 53, v1", "v_add_u32 v12, s36, v12", "s_movk_i32 s36, 7282", "v_mul_u32_u24 v13, s36, v12",
            "v_lshrrev_b32 v13, 16, v13", "v_mul_u32_u24 v14, 9, v13", "v_sub_u32 v12, v12, v14", "v_lshlrev_b32 v12, 7, v12",
            f"s_mov_b32 s36, {STREAM}", "v_mad_u32_u24 v12, v13, s36, v12",
            f"s_mul_i32 s36, s46, {1296*1024}", "s_mul_i32 s37, s47, 1152", "s_add_u32 s36, s36, s37", f"s_add_u32 s36, s36, {WS_W + 6*T*1024}",
            "buffer_load_dword v0, v12, s[16:19], s36 offen sc1", ("buffer_load_dword v0, v12, s[16:19], s36 offen offset:64 sc1" if os.environ.get("PF64") else ""))
        k.label("mega_nopf1")
    for t in range(T):
        k.e(wload(D - 1, t))
    k.e("s_waitcnt vmcnt(0)")
    stb(k, 4)
    k.e("s_branch ffn_join")
    k.label("mega_helper")
    a_helper(k)
    helper_pack(k)
    oproj(k)
    ffn(k)
    k.label("mega_end")
    k.e("s_endpgm", ".set CODE_BYTES, mega_end - mega_pc")
    return k
```

```python
import os
from asmlib import Kernel
from layout import *
from k_small import f2u, srd, ex, reduce_g_add, dma_slot_calc

S0, S1, OA, P, KF, V0, V1, K2F, Q, Q2E, Q2O = 16, 32, 48, 64, 72, 76, 80, 84, 88, 92, 94
T0 = 96
PIN, POUT, PS = 48, 96, 144
LDS_OST = 151808
LDS_RES = 92160
LDS_WO = 0
LDS_H = 73728
LDS_S = 161024
LDS_RDY = 163328
LDS_CNT = 163344
LDS_WQC = 163392
LDS_KVS = LDS_WQC + 12
LDS_KVR = LDS_WQC + 16
LDS_KMX = LDS_WQC + 20
LDS_KVI = LDS_WQC + 24
LDS_XC = LDS_WQC + 28
LDS_WKI = LDS_WQC + 32
LDS_REL = LDS_WQC + 36
LDS_NON = LDS_WQC + 40
LDS_ORD = LDS_WQC + 48
LDS_IMG = LDS_WQC + 52
LDS_MUS = LDS_WQC + 56
LDS_SRD = LDS_WQC + 60
LDS_QRD = LDS_WQC + 64
LDS_WDN = LDS_WQC + 72
LDS_IM0 = LDS_WQC + 76
LDS_HRD = LDS_WQC + 80
LDS_MU = LDS_OST
LDS_MEGA = 163488
A_WKV = 0
A_WQ0 = 29696
A_X = 70656
A_WQ1 = A_X + 18432
A_SQ = LDS_S
A_SKV = LDS_S + 320
A_ST = LDS_S + 448
QX0, QACC, QWF, QONES = 48, 120, 140, 36
QACS = [16, 20, 24, 40, 44]
OX0, OACC, OWF = 96, 48, 68
XB0, ACC, WR = 16, 48, 96
D = 6
T = 3
STREAM = 36 * T * 1024
SPIN = 1 << 16
PSX, PSY = 73728, 589824
RX = RST = 0
if os.environ.get("CMP", "0") == "1":
    _d = -WS_FL
    F1, F2, FP, F3, FK = F1 + _d, F2 + _d, FP + _d, F3 + _d, FK + _d
    WS_KV, WS_SP, WS_W = 0x10000, 0x40000, 0x60000
    _R0, _RS = 0xA80000, 10 * 73728 + 4096
    WS_O, WS_H, WS_P, WS_ST = _R0, _R0 + 73728, _R0 + 2 * 73728, _R0 + 10 * 73728
    PSY, RX, RST = _RS, _RS - 73728, _RS - 4096
STA = bool(os.environ.get("STA"))


def sta(k, i):
    if STA:
        k.stamp(i)


STP = bool(os.environ.get("STP"))


def stb(k, i):
    if not STA and not STP and not (STT and i < 7) and not (STO and i > 6):
        k.stamp(i)


STT = bool(os.environ.get("STT"))


def stt(k, i):
    if STT:
        k.stamp(i)


STO = bool(os.environ.get("STO"))


def sto(k, i):
    if STO:
        k.stamp(i)


def stp(k, i):
    if STP:
        k.stamp(i)
WAUX = os.environ.get("WAUX", "sc1")


def r4(b):
    return f"v[{b}:{b+3}]"


def r16(b):
    return f"v[{b}:{b+15}]"


def poll(k, vaddr, soff, vtmp, tag, sleep=2, lo_only=False, first=0):
    lab, done = f"mega_poll_{tag}", f"mega_polld_{tag}"
    k.e(f"s_mov_b32 s3, {SPIN}")
    if first:
        k.e(f"s_sleep {first}")
    k.label(lab)
    k.e(f"s_sleep {sleep}", f"buffer_load_dwordx2 v[{vtmp}:{vtmp+1}], v{vaddr}, s[16:19], s{soff} offen sc1", "s_waitcnt vmcnt(0)")
    if lo_only:
        k.e(f"v_cmp_eq_u32 vcc, s66, v{vtmp}")
    else:
        k.e(f"v_cmp_eq_u64 vcc, s[66:67], v[{vtmp}:{vtmp+1}]")
    k.e("s_cmp_eq_u64 vcc, -1", f"s_cbranch_scc1 {done}", "s_sub_u32 s3, s3, 1", f"s_cbranch_scc0 {lab}")
    k.label(done)


def set_flag(k, soff):
    k.e("v_mov_b32 v12, 0", "v_mov_b32 v14, s66", "v_mov_b32 v15, s67", ex(1),
        f"buffer_store_dwordx2 v[14:15], v12, s[16:19], s{soff} offen sc1", ex(-1))


def lds_signal(k, addr, va=12, vb=13):
    k.e(f"v_mov_b32 v{va}, {addr}", f"v_mov_b32 v{vb}, 1", ex(1), f"ds_add_u32 v{va}, v{vb}", ex(-1))


def lds_wait(k, addr, n, tag, va=12, vb=13, sleep=int(os.environ.get("LWS", "1"))):
    lab, done = f"mega_lw_{tag}", f"mega_lwd_{tag}"
    k.e(f"v_mov_b32 v{va}, {addr}", f"s_mov_b32 s3, {SPIN*8}")
    k.label(lab)
    k.e(f"ds_read_b32 v{vb}, v{va}", "s_waitcnt lgkmcnt(0)", f"v_readfirstlane_b32 s39, v{vb}", f"s_cmp_ge_u32 s39, {n}",
        f"s_cbranch_scc1 {done}", f"s_sleep {sleep}", "s_sub_u32 s3, s3, 1", f"s_cbranch_scc0 {lab}")
    k.label(done)


def arrive(k, cnt, n, soff, tag, cnt_sgpr=None):
    if cnt_sgpr is None:
        k.e(f"v_mov_b32 v12, {LDS_CNT + 4*cnt}")
    else:
        k.e(f"v_mov_b32 v12, s{cnt_sgpr}")
    k.e("v_mov_b32 v13, 1", ex(1), "ds_add_rtn_u32 v14, v12, v13", ex(-1), "s_waitcnt lgkmcnt(0)",
        "v_readfirstlane_b32 s3, v14", f"s_cmp_lg_u32 s3, {n-1}", f"s_cbranch_scc1 mega_arr_{tag}")
    set_flag(k, soff)
    k.label(f"mega_arr_{tag}")


def publish_o(k, tag, pre=None):
    k.e("s_and_b32 s34, s30, 3", "s_lshr_b32 s35, s30, 2", "s_mul_i32 s36, s34, 2304", "s_mul_i32 s37, s35, 768",
        "s_add_u32 s36, s36, s37", f"s_add_u32 s36, s36, {LDS_OST}", "v_add_u32 v12, s36, v11",
        f"ds_read_b128 {r4(4)}, v12")
    k.e("s_lshl_b32 s36, s28, 2", "s_add_u32 s36, s36, s34", "s_mul_i32 s38, s36, 18432", "s_mul_i32 s39, s29, 2304",
        "s_add_u32 s38, s38, s39", "s_add_u32 s38, s38, s37", f"s_add_u32 s38, s38, {WS_O}", f"s_mul_i32 s39, s28, {RX}", "s_add_u32 s38, s38, s39")
    k.e("s_lshl_b32 s36, s28, 7", "s_lshl_b32 s39, s29, 3", "s_add_u32 s36, s36, s39", f"s_add_u32 s36, s36, {F1}")
    k.e("s_waitcnt lgkmcnt(0)", ex((1 << 48) - 1), f"buffer_store_dwordx4 {r4(4)}, v11, s[16:19], s38 offen sc1", ex(-1),
        "s_waitcnt vmcnt(0)")
    arrive(k, 1, 12, 36, tag)
    if pre:
        pre(k)


def attention(k):
    k.e("; ==== attention (waves 0..7; one (head, 32-query) unit each). S^T = K.Q^T - M comes straight out of the MFMAs:")
    k.e("v_and_b32 v2, 31, v1", "v_lshrrev_b32 v3, 5, v1")
    k.e("s_lshr_b32 s35, s30, 2", "s_mul_i32 s35, s35, 4608", f"s_add_u32 s35, s35, {LDS_OST}", "s_movk_i32 s36, 2304",
        "v_lshrrev_b32 v8, 4, v2", "v_mul_u32_u24 v8, s36, v8", "v_and_b32 v9, 15, v2", "v_lshl_add_u32 v8, v9, 4, v8",
        "v_add_u32 v8, s35, v8", "v_lshl_add_u32 v9, v3, 8, v8", "s_and_b32 s37, s30, 3", "s_mul_i32 s37, s37, 18")
    for i in range(4):
        k.e(f"s_add_u32 s38, s37, {2*i}", "s_lshr_b32 s39, s38, 3", "s_lshl_b32 s39, s39, 8", "s_and_b32 s38, s38, 7",
            "s_lshl_b32 s38, s38, 1", "s_add_u32 s38, s38, s39", f"v_add_u32 v{Q+i}, s38, v9")
        if i == 0:
            k.e(f"v_add_u32 v{T0}, s38, v8")
    k.e(f"v_mov_b32 v{T0+2}, {LDS_KMX}")
    k.e("v_mov_b32 v12, v11")
    k.e("v_cmp_eq_u32 vcc, 28, v2", "v_cndmask_b32 v13, v2, 18, vcc",
        "v_cmp_lt_u32 vcc, 18, v13", "v_mov_b32 v14, 0x10000", "v_cndmask_b32 v13, v13, v14, vcc",
        "s_movk_i32 s40, 304", "v_mul_u32_u24 v14, s40, v3", "v_lshl_add_u32 v13, v13, 4, v14", f"v_add_u32 v13, {KV_V}, v13")
    k.e("v_min_u32 v14, 32, v1", "v_lshlrev_b32 v14, 4, v14", f"v_add_u32 v14, {KV_K2}, v14")
    k.e("v_cmp_eq_u32 s[44:45], 1, v3")
    k.e("s_lshr_b32 s35, s30, 2", "s_lshl_b32 s35, s35, 2", f"s_add_u32 s35, s35, {LDS_QRD}")
    def zero_init():
        for r in list(range(OA, OA + 16)) + list(range(P, P + 8)) + list(range(V1, V1 + 4)):
            k.e(f"v_mov_b32 v{r}, 0")

    def setm():
        k.e(f"v_xor_b32 v{T0+2}, 0x80000000, v{T0+1}",
            f"v_and_b32 v{T0+3}, 0xffff0000, v{T0+2}", f"v_sub_f32 v{T0+2}, v{T0+2}, v{T0+3}",
            f"v_and_b32 v{T0+4}, 0xffff0000, v{T0+2}", f"v_sub_f32 v{T0+2}, v{T0+2}, v{T0+4}",
            f"v_lshrrev_b32 v{T0+3}, 16, v{T0+3}", f"v_or_b32 v{T0+3}, v{T0+3}, v{T0+4}",
            f"v_lshrrev_b32 v{T0+2}, 16, v{T0+2}")
        k.e(f"v_cndmask_b32 v{Q2E}, v{T0}, v{T0+3}, s[44:45]", f"v_cndmask_b32 v{Q2E+1}, 0, v{T0+2}, s[44:45]",
            f"v_cndmask_b32 v{Q2O}, 0, v{T0+3}, s[44:45]", f"v_cndmask_b32 v{Q2O+1}, v{T0}, v{T0+2}, s[44:45]")
    zero_init()
    k.e("v_mov_b32 v4, v12", "v_mov_b32 v5, v13", "v_mov_b32 v6, v14", "s_mov_b32 s32, 0", "s_mov_b32 s31, 2")
    sta(k, 4)
    lds_wait(k, LDS_IM0, 4, "im0", va=T0 + 6, vb=T0 + 7)
    k.e(f"ds_read_b32 v{T0+2}, v{T0+2}", f"v_mov_b32 v{T0+6}, {LDS_NON}", f"ds_read_b64 v[{T0+8}:{T0+9}], v{T0+6}",
        f"ds_read_b128 {r4(KF)}, v4", f"ds_read_b128 {r4(K2F)}, v6", f"ds_read_b128 {r4(V0)}, v5")
    sta(k, 5)
    lds_wait(k, "s35", 2, "qrd", va=T0 + 6, vb=T0 + 7)
    sta(k, 6)
    for i in range(4):
        k.e(f"ds_read_b32 v{Q+i}, v{Q+i}")
    k.e(f"ds_read_b32 v{T0}, v{T0} offset:512", f"v_readfirstlane_b32 s66, v{T0+8}", f"v_readfirstlane_b32 s67, v{T0+9}",
        f"v_mul_f32 v{T0+2}, {hex(f2u(1.02*1.02))}, v{T0+2}", f"v_mov_b32 v{T0+1}, 0", "s_waitcnt lgkmcnt(0)")
    k.e(f"v_cndmask_b32 v{T0}, v{T0}, 0, s[44:45]")
    for r in (Q, Q + 1, Q + 2, Q + 3, T0):
        k.e(f"v_dot2c_f32_bf16 v{T0+1}, v{r}, v{r}")
    k.e(f"v_mfma_f32_32x32x16_bf16 {r16(S0)}, {r4(KF)}, {r4(Q)}, 0", f"ds_read_b128 {r4(KF)}, v4 offset:1024")
    k.e(f"v_mov_b32 v{T0+4}, v{T0+1}", f"v_permlane32_swap_b32 v{T0+1}, v{T0+4}", f"v_add_f32 v{T0+1}, v{T0+1}, v{T0+4}")
    k.e(f"v_mul_f32 v{T0+1}, v{T0+1}, v{T0+2}", f"v_sqrt_f32 v{T0+1}, v{T0+1}")
    setm()
    k.e("s_setprio 2", "s_branch attn_go")
    k.label("attn_setm")
    setm()
    k.e("v_mov_b32 v4, v12", "v_mov_b32 v5, v13", "v_mov_b32 v6, v14")
    k.e("s_cmp_eq_u32 s32, 10", "s_cbranch_scc1 attn_maxpass")
    zero_init()
    k.e("s_mov_b32 s31, 16")
    k.e(f"ds_read_b128 {r4(KF)}, v4", f"ds_read_b128 {r4(K2F)}, v6", f"ds_read_b128 {r4(V0)}, v5", "s_waitcnt lgkmcnt(0)")
    k.e(f"v_mfma_f32_32x32x16_bf16 {r16(S0)}, {r4(KF)}, {r4(Q)}, 0", f"ds_read_b128 {r4(KF)}, v4 offset:1024")
    k.label("attn_go")
    k.e(f"v_mfma_f32_32x32x8_bf16 {r16(S0)}, v[{K2F}:{K2F+1}], v[{Q2E}:{Q2E+1}], {r16(S0)}")
    k.stamp(2)
    k.e("s_waitcnt lgkmcnt(0)", "s_nop 7", "s_nop 3")
    k.e(".p2align 6")
    k.label("attn_loop")
    for tau in range(4):
        cur, nxt = (S0, S1) if tau % 2 == 0 else (S1, S0)
        t1 = (tau + 1) % 4
        koff = (tau + 2) * 1024 if tau < 2 else GRP + (tau - 2) * 1024
        v0off = (tau + 1) * 1216 if tau < 3 else GRP

        def ex_(a, b):
            for i in range(a, b):
                k.e(f"v_exp_f32 v{cur+i}, v{cur+i}")

        def cv(a, b):
            for i in range(a, b):
                k.e(f"v_cvt_pk_bf16_f32 v{P+i}, v{cur+2*i}, v{cur+2*i+1}")
        e1, e2, e3, e4 = eval(os.environ.get("EXS", "(3, 6, 9, 12)"))
        k.e("s_waitcnt lgkmcnt(2)")
        k.e(f"v_mfma_f32_32x32x16_bf16 {r16(nxt)}, {r4(KF)}, {r4(Q)}, 0")
        k.e(f"ds_read_b128 {r4(KF)}, v4 offset:{koff}")
        ex_(0, e1)
        k.e("s_waitcnt lgkmcnt(2)")
        k.e(f"v_mfma_f32_32x32x16_bf16 {r16(OA)}, {r4(V1)}, {r4(P+4)}, {r16(OA)}")
        k.e(f"ds_read_b128 {r4(V1)}, v5 offset:{tau*1216+608}")
        ex_(e1, e2)
        q2 = Q2E if t1 % 2 == 0 else Q2O
        kk = K2F + 2 * (t1 // 2)
        k.e(f"v_mfma_f32_32x32x8_bf16 {r16(nxt)}, v[{kk}:{kk+1}], v[{q2}:{q2+1}], {r16(nxt)}")
        if tau == 2:
            k.e(f"ds_read_b128 {r4(K2F)}, v6 offset:{GRP}")
        ex_(e2, e3)
        cv(0, 4)
        ex_(e3, e4)
        k.e("s_waitcnt lgkmcnt(2)")
        k.e(f"v_mfma_f32_32x32x16_bf16 {r16(OA)}, {r4(V0)}, {r4(P)}, {r16(OA)}")
        k.e(f"ds_read_b128 {r4(V0)}, v5 offset:{v0off}")
        ex_(e4, 16)
        if tau == 3:
            k.e(f"v_add_u32 v4, {GRP}, v4", f"v_add_u32 v5, {GRP}, v5", f"v_add_u32 v6, {GRP}, v6")
            k.e("s_sub_u32 s31, s31, 1", "s_cmp_lg_u32 s31, 0")
        cv(4, 8)
    k.e("s_cbranch_scc1 attn_loop")
    k.e("s_cmp_ge_u32 s32, 4", "s_cbranch_scc1 attn_tail")
    k.e("s_add_u32 s32, s32, 1")
    k.e("s_cmp_eq_u32 s32, 2", "s_cbranch_scc1 attn_ph2", "s_cmp_eq_u32 s32, 3", "s_cbranch_scc1 attn_ph3",
        "s_cmp_eq_u32 s32, 4", "s_cbranch_scc1 attn_ph4")
    lds_wait(k, LDS_IMG, 4, "img", va=T0 + 6, vb=T0 + 7)
    k.e("s_mov_b32 s31, 9", "s_branch attn_loop")
    for ph, cnt, pr in eval(os.environ.get("PHS", "((2, 2, 1), (3, 2, 1), (4, 1, 0))")):
        k.label(f"attn_ph{ph}")
        k.e(f"s_setprio {pr}", f"s_mov_b32 s31, {cnt}")
        if ph == 2:
            k.e(f"v_cndmask_b32 v{T0+5}, v{OA+10}, v{OA+12}, s[44:45]", f"v_cmp_le_f32 vcc, {hex(f2u(2.0**-40))}, v{T0+5}",
                "s_cmp_eq_u64 vcc, -1", "s_cselect_b32 s34, 1, 0x101", f"v_mov_b32 v{T0+6}, {LDS_REL}", f"v_mov_b32 v{T0+7}, s34",
                ex(1), f"ds_add_u32 v{T0+6}, v{T0+7}", ex(-1))
        if ph == 4:
            k.e(f"v_mov_b32 v{T0+6}, {LDS_RDY}", f"ds_read_b32 v{T0+6}, v{T0+6}", "s_waitcnt lgkmcnt(0)",
                f"v_readfirstlane_b32 s52, v{T0+6}", "s_cmp_eq_u32 s52, 0", "s_cbranch_scc1 attn_loop")
            ffn_ring_start(k)
        k.e("s_branch attn_loop")
    k.label("attn_maxpass")
    k.e(f"v_mov_b32 v{T0+1}, 0xff800000", "s_mov_b32 s31, 16")
    k.label("attn_maxloop")
    k.e(f"ds_read_b128 {r4(K2F)}, v6")
    for tau in range(4):
        q2 = Q2E if tau % 2 == 0 else Q2O
        kk = K2F + 2 * (tau // 2)
        k.e(f"ds_read_b128 {r4(KF)}, v4 offset:{tau*1024}", "s_waitcnt lgkmcnt(0)")
        k.e(f"v_mfma_f32_32x32x16_bf16 {r16(S0)}, {r4(KF)}, {r4(Q)}, 0",
            f"v_mfma_f32_32x32x8_bf16 {r16(S0)}, v[{kk}:{kk+1}], v[{q2}:{q2+1}], {r16(S0)}")
        for i in range(8):
            k.e(f"v_max3_f32 v{T0+1}, v{S0+2*i}, v{S0+2*i+1}, v{T0+1}")
    k.e(f"v_add_u32 v4, {GRP}, v4", f"v_add_u32 v6, {GRP}, v6", "s_sub_u32 s31, s31, 1", "s_cmp_lg_u32 s31, 0",
        "s_cbranch_scc1 attn_maxloop")
    k.e(f"v_mov_b32 v{T0+2}, v{T0+1}", f"v_permlane32_swap_b32 v{T0+1}, v{T0+2}", f"v_max_f32 v{T0+1}, v{T0+1}, v{T0+2}")
    k.e("s_mov_b32 s32, 11", "s_branch attn_setm")
    k.label("attn_tail")
    k.e("s_waitcnt lgkmcnt(0)")
    k.e(f"v_mfma_f32_32x32x16_bf16 {r16(OA)}, {r4(V1)}, {r4(P+4)}, {r16(OA)}")
    k.e("s_and_b32 s34, s30, 3", "s_mul_i32 s34, s34, 18", "s_lshr_b32 s35, s30, 2", "s_mul_i32 s35, s35, 4608",
        f"s_add_u32 s35, s35, {LDS_OST}", "s_movk_i32 s36, 2304",
        f"v_lshrrev_b32 v{T0+9}, 4, v2", f"v_mul_u32_u24 v{T0+9}, s36, v{T0+9}", f"v_and_b32 v{T0+8}, 15, v2",
        f"v_lshl_add_u32 v{T0+9}, v{T0+8}, 4, v{T0+9}", f"v_add_u32 v{T0+9}, s35, v{T0+9}")
    k.e(f"v_lshl_add_u32 v{T0+6}, v3, 2, s34", f"v_add_u32 v{T0+7}, 2, v{T0+6}")
    for r in (T0 + 6, T0 + 7):
        k.e(f"v_lshrrev_b32 v{T0+8}, 3, v{r}", f"v_and_b32 v{r}, 7, v{r}", f"v_lshl_add_u32 v{r}, v{r}, 1, v{T0+9}",
            f"v_lshl_add_u32 v{r}, v{T0+8}, 8, v{r}")
    k.e(f"v_cndmask_b32 v{T0+5}, v{OA+10}, v{OA+12}, s[44:45]")
    k.e(f"v_cmp_le_f32 vcc, {hex(f2u(2.0**-40))}, v{T0+5}")
    k.e("s_cmp_eq_u32 s32, 11", "s_cbranch_scc1 attn_fin")
    k.e("s_cmp_eq_u64 vcc, -1", "s_cbranch_scc1 attn_fin")
    k.e("s_mov_b32 s32, 10", f"v_mov_b32 v{T0+1}, 0", "s_branch attn_setm")
    k.label("attn_fin")
    k.e(f"v_rcp_f32 v{T0+5}, v{T0+5}")
    for i in range(10):
        k.e(f"v_mul_f32 v{OA+i}, v{T0+5}, v{OA+i}")
    for i in range(5):
        k.e(f"v_cvt_pk_bf16_f32 v{P+i}, v{OA+2*i}, v{OA+2*i+1}")
    k.e(f"ds_write_b32 v{T0+6}, v{P}", f"ds_write_b32 v{T0+7}, v{P+1}",
        f"ds_write_b32 v{T0+6}, v{P+2} offset:256", f"ds_write_b32 v{T0+7}, v{P+3} offset:256",
        ex(0xffffffff), f"ds_write_b32 v{T0+6}, v{P+4} offset:512", ex(-1))
    k.e("s_waitcnt lgkmcnt(0)", "s_barrier")
    stb(k, 3)
    publish_o(k, "oa")


def kv_dma(k, a, b):
    for i in range(a, b):
        k.e(f"s_add_u32 m0, s34, {i*4096}", f"s_sub_u32 s36, s35, {IMG - 4096}", "buffer_load_dwordx4 v10, s[16:19], s35 offen sc1 lds",
            "s_add_u32 s35, s35, 4096", "s_min_u32 s35, s35, s36")


NB = 7


def roll_gemm(k, steps, rd, mfma, pre=None):
    seq = [(s, t) for s in steps for t in range(5)]
    n = len(seq)
    for i in range(min(NB, n)):
        rd(seq[i][1], seq[i][0], i % NB)
    for i, (s, t) in enumerate(seq):
        ahead = min(NB - 1, n - 1 - i)
        extra = pre(s) if (pre and t == 0) else ""
        k.e(f"s_waitcnt lgkmcnt({2*ahead}){extra}")
        mfma(t, s, i % NB)
        if i + NB < n:
            rd(seq[i + NB][1], seq[i + NB][0], i % NB)


def roll_gemm2(k, steps, rd2, mf2):
    seq = [(s, t) for s in steps for t in range(5)]
    n = len(seq)
    for i in range(min(NB, n)):
        k.e(*rd2(seq[i][1], seq[i][0], i % NB))
    for i, (s, t) in enumerate(seq):
        issued = min(n, NB + max(0, i - 1))
        k.e(f"s_waitcnt lgkmcnt({2*(issued - 1 - i)})")
        m = mf2(t, s, i % NB)
        j = i - 1 + NB
        r = rd2(seq[j][1], seq[j][0], (i - 1) % NB) if (i >= 1 and j < n) else ["", ""]
        k.e(m[0], r[0], m[1], r[1])


def helper_pack(k):
    k.e("; ==== helper waves 8..11: K/V image -> LDS, re-pack W1/W2 slice into MFMA fragment order (+ column sums of W1)")
    def dma(a, b):
        kv_dma(k, a, b)
    k.e("s_waitcnt vmcnt(0)")
    lds_signal(k, LDS_IM0)
    lds_wait(k, LDS_WDN, 4, "wdn")
    dma(7, 37)
    k.e("s_cmp_lg_u32 s31, 0", "s_cbranch_scc1 mega_h_nolast")
    k.e(ex(0xffff))
    dma(37, 38)
    k.e(ex(-1))
    k.label("mega_h_nolast")
    k.e("s_lshl_b32 s34, s31, 6", "v_add_u32 v12, s34, v1", "v_min_u32 v12, 161, v12", "v_lshlrev_b32 v12, 7, v12",
        "s_mul_i32 s34, s47, 20736")
    k.e("s_lshl_b32 s50, s31, 5", "s_add_u32 s50, s50, s47",
        "s_cmp_ge_u32 s50, 54", "s_cselect_b32 s53, 1, 0",
        "s_mul_i32 s51, s53, 54", "s_sub_u32 s51, s50, s51",
        "s_mul_i32 s54, s51, 57", "s_lshr_b32 s54, s54, 10",
        "s_mul_i32 s52, s54, 18", "s_sub_u32 s52, s51, s52",
        "s_cmp_eq_u32 s53, 0",
        "s_cselect_b32 s20, s4, s6", "s_cselect_b32 s21, s5, s7", f"s_mov_b32 s22, {hex(W1B)}", "s_mov_b32 s23, 0x00020000",
        "s_movk_i32 s56, 1152", "s_cselect_b32 s56, 9216, s56",
        "s_movk_i32 s57, 1152", "s_cselect_b32 s57, s57, 663552", "s_mul_i32 s57, s57, s46",
        "s_movk_i32 s58, 128", "s_cselect_b32 s58, 192, s58", "s_mul_i32 s58, s58, s54", "s_mul_i32 s58, s58, s56", "s_add_u32 s57, s57, s58",
        "s_lshl_b32 s58, s52, 6", "s_add_u32 s57, s57, s58")
    k.e("s_cmp_eq_u32 s53, 1", "s_cselect_b32 s58, 2, 1", "s_cselect_b32 s59, -5, 1",
        "s_mul_i32 s58, s58, s56", "s_mul_i32 s59, s59, s56", "s_mul_i32 s60, s56, 25",
        "s_lshl_b32 s55, s54, 6", "s_sub_u32 s55, 256, s55", "s_mul_i32 s55, s55, s53", "s_add_u32 s55, s55, 25", "s_mul_i32 s55, s55, s56")
    k.e("v_lshrrev_b32 v2, 4, v1", "v_lshlrev_b32 v2, 3, v2", "v_mul_u32_u24 v15, s56, v2", "v_and_b32 v3, 15, v1",
        "v_lshl_add_u32 v15, v3, 2, v15", "v_lshlrev_b32 v8, 2, v3",
        "s_mov_b32 s64, 0x05040100", "s_mov_b32 s65, 0x07060302")
    k.e(f"s_mul_i32 s62, s52, {STREAM}", f"s_mul_i32 s63, s52, {2*STREAM}", f"s_sub_u32 s63, s63, {24*STREAM - 2048}",
        "s_cmp_lt_u32 s52, 12", "s_cselect_b32 s62, s62, s63", "s_movk_i32 s61, 1024", f"s_cselect_b32 s61, s61, {STREAM}",
        "s_mul_i32 s63, s53, 3", "s_add_u32 s63, s63, s54", f"s_mul_i32 s63, s63, {6*3072}", "s_add_u32 s62, s62, s63",
        f"s_mul_i32 s63, s46, {1296*1024}", "s_add_u32 s62, s62, s63", f"s_add_u32 s62, s62, {WS_W}",
        "s_add_u32 s61, s61, s62")
    for i in range(4):
        k.e(f"v_mov_b32 v{PS+8+i}, 0x3f803f80")
    k.e("s_waitcnt vmcnt(0)")
    lds_signal(k, LDS_IMG, va=9, vb=10)
    stp(k, 3)
    k.e("buffer_load_dword v13, v12, s[24:27], s34 offen", ("buffer_load_dword v13, v12, s[24:27], s34 offen offset:64" if os.environ.get("PF64") else ""))
    k.e("s_cmp_ge_u32 s50, 108", "s_cbranch_scc1 mega_h_nounit")
    for ss in range(6):
        for jj in range(8):
            k.e(f"buffer_load_dword v{PIN+8*ss+jj}, v15, s[20:23], s57 offen {os.environ.get('PKL', '')}",
                f"s_add_u32 s57, s57, s{(55 if ss == 3 else 60) if jj == 7 else (56 if ss < 4 else (59 if jj == 3 else 58))}")
    stp(k, 4)
    for ss in range(6):
        k.e(f"s_waitcnt vmcnt({40 - 8*ss + 2*ss})")
        if ss in (0, 5):
            stp(k, 5 if ss == 0 else 6)
        for e in range(2):
            for q in range(4):
                k.e(f"v_perm_b32 v{POUT+8*ss+4*e+q}, v{PIN+8*ss+2*q+1}, v{PIN+8*ss+2*q}, s{64+e}")
            k.e(f"buffer_store_dwordx4 {r4(POUT+8*ss+4*e)}, v11, s[16:19], s{62-e} offen sc1", f"s_add_u32 s{62-e}, s{62-e}, 3072")
    stp(k, 7)
    k.e("s_cmp_lg_u32 s53, 0", "s_cbranch_scc1 mega_h_nounit")
    for ss in range(6):
        for e in range(2):
            k.e(f"v_mfma_f32_16x16x32_bf16 {r4(PS+4*e)}, {r4(PS+8)}, {r4(POUT+8*ss+4*e)}, {r4(PS+4*e) if ss else 0}")
    k.e("s_mul_i32 s58, s54, 18432", "s_mul_i32 s59, s46, 2304", "s_add_u32 s58, s58, s59", "s_lshl_b32 s59, s52, 7",
        "s_add_u32 s58, s58, s59", f"s_add_u32 s58, s58, {WS_SP}")
    k.e(ex(0xffff), f"buffer_store_dword v{PS}, v8, s[16:19], s58 offen sc1",
        f"buffer_store_dword v{PS+4}, v8, s[16:19], s58 offen offset:64 sc1", ex(-1))
    k.label("mega_h_nounit")
    k.e("s_waitcnt vmcnt(0)", "s_lshl_b32 s34, s46, 9", f"s_add_u32 s36, s34, {FP}", "s_lshr_b32 s35, s47, 3", "s_lshl_b32 s35, s35, 7",
        "s_add_u32 s34, s36, s35", "s_lshl_b32 s35, s29, 3", "s_add_u32 s34, s34, s35")
    k.stamp(2)
    arrive(k, 0, 4, 34, "p")
    k.e("s_cmp_lg_u32 s31, 3", "s_cbranch_scc1 mega_h_nofp")
    lds_wait(k, LDS_QRD, 2, "qa")
    lds_wait(k, LDS_QRD + 4, 2, "qb")
    k.e("v_bfe_u32 v12, v1, 3, 2", "v_lshlrev_b32 v12, 7, v12", "v_and_b32 v13, 7, v1", "v_lshl_add_u32 v12, v13, 3, v12")
    poll(k, 12, 36, 14, "p", sleep=16)
    k.e("v_add_u32 v13, 128, v1", "v_min_u32 v13, 143, v13", "v_lshlrev_b32 v13, 4, v13",
        "s_mul_i32 s34, s46, 2304", f"s_add_u32 s34, s34, {WS_SP}")
    for i in range(3):
        k.e(f"buffer_load_dwordx4 {r4(PIN+12*i)}, v11, s[16:19], s34 offen sc1", f"buffer_load_dwordx4 {r4(PIN+12*i+4)}, v11, s[16:19], s34 offen offset:1024 sc1",
            f"buffer_load_dwordx4 {r4(PIN+12*i+8)}, v13, s[16:19], s34 offen sc1", "s_add_u32 s34, s34, 18432")
    k.e(f"v_mov_b32 v14, {LDS_RDY}", "v_mov_b32 v15, 1", "ds_write_b32 v14, v15")
    k.e("v_lshlrev_b32 v14, 7, v1", "v_and_b32 v15, 3, v1", "v_lshlrev_b32 v15, 7, v15",
        f"s_mul_i32 s34, s46, {1296*1024}", "s_mul_i32 s35, s47, 41472", "s_add_u32 s34, s34, s35", f"s_add_u32 s34, s34, {WS_W}")
    for i in range(6):
        if os.environ.get("PF64"):
            k.e(f"buffer_load_dword v{POUT+i}, v{14 if i < 5 else 15}, s[16:19], s34 offen offset:64 sc1")
        k.e(f"buffer_load_dword v{POUT+i}, v{14 if i < 5 else 15}, s[16:19], s34 offen sc1", "s_add_u32 s34, s34, 8192")
    k.e(f"v_add_u32 v12, {LDS_S}, v11", f"v_add_u32 v13, {LDS_S}, v13", "s_waitcnt vmcnt(6)")
    for i in range(1, 3):
        for c in range(12):
            k.e(f"v_add_f32 v{PIN+c}, v{PIN+c}, v{PIN+12*i+c}")
    k.e(f"ds_write_b128 v12, {r4(PIN)}", f"ds_write_b128 v12, {r4(PIN+4)} offset:1024", f"ds_write_b128 v13, {r4(PIN+8)}",
        "s_waitcnt lgkmcnt(0)")
    k.label("mega_h_nofp")


def wo_dma(k, tag):
    k.e("s_mul_i32 s32, s29, 144", "s_lshl_b32 s42, s29, 1", "s_add_u32 s42, s42, s31",
        "s_mul_i32 s43, s31, 5120", f"s_add_u32 s43, s43, {LDS_WO}")

    k.e("s_cmp_eq_u32 s31, 3", f"s_cbranch_scc1 mega_o_skip{tag}")
    for grp in range(6):
        k.e("s_sub_u32 s36, s42, 18", "s_min_u32 s42, s42, s36", "s_mul_i32 s36, s42, 36864", "s_add_u32 s36, s36, s32")
        for i in range(5):
            k.e(f"s_add_u32 m0, s43, {grp*3*5120 + i*1024}", "s_nop 0", f"buffer_load_dwordx4 v{16+i}, s[24:27], s36 offen lds")
        k.e("s_add_u32 s42, s42, 3")
    k.label(f"mega_o_skip{tag}")
    srd(k, 56, 10, XB)
    k.e("s_add_u32 s35, s49, s32")
    for i in range(3):
        if i == 2:
            k.e(ex(0xffffffff))
        k.e(f"s_add_u32 m0, s44, {i*1024}", "s_nop 0", f"buffer_load_dwordx4 v{16+i}, s[56:59], s35 offen lds")
    k.e(ex(-1), "s_waitcnt vmcnt(0)")
    for t in range(5):
        k.e(f"ds_read_b64 v[{36+2*t}:{37+2*t}], v21 offset:{32*t}")
    k.e("s_cmp_eq_u32 s31, 3", f"s_cbranch_scc1 mega_c_skip{tag}")
    k.e("v_add_u32 v32, s43, v28", "v_add_u32 v33, s43, v29", "v_add_u32 v34, s43, v11", "s_mov_b32 s36, 6")
    k.label(f"mega_conv{tag}")
    for t in range(5):
        k.e(f"ds_read_b64_tr_b16 v[{OWF+4*t}:{OWF+4*t+1}], v32 offset:{32*t}", f"ds_read_b64_tr_b16 v[{OWF+4*t+2}:{OWF+4*t+3}], v33 offset:{32*t}")
    k.e("v_add_u32 v32, 15360, v32", "v_add_u32 v33, 15360, v33", "s_waitcnt lgkmcnt(0)")
    for t in range(5):
        k.e(f"ds_write_b128 v34, {r4(OWF+4*t)} offset:{1024*t}")
    k.e("v_add_u32 v34, 15360, v34", "s_sub_u32 s36, s36, 1", "s_cmp_lg_u32 s36, 0", f"s_cbranch_scc1 mega_conv{tag}")
    k.label(f"mega_c_skip{tag}")
    k.e("s_waitcnt lgkmcnt(0)")
    for t in range(5):
        a = OACC + 4 * t
        k.e(f"v_lshlrev_b32 v{a}, 16, v{36+2*t}", f"v_and_b32 v{a+1}, 0xffff0000, v{36+2*t}",
            f"v_lshlrev_b32 v{a+2}, 16, v{37+2*t}", f"v_and_b32 v{a+3}, 0xffff0000, v{37+2*t}")


def oproj(k):
    k.e("; ==== output projection + residual + LayerNorm-2 partial statistics (helper waves)")
    k.e("v_and_b32 v2, 15, v1", "v_lshrrev_b32 v3, 4, v1")
    k.e("v_lshrrev_b32 v32, 2, v2",
        "v_and_b32 v33, 1, v3", "v_lshlrev_b32 v33, 2, v33", "v_add_u32 v32, v32, v33",
        "v_lshl_add_u32 v32, v3, 3, v32", "v_xor_b32 v33, 4, v32", "s_movk_i32 s40, 160",
        "v_and_b32 v34, 3, v2", "v_lshlrev_b32 v34, 3, v34", f"v_add_u32 v34, {LDS_WO}, v34",
        "v_mad_u32_u24 v28, v32, s40, v34", "v_mad_u32_u24 v29, v33, s40, v34",
        "v_add_u32 v30, 61440, v11")
    k.e("s_mul_i32 s44, s31, 2560", f"s_add_u32 s44, s44, {LDS_RES}",
        "v_and_b32 v21, 8, v2", "v_lshrrev_b32 v21, 1, v21", "v_xor_b32 v21, v21, v2", "v_mul_u32_u24 v21, s40, v21",
        "v_lshl_add_u32 v21, v3, 3, v21", "v_add_u32 v21, s44, v21")
    k.e("v_and_b32 v22, 1, v3", "v_lshlrev_b32 v22, 9, v22", "v_lshrrev_b32 v32, 1, v3", "v_lshl_add_u32 v22, v32, 8, v22",
        "v_lshl_add_u32 v22, v2, 4, v22")
    k.e("v_and_b32 v23, 7, v1", "v_lshlrev_b32 v23, 3, v23")
    k.e("s_lshl_b32 s48, s28, 2", "s_add_u32 s48, s48, s31", "s_mul_i32 s49, s48, 18432")
    k.e(f"s_mul_i32 s68, s28, {RX}", "s_add_u32 s68, s68, s49", f"s_add_u32 s34, s68, {WS_O}", "v_add_u32 v24, s34, v11", "s_lshl_b32 s51, s29, 11")
    k.e(f"v_mov_b32 v12, {LDS_REL}", f"s_mov_b32 s3, {SPIN*8}")
    k.label("mega_rel")
    k.e("ds_read_b32 v13, v12", "s_waitcnt lgkmcnt(0)", "v_readfirstlane_b32 s50, v13", "s_and_b32 s39, s50, 0xff", "s_cmp_ge_u32 s39, 8",
        "s_cbranch_scc1 mega_reld", "s_sleep 4", "s_sub_u32 s3, s3, 1", "s_cbranch_scc0 mega_rel")
    k.label("mega_reld")
    if os.environ.get("PFC") == "2":
        k.e("s_cmp_lg_u32 s31, 3", "s_cbranch_scc1 a_nopfc", "s_getpc_b64 s[70:71]")
        k.label("mega_pc2")
        k.e("s_mul_i32 s36, s47, 512", "v_min_u32 v9, 3, v1", "v_lshlrev_b32 v9, 7, v9",
            "v_add_u32 v9, s36, v9", "v_min_u32 v9, mega_end - mega_pc2 - 4, v9", "global_load_dword v10, v9, s[70:71]")
        k.label("a_nopfc")
    k.e("s_cmp_lg_u32 s50, 8", "s_cbranch_scc1 mega_noearly")
    wo_dma(k, "a")
    k.label("mega_noearly")
    stp(k, 8)
    k.e("s_waitcnt lgkmcnt(0)", "s_barrier")
    stb(k, 3)
    publish_o(k, "ob")
    k.e("s_cmp_eq_u32 s50, 8", "s_cbranch_scc1 mega_nolate")
    wo_dma(k, "b")
    k.label("mega_nolate")
    k.e("s_lshl_b32 s34, s28, 7", f"s_add_u32 s34, s34, {F1}")
    k.e("s_cmp_lg_u32 s31, 0", "s_cbranch_scc1 mega_polld_o")
    lds_wait(k, LDS_CNT + 4, 12, "owno")
    poll(k, 23, 34, 32, "o", sleep=int(os.environ.get("OSP", "2")))
    lds_signal(k, LDS_ORD)
    lds_wait(k, LDS_ORD, 4, "ord")
    stb(k, 4)
    for s in range(18):
        k.e(f"buffer_load_dwordx4 v[{OX0+4*s}:{OX0+4*s+3}], v24, s[16:19], s51 offen sc1",
            "s_add_u32 s51, s51, 1024", "s_cmp_eq_u32 s51, 18432", "s_cselect_b32 s51, 0, s51")

    seq = [(s, t) for s in range(18) for t in range(5)]

    def rd(i):
        s, t = seq[i]
        off = (s if s < 12 else s - 12) * 5120 + 1024 * t
        k.e(f"ds_read_b128 {r4(OWF+4*(i%NB))}, v{11 if s < 12 else 30} offset:{off}")
    for i in range(NB):
        rd(i)
    ring_srd(k)
    RSCH = eval(os.environ.get("RSCH", "{2: 5, 5: 0, 8: 1, 11: 2, 14: 3, 17: 4}"))
    for i, (s, t) in enumerate(seq):
        k.e(f"s_waitcnt lgkmcnt({min(NB-1, 89-i)})" + (f" vmcnt({17 - s + 3*sum(1 for q in RSCH if q < s)})" if t == 0 else ""))
        a = r4(OACC + 4 * t)
        k.e(f"v_mfma_f32_16x16x32_bf16 {a}, {r4(OWF+4*(i%NB))}, {r4(OX0+4*s)}, {a}")
        if i + NB < 90:
            rd(i + NB)
        if t == 4 and s in RSCH:
            st = RSCH[s]
            k.e(f"s_movk_i32 s53, {st*T*1024}")
            for tt in range(T):
                k.e(wload(st, tt))
    sto(k, 1)
    k.e("v_mov_b32 v6, 0", "v_mov_b32 v7, 0", "v_mov_b32 v34, 0x3f803f80",
        "s_mul_i32 s35, s29, 2304", "s_add_u32 s35, s35, s68", f"s_add_u32 s35, s35, {WS_H}")
    for t in range(5):
        a = OACC + 4 * t
        d = OWF + 2 * t
        k.e(f"v_cvt_pk_bf16_f32 v{d}, v{a}, v{a+1}", f"v_cvt_pk_bf16_f32 v{d+1}, v{a+2}, v{a+3}")
        if t == 4:
            k.e(ex(0xffffffff))
        k.e(f"v_dot2c_f32_bf16 v6, v{d}, v34", f"v_dot2c_f32_bf16 v7, v{d}, v{d}",
            f"v_dot2c_f32_bf16 v6, v{d+1}, v34", f"v_dot2c_f32_bf16 v7, v{d+1}, v{d+1}")
        if t == 4:
            k.e(ex(-1))
        if t % 2 == 1 or t == 4:
            b = OWF + 4 * (t // 2)
            k.e(f"v_permlane16_swap_b32 v{b}, v{b+2}", f"v_permlane16_swap_b32 v{b+1}, v{b+3}")
            if t == 4:
                k.e(ex(0xffff))
            k.e(f"buffer_store_dwordx4 {r4(b)}, v22, s[16:19], s35 offen offset:{1024*(t//2)} sc1")
            if t == 4:
                k.e(ex(-1))
    reduce_g_add(k, [6, 7], [32, 33])
    k.e("v_lshlrev_b32 v32, 4, v2", "s_lshl_b32 s35, s48, 10", "s_lshr_b32 s34, s29, 1", "s_lshl_b32 s34, s34, 8",
        "s_add_u32 s35, s35, s34", "s_and_b32 s34, s29, 1", "s_lshl_b32 s34, s34, 3", "s_add_u32 s35, s35, s34",
        f"s_add_u32 s35, s35, {WS_ST}", f"s_mul_i32 s34, s28, {RST}", "s_add_u32 s35, s35, s34", ex(0xffff))
    k.e("buffer_store_dwordx2 v[6:7], v32, s[16:19], s35 offen sc1", ex(-1))
    sto(k, 2)
    k.e("s_lshl_b32 s34, s28, 7", "s_lshl_b32 s35, s29, 3", "s_add_u32 s34, s34, s35", f"s_add_u32 s34, s34, {F2}", "s_waitcnt vmcnt(0)")
    sto(k, 7)
    arrive(k, 2, 4, 34, "h")


def acc(t, mb):
    return ACC + (t * 4 + mb) * 4


def wreg(slot, t):
    return WR + ((slot + 1) % 6) * 12 + t * 4


def wload(slot, t):
    return f"buffer_load_dwordx4 {r4(wreg(slot, t))}, v11, s[20:23], s53 offen offset:{1024*t} {WAUX}"


def ring_srd(k):
    k.e(f"s_mul_i32 s34, s30, {STREAM}", f"s_mul_i32 s35, s46, {1296*1024}", "s_add_u32 s34, s34, s35", f"s_add_u32 s34, s34, {WS_W}",
        "s_add_u32 s20, s12, s34", "s_addc_u32 s21, s13, 0", f"s_mov_b32 s22, {STREAM}", "s_mov_b32 s23, 0x00020000")


def ffn_ring_start(k, n=D - 1):
    ring_srd(k)
    k.e("s_mov_b32 s53, 0")
    for st in range(n):
        for t in range(T):
            k.e(wload(st, t))
        k.e(f"s_add_u32 s53, s53, {T*1024}")


def ffn(k):
    k.label("ffn_join")
    k.e("s_setprio 0" if os.environ.get("PM", "0") == "0" else "s_setprio 3", "v_and_b32 v2, 15, v1", "v_lshrrev_b32 v3, 4, v1")
    k.e("s_lshl_b32 s34, s47, 2", "s_and_b32 s35, s30, 3", "s_add_u32 s34, s34, s35", "s_mul_i32 s41, s34, 18432",
        "s_lshr_b32 s35, s30, 2", "s_lshl_b32 s35, s35, 10", "s_add_u32 s41, s41, s35", f"s_add_u32 s41, s41, {WS_H}", f"s_mul_i32 s35, s47, {RX}", "s_add_u32 s41, s41, s35",
        "s_lshl_b32 s42, s30, 10")
    k.e("s_lshl_b32 s34, s30, 7", f"s_add_u32 s34, s34, {LDS_S}", "v_lshlrev_b32 v13, 4, v3", "v_add_u32 v12, s34, v13",
        "s_lshl_b32 s34, s30, 6", f"s_add_u32 s34, s34, {LDS_S + 1536}", "v_add_u32 v13, s34, v13",
        f"ds_read_b128 {r4(XB0+16)}, v12", f"ds_read_b128 {r4(XB0+20)}, v12 offset:64", f"ds_read_b128 {r4(XB0+24)}, v13")
    k.e("v_lshlrev_b32 v9, 2, v2", f"v_add_u32 v9, {LDS_MU}, v9", "s_and_b32 s34, s46, 3", "s_lshl_b32 s34, s34, 6", "v_add_u32 v10, s34, v9")
    k.e(f"s_movk_i32 s53, {D*T*1024}")
    k.e("s_cmp_lg_u32 s30, 0", "s_cbranch_scc1 ffn_g")
    k.e("v_and_b32 v12, 7, v1", "v_lshlrev_b32 v12, 3, v12", "s_lshl_b32 s34, s47, 7", f"s_add_u32 s34, s34, {F2}",
        "v_lshlrev_b32 v8, 10, v3", "v_lshl_add_u32 v8, v2, 4, v8", f"s_mul_i32 s35, s47, {RST + 4096}", f"s_add_u32 s35, s35, {WS_ST}")
    lds_wait(k, LDS_CNT + 8, 4, "own", va=14, vb=15, sleep=2)
    poll(k, 12, 34, 14, "h", sleep=int(os.environ.get("HSP", "3")))
    for p in range(4):
        k.e(f"buffer_load_dwordx4 {r4(XB0+4*p)}, v8, s[16:19], s35 offen offset:{256*p} sc1")
    k.label("ffn_g")
    k.e("s_barrier")
    stb(k, 5)
    NF = int(os.environ.get("NF", "2"))
    for i in range(NF):
        k.e(f"s_add_u32 m0, s42, {i*12288}", f"s_add_u32 s36, s41, {i*3072}", f"buffer_load_dwordx4 v11, s[16:19], s36 offen {os.environ.get('HNT', '')} sc1 lds")
    k.e("s_cmp_lg_u32 s30, 0", "s_cbranch_scc1 ffn_st")
    k.e(f"s_waitcnt vmcnt({NF})")
    for p in range(1, 4):
        for c in range(4):
            k.e(f"v_add_f32 v{XB0+c}, v{XB0+c}, v{XB0+4*p+c}")
    k.e(f"v_add_f32 v4, v{XB0}, v{XB0+2}", f"v_add_f32 v5, v{XB0+1}, v{XB0+3}",
        f"v_mul_f32 v4, {hex(f2u(-1/576))}, v4", f"v_mul_f32 v5, {hex(f2u(1/576))}, v5", "v_fma_f32 v5, -v4, v4, v5", "v_max_f32 v5, 0, v5",
        f"v_add_f32 v5, {hex(f2u(1e-5))}, v5", "v_rsq_f32 v5, v5", "v_lshlrev_b32 v6, 2, v1", f"v_add_u32 v6, {LDS_MU}, v6",
        "ds_write_b32 v6, v4", "ds_write_b32 v6, v5 offset:256")
    lds_signal(k, LDS_MUS)
    k.label("ffn_st")
    lds_wait(k, LDS_MUS, 1, "mus")
    for i in range(NF, 4):
        k.e(f"s_add_u32 m0, s42, {i*12288}", f"s_add_u32 s36, s41, {i*3072}", f"buffer_load_dwordx4 v11, s[16:19], s36 offen {os.environ.get('HNT', '')} sc1 lds")
    sto(k, 8)
    for mb in range(4):
        k.e(f"ds_read_b32 v{4+mb}, v9 offset:{64*mb}")
    k.e("ds_read_b32 v8, v10 offset:256", "s_waitcnt lgkmcnt(0)")
    for t in range(T):
        for mb in range(4):
            for i in range(4):
                k.e(f"v_mul_f32 v{acc(t,mb)+i}, v{4+mb}, v{XB0+16+4*t+i}")
    k.e("s_add_u32 s41, s41, 12288", "s_add_u32 s42, s42, 49152")
    k.e("s_waitcnt vmcnt(3)", "s_barrier")
    stb(k, 6)
    if os.environ.get("PF2") == "2":
        k.e("v_min_u32 v0, 13, v1", "v_lshlrev_b32 v0, 7, v0", "s_mul_i32 s36, s47, 1728", "s_and_b32 s36, s36, 0xffffff80", f"s_add_u32 s36, s36, {18*T*1024}",
            "buffer_load_dword v0, v0, s[20:23], s36 offen sc1")
    k.e("v_mov_b32 v10, v11", "s_mov_b32 s31, 0")

    def step(u, loads=True, xrd=True):
        xb = XB0 + 16 * (u % 2)
        xn = XB0 + 16 * ((u + 1) % 2)
        fill = [f"ds_read_b128 {r4(xn+4*mb)}, v10 offset:{(u+1)*4096 + 1024*mb}" for mb in range(4)] if xrd else []
        if loads:
            fill += [wload((u + D - 1) % D, t) for t in range(T)]
            fill += [f"s_add_u32 s53, s53, {T*1024}"]
        order = [(t, mb) for t in range(T) for mb in range(4)]
        if os.environ.get("ORD") == "snake":
            order = [(t, mb if t % 2 == 0 else 3 - mb) for t in range(T) for mb in range(4)]
        if os.environ.get("ORD") == "mb":
            order = [(t if mb % 2 == 0 else T - 1 - t, mb) for mb in range(4) for t in range(T)]
        for t, mb in order:
            a = r4(acc(t, mb))
            k.e(f"v_mfma_f32_16x16x32_bf16 {a}, {r4(wreg(u, t))}, {r4(xb+4*mb)}, {a}")
            if fill:
                k.e(fill.pop(0))
    for mb in range(4):
        k.e(f"ds_read_b128 {r4(XB0+4*mb)}, v10 offset:{1024*mb}")
    k.e("s_waitcnt lgkmcnt(0)")
    step(0, loads=False)
    k.e("s_branch ffn_u1")
    k.label("ffn_start")
    for mb in range(4):
        k.e(f"ds_read_b128 {r4(XB0+4*mb)}, v10 offset:{1024*mb}")
    k.e(".p2align 6")
    k.label("ffn_loop")
    k.e("s_cmp_lg_u32 s31, 1", "s_cbranch_scc1 ffn_nodma")
    for i in range(2):
        k.e(f"s_add_u32 m0, s42, {i*12288}", f"s_add_u32 s36, s41, {i*3072}", f"buffer_load_dwordx4 v11, s[16:19], s36 offen {os.environ.get('HNT', '')} sc1 lds")
    if os.environ.get("PF2", "1") == "1":
        k.e("v_min_u32 v0, 13, v1", "v_lshlrev_b32 v0, 7, v0", "s_mul_i32 s36, s47, 1728", "s_and_b32 s36, s36, 0xffffff80", f"s_add_u32 s36, s36, {18*T*1024}",
            ("buffer_load_dword v15, v0, s[20:23], s36 offen offset:64 sc1" if os.environ.get("PF64") else ""),
            "buffer_load_dword v0, v0, s[20:23], s36 offen sc1")
    k.label("ffn_nodma")
    for u in range(D):
        if u == 1:
            k.label("ffn_u1")
        k.e(f"s_waitcnt vmcnt({4*T}) lgkmcnt(0)")
        if u == D - 1:
            k.e("s_cmp_ge_u32 s31, 2", "s_cbranch_scc1 ffn_hwait", "s_barrier")
            k.label("ffn_nobar")
        if u == 2:
            k.e("s_cmp_lg_u32 s31, 0", "s_cbranch_scc1 ffn_nobar2", "s_waitcnt vmcnt(5)", "s_barrier")
            k.label("ffn_nobar2")
        step(u)
    k.e(f"v_add_u32 v10, {D*4096}, v10", "s_add_u32 s31, s31, 1",
        "s_cmp_eq_u32 s31, 3", "s_cbranch_scc1 ffn_ep1",
        "s_cmp_lt_u32 s31, 5", "s_cbranch_scc1 ffn_loop")
    for u in range(D):
        k.e(f"s_waitcnt vmcnt({min(4*T, T*(D-1-u))}) lgkmcnt(0)")
        step(u, loads=(u == 0), xrd=(u < D - 1))
    stb(k, 8)
    k.e("s_waitcnt lgkmcnt(0)")
    k.e(f"s_mul_i32 s34, s46, {PSX}", f"s_mul_i32 s33, s47, {PSY}", f"s_add_u32 s33, s33, {WS_P}", "s_add_u32 s34, s34, s33",
        "s_lshl_b32 s35, s30, 10", "s_add_u32 s36, s34, s35",
        "s_cmp_ge_u32 s30, 6", "s_movk_i32 s37, 12288", f"s_cselect_b32 s37, {12288 + 18432 - 6144}, s37", "s_add_u32 s37, s37, s36")
    for mb in range(4):
        d = XB0 + 4 * mb
        a, b = acc(0, mb), acc(1, mb)
        for i in range(4):
            k.e(f"v_cvt_pk_bf16_f32 v{d+i}, v{a+i}, v{b+i}")
        k.e(f"buffer_store_dwordx4 {r4(d)}, v11, s[16:19], s36 offen sc1", "s_add_u32 s36, s36, 18432")
    for h in range(2):
        d = XB0 + 16 + 4 * h
        a, b = acc(2, 2 * h), acc(2, 2 * h + 1)
        k.e(f"v_cvt_pk_bf16_f32 v{d}, v{a}, v{a+1}", f"v_cvt_pk_bf16_f32 v{d+1}, v{a+2}, v{a+3}",
            f"v_cvt_pk_bf16_f32 v{d+2}, v{b}, v{b+1}", f"v_cvt_pk_bf16_f32 v{d+3}, v{b+2}, v{b+3}")
        k.e(f"buffer_store_dwordx4 {r4(d)}, v11, s[16:19], s37 offen sc1", "s_add_u32 s37, s37, 36864")
    stt(k, 3)
    k.e("s_lshl_b32 s38, s47, 9", f"s_add_u32 s38, s38, {F3}", "s_lshr_b32 s36, s30, 2", "s_lshl_b32 s35, s36, 7", "s_add_u32 s38, s38, s35",
        "s_lshl_b32 s35, s46, 3", "s_add_u32 s34, s38, s35",
        "s_lshl_b32 s44, s36, 2", f"s_add_u32 s44, s44, {LDS_CNT + 12}", "s_waitcnt vmcnt(0)")
    stt(k, 4)
    stt(k, 5)
    stt(k, 6)
    arrive(k, 0, 4, 34, "r", cnt_sgpr=44)
    k.e("s_add_u32 s44, s44, 12", "v_mov_b32 v10, s44")
    k.e("s_and_b32 s35, s30, 3", "s_cmp_lg_u32 s35, 3", "s_cbranch_scc1 mega_red")
    if os.environ.get("DEFER", "1") == "1":
        if os.environ.get("DEF0", "1") == "1":
            k.e("s_cmp_eq_u32 s30, 3", f"s_mov_b32 s35, {LDS_CNT + 20}", f"s_cselect_b32 s35, {LDS_CNT + 16}, s35")
            lds_wait(k, "s35", 4, "t2", sleep=4)
        else:
            lds_wait(k, LDS_CNT + 20, 4, "t2", sleep=4)
    k.e("v_and_b32 v12, 7, v1", "v_lshlrev_b32 v12, 3, v12")
    poll(k, 12, 38, 14, "r", sleep=int(os.environ.get("RSP", "3")))
    k.e("v_mov_b32 v13, 1", "ds_write_b32 v10, v13", "s_waitcnt lgkmcnt(0)", "s_branch mega_fin")
    k.label("mega_red")
    k.e(
        "s_lshl_b32 s37, s36, 2", "s_lshl_b32 s39, s35, 1", "s_add_u32 s37, s37, s39",
        "s_lshl_b32 s39, s36, 1", "s_add_u32 s39, s39, 12", "s_cmp_eq_u32 s35, 2", "s_cselect_b32 s37, s39, s37",
        "s_lshr_b32 s39, s46, 2", "s_add_u32 s37, s37, s39",
        "s_and_b32 s39, s46, 3",
        "s_mul_i32 s34, s39, 18432", "s_lshl_b32 s41, s37, 10", "s_add_u32 s34, s34, s41")
    k.e("s_sub_u32 s41, s37, 12", "s_lshl_b32 s41, s41, 11", "s_cmp_ge_u32 s37, 15", "s_movk_i32 s42, 12288",
        f"s_cselect_b32 s42, {12288 + 18432 - 6144}, s42", "s_add_u32 s41, s41, s42", "s_lshr_b32 s42, s39, 1", "s_mul_i32 s42, s42, 36864",
        "s_add_u32 s41, s41, s42", "s_and_b32 s42, s39, 1", "s_lshl_b32 s42, s42, 3", "s_add_u32 s41, s41, s42",
        "s_mov_b32 s43, s35", "s_cmp_eq_u32 s35, 2", "s_cselect_b32 s34, s41, s34", "s_cselect_b32 s42, 1024, 8",
        "s_add_u32 s33, s33, s34", "s_add_u32 s42, s42, s33")
    k.e("s_lshl_b32 s35, s37, 2", "s_add_u32 s35, s35, s39", "s_lshl_b32 s35, s35, 10", "v_add_u32 v13, s35, v11",
        f"ds_read_b128 {r4(WR+32)}, v13")
    srd(k, 20, 14, XB)
    k.e("s_lshl_b32 s35, s47, 2", "s_add_u32 s35, s35, s39", "s_mul_i32 s35, s35, 18432", "s_lshl_b32 s37, s37, 6",
        "s_add_u32 s37, s37, s35", "s_movk_i32 s35, 1152", "v_mul_u32_u24 v9, s35, v2", "v_lshl_add_u32 v9, v3, 4, v9")
    k.e("v_mov_b32 v5, 0x00003f80", "v_mov_b32 v6, 0x3f800000")
    for i in range(8):
        k.e(f"v_mov_b32 v{ACC+i}, 0")
    k.e(f"s_mov_b32 s3, {SPIN*8}")
    k.label("mega_lspin")
    k.e("ds_read_b32 v14, v10", "s_waitcnt lgkmcnt(0)", "v_readfirstlane_b32 s38, v14", "s_cmp_lg_u32 s38, 0", "s_cbranch_scc1 mega_lspind",
        "s_sleep 2", "s_sub_u32 s3, s3, 1", "s_cbranch_scc0 mega_lspin")
    k.label("mega_lspind")
    stt(k, 5)
    k.e("s_cmp_eq_u32 s43, 2", "s_cbranch_scc1 mega_ld_s")
    for j in range(8):
        k.e(f"buffer_load_dwordx4 {r4(WR+4*j)}, v11, s[16:19], s33 offen sc1", f"s_add_u32 s33, s33, {PSX}")
    k.e("s_branch mega_ld_o")
    k.label("mega_ld_s")
    for j in range(8):
        k.e(f"buffer_load_dwordx2 v[{WR+4*j}:{WR+4*j+1}], v11, s[16:19], s33 offen sc1", f"s_add_u32 s33, s33, {PSX}")
    for j in range(8):
        k.e(f"buffer_load_dwordx2 v[{WR+4*j+2}:{WR+4*j+3}], v11, s[16:19], s42 offen sc1", f"s_add_u32 s42, s42, {PSX}")
    k.label("mega_ld_o")
    k.e("s_waitcnt lgkmcnt(0)")
    for i in range(4):
        k.e(f"v_lshlrev_b32 v{ACC+8+2*i}, 16, v{WR+32+i}", f"v_and_b32 v{ACC+9+2*i}, 0xffff0000, v{WR+32+i}")
    for j in range(8):
        k.e(f"s_waitcnt vmcnt({7-j})")
        for i in range(4):
            k.e(f"v_dot2c_f32_bf16 v{ACC+2*i}, v{WR+4*j+i}, v5", f"v_dot2c_f32_bf16 v{ACC+2*i+1}, v{WR+4*j+i}, v6")
    stt(k, 6)
    k.e("s_cmp_eq_u32 s43, 2", "s_cbranch_scc1 mega_red_s")
    for i in range(8):
        k.e(f"v_fma_f32 v{ACC+8+i}, v{ACC+i}, v8, v{ACC+8+i}")
    k.e("s_branch mega_red_o")
    k.label("mega_red_s")
    for i in range(8):
        k.e(f"v_fma_f32 v{ACC+8+i}, v{ACC+(i//2)+4*(i%2)}, v8, v{ACC+8+i}")
    k.label("mega_red_o")
    for i in range(4):
        k.e(f"v_cvt_pk_bf16_f32 v{XB0+i}, v{ACC+8+2*i}, v{ACC+9+2*i}")
    k.e(f"buffer_store_dwordx4 {r4(XB0)}, v9, s[20:23], s37 offen")
    k.label("mega_fin")
    k.stamp_flush(1, 10, 16, 30, wpw=16)
    if os.environ.get("DBGOUT"):
        k.e("s_cmp_lg_u32 s2, 5", "s_cbranch_scc1 mega_end", "s_cmp_lg_u32 s30, 8", "s_cbranch_scc1 mega_end",
            "s_load_dwordx2 s[4:5], s[0:1], 72", "s_waitcnt lgkmcnt(0)", "s_nop 0")
        srd(k, 20, 4, 256)
        for i in range(1, 9):
            k.e(f"s_sub_u32 s34, s{81+2*i}, s81", "v_mov_b32 v4, s34", f"buffer_store_dword v4, v0, s[20:23], 0 offen offset:{4*i-4}",
                f"s_sub_u32 s34, s{80+2*i}, s80", "v_mov_b32 v5, s34", f"buffer_store_dword v5, v0, s[20:23], 0 offen offset:{4*i+28}", "s_waitcnt vmcnt(0)")
    k.e("s_endpgm")
    k.label("ffn_ep1")
    if os.environ.get("PF3"):
        k.e("v_min_u32 v0, 13, v1", "v_lshlrev_b32 v0, 7, v0", "s_mul_i32 s36, s47, 1728", "s_and_b32 s36, s36, 0xffffff80", f"s_add_u32 s36, s36, {18*T*1024}",
            "buffer_load_dword v0, v0, s[20:23], s36 offen sc1")
    k.e("s_waitcnt lgkmcnt(0)")
    k.e("s_lshr_b32 s36, s30, 2", "s_mul_i32 s37, s36, 24576", f"s_add_u32 s37, s37, {LDS_H}",
        "s_and_b32 s34, s30, 3", "s_lshl_b32 s34, s34, 12", "s_add_u32 s34, s34, s37", "v_add_u32 v14, s34, v11",
        "s_bfe_u32 s34, s30, 0x10001", "s_lshl_b32 s34, s34, 12", "s_and_b32 s35, s30, 1", "s_lshl_b32 s35, s35, 3",
        "s_add_u32 s34, s34, s35", "s_add_u32 s34, s34, s37", "s_add_u32 s34, s34, 16384", "v_add_u32 v15, s34, v11",
        "s_lshl_b32 s36, s36, 2", f"s_add_u32 s36, s36, {LDS_HRD}")
    for mb in range(4):
        d = XB0 + 4 * mb
        a, b = acc(0, mb), acc(1, mb)
        for i in range(4):
            k.e(f"v_cvt_pk_bf16_f32 v{d+i}, v{a+i}, v{b+i}")
        for i in range(4):
            k.e(f"v_pk_max_i16 v{d+i}, v{d+i}, 0")
        k.e(f"ds_write_b128 v14, {r4(d)} offset:{mb*1024}")
    for mb in range(4):
        a = acc(2, mb)
        d = XB0 + 16 + 2 * mb
        k.e(f"v_cvt_pk_bf16_f32 v{d}, v{a}, v{a+1}", f"v_cvt_pk_bf16_f32 v{d+1}, v{a+2}, v{a+3}",
            f"v_pk_max_i16 v{d}, v{d}, 0", f"v_pk_max_i16 v{d+1}, v{d+1}, 0",
            f"ds_write_b64 v15, v[{d}:{d+1}] offset:{mb*1024}")
    lds_signal(k, "s36")
    for r in range(ACC, ACC + 16 * T):
        k.e(f"v_mov_b32 v{r}, 0")
    PM = os.environ.get("PM", "0")
    if PM == "0":
        k.e("s_cmp_lt_u32 s30, 4", "s_cbranch_scc0 ffn_pr1", "s_setprio 2")
        k.label("ffn_pr1")
        k.e("s_and_b32 s34, s30, 12", "s_cmp_eq_u32 s34, 4", "s_cbranch_scc0 ffn_pr2", "s_setprio 1")
        k.label("ffn_pr2")
    else:
        k.e("s_setprio 2")
        if PM == "2":
            k.e("s_cmp_lt_u32 s30, 4", "s_cbranch_scc0 ffn_pr1", "s_setprio 3")
            k.label("ffn_pr1")
    lds_wait(k, LDS_HRD, 4, "h0")
    stb(k, 7)
    k.e("s_branch ffn_start")
    k.label("ffn_hwait")
    k.e("s_cmp_eq_u32 s31, 2", "s_cbranch_scc1 ffn_nobar", "s_lshl_b32 s36, s31, 2", f"s_add_u32 s36, s36, {LDS_HRD - 8}")
    lds_wait(k, "s36", 4, "h1")
    if PM != "0":
        if PM == "2":
            k.e("s_cmp_lt_u32 s30, 4", "s_cbranch_scc1 ffn_nobar")
        k.e("s_setprio 1", "s_cmp_eq_u32 s31, 3", "s_cbranch_scc1 ffn_nobar", "s_setprio 0")
    k.e("s_branch ffn_nobar")


def tr_addr(k, base0, base1, stride, extra_sgpr=None):
    k.e("v_lshrrev_b32 v32, 2, v2",
        "v_and_b32 v33, 1, v3", "v_lshlrev_b32 v33, 2, v33", "v_add_u32 v32, v32, v33",
        "v_lshl_add_u32 v32, v3, 3, v32", "v_xor_b32 v33, 4, v32", f"s_movk_i32 s40, {stride}",
        "v_and_b32 v34, 3, v2", "v_lshlrev_b32 v34, 3, v34", f"v_add_u32 v34, {base0}, v34")
    if extra_sgpr is not None:
        k.e(f"v_add_u32 v34, s{extra_sgpr}, v34")
    k.e("v_mad_u32_u24 v28, v32, s40, v34", "v_mad_u32_u24 v29, v33, s40, v34")
    if base1 is not None:
        k.e(f"v_add_u32 v30, {base1 - base0}, v28", f"v_add_u32 v31, {base1 - base0}, v29")


def x_read_addr(k, v, slot_sgpr):
    k.e(f"v_lshrrev_b32 v{v}, 2, v2", f"v_sub_u32 v{v}, 4, v{v}", f"v_and_b32 v{v}, 3, v{v}", f"v_xor_b32 v{v}, v{v}, v3",
        f"v_lshlrev_b32 v{v}, 4, v{v}", f"v_lshl_add_u32 v{v}, v2, 6, v{v}")
    if slot_sgpr is None:
        k.e(f"v_add_u32 v{v}, {A_X}, v{v}")
    else:
        k.e(f"v_add_u32 v{v}, s{slot_sgpr}, v{v}")


def get_nonce(k):
    k.e(f"v_mov_b32 v12, {LDS_NON}", "ds_read_b64 v[14:15], v12", "s_waitcnt lgkmcnt(0)",
        "v_readfirstlane_b32 s66, v14", "v_readfirstlane_b32 s67, v15")


def wq_rd(k, t, s, wf, b, par=False):
    ss = 4 * s if par else s
    a0, a1 = (28, 29) if ss < 8 else (30, 31)
    off = (ss if ss < 8 else ss - 8) * 5120 + 32 * t
    k.e(f"ds_read_b64_tr_b16 v[{wf+4*b}:{wf+4*b+1}], v{a0} offset:{off}",
        f"ds_read_b64_tr_b16 v[{wf+4*b+2}:{wf+4*b+3}], v{a1} offset:{off}")


QCH = [(0, 8), (8, 12), (12, 18)]


def a_qwave(k):
    k.e("; ==== LN1 + Q projection (waves 0..3), LN folded into the epilogue")
    k.e("s_setprio 2")
    k.e("s_sub_u32 s34, s30, s29", "s_and_b32 s34, s34, 3", "s_mul_i32 s43, s34, 18432", f"s_add_u32 s43, s43, {A_X}",
        "s_lshl_b32 s35, s28, 2", "s_add_u32 s35, s35, s30", "s_mul_i32 s35, s35, 18432", "s_lshl_b32 s36, s48, 6")
    k.e("v_lshrrev_b32 v5, 2, v1", "v_sub_u32 v6, 4, v3", "v_xor_b32 v6, v6, v1", "v_and_b32 v6, 3, v6",
        "s_movk_i32 s41, 1152", "v_mul_u32_u24 v5, s41, v5", "v_lshl_add_u32 v4, v6, 4, v5", "v_add_u32 v4, s35, v4")
    NOB0 = os.environ.get("NOB0")
    if not NOB0:
        k.e("s_cmp_eq_u32 s34, 0", "s_cbranch_scc1 a_q_first", "s_barrier")
    else:
        k.e("s_cmp_lg_u32 s34, 0", "s_cbranch_scc1 a_q_first", "s_setprio 3")
    k.label("a_q_first")
    for s in range(18):
        k.e(f"s_add_u32 m0, s43, {s*1024}", "s_nop 0", "buffer_load_dwordx4 v4, s[20:23], s36 offen lds",
            "s_add_u32 s36, s36, 64", "s_cmp_eq_u32 s36, s41", "s_cselect_b32 s36, 0, s36")
    if not NOB0:
        k.e("s_cmp_lg_u32 s34, 0", "s_cbranch_scc1 a_q_second", "s_barrier")
    else:
        k.e("s_setprio 2", "s_barrier")
    k.label("a_q_second")
    tr_addr(k, A_WQ0, A_WQ1, 160)
    x_read_addr(k, 35, 43)
    for r in range(QACC, QACC + 20):
        k.e(f"v_mov_b32 v{r}, 0")
    for b in QACS:
        for i in range(4):
            k.e(f"v_mov_b32 v{b+i}, 0")
    for i in range(4):
        k.e(f"v_mov_b32 v{QONES+i}, 0x3f803f80")
    k.e("v_mov_b32 v6, 0", "v_mov_b32 v7, 0")
    for part in range(3):
        k.e(f"s_waitcnt vmcnt({18 - 6*(part+1)})")
        if part == 2:
            k.e("s_cmp_lg_u32 s34, 0", "s_cbranch_scc1 a_q_nosig")
            lds_signal(k, LDS_KVI)
            k.label("a_q_nosig")
        for s in range(6 * part, 6 * part + 6):
            k.e(f"ds_read_b128 {r4(QX0+4*s)}, v35 offset:{1024*s}")
        if part:
            k.e("s_waitcnt lgkmcnt(6)")
            for r in range(QX0 + 24 * (part - 1), QX0 + 24 * part):
                k.e(f"v_dot2c_f32_bf16 v6, v{r}, v{QONES}", f"v_dot2c_f32_bf16 v7, v{r}, v{r}")
    k.e("s_waitcnt lgkmcnt(0)")
    lds_signal(k, LDS_XC)
    k.stamp(1)
    for r in range(QX0 + 48, QX0 + 72):
        k.e(f"v_dot2c_f32_bf16 v6, v{r}, v{QONES}", f"v_dot2c_f32_bf16 v7, v{r}, v{r}")
    reduce_g_add(k, [6, 7], [32, 33])
    k.e(f"v_mul_f32 v6, {hex(f2u(1/576))}, v6", f"v_mul_f32 v7, {hex(f2u(1/576))}, v7",
        "v_fma_f32 v7, -v6, v6, v7", "v_max_f32 v7, 0, v7", f"v_add_f32 v7, {hex(f2u(1e-5))}, v7", "v_rsq_f32 v7, v7")
    k.e("s_cmp_lg_u32 s34, 0", "s_cbranch_scc1 a_q_nost")
    k.e("v_lshlrev_b32 v32, 2, v2", f"v_add_u32 v32, {A_ST}, v32", "ds_write_b32 v32, v6", "ds_write_b32 v32, v7 offset:64",
        "s_waitcnt lgkmcnt(0)")
    lds_signal(k, LDS_KVS)
    k.label("a_q_nost")
    k.e(f"v_mul_f32 v34, {hex(f2u(QSCALE))}, v7")
    k.e("s_mul_i32 s35, s30, 2304", f"s_add_u32 s35, s35, {LDS_OST}", "v_lshrrev_b32 v35, 1, v3", "v_lshlrev_b32 v35, 8, v35",
        "v_lshl_add_u32 v35, v2, 4, v35", "v_and_b32 v32, 1, v3", "v_lshl_add_u32 v35, v32, 3, v35", "v_add_u32 v35, s35, v35")
    sta(k, 3)
    k.label("a_q_gemm")
    for ci, (s0, s1) in enumerate(QCH):
        k.e("s_cmp_ge_u32 s30, 4", f"s_cbranch_scc1 mega_lwd_q{ci}")
        lds_wait(k, LDS_WQC + 4 * ci, 4, f"q{ci}")
        def rd2(t, s, b):
            a0, a1 = (28, 29) if s < 8 else (30, 31)
            off = (s if s < 8 else s - 8) * 5120 + 32 * t
            return [f"ds_read_b64_tr_b16 v[{QWF+4*b}:{QWF+4*b+1}], v{a0} offset:{off}",
                    f"ds_read_b64_tr_b16 v[{QWF+4*b+2}:{QWF+4*b+3}], v{a1} offset:{off}"]
        roll_gemm2(k, list(range(s0, s1)), rd2,
                   lambda t, s, b: [f"v_mfma_f32_16x16x32_bf16 {r4(QACC+4*t)}, {r4(QWF+4*b)}, {r4(QX0+4*s)}, {r4(QACC+4*t)}",
                                    f"v_mfma_f32_16x16x32_bf16 {r4(QACS[t])}, {r4(QWF+4*b)}, {r4(QONES)}, {r4(QACS[t])}"])
    k.e("s_cmp_ge_u32 s30, 4", "s_cbranch_scc1 a_s_done")
    sta(k, 7)
    k.e("s_setprio 3")
    lds_signal(k, LDS_WDN)
    sta(k, 8)
    for t in range(5):
        a = QACC + 4 * t
        for i in range(4):
            k.e(f"v_fma_f32 v{a+i}, -v6, v{QACS[t]+i}, v{a+i}")
        for i in range(4):
            k.e(f"v_mul_f32 v{a+i}, v34, v{a+i}")
        k.e(f"v_cvt_pk_bf16_f32 v{QWF+2*t}, v{a}, v{a+1}", f"v_cvt_pk_bf16_f32 v{QWF+2*t+1}, v{a+2}, v{a+3}")
        if t == 4:
            k.e(ex(0xffffffff))
        k.e(f"ds_write_b64 v35, v[{QWF+2*t}:{QWF+2*t+1}] offset:{512*t}")
    k.e("s_lshr_b32 s35, s30, 1", "s_lshl_b32 s35, s35, 2", f"s_add_u32 s35, s35, {LDS_QRD}", "v_mov_b32 v12, s35", "v_mov_b32 v13, 1",
        ex(1), "ds_add_u32 v12, v13", ex(-1))


def wkv_rd(k, s, wf):
    for t in range(2):
        off = s * 1536 + 32 * t
        k.e(f"ds_read_b64_tr_b16 v[{wf+4*t}:{wf+4*t+1}], v28 offset:{off}",
            f"ds_read_b64_tr_b16 v[{wf+4*t+2}:{wf+4*t+3}], v29 offset:{off}")


def a_wkv_dma(k):
    k.e("s_cmp_lt_u32 s29, 4", "s_cselect_b32 s20, s70, s72", "s_cselect_b32 s21, s71, s73", f"s_mov_b32 s22, {WKB}", "s_mov_b32 s23, 0x00020000")
    k.e("s_movk_i32 s40, 21846")
    for i in range(3):
        k.e(f"v_add_u32 v32, {64*i}, v1", "v_mul_u32_u24 v33, s40, v32", "v_lshrrev_b32 v33, 16, v33", "v_mul_u32_u24 v34, 3, v33",
            "v_sub_u32 v34, v32, v34", "v_lshlrev_b32 v34, 4, v34", "v_min_u32 v34, 20, v34",
            "v_and_b32 v35, 8, v33", "v_lshrrev_b32 v35, 1, v35", "v_xor_b32 v35, v35, v33", f"v_mad_u32_u24 v{16+i}, v35, 36, v34")
    k.e("s_sub_u32 s34, s30, 4", "s_mul_i32 s34, s34, 3", "s_mul_i32 s43, s34, 3072", "s_lshr_b32 s35, s48, 1", "s_add_u32 s35, s35, s34",
        "s_sub_u32 s36, s35, 9", "s_min_u32 s35, s35, s36", "s_mul_i32 s35, s35, 2304")
    for g in range(3):
        for i in range(3):
            k.e(f"s_add_u32 m0, s43, {A_WKV + g*3072 + i*1024}", "s_nop 0", f"buffer_load_dwordx4 v{16+i}, s[20:23], s35 offen lds")
        k.e("s_add_u32 s35, s35, 2304", f"s_cmp_eq_u32 s35, {9*2304}", "s_cselect_b32 s35, 0, s35")


def a_kvwave(k):
    k.e("; ==== K or V projection of 16 rows (wave 4), published to every workgroup")
    k.e("s_setprio 3")
    a_wkv_dma(k)
    k.e("s_barrier")
    tr_addr(k, A_WKV, None, 48)
    x_read_addr(k, 35, None)
    for r in range(QACC, QACC + 8):
        k.e(f"v_mov_b32 v{r}, 0")
    k.e("s_lshr_b32 s41, s28, 1", f"s_mul_i32 s41, s41, {GRP}", f"s_add_u32 s41, s41, {WS_KV}",
        "s_and_b32 s42, s28, 1", "s_lshl_b32 s42, s42, 1", "s_bfe_u32 s43, s29, 0x10001", "s_add_u32 s42, s42, s43",
        "s_and_b32 s43, s29, 1",
        "s_lshl_b32 s49, s28, 7", "s_lshl_b32 s34, s29, 3", "s_add_u32 s49, s49, s34", f"s_add_u32 s49, s49, {FK}")
    k.e("s_waitcnt vmcnt(0)")
    lds_signal(k, LDS_WKI)
    lds_wait(k, LDS_KVI, 3, "kvi")
    k.stamp(1)
    k.e("s_cmp_ge_u32 s29, 4", "s_cbranch_scc1 a_kv_v")
    for isv in (False, True):
        if isv:
            k.label("a_kv_v")

        def rd(s):
            b = s % 3
            k.e(f"ds_read_b128 {r4(QX0+4*b)}, v35 offset:{1024*s}")
            wkv_rd(k, s, QX0 + 12 + 8 * b)
        rd(0)
        rd(1)
        for s in range(18):
            b = s % 3
            if s + 2 < 18:
                rd(s + 2)
            k.e(f"s_waitcnt lgkmcnt({min(10, 5*(17-s))})")
            for t in range(2):
                a, w, x = r4(QACC + 4 * t), r4(QX0 + 12 + 8 * b + 4 * t), r4(QX0 + 4 * b)
                k.e(f"v_mfma_f32_16x16x32_bf16 {a}, {x}, {w}, {a}" if isv else f"v_mfma_f32_16x16x32_bf16 {a}, {w}, {x}, {a}")
        sta(k, 3)
        lds_wait(k, LDS_KVS, 2, "kv" + ("v" if isv else "k"))
        sta(k, 4)
        A = QACC
        if not isv:
            k.e("v_lshlrev_b32 v32, 4, v3", f"v_add_u32 v32, {A_SKV}, v32", "v_lshlrev_b32 v33, 2, v2", f"v_add_u32 v33, {A_ST}, v33",
                "ds_read_b128 v[16:19], v32", "ds_read_b128 v[20:23], v32 offset:64", "ds_read_b32 v6, v33", "ds_read_b32 v7, v33 offset:64")
            k.e("s_lshl_b32 s38, s43, 8", "v_lshlrev_b32 v36, 4, v2", "v_add_u32 v36, s38, v36",
                "v_lshrrev_b32 v37, 1, v3", "v_lshl_add_u32 v37, v37, 9, v36",
                "s_lshl_b32 s38, s42, 10", "s_add_u32 s38, s38, s41",
                "s_lshl_b32 s39, s42, 2", "s_add_u32 s39, s39, s41", f"s_add_u32 s39, s39, {KV_K2}")
            k.e("s_waitcnt lgkmcnt(0)")
            for i in range(8):
                k.e(f"v_fma_f32 v{A+i}, -v6, v{16+i}, v{A+i}")
            for i in range(8):
                k.e(f"v_mul_f32 v{A+i}, v7, v{A+i}")
            k.e(f"v_cvt_pk_bf16_f32 v40, v{A}, v{A+1}", f"v_cvt_pk_bf16_f32 v41, v{A+2}, v{A+3}", f"v_cvt_pk_bf16_f32 v44, v{A+6}, v{A+7}")
            k.e("v_permlane16_swap_b32 v40, v42", "v_permlane16_swap_b32 v41, v43")
            k.e(ex(0x0000ffff0000ffff), "buffer_store_dwordx4 v[40:43], v37, s[16:19], s38 offen sc1",
                ex(0xffff0000), "buffer_store_dword v44, v36, s[16:19], s39 offen sc1", ex(-1))
            k.e("s_or_b32 s39, s42, s28", "s_cmp_lg_u32 s39, 0", "s_cbranch_scc1 a_kv_nod", f"s_add_u32 s38, s38, {IMG}",
                ex(0x0000ffff0000ffff), "buffer_store_dwordx4 v[40:43], v37, s[16:19], s38 offen sc1", ex(-1))
            k.label("a_kv_nod")
            k.e("s_or_b32 s38, s42, s43", "s_cmp_lg_u32 s38, 0", "s_cbranch_scc1 a_kv_noc")
            k.e("v_mov_b32 v24, 0x3f803f80", "v_mov_b32 v25, 0x00003f80", "v_mov_b32 v26, 0x3f803f80", "v_mov_b32 v27, 0x00003f80",
                "v_mov_b32 v12, 0", f"s_add_u32 s38, s41, {KV_K2 + 512}", ex(1), "buffer_store_dwordx4 v[24:27], v12, s[16:19], s38 offen sc1", ex(-1))
            k.label("a_kv_noc")
            k.e(f"v_mul_f32 v45, v{A+6}, v{A+6}", f"v_fmac_f32 v45, v{A+7}, v{A+7}",
                "v_cmp_eq_u32 vcc, 1, v3", "v_cndmask_b32 v45, 0, v45, vcc")
            for i in range(4):
                k.e(f"v_fmac_f32 v45, v{A+i}, v{A+i}")
            reduce_g_add(k, [45], [46])
            for sh in (8, 4, 2, 1):
                k.e(f"v_max_f32_dpp v45, v45, v45 row_ror:{sh} row_mask:0xf bank_mask:0xf")
            k.e("s_branch a_kv_pub")
        else:
            k.e("v_lshlrev_b32 v32, 2, v2", f"v_add_u32 v32, {A_SKV}, v32", "v_lshlrev_b32 v33, 4, v3", f"v_add_u32 v33, {A_ST}, v33",
                "ds_read_b32 v6, v32", "ds_read_b32 v7, v32 offset:64", "ds_read_b128 v[16:19], v33", "ds_read_b128 v[20:23], v33 offset:64")
            k.e("s_mul_i32 s38, s42, 1216", "s_mul_i32 s39, s43, 608", "s_add_u32 s38, s38, s39", "s_add_u32 s38, s38, s41",
                f"s_add_u32 s38, s38, {KV_V}", "s_movk_i32 s39, 304", "v_and_b32 v36, 1, v3", "v_mul_u32_u24 v37, s39, v36",
                "v_lshl_add_u32 v37, v2, 4, v37", "v_lshrrev_b32 v36, 1, v3", "s_movk_i32 s39, 160", "v_mad_u32_u24 v37, v36, s39, v37")
            k.e("s_waitcnt lgkmcnt(0)")
            for t in range(2):
                for i in range(4):
                    k.e(f"v_fma_f32 v{A+4*t+i}, -v{16+i}, v{6+t}, v{A+4*t+i}")
                for i in range(4):
                    k.e(f"v_mul_f32 v{A+4*t+i}, v{20+i}, v{A+4*t+i}")
            for i in range(4):
                k.e(f"v_cvt_pk_bf16_f32 v{40+i}, v{A+2*i}, v{A+2*i+1}")
            k.e("v_mov_b32 v39, 0x3f803f80", "v_cmp_eq_u32 vcc, 8, v2", "v_cndmask_b32 v42, v42, v39, vcc", "v_cndmask_b32 v43, v43, v39, vcc")
            k.e("v_permlane32_swap_b32 v40, v42", "v_permlane32_swap_b32 v41, v43")
            k.e(ex(0x01c001c0ffffffff), "buffer_store_dwordx4 v[40:43], v37, s[16:19], s38 offen sc1", ex(-1), "v_mov_b32 v45, 0")
    k.label("a_kv_pub")
    sta(k, 5)
    lds_wait(k, LDS_NON, 1, "non")
    get_nonce(k)
    k.e("v_mov_b32 v44, s66", "v_mov_b32 v12, 0", "s_waitcnt vmcnt(0)")
    sta(k, 6)
    k.e(ex(1), "buffer_store_dwordx2 v[44:45], v12, s[16:19], s49 offen sc1", ex(-1))
    k.e("s_waitcnt vmcnt(0)")
    lds_signal(k, LDS_KVS)
    sta(k, 7)
    sta(k, 8)


def a_swave(k):
    k.e("s_setprio 3")
    k.e("s_cmp_eq_u32 s30, 7", "s_cbranch_scc1 a_s_7")
    a_wkv_dma(k)
    k.e("s_barrier", "s_branch a_s_c")
    k.label("a_s_7")
    k.e("s_mul_i32 s34, s47, 1536", "v_min_u32 v12, 11, v1", "v_lshlrev_b32 v12, 7, v12", "v_add_u32 v12, s34, v12",
        f"v_min_u32 v12, CODE_BYTES - 4, v12", "global_load_dword v18, v12, s[62:63]")
    srd(k, 56, 74, 256)
    k.e("v_mov_b32 v10, 0")
    k.e("v_min_u32 v12, 38, v1", "v_lshlrev_b32 v12, 2, v12", f"v_add_u32 v12, {LDS_RDY}, v12", "v_mov_b32 v13, 0",
        "ds_write_b32 v12, v13", "v_lshlrev_b32 v12, 2, v1", f"v_add_u32 v12, {A_SQ}, v12", "ds_write_b32 v12, v13", "ds_write_b32 v12, v13 offset:64",
        "s_waitcnt lgkmcnt(0)")
    if os.environ.get("TOUCH", "0") == "1":
        k.e("buffer_load_dword v18, v10, s[56:59], 0 offen sc1", f"s_mov_b32 s34, {FK}", "buffer_load_dword v19, v10, s[16:19], s34 offen sc1",
            f"s_mov_b32 s34, {WS_KV}", "buffer_load_dword v20, v10, s[16:19], s34 offen sc1")
    k.e("s_barrier")
    sta(k, 4)
    sta(k, 5)
    sta(k, 6)
    sta(k, 7)
    sta(k, 8)
    k.e(f"s_mov_b32 s3, {SPIN}")
    k.label("a_s_np")
    k.e("s_sleep 4", "buffer_load_dwordx2 v[14:15], v10, s[56:59], 0 offen sc1", "s_sleep 4", "buffer_load_dwordx2 v[16:17], v10, s[56:59], 0 offen sc1",
        "s_waitcnt vmcnt(1)", "v_readfirstlane_b32 s39, v14", "s_cmp_lg_u32 s39, 0", "s_cbranch_scc1 a_s_nd",
        "s_waitcnt vmcnt(0)", "v_mov_b32 v14, v16", "v_mov_b32 v15, v17", "v_readfirstlane_b32 s39, v16", "s_cmp_lg_u32 s39, 0", "s_cbranch_scc1 a_s_nd",
        "s_sub_u32 s3, s3, 1", "s_cbranch_scc0 a_s_np")
    k.label("a_s_nd")
    k.e(f"v_mov_b32 v12, {LDS_NON}", "ds_write_b64 v12, v[14:15]")
    k.label("a_s_c")
    for i in range(4):
        k.e(f"v_mov_b32 v{QONES+i}, 0x3f803f80")
    for r in range(QACC, QACC + 20):
        k.e(f"v_mov_b32 v{r}, 0")
    k.e("s_cmp_lg_u32 s30, 5", "s_cbranch_scc1 a_s_q")
    tr_addr(k, A_WKV, None, 48)
    k.e("s_waitcnt vmcnt(0)")
    lds_signal(k, LDS_KVI)
    lds_signal(k, LDS_WKI)
    lds_wait(k, LDS_WKI, 3, "wki")
    k.stamp(1)
    wkv_rd(k, 0, QX0)
    wkv_rd(k, 1, QX0 + 8)
    for s in range(18):
        if s + 2 < 18:
            wkv_rd(k, s + 2, QX0 + 8 * ((s + 2) % 3))
        k.e(f"s_waitcnt lgkmcnt({min(8, 4*(17-s))})")
        for t in range(2):
            a = r4(QACC + 4 * t)
            k.e(f"v_mfma_f32_16x16x32_bf16 {a}, {r4(QONES)}, {r4(QX0+8*(s%3)+4*t)}, {a}")
    k.e("v_lshlrev_b32 v32, 2, v2", f"v_add_u32 v32, {A_SKV}, v32", f"ds_write_b32 v32, v{QACC}", f"ds_write_b32 v32, v{QACC+4} offset:64",
        "s_waitcnt lgkmcnt(0)")
    lds_signal(k, LDS_KVS)
    k.e("s_branch a_s_done")
    k.label("a_s_q")
    k.e("s_cmp_eq_u32 s30, 7", "s_cbranch_scc1 a_s_nx", "s_waitcnt vmcnt(0)")
    lds_signal(k, LDS_KVI)
    lds_signal(k, LDS_WKI)
    if os.environ.get("DRY", "0") == "1":
        k.stamp(1)
        tr_addr(k, A_WQ0, A_WQ1, 160)
        k.e("s_setprio 0", "s_branch a_q_gemm")
    k.label("a_s_nx")
    k.stamp(1)
    k.label("a_s_done")
    k.e("s_waitcnt vmcnt(0)")


def a_helper(k):
    k.e("; ==== helper waves: wq loader, then K/V gather")
    k.e("s_setprio 1", "s_sub_u32 s31, s30, 8")
    srd(k, 20, 68, WQB)
    if os.environ.get("PFQ", "1") == "1":
        k.e("s_cmp_lg_u32 s31, 0", "s_cbranch_scc1 a_h_nopf",
            "v_min_u32 v12, 20, v1", "v_lshlrev_b32 v12, 7, v12", "s_mul_i32 s34, s2, 2592", "s_and_b32 s34, s34, 0xffffff80",
            "buffer_load_dword v21, v12, s[20:23], s34 offen", ("buffer_load_dword v21, v12, s[20:23], s34 offen offset:64" if os.environ.get("PF64") else ""))
        k.label("a_h_nopf")
    k.e("s_movk_i32 s40, 6554", "s_movk_i32 s41, 1152")
    for i in range(5):
        dma_slot_calc(k, i, 32, 33, 34, 35)
        k.e("v_min_u32 v34, 8, v34", f"v_mul_u32_u24 v{16+i}, s41, v35", f"v_lshl_add_u32 v{16+i}, v34, 4, v{16+i}")
    k.e("s_add_u32 s42, s31, s48", "s_mul_i32 s32, s29, 144", "s_mul_i32 s43, s31, 5120")

    def wdma(base):
        k.e("s_sub_u32 s36, s42, 18", "s_min_u32 s42, s42, s36", "s_mul_i32 s36, s42, 36864", "s_add_u32 s36, s36, s32")
        for i in range(5):
            k.e(f"s_add_u32 m0, s43, {base + i*1024}", "s_nop 0", f"buffer_load_dwordx4 v{16+i}, s[20:23], s36 offen lds")
        k.e("s_add_u32 s42, s42, 4")
    k.e("s_barrier")
    wdma(A_WQ0)
    wdma(A_WQ0 + 20480)
    k.e("s_waitcnt vmcnt(0)")
    lds_signal(k, LDS_WQC)
    sta(k, 3)
    lds_wait(k, LDS_XC, 4, "xc")
    k.e("s_setprio 3")
    k.stamp(1)
    wdma(A_WQ1)
    wdma(A_WQ1 + 20480)
    k.e("s_cmp_ge_u32 s31, 2", "s_cbranch_scc1 a_h_skip")
    wdma(A_WQ1 + 40960)
    k.label("a_h_skip")
    for ci, n in ((1, 5), (2, 0)):
        k.e(f"s_waitcnt vmcnt({n})")
        lds_signal(k, LDS_WQC + 4 * ci)
        sta(k, 3 + ci)
    lds_wait(k, LDS_KVS, 3, "pub")
    get_nonce(k)
    sta(k, 6)
    k.e("v_lshrrev_b32 v10, 3, v1", "v_lshlrev_b32 v10, 7, v10", "v_and_b32 v9, 7, v1", "v_lshl_add_u32 v10, v9, 3, v10",
        "s_lshl_b32 s34, s31, 10", f"s_add_u32 s35, s34, {FK}")
    poll(k, 10, 35, 14, "k", sleep=int(os.environ.get("KSL", "10")), lo_only=True, first=int(os.environ.get("KF", "0")))
    sta(k, 7)
    k.e(f"v_mov_b32 v12, {LDS_KMX}", "ds_max_u32 v12, v15")
    lds_signal(k, LDS_KVR)
    k.e("s_lshr_b32 s35, s2, 3", "s_add_u32 s35, s35, s2", "s_and_b32 s35, s35, 15", f"s_mul_i32 s35, s35, {GRP}", "s_add_u32 s35, s35, s34",
        f"v_add_u32 v10, {WS_KV}, v11")
    lds_wait(k, LDS_KVR, 4, "kvr")
    k.e("s_or_b32 s36, s2, s31", "s_cmp_lg_u32 s36, 0", "s_cbranch_scc1 a_h_noclr")
    srd(k, 56, 74, 256)
    k.e("v_mov_b32 v12, 0", "v_mov_b32 v13, 0", ex(1), "buffer_store_dwordx2 v[12:13], v12, s[56:59], 0 offen sc1", ex(-1))
    k.label("a_h_noclr")
    sta(k, 8)
    kv_dma(k, 0, 7)


def gen_one(name):
    k = Kernel(name, vgprs=168)
    k.e("s_getpc_b64 s[62:63]")
    k.label("mega_pc")
    k.e("s_cmp_ge_u32 s2, 256", "s_cbranch_scc1 mega_end")
    k.e("s_memrealtime s[60:61]")
    k.e("s_load_dwordx2 s[10:11], s[0:1], 0", "s_load_dwordx4 s[68:71], s[0:1], 8", "s_load_dwordx2 s[72:73], s[0:1], 24",
        "s_load_dwordx2 s[8:9], s[0:1], 32", "s_load_dwordx4 s[4:7], s[0:1], 48", "s_load_dwordx2 s[14:15], s[0:1], 64",
        "s_load_dwordx2 s[74:75], s[0:1], 72", "s_load_dwordx2 s[12:13], s[0:1], 80")
    k.stamp(0)
    k.e("v_and_b32 v1, 63, v0", "v_and_b32 v2, 15, v0", "v_bfe_u32 v3, v0, 4, 2", "v_lshrrev_b32 v7, 6, v0",
        "v_lshlrev_b32 v11, 4, v1", "v_readfirstlane_b32 s30, v7")
    k.e("s_and_b32 s46, s2, 7", "s_lshr_b32 s47, s2, 3", "s_and_b32 s28, s47, 24", "s_add_u32 s28, s28, s46", "s_and_b32 s29, s47, 7",
        "s_lshr_b32 s48, s47, 3", "s_lshl_b32 s48, s48, 1", "s_add_u32 s48, s48, s29", "s_sub_u32 s34, s48, 9", "s_min_u32 s48, s48, s34",
        "s_lshl_b32 s48, s48, 1")
    k.e("s_xor_b32 s34, s30, 7", "s_or_b32 s34, s34, s2", "s_waitcnt lgkmcnt(0)", "s_cbranch_scc1 a_s_nn")
    k.e("s_or_b32 s60, s60, 1", "v_mov_b32 v14, s60", "v_mov_b32 v15, s61", "v_mov_b32 v10, 0", ex(1),
        "global_store_dwordx2 v10, v[14:15], s[74:75] sc1", ex(-1))
    k.label("a_s_nn")
    srd(k, 16, 12, WS_END)
    srd(k, 20, 10, XB)
    srd(k, 24, 8, WQB)
    k.e("s_cmp_ge_u32 s30, 8", "s_cbranch_scc1 mega_helper")
    k.e("s_cmp_ge_u32 s30, 5", "s_cbranch_scc1 a_sw", "s_cmp_eq_u32 s30, 4", "s_cbranch_scc1 a_kvw")
    a_qwave(k)
    k.e("s_branch a_done")
    k.label("a_kvw")
    a_kvwave(k)
    k.e("s_branch a_s_done")
    k.label("a_sw")
    a_swave(k)
    k.label("a_done")
    k.e("s_setprio 3")
    k.e("s_mov_b32 s52, 0")
    attention(k)
    k.e("s_cmp_lg_u32 s52, 0", "s_cbranch_scc1 mega_ringed")
    ffn_ring_start(k)
    k.label("mega_ringed")
    lds_wait(k, LDS_ORD, 4, "ord2", sleep=4)
    if os.environ.get("PF1", "1") == "1":
        k.e("s_cmp_ge_u32 s30, 2", "s_cbranch_scc1 mega_nopf1",
            "s_mul_i32 s36, s30, 54", "v_min_u32 v12, 53, v1", "v_add_u32 v12, s36, v12", "s_movk_i32 s36, 7282", "v_mul_u32_u24 v13, s36, v12",
            "v_lshrrev_b32 v13, 16, v13", "v_mul_u32_u24 v14, 9, v13", "v_sub_u32 v12, v12, v14", "v_lshlrev_b32 v12, 7, v12",
            f"s_mov_b32 s36, {STREAM}", "v_mad_u32_u24 v12, v13, s36, v12",
            f"s_mul_i32 s36, s46, {1296*1024}", "s_mul_i32 s37, s47, 1152", "s_add_u32 s36, s36, s37", f"s_add_u32 s36, s36, {WS_W + 6*T*1024}",
            "buffer_load_dword v0, v12, s[16:19], s36 offen sc1", ("buffer_load_dword v0, v12, s[16:19], s36 offen offset:64 sc1" if os.environ.get("PF64") else ""))
        k.label("mega_nopf1")
    for t in range(T):
        k.e(wload(D - 1, t))
    k.e("s_waitcnt vmcnt(0)")
    stb(k, 4)
    k.e("s_branch ffn_join")
    k.label("mega_helper")
    a_helper(k)
    helper_pack(k)
    oproj(k)
    ffn(k)
    k.label("mega_end")
    k.e("s_endpgm", ".set CODE_BYTES, mega_end - mega_pc")
    return k
```
